```python
import torch

def _softmax(x, axis=-1):
    return torch.softmax(x, dim=axis)
def _gelu(x):
    return torch.nn.functional.gelu(x, approximate="tanh")
def _silu(x):
    return torch.nn.functional.silu(x)
def _sigmoid(x):
    return torch.sigmoid(x)
def _layernorm(x, axis=-1, eps=1e-5):
    m = x.mean(dim=axis, keepdim=True)
    v = x.var(dim=axis, keepdim=True, unbiased=False)
    return (x - m) / torch.sqrt(v + eps)
def _scatter_add(tgt, idx, src, axis=0):
    return tgt.clone().index_add_(axis, idx, src)
def _segment_sum(src, seg, n):
    out = torch.zeros((n,) + src.shape[1:], dtype=src.dtype)
    return out.index_add_(0, seg, src)
def _pad(x, pw):
    flat = tuple(v for pair in reversed(pw) for v in pair)
    return torch.nn.functional.pad(x, flat)

kernel_name = 'recurrent_scan__ssm_conv_h3__mixer_channel_mlp__prompt'

def setup_inputs():

    _w = (lambda a: (lambda t: t.to(torch.bfloat16) if t.is_floating_point() else t)(torch.as_tensor(a)))
    def _A_setup():
        B, S, D = 1, 2048, 512
        ks = 4
        return {
            "q": _w((lambda *s: torch.randn(*s, dtype=torch.bfloat16) * 0.05)(B, S, D)),
            "k": _w((lambda *s: torch.randn(*s, dtype=torch.bfloat16) * 0.8)(B, S, D)),
            "v": _w((lambda *s: torch.randn(*s, dtype=torch.bfloat16) * 0.8)(B, S, D)),
            "shift_k": _w((lambda *s: torch.randn(*s, dtype=torch.bfloat16) * 0.8)(D, ks) * 0.5),
            "ssm_k": _w((lambda *s: torch.randn(*s, dtype=torch.bfloat16) * 0.8)(D, S) * (1.0 / S ** 0.5)),
            "ssm_D": _w((lambda *s: torch.randn(*s, dtype=torch.bfloat16) * 0.8)(D)),
        }
    _A_in = _A_setup()

    def _B_setup():
        B, S, D, F = 1, 2048, 512, 1376
        return {
            "x": _w((lambda *s: torch.randn(*s, dtype=torch.bfloat16) * 0.05)(B, S, D)),
            "w1": _w((lambda *s: torch.randn(*s, dtype=torch.bfloat16) * 0.8)(D, F) * (D ** -0.5)),
            "b1": _w((lambda *s: torch.randn(*s, dtype=torch.bfloat16) * 0.4)(F)),
            "w2": _w((lambda *s: torch.randn(*s, dtype=torch.bfloat16) * 0.2)(F, D) * (F ** -0.5)),
            "b2": _w((lambda *s: torch.randn(*s, dtype=torch.bfloat16) * 0.2)(D)),
        }
    _B_in = _B_setup()

    return {
        "A_q": _A_in["q"],
        "A_k": _A_in["k"],
        "A_v": _A_in["v"],
        "A_shift_k": _A_in["shift_k"],
        "A_ssm_k": _A_in["ssm_k"],
        "A_ssm_D": _A_in["ssm_D"],
        "B_x": _B_in["x"],
        "B_w1": _B_in["w1"],
        "B_b1": _B_in["b1"],
        "B_w2": _B_in["w2"],
        "B_b2": _B_in["b2"],
    }

def reference(A_q, A_k, A_v, A_shift_k, A_ssm_k, A_ssm_D, B_x, B_w1, B_b1, B_w2, B_b2):
    def _A_ref(q, k, v, shift_k, ssm_k, ssm_D):
        B, S, D = q.shape
        ks = shift_k.shape[-1]
        k_pad = _pad(k, ((0, 0), (ks - 1, 0), (0, 0)))
        k_shift = torch.zeros_like(k)
        for t in range(ks):
            k_shift = k_shift + k_pad[:, t:t + S, :] * shift_k[:, ks - 1 - t][None, None, :]
        kv = k_shift * v
        L = 2 * S
        kv_pad = _pad(kv, ((0, 0), (0, S), (0, 0)))
        kf_pad = _pad(ssm_k, ((0, 0), (0, S)))
        kv_f = (lambda x, axes=(-2,-1): torch.fft.rfft2(x.float(), dim=axes))(kv_pad[:, None, :, :], axes=(1, 2))
        kf_f = (lambda x, axes=(-2,-1): torch.fft.rfft2(x.float(), dim=axes))(kf_pad[:, None, :], axes=(1, 2))
        kf_f = (lambda x, *d: x.permute(*d))(kf_f, 1, 2, 0)
        y_f = kv_f * kf_f[None, :, :, :]
        y = (lambda x, s, axes=(-2,-1): torch.fft.irfft2(x, s=s, dim=axes).to(torch.bfloat16))(y_f, (1, L), axes=(1, 2))[:, 0, :S, :]
        y = y + kv * ssm_D[None, None, :]
        return q * y

    def _B_ref(x, w1, b1, w2, b2):
        y = _layernorm(x, axis=-1)
        h = _gelu(torch.einsum("bsd,df->bsf", y, w1) + b1)
        return torch.einsum("bsf,fd->bsd", h, w2) + b2

    x = A_q
    xn = _layernorm(x, axis=-1)
    s = _A_ref(xn, A_k, A_v, A_shift_k, A_ssm_k, A_ssm_D)
    g = _silu(_B_ref(xn, B_w1, B_b1, B_w2, B_b2))
    return x + s * g
```

```python
import re

TRANS = ("v_exp_f32", "v_log_f32", "v_rcp_f32", "v_rsq_f32", "v_sqrt_f32", "v_sin_f32", "v_cos_f32")


def _regs(tok):
    tok = tok.strip()
    tok = tok.lstrip("-")
    if tok.startswith("abs(") or tok.startswith("|"):
        tok = tok.replace("abs(", "").replace(")", "").replace("|", "")
    m = re.fullmatch(r"([vas])\[(\d+):(\d+)\]", tok)
    if m:
        return [(m.group(1), i) for i in range(int(m.group(2)), int(m.group(3)) + 1)]
    m = re.fullmatch(r"([vas])(\d+)", tok)
    if m:
        return [(m.group(1), int(m.group(2)))]
    if tok == "vcc":
        return [("s", 106), ("s", 107)]
    if tok == "vcc_lo":
        return [("s", 106)]
    if tok == "vcc_hi":
        return [("s", 107)]
    if tok == "exec":
        return [("s", 126), ("s", 127)]
    if tok == "exec_lo":
        return [("s", 126)]
    if tok == "exec_hi":
        return [("s", 127)]
    if tok == "m0":
        return [("s", 124)]
    return []


class Ins:
    __slots__ = ("text", "op", "cls", "wr", "rd", "srcc", "ab", "lds", "wide_store")

    def __init__(self, text):
        self.text = text
        t = text.split(";")[0].strip()
        parts = t.split(None, 1)
        self.op = op = parts[0]
        rest = parts[1] if len(parts) > 1 else ""
        ops = []
        cur = ""
        depth = 0
        for ch in rest:
            if ch in "[(":
                depth += 1
            if ch in "])":
                depth -= 1
            if ch == "," and depth == 0:
                ops.append(cur.strip())
                cur = ""
            else:
                cur += ch
        if cur.strip():
            ops.append(cur.strip())
        mods = ""
        if ops:
            sp = ops[-1].split(None, 1)
            if len(sp) > 1:
                ops[-1] = sp[0]
                mods = sp[1]
        self.wr, self.rd, self.srcc, self.ab = [], [], [], []
        self.lds = False
        self.wide_store = False
        R = [_regs(o) for o in ops]
        if op.endswith(":") or op.startswith("."):
            self.cls = "label"
        elif op.startswith("v_mfma"):
            self.cls = "mfma"
            self.wr = R[0]
            self.ab = R[1] + R[2]
            self.srcc = R[3]
            self.rd = self.ab + self.srcc
        elif op.startswith("v_"):
            self.cls = "trans" if op.replace("_e32", "").replace("_e64", "") in TRANS else "valu"
            if op.startswith("v_cmp"):
                self.wr = R[0]
                self.rd = sum(R[1:], [])
                if op.startswith("v_cmpx"):
                    self.wr = self.wr + _regs("exec")
            elif op.startswith("v_add_co") or op.startswith("v_sub_co") or op.startswith("v_addc_co") or op.startswith("v_subb_co"):
                self.wr = R[0] + R[1]
                self.rd = sum(R[2:], [])
            elif op.startswith("v_permlane") and "swap" in op:
                self.wr = R[0] + R[1]
                self.rd = R[0] + R[1]
            else:
                self.wr = R[0]
                self.rd = sum(R[1:], [])
                if op.startswith("v_fmac") or op.startswith("v_dot2c") or "dpp" in op or "row_" in mods or "quad_perm" in mods:
                    self.rd = self.rd + R[0]
                if op.startswith("v_cndmask") and len(ops) == 3:
                    self.rd = self.rd + _regs("vcc")
            if "dpp" in op or "row_" in mods or "quad_perm" in mods:
                self.cls = "dpp"
        elif op.startswith("ds_"):
            self.cls = "ds"
            if op.startswith("ds_read") or op.startswith("ds_bpermute") or op.startswith("ds_permute") or op.startswith("ds_swizzle"):
                self.wr = R[0]
                self.rd = sum(R[1:], [])
            else:
                self.rd = sum(R, [])
        elif op.startswith("buffer_") or op.startswith("global_"):
            self.cls = "vmem"
            self.lds = bool(re.search(r"\blds\b", mods))
            if "load" in op and not self.lds:
                self.wr = R[0]
                self.rd = sum(R[1:], [])
            else:
                self.rd = sum(R, [])
                if self.lds:
                    self.rd = self.rd + _regs("m0")
                if "store" in op and ("x4" in op or "x3" in op):
                    self.wide_store = R[0] if op.startswith("buffer_") else R[1]
        elif op.startswith("s_"):
            self.cls = "salu"
            if op in ("s_waitcnt", "s_barrier", "s_nop", "s_sleep", "s_endpgm", "s_setprio") or op.startswith("s_cbranch") or op == "s_branch":
                self.cls = "sctl"
            elif op.startswith("s_cmp") or op.startswith("s_bitcmp"):
                self.rd = sum(R, [])
            elif op.startswith("s_load") or op.startswith("s_memtime") or op.startswith("s_memrealtime"):
                self.cls = "smem"
                self.wr = R[0]
                self.rd = sum(R[1:], [])
            else:
                self.wr = R[0]
                self.rd = sum(R[1:], [])
                if "saveexec" in op:
                    self.wr = self.wr + _regs("exec")
        else:
            raise ValueError("unknown op " + text)

    def states(self):
        if self.cls == "label":
            return 0
        if self.op == "s_nop":
            return int(self.text.split()[1]) + 1
        return 1


VALU_LIKE = ("valu", "trans", "dpp")


def need(p, c):
    n = 0
    pw = set(p.wr)
    if p.cls == "mfma":
        if c.cls == "mfma":
            if pw & set(c.ab):
                n = max(n, 8)
            if pw & set(c.srcc):
                if set(c.srcc) != pw:
                    n = max(n, 6)
            elif pw & set(c.wr):
                n = max(n, 6)
        elif c.cls in VALU_LIKE or c.cls in ("ds", "vmem"):
            if pw & (set(c.rd) | set(c.wr)):
                n = max(n, 8)
        if c.cls in VALU_LIKE and set(p.srcc) & set(c.wr):
            n = max(n, 3)
    if p.cls in VALU_LIKE:
        vw = {r for r in pw if r[0] in "va"}
        sw = {r for r in pw if r[0] == "s"}
        if c.cls == "mfma" and vw & set(c.rd):
            n = max(n, 2)
        if c.cls == "mfma" and (("s", 126) in sw):
            n = max(n, 4)
        if c.cls == "dpp" and vw & set(c.rd):
            n = max(n, 2)
        if c.cls == "dpp" and ("s", 126) in sw:
            n = max(n, 5)
        if c.op.startswith("v_permlane") and vw & set(c.rd):
            n = max(n, 2)
        if (c.op.startswith("v_readfirstlane") or c.op.startswith("v_readlane")) and vw & set(c.rd):
            n = max(n, 1)
        if c.cls == "vmem" and sw & set(c.rd):
            n = max(n, 5)
        if c.cls in VALU_LIKE and sw & set(c.rd):
            n = max(n, 4 if c.op.startswith("v_readlane") or c.op.startswith("v_writelane") else 2)
        if c.cls in ("salu", "sctl", "smem") and sw & set(c.rd):
            n = max(n, 1)
        if p.cls == "trans" and c.cls in ("valu", "dpp", "mfma", "ds", "vmem") and vw & set(c.rd):
            n = max(n, 1)
        if ("sdwa" in p.op or "op_sel" in p.text) and c.cls in VALU_LIKE and vw & (set(c.rd) | set(c.wr)) and not p.op.startswith("v_pk_"):
            n = max(n, 1)
    if p.cls == "salu":
        if ("s", 124) in pw and c.cls == "vmem" and c.lds:
            n = max(n, 1)
    if p.cls == "vmem" and p.wide_store:
        if set(p.wide_store) & set(c.wr):
            n = max(n, 2)
    return n


class Gen:
    def __init__(self):
        self.ins = []
        self.vm = []
        self.lg = []
        self.smem_out = False
        self.pools = {"v": [None] * 256, "a": [None] * 256, "s": [None] * 102}
        self.names = {}
        self.hw = {"v": 0, "a": 0, "s": 0}

    def alloc(self, kind, name, n=1, align=None, lo=0, at=None):
        pool = self.pools[kind]
        if align is None:
            align = 1 if n == 1 else (2 if kind in "va" else (4 if n >= 4 else 2))
        assert name not in self.names, name
        rng = [at] if at is not None else range(lo, len(pool) - n + 1)
        for b in rng:
            if b % align:
                continue
            if all(pool[b + i] is None for i in range(n)):
                for i in range(n):
                    pool[b + i] = name
                self.names[name] = (kind, b, n)
                self.hw[kind] = max(self.hw[kind], b + n)
                return b
        raise RuntimeError(f"out of {kind} regs for {name} ({n}); used: {self.usage(kind)}")

    def usage(self, kind):
        return {k: v[1:] for k, v in self.names.items() if v[0] == kind}

    def free(self, *names):
        for name in names:
            kind, b, n = self.names.pop(name)
            for i in range(n):
                self.pools[kind][b + i] = None

    def r(self, name, off=0, n=None):
        kind, b, tot = self.names[name]
        if n is None:
            n = tot - off if off == 0 else 1
        assert off + n <= tot, (name, off, n, tot)
        if n == 1:
            return f"{kind}{b + off}"
        return f"{kind}[{b + off}:{b + off + n - 1}]"

    def e(self, text, tag=None):
        for line in text.split("\n"):
            line = line.strip()
            if not line:
                continue
            i = Ins(line)
            self.ins.append(i)
            if i.cls == "vmem":
                self.vm.append(tag)
            elif i.cls == "ds":
                self.lg.append(tag)
            elif i.cls == "smem":
                self.smem_out = True

    def label(self, name):
        self.ins.append(Ins(name + ":"))

    def comment(self, s):
        self.ins.append(Ins(".if 0"))
        self.ins.pop()

    def _cnt(self, lst, tag):
        idx = max(i for i, t in enumerate(lst) if t == tag)
        return len(lst) - 1 - idx

    def wait(self, vm=None, lg=None):
        parts = []
        if vm is not None:
            n = 0 if vm == 0 else self._cnt(self.vm, vm)
            assert n <= 63, ("vmcnt overflow", vm, n)
            parts.append(f"vmcnt({n})")
        if lg is not None:
            n = 0 if (lg == 0 or self.smem_out) else self._cnt(self.lg, lg)
            n = min(n, 15)
            if n == 0:
                self.smem_out = False
            parts.append(f"lgkmcnt({n})")
        self.e("s_waitcnt " + " ".join(parts))

    def finish(self, align8=True):
        out = []
        hist = []
        nops = 0
        for i in self.ins:
            if i.cls != "label":
                req = 0
                dist = 0
                for p in reversed(hist):
                    nd = need(p, i)
                    if nd > dist:
                        req = max(req, nd - dist)
                    dist += p.states()
                    if dist >= 20:
                        break
                if req:
                    nop = Ins(f"s_nop {req - 1}")
                    out.append(nop)
                    hist.append(nop)
                    nops += 1
                hist.append(i)
            out.append(i)
        self.nops = nops
        return "\n".join(("" if x.cls == "label" else "    ") + x.text for x in out)


def interleave(main, fill, start=0, every=1, per=1):
    out = []
    f = list(fill)
    for n, m in enumerate(main):
        out.append(m)
        if n >= start and (n - start) % every == 0:
            for _ in range(per):
                if f:
                    out.append(f.pop(0))
    out.extend(f)
    return out
```

```python
import sys, struct
from dsl import Gen, interleave

NAME = "recurrent_scan__ssm_conv_h3__mixer_channel_mlp__prompt"
opt = dict(a.split("=") for a in sys.argv[2:])
OUT = sys.argv[1]
MAP1 = int(opt.get("map1", 4))
STAMPS = int(opt.get("stamps", 0))
KVPOL = opt.get("kvpol", "nt")
XPOL0 = opt.get("xpol", "nt")
SPINMAX = int(opt.get("spinmax", 0))

KVT, HB, YT, FL, EPOCH, STAMP = 0, 0x200000, 0x800000, 0xA00000, 0xB00000, 0xC00000
F1B, F2B, F3B, FSTR = FL, FL + 0x40000, FL + 0x80000, 4352
WSZ = 0xD00000
XST, KVIMG, CSX, STT = 98304, 147456, 155776, 156160
CV, CHS, FP, GP, UO = 98304, 25792, 4160, 4576, 16640
PX = CV
LDSZ = 157184


def f2u(x):
    return struct.unpack("<I", struct.pack("<f", x))[0]


g = Gen()
e, r = g.e, g.r
V = lambda n, c=1, **k: g.alloc("v", n, c, **k)
S = lambda n, c=1, **k: g.alloc("s", n, c, **k)
AC = lambda n, c=1, **k: g.alloc("a", n, c, **k)

S("karg", 2, at=0); S("wg", 1, at=2); S("t0", 1, at=3)
S("t45", 4, at=4)
S("p0", 16, at=8); S("p1", 8, at=24); S("p2", 4, at=32)
V("tid", 1, at=0)
nst = [0]
stnames = []
pend = []
if STAMPS:
    S("st", 8, at=94, align=2)
    V("stamps", 1, at=255)


def flush_stamps(force=False):
    if pend and (force or len(pend) == 4) and g.smem_out:
        g.wait(lg=0)
    if not g.smem_out:
        for k in pend:
            e(f"v_writelane_b32 {r('stamps')}, {r('st', 2 * (k % 4), 1)}, {k}")
        pend.clear()


def stamp(name):
    if STAMPS:
        assert nst[0] < 32
        flush_stamps()
        e(f"s_memrealtime {r('st', 2 * (nst[0] % 4), 2)}")
        pend.append(nst[0])
        nst[0] += 1
        stnames.append(name)


def ptr(i):
    if i < 8:
        return r("p0", 2 * i, 2)
    if i < 12:
        return r("p1", 2 * (i - 8), 2)
    return r("p2", 2 * (i - 12), 2)


def plo(i):
    return "s" + ptr(i)[2:].split(":")[0]


def phi(i):
    return "s" + ptr(i).split(":")[1][:-1]


def srd(name, pi, nbytes, add=None):
    if add is None:
        e(f"s_mov_b32 {r(name,0,1)}, {plo(pi)}")
        e(f"s_mov_b32 {r(name,1,1)}, {phi(pi)}")
    else:
        e(f"s_add_u32 {r(name,0,1)}, {plo(pi)}, {add}")
        e(f"s_addc_u32 {r(name,1,1)}, {phi(pi)}, 0")
    e(f"s_mov_b32 {r(name,2,1)}, {nbytes}")
    e(f"s_mov_b32 {r(name,3,1)}, 0x00020000")


T0, T1_, T2, T3, T4 = "s3", "s4", "s5", "s6", "s7"

stamp("start")
e(f"s_load_dwordx16 {r('p0')}, s[0:1], 0")
e(f"s_load_dwordx8 {r('p1')}, s[0:1], 64")
e(f"s_load_dwordx4 {r('p2')}, s[0:1], 96")
e("s_cmp_ge_u32 s2, 256")
e("s_cbranch_scc1 L_end")
V("lane"); V("ta"); V("tb"); V("tc"); V("td")
V("r8"); V("pc"); V("zero"); V("i15"); V("h4"); V("l16"); V("vtag", 2); V("xs", 4, align=1); V("b2r", 8); V("oa")
V("w2s", 4, align=1); V("w2r", 4, align=1)
for n in ("wave", "T1", "q", "tt2", "ns", "rot", "rot2", "b0", "nown"):
    S(n)
e(f"v_and_b32 {r('lane')}, 63, v0")
e(f"v_lshrrev_b32 {r('ta')}, 6, v0")
e(f"s_and_b32 {T0}, s2, 7")
e(f"v_readfirstlane_b32 {r('wave')}, {r('ta')}")
e(f"s_lshr_b32 {T1_}, s2, 3")
if MAP1 == 8:
    e(f"s_lshr_b32 {T2}, {T1_}, 4")
    e(f"s_lshl_b32 {r('T1')}, {T0}, 1")
    e(f"s_add_u32 {r('T1')}, {r('T1')}, {T2}")
    e(f"s_and_b32 {r('q')}, {T1_}, 15")
    e(f"s_lshl_b32 {T2}, {T2}, 1")
    e(f"s_add_u32 {r('rot')}, {T2}, {r('q')}")
    e(f"s_lshr_b32 {r('rot2')}, {T1_}, 3")
else:
    e(f"s_lshr_b32 {T2}, {T0}, 1")
    e(f"s_lshl_b32 {T2}, {T2}, 2")
    e(f"s_lshr_b32 {r('rot2')}, {T1_}, 3")
    e(f"s_add_u32 {r('T1')}, {T2}, {r('rot2')}")
    e(f"s_and_b32 {T2}, {T0}, 1")
    e(f"s_lshl_b32 {T2}, {T2}, 3")
    e(f"s_and_b32 {T3}, {T1_}, 7")
    e(f"s_add_u32 {r('q')}, {T2}, {T3}")
    e(f"s_add_u32 {r('rot')}, {r('T1')}, {r('q')}")
e(f"s_and_b32 {r('rot')}, {r('rot')}, 3")
e(f"s_lshr_b32 {T2}, {r('q')}, 3")
e(f"s_lshl_b32 {r('tt2')}, {r('T1')}, 1")
e(f"s_add_u32 {r('tt2')}, {r('tt2')}, {T2}")
e(f"s_and_b32 {r('ns')}, {r('q')}, 7")
V("k0"); V("km", 3, align=1); V("sho")
e(f"v_lshrrev_b32 {r('r8')}, 3, {r('lane')}")
e(f"v_and_b32 {r('pc')}, 7, {r('lane')}")
e(f"s_lshl_b32 {T2}, {r('tt2')}, 2")
e(f"s_add_u32 {T2}, {T2}, {r('wave')}")
S("tok16")
e(f"s_mov_b32 {r('tok16')}, {T2}")
e(f"s_lshl_b32 {T2}, {T2}, 14")
S("ns128")
e(f"s_lshl_b32 {r('ns128')}, {r('ns')}, 7")
e(f"s_add_u32 {T2}, {T2}, {r('ns128')}")
S("tile0")
e(f"s_mov_b32 {r('tile0')}, {T2}")
e(f"v_lshlrev_b32 {r('ta')}, 11, {r('r8')}")
e(f"v_lshl_add_u32 {r('ta')}, {r('pc')}, 4, {r('ta')}")
e(f"v_add_u32 {r('k0')}, {T2}, {r('ta')}")
for i in range(3):
    e(f"v_subrev_u32 {r('km', i, 1)}, {1024 * (i + 1)}, {r('k0')}")
e(f"s_lshl_b32 {T3}, {r('ns')}, 9")
e(f"v_lshl_add_u32 {r('sho')}, {r('pc')}, 6, {T3}")
e(f"v_mov_b32 {r('zero')}, 0")
S("sK", 4); S("sV", 4); S("sX", 4); S("sW1", 4); S("sWS", 4)
g.wait(lg=0)
srd("sK", 1, 2097152)
V("kr", 20); V("vr", 8); V("shr", 16); V("ep", 2); V("pre")
e(f"buffer_load_dwordx4 {r('kr', 12, 4)}, {r('k0')}, {r('sK')}, 0 offen", "k")
e(f"buffer_load_dwordx4 {r('kr', 16, 4)}, {r('k0')}, {r('sK')}, 0 offen offset:1024", "k")
srd("sV", 2, 2097152)
e(f"buffer_load_dwordx4 {r('vr', 0, 4)}, {r('k0')}, {r('sV')}, 0 offen {KVPOL}", "k")
e(f"buffer_load_dwordx4 {r('vr', 4, 4)}, {r('k0')}, {r('sV')}, 0 offen offset:1024 {KVPOL}", "k")
for i in range(4):
    e(f"global_load_dwordx4 {r('shr', 4 * i, 4)}, {r('sho')}, {ptr(3)} offset:{16 * i}", "sh")
for i in range(3):
    e(f"buffer_load_dwordx4 {r('kr', 8 - 4 * i, 4)}, {r('km', i, 1)}, {r('sK')}, 0 offen", "k")
srd("sWS", 13, WSZ)
e(f"s_mov_b32 {T3}, {EPOCH}")
e(f"buffer_load_dwordx2 {r('ep')}, {r('zero')}, {r('sWS')}, {T3} offen sc1", "ep")
e(f"s_getpc_b64 {r('t45', 2, 2)}")
e(f"v_lshlrev_b32 {r('tb')}, 7, v0")
e(f"v_min_u32 {r('tb')}, CODE_BYTES, {r('tb')}")
e(f"global_load_dword {r('pre')}, {r('tb')}, {r('t45', 2, 2)}", "pre")
stamp("kviss")
V("w1s", 3, align=1)
for c in range(3):
    e(f"v_add_u32 {r('ta')}, {64 * c}, {r('lane')}")
    e(f"v_mul_u32_u24 {r('tb')}, 43691, {r('ta')}")
    e(f"v_lshrrev_b32 {r('tb')}, 19, {r('tb')}")
    e(f"v_mul_u32_u24 {r('tc')}, 12, {r('tb')}")
    e(f"v_sub_u32 {r('tc')}, {r('ta')}, {r('tc')}")
    e(f"v_lshrrev_b32 {r('td')}, 2, {r('tb')}")
    e(f"v_and_b32 {r('td')}, 2, {r('td')}")
    e(f"v_xor_b32 {r('tc')}, {r('tc')}, {r('td')}")
    e(f"v_mul_u32_u24 {r('tb')}, 2752, {r('tb')}")
    e(f"v_lshl_add_u32 {r('tb')}, {r('tc')}, 4, {r('tb')}")
    e(f"v_subrev_u32 {r('w1s', c, 1)}, {1024 * c}, {r('tb')}")
e(f"s_mul_i32 {r('b0')}, {r('q')}, 43")
e(f"s_add_u32 {r('nown')}, {r('b0')}, 43")
e(f"s_lshr_b32 {r('b0')}, {r('b0')}, 4")
e(f"s_lshr_b32 {r('nown')}, {r('nown')}, 4")
e(f"s_sub_u32 {r('nown')}, {r('nown')}, {r('b0')}")
srd("sW1", 7, 1409024)
S("w1base"); S("w1lds"); S("xbase"); S("xlds"); S("so")
e(f"s_mul_i32 {r('w1base')}, {r('wave')}, {32 * 2752}")
e(f"s_lshl_b32 {T2}, {r('b0')}, 6")
e(f"s_add_u32 {r('w1base')}, {r('w1base')}, {T2}")
e(f"s_mul_i32 {r('w1lds')}, {r('wave')}, 6144")


def dmaW1(n):
    items = []

    def head():
        e(f"s_add_u32 {T2}, {r('rot')}, {n}")
        e(f"s_and_b32 {T2}, {T2}, 3")
        e(f"s_mul_i32 {T2}, {T2}, {128 * 2752}")
        e(f"s_add_u32 {r('so')}, {T2}, {r('w1base')}")
        e(f"s_add_u32 m0, {r('w1lds')}, {n * 24576}")
    for i in range(2):
        for c in range(3):
            def it(i=i, c=c):
                if i == 0 and c == 0:
                    head()
                if i == 1 and c == 0:
                    e(f"s_add_u32 m0, {r('w1lds')}, {n * 24576 + 3072}")
                    e(f"s_add_u32 {r('so')}, {r('so')}, {16 * 2752}")
                e(f"buffer_load_dwordx4 {r('w1s', c, 1)}, {r('sW1')}, {r('so')} offen offset:{1024 * c} lds", f"W{n}")
            items.append(it)
    return items


def run(items):
    for it in items:
        it()


run(dmaW1(0))
e(f"v_lshrrev_b32 {r('ta')}, 1, {r('r8')}")
e(f"v_xor_b32 {r('ta')}, {r('ta')}, {r('pc')}")
e(f"v_lshlrev_b32 {r('ta')}, 4, {r('ta')}")
e(f"v_lshl_add_u32 {r('xs', 0, 1)}, {r('r8')}, 10, {r('ta')}")
e(f"v_xor_b32 {r('tb')}, 64, {r('xs', 0, 1)}")
e(f"v_add_u32 {r('xs', 1, 1)}, 7168, {r('tb')}")
e(f"v_add_u32 {r('xs', 2, 1)}, {2 * 7168}, {r('xs', 0, 1)}")
e(f"v_add_u32 {r('xs', 3, 1)}, {3 * 7168}, {r('tb')}")
srd("sX", 0, 2097152)
e(f"s_lshl_b32 {T2}, {r('T1')}, 2")
e(f"s_add_u32 {T2}, {T2}, {r('wave')}")
e(f"s_lshl_b32 {r('xbase')}, {T2}, 15")
S("own")
e(f"s_mul_i32 {r('own')}, {r('wave')}, 12288")
e(f"s_add_u32 {r('xlds')}, {r('own')}, {XST}")


def dmaX(ei):
    items = []
    for n in range(4):
        def it(n=n):
            if n == 0:
                e(f"s_add_u32 {T2}, {r('rot')}, {ei >> 1}")
                e(f"s_and_b32 {T2}, {T2}, 3")
                e(f"s_lshl_b32 {T2}, {T2}, 8")
                e(f"s_add_u32 {r('so')}, {T2}, {r('xbase')}")
                if ei & 1:
                    e(f"s_add_u32 {r('so')}, {r('so')}, 128")
                e(f"s_add_u32 m0, {r('xlds')}, {(ei % 3) * 4096}")
            pol = XPOL0 if ei < 2 else ""
            e(f"buffer_load_dwordx4 {r('xs', n, 1)}, {r('sX')}, {r('so')} offen offset:{1024 * n} {pol} lds", f"X{ei}")
        items.append(it)
    return items


run(dmaX(0)); run(dmaX(1)); run(dmaX(2))
stamp("p0iss")
V("xrd", 2, align=1); V("w1r", 2, align=1); V("csr", 2, align=1); V("kvw"); V("kvr"); V("kvs")
e(f"v_and_b32 {r('i15')}, 15, {r('lane')}")
e(f"v_lshrrev_b32 {r('h4')}, 4, {r('lane')}")
e(f"v_lshlrev_b32 {r('l16')}, 4, {r('lane')}")
e(f"v_lshrrev_b32 {r('ta')}, 1, {r('i15')}")
e(f"v_xor_b32 {r('ta')}, {r('ta')}, {r('h4')}")
e(f"v_lshlrev_b32 {r('ta')}, 4, {r('ta')}")
e(f"v_lshl_add_u32 {r('ta')}, {r('i15')}, 7, {r('ta')}")
e(f"v_add_u32 {r('xrd', 0, 1)}, {r('xlds')}, {r('ta')}")
e(f"v_xor_b32 {r('xrd', 1, 1)}, 64, {r('xrd', 0, 1)}")
e(f"v_lshrrev_b32 {r('ta')}, 2, {r('i15')}")
e(f"v_lshl_add_u32 {r('ta')}, {r('h4')}, 3, {r('ta')}")
e(f"v_mul_u32_u24 {r('ta')}, 192, {r('ta')}")
e(f"v_and_b32 {r('tb')}, 3, {r('lane')}")
e(f"v_lshl_add_u32 {r('ta')}, {r('tb')}, 3, {r('ta')}")
e(f"v_and_b32 {r('tb')}, 1, {r('h4')}")
e(f"v_lshlrev_b32 {r('tb')}, 5, {r('tb')}")
e(f"v_add_u32 {r('w1r', 0, 1)}, {r('ta')}, {r('tb')}")
e(f"v_sub_u32 {r('w1r', 1, 1)}, {r('ta')}, {r('tb')}")
e(f"s_lshl_b32 {T2}, {r('wave')}, 5")
e(f"v_xor_b32 {r('tc')}, {T2}, {r('tb')}")
e(f"v_add_u32 {r('csr', 0, 1)}, {r('ta')}, {r('tc')}")
e(f"s_and_b32 {T2}, {T2}, 32")
e(f"s_add_u32 {T2}, {T2}, 128")
e(f"v_xor_b32 {r('tc')}, {T2}, {r('tb')}")
e(f"v_add_u32 {r('csr', 1, 1)}, {r('ta')}, {r('tc')}")
e(f"v_mul_u32_u24 {r('ta')}, 1040, {r('pc')}")
e(f"v_lshlrev_b32 {r('tb')}, 2, {r('r8')}")
e(f"v_sub_u32 {r('ta')}, {r('ta')}, {r('tb')}")
e(f"s_lshl_b32 {T2}, {r('wave')}, 5")
e(f"s_sub_u32 {T2}, {KVIMG + 124}, {T2}")
e(f"v_add_u32 {r('kvw')}, {T2}, {r('ta')}")
e(f"s_mul_i32 {T2}, {r('wave')}, 2080")
e(f"s_add_u32 {T2}, {T2}, {KVIMG}")
e(f"v_add_u32 {r('kvr')}, {T2}, {r('l16')}")
e(f"v_lshlrev_b32 {r('ta')}, 12, {r('r8')}")
e(f"v_lshl_add_u32 {r('kvs')}, {r('pc')}, 4, {r('ta')}")
V("ones", 4)
for i in range(4):
    e(f"v_mov_b32 {r('ones', i, 1)}, 0x3f803f80")
S("hmask")
e(f"s_mov_b32 {r('hmask')}, 0xffff0000")

V("wf", 32); V("kf", 40); V("vf", 16); V("ks", 16); V("kvp", 8)
g.wait(vm="sh")
for c in range(8):
    for j in range(4):
        src = r("shr", 2 * c + (j >> 1), 1)
        if j & 1:
            e(f"v_and_b32 {r('wf', j * 8 + c, 1)}, {r('hmask')}, {src}")
        else:
            e(f"v_lshlrev_b32 {r('wf', j * 8 + c, 1)}, 16, {src}")


def unpack(dst, doff, src, soff, ndw):
    for d in range(ndw):
        e(f"v_lshlrev_b32 {r(dst, doff + 2 * d, 1)}, 16, {r(src, soff + d, 1)}")
        e(f"v_and_b32 {r(dst, doff + 2 * d + 1, 1)}, {r('hmask')}, {r(src, soff + d, 1)}")


unpack("kf", 24, "kr", 12, 8)
unpack("vf", 0, "vr", 0, 8)
g.wait(vm="k")
stamp("kv")
unpack("kf", 0, "kr", 0, 12)
w1_1 = dmaW1(1)
for t in range(2):
    for cp in range(4):
        d = r("ks", t * 8 + 2 * cp, 2)
        e(f"v_pk_mul_f32 {d}, {r('kf', (t + 0) * 8 + 2 * cp, 2)}, {r('wf', 3 * 8 + 2 * cp, 2)}")
    for j in (2, 1, 0):
        for cp in range(4):
            d = r("ks", t * 8 + 2 * cp, 2)
            e(f"v_pk_fma_f32 {d}, {r('kf', (t + 3 - j) * 8 + 2 * cp, 2)}, {r('wf', j * 8 + 2 * cp, 2)}, {d}")
    for cp in range(4):
        d = r("ks", t * 8 + 2 * cp, 2)
        e(f"v_pk_mul_f32 {d}, {d}, {r('vf', t * 8 + 2 * cp, 2)}")
for c in range(8):
    e(f"v_cvt_pk_bf16_f32 {r('kvp', c, 1)}, {r('ks', 8 + c, 1)}, {r('ks', c, 1)}")
    e(f"ds_write_b32 {r('kvw')}, {r('kvp', c, 1)} offset:{128 * c}", "kvw")
run(w1_1)
S("tag", 2)
g.wait(vm="W0", lg=0)
e(f"v_readfirstlane_b32 {T2}, {r('ep', 0, 1)}")
e(f"v_readfirstlane_b32 {T3}, {r('ep', 1, 1)}")
e("s_barrier")
e(f"ds_read_b128 {r('kvp', 0, 4)}, {r('kvr')}", "kvr")
e(f"ds_read_b128 {r('kvp', 4, 4)}, {r('kvr')} offset:1040", "kvr")
e(f"s_mul_i32 {r('tag', 0, 1)}, {T2}, 0x9E3779B1")
e(f"s_add_u32 {r('tag', 0, 1)}, {r('tag', 0, 1)}, 0x7F4A7C15")
e(f"s_mul_i32 {r('tag', 1, 1)}, {T3}, 0x85EBCA6D")
e(f"s_add_u32 {r('tag', 1, 1)}, {r('tag', 1, 1)}, 0x165667B1")
e(f"v_mov_b32 {r('vtag', 0, 1)}, {r('tag', 0, 1)}")
e(f"v_mov_b32 {r('vtag', 1, 1)}, {r('tag', 1, 1)}")
e(f"s_lshl_b32 {T2}, {r('ns')}, 2")
e(f"s_add_u32 {T2}, {T2}, {r('wave')}")
S("cg16")
e(f"s_mov_b32 {r('cg16')}, {T2}")
e(f"s_lshl_b32 {T2}, {T2}, 16")
e(f"s_sub_u32 {T3}, 31, {r('tt2')}")
e(f"s_lshl_b32 {T3}, {T3}, 7")
e(f"s_add_u32 {T2}, {T2}, {T3}")
e(f"s_add_u32 {T3}, {T2}, 32768")
g.wait(lg=0)
e(f"buffer_store_dwordx4 {r('kvp', 0, 4)}, {r('kvs')}, {r('sWS')}, {T2} offen sc1", "kvst")
e(f"buffer_store_dwordx4 {r('kvp', 4, 4)}, {r('kvs')}, {r('sWS')}, {T3} offen sc1", "kvst")
stamp("kvst")
g.free("wf", "kf", "vf", "ks", "kr", "vr", "shr", "ep", "k0", "km", "sho", "kvw", "kvr", "kvs", "sK", "sV")


def setflag(base, grp, idx, tagname):
    e(f"s_mul_i32 {T2}, {grp}, {FSTR}")
    e(f"s_lshl_b32 {T3}, {idx}, 3")
    e(f"s_add_u32 {T2}, {T2}, {T3}")
    e(f"s_add_u32 {T2}, {T2}, {base}")
    e("s_mov_b64 exec, 1")
    e(f"buffer_store_dwordx2 {r('vtag')}, {r('zero')}, {r('sWS')}, {T2} offen sc1", tagname)
    e("s_mov_b64 exec, -1")


def pollissue(reg, voff, soff, tagname):
    e(f"buffer_load_dwordx2 {reg}, {voff}, {r('sWS')}, {soff} offen sc1", tagname)


def pollcheck(reg, voff, soff, tagname):
    g.wait(vm=tagname)
    if SPINMAX:
        e(f"s_mov_b32 {T4}, 0")
    g.label(f"L_{tagname}")
    e(f"v_cmp_ne_u64 vcc, {r('tag')}, {reg}")
    e("s_cmp_eq_u64 vcc, 0")
    e(f"s_cbranch_scc1 L_{tagname}_ok")
    if SPINMAX:
        e(f"s_add_u32 {T4}, {T4}, 1")
        e(f"s_cmp_gt_u32 {T4}, {SPINMAX}")
        e(f"s_cbranch_scc1 L_{tagname}_ok")
    e("s_sleep 2")
    n = len(g.vm)
    pollissue(reg, voff, soff, None)
    e("s_waitcnt vmcnt(0)")
    del g.vm[n:]
    e(f"s_branch L_{tagname}")
    g.label(f"L_{tagname}_ok")


AC("xf", 128, at=0)
V("acc", 48); V("cs", 8); V("rs", 8); V("gr", 8); AC("wa", 48); AC("ca", 16)


def xf(kstep, tb):
    return r("xf", (kstep * 2 + tb) * 4, 4)


def rdX(ei):
    items = []
    for k in range(2):
        for tb in range(2):
            items.append(lambda k=k, tb=tb: e(
                f"ds_read_b128 {xf(ei * 2 + k, tb)}, {r('xrd', k, 1)} offset:{(ei % 3) * 4096 + tb * 2048}", f"rx{ei}"))
    return items


def rdW(n, ks):
    items = []
    base = (n & 1) * 24576 + ks * 6144
    for fb in range(6):
        for hf in range(2):
            items.append(lambda fb=fb, hf=hf: e(
                f"ds_read_b64_tr_b16 {r('wa', (ks & 1) * 24 + fb * 4 + 2 * hf, 2)}, {r('w1r', fb & 1, 1)} offset:{base + hf * 768 + fb * 32}",
                f"rw{n}_{ks}_{fb}"))
    return items


def rdC(n, ks, buf):
    items = []
    base = (n & 1) * 24576 + ks * 6144
    for c in range(2):
        for hf in range(2):
            items.append(lambda c=c, hf=hf: e(
                f"ds_read_b64_tr_b16 {r('ca', buf * 8 + c * 4 + 2 * hf, 2)}, {r('csr', c, 1)} offset:{base + hf * 768}", f"rc{n}_{ks}"))
    return items


def mfma(d, a, b, first):
    e(f"v_mfma_f32_16x16x32_bf16 {d}, {a}, {b}, {'0' if first else d}")


def mainM(n, ks):
    items = []
    K = n * 4 + ks
    for fb in range(6):
        for tb in range(2):
            def it(fb=fb, tb=tb):
                if tb == 0:
                    g.wait(lg=f"rw{n}_{ks}_{fb}")
                mfma(r("acc", (fb * 2 + tb) * 4, 4), r("wa", (ks & 1) * 24 + fb * 4, 4), xf(K, tb), K == 0)
            items.append(it)
    return items


def statM(n):
    items = []
    for ks in range(4):
        K = n * 4 + ks
        for tb in range(2):
            items.append(lambda K=K, tb=tb: mfma(r("rs", tb * 4, 4), r("ones"), xf(K, tb), K == 0))
            items.append(lambda K=K, tb=tb: mfma(r("gr", tb * 4, 4), xf(K, tb), xf(K, tb), K == 0))
    return items


def csM(n, ks, buf):
    items = []
    K = n * 4 + ks
    for c in range(2):
        def it(c=c):
            if c == 0:
                g.wait(lg=f"rc{n}_{ks}")
            mfma(r("cs", c * 4, 4), r("ca", buf * 8 + c * 4, 4), r("ones"), K == 0)
        items.append(it)
    return items


W = lambda **k: (lambda: g.wait(**k))
E = lambda s, t=None: (lambda: e(s, t))

g.wait(vm="X0"); run(rdX(0))
g.wait(vm="X1"); run(rdX(1))
stamp("x01")
g.wait(lg="rx0"); run(dmaX(3)); run(dmaW1(2))
g.wait(lg="rx1"); run(dmaX(4))


def quarter(n, mid, tail):
    run(rdW(n, 0)); run(rdC(n, 0, 0))
    run(interleave(statM(n), rdC(n, 1, 1) + rdW(n, 1), start=4, per=2))
    run(csM(n, 0, 0)); run(csM(n, 1, 1))
    run(interleave(mainM(n, 0), rdC(n, 2, 0) + rdC(n, 3, 1), start=0, per=1))
    run(interleave(mainM(n, 1), rdW(n, 2), start=0, per=1))
    run(csM(n, 2, 0)); run(csM(n, 3, 1))
    run(mid)
    run(interleave(mainM(n, 2), rdW(n, 3), start=0, per=1))
    run(mainM(n, 3))
    run(tail)


quarter(0,
        mid=[W(vm="X2")] + rdX(2) + [W(lg="rx2")] + dmaX(5) + dmaW1(3),
        tail=[W(vm="X3")] + rdX(3) + [lambda: setflag(F1B, r("cg16"), r("tt2"), "f1"), W(lg="rx3")] + dmaX(6))
e("s_barrier")
stamp("q0")
g.free("kvp", "pre")
V("b1r", 12); V("skr", 12); V("sa"); V("sb"); V("sc")
S("sSK", 4); S("sD")


def small_loads():
    e(f"s_lshl_b32 {T2}, {r('b0')}, 6")
    e(f"v_lshl_add_u32 {r('sa')}, {r('h4')}, 3, {T2}")
    for fb in range(6):
        e(f"global_load_dwordx2 {r('b1r', 2 * fb, 2)}, {r('sa')}, {ptr(8)} offset:{32 * fb}", "b1")
    e(f"s_lshr_b32 {T2}, {r('wave')}, 1")
    e(f"s_lshl_b32 {T3}, s2, 1")
    e(f"s_add_u32 {T2}, {T2}, {T3}")
    e(f"s_lshl_b32 {T2}, {T2}, 12")
    srd("sSK", 4, 4096, add=T2)
    e(f"s_and_b32 {T3}, {r('wave')}, 1")
    e(f"s_lshl_b32 {T3}, {T3}, 11")
    e(f"v_add_u32 {r('sa')}, {T3}, {r('l16')}")
    e(f"v_subrev_u32 {r('sb')}, 8, {r('sa')}")
    e(f"v_add_u32 {r('sc')}, 1016, {r('sa')}")
    e(f"buffer_load_dwordx4 {r('skr', 2, 4)}, {r('sa')}, {r('sSK')}, 0 offen", "sk")
    e(f"buffer_load_dwordx4 {r('skr', 8, 4)}, {r('sa')}, {r('sSK')}, 0 offen offset:1024", "sk")
    e(f"buffer_load_dwordx2 {r('skr', 0, 2)}, {r('sb')}, {r('sSK')}, 0 offen", "sk")
    e(f"buffer_load_dwordx2 {r('skr', 6, 2)}, {r('sc')}, {r('sSK')}, 0 offen", "sk")
    e(f"v_lshl_add_u32 {r('sa')}, {r('h4')}, 3, {r('ns128')}")
    for nb in range(4):
        e(f"global_load_dwordx2 {r('b2r', 2 * nb, 2)}, {r('sa')}, {ptr(10)} offset:{32 * nb}", "b2")


quarter(1,
        mid=[W(vm="X4")] + rdX(4) + [W(lg="rx4")] + dmaX(7) + [small_loads],
        tail=[W(vm="X5")] + rdX(5) + [
            E(f"v_add_u32 {r('w1r', 0, 1)}, 49152, {r('w1r', 0, 1)}"), E(f"v_add_u32 {r('w1r', 1, 1)}, 49152, {r('w1r', 1, 1)}"),
            E(f"v_add_u32 {r('csr', 0, 1)}, 49152, {r('csr', 0, 1)}"), E(f"v_add_u32 {r('csr', 1, 1)}, 49152, {r('csr', 1, 1)}"),
            W(lg="rx5")])
e("s_barrier")
stamp("q1")
g.free("w1s", "w1base", "w1lds", "sW1", "xbase", "sSK", "rot", "xlds", "so", "cg16", "sa", "sb", "sc")
S("sW2", 4); S("kb", 11, align=1); S("w2o")
srd("sW2", 9, 1409024)
e(f"v_and_b32 {r('ta')}, 6, {r('r8')}")
e(f"v_xor_b32 {r('ta')}, {r('ta')}, {r('pc')}")
e(f"v_lshlrev_b32 {r('ta')}, 4, {r('ta')}")
e(f"v_lshl_add_u32 {r('w2s', 0, 1)}, {r('r8')}, 10, {r('ta')}")
for n in range(1, 4):
    e(f"v_add_u32 {r('w2s', n, 1)}, {7168 * n}, {r('w2s', 0, 1)}")
e(f"s_mul_i32 {r('rot2')}, {r('rot2')}, 3")
e(f"s_mul_i32 {T2}, {r('ns')}, 11")
e(f"s_lshr_b32 {T2}, {T2}, 3")
e(f"s_add_u32 {r('rot2')}, {r('rot2')}, {T2}")
e(f"s_cmp_ge_u32 {r('rot2')}, 11")
e(f"s_cselect_b32 {T2}, 11, 0")
e(f"s_sub_u32 {r('rot2')}, {r('rot2')}, {T2}")
e(f"s_mul_i32 {T3}, {r('wave')}, 11")
for p in range(11):
    e(f"s_add_u32 {T2}, {r('rot2')}, {p}")
    e(f"s_cmp_ge_u32 {T2}, 11")
    e(f"s_cselect_b32 {T4}, 11, 0")
    e(f"s_sub_u32 {T2}, {T2}, {T4}")
    e(f"s_add_u32 {T2}, {T2}, {T3}")
    e(f"s_lshl_b32 {r('kb', p, 1)}, {T2}, 10")


def w2slot(p):
    return ((p // 3) & 1) * 49152 + (p % 3) * 4096


def dmaW2(p):
    items = []
    for n in range(4):
        def it(n=n):
            if n == 0:
                e(f"s_lshl_b32 {r('w2o')}, {r('kb', p, 1)}, 5")
                e(f"s_add_u32 m0, {r('own')}, {w2slot(p)}")
                e(f"s_add_u32 {r('w2o')}, {r('w2o')}, {r('ns128')}")
            e(f"buffer_load_dwordx4 {r('w2s', n, 1)}, {r('sW2')}, {r('w2o')} offen offset:{1024 * n} lds", f"V{p}")
        items.append(it)
    return items


quarter(2,
        mid=[W(vm="X6")] + rdX(6) + dmaW2(0) + dmaW2(1),
        tail=[W(vm="X7")] + rdX(7) + dmaW2(2) + [W(lg="rx7")])
e("s_barrier")
stamp("q2")
g.free("xrd")

V("pf1", 2); V("pf1o"); S("pf1s")
e(f"v_and_b32 {r('pf1o')}, 31, {r('lane')}")
e(f"v_lshlrev_b32 {r('pf1o')}, 3, {r('pf1o')}")
e(f"s_lshr_b32 {T2}, s2, 3")
e(f"s_mul_i32 {r('pf1s')}, {T2}, {FSTR}")
e(f"s_add_u32 {r('pf1s')}, {r('pf1s')}, {F1B}")
n = 3
run(rdW(n, 0)); run(rdC(n, 0, 0))
run(interleave(statM(n), rdC(n, 1, 1) + rdW(n, 1), start=4, per=2))
run(csM(n, 0, 0)); run(csM(n, 1, 1))
pollissue(r("pf1"), r("pf1o"), r("pf1s"), "pf1")
V("sg", 2, align=1); V("bpa"); V("sac", 4); V("stv", 4); V("u", 8, align=2)
S("m1", 2); S("m2", 2)
st1 = []
st1.append(E(f"v_and_b32 {r('ta')}, 1, {r('lane')}"))
st1.append(E(f"v_cmp_eq_u32 {r('m1')}, 1, {r('ta')}"))
st1.append(E(f"v_and_b32 {r('ta')}, 2, {r('lane')}"))
st1.append(E(f"v_cmp_eq_u32 {r('m2')}, 2, {r('ta')}"))
st1.append(E(f"v_lshrrev_b32 {r('ta')}, 2, {r('i15')}"))
st1.append(E(f"v_lshl_add_u32 {r('ta')}, {r('ta')}, 4, {r('i15')}"))
st1.append(E(f"v_lshlrev_b32 {r('bpa')}, 2, {r('ta')}"))
for tb in range(2):
    G = lambda k, tb=tb: r("gr", tb * 4 + k, 1)
    st1.append(E(f"v_cndmask_b32 {r('ta')}, {G(0)}, {G(1)}, {r('m1')}"))
    st1.append(E(f"v_cndmask_b32 {r('tb')}, {G(2)}, {G(3)}, {r('m1')}"))
    st1.append(E(f"v_cndmask_b32 {r('ta')}, {r('ta')}, {r('tb')}, {r('m2')}"))
    st1.append(E(f"ds_bpermute_b32 {r('sg', tb, 1)}, {r('bpa')}, {r('ta')}", "bp"))
run(interleave(mainM(n, 0), rdC(n, 2, 0) + rdC(n, 3, 1) + st1, start=0, per=2))
EPS = f2u(1e-5)


def rb(dst, src):
    return [E(f"v_cvt_pk_bf16_f32 {dst}, {src}, {src}"), E(f"v_and_b32 {dst}, {r('hmask')}, {dst}")]


st2 = [W(lg="bp")]
chains = []
for tb in range(2):
    mu, var, t, w = (r("u", tb * 4 + k, 1) for k in range(4))
    mb, rsd = r("stv", tb * 2, 1), r("stv", tb * 2 + 1, 1)
    a_, c_ = r("sac", tb * 2, 1), r("sac", tb * 2 + 1, 1)
    c = []
    c.append(E(f"v_mul_f32 {mu}, 0x{f2u(1 / 512):08x}, {r('rs', tb * 4, 1)}"))
    c.append(E(f"v_mul_f32 {var}, 0x{f2u(1 / 512):08x}, {r('sg', tb, 1)}"))
    c.append(E(f"v_fma_f32 {var}, -{mu}, {mu}, {var}"))
    c.append(E(f"v_max_f32 {var}, 0, {var}"))
    c += rb(mb, mu)
    c += rb(t, var)
    c.append(E(f"v_add_f32 {t}, 0x{EPS:08x}, {t}"))
    c += rb(t, t)
    c.append(E(f"v_sqrt_f32 {t}, {t}"))
    c += rb(t, t)
    c.append(E(f"v_rcp_f32 {rsd}, {t}"))
    c.append(E(f"v_sub_f32 {mu}, {mu}, {mb}"))
    c.append(E(f"v_mul_f32 {mu}, {mu}, {rsd}"))
    c.append(E(f"v_mul_f32 {var}, {var}, {rsd}"))
    c.append(E(f"v_mul_f32 {var}, {var}, {rsd}"))
    c += rb(mu, mu)
    c += rb(t, var)
    c.append(E(f"v_add_f32 {t}, 0x{EPS:08x}, {t}"))
    c += rb(t, t)
    c.append(E(f"v_sqrt_f32 {t}, {t}"))
    c += rb(t, t)
    c.append(E(f"v_rcp_f32 {w}, {t}"))
    c.append(E(f"v_fma_f32 {mu}, {mb}, {rsd}, {mu}"))
    c.append(E(f"v_mul_f32 {a_}, {rsd}, {w}"))
    c.append(E(f"v_mul_f32 {c_}, {mu}, {w}"))
    chains.append(c)
for x, y in zip(*chains):
    st2 += [x, y]
half = len(st2) // 2
run(interleave(mainM(n, 1), rdW(n, 2) + st2[:12], start=0, per=2))
run(csM(n, 2, 0)); run(csM(n, 3, 1))
V("csw"); V("stw")
pre = [E(f"s_lshl_b32 {T2}, {r('wave')}, 6"), E(f"s_add_u32 {T2}, {T2}, {CSX}"),
       E(f"v_lshl_add_u32 {r('csw')}, {r('h4')}, 4, {T2}"),
       E(f"s_and_b32 {T3}, {r('wave')}, 1"), E(f"s_lshl_b32 {T3}, {T3}, 6"), E(f"s_add_u32 {T3}, {T3}, {CSX + 256}"),
       E(f"v_lshl_add_u32 {r('stw')}, {r('h4')}, 4, {T3}")]
csw = [E("s_mov_b32 exec_lo, 0x00010001"), E("s_mov_b32 exec_hi, 0x00010001"),
       E(f"ds_write_b128 {r('csw')}, {r('cs', 0, 4)}", "csw"), E(f"ds_write_b128 {r('stw')}, {r('cs', 4, 4)}", "csw"),
       E("s_mov_b64 exec, -1")]
m2 = mainM(n, 2)
run(interleave(m2[:6], rdW(n, 3) + pre, start=0, per=3))
run(csw)
run(interleave(m2[6:], st2[12:30], start=0, per=3))
g.wait(lg=0)
e("s_barrier")
stamp("b4")
V("csf", 24); V("b1f", 24)
rcs = [E(f"v_lshlrev_b32 {r('csw')}, 4, {r('h4')}"), E(f"v_add_u32 {r('csw')}, {CSX}, {r('csw')}")]
for fb in range(6):
    rcs.append(E(f"ds_read_b128 {r('csf', 4 * fb, 4)}, {r('csw')} offset:{64 * fb}", "rcs"))
run(interleave(mainM(n, 3), rcs + st2[30:], start=0, per=3))
e(f"s_lshl_b32 {T2}, {r('wave')}, 8")
e(f"s_add_u32 {T2}, {T2}, {STT}")
e(f"v_lshl_add_u32 {r('stw')}, {r('i15')}, 3, {T2}")
e("s_mov_b64 exec, 0xffff")
e(f"ds_write_b64 {r('stw')}, {r('stv', 0, 2)}", "stw")
e(f"ds_write_b64 {r('stw')}, {r('stv', 2, 2)} offset:128", "stw")
e("s_mov_b64 exec, -1")
g.wait(vm="b1")
unpack("b1f", 0, "b1r", 0, 12)
g.free("wa", "ca", "rs", "gr", "cs", "sg", "bpa", "u", "m1", "m2", "csw", "stw", "stv", "b1r", "w1r", "csr", "ones", "xf")

S("sU", 4); S("cvb")
pollcheck(r("pf1"), r("pf1o"), r("pf1s"), "pf1")
stamp("f1")
e(f"s_lshr_b32 {T2}, {r('wave')}, 1")
e(f"s_mul_i32 {r('cvb')}, {T2}, {CHS}")
e(f"s_add_u32 {r('cvb')}, {r('cvb')}, {CV}")
e(f"s_lshl_b32 {T3}, s2, 1")
e(f"s_add_u32 {T2}, {T2}, {T3}")
S("chan")
e(f"s_mov_b32 {r('chan')}, {T2}")
e(f"s_lshl_b32 {T2}, {T2}, 12")
srd("sU", 13, 4096, add=T2)
e(f"s_and_b32 {T3}, {r('wave')}, 1")
e(f"s_mul_i32 {T4}, {T3}, {GP}")
e(f"s_add_u32 {T4}, {T4}, {r('cvb')}")
e(f"s_add_u32 m0, {T4}, {UO}")
e(f"s_lshl_b32 {T3}, {T3}, 3")
e(f"s_sub_u32 {T3}, 8, {T3}")
for n in range(4):
    e(f"buffer_load_dwordx4 {r('l16')}, {r('sU')}, {T3} offen offset:{1024 * n} sc1 lds", "U")
g.free("pf1", "pf1o", "pf1s")
V("zz", 4); V("za")
for i in range(4):
    e(f"v_mov_b32 {r('zz', i, 1)}, 0")
e(f"s_add_u32 {T4}, {T4}, {UO + 4096}")
e(f"v_add_u32 {r('za')}, {T4}, {r('l16')}")
e(f"v_subrev_u32 {r('ta')}, 28, {r('lane')}")
e(f"v_min_u32 {r('ta')}, 5, {r('ta')}")
e(f"v_cmp_lt_u32 vcc, 2, {r('ta')}")
e(f"v_lshlrev_b32 {r('ta')}, 4, {r('ta')}")
e(f"v_add_u32 {r('tb')}, {FP - 48}, {r('ta')}")
e(f"v_cndmask_b32 {r('ta')}, {r('ta')}, {r('tb')}, vcc")
e(f"s_and_b32 {T3}, {r('wave')}, 1")
e(f"s_mul_i32 {T3}, {T3}, {2 * FP}")
e(f"s_add_u32 {T3}, {T3}, {r('cvb')}")
e(f"v_add_u32 {r('ta')}, {T3}, {r('ta')}")
e(f"v_cmp_lt_u32 vcc, 27, {r('lane')}")
e(f"v_cndmask_b32 {r('za')}, {r('za')}, {r('ta')}, vcc")
e(f"ds_write_b128 {r('za')}, {r('zz')}", "zw")
V("kw"); V("ke", 12)
e(f"s_and_b32 {T3}, {r('wave')}, 1")
e(f"s_lshl_b32 {T3}, {T3}, 11")
e(f"s_add_u32 {T3}, {T3}, {r('cvb')}")
e(f"s_add_u32 {T3}, {T3}, 48")
e(f"v_add_u32 {r('kw')}, {T3}, {r('l16')}")
kcopy = [W(vm="sk")]
for n in range(2):
    R = lambda k, c=1, n=n: r("skr", 6 * n + k, c)
    kcopy.append(E(f"ds_write_b128 {r('kw')}, {R(2, 4)} offset:{3 * FP + 1024 * n}", "kc"))
    for k in range(4):
        kcopy.append(E(f"v_alignbit_b32 {r('ke', k, 1)}, {R(k + 1)}, {R(k)}, 16"))
    kcopy.append(E(f"ds_write_b128 {r('kw')}, {r('ke', 0, 4)} offset:{1024 * n}", "kc"))
    for k in range(4):
        kcopy.append(E(f"v_alignbit_b32 {r('ke', 4 + k, 1)}, {R(k + 2)}, {R(k + 1)}, 16"))
    kcopy.append(E(f"ds_write_b128 {r('kw')}, {r('ke', 4, 4)} offset:{2 * FP + 1024 * n}", "kc"))
    kcopy.append(E(f"v_pk_mov_b32 {r('ke', 8, 2)}, {R(0, 2)}, {R(2, 2)} op_sel:[1,0]"))
    kcopy.append(E(f"v_pk_mov_b32 {r('ke', 10, 2)}, {R(2, 2)}, {R(4, 2)} op_sel:[1,0]"))
    kcopy.append(E(f"ds_write_b128 {r('kw')}, {r('ke', 8, 4)} offset:{FP + 1024 * n}", "kc"))
    if n == 0:
        kcopy.append(W(lg="kc"))

AC("w2f", 176, at=0)
e(f"v_lshrrev_b32 {r('ta')}, 2, {r('i15')}")
e(f"v_lshl_add_u32 {r('ta')}, {r('h4')}, 2, {r('ta')}")
e(f"v_lshrrev_b32 {r('tb')}, 1, {r('ta')}")
e(f"v_and_b32 {r('tb')}, 3, {r('tb')}")
e(f"v_lshlrev_b32 {r('tb')}, 5, {r('tb')}")
e(f"v_lshl_add_u32 {r('tb')}, {r('ta')}, 7, {r('tb')}")
e(f"v_and_b32 {r('ta')}, 3, {r('lane')}")
e(f"v_lshl_add_u32 {r('tb')}, {r('ta')}, 3, {r('tb')}")
e(f"v_add_u32 {r('w2r', 0, 1)}, {r('own')}, {r('tb')}")
for nb in range(1, 4):
    e(f"v_xor_b32 {r('w2r', nb, 1)}, {32 * nb}, {r('w2r', 0, 1)}")


def rdW2(p):
    items = [W(vm=f"V{p}")]
    for nb in range(4):
        for hf in range(2):
            items.append(E(f"ds_read_b64_tr_b16 {r('w2f', (p * 4 + nb) * 4 + 2 * hf, 2)}, {r('w2r', nb, 1)} offset:{w2slot(p) + hf * 2048}", f"rv{p}"))
    return items


K0 = -2.0 * 0.7978845608028654 * 1.4426950408889634
K1 = K0 * 0.044715
S("k1", 2); V("k0v", 2); V("ge", 16); V("hp", 8); S("ho", 2, align=1)
e(f"s_mov_b32 {r('k1', 0, 1)}, 0x{f2u(K1):08x}")
e(f"s_mov_b32 {r('k1', 1, 1)}, 0x{f2u(K1):08x}")
e(f"v_mov_b32 {r('k0v', 0, 1)}, 0x{f2u(K0):08x}")
e(f"v_mov_b32 {r('k0v', 1, 1)}, 0x{f2u(K0):08x}")
e(f"s_lshl_b32 {T2}, {r('T1')}, 2")
e(f"s_add_u32 {T2}, {T2}, {r('wave')}")
e(f"s_mul_i32 {T2}, {T2}, 86")
e(f"s_add_u32 {T2}, {T2}, {r('b0')}")
e(f"s_lshl_b32 {T2}, {T2}, 10")
e(f"s_add_u32 {r('ho', 0, 1)}, {T2}, {HB}")
e(f"s_add_u32 {r('ho', 1, 1)}, {T2}, {HB + 44032}")
g.wait(lg="rcs")


def gelu(b, tb):
    it = []
    sac = r("sac", tb * 2, 2)
    prs = [(fb, h) for fb in (2 * b, 2 * b + 1) for h in range(2)]
    U = lambda k: r("acc", (prs[k][0] * 2 + tb) * 4 + 2 * prs[k][1], 2)
    Tm = lambda k: r("ge", (tb & 1) * 8 + 2 * k, 2)
    T1r = lambda k, x: r("ge", (tb & 1) * 8 + 2 * k + x, 1)
    for k, (fb, h) in enumerate(prs):
        it.append(E(f"v_pk_fma_f32 {Tm(k)}, {r('csf', fb * 4 + 2 * h, 2)}, {sac}, {r('b1f', fb * 4 + 2 * h, 2)} op_sel:[0,1,0] op_sel_hi:[1,1,1] neg_lo:[0,1,0] neg_hi:[0,1,0]"))
    for k in range(4):
        it.append(E(f"v_pk_fma_f32 {U(k)}, {U(k)}, {sac}, {Tm(k)} op_sel_hi:[1,0,1]"))
    for k in range(4):
        it.append(E(f"v_pk_mul_f32 {Tm(k)}, {U(k)}, {U(k)}"))
    for k in range(4):
        it.append(E(f"v_pk_fma_f32 {Tm(k)}, {Tm(k)}, {r('k1')}, {r('k0v')}"))
    for k in range(4):
        it.append(E(f"v_pk_mul_f32 {Tm(k)}, {Tm(k)}, {U(k)}"))
    for k in range(4):
        for x in range(2):
            it.append(E(f"v_exp_f32 {T1r(k, x)}, {T1r(k, x)}"))
    for k in range(4):
        it.append(E(f"v_pk_add_f32 {Tm(k)}, {Tm(k)}, 1.0 op_sel_hi:[1,0]"))
    for k in range(4):
        for x in range(2):
            it.append(E(f"v_rcp_f32 {T1r(k, x)}, {T1r(k, x)}"))
    for k in range(4):
        it.append(E(f"v_pk_mul_f32 {Tm(k)}, {Tm(k)}, {U(k)}"))
    for k in range(4):
        it.append(E(f"v_cvt_pk_bf16_f32 {r('hp', (tb & 1) * 4 + k, 1)}, {T1r(k, 0)}, {T1r(k, 1)}"))
    if b == 2 and tb == 0:
        it.append(E(f"s_cmp_lt_u32 {r('nown')}, 3"))
        it.append(E(f"s_cselect_b32 {r('ho', 0, 1)}, 0x7f000000, {r('ho', 0, 1)}"))
        it.append(E(f"s_cselect_b32 {r('ho', 1, 1)}, 0x7f000000, {r('ho', 1, 1)}"))
    it.append(E(f"buffer_store_dwordx4 {r('hp', (tb & 1) * 4, 4)}, {r('l16')}, {r('sWS')}, {r('ho', tb, 1)} offen offset:{1024 * b} sc1", "hst"))
    return it


run(interleave(gelu(0, 0), rdW2(0) + rdW2(1), start=2, every=2))
run(interleave(gelu(0, 1), dmaW2(3) + rdW2(2), start=2, every=3))
run(interleave(gelu(1, 0), dmaW2(4) + [W(lg="rv2")] + dmaW2(5), start=2, every=4))
run(interleave(gelu(1, 1), dmaW2(6) + dmaW2(7), start=2, every=4))
run(gelu(2, 0))
run(gelu(2, 1))
stamp("gelu")
run(dmaW2(8))
run(kcopy)
g.free("acc", "csf", "b1f", "sac", "ge", "k0v", "k1", "ho", "skr")

V("cf", 32); V("cg", 32); V("cy", 32); V("fd", 4); V("fa"); V("ga")
e(f"s_lshl_b32 {T2}, s2, 2")
e(f"s_load_dword {r('sD')}, {ptr(5)}, {T2}")
e(f"v_and_b32 {r('ta')}, 3, {r('lane')}")
e(f"v_mul_u32_u24 {r('fa')}, {FP}, {r('ta')}")
e(f"v_lshrrev_b32 {r('tb')}, 2, {r('i15')}")
e(f"v_add_u32 {r('tb')}, {r('tb')}, {r('h4')}")
e(f"v_lshl_add_u32 {r('fa')}, {r('tb')}, 4, {r('fa')}")
e(f"s_and_b32 {T3}, {r('wave')}, 1")
e(f"s_lshl_b32 {T4}, {T3}, 8")
e(f"s_add_u32 {T4}, {T4}, {r('cvb')}")
e(f"v_add_u32 {r('fa')}, {T4}, {r('fa')}")
e(f"v_and_b32 {r('tc')}, 1, {r('lane')}")
e(f"v_mul_u32_u24 {r('ga')}, {GP}, {r('tc')}")
e(f"v_lshrrev_b32 {r('td')}, 1, {r('i15')}")
e(f"v_lshlrev_b32 {r('td')}, 2, {r('td')}")
e(f"v_sub_u32 {r('td')}, {r('h4')}, {r('td')}")
e(f"v_add_u32 {r('td')}, 28, {r('td')}")
e(f"v_lshl_add_u32 {r('ga')}, {r('td')}, 4, {r('ga')}")
e(f"s_add_u32 {T4}, {T4}, {UO}")
e(f"v_add_u32 {r('ga')}, {T4}, {r('ga')}")
g.wait(lg=0)
e(f"s_lshr_b32 {T2}, {r('wave')}, 1")
e(f"s_lshl_b32 {T2}, {T2}, 4")
e(f"s_lshr_b32 {r('sD')}, {r('sD')}, {T2}")
e(f"s_and_b32 {r('sD')}, {r('sD')}, 0xffff")
e(f"s_cmp_eq_u32 {T3}, 0")
e(f"s_cselect_b32 {r('sD')}, {r('sD')}, 0")
e(f"v_xor_b32 {r('tc')}, 1, {r('tc')}")
e(f"v_lshlrev_b32 {r('tc')}, 4, {r('tc')}")
e(f"v_lshlrev_b32 {r('tc')}, {r('tc')}, {r('sD')}" .replace("v_lshlrev_b32", "v_lshlrev_b32_e64"))
e(f"v_cmp_eq_u32 vcc, 3, {r('tb')}")
e(f"v_cndmask_b32 {r('tc')}, 0, {r('tc')}, vcc")
e(f"v_cmp_lt_u32 vcc, 1, {r('ta')}")
e(f"v_cndmask_b32 {r('fd', 0, 1)}, 0, {r('tc')}, vcc")
e(f"v_sub_u32 {r('fd', 1, 1)}, {r('tc')}, {r('fd', 0, 1)}")
e(f"v_mov_b32 {r('fd', 2, 1)}, 0")
e(f"v_mov_b32 {r('fd', 3, 1)}, 0")
g.wait(vm="U", lg=0)
e("s_barrier")
stamp("b5")
g.free("zz", "za", "kw", "ke", "sU", "sD")


def rdF(it, c):
    return E(f"ds_read_b128 {r('cf', 4 * c, 4)}, {r('fa')} offset:{64 * it + 512 * c}", f"F{it}_{c}")


def rdG(it, d):
    return E(f"ds_read_b128 {r('cg', 4 * d, 4)}, {r('ga')} offset:{64 * it + 512 * (7 - d)}", f"G{it}_{d}")


for k in range(8):
    rdF(0, 7 - k)(); rdG(0, k)()
V("pf2", 2); V("pf2o"); S("pf2s")
extra = {
    0: [lambda: g.wait(vm="hst"),
        lambda: (e(f"s_lshl_b32 {T4}, {r('T1')}, 1"), e(f"s_lshr_b32 {T2}, {r('wave')}, 1"), e(f"s_add_u32 {T4}, {T4}, {T2}"),
                 e(f"s_and_b32 {T0}, {r('wave')}, 1"), e(f"s_lshl_b32 {T2}, {r('q')}, 1"), e(f"s_add_u32 {T0}, {T0}, {T2}"),
                 setflag(F2B, T4, T0, "f2"))] + rdW2(3) + rdW2(4),
    1: rdW2(5) + [W(lg="rv4")] + dmaW2(9) + dmaW2(10) + rdW2(6),
    2: rdW2(7) + rdW2(8),
    3: rdW2(9) + rdW2(10),
}
for it in range(4):
    seq = []
    started = set()
    for c in range(7, -1, -1):
        for d in range(0, 8 - c):
            t = c + d

            def m(c=c, d=d, t=t, it=it):
                if d == 0:
                    g.wait(lg=f"F{it}_{c}")
                if d == 7 - c:
                    g.wait(lg=f"G{it}_{d}")
                first = (it == 0 and d == 0)
                mfma(r("cy", 4 * t, 4), r("cf", 4 * c, 4), r("cg", 4 * d, 4), first)
                if it == 0 and c == 0:
                    mfma(r("cy", 4 * t, 4), r("fd"), r("cg", 4 * d, 4), False)
                if it < 3:
                    if d == 7 - c and c > 0:
                        rdF(it + 1, c)()
                    if c == 0:
                        rdG(it + 1, d)()
                        if d == 7:
                            rdF(it + 1, 0)()
            seq.append(m)
    run(interleave(seq[:28], extra[it], start=6 if it else 12, per=2)); run(seq[28:])
e(f"v_min_u32 {r('pf2o')}, 9, {r('lane')}")
e(f"s_lshl_b32 {T2}, {r('wave')}, 3")
e(f"v_add_u32 {r('pf2o')}, {T2}, {r('pf2o')}")
e(f"v_min_u32 {r('pf2o')}, 31, {r('pf2o')}")
e(f"v_lshlrev_b32 {r('pf2o')}, 3, {r('pf2o')}")
e(f"s_mul_i32 {r('pf2s')}, {r('tt2')}, {FSTR}")
e(f"s_add_u32 {r('pf2s')}, {r('pf2s')}, {F2B}")
pollissue(r("pf2"), r("pf2o"), r("pf2s"), "pf2")
stamp("conv")
g.free("cf", "fd", "fa", "ga", "w2s", "w2o", "sW2")
V("pa"); V("yw"); g.free("hp"); V("ys", 8)
e(f"v_add_u32 {r('oa')}, {r('own')}, {r('l16')}")
e(f"s_xor_b32 {T2}, {r('wave')}, 1")
e(f"s_mul_i32 {T2}, {T2}, 12288")
e(f"v_add_u32 {r('pa')}, {T2}, {r('l16')}")
g.wait(lg=0)
e(f"s_bitcmp1_b32 {r('wave')}, 0")
e("s_cbranch_scc1 L_odd1")
for k in range(4):
    e(f"ds_write_b128 {r('oa')}, {r('cy', 16 + 4 * k, 4)} offset:{1024 * k}")
e("s_branch L_j1")
g.label("L_odd1")
for k in range(4):
    e(f"ds_write_b128 {r('oa')}, {r('cy', 4 * k, 4)} offset:{1024 * k}")
g.wait(lg=0)
for k in range(8):
    e(f"v_pk_mov_b32 {r('cy', 2 * k, 2)}, {r('cy', 16 + 2 * k, 2)}, {r('cy', 16 + 2 * k, 2)} op_sel:[0,1]")
g.label("L_j1")
e(f"v_lshrrev_b32 {r('ta')}, 1, {r('i15')}")
e(f"v_lshlrev_b32 {r('ta')}, 6, {r('ta')}")
e(f"v_and_b32 {r('tb')}, 1, {r('lane')}")
e(f"v_lshl_add_u32 {r('ta')}, {r('tb')}, 3, {r('ta')}")
e(f"v_lshl_add_u32 {r('ta')}, {r('h4')}, 4, {r('ta')}")
e(f"v_add_u32 {r('yw')}, {r('own')}, {r('ta')}")
g.wait(lg=0)
e("s_barrier")
for k in range(4):
    e(f"ds_read_b128 {r('cg', 4 * k, 4)}, {r('pa')} offset:{1024 * k}", f"ex{k}")
for k in range(4):
    g.wait(lg=f"ex{k}")
    for hh in range(2):
        e(f"v_pk_add_f32 {r('cy', 4 * k + 2 * hh, 2)}, {r('cy', 4 * k + 2 * hh, 2)}, {r('cg', 4 * k + 2 * hh, 2)}")
    for hh in range(2):
        e(f"v_cvt_pk_bf16_f32 {r('cg', 16 + 2 * k + hh, 1)}, {r('cy', 4 * k + 2 * hh, 1)}, {r('cy', 4 * k + 2 * hh + 1, 1)}")
    e(f"ds_write_b64 {r('yw')}, {r('cg', 16 + 2 * k, 2)} offset:{4096 + 512 * k}", "yw")
g.wait(lg=0)
e(f"ds_read_b128 {r('ys', 0, 4)}, {r('oa')} offset:4096", "yr")
e(f"ds_read_b128 {r('ys', 4, 4)}, {r('oa')} offset:5120", "yr")
e(f"s_lshl_b32 {T2}, {r('chan')}, 12")
e(f"s_and_b32 {T3}, {r('wave')}, 1")
e(f"s_lshl_b32 {T3}, {T3}, 11")
e(f"s_add_u32 {T2}, {T2}, {T3}")
e(f"s_add_u32 {T2}, {T2}, {YT}")
g.wait(lg=0)
e(f"buffer_store_dwordx4 {r('ys', 0, 4)}, {r('l16')}, {r('sWS')}, {T2} offen sc1", "yst")
e(f"buffer_store_dwordx4 {r('ys', 4, 4)}, {r('l16')}, {r('sWS')}, {T2} offen offset:1024 sc1", "yst")
stamp("yst")
g.free("cy", "pa", "yw", "w2r", "cg")

AC("hfa", 80, at=176)
V("hf0", 44); V("hf1", 44); V("hf2", 8); V("hv", 4, align=1); V("ac2", 32); V("pw", 3, align=1)
HF = {}
for s_ in range(4):
    for p_ in range(11):
        k_ = s_ * 11 + p_
        HF[s_, p_] = r(f"hf{s_}", 4 * p_, 4) if k_ < 24 else r("hfa", 4 * (k_ - 24), 4)


def hf(s, p):
    return HF[s, p]


for s in range(4):
    e(f"s_add_u32 {T2}, {r('wave')}, {s + 1}")
    e(f"s_and_b32 {T2}, {T2}, 3")
    if s < 3:
        e(f"s_mul_i32 {T3}, {T2}, 12288")
        e(f"s_add_u32 {T3}, {T3}, {PX + 4096 * s}")
        e(f"v_add_u32 {r('pw', s, 1)}, {T3}, {r('l16')}")
    e(f"s_lshl_b32 {T3}, {r('tt2')}, 2")
    e(f"s_add_u32 {T2}, {T2}, {T3}")
    e(f"s_mul_i32 {T2}, {T2}, 44032")
    e(f"s_add_u32 {T2}, {T2}, {HB}")
    e(f"v_add_u32 {r('hv', s, 1)}, {T2}, {r('l16')}")
for p in range(11):
    e(f"s_min_u32 {r('kb', p, 1)}, {r('kb', p, 1)}, {42 * 1024}")
e(f"s_add_u32 m0, {r('own')}, 6144")
e(f"buffer_load_dwordx4 {r('xs', 0, 1)}, {r('sX')}, {r('tile0')} offen lds", "xt")
e(f"buffer_load_dwordx4 {r('xs', 1, 1)}, {r('sX')}, {r('tile0')} offen offset:1024 lds", "xt")
pollcheck(r("pf2"), r("pf2o"), r("pf2s"), "pf2")
stamp("f2")
g.free("pf2", "pf2o", "pf2s")
hl = [E(f"buffer_load_dwordx4 {hf(s, p)}, {r('hv', s, 1)}, {r('sWS')}, {r('kb', p, 1)} offen sc1", f"H{s}_{p}")
      for s in range(4) for p in range(11)]
run(hl[:16])
g.wait(vm="yst")
e(f"s_lshr_b32 {T4}, {r('chan')}, 6")
e(f"s_lshl_b32 {T4}, {T4}, 1")
e(f"s_and_b32 {T0}, {r('wave')}, 1")
e(f"s_add_u32 {T4}, {T4}, {T0}")
e(f"s_and_b32 {T0}, {r('chan')}, 63")
setflag(F3B, T4, T0, "f3")
g.free("ys")
stamp("f3set")


def g2(s):
    items = []
    for p in range(11):
        for nb in range(4):
            def it(p=p, nb=nb):
                if nb == 0:
                    g.wait(vm=f"H{s}_{p}")
                mfma(r("ac2", (s & 1) * 16 + 4 * nb, 4), r("w2f", (p * 4 + nb) * 4, 4), hf(s, p), p == 0)
            items.append(it)
    return items


def pwr(s):
    return [E(f"ds_write_b128 {r('pw', s, 1)}, {r('ac2', (s & 1) * 16 + 4 * nb, 4)} offset:{1024 * nb}", "pw") for nb in range(4)]


V("xr", 8); V("xfp", 16); V("xn", 16); V("sv", 2); V("ea", 4, align=1); V("b2f", 16); V("pf3", 2); V("pf3o"); S("pf3s")
pre = []
pre.append(E(f"v_lshrrev_b32 {r('ta')}, 1, {r('i15')}"))
pre.append(E(f"v_lshrrev_b32 {r('tb')}, 1, {r('h4')}"))
pre.append(E(f"v_xor_b32 {r('ta')}, {r('ta')}, {r('tb')}"))
pre.append(E(f"v_lshlrev_b32 {r('ta')}, 4, {r('ta')}"))
pre.append(E(f"v_lshl_add_u32 {r('ta')}, {r('i15')}, 7, {r('ta')}"))
pre.append(E(f"v_and_b32 {r('tb')}, 1, {r('h4')}"))
pre.append(E(f"v_lshl_add_u32 {r('ta')}, {r('tb')}, 3, {r('ta')}"))
pre.append(E(f"v_add_u32 {r('ea', 0, 1)}, {r('own')}, {r('ta')}"))
for nb in range(1, 4):
    pre.append(E(f"v_xor_b32 {r('ea', nb, 1)}, {32 * nb}, {r('ea', 0, 1)}"))
pre.append(E(f"s_and_b32 {T2}, {r('tok16')}, 7"))
pre.append(E(f"s_lshl_b32 {T2}, {T2}, 7"))
pre.append(E(f"s_add_u32 {T2}, {T2}, {STT}"))
pre.append(E(f"v_lshl_add_u32 {r('ta')}, {r('i15')}, 3, {T2}"))
pre.append(E(f"ds_read_b64 {r('sv')}, {r('ta')}", "sv"))
for nb in range(4):
    pre.append(E(f"ds_read_b64 {r('xr', 2 * nb, 2)}, {r('ea', nb, 1)} offset:6144", "xr"))
pre.append(E(f"v_lshlrev_b32 {r('pf3o')}, 3, {r('lane')}"))
pre.append(E(f"s_lshr_b32 {T2}, {r('tt2')}, 4"))
pre.append(E(f"s_lshl_b32 {T3}, {r('ns')}, 1"))
pre.append(E(f"s_add_u32 {T2}, {T2}, {T3}"))
pre.append(E(f"s_mul_i32 {r('pf3s')}, {T2}, {FSTR}"))
pre.append(E(f"s_add_u32 {r('pf3s')}, {r('pf3s')}, {F3B}"))
for d in range(8):
    pre.append(E(f"v_lshlrev_b32 {r('b2f', 2 * d, 1)}, 16, {r('b2r', d, 1)}"))
    pre.append(E(f"v_and_b32 {r('b2f', 2 * d + 1, 1)}, {r('hmask')}, {r('b2r', d, 1)}"))
pre2 = [W(lg="xr")]
for d in range(8):
    lo, hi = r("xfp", 2 * d, 1), r("xfp", 2 * d + 1, 1)
    a, b = r("xn", 2 * d, 1), r("xn", 2 * d + 1, 1)
    pre2.append(E(f"v_lshlrev_b32 {lo}, 16, {r('xr', d, 1)}"))
    pre2.append(E(f"v_and_b32 {hi}, {r('hmask')}, {r('xr', d, 1)}"))
    pre2.append(E(f"v_sub_f32 {a}, {lo}, {r('sv', 0, 1)}"))
    pre2.append(E(f"v_sub_f32 {b}, {hi}, {r('sv', 0, 1)}"))
    pre2.append(E(f"v_cvt_pk_bf16_f32 {b}, {a}, {b}"))
    pre2.append(E(f"v_lshlrev_b32 {a}, 16, {b}"))
    pre2.append(E(f"v_and_b32 {b}, {r('hmask')}, {b}"))
    pre2.append(E(f"v_mul_f32 {a}, {a}, {r('sv', 1, 1)}"))
    pre2.append(E(f"v_mul_f32 {b}, {b}, {r('sv', 1, 1)}"))
    pre2.append(E(f"v_cvt_pk_bf16_f32 {b}, {a}, {b}"))
    pre2.append(E(f"v_lshlrev_b32 {a}, 16, {b}"))
    pre2.append(E(f"v_and_b32 {b}, {r('hmask')}, {b}"))

s0 = interleave(g2(0), hl[16:38], start=3, every=2)
run(interleave(s0, pre, start=4, every=1))
s1 = interleave(g2(1), hl[38:] + pwr(0), start=8, every=2)
run(interleave(s1, pre2[:60], start=1, every=1))
pollissue(r("pf3"), r("pf3o"), r("pf3s"), "pf3")
s2 = interleave(g2(2), pwr(1), start=8, every=2)
run(interleave(s2, pre2[60:], start=1, every=1))
stamp("g2s2")
s3 = g2(3)
run(s3[:8])
run(pwr(2))
g.wait(lg=0)
e("s_barrier")
g.free("hf0", "hf1")
V("ps", 48); V("zs"); V("zr", 8); V("hfv", 32)
e(f"s_add_u32 {T2}, {r('own')}, {PX}")
e(f"v_add_u32 {r('ta')}, {T2}, {r('l16')}")
rp = [E(f"ds_read_b128 {r('ps', 4 * k, 4)}, {r('ta')} offset:{1024 * k}", f"rp{k}") for k in range(12)]
run(interleave(s3[8:24], rp, start=0, every=1))
pollcheck(r("pf3"), r("pf3o"), r("pf3s"), "pf3")
stamp("f3")
e(f"v_lshrrev_b32 {r('zs')}, 1, {r('lane')}")
e(f"v_lshlrev_b32 {r('zs')}, 12, {r('zs')}")
e(f"v_and_b32 {r('tb')}, 1, {r('lane')}")
e(f"v_lshl_add_u32 {r('zs')}, {r('tb')}, 4, {r('zs')}")
e(f"s_lshl_b32 {T2}, {r('ns')}, 18")
e(f"s_lshl_b32 {T3}, {r('tok16')}, 5")
e(f"s_add_u32 {T2}, {T2}, {T3}")
e(f"s_add_u32 {T2}, {T2}, {YT}")
e(f"s_add_u32 m0, {r('own')}, 8192")
e(f"s_add_u32 {T3}, {T2}, {131072 - 1024}")
e(f"buffer_load_dwordx4 {r('zs')}, {r('sWS')}, {T2} offen sc1 lds", "z")
e(f"buffer_load_dwordx4 {r('zs')}, {r('sWS')}, {T3} offen offset:1024 sc1 lds", "z")
adds = [W(lg="rp11")]
for k in range(16):
    adds.append(E(f"v_add_f32 {r('ps', k, 1)}, {r('ps', k, 1)}, {r('ps', 16 + k, 1)}"))
    adds.append(E(f"v_add_f32 {r('b2f', k, 1)}, {r('b2f', k, 1)}, {r('ps', 32 + k, 1)}"))
for k in range(16):
    adds.append(E(f"v_add_f32 {r('ps', k, 1)}, {r('ps', k, 1)}, {r('b2f', k, 1)}"))
run(interleave(s3[24:], adds, start=0, per=2))
stamp("g2")
S("nl2", 2); S("sO", 4)
e(f"s_mov_b32 {r('nl2', 0, 1)}, 0x{f2u(-1.4426950408889634):08x}")
e(f"s_mov_b32 {r('nl2', 1, 1)}, 0x{f2u(-1.4426950408889634):08x}")
srd("sO", 11, 2097152)
M = lambda k: r("ps", 2 * k, 2)
Tt = lambda k: r("ps", 16 + 2 * k, 2)
for k in range(8):
    e(f"v_pk_add_f32 {M(k)}, {M(k)}, {r('ac2', 16 + 2 * k, 2)}")
for k in range(8):
    e(f"v_pk_mul_f32 {Tt(k)}, {M(k)}, {r('nl2')}")
for k in range(16):
    e(f"v_exp_f32 {r('ps', 16 + k, 1)}, {r('ps', 16 + k, 1)}")
for k in range(8):
    e(f"v_pk_add_f32 {Tt(k)}, {Tt(k)}, 1.0 op_sel_hi:[1,0]")
e(f"v_lshlrev_b32 {r('ta')}, 3, {r('lane')}")
e(f"v_add_u32 {r('ta')}, {r('own')}, {r('ta')}")
g.wait(vm="z")
for nb in range(4):
    e(f"ds_read_b64_tr_b16 {r('zr', 2 * nb, 2)}, {r('ta')} offset:{8192 + 512 * nb}", "zr")
for k in range(16):
    e(f"v_rcp_f32 {r('ps', 16 + k, 1)}, {r('ps', 16 + k, 1)}")
for k in range(8):
    e(f"v_pk_mul_f32 {M(k)}, {M(k)}, {Tt(k)}")
for k in range(8):
    e(f"v_pk_mul_f32 {M(k)}, {M(k)}, {r('xn', 2 * k, 2)}")
g.wait(lg="zr")
unpack("ps", 16, "zr", 0, 8)
for k in range(8):
    e(f"v_pk_fma_f32 {M(k)}, {M(k)}, {Tt(k)}, {r('xfp', 2 * k, 2)}")
for k in range(8):
    e(f"v_cvt_pk_bf16_f32 {r('zr', k, 1)}, {r('ps', 2 * k, 1)}, {r('ps', 2 * k + 1, 1)}")
for nb in range(4):
    e(f"ds_write_b64 {r('ea', nb, 1)}, {r('zr', 2 * nb, 2)} offset:10240", "ow")
g.wait(lg=0)
e(f"ds_read_b128 {r('ps', 32, 4)}, {r('oa')} offset:10240", "or0")
e(f"ds_read_b128 {r('ps', 36, 4)}, {r('oa')} offset:11264", "or1")
g.wait(lg="or0")
e(f"buffer_store_dwordx4 {r('ps', 32, 4)}, {r('xs', 0, 1)}, {r('sO')}, {r('tile0')} offen", "ost")
g.wait(lg="or1")
e(f"buffer_store_dwordx4 {r('ps', 36, 4)}, {r('xs', 1, 1)}, {r('sO')}, {r('tile0')} offen offset:1024", "ost")
stamp("out")
e(f"s_or_b32 {T2}, s2, {r('wave')}")
e(f"s_cmp_lg_u32 {T2}, 0")
e("s_cbranch_scc1 L_nobump")
e(f"v_lshrrev_b32 {r('ta')}, 4, {r('lane')}")
e(f"v_mul_u32_u24 {r('ta')}, {FSTR}, {r('ta')}")
e(f"v_lshl_add_u32 {r('ta')}, {r('i15')}, 4, {r('ta')}")
if SPINMAX:
    e(f"s_mov_b32 {T4}, 0")
g.label("L_bump")
e(f"s_mov_b32 {T2}, {F1B}")
for k in range(8):
    e(f"buffer_load_dwordx4 {r('hfv', 4 * k, 4)}, {r('ta')}, {r('sWS')}, {T2} offen sc1")
    e(f"s_add_u32 {T2}, {T2}, {4 * FSTR}")
e("s_waitcnt vmcnt(0)")
e(f"s_mov_b64 {r('nl2')}, 0")
for k in range(16):
    e(f"v_cmp_ne_u64 vcc, {r('tag')}, {r('hfv', 2 * k, 2)}")
    e(f"s_or_b64 {r('nl2')}, {r('nl2')}, vcc")
if SPINMAX:
    e(f"s_add_u32 {T4}, {T4}, 1")
    e(f"s_cmp_gt_u32 {T4}, {SPINMAX}")
    e("s_cbranch_scc1 L_nobump")
e(f"s_cmp_lg_u64 {r('nl2')}, 0")
e("s_cbranch_scc1 L_bump")
e(f"s_mov_b32 {T2}, {EPOCH}")
e("s_mov_b64 exec, 1")
e(f"buffer_store_dwordx2 {r('vtag')}, {r('zero')}, {r('sWS')}, {T2} offen sc1")
e("s_mov_b64 exec, -1")
g.label("L_nobump")
if STAMPS:
    e("s_waitcnt vmcnt(0)")
    stamp("end")
    flush_stamps(True)
    e(f"s_lshl_b32 {T2}, s2, 2")
    e(f"s_add_u32 {T2}, {T2}, {r('wave')}")
    e(f"s_lshl_b32 {T2}, {T2}, 7")
    e(f"s_add_u32 {T2}, {T2}, {STAMP}")
    e(f"v_lshlrev_b32 {r('ta')}, 2, {r('lane')}")
    e("s_mov_b64 exec, 0xffffffff")
    e("s_mov_b32 exec_hi, 0")
    e(f"buffer_store_dword {r('stamps')}, {r('ta')}, {r('sWS')}, {T2} offen")
g.label("L_end")

body = g.finish()
hdr = open("cdna_kernels/" + NAME + ".s.ref").read().split("; @launch")[0]
nv = 256 + g.hw["a"]
txt = f"""{hdr}; @launch grid=(256,1,1) block=(256,1,1) lds={LDSZ}
.amdgcn_target "amdgcn-amd-amdhsa--gfx950"
.text
.globl {NAME}_kernel
.p2align 8
.type {NAME}_kernel,@function
{NAME}_kernel:
{body}
    s_endpgm
.section .rodata,"a"
.p2align 6
.amdhsa_kernel {NAME}_kernel
  .amdhsa_next_free_vgpr {nv}
  .amdhsa_next_free_sgpr 102
  .amdhsa_accum_offset 256
  .amdhsa_group_segment_fixed_size 0
  .amdhsa_kernarg_size 112
  .amdhsa_user_sgpr_count 2
  .amdhsa_user_sgpr_kernarg_segment_ptr 1
  .amdhsa_system_sgpr_workgroup_id_x 1
.end_amdhsa_kernel
"""
import subprocess, re
open("_g.s", "w").write(txt.replace("CODE_BYTES", "0x1000"))
subprocess.check_call(["clang", "-x", "assembler", "-target", "amdgcn-amd-amdhsa", "-mcpu=gfx950", "-c", "_g.s", "-o", "_g.o"])
hh = subprocess.check_output(["llvm-objdump", "-h", "_g.o"]).decode()
size = int(re.search(r"\.text\s+([0-9a-f]+)", hh).group(1), 16)
txt = txt.replace("CODE_BYTES", str((size - 640) & ~3))
print("code bytes", size)
open(OUT, "w").write(txt)
print("instrs", len(g.ins), "nops", g.nops, "hw", g.hw, "stamps", nst[0], " ".join(stnames))
```

```python
import sys, struct
from dsl import Gen, interleave

NAME = "recurrent_scan__ssm_conv_h3__mixer_channel_mlp__prompt"
opt = dict(a.split("=") for a in sys.argv[2:])
OUT = sys.argv[1]
MAP1 = int(opt.get("map1", 4))
STAMPS = int(opt.get("stamps", 0))
KVPOL = opt.get("kvpol", "nt")
XPOL0 = opt.get("xpol", "nt")
SPINMAX = int(opt.get("spinmax", 0))
PREDIV = int(opt.get("prediv", 4))
OPOL = opt.get("opol", "")

KVT, HB, YT, FL, EPOCH, STAMP = 0, 0x200000, 0x800000, 0xA00000, 0xB00000, 0xC00000
F1B, F2B, F3B, FSTR = FL, FL + 0x40000, FL + 0x80000, 4352
WSZ = 0xD00000
XST, KVIMG, CSX, STT = 98304, 147456, 155776, 156160
FP, GP = 4160, 4576
FB0, UB0 = 0, 33280
S3, S4 = 53248, 73728
PX = 0
LDSZ = 157184


def f2u(x):
    return struct.unpack("<I", struct.pack("<f", x))[0]


g = Gen()
e, r = g.e, g.r
V = lambda n, c=1, **k: g.alloc("v", n, c, **k)
S = lambda n, c=1, **k: g.alloc("s", n, c, **k)
AC = lambda n, c=1, **k: g.alloc("a", n, c, **k)
W = lambda **k: (lambda: g.wait(**k))
E = lambda s, t=None: (lambda: e(s, t))


def run(items):
    for it in items:
        it()


def weave(main, *bgs):
    slots = [[] for _ in main]
    for items, a, b in bgs:
        b = min(b, len(main) - 1)
        n = len(items)
        for k, it in enumerate(items):
            pos = a + (k * (b - a + 1)) // max(n, 1)
            slots[pos].append(it)
    out = []
    for m, s in zip(main, slots):
        out.append(m)
        out.extend(s)
    return out


S("karg", 2, at=0); S("wg", 1, at=2); S("t0", 1, at=3)
S("t45", 4, at=4)
for i_ in range(14):
    S(f"ptr{i_}", 2, at=8 + 2 * i_)
V("tid", 1, at=0)
nst = [0]
stnames = []
pend = []
if STAMPS:
    S("st", 8, at=94, align=2)
    V("stamps", 1, at=255)


def flush_stamps(force=False):
    if pend and (force or len(pend) == 4) and g.smem_out:
        g.wait(lg=0)
    if not g.smem_out:
        for k in pend:
            e(f"v_writelane_b32 {r('stamps')}, {r('st', 2 * (k % 4), 1)}, {k}")
        pend.clear()


SSET = opt.get("sset", "main")


def stamp(name, grp="main"):
    if STAMPS and (grp == SSET or name in ("start", "end")):
        assert nst[0] < 32
        flush_stamps()
        e(f"{'s_memtime' if STAMPS == 2 else 's_memrealtime'} {r('st', 2 * (nst[0] % 4), 2)}")
        pend.append(nst[0])
        nst[0] += 1
        stnames.append(name)


def ptr(i):
    if i == 13 and "ptr13" not in g.names:
        return r("sWS", 0, 2)
    return r(f"ptr{i}")


def plo(i):
    return "s" + ptr(i)[2:].split(":")[0]


def phi(i):
    return "s" + ptr(i).split(":")[1][:-1]


def srd(name, pi, nbytes, add=None):
    if add is None:
        e(f"s_mov_b32 {r(name,0,1)}, {plo(pi)}")
        e(f"s_mov_b32 {r(name,1,1)}, {phi(pi)}")
    else:
        e(f"s_add_u32 {r(name,0,1)}, {plo(pi)}, {add}")
        e(f"s_addc_u32 {r(name,1,1)}, {phi(pi)}, 0")
    e(f"s_mov_b32 {r(name,2,1)}, {nbytes}")
    e(f"s_mov_b32 {r(name,3,1)}, 0x00020000")


T0, T1_, T2, T3, T4 = "s3", "s4", "s5", "s6", "s7"
_e = g.e


def e(text, tag=None):
    _e(text, tag)
    if SSET == "pro" and text.startswith(("buffer_", "global_")) and nst[0] < 29:
        stamp(tag or "vm", "pro")


stamp("start")
e("s_load_dwordx16 s[8:23], s[0:1], 0")
e("s_load_dwordx8 s[24:31], s[0:1], 64")
e("s_load_dwordx4 s[32:35], s[0:1], 96")
e("s_cmp_ge_u32 s2, 256")
e("s_cbranch_scc1 L_end")
for n in ("lane", "ta", "tb", "tc", "td", "r8", "pc", "zero", "i15", "h4", "l16", "oa", "fa", "ga", "pa", "yw", "zs", "zt",
          "pf1o", "pf2o", "pf3o", "psr", "svr", "kw", "za", "bpa", "csw", "csw2", "csr0", "stw"):
    V(n)
V("vtag", 2); V("xs", 4, align=1); V("b2r", 8); V("w2s", 4, align=1); V("w2r", 8, align=1); V("hv", 4, align=1)
V("pw", 3, align=1); V("ea", 4, align=1); V("fd", 4); V("pf", 2)
V("xrd", 2, align=1); V("w1r", 2, align=1); V("csr", 2, align=1); V("ones", 4)
for n in ("wave", "T1", "q", "tt2", "ns", "rot", "b0", "nown", "tok16", "ns128", "tile0", "own", "hmask", "so",
          "f1a", "f2a", "f3a", "p1a", "p2a", "p3a", "yo", "zo", "um0", "ush"):
    S(n)
e(f"v_and_b32 {r('lane')}, 63, v0")
e(f"v_lshrrev_b32 {r('ta')}, 6, v0")
e(f"s_and_b32 {T0}, s2, 7")
e(f"v_readfirstlane_b32 {r('wave')}, {r('ta')}")
e(f"s_lshr_b32 {T1_}, s2, 3")
if MAP1 == 8:
    e(f"s_lshr_b32 {T2}, {T1_}, 4")
    e(f"s_lshl_b32 {r('T1')}, {T0}, 1")
    e(f"s_add_u32 {r('T1')}, {r('T1')}, {T2}")
    e(f"s_and_b32 {r('q')}, {T1_}, 15")
    e(f"s_lshl_b32 {T2}, {T2}, 1")
    e(f"s_add_u32 {r('rot')}, {T2}, {r('q')}")
else:
    e(f"s_lshr_b32 {T2}, {T0}, 1")
    e(f"s_lshl_b32 {T2}, {T2}, 2")
    e(f"s_lshr_b32 {T3}, {T1_}, 3")
    e(f"s_add_u32 {r('T1')}, {T2}, {T3}")
    e(f"s_and_b32 {T2}, {T0}, 1")
    e(f"s_lshl_b32 {T2}, {T2}, 3")
    e(f"s_and_b32 {T3}, {T1_}, 7")
    e(f"s_add_u32 {r('q')}, {T2}, {T3}")
    e(f"s_add_u32 {r('rot')}, {r('T1')}, {r('q')}")
e(f"s_and_b32 {r('rot')}, {r('rot')}, 3")
e(f"s_lshr_b32 {T2}, {r('q')}, 3")
e(f"s_lshl_b32 {r('tt2')}, {r('T1')}, 1")
e(f"s_add_u32 {r('tt2')}, {r('tt2')}, {T2}")
e(f"s_and_b32 {r('ns')}, {r('q')}, 7")
V("k0"); V("km", 3, align=1); V("sho")
e(f"v_lshrrev_b32 {r('r8')}, 3, {r('lane')}")
e(f"v_and_b32 {r('pc')}, 7, {r('lane')}")
e(f"s_lshl_b32 {T2}, {r('tt2')}, 2")
e(f"s_add_u32 {r('tok16')}, {T2}, {r('wave')}")
e(f"s_lshl_b32 {T2}, {r('tok16')}, 14")
e(f"s_lshl_b32 {r('ns128')}, {r('ns')}, 7")
e(f"s_add_u32 {r('tile0')}, {T2}, {r('ns128')}")
e(f"v_lshlrev_b32 {r('ta')}, 11, {r('r8')}")
e(f"v_lshl_add_u32 {r('ta')}, {r('pc')}, 4, {r('ta')}")
e(f"v_add_u32 {r('k0')}, {r('tile0')}, {r('ta')}")
for i in range(3):
    e(f"v_subrev_u32 {r('km', i, 1)}, {1024 * (i + 1)}, {r('k0')}")
e(f"s_lshl_b32 {T3}, {r('ns')}, 9")
e(f"v_lshl_add_u32 {r('sho')}, {r('pc')}, 6, {T3}")
e(f"v_mov_b32 {r('zero')}, 0")
S("sA", 4); S("sB", 4); S("sX", 4); S("sW1", 4); S("sWS", 4)
e(f"s_mov_b32 {r('sA',2,1)}, 2097152")
e(f"s_mov_b32 {r('sA',3,1)}, 0x00020000")
e(f"s_mov_b32 {r('sB',2,1)}, 2097152")
e(f"s_mov_b32 {r('sB',3,1)}, 0x00020000")
V("w1s", 3, align=1)
for c in range(3):
    e(f"v_add_u32 {r('ta')}, {64 * c}, {r('lane')}")
    e(f"v_mul_u32_u24 {r('tb')}, 43691, {r('ta')}")
    e(f"v_lshrrev_b32 {r('tb')}, 19, {r('tb')}")
    e(f"v_mul_u32_u24 {r('tc')}, 12, {r('tb')}")
    e(f"v_sub_u32 {r('tc')}, {r('ta')}, {r('tc')}")
    e(f"v_lshrrev_b32 {r('td')}, 2, {r('tb')}")
    e(f"v_and_b32 {r('td')}, 2, {r('td')}")
    e(f"v_xor_b32 {r('tc')}, {r('tc')}, {r('td')}")
    e(f"v_mul_u32_u24 {r('tb')}, 2752, {r('tb')}")
    e(f"v_lshl_add_u32 {r('tb')}, {r('tc')}, 4, {r('tb')}")
    e(f"v_subrev_u32 {r('w1s', c, 1)}, {1024 * c}, {r('tb')}")
g.wait(lg=0)
e(f"s_mov_b64 {r('sA',0,2)}, {ptr(1)}")
e(f"s_mov_b64 {r('sB',0,2)}, {ptr(2)}")
V("kr", 20); V("vr", 8); V("shr", 16); V("ep", 2); V("pre")
e(f"buffer_load_dwordx4 {r('kr', 12, 4)}, {r('k0')}, {r('sA')}, 0 offen", "k")
e(f"buffer_load_dwordx4 {r('kr', 16, 4)}, {r('k0')}, {r('sA')}, 0 offen offset:1024", "k")
e(f"buffer_load_dwordx4 {r('vr', 0, 4)}, {r('k0')}, {r('sB')}, 0 offen {KVPOL}", "k")
e(f"buffer_load_dwordx4 {r('vr', 4, 4)}, {r('k0')}, {r('sB')}, 0 offen offset:1024 {KVPOL}", "k")
for i in range(4):
    e(f"global_load_dwordx4 {r('shr', 4 * i, 4)}, {r('sho')}, {ptr(3)} offset:{16 * i}", "sh")
for i in range(3):
    e(f"buffer_load_dwordx4 {r('kr', 8 - 4 * i, 4)}, {r('km', i, 1)}, {r('sA')}, 0 offen", "k")
srd("sWS", 13, WSZ)
e(f"s_mov_b32 {T3}, {EPOCH}")
e(f"buffer_load_dwordx2 {r('ep')}, {r('zero')}, {r('sWS')}, {T3} offen sc1", "ep")
sh_ = PREDIV.bit_length() - 1
e(f"v_lshrrev_b32 {r('tb')}, {sh_}, v0")
e(f"s_and_b32 {T2}, {T1_}, {PREDIV - 1}")
e(f"v_lshl_add_u32 {r('tb')}, {r('tb')}, {sh_}, {T2}")
e(f"v_lshlrev_b32 {r('tb')}, 7, {r('tb')}")
e(f"v_min_u32 {r('tb')}, CODE_BYTES, {r('tb')}")
e(f"s_getpc_b64 {r('t45', 2, 2)}")
e(f"global_load_dword {r('pre')}, {r('tb')}, {r('t45', 2, 2)}", "pre")
S("sD")
e(f"s_lshl_b32 {T2}, s2, 2")
e(f"s_load_dword {r('sD')}, {ptr(5)}, {T2}")
stamp("kviss")
e(f"s_mul_i32 {r('b0')}, {r('q')}, 43")
e(f"s_add_u32 {r('nown')}, {r('b0')}, 43")
e(f"s_lshr_b32 {r('b0')}, {r('b0')}, 4")
e(f"s_lshr_b32 {r('nown')}, {r('nown')}, 4")
e(f"s_sub_u32 {r('nown')}, {r('nown')}, {r('b0')}")
srd("sW1", 7, 1409024)
S("w1base"); S("w1lds"); S("xbase")
e(f"s_mul_i32 {r('w1base')}, {r('wave')}, {32 * 2752}")
e(f"s_lshl_b32 {T2}, {r('b0')}, 6")
e(f"s_add_u32 {r('w1base')}, {r('w1base')}, {T2}")
e(f"s_mul_i32 {r('w1lds')}, {r('wave')}, 6144")


def dmaW1(n):
    items = []
    for i in range(2):
        for c in range(3):
            def it(i=i, c=c):
                if i == 0 and c == 0:
                    e(f"s_add_u32 {T2}, {r('rot')}, {n}")
                    e(f"s_and_b32 {T2}, {T2}, 3")
                    e(f"s_mul_i32 {T2}, {T2}, {128 * 2752}")
                    e(f"s_add_u32 m0, {r('w1lds')}, {n * 24576}")
                    e(f"s_add_u32 {r('so')}, {T2}, {r('w1base')}")
                if i == 1 and c == 0:
                    e(f"s_add_u32 m0, {r('w1lds')}, {n * 24576 + 3072}")
                    e(f"s_add_u32 {r('so')}, {r('so')}, {16 * 2752}")
                e(f"buffer_load_dwordx4 {r('w1s', c, 1)}, {r('sW1')}, {r('so')} offen offset:{1024 * c} lds", f"W{n}")
            items.append(it)
    return items


run(dmaW1(0))
e(f"v_lshrrev_b32 {r('ta')}, 1, {r('r8')}")
e(f"v_xor_b32 {r('ta')}, {r('ta')}, {r('pc')}")
e(f"v_lshlrev_b32 {r('ta')}, 4, {r('ta')}")
e(f"v_lshl_add_u32 {r('xs', 0, 1)}, {r('r8')}, 10, {r('ta')}")
e(f"v_xor_b32 {r('tb')}, 64, {r('xs', 0, 1)}")
e(f"v_add_u32 {r('xs', 1, 1)}, 7168, {r('tb')}")
e(f"v_add_u32 {r('xs', 2, 1)}, {2 * 7168}, {r('xs', 0, 1)}")
e(f"v_add_u32 {r('xs', 3, 1)}, {3 * 7168}, {r('tb')}")
srd("sX", 0, 2097152)
e(f"s_lshl_b32 {T2}, {r('T1')}, 2")
e(f"s_add_u32 {T2}, {T2}, {r('wave')}")
e(f"s_lshl_b32 {r('xbase')}, {T2}, 15")
e(f"s_mul_i32 {r('own')}, {r('wave')}, 12288")
e(f"s_add_u32 {r('own')}, {r('own')}, {XST}")


def dmaX(ei):
    items = []
    for n in range(4):
        def it(n=n):
            if n == 0:
                e(f"s_add_u32 {T2}, {r('rot')}, {ei >> 1}")
                e(f"s_and_b32 {T2}, {T2}, 3")
                e(f"s_lshl_b32 {T2}, {T2}, 8")
                if ei & 1:
                    e(f"s_add_u32 {T2}, {T2}, 128")
                e(f"s_add_u32 m0, {r('own')}, {(ei % 3) * 4096}")
                e(f"s_add_u32 {r('so')}, {T2}, {r('xbase')}")
            pol = XPOL0 if ei < 2 else ""
            e(f"buffer_load_dwordx4 {r('xs', n, 1)}, {r('sX')}, {r('so')} offen offset:{1024 * n} {pol} lds", f"X{ei}")
        items.append(it)
    return items


run(dmaX(0))
stamp("p0iss")
g.free("ptr0", "ptr1", "ptr2", "ptr3", "ptr6", "ptr7", "ptr12", "ptr13", "karg")
V("kvw"); V("kvr"); V("kvs")
e(f"v_and_b32 {r('i15')}, 15, {r('lane')}")
e(f"v_lshrrev_b32 {r('h4')}, 4, {r('lane')}")
e(f"v_lshlrev_b32 {r('l16')}, 4, {r('lane')}")
e(f"v_add_u32 {r('oa')}, {r('own')}, {r('l16')}")
e(f"v_lshrrev_b32 {r('ta')}, 1, {r('i15')}")
e(f"v_xor_b32 {r('ta')}, {r('ta')}, {r('h4')}")
e(f"v_lshlrev_b32 {r('ta')}, 4, {r('ta')}")
e(f"v_lshl_add_u32 {r('ta')}, {r('i15')}, 7, {r('ta')}")
e(f"v_add_u32 {r('xrd', 0, 1)}, {r('own')}, {r('ta')}")
e(f"v_xor_b32 {r('xrd', 1, 1)}, 64, {r('xrd', 0, 1)}")
e(f"v_lshrrev_b32 {r('ta')}, 2, {r('i15')}")
e(f"v_lshl_add_u32 {r('ta')}, {r('h4')}, 3, {r('ta')}")
e(f"v_mul_u32_u24 {r('ta')}, 192, {r('ta')}")
e(f"v_and_b32 {r('tb')}, 3, {r('lane')}")
e(f"v_lshl_add_u32 {r('ta')}, {r('tb')}, 3, {r('ta')}")
e(f"v_and_b32 {r('tb')}, 1, {r('h4')}")
e(f"v_lshlrev_b32 {r('tb')}, 5, {r('tb')}")
e(f"v_add_u32 {r('w1r', 0, 1)}, {r('ta')}, {r('tb')}")
e(f"v_sub_u32 {r('w1r', 1, 1)}, {r('ta')}, {r('tb')}")
e(f"s_lshl_b32 {T2}, {r('wave')}, 5")
e(f"v_xor_b32 {r('tc')}, {T2}, {r('tb')}")
e(f"v_add_u32 {r('csr', 0, 1)}, {r('ta')}, {r('tc')}")
e(f"s_and_b32 {T2}, {T2}, 32")
e(f"s_add_u32 {T2}, {T2}, 128")
e(f"v_xor_b32 {r('tc')}, {T2}, {r('tb')}")
e(f"v_add_u32 {r('csr', 1, 1)}, {r('ta')}, {r('tc')}")
e(f"v_mul_u32_u24 {r('ta')}, 1040, {r('pc')}")
e(f"v_lshlrev_b32 {r('tb')}, 2, {r('r8')}")
e(f"v_sub_u32 {r('ta')}, {r('ta')}, {r('tb')}")
e(f"s_lshl_b32 {T2}, {r('wave')}, 5")
e(f"s_sub_u32 {T2}, {KVIMG + 124}, {T2}")
e(f"v_add_u32 {r('kvw')}, {T2}, {r('ta')}")
e(f"s_mul_i32 {T2}, {r('wave')}, 2080")
e(f"s_add_u32 {T2}, {T2}, {KVIMG}")
e(f"v_add_u32 {r('kvr')}, {T2}, {r('l16')}")
e(f"v_lshlrev_b32 {r('ta')}, 12, {r('r8')}")
e(f"v_lshl_add_u32 {r('kvs')}, {r('pc')}, 4, {r('ta')}")
for i in range(4):
    e(f"v_mov_b32 {r('ones', i, 1)}, 0x3f803f80")
e(f"s_mov_b32 {r('hmask')}, 0xffff0000")
S("kvo"); S("wodd"); S("whi"); S("chan")
e(f"s_and_b32 {r('wodd')}, {r('wave')}, 1")
e(f"s_lshr_b32 {r('whi')}, {r('wave')}, 1")
e(f"s_lshl_b32 {T2}, s2, 1")
e(f"s_add_u32 {r('chan')}, {T2}, {r('whi')}")
e(f"s_lshl_b32 {T2}, {r('ns')}, 2")
e(f"s_add_u32 {T2}, {T2}, {r('wave')}")
e(f"s_mul_i32 {r('f1a')}, {T2}, {FSTR}")
e(f"s_lshl_b32 {T3}, {r('tt2')}, 3")
e(f"s_add_u32 {r('f1a')}, {r('f1a')}, {T3}")
e(f"s_add_u32 {r('f1a')}, {r('f1a')}, {F1B}")
e(f"s_lshl_b32 {T2}, {T2}, 16")
e(f"s_sub_u32 {T3}, 31, {r('tt2')}")
e(f"s_lshl_b32 {T3}, {T3}, 7")
e(f"s_add_u32 {r('kvo')}, {T2}, {T3}")
e(f"s_lshl_b32 {T2}, {r('T1')}, 1")
e(f"s_add_u32 {T2}, {T2}, {r('whi')}")
e(f"s_mul_i32 {r('f2a')}, {T2}, {FSTR}")
e(f"s_lshl_b32 {T2}, {r('q')}, 1")
e(f"s_add_u32 {T2}, {T2}, {r('wodd')}")
e(f"s_lshl_b32 {T2}, {T2}, 3")
e(f"s_add_u32 {r('f2a')}, {r('f2a')}, {T2}")
e(f"s_add_u32 {r('f2a')}, {r('f2a')}, {F2B}")
e(f"s_lshr_b32 {T2}, {r('chan')}, 6")
e(f"s_lshl_b32 {T2}, {T2}, 1")
e(f"s_add_u32 {T2}, {T2}, {r('wodd')}")
e(f"s_mul_i32 {r('f3a')}, {T2}, {FSTR}")
e(f"s_and_b32 {T2}, {r('chan')}, 63")
e(f"s_lshl_b32 {T2}, {T2}, 3")
e(f"s_add_u32 {r('f3a')}, {r('f3a')}, {T2}")
e(f"s_add_u32 {r('f3a')}, {r('f3a')}, {F3B}")
e(f"s_mul_i32 {r('p1a')}, {T1_}, {FSTR}")
e(f"s_add_u32 {r('p1a')}, {r('p1a')}, {F1B}")
e(f"s_mul_i32 {r('p2a')}, {r('tt2')}, {FSTR}")
e(f"s_add_u32 {r('p2a')}, {r('p2a')}, {F2B}")
e(f"s_lshr_b32 {T2}, {r('tt2')}, 4")
e(f"s_lshl_b32 {T3}, {r('ns')}, 1")
e(f"s_add_u32 {T2}, {T2}, {T3}")
e(f"s_mul_i32 {r('p3a')}, {T2}, {FSTR}")
e(f"s_add_u32 {r('p3a')}, {r('p3a')}, {F3B}")
e(f"v_lshlrev_b32 {r('pf3o')}, 3, {r('lane')}")
e(f"v_and_b32 {r('pf1o')}, 0xf8, {r('pf3o')}")
e(f"v_min_u32 {r('pf2o')}, 9, {r('lane')}")
e(f"s_lshl_b32 {T2}, {r('wave')}, 3")
e(f"v_add_u32 {r('pf2o')}, {T2}, {r('pf2o')}")
e(f"v_min_u32 {r('pf2o')}, 31, {r('pf2o')}")
e(f"v_lshlrev_b32 {r('pf2o')}, 3, {r('pf2o')}")
e(f"v_add_u32 {r('zt')}, {r('own')}, {r('pf3o')}")
e(f"v_and_b32 {r('ta')}, 6, {r('r8')}")
e(f"v_xor_b32 {r('ta')}, {r('ta')}, {r('pc')}")
e(f"v_lshlrev_b32 {r('ta')}, 4, {r('ta')}")
e(f"v_lshl_add_u32 {r('w2s', 0, 1)}, {r('r8')}, 10, {r('ta')}")
e(f"v_add_u32 {r('w2s', 0, 1)}, {r('ns128')}, {r('w2s', 0, 1)}")
for n in range(1, 4):
    e(f"v_add_u32 {r('w2s', n, 1)}, {7168 * n}, {r('w2s', 0, 1)}")
e(f"v_lshrrev_b32 {r('ta')}, 2, {r('i15')}")
e(f"v_lshl_add_u32 {r('ta')}, {r('h4')}, 2, {r('ta')}")
e(f"v_lshrrev_b32 {r('tb')}, 1, {r('ta')}")
e(f"v_and_b32 {r('tb')}, 3, {r('tb')}")
e(f"v_lshlrev_b32 {r('tb')}, 5, {r('tb')}")
e(f"v_lshl_add_u32 {r('tb')}, {r('ta')}, 7, {r('tb')}")
e(f"v_and_b32 {r('ta')}, 3, {r('lane')}")
e(f"v_lshl_add_u32 {r('tb')}, {r('ta')}, 3, {r('tb')}")
e(f"v_add_u32 {r('w2r', 0, 1)}, {r('own')}, {r('tb')}")
S("w4k")
e(f"s_lshl_b32 {r('w4k')}, {r('wave')}, 12")
e(f"s_add_u32 {r('w4k')}, {r('w4k')}, {S3}")
e(f"v_add_u32 {r('w2r', 4, 1)}, {r('w4k')}, {r('tb')}")
for nb in range(1, 4):
    e(f"v_xor_b32 {r('w2r', nb, 1)}, {32 * nb}, {r('w2r', 0, 1)}")
    e(f"v_xor_b32 {r('w2r', 4 + nb, 1)}, {32 * nb}, {r('w2r', 4, 1)}")
for p in range(11):
    S(f"kb{p}")
e(f"s_lshr_b32 {T0}, {T1_}, 3")
e(f"s_mul_i32 {T0}, {T0}, 3")
e(f"s_mul_i32 {T2}, {r('ns')}, 11")
e(f"s_lshr_b32 {T2}, {T2}, 3")
e(f"s_add_u32 {T0}, {T0}, {T2}")
e(f"s_cmp_ge_u32 {T0}, 11")
e(f"s_cselect_b32 {T2}, 11, 0")
e(f"s_sub_u32 {T0}, {T0}, {T2}")
e(f"s_mul_i32 {T3}, {r('wave')}, 11")
e(f"s_add_u32 {T0}, {T0}, {T3}")
e(f"s_add_u32 {T3}, {T3}, 11")
for p in range(11):
    e(f"s_lshl_b32 {r(f'kb{p}')}, {T0}, 10")
    if p < 10:
        e(f"s_add_u32 {T0}, {T0}, 1")
        e(f"s_cmp_ge_u32 {T0}, {T3}")
        e(f"s_cselect_b32 {T2}, 11, 0")
        e(f"s_sub_u32 {T0}, {T0}, {T2}")
e(f"v_and_b32 {r('ta')}, 3, {r('lane')}")
e(f"v_mul_u32_u24 {r('fa')}, {FP}, {r('ta')}")
e(f"v_lshrrev_b32 {r('tb')}, 2, {r('i15')}")
e(f"v_add_u32 {r('tb')}, {r('tb')}, {r('h4')}")
e(f"v_lshl_add_u32 {r('fa')}, {r('tb')}, 4, {r('fa')}")
e(f"s_lshl_b32 {T4}, {r('wodd')}, 8")
e(f"s_mul_i32 {T2}, {r('whi')}, {4 * FP}")
e(f"s_add_u32 {T3}, {T4}, {T2}")
e(f"v_add_u32 {r('fa')}, {T3}, {r('fa')}")
e(f"v_and_b32 {r('tc')}, 1, {r('lane')}")
e(f"v_mul_u32_u24 {r('ga')}, {GP}, {r('tc')}")
e(f"v_lshrrev_b32 {r('td')}, 1, {r('i15')}")
e(f"v_lshlrev_b32 {r('td')}, 2, {r('td')}")
e(f"v_sub_u32 {r('td')}, {r('h4')}, {r('td')}")
e(f"v_add_u32 {r('td')}, 28, {r('td')}")
e(f"v_lshl_add_u32 {r('ga')}, {r('td')}, 4, {r('ga')}")
e(f"s_mul_i32 {T3}, {r('whi')}, {2 * GP}")
e(f"s_add_u32 {T3}, {T3}, {T4}")
e(f"s_add_u32 {T3}, {T3}, {UB0}")
e(f"v_add_u32 {r('ga')}, {T3}, {r('ga')}")
g.wait(lg=0)
e(f"s_lshl_b32 {T3}, {r('whi')}, 4")
e(f"s_lshr_b32 {r('sD')}, {r('sD')}, {T3}")
e(f"s_and_b32 {r('sD')}, {r('sD')}, 0xffff")
e(f"s_cmp_eq_u32 {r('wodd')}, 0")
e(f"s_cselect_b32 {r('sD')}, {r('sD')}, 0")
e(f"v_xor_b32 {r('tc')}, 1, {r('tc')}")
e(f"v_lshlrev_b32 {r('tc')}, 4, {r('tc')}")
e(f"v_lshlrev_b32_e64 {r('tc')}, {r('tc')}, {r('sD')}")
e(f"v_cmp_eq_u32 vcc, 3, {r('tb')}")
e(f"v_cndmask_b32 {r('tc')}, 0, {r('tc')}, vcc")
e(f"v_cmp_lt_u32 vcc, 1, {r('ta')}")
e(f"v_cndmask_b32 {r('fd', 0, 1)}, 0, {r('tc')}, vcc")
e(f"v_sub_u32 {r('fd', 1, 1)}, {r('tc')}, {r('fd', 0, 1)}")
e(f"v_mov_b32 {r('fd', 2, 1)}, 0")
e(f"v_mov_b32 {r('fd', 3, 1)}, 0")
g.free("sD", "ptr5")
e(f"s_lshl_b32 {T3}, {r('wodd')}, 11")
e(f"s_add_u32 {T3}, {T3}, {T2}")
e(f"s_add_u32 {T3}, {T3}, 48")
e(f"v_add_u32 {r('kw')}, {T3}, {r('l16')}")
e(f"s_mul_i32 {r('um0')}, {r('wave')}, {GP}")
e(f"s_add_u32 {r('um0')}, {r('um0')}, {UB0}")
e(f"s_lshl_b32 {T3}, {r('wodd')}, 3")
e(f"s_sub_u32 {r('ush')}, 8, {T3}")
e(f"s_add_u32 {T4}, {r('um0')}, 4096")
e(f"v_add_u32 {r('za')}, {T4}, {r('l16')}")
e(f"v_subrev_u32 {r('ta')}, 28, {r('lane')}")
e(f"v_min_u32 {r('ta')}, 5, {r('ta')}")
e(f"v_cmp_lt_u32 vcc, 2, {r('ta')}")
e(f"v_lshlrev_b32 {r('ta')}, 4, {r('ta')}")
e(f"v_add_u32 {r('tb')}, {FP - 48}, {r('ta')}")
e(f"v_cndmask_b32 {r('ta')}, {r('ta')}, {r('tb')}, vcc")
e(f"s_mul_i32 {T3}, {r('wave')}, {2 * FP}")
e(f"v_add_u32 {r('ta')}, {T3}, {r('ta')}")
e(f"v_cmp_lt_u32 vcc, 27, {r('lane')}")
e(f"v_cndmask_b32 {r('za')}, {r('za')}, {r('ta')}, vcc")
e(f"s_xor_b32 {T2}, {r('wave')}, 1")
e(f"s_mul_i32 {T2}, {T2}, 12288")
e(f"s_add_u32 {T2}, {T2}, {XST}")
e(f"v_add_u32 {r('pa')}, {T2}, {r('l16')}")
e(f"v_lshrrev_b32 {r('ta')}, 1, {r('i15')}")
e(f"v_lshlrev_b32 {r('ta')}, 6, {r('ta')}")
e(f"v_and_b32 {r('tb')}, 1, {r('lane')}")
e(f"v_lshl_add_u32 {r('ta')}, {r('tb')}, 3, {r('ta')}")
e(f"v_lshl_add_u32 {r('ta')}, {r('h4')}, 4, {r('ta')}")
e(f"v_add_u32 {r('yw')}, {r('own')}, {r('ta')}")
e(f"s_lshl_b32 {T2}, {r('chan')}, 12")
e(f"s_lshl_b32 {T3}, {r('wodd')}, 11")
e(f"s_add_u32 {T2}, {T2}, {T3}")
e(f"s_add_u32 {r('yo')}, {T2}, {YT}")
e(f"v_lshrrev_b32 {r('zs')}, 1, {r('lane')}")
e(f"v_lshlrev_b32 {r('zs')}, 12, {r('zs')}")
e(f"v_lshl_add_u32 {r('zs')}, {r('tb')}, 4, {r('zs')}")
e(f"s_lshl_b32 {T2}, {r('ns')}, 18")
e(f"s_lshl_b32 {T3}, {r('tok16')}, 5")
e(f"s_add_u32 {T2}, {T2}, {T3}")
e(f"s_add_u32 {r('zo')}, {T2}, {YT}")
for s in range(4):
    e(f"s_add_u32 {T2}, {r('wave')}, {s + 1}")
    e(f"s_and_b32 {T2}, {T2}, 3")
    if s < 3:
        e(f"s_mul_i32 {T3}, {T2}, 12288")
        e(f"s_add_u32 {T3}, {T3}, {PX + 4096 * s}")
        e(f"v_add_u32 {r('pw', s, 1)}, {T3}, {r('l16')}")
    else:
        e(f"s_mul_i32 {T3}, {T2}, 12288")
        e(f"v_add_u32 {r('psr')}, {T3}, {r('l16')}")
    e(f"s_lshl_b32 {T3}, {r('tt2')}, 2")
    e(f"s_add_u32 {T2}, {T2}, {T3}")
    e(f"s_mul_i32 {T2}, {T2}, 44032")
    e(f"s_add_u32 {T2}, {T2}, {HB}")
    e(f"v_add_u32 {r('hv', s, 1)}, {T2}, {r('l16')}")
e(f"v_lshrrev_b32 {r('ta')}, 1, {r('i15')}")
e(f"v_lshrrev_b32 {r('tb')}, 1, {r('h4')}")
e(f"v_xor_b32 {r('ta')}, {r('ta')}, {r('tb')}")
e(f"v_lshlrev_b32 {r('ta')}, 4, {r('ta')}")
e(f"v_lshl_add_u32 {r('ta')}, {r('i15')}, 7, {r('ta')}")
e(f"v_and_b32 {r('tb')}, 1, {r('h4')}")
e(f"v_lshl_add_u32 {r('ta')}, {r('tb')}, 3, {r('ta')}")
e(f"v_add_u32 {r('ea', 0, 1)}, {r('own')}, {r('ta')}")
for nb in range(1, 4):
    e(f"v_xor_b32 {r('ea', nb, 1)}, {32 * nb}, {r('ea', 0, 1)}")
e(f"s_and_b32 {T2}, {r('tok16')}, 7")
e(f"s_lshl_b32 {T2}, {T2}, 7")
e(f"s_add_u32 {T2}, {T2}, {STT}")
e(f"v_lshl_add_u32 {r('svr')}, {r('i15')}, 3, {T2}")
e(f"s_lshl_b32 {T2}, {r('wave')}, 8")
e(f"s_add_u32 {T2}, {T2}, {STT}")
e(f"v_lshl_add_u32 {r('stw')}, {r('i15')}, 3, {T2}")
S("m1", 2); S("m2", 2)
e(f"v_and_b32 {r('ta')}, 1, {r('lane')}")
e(f"v_cmp_eq_u32 {r('m1')}, 1, {r('ta')}")
e(f"v_and_b32 {r('ta')}, 2, {r('lane')}")
e(f"v_cmp_eq_u32 {r('m2')}, 2, {r('ta')}")
e(f"v_lshrrev_b32 {r('ta')}, 2, {r('i15')}")
e(f"v_lshl_add_u32 {r('ta')}, {r('ta')}, 4, {r('i15')}")
e(f"v_lshlrev_b32 {r('bpa')}, 2, {r('ta')}")
e(f"v_lshlrev_b32 {r('ta')}, 4, {r('h4')}")
e(f"v_add_u32 {r('csr0')}, {CSX}, {r('ta')}")
e(f"s_lshl_b32 {T2}, {r('wave')}, 6")
e(f"v_add_u32 {r('csw')}, {T2}, {r('csr0')}")
e(f"s_lshl_b32 {T2}, {r('wodd')}, 6")
e(f"s_add_u32 {T2}, {T2}, 256")
e(f"v_add_u32 {r('csw2')}, {T2}, {r('csr0')}")
S("ho", 2, align=1)
e(f"s_lshl_b32 {T2}, {r('T1')}, 2")
e(f"s_add_u32 {T2}, {T2}, {r('wave')}")
e(f"s_mul_i32 {T2}, {T2}, 86")
e(f"s_add_u32 {T2}, {T2}, {r('b0')}")
e(f"s_lshl_b32 {T2}, {T2}, 10")
e(f"s_add_u32 {r('ho', 0, 1)}, {T2}, {HB}")
e(f"s_add_u32 {r('ho', 1, 1)}, {T2}, {HB + 44032}")
stamp("setup")
g.free("T1", "q", "tt2", "ns", "tok16", "whi")

V("wf", 32); V("kf", 40); V("vf", 16); V("ks", 16); V("kvp", 8)
g.wait(vm="sh")
for c in range(8):
    for j in range(4):
        src = r("shr", 2 * c + (j >> 1), 1)
        if j & 1:
            e(f"v_and_b32 {r('wf', j * 8 + c, 1)}, {r('hmask')}, {src}")
        else:
            e(f"v_lshlrev_b32 {r('wf', j * 8 + c, 1)}, 16, {src}")


def unpack(dst, doff, src, soff, ndw):
    it = []
    for d in range(ndw):
        it.append(E(f"v_lshlrev_b32 {r(dst, doff + 2 * d, 1)}, 16, {r(src, soff + d, 1)}"))
        it.append(E(f"v_and_b32 {r(dst, doff + 2 * d + 1, 1)}, {r('hmask')}, {r(src, soff + d, 1)}"))
    return it


kvc = unpack("kf", 24, "kr", 12, 8) + unpack("vf", 0, "vr", 0, 8) + [W(vm="k")] + unpack("kf", 0, "kr", 0, 12)
for t in range(2):
    for cp in range(4):
        d = r("ks", t * 8 + 2 * cp, 2)
        kvc.append(E(f"v_pk_mul_f32 {d}, {r('kf', (t + 0) * 8 + 2 * cp, 2)}, {r('wf', 3 * 8 + 2 * cp, 2)}"))
    for j in (2, 1, 0):
        for cp in range(4):
            d = r("ks", t * 8 + 2 * cp, 2)
            kvc.append(E(f"v_pk_fma_f32 {d}, {r('kf', (t + 3 - j) * 8 + 2 * cp, 2)}, {r('wf', j * 8 + 2 * cp, 2)}, {d}"))
    for cp in range(4):
        d = r("ks", t * 8 + 2 * cp, 2)
        kvc.append(E(f"v_pk_mul_f32 {d}, {d}, {r('vf', t * 8 + 2 * cp, 2)}"))
for c in range(8):
    kvc.append(E(f"v_cvt_pk_bf16_f32 {r('kvp', c, 1)}, {r('ks', 8 + c, 1)}, {r('ks', c, 1)}"))
    kvc.append(E(f"ds_write_b32 {r('kvw')}, {r('kvp', c, 1)} offset:{128 * c}", "kvw"))
run(weave(kvc, (dmaX(1), 2, 100)))
stamp("kv")
S("tag", 2)
g.wait(vm="W0", lg=0)
e(f"v_readfirstlane_b32 {T2}, {r('ep', 0, 1)}")
e(f"v_readfirstlane_b32 {T3}, {r('ep', 1, 1)}")
e("s_barrier")
e(f"ds_read_b128 {r('kvp', 0, 4)}, {r('kvr')}", "kvr")
e(f"ds_read_b128 {r('kvp', 4, 4)}, {r('kvr')} offset:1040", "kvr")
g.free("wf", "kf", "vf", "ks", "kr", "vr", "shr", "ep", "k0", "km", "sho", "kvw", "kvr")

AC("xf", 64, at=192)
AC("wa", 48, at=128); AC("ca", 16, at=176)
AC("w2a", 128, at=0)
V("acc", 48); V("cs", 8); V("rs", 8); V("gr", 8)


def xf(K, tb):
    return r("xf", ((K & 7) * 2 + tb) * 4, 4)


def rdX(ei):
    return [lambda: (stamp(f"bX{ei}", "g1"), g.wait(vm=f"X{ei}"), stamp(f"aX{ei}", "g1"))] + [E(f"ds_read_b128 {xf(ei * 2 + k, tb)}, {r('xrd', k, 1)} offset:{(ei % 3) * 4096 + tb * 2048}", f"rx{ei}")
                               for k in range(2) for tb in range(2)]


def wbase(K):
    return ((K >> 2) & 1) * 24576 + (K & 3) * 6144


def rdW(K):
    return [E(f"ds_read_b64_tr_b16 {r('wa', (K & 1) * 24 + fb * 4 + 2 * hf, 2)}, {r('w1r', fb & 1, 1)} offset:{wbase(K) + hf * 768 + fb * 32}", f"rw{K}")
            for fb in range(6) for hf in range(2)]


def rdC(K):
    return [E(f"ds_read_b64_tr_b16 {r('ca', (K & 1) * 8 + c * 4 + 2 * hf, 2)}, {r('csr', c, 1)} offset:{wbase(K) + hf * 768}", f"rc{K}")
            for c in range(2) for hf in range(2)]


def mfma(d, a, b, first):
    e(f"v_mfma_f32_16x16x32_bf16 {d}, {a}, {b}, {'0' if first else d}")


def mainM(K):
    items = []
    for fb in range(6):
        for tb in range(2):
            def it(fb=fb, tb=tb):
                if fb == 0 and tb == 0:
                    g.wait(lg=f"rw{K}")
                mfma(r("acc", (fb * 2 + tb) * 4, 4), r("wa", (K & 1) * 24 + fb * 4, 4), xf(K, tb), K == 0)
            items.append(it)
    return items


def statM(K):
    items = []
    for tb in range(2):
        items.append(lambda tb=tb: mfma(r("rs", tb * 4, 4), r("ones"), xf(K, tb), K == 0))
        items.append(lambda tb=tb: mfma(r("gr", tb * 4, 4), xf(K, tb), xf(K, tb), K == 0))
    return items


def csM(K):
    items = []
    for c in range(2):
        def it(c=c):
            if c == 0:
                g.wait(lg=f"rc{K}")
            mfma(r("cs", c * 4, 4), r("ca", (K & 1) * 8 + c * 4, 4), r("ones"), K == 0)
        items.append(it)
    return items


def setflag(addr, tagname):
    e("s_mov_b64 exec, 1")
    e(f"buffer_store_dwordx2 {r('vtag')}, {r('zero')}, {r('sWS')}, {addr} offen sc1", tagname)
    e("s_mov_b64 exec, -1")


def pollissue(voff, soff, tagname):
    e(f"buffer_load_dwordx2 {r('pf')}, {voff}, {r('sWS')}, {soff} offen sc1", tagname)


def pollcheck(voff, soff, tagname):
    g.wait(vm=tagname)
    if SPINMAX:
        e(f"s_mov_b32 {T4}, 0")
    g.label(f"L_{tagname}")
    e(f"v_cmp_ne_u64 vcc, {r('tag')}, {r('pf')}")
    e("s_cmp_eq_u64 vcc, 0")
    e(f"s_cbranch_scc1 L_{tagname}_ok")
    if SPINMAX:
        e(f"s_add_u32 {T4}, {T4}, 1")
        e(f"s_cmp_gt_u32 {T4}, {SPINMAX}")
        e(f"s_cbranch_scc1 L_{tagname}_ok")
    e("s_sleep 2")
    n = len(g.vm)
    pollissue(voff, soff, None)
    e("s_waitcnt vmcnt(0)")
    del g.vm[n:]
    e(f"s_branch L_{tagname}")
    g.label(f"L_{tagname}_ok")


run(rdW(0)); run(rdC(0))
e(f"s_mul_i32 {r('tag', 0, 1)}, {T2}, 0x9E3779B1")
e(f"s_add_u32 {r('tag', 0, 1)}, {r('tag', 0, 1)}, 0x7F4A7C15")
e(f"s_mul_i32 {r('tag', 1, 1)}, {T3}, 0x85EBCA6D")
e(f"s_add_u32 {r('tag', 1, 1)}, {r('tag', 1, 1)}, 0x165667B1")
e(f"v_mov_b32 {r('vtag', 0, 1)}, {r('tag', 0, 1)}")
e(f"v_mov_b32 {r('vtag', 1, 1)}, {r('tag', 1, 1)}")
e(f"s_add_u32 {T3}, {r('kvo')}, 32768")
g.wait(lg="kvr")
e(f"buffer_store_dwordx4 {r('kvp', 0, 4)}, {r('kvs')}, {r('sWS')}, {r('kvo')} offen sc1", "kvst")
e(f"buffer_store_dwordx4 {r('kvp', 4, 4)}, {r('kvs')}, {r('sWS')}, {T3} offen sc1", "kvst")
stamp("kvst")
g.free("kvo")
run(rdX(0))
w1_1 = dmaW1(1)
run(w1_1[:3])
g.wait(lg="rx0")
stamp("x0")

V("b1r", 12); V("skr", 12); V("sa"); V("sb"); V("sc")
small = []
small.append(lambda: (e(f"s_lshl_b32 {T2}, {r('chan')}, 12"), srd("sA", 4, 4096, add=T2),
                      e(f"s_lshl_b32 {T3}, {r('wodd')}, 11"), e(f"v_add_u32 {r('sa')}, {T3}, {r('l16')}"),
                      e(f"v_subrev_u32 {r('sb')}, 8, {r('sa')}"), e(f"v_add_u32 {r('sc')}, 1016, {r('sa')}")))
small.append(E(f"buffer_load_dwordx4 {r('skr', 2, 4)}, {r('sa')}, {r('sA')}, 0 offen", "sk"))
small.append(E(f"buffer_load_dwordx4 {r('skr', 8, 4)}, {r('sa')}, {r('sA')}, 0 offen offset:1024", "sk"))
small.append(E(f"buffer_load_dwordx2 {r('skr', 0, 2)}, {r('sb')}, {r('sA')}, 0 offen", "sk"))
small.append(E(f"buffer_load_dwordx2 {r('skr', 6, 2)}, {r('sc')}, {r('sA')}, 0 offen", "sk"))
small2 = [lambda: (e(f"s_lshl_b32 {T3}, {r('b0')}, 6"), e(f"v_lshl_add_u32 {r('sa')}, {r('h4')}, 3, {T3}"),
                   e(f"v_lshl_add_u32 {r('sb')}, {r('h4')}, 3, {r('ns128')}"))]
for fb in range(6):
    small2.append(E(f"global_load_dwordx2 {r('b1r', 2 * fb, 2)}, {r('sa')}, {ptr(8)} offset:{32 * fb}", "b1"))
for nb in range(4):
    small2.append(E(f"global_load_dwordx2 {r('b2r', 2 * nb, 2)}, {r('sb')}, {ptr(10)} offset:{32 * nb}", "b2"))

V("ke", 24); V("zz", 4)
kcopy = [W(vm="sk")]
for n in range(2):
    R = lambda k, c=1, n=n: r("skr", 6 * n + k, c)
    KE = lambda k, c=1, n=n: r("ke", 12 * n + k, c)
    kcopy.append(E(f"ds_write_b128 {r('kw')}, {R(2, 4)} offset:{3 * FP + 1024 * n}", "kc"))
    for k in range(4):
        kcopy.append(E(f"v_alignbit_b32 {KE(k)}, {R(k + 1)}, {R(k)}, 16"))
    kcopy.append(E(f"ds_write_b128 {r('kw')}, {KE(0, 4)} offset:{1024 * n}", "kc"))
    for k in range(4):
        kcopy.append(E(f"v_alignbit_b32 {KE(4 + k)}, {R(k + 2)}, {R(k + 1)}, 16"))
    kcopy.append(E(f"ds_write_b128 {r('kw')}, {KE(4, 4)} offset:{2 * FP + 1024 * n}", "kc"))
    for k in range(4):
        kcopy.append(E(f"v_mov_b32 {KE(8 + k)}, {R(1 + k)}"))
    kcopy.append(E(f"ds_write_b128 {r('kw')}, {KE(8, 4)} offset:{FP + 1024 * n}", "kc"))
zfill = [E(f"v_mov_b32 {r('zz', i, 1)}, 0") for i in range(4)] + [E(f"ds_write_b128 {r('za')}, {r('zz')}", "zw")]

W2SLOT = {0: ("o", 8192), 1: ("o", 0), 2: ("x", 0), 3: ("o", 4096), 4: ("x", S4 - S3),
          5: ("o", 8192), 6: ("o", 0), 7: ("x", 0), 8: ("o", 4096), 9: ("x", S4 - S3), 10: ("o", 8192)}
S("w2o")


def dmaW2(p):
    items = []
    kind, off = W2SLOT[p]
    for n in range(4):
        def it(n=n):
            if n == 0:
                if p >= 5:
                    g.wait(lg=f"rv{p - 5}")
                e(f"s_add_u32 m0, {r('own') if kind == 'o' else r('w4k')}, {off}")
                e(f"s_lshl_b32 {r('w2o')}, {r(f'kb{p}')}, 5")
            e(f"buffer_load_dwordx4 {r('w2s', n, 1)}, {r('sB')}, {r('w2o')} offen offset:{1024 * n} lds", f"V{p}")
        items.append(it)
    return items


def w2f(p, nb, off=0, n=4):
    k = (p * 4 + nb) * 4 + off
    return f"a[{k}:{k + n - 1}]"


def rdW2(p):
    kind, off = W2SLOT[p]
    items = [W(vm=f"V{p}")]
    for nb in range(4):
        for hf in range(2):
            items.append(E(f"ds_read_b64_tr_b16 {w2f(p, nb, 2 * hf, 2)}, {r('w2r', nb + (0 if kind == 'o' else 4), 1)} offset:{off + hf * 2048}", f"rv{p}"))
    return items


def after(tag, items):
    return [lambda: (g.wait(lg=tag), items[0]())] + items[1:]


bump = [E(f"v_add_u32 {r(x, i, 1)}, 49152, {r(x, i, 1)}") for x in ("w1r", "csr") for i in range(2)]
udma = [lambda: (stamp("bP1", "g1"), pollcheck(r("pf1o"), r("p1a"), "pf1"), stamp("aP1", "g1")),
        lambda: (e(f"s_lshl_b32 {T2}, {r('chan')}, 12"), srd("sA", 13, 4096, add=T2), e(f"s_mov_b32 m0, {r('um0')}"))]
for n in range(4):
    udma.append(E(f"buffer_load_dwordx4 {r('l16')}, {r('sA')}, {r('ush')} offen offset:{1024 * n} sc1 lds", "U"))

w1_2 = dmaW1(2); w1_3 = dmaW1(3)
x2, x3, x4, x5, x6, x7 = (dmaX(k) for k in range(2, 8))
f1set = [lambda: (g.wait(vm="kvst"), setflag(r("f1a"), "f1"))]
sB2 = [lambda: srd("sB", 9, 1409024)]
BG = {
    0: (w1_1[3:] + x2[:2], rdX(1)),
    1: (x2[2:] + x3[:3], []),
    2: (x3[3:] + w1_2[:4], []),
    3: (w1_2[4:] + x4[:2] + f1set, rdX(2)),
    4: (x4[2:] + x5[:3], []),
    5: (x5[3:] + w1_3[:4], rdX(3)),
    6: (w1_3[4:] + x6[:3], []),
    7: (x6[3:] + small, rdX(4)),
    8: (x7, sB2),
    9: (small2[:6], rdX(5)),
    10: (small2[6:] + dmaW2(0), kcopy[:16]),
    11: ([lambda: pollissue(r("pf1o"), r("p1a"), "pf1")] + dmaW2(2)[:0], rdX(6) + kcopy[16:]),
}
for K in range(12):
    if K & 3 == 3:
        stamp(f"bW{(K >> 2) + 1}", "g1")
        g.wait(vm=f"W{(K >> 2) + 1}", lg=0)
        stamp(f"aW{(K >> 2) + 1}", "g1")
        e("s_barrier")
        stamp(f"c{K >> 2}")
        stamp(f"c{K >> 2}", "g1")
        if K == 7:
            run(bump)
    vm_items, other = BG[K]
    if K and not K & 1:
        g.wait(lg=f"rx{K >> 1}")
    main = statM(K) + mainM(K) + csM(K)
    run(weave(main, (rdW(K + 1) + rdC(K + 1), 1, 16), (vm_items, 0, 17), (other, 6, 14)))
    if K == 1:
        g.free("kvp", "kvs", "pre")
g.free("w1s", "w1base", "w1lds", "sW1", "xbase", "rot", "so", "f1a", "ke", "skr", "kw", "sa", "sb", "sc")

V("sg", 2, align=1); V("sac", 4); V("stv", 4); V("u", 8, align=2)
EPS = f2u(1e-5)


def rb(dst, src):
    return [E(f"v_cvt_pk_bf16_f32 {dst}, {src}, {src}"), E(f"v_and_b32 {dst}, {r('hmask')}, {dst}")]


st1 = []
for tb in range(2):
    G = lambda k, tb=tb: r("gr", tb * 4 + k, 1)
    st1.append(E(f"v_cndmask_b32 {r('ta')}, {G(0)}, {G(1)}, {r('m1')}"))
    st1.append(E(f"v_cndmask_b32 {r('tb')}, {G(2)}, {G(3)}, {r('m1')}"))
    st1.append(E(f"v_cndmask_b32 {r('ta')}, {r('ta')}, {r('tb')}, {r('m2')}"))
    st1.append(E(f"ds_bpermute_b32 {r('sg', tb, 1)}, {r('bpa')}, {r('ta')}", "bp"))
st2 = []
chains = []
for tb in range(2):
    mu, var, t, w = (r("u", tb * 4 + k, 1) for k in range(4))
    mb, rsd = r("stv", tb * 2, 1), r("stv", tb * 2 + 1, 1)
    a_, c_ = r("sac", tb * 2, 1), r("sac", tb * 2 + 1, 1)
    c = []
    c.append(E(f"v_mul_f32 {mu}, 0x{f2u(1 / 512):08x}, {r('rs', tb * 4, 1)}"))
    c.append(E(f"v_mul_f32 {var}, 0x{f2u(1 / 512):08x}, {r('sg', tb, 1)}"))
    c.append(E(f"v_fma_f32 {var}, -{mu}, {mu}, {var}"))
    c.append(E(f"v_max_f32 {var}, 0, {var}"))
    c += rb(mb, mu)
    c += rb(t, var)
    c.append(E(f"v_add_f32 {t}, 0x{EPS:08x}, {t}"))
    c += rb(t, t)
    c.append(E(f"v_sqrt_f32 {t}, {t}"))
    c += rb(t, t)
    c.append(E(f"v_rcp_f32 {rsd}, {t}"))
    c.append(E(f"v_sub_f32 {mu}, {mu}, {mb}"))
    c.append(E(f"v_mul_f32 {mu}, {mu}, {rsd}"))
    c.append(E(f"v_mul_f32 {var}, {var}, {rsd}"))
    c.append(E(f"v_mul_f32 {var}, {var}, {rsd}"))
    c += rb(mu, mu)
    c += rb(t, var)
    c.append(E(f"v_add_f32 {t}, 0x{EPS:08x}, {t}"))
    c += rb(t, t)
    c.append(E(f"v_sqrt_f32 {t}, {t}"))
    c += rb(t, t)
    c.append(E(f"v_rcp_f32 {w}, {t}"))
    c.append(E(f"v_fma_f32 {mu}, {mb}, {rsd}, {mu}"))
    c.append(E(f"v_mul_f32 {a_}, {rsd}, {w}"))
    c.append(E(f"v_mul_f32 {c_}, {mu}, {w}"))
    chains.append(c)
for x, y in zip(*chains):
    st2 += [x, y]
csw = [lambda: (e("s_mov_b32 exec_lo, 0x00010001"), e("s_mov_b32 exec_hi, 0x00010001"),
                e(f"ds_write_b128 {r('csw')}, {r('cs', 0, 4)}", "csw"), e(f"ds_write_b128 {r('csw2')}, {r('cs', 4, 4)}", "csw"),
                e("s_mov_b64 exec, -1"))]
V("b1f", 24)
g.wait(lg="rx6")
run(weave(statM(12) + csM(12) + mainM(12), (rdC(13) + rdW(13), 1, 14), (rdC(14), 14, 17), (after("rx6", dmaW2(1)) + dmaW2(2)[:1], 0, 17), (zfill, 8, 16)))
run(weave(statM(13) + csM(13) + csM(14) + mainM(13), (rdW(14), 1, 12), (rdC(15), 8, 12), (rdX(7), 13, 18), (dmaW2(2)[1:] + udma, 0, 19)))
run(weave([W(lg="rx7")] + statM(14) + statM(15) + csM(15) + mainM(14), (rdW(15), 2, 12), (st1, 12, 19), (csw, 18, 18),
          (dmaW2(3), 3, 21), ([W(vm="b1")] + unpack("b1f", 0, "b1r", 0, 6), 14, 22)))
g.wait(lg=0)
e("s_barrier")
stamp("c3")
stamp("c3", "g1")
V("csf", 24)
rcs = [E(f"ds_read_b128 {r('csf', 4 * fb, 4)}, {r('csr0')} offset:{64 * fb}", "rcs") for fb in range(6)]
run(weave(mainM(15), (rcs, 0, 5), (st2[:30], 0, 11)))
run(weave(st2[30:], (unpack("b1f", 12, "b1r", 6, 6), 0, 40), (dmaW2(4), 0, 40)))
e("s_mov_b64 exec, 0xffff")
e(f"ds_write_b64 {r('stw')}, {r('stv', 0, 2)}", "stw")
e(f"ds_write_b64 {r('stw')}, {r('stv', 2, 2)} offset:128", "stw")
e("s_mov_b64 exec, -1")
g.free("wa", "ca", "xf", "rs", "gr", "cs", "sg", "bpa", "u", "m1", "m2", "csw", "csw2", "stw", "stv", "b1r", "w1r", "csr", "ones",
       "xrd", "zz", "za", "csr0", "pf1o", "p1a", "um0", "ush")
AC("w2b", 48, at=128)
stamp("g1")

K0 = -2.0 * 0.7978845608028654 * 1.4426950408889634
K1 = K0 * 0.044715
S("k1", 2); V("k0v", 2); V("ge", 16); V("hp", 8)
e(f"s_mov_b32 {r('k1', 0, 1)}, 0x{f2u(K1):08x}")
e(f"s_mov_b32 {r('k1', 1, 1)}, 0x{f2u(K1):08x}")
e(f"v_mov_b32 {r('k0v', 0, 1)}, 0x{f2u(K0):08x}")
e(f"v_mov_b32 {r('k0v', 1, 1)}, 0x{f2u(K0):08x}")
g.wait(lg="rcs")


def gelu(b, tb):
    it = []
    sac = r("sac", tb * 2, 2)
    prs = [(fb, h) for fb in (2 * b, 2 * b + 1) for h in range(2)]
    U = lambda k: r("acc", (prs[k][0] * 2 + tb) * 4 + 2 * prs[k][1], 2)
    Tm = lambda k: r("ge", (tb & 1) * 8 + 2 * k, 2)
    T1r = lambda k, x: r("ge", (tb & 1) * 8 + 2 * k + x, 1)
    for k, (fb, h) in enumerate(prs):
        it.append(E(f"v_pk_fma_f32 {Tm(k)}, {r('csf', fb * 4 + 2 * h, 2)}, {sac}, {r('b1f', fb * 4 + 2 * h, 2)} op_sel:[0,1,0] op_sel_hi:[1,1,1] neg_lo:[0,1,0] neg_hi:[0,1,0]"))
    for k in range(4):
        it.append(E(f"v_pk_fma_f32 {U(k)}, {U(k)}, {sac}, {Tm(k)} op_sel_hi:[1,0,1]"))
    for k in range(4):
        it.append(E(f"v_pk_mul_f32 {Tm(k)}, {U(k)}, {U(k)}"))
    for k in range(4):
        it.append(E(f"v_pk_fma_f32 {Tm(k)}, {Tm(k)}, {r('k1')}, {r('k0v')}"))
    for k in range(4):
        it.append(E(f"v_pk_mul_f32 {Tm(k)}, {Tm(k)}, {U(k)}"))
    for k in range(4):
        for x in range(2):
            it.append(E(f"v_exp_f32 {T1r(k, x)}, {T1r(k, x)}"))
    for k in range(4):
        it.append(E(f"v_pk_add_f32 {Tm(k)}, {Tm(k)}, 1.0 op_sel_hi:[1,0]"))
    for k in range(4):
        for x in range(2):
            it.append(E(f"v_rcp_f32 {T1r(k, x)}, {T1r(k, x)}"))
    for k in range(4):
        it.append(E(f"v_pk_mul_f32 {Tm(k)}, {Tm(k)}, {U(k)}"))
    for k in range(4):
        it.append(E(f"v_cvt_pk_bf16_f32 {r('hp', (tb & 1) * 4 + k, 1)}, {T1r(k, 0)}, {T1r(k, 1)}"))
    if b == 2 and tb == 0:
        it.append(lambda: (e(f"s_cmp_lt_u32 {r('nown')}, 3"), e(f"s_cselect_b32 {r('ho', 0, 1)}, 0x7f000000, {r('ho', 0, 1)}"),
                           e(f"s_cselect_b32 {r('ho', 1, 1)}, 0x7f000000, {r('ho', 1, 1)}")))
    it.append(E(f"buffer_store_dwordx4 {r('hp', (tb & 1) * 4, 4)}, {r('l16')}, {r('sWS')}, {r('ho', tb, 1)} offen offset:{1024 * b} sc1", "hst"))
    return it


AC("cf", 32, at=176); AC("cg", 32, at=208)


def rdF(it, c):
    return E(f"ds_read_b128 {r('cf', 4 * c, 4)}, {r('fa')} offset:{64 * it + 512 * c}", f"F{it}_{c}")


def rdG(it, d):
    return E(f"ds_read_b128 {r('cg', 4 * d, 4)}, {r('ga')} offset:{64 * it + 512 * (7 - d)}", f"G{it}_{d}")


run(weave(gelu(0, 0), (rdW2(0), 2, 40)))
run(weave(gelu(0, 1), (rdW2(1), 2, 40), (dmaW2(5), 6, 44)))
run(weave(gelu(1, 0), (rdW2(2), 2, 40), (dmaW2(6)[:2], 6, 44)))
run(weave(gelu(1, 1), (dmaW2(6)[2:], 6, 44)))
g.wait(vm="U", lg=0)
e("s_barrier")
stamp("b5")
init = []
for k in range(8):
    init += [rdF(0, 7 - k), rdG(0, k)]
run(weave(gelu(2, 0), (dmaW2(7)[:2], 6, 44)))
run(weave(gelu(2, 1), (init, 10, 46), (dmaW2(7)[2:], 6, 44)))
stamp("gelu")
g.free("acc", "csf", "b1f", "sac", "ge", "k0v", "k1", "ho", "nown", "b0")
V("cy", 32)

extra = {
    0: rdW2(3) + rdW2(4) + dmaW2(8),
    1: [lambda: (g.wait(vm="hst"), setflag(r("f2a"), "f2"))] + rdW2(5) + dmaW2(9) + rdW2(6),
    2: dmaW2(10) + rdW2(7) + rdW2(8),
    3: rdW2(9) + rdW2(10) + [lambda: pollissue(r("pf2o"), r("p2a"), "pf2")],
}
for it in range(4):
    seq = []
    for c in range(7, -1, -1):
        for d in range(0, 8 - c):
            t = c + d

            def m(c=c, d=d, t=t, it=it):
                if d == 0:
                    if c == 7 or it == 0:
                        pass
                    g.wait(lg=f"F{it}_{c}") if (c == 0 and it) else None
                if d == 7 - c:
                    pass
                first = (it == 0 and d == 0)
                if d == 0:
                    g.wait(lg=f"G{it}_{7 - c}")
                mfma(r("cy", 4 * t, 4), r("cf", 4 * c, 4), r("cg", 4 * d, 4), first)
                if it == 0 and c == 0:
                    mfma(r("cy", 4 * t, 4), r("fd"), r("cg", 4 * d, 4), False)
                if it < 3:
                    if d == 7 - c and c > 0:
                        rdF(it + 1, c)()
                    if c == 0:
                        rdG(it + 1, d)()
                        if d == 7:
                            rdF(it + 1, 0)()
            seq.append(m)
    run(weave(seq, (extra[it], 3, 27)))
stamp("conv")
g.free("cf", "cg", "fd", "fa", "ga", "w2s", "w2o", "w4k", "f2a", "hp")
V("ys", 8); V("cg", 24)
g.wait(lg=0)
e(f"s_cmp_lg_u32 {r('wodd')}, 0")
e("s_cbranch_scc1 L_odd1")
for k in range(4):
    e(f"ds_write_b128 {r('oa')}, {r('cy', 16 + 4 * k, 4)} offset:{1024 * k}")
e("s_branch L_j1")
g.label("L_odd1")
e("s_nop 4")
for k in range(4):
    e(f"ds_write_b128 {r('oa')}, {r('cy', 4 * k, 4)} offset:{1024 * k}")
g.wait(lg=0)
for k in range(8):
    e(f"v_pk_mov_b32 {r('cy', 2 * k, 2)}, {r('cy', 16 + 2 * k, 2)}, {r('cy', 16 + 2 * k, 2)} op_sel:[0,1]")
g.label("L_j1")
e(f"s_add_u32 m0, {r('own')}, 6144")
for p in range(11):
    e(f"s_min_u32 {r(f'kb{p}')}, {r(f'kb{p}')}, {42 * 1024}")
e(f"buffer_load_dwordx4 {r('xs', 0, 1)}, {r('sX')}, {r('tile0')} offen lds", "xt")
e(f"buffer_load_dwordx4 {r('xs', 1, 1)}, {r('sX')}, {r('tile0')} offen offset:1024 lds", "xt")
g.wait(lg=0)
e("s_barrier")
for k in range(4):
    e(f"ds_read_b128 {r('cg', 4 * k, 4)}, {r('pa')} offset:{1024 * k}", f"ex{k}")
for k in range(4):
    g.wait(lg=f"ex{k}")
    for hh in range(2):
        e(f"v_pk_add_f32 {r('cy', 4 * k + 2 * hh, 2)}, {r('cy', 4 * k + 2 * hh, 2)}, {r('cg', 4 * k + 2 * hh, 2)}")
    for hh in range(2):
        e(f"v_cvt_pk_bf16_f32 {r('cg', 16 + 2 * k + hh, 1)}, {r('cy', 4 * k + 2 * hh, 1)}, {r('cy', 4 * k + 2 * hh + 1, 1)}")
    e(f"ds_write_b64 {r('yw')}, {r('cg', 16 + 2 * k, 2)} offset:{4096 + 512 * k}", "yw")
g.wait(lg=0)
e(f"ds_read_b128 {r('ys', 0, 4)}, {r('oa')} offset:4096", "yr0")
e(f"ds_read_b128 {r('ys', 4, 4)}, {r('oa')} offset:5120", "yr1")
g.wait(lg="yr0")
e(f"buffer_store_dwordx4 {r('ys', 0, 4)}, {r('l16')}, {r('sWS')}, {r('yo')} offen sc1", "yst")
g.wait(lg="yr1")
e(f"buffer_store_dwordx4 {r('ys', 4, 4)}, {r('l16')}, {r('sWS')}, {r('yo')} offen offset:1024 sc1", "yst")
stamp("yst")
g.free("cy", "pa", "yw", "w2r", "cg", "yo")

AC("hfa", 80, at=176)
V("hf0", 44); V("hf1", 44); V("hf2", 8); V("ac2", 32)
HF = {}
for s_ in range(4):
    for p_ in range(11):
        k_ = s_ * 11 + p_
        HF[s_, p_] = r(f"hf{s_}", 4 * p_, 4) if k_ < 24 else r("hfa", 4 * (k_ - 24), 4)
pollcheck(r("pf2o"), r("p2a"), "pf2")
stamp("f2")
g.free("pf2o", "p2a")
hl = [E(f"buffer_load_dwordx4 {HF[s, p]}, {r('hv', s, 1)}, {r('sWS')}, {r(f'kb{p}')} offen sc1", f"H{s}_{p}")
      for s in range(4) for p in range(11)]


def g2(s):
    items = []
    for p in range(11):
        for nb in range(4):
            def it(p=p, nb=nb):
                if nb == 0:
                    g.wait(vm=f"H{s}_{p}")
                mfma(r("ac2", (s & 1) * 16 + 4 * nb, 4), w2f(p, nb), HF[s, p], p == 0)
            items.append(it)
    return items


def pwr(s):
    return [E(f"ds_write_b128 {r('pw', s, 1)}, {r('ac2', (s & 1) * 16 + 4 * nb, 4)} offset:{1024 * nb}", "pw") for nb in range(4)]


V("xr", 8); V("xfp", 16); V("xn", 16); V("sv", 2); V("b2f", 16)
pre = [W(vm="xt"), E(f"ds_read_b64 {r('sv')}, {r('svr')}", "sv")]
for nb in range(4):
    pre.append(E(f"ds_read_b64 {r('xr', 2 * nb, 2)}, {r('ea', nb, 1)} offset:6144", "xr"))
pre += unpack("b2f", 0, "b2r", 0, 8)
pre.append(W(lg="xr"))
for d in range(8):
    lo, hi = r("xfp", 2 * d, 1), r("xfp", 2 * d + 1, 1)
    a, b = r("xn", 2 * d, 1), r("xn", 2 * d + 1, 1)
    pre.append(E(f"v_lshlrev_b32 {lo}, 16, {r('xr', d, 1)}"))
    pre.append(E(f"v_and_b32 {hi}, {r('hmask')}, {r('xr', d, 1)}"))
    pre.append(E(f"v_sub_f32 {a}, {lo}, {r('sv', 0, 1)}"))
    pre.append(E(f"v_sub_f32 {b}, {hi}, {r('sv', 0, 1)}"))
    pre.append(E(f"v_cvt_pk_bf16_f32 {b}, {a}, {b}"))
    pre.append(E(f"v_lshlrev_b32 {a}, 16, {b}"))
    pre.append(E(f"v_and_b32 {b}, {r('hmask')}, {b}"))
    pre.append(E(f"v_mul_f32 {a}, {a}, {r('sv', 1, 1)}"))
    pre.append(E(f"v_mul_f32 {b}, {b}, {r('sv', 1, 1)}"))
    pre.append(E(f"v_cvt_pk_bf16_f32 {b}, {a}, {b}"))
    pre.append(E(f"v_lshlrev_b32 {a}, 16, {b}"))
    pre.append(E(f"v_and_b32 {b}, {r('hmask')}, {b}"))
NH0 = int(opt.get("nh0", 16))
run(hl[:6])
run(weave(pre, (hl[6:NH0], 0, len(pre) - 1)))
g.wait(vm="yst")
setflag(r("f3a"), "f3")
g.free("ys", "xr", "sv", "svr", "b2r")
stamp("f3set")
run(weave(g2(0), (hl[NH0:NH0 + 11], 3, 43)))
run(weave(g2(1), (hl[NH0 + 11:NH0 + 22], 3, 43), (pwr(0), 8, 20)))
run(weave(g2(2), (hl[NH0 + 22:] + [lambda: pollissue(r("pf3o"), r("p3a"), "pf3")], 3, 30), (pwr(1), 8, 20)))
stamp("g2s2")
s3 = g2(3)
run(s3[:8])
run(pwr(2))
g.wait(lg=0)
e("s_barrier")
g.free("hf0", "hf1")
V("ps", 48); V("zr", 8); V("hfv", 32)
rp = [E(f"ds_read_b128 {r('ps', 4 * k, 4)}, {r('psr')} offset:{PX + 1024 * k}", f"rp{k}") for k in range(12)]
run(weave(s3[8:24], (rp, 0, 12)))
adds = [W(lg="rp11")]
for k in range(16):
    adds.append(E(f"v_add_f32 {r('ps', k, 1)}, {r('ps', k, 1)}, {r('ps', 16 + k, 1)}"))
    adds.append(E(f"v_add_f32 {r('b2f', k, 1)}, {r('b2f', k, 1)}, {r('ps', 32 + k, 1)}"))
for k in range(16):
    adds.append(E(f"v_add_f32 {r('ps', k, 1)}, {r('ps', k, 1)}, {r('b2f', k, 1)}"))
run(weave(s3[24:], (adds, 0, 19)))
stamp("g2")
pollcheck(r("pf3o"), r("p3a"), "pf3")
stamp("f3")
e(f"s_add_u32 m0, {r('own')}, 8192")
e(f"s_add_u32 {T3}, {r('zo')}, {131072 - 1024}")
e(f"buffer_load_dwordx4 {r('zs')}, {r('sWS')}, {r('zo')} offen sc1 lds", "z")
e(f"buffer_load_dwordx4 {r('zs')}, {r('sWS')}, {T3} offen offset:1024 sc1 lds", "z")
S("nl2", 2)
e(f"s_mov_b32 {r('nl2', 0, 1)}, 0x{f2u(-1.4426950408889634):08x}")
e(f"s_mov_b32 {r('nl2', 1, 1)}, 0x{f2u(-1.4426950408889634):08x}")
srd("sA", 11, 2097152)
M = lambda k: r("ps", 2 * k, 2)
Tt = lambda k: r("ps", 16 + 2 * k, 2)
for k in range(8):
    e(f"v_pk_add_f32 {M(k)}, {M(k)}, {r('ac2', 16 + 2 * k, 2)}")
for k in range(8):
    e(f"v_pk_mul_f32 {Tt(k)}, {M(k)}, {r('nl2')}")
for k in range(16):
    e(f"v_exp_f32 {r('ps', 16 + k, 1)}, {r('ps', 16 + k, 1)}")
for k in range(8):
    e(f"v_pk_add_f32 {Tt(k)}, {Tt(k)}, 1.0 op_sel_hi:[1,0]")
for k in range(16):
    e(f"v_rcp_f32 {r('ps', 16 + k, 1)}, {r('ps', 16 + k, 1)}")
for k in range(8):
    e(f"v_pk_mul_f32 {M(k)}, {M(k)}, {Tt(k)}")
for k in range(8):
    e(f"v_pk_mul_f32 {M(k)}, {M(k)}, {r('xn', 2 * k, 2)}")
g.wait(vm="z")
for nb in range(4):
    e(f"ds_read_b64_tr_b16 {r('zr', 2 * nb, 2)}, {r('zt')} offset:{8192 + 512 * nb}", f"zr{nb}")
for nb in range(4):
    g.wait(lg=f"zr{nb}")
    run(unpack("ps", 16 + 4 * nb, "zr", 2 * nb, 2))
    for k in (2 * nb, 2 * nb + 1):
        e(f"v_pk_fma_f32 {M(k)}, {M(k)}, {Tt(k)}, {r('xfp', 2 * k, 2)}")
    for k in (2 * nb, 2 * nb + 1):
        e(f"v_cvt_pk_bf16_f32 {r('zr', k, 1)}, {r('ps', 2 * k, 1)}, {r('ps', 2 * k + 1, 1)}")
    e(f"ds_write_b64 {r('ea', nb, 1)}, {r('zr', 2 * nb, 2)} offset:10240", "ow")
g.wait(lg=0)
e(f"ds_read_b128 {r('ps', 32, 4)}, {r('oa')} offset:10240", "or0")
e(f"ds_read_b128 {r('ps', 36, 4)}, {r('oa')} offset:11264", "or1")
g.wait(lg="or0")
e(f"buffer_store_dwordx4 {r('ps', 32, 4)}, {r('xs', 0, 1)}, {r('sA')}, {r('tile0')} offen {OPOL}", "ost")
g.wait(lg="or1")
e(f"buffer_store_dwordx4 {r('ps', 36, 4)}, {r('xs', 1, 1)}, {r('sA')}, {r('tile0')} offen offset:1024 {OPOL}", "ost")
stamp("out")
e(f"s_or_b32 {T2}, s2, {r('wave')}")
e(f"s_cmp_lg_u32 {T2}, 0")
e("s_cbranch_scc1 L_nobump")
e(f"v_mul_u32_u24 {r('ta')}, {FSTR}, {r('h4')}")
e(f"v_lshl_add_u32 {r('ta')}, {r('i15')}, 4, {r('ta')}")
if SPINMAX:
    e(f"s_mov_b32 {T4}, 0")
g.label("L_bump")
e(f"s_mov_b32 {T2}, {F1B}")
for k in range(8):
    e(f"buffer_load_dwordx4 {r('hfv', 4 * k, 4)}, {r('ta')}, {r('sWS')}, {T2} offen sc1")
    e(f"s_add_u32 {T2}, {T2}, {4 * FSTR}")
e("s_waitcnt vmcnt(0)")
e(f"s_mov_b64 {r('nl2')}, 0")
for k in range(16):
    e(f"v_cmp_ne_u64 vcc, {r('tag')}, {r('hfv', 2 * k, 2)}")
    e(f"s_or_b64 {r('nl2')}, {r('nl2')}, vcc")
if SPINMAX:
    e(f"s_add_u32 {T4}, {T4}, 1")
    e(f"s_cmp_gt_u32 {T4}, {SPINMAX}")
    e("s_cbranch_scc1 L_nobump")
e(f"s_cmp_lg_u64 {r('nl2')}, 0")
e("s_cbranch_scc1 L_bump")
e(f"s_mov_b32 {T2}, {EPOCH}")
e("s_mov_b64 exec, 1")
e(f"buffer_store_dwordx2 {r('vtag')}, {r('zero')}, {r('sWS')}, {T2} offen sc1")
e("s_mov_b64 exec, -1")
g.label("L_nobump")
if STAMPS:
    e("s_waitcnt vmcnt(0)")
    stamp("end")
    flush_stamps(True)
    e(f"s_lshl_b32 {T2}, s2, 2")
    e(f"s_add_u32 {T2}, {T2}, {r('wave')}")
    e(f"s_lshl_b32 {T2}, {T2}, 7")
    e(f"s_add_u32 {T2}, {T2}, {STAMP}")
    e(f"v_lshlrev_b32 {r('ta')}, 2, {r('lane')}")
    e("s_mov_b32 exec_hi, 0")
    e(f"buffer_store_dword {r('stamps')}, {r('ta')}, {r('sWS')}, {T2} offen")
g.label("L_end")

body = g.finish()
hdr = open("cdna_kernels/" + NAME + ".s.ref").read().split("; @launch")[0]
nv = 256 + g.hw["a"]
txt = f"""{hdr}; @launch grid=(256,1,1) block=(256,1,1) lds={LDSZ}
.amdgcn_target "amdgcn-amd-amdhsa--gfx950"
.text
.globl {NAME}_kernel
.p2align 8
.type {NAME}_kernel,@function
{NAME}_kernel:
{body}
    s_endpgm
.section .rodata,"a"
.p2align 6
.amdhsa_kernel {NAME}_kernel
  .amdhsa_next_free_vgpr {nv}
  .amdhsa_next_free_sgpr 102
  .amdhsa_accum_offset 256
  .amdhsa_group_segment_fixed_size 0
  .amdhsa_kernarg_size 112
  .amdhsa_user_sgpr_count 2
  .amdhsa_user_sgpr_kernarg_segment_ptr 1
  .amdhsa_system_sgpr_workgroup_id_x 1
.end_amdhsa_kernel
"""
import subprocess, re
open("_g.s", "w").write(txt.replace("CODE_BYTES", "0x1000"))
subprocess.check_call(["clang", "-x", "assembler", "-target", "amdgcn-amd-amdhsa", "-mcpu=gfx950", "-c", "_g.s", "-o", "_g.o"])
hh = subprocess.check_output(["llvm-objdump", "-h", "_g.o"]).decode()
size = int(re.search(r"\.text\s+([0-9a-f]+)", hh).group(1), 16)
txt = txt.replace("CODE_BYTES", str((size - 1024) & ~3))
open(OUT, "w").write(txt)
print("code bytes", size, "instrs", len(g.ins), "nops", g.nops, "hw", g.hw, "stamps", nst[0], " ".join(stnames))
```

```python
import sys, struct
from dsl import Gen, interleave

NAME = "recurrent_scan__ssm_conv_h3__mixer_channel_mlp__prompt"
opt = dict(a.split("=") for a in sys.argv[2:])
OUT = sys.argv[1]
MAP1 = int(opt.get("map1", 4))
STAMPS = int(opt.get("stamps", 0))
KVPOL = opt.get("kvpol", "nt")
XPOL0 = opt.get("xpol", "nt")
SPINMAX = int(opt.get("spinmax", 0))
PREDIV = int(opt.get("prediv", 4))
OPOL = opt.get("opol", "")
DBG = int(opt.get("dbg", 0))

KVT, HB, YT, FL, EPOCH, STAMP = 0, 0x200000, 0x800000, 0xA00000, 0xB00000, 0xC00000
F1B, F2B, F3B, FSTR = FL, FL + 0x40000, FL + 0x80000, 4352
WSZ = 0xD00000
XST, KVIMG, CSX, STT = 98304, 147456, 155776, 156160
FP, GP = 4160, 4576
FB0, UB0 = 0, 33280
S3, S4 = 53248, 73728
PX = 0
LDSZ = 157184


def f2u(x):
    return struct.unpack("<I", struct.pack("<f", x))[0]


g = Gen()
e, r = g.e, g.r
V = lambda n, c=1, **k: g.alloc("v", n, c, **k)
S = lambda n, c=1, **k: g.alloc("s", n, c, **k)
AC = lambda n, c=1, **k: g.alloc("a", n, c, **k)
W = lambda **k: (lambda: g.wait(**k))
E = lambda s, t=None: (lambda: e(s, t))


def run(items):
    for it in items:
        it()


def weave(main, *bgs):
    slots = [[] for _ in main]
    for items, a, b in bgs:
        b = min(b, len(main) - 1)
        n = len(items)
        for k, it in enumerate(items):
            pos = a + (k * (b - a + 1)) // max(n, 1)
            slots[pos].append(it)
    out = []
    for m, s in zip(main, slots):
        out.append(m)
        out.extend(s)
    return out


S("karg", 2, at=0); S("wg", 1, at=2); S("t0", 1, at=3)
S("t45", 4, at=4)
for i_ in range(14):
    S(f"ptr{i_}", 2, at=8 + 2 * i_)
V("tid", 1, at=0)
nst = [0]
stnames = []
pend = []
if STAMPS:
    S("st", 8, at=94, align=2)
    V("stamps", 1, at=255)


def flush_stamps(force=False):
    if pend and (force or len(pend) == 4) and g.smem_out:
        g.wait(lg=0)
    if not g.smem_out:
        for k in pend:
            e(f"v_writelane_b32 {r('stamps')}, {r('st', 2 * (k % 4), 1)}, {k}")
        pend.clear()


SSET = opt.get("sset", "main")


def stamp(name, grp="main"):
    if STAMPS and (grp == SSET or name in ("start", "end")) and name not in opt.get("skip", "").split(","):
        assert nst[0] < 32
        flush_stamps()
        e(f"{'s_memtime' if STAMPS == 2 else 's_memrealtime'} {r('st', 2 * (nst[0] % 4), 2)}")
        pend.append(nst[0])
        nst[0] += 1
        stnames.append(name)


def ptr(i):
    if i == 13 and "ptr13" not in g.names:
        return r("sWS", 0, 2)
    return r(f"ptr{i}")


def plo(i):
    return "s" + ptr(i)[2:].split(":")[0]


def phi(i):
    return "s" + ptr(i).split(":")[1][:-1]


def srd(name, pi, nbytes, add=None):
    if add is None:
        e(f"s_mov_b32 {r(name,0,1)}, {plo(pi)}")
        e(f"s_mov_b32 {r(name,1,1)}, {phi(pi)}")
    else:
        e(f"s_add_u32 {r(name,0,1)}, {plo(pi)}, {add}")
        e(f"s_addc_u32 {r(name,1,1)}, {phi(pi)}, 0")
    e(f"s_mov_b32 {r(name,2,1)}, {nbytes}")
    e(f"s_mov_b32 {r(name,3,1)}, 0x00020000")


T0, T1_, T2, T3, T4 = "s3", "s4", "s5", "s6", "s7"
_e = g.e


def e(text, tag=None):
    _e(text, tag)
    if SSET == "pro" and text.startswith(("buffer_", "global_")) and nst[0] < 29:
        stamp(tag or "vm", "pro")


stamp("start")
e("s_load_dwordx16 s[8:23], s[0:1], 0")
e("s_load_dwordx8 s[24:31], s[0:1], 64")
e("s_load_dwordx4 s[32:35], s[0:1], 96")
e("s_cmp_ge_u32 s2, 256")
e("s_cbranch_scc1 L_end")
for n in ("lane", "ta", "tb", "tc", "td", "r8", "pc", "zero", "i15", "h4", "l16", "oa", "fa", "ga", "pa", "yw", "zs", "zt",
          "pf1o", "pf2o", "pf3o", "psr", "svr", "kw", "za", "bpa", "csw", "csw2", "csr0", "stw"):
    V(n)
V("vtag", 2); V("xs", 4, align=1); V("b2r", 8); V("w2s", 4, align=1); V("w2r", 8, align=1); V("hv", 4, align=1)
V("pw", 3, align=1); V("ea", 4, align=1); V("fd", 4); V("pf", 2)
V("xrd", 2, align=1); V("w1r", 2, align=1); V("csr", 2, align=1); V("ones", 4)
for n in ("wave", "T1", "q", "tt2", "ns", "rot", "b0", "nown", "tok16", "ns128", "tile0", "own", "hmask", "so",
          "f1a", "f2a", "f3a", "p1a", "p2a", "p3a", "yo", "zo", "um0", "ush"):
    S(n)
e(f"v_and_b32 {r('lane')}, 63, v0")
e(f"v_lshrrev_b32 {r('ta')}, 6, v0")
e(f"s_and_b32 {T0}, s2, 7")
e(f"v_readfirstlane_b32 {r('wave')}, {r('ta')}")
e(f"s_lshr_b32 {T1_}, s2, 3")
if MAP1 == 8:
    e(f"s_lshr_b32 {T2}, {T1_}, 4")
    e(f"s_lshl_b32 {r('T1')}, {T0}, 1")
    e(f"s_add_u32 {r('T1')}, {r('T1')}, {T2}")
    e(f"s_and_b32 {r('q')}, {T1_}, 15")
    e(f"s_lshl_b32 {T2}, {T2}, 1")
    e(f"s_add_u32 {r('rot')}, {T2}, {r('q')}")
else:
    e(f"s_lshr_b32 {T2}, {T0}, 1")
    e(f"s_lshl_b32 {T2}, {T2}, 2")
    e(f"s_lshr_b32 {T3}, {T1_}, 3")
    e(f"s_add_u32 {r('T1')}, {T2}, {T3}")
    e(f"s_and_b32 {T2}, {T0}, 1")
    e(f"s_lshl_b32 {T2}, {T2}, 3")
    e(f"s_and_b32 {T3}, {T1_}, 7")
    e(f"s_add_u32 {r('q')}, {T2}, {T3}")
    e(f"s_add_u32 {r('rot')}, {r('T1')}, {r('q')}")
e(f"s_and_b32 {r('rot')}, {r('rot')}, 3")
e(f"s_lshr_b32 {T2}, {r('q')}, 3")
e(f"s_lshl_b32 {r('tt2')}, {r('T1')}, 1")
e(f"s_add_u32 {r('tt2')}, {r('tt2')}, {T2}")
e(f"s_and_b32 {r('ns')}, {r('q')}, 7")
V("k0"); V("km", 3, align=1); V("sho")
e(f"v_lshrrev_b32 {r('r8')}, 3, {r('lane')}")
e(f"v_and_b32 {r('pc')}, 7, {r('lane')}")
e(f"s_lshl_b32 {T2}, {r('tt2')}, 2")
e(f"s_add_u32 {r('tok16')}, {T2}, {r('wave')}")
e(f"s_lshl_b32 {T2}, {r('tok16')}, 14")
e(f"s_lshl_b32 {r('ns128')}, {r('ns')}, 7")
e(f"s_add_u32 {r('tile0')}, {T2}, {r('ns128')}")
e(f"v_lshlrev_b32 {r('ta')}, 11, {r('r8')}")
e(f"v_lshl_add_u32 {r('ta')}, {r('pc')}, 4, {r('ta')}")
e(f"v_add_u32 {r('k0')}, {r('tile0')}, {r('ta')}")
for i in range(3):
    e(f"v_subrev_u32 {r('km', i, 1)}, {1024 * (i + 1)}, {r('k0')}")
e(f"s_lshl_b32 {T3}, {r('ns')}, 9")
e(f"v_lshl_add_u32 {r('sho')}, {r('pc')}, 6, {T3}")
e(f"v_mov_b32 {r('zero')}, 0")
S("sA", 4); S("sB", 4); S("sX", 4); S("sW1", 4); S("sWS", 4)
e(f"s_mov_b32 {r('sA',2,1)}, 2097152")
e(f"s_mov_b32 {r('sA',3,1)}, 0x00020000")
e(f"s_mov_b32 {r('sB',2,1)}, 2097152")
e(f"s_mov_b32 {r('sB',3,1)}, 0x00020000")
V("w1s", 3, align=1)
for c in range(3):
    e(f"v_add_u32 {r('ta')}, {64 * c}, {r('lane')}")
    e(f"v_mul_u32_u24 {r('tb')}, 43691, {r('ta')}")
    e(f"v_lshrrev_b32 {r('tb')}, 19, {r('tb')}")
    e(f"v_mul_u32_u24 {r('tc')}, 12, {r('tb')}")
    e(f"v_sub_u32 {r('tc')}, {r('ta')}, {r('tc')}")
    e(f"v_lshrrev_b32 {r('td')}, 2, {r('tb')}")
    e(f"v_and_b32 {r('td')}, 2, {r('td')}")
    e(f"v_xor_b32 {r('tc')}, {r('tc')}, {r('td')}")
    e(f"v_mul_u32_u24 {r('tb')}, 2752, {r('tb')}")
    e(f"v_lshl_add_u32 {r('tb')}, {r('tc')}, 4, {r('tb')}")
    e(f"v_subrev_u32 {r('w1s', c, 1)}, {1024 * c}, {r('tb')}")
g.wait(lg=0)
e(f"s_mov_b64 {r('sA',0,2)}, {ptr(1)}")
e(f"s_mov_b64 {r('sB',0,2)}, {ptr(2)}")
V("kr", 20); V("vr", 8); V("shr", 16); V("ep", 2); V("pre")
e(f"buffer_load_dwordx4 {r('kr', 12, 4)}, {r('k0')}, {r('sA')}, 0 offen", "k")
e(f"buffer_load_dwordx4 {r('kr', 16, 4)}, {r('k0')}, {r('sA')}, 0 offen offset:1024", "k")
e(f"buffer_load_dwordx4 {r('vr', 0, 4)}, {r('k0')}, {r('sB')}, 0 offen {KVPOL}", "k")
e(f"buffer_load_dwordx4 {r('vr', 4, 4)}, {r('k0')}, {r('sB')}, 0 offen offset:1024 {KVPOL}", "k")
for i in range(4):
    e(f"global_load_dwordx4 {r('shr', 4 * i, 4)}, {r('sho')}, {ptr(3)} offset:{16 * i}", "sh")
for i in range(3):
    e(f"buffer_load_dwordx4 {r('kr', 8 - 4 * i, 4)}, {r('km', i, 1)}, {r('sA')}, 0 offen", "k")
srd("sWS", 13, WSZ)
e(f"s_mov_b32 {T3}, {EPOCH}")
e(f"buffer_load_dwordx2 {r('ep')}, {r('zero')}, {r('sWS')}, {T3} offen sc1", "ep")
sh_ = PREDIV.bit_length() - 1
e(f"v_lshrrev_b32 {r('tb')}, {sh_}, v0")
e(f"s_and_b32 {T2}, {T1_}, {PREDIV - 1}")
e(f"v_lshl_add_u32 {r('tb')}, {r('tb')}, {sh_}, {T2}")
e(f"v_lshlrev_b32 {r('tb')}, 7, {r('tb')}")
e(f"v_min_u32 {r('tb')}, CODE_BYTES, {r('tb')}")
e(f"s_getpc_b64 {r('t45', 2, 2)}")
e(f"global_load_dword {r('pre')}, {r('tb')}, {r('t45', 2, 2)}", "pre")
S("sD")
e(f"s_lshl_b32 {T2}, s2, 2")
e(f"s_load_dword {r('sD')}, {ptr(5)}, {T2}")
stamp("kviss")
e(f"s_mul_i32 {r('b0')}, {r('q')}, 43")
e(f"s_add_u32 {r('nown')}, {r('b0')}, 43")
e(f"s_lshr_b32 {r('b0')}, {r('b0')}, 4")
e(f"s_lshr_b32 {r('nown')}, {r('nown')}, 4")
e(f"s_sub_u32 {r('nown')}, {r('nown')}, {r('b0')}")
srd("sW1", 7, 1409024)
S("w1base"); S("w1lds"); S("xbase")
e(f"s_mul_i32 {r('w1base')}, {r('wave')}, {32 * 2752}")
e(f"s_lshl_b32 {T2}, {r('b0')}, 6")
e(f"s_add_u32 {r('w1base')}, {r('w1base')}, {T2}")
e(f"s_mul_i32 {r('w1lds')}, {r('wave')}, 6144")


def dmaW1(n):
    items = []
    for i in range(2):
        for c in range(3):
            def it(i=i, c=c):
                if i == 0 and c == 0:
                    e(f"s_add_u32 {T2}, {r('rot')}, {n}")
                    e(f"s_and_b32 {T2}, {T2}, 3")
                    e(f"s_mul_i32 {T2}, {T2}, {128 * 2752}")
                    e(f"s_add_u32 m0, {r('w1lds')}, {n * 24576}")
                    e(f"s_add_u32 {r('so')}, {T2}, {r('w1base')}")
                if i == 1 and c == 0:
                    e(f"s_add_u32 m0, {r('w1lds')}, {n * 24576 + 3072}")
                    e(f"s_add_u32 {r('so')}, {r('so')}, {16 * 2752}")
                e(f"buffer_load_dwordx4 {r('w1s', c, 1)}, {r('sW1')}, {r('so')} offen offset:{1024 * c} lds", f"W{n}")
            items.append(it)
    return items


run(dmaW1(0))
e(f"v_lshrrev_b32 {r('ta')}, 1, {r('r8')}")
e(f"v_xor_b32 {r('ta')}, {r('ta')}, {r('pc')}")
e(f"v_lshlrev_b32 {r('ta')}, 4, {r('ta')}")
e(f"v_lshl_add_u32 {r('xs', 0, 1)}, {r('r8')}, 10, {r('ta')}")
e(f"v_xor_b32 {r('tb')}, 64, {r('xs', 0, 1)}")
e(f"v_add_u32 {r('xs', 1, 1)}, 7168, {r('tb')}")
e(f"v_add_u32 {r('xs', 2, 1)}, {2 * 7168}, {r('xs', 0, 1)}")
e(f"v_add_u32 {r('xs', 3, 1)}, {3 * 7168}, {r('tb')}")
srd("sX", 0, 2097152)
e(f"s_lshl_b32 {T2}, {r('T1')}, 2")
e(f"s_add_u32 {T2}, {T2}, {r('wave')}")
e(f"s_lshl_b32 {r('xbase')}, {T2}, 15")
e(f"s_mul_i32 {r('own')}, {r('wave')}, 12288")
e(f"s_add_u32 {r('own')}, {r('own')}, {XST}")


def dmaX(ei):
    items = []
    for n in range(4):
        def it(n=n):
            if n == 0:
                e(f"s_add_u32 {T2}, {r('rot')}, {ei >> 1}")
                e(f"s_and_b32 {T2}, {T2}, 3")
                e(f"s_lshl_b32 {T2}, {T2}, 8")
                if ei & 1:
                    e(f"s_add_u32 {T2}, {T2}, 128")
                e(f"s_add_u32 m0, {r('own')}, {(ei % 3) * 4096}")
                e(f"s_add_u32 {r('so')}, {T2}, {r('xbase')}")
            pol = XPOL0 if ei < 2 else ""
            e(f"buffer_load_dwordx4 {r('xs', n, 1)}, {r('sX')}, {r('so')} offen offset:{1024 * n} {pol} lds", f"X{ei}")
        items.append(it)
    return items


run(dmaX(0))
stamp("p0iss")
g.free("ptr0", "ptr1", "ptr2", "ptr3", "ptr6", "ptr7", "ptr13", "karg")
if not DBG:
    g.free("ptr12")
V("kvw"); V("kvr"); V("kvs")
e(f"v_and_b32 {r('i15')}, 15, {r('lane')}")
e(f"v_lshrrev_b32 {r('h4')}, 4, {r('lane')}")
e(f"v_lshlrev_b32 {r('l16')}, 4, {r('lane')}")
e(f"v_add_u32 {r('oa')}, {r('own')}, {r('l16')}")
e(f"v_lshrrev_b32 {r('ta')}, 1, {r('i15')}")
e(f"v_xor_b32 {r('ta')}, {r('ta')}, {r('h4')}")
e(f"v_lshlrev_b32 {r('ta')}, 4, {r('ta')}")
e(f"v_lshl_add_u32 {r('ta')}, {r('i15')}, 7, {r('ta')}")
e(f"v_add_u32 {r('xrd', 0, 1)}, {r('own')}, {r('ta')}")
e(f"v_xor_b32 {r('xrd', 1, 1)}, 64, {r('xrd', 0, 1)}")
e(f"v_lshrrev_b32 {r('ta')}, 2, {r('i15')}")
e(f"v_lshl_add_u32 {r('ta')}, {r('h4')}, 3, {r('ta')}")
e(f"v_mul_u32_u24 {r('ta')}, 192, {r('ta')}")
e(f"v_and_b32 {r('tb')}, 3, {r('lane')}")
e(f"v_lshl_add_u32 {r('ta')}, {r('tb')}, 3, {r('ta')}")
e(f"v_and_b32 {r('tb')}, 1, {r('h4')}")
e(f"v_lshlrev_b32 {r('tb')}, 5, {r('tb')}")
e(f"v_add_u32 {r('w1r', 0, 1)}, {r('ta')}, {r('tb')}")
e(f"v_sub_u32 {r('w1r', 1, 1)}, {r('ta')}, {r('tb')}")
e(f"s_lshl_b32 {T2}, {r('wave')}, 5")
e(f"v_xor_b32 {r('tc')}, {T2}, {r('tb')}")
e(f"v_add_u32 {r('csr', 0, 1)}, {r('ta')}, {r('tc')}")
e(f"s_and_b32 {T2}, {T2}, 32")
e(f"s_add_u32 {T2}, {T2}, 128")
e(f"v_xor_b32 {r('tc')}, {T2}, {r('tb')}")
e(f"v_add_u32 {r('csr', 1, 1)}, {r('ta')}, {r('tc')}")
e(f"v_mul_u32_u24 {r('ta')}, 1040, {r('pc')}")
e(f"v_lshlrev_b32 {r('tb')}, 2, {r('r8')}")
e(f"v_sub_u32 {r('ta')}, {r('ta')}, {r('tb')}")
e(f"s_lshl_b32 {T2}, {r('wave')}, 5")
e(f"s_sub_u32 {T2}, {KVIMG + 124}, {T2}")
e(f"v_add_u32 {r('kvw')}, {T2}, {r('ta')}")
e(f"s_mul_i32 {T2}, {r('wave')}, 2080")
e(f"s_add_u32 {T2}, {T2}, {KVIMG}")
e(f"v_add_u32 {r('kvr')}, {T2}, {r('l16')}")
e(f"v_lshlrev_b32 {r('ta')}, 12, {r('r8')}")
e(f"v_lshl_add_u32 {r('kvs')}, {r('pc')}, 4, {r('ta')}")
for i in range(4):
    e(f"v_mov_b32 {r('ones', i, 1)}, 0x3f803f80")
e(f"s_mov_b32 {r('hmask')}, 0xffff0000")
S("kvo"); S("wodd"); S("whi"); S("chan")
e(f"s_and_b32 {r('wodd')}, {r('wave')}, 1")
e(f"s_lshr_b32 {r('whi')}, {r('wave')}, 1")
e(f"s_lshl_b32 {T2}, s2, 1")
e(f"s_add_u32 {r('chan')}, {T2}, {r('whi')}")
e(f"s_lshl_b32 {T2}, {r('ns')}, 2")
e(f"s_add_u32 {T2}, {T2}, {r('wave')}")
e(f"s_mul_i32 {r('f1a')}, {T2}, {FSTR}")
e(f"s_lshl_b32 {T3}, {r('tt2')}, 3")
e(f"s_add_u32 {r('f1a')}, {r('f1a')}, {T3}")
e(f"s_add_u32 {r('f1a')}, {r('f1a')}, {F1B}")
e(f"s_lshl_b32 {T2}, {T2}, 16")
e(f"s_sub_u32 {T3}, 31, {r('tt2')}")
e(f"s_lshl_b32 {T3}, {T3}, 7")
e(f"s_add_u32 {r('kvo')}, {T2}, {T3}")
e(f"s_lshl_b32 {T2}, {r('T1')}, 1")
e(f"s_add_u32 {T2}, {T2}, {r('whi')}")
e(f"s_mul_i32 {r('f2a')}, {T2}, {FSTR}")
e(f"s_lshl_b32 {T2}, {r('q')}, 1")
e(f"s_add_u32 {T2}, {T2}, {r('wodd')}")
e(f"s_lshl_b32 {T2}, {T2}, 3")
e(f"s_add_u32 {r('f2a')}, {r('f2a')}, {T2}")
e(f"s_add_u32 {r('f2a')}, {r('f2a')}, {F2B}")
e(f"s_lshr_b32 {T2}, {r('chan')}, 6")
e(f"s_lshl_b32 {T2}, {T2}, 1")
e(f"s_add_u32 {T2}, {T2}, {r('wodd')}")
e(f"s_mul_i32 {r('f3a')}, {T2}, {FSTR}")
e(f"s_and_b32 {T2}, {r('chan')}, 63")
e(f"s_lshl_b32 {T2}, {T2}, 3")
e(f"s_add_u32 {r('f3a')}, {r('f3a')}, {T2}")
e(f"s_add_u32 {r('f3a')}, {r('f3a')}, {F3B}")
e(f"s_mul_i32 {r('p1a')}, {T1_}, {FSTR}")
e(f"s_add_u32 {r('p1a')}, {r('p1a')}, {F1B}")
e(f"s_mul_i32 {r('p2a')}, {r('tt2')}, {FSTR}")
e(f"s_add_u32 {r('p2a')}, {r('p2a')}, {F2B}")
e(f"s_lshr_b32 {T2}, {r('tt2')}, 4")
e(f"s_lshl_b32 {T3}, {r('ns')}, 1")
e(f"s_add_u32 {T2}, {T2}, {T3}")
e(f"s_mul_i32 {r('p3a')}, {T2}, {FSTR}")
e(f"s_add_u32 {r('p3a')}, {r('p3a')}, {F3B}")
e(f"v_lshlrev_b32 {r('pf3o')}, 3, {r('lane')}")
e(f"v_and_b32 {r('pf1o')}, 0xf8, {r('pf3o')}")
e(f"v_min_u32 {r('pf2o')}, 9, {r('lane')}")
e(f"s_lshl_b32 {T2}, {r('wave')}, 3")
e(f"v_add_u32 {r('pf2o')}, {T2}, {r('pf2o')}")
e(f"v_min_u32 {r('pf2o')}, 31, {r('pf2o')}")
e(f"v_lshlrev_b32 {r('pf2o')}, 3, {r('pf2o')}")
e(f"v_add_u32 {r('zt')}, {r('own')}, {r('pf3o')}")
e(f"v_and_b32 {r('ta')}, 6, {r('r8')}")
e(f"v_xor_b32 {r('ta')}, {r('ta')}, {r('pc')}")
e(f"v_lshlrev_b32 {r('ta')}, 4, {r('ta')}")
e(f"v_lshl_add_u32 {r('w2s', 0, 1)}, {r('r8')}, 10, {r('ta')}")
e(f"v_add_u32 {r('w2s', 0, 1)}, {r('ns128')}, {r('w2s', 0, 1)}")
for n in range(1, 4):
    e(f"v_add_u32 {r('w2s', n, 1)}, {7168 * n}, {r('w2s', 0, 1)}")
e(f"v_lshrrev_b32 {r('ta')}, 2, {r('i15')}")
e(f"v_lshl_add_u32 {r('ta')}, {r('h4')}, 2, {r('ta')}")
e(f"v_lshrrev_b32 {r('tb')}, 1, {r('ta')}")
e(f"v_and_b32 {r('tb')}, 3, {r('tb')}")
e(f"v_lshlrev_b32 {r('tb')}, 5, {r('tb')}")
e(f"v_lshl_add_u32 {r('tb')}, {r('ta')}, 7, {r('tb')}")
e(f"v_and_b32 {r('ta')}, 3, {r('lane')}")
e(f"v_lshl_add_u32 {r('tb')}, {r('ta')}, 3, {r('tb')}")
e(f"v_add_u32 {r('w2r', 0, 1)}, {r('own')}, {r('tb')}")
S("w4k")
e(f"s_lshl_b32 {r('w4k')}, {r('wave')}, 12")
e(f"s_add_u32 {r('w4k')}, {r('w4k')}, {S3}")
e(f"v_add_u32 {r('w2r', 4, 1)}, {r('w4k')}, {r('tb')}")
for nb in range(1, 4):
    e(f"v_xor_b32 {r('w2r', nb, 1)}, {32 * nb}, {r('w2r', 0, 1)}")
    e(f"v_xor_b32 {r('w2r', 4 + nb, 1)}, {32 * nb}, {r('w2r', 4, 1)}")
for p in range(11):
    S(f"kb{p}")
e(f"s_lshr_b32 {T0}, {T1_}, 3")
e(f"s_mul_i32 {T0}, {T0}, 3")
e(f"s_mul_i32 {T2}, {r('ns')}, 11")
e(f"s_lshr_b32 {T2}, {T2}, 3")
e(f"s_add_u32 {T0}, {T0}, {T2}")
e(f"s_cmp_ge_u32 {T0}, 11")
e(f"s_cselect_b32 {T2}, 11, 0")
e(f"s_sub_u32 {T0}, {T0}, {T2}")
e(f"s_mul_i32 {T3}, {r('wave')}, 11")
e(f"s_add_u32 {T0}, {T0}, {T3}")
e(f"s_add_u32 {T3}, {T3}, 11")
for p in range(11):
    e(f"s_lshl_b32 {r(f'kb{p}')}, {T0}, 10")
    if p < 10:
        e(f"s_add_u32 {T0}, {T0}, 1")
        e(f"s_cmp_ge_u32 {T0}, {T3}")
        e(f"s_cselect_b32 {T2}, 11, 0")
        e(f"s_sub_u32 {T0}, {T0}, {T2}")
e(f"v_and_b32 {r('ta')}, 3, {r('lane')}")
e(f"v_mul_u32_u24 {r('fa')}, {FP}, {r('ta')}")
e(f"v_lshrrev_b32 {r('tb')}, 2, {r('i15')}")
e(f"v_add_u32 {r('tb')}, {r('tb')}, {r('h4')}")
e(f"v_lshl_add_u32 {r('fa')}, {r('tb')}, 4, {r('fa')}")
e(f"s_lshl_b32 {T4}, {r('wodd')}, 8")
e(f"s_mul_i32 {T2}, {r('whi')}, {4 * FP}")
e(f"s_add_u32 {T3}, {T4}, {T2}")
e(f"v_add_u32 {r('fa')}, {T3}, {r('fa')}")
e(f"v_and_b32 {r('tc')}, 1, {r('lane')}")
e(f"v_mul_u32_u24 {r('ga')}, {GP}, {r('tc')}")
e(f"v_lshrrev_b32 {r('td')}, 1, {r('i15')}")
e(f"v_lshlrev_b32 {r('td')}, 2, {r('td')}")
e(f"v_sub_u32 {r('td')}, {r('h4')}, {r('td')}")
e(f"v_add_u32 {r('td')}, 28, {r('td')}")
e(f"v_lshl_add_u32 {r('ga')}, {r('td')}, 4, {r('ga')}")
e(f"s_mul_i32 {T3}, {r('whi')}, {2 * GP}")
e(f"s_add_u32 {T3}, {T3}, {T4}")
e(f"s_add_u32 {T3}, {T3}, {UB0}")
e(f"v_add_u32 {r('ga')}, {T3}, {r('ga')}")
g.wait(lg=0)
e(f"s_lshl_b32 {T3}, {r('whi')}, 4")
e(f"s_lshr_b32 {r('sD')}, {r('sD')}, {T3}")
e(f"s_and_b32 {r('sD')}, {r('sD')}, 0xffff")
e(f"s_cmp_eq_u32 {r('wodd')}, 0")
e(f"s_cselect_b32 {r('sD')}, {r('sD')}, 0")
e(f"v_xor_b32 {r('tc')}, 1, {r('tc')}")
e(f"v_lshlrev_b32 {r('tc')}, 4, {r('tc')}")
e(f"v_lshlrev_b32_e64 {r('tc')}, {r('tc')}, {r('sD')}")
e(f"v_cmp_eq_u32 vcc, 3, {r('tb')}")
e(f"v_cndmask_b32 {r('tc')}, 0, {r('tc')}, vcc")
e(f"v_cmp_lt_u32 vcc, 1, {r('ta')}")
e(f"v_cndmask_b32 {r('fd', 0, 1)}, 0, {r('tc')}, vcc")
e(f"v_sub_u32 {r('fd', 1, 1)}, {r('tc')}, {r('fd', 0, 1)}")
e(f"v_mov_b32 {r('fd', 2, 1)}, 0")
e(f"v_mov_b32 {r('fd', 3, 1)}, 0")
g.free("sD", "ptr5")
e(f"s_lshl_b32 {T3}, {r('wodd')}, 11")
e(f"s_add_u32 {T3}, {T3}, {T2}")
e(f"s_add_u32 {T3}, {T3}, 48")
e(f"v_add_u32 {r('kw')}, {T3}, {r('l16')}")
e(f"s_mul_i32 {r('um0')}, {r('wave')}, {GP}")
e(f"s_add_u32 {r('um0')}, {r('um0')}, {UB0}")
e(f"s_lshl_b32 {T3}, {r('wodd')}, 3")
e(f"s_sub_u32 {r('ush')}, 8, {T3}")
e(f"s_add_u32 {T4}, {r('um0')}, 4096")
e(f"v_add_u32 {r('za')}, {T4}, {r('l16')}")
e(f"v_subrev_u32 {r('ta')}, 28, {r('lane')}")
e(f"v_min_u32 {r('ta')}, 5, {r('ta')}")
e(f"v_cmp_lt_u32 vcc, 2, {r('ta')}")
e(f"v_lshlrev_b32 {r('ta')}, 4, {r('ta')}")
e(f"v_add_u32 {r('tb')}, {FP - 48}, {r('ta')}")
e(f"v_cndmask_b32 {r('ta')}, {r('ta')}, {r('tb')}, vcc")
e(f"s_mul_i32 {T3}, {r('wave')}, {2 * FP}")
e(f"v_add_u32 {r('ta')}, {T3}, {r('ta')}")
e(f"v_cmp_lt_u32 vcc, 27, {r('lane')}")
e(f"v_cndmask_b32 {r('za')}, {r('za')}, {r('ta')}, vcc")
e(f"s_xor_b32 {T2}, {r('wave')}, 1")
e(f"s_mul_i32 {T2}, {T2}, 12288")
e(f"s_add_u32 {T2}, {T2}, {XST}")
e(f"v_add_u32 {r('pa')}, {T2}, {r('l16')}")
e(f"v_lshrrev_b32 {r('ta')}, 1, {r('i15')}")
e(f"v_lshlrev_b32 {r('ta')}, 6, {r('ta')}")
e(f"v_and_b32 {r('tb')}, 1, {r('lane')}")
e(f"v_lshl_add_u32 {r('ta')}, {r('tb')}, 3, {r('ta')}")
e(f"v_lshl_add_u32 {r('ta')}, {r('h4')}, 4, {r('ta')}")
e(f"v_add_u32 {r('yw')}, {r('own')}, {r('ta')}")
e(f"s_lshl_b32 {T2}, {r('chan')}, 12")
e(f"s_lshl_b32 {T3}, {r('wodd')}, 11")
e(f"s_add_u32 {T2}, {T2}, {T3}")
e(f"s_add_u32 {r('yo')}, {T2}, {YT}")
e(f"v_lshrrev_b32 {r('zs')}, 1, {r('lane')}")
e(f"v_lshlrev_b32 {r('zs')}, 12, {r('zs')}")
e(f"v_lshl_add_u32 {r('zs')}, {r('tb')}, 4, {r('zs')}")
e(f"s_lshl_b32 {T2}, {r('ns')}, 18")
e(f"s_lshl_b32 {T3}, {r('tok16')}, 5")
e(f"s_add_u32 {T2}, {T2}, {T3}")
e(f"s_add_u32 {r('zo')}, {T2}, {YT}")
for s in range(4):
    e(f"s_add_u32 {T2}, {r('wave')}, {s + 1}")
    e(f"s_and_b32 {T2}, {T2}, 3")
    if s < 3:
        e(f"s_mul_i32 {T3}, {T2}, 12288")
        e(f"s_add_u32 {T3}, {T3}, {PX + 4096 * s}")
        e(f"v_add_u32 {r('pw', s, 1)}, {T3}, {r('l16')}")
    else:
        e(f"s_mul_i32 {T3}, {T2}, 12288")
        e(f"v_add_u32 {r('psr')}, {T3}, {r('l16')}")
    e(f"s_lshl_b32 {T3}, {r('tt2')}, 2")
    e(f"s_add_u32 {T2}, {T2}, {T3}")
    e(f"s_mul_i32 {T2}, {T2}, 44032")
    e(f"s_add_u32 {T2}, {T2}, {HB}")
    e(f"v_add_u32 {r('hv', s, 1)}, {T2}, {r('l16')}")
e(f"v_lshrrev_b32 {r('ta')}, 1, {r('i15')}")
e(f"v_lshrrev_b32 {r('tb')}, 1, {r('h4')}")
e(f"v_xor_b32 {r('ta')}, {r('ta')}, {r('tb')}")
e(f"v_lshlrev_b32 {r('ta')}, 4, {r('ta')}")
e(f"v_lshl_add_u32 {r('ta')}, {r('i15')}, 7, {r('ta')}")
e(f"v_and_b32 {r('tb')}, 1, {r('h4')}")
e(f"v_lshl_add_u32 {r('ta')}, {r('tb')}, 3, {r('ta')}")
e(f"v_add_u32 {r('ea', 0, 1)}, {r('own')}, {r('ta')}")
for nb in range(1, 4):
    e(f"v_xor_b32 {r('ea', nb, 1)}, {32 * nb}, {r('ea', 0, 1)}")
e(f"s_and_b32 {T2}, {r('tok16')}, 7")
e(f"s_lshl_b32 {T2}, {T2}, 7")
e(f"s_add_u32 {T2}, {T2}, {STT}")
e(f"v_lshl_add_u32 {r('svr')}, {r('i15')}, 3, {T2}")
e(f"s_lshl_b32 {T2}, {r('wave')}, 8")
e(f"s_add_u32 {T2}, {T2}, {STT}")
e(f"v_lshl_add_u32 {r('stw')}, {r('i15')}, 3, {T2}")
S("m1", 2); S("m2", 2)
e(f"v_and_b32 {r('ta')}, 1, {r('lane')}")
e(f"v_cmp_eq_u32 {r('m1')}, 1, {r('ta')}")
e(f"v_and_b32 {r('ta')}, 2, {r('lane')}")
e(f"v_cmp_eq_u32 {r('m2')}, 2, {r('ta')}")
e(f"v_lshrrev_b32 {r('ta')}, 2, {r('i15')}")
e(f"v_lshl_add_u32 {r('ta')}, {r('ta')}, 4, {r('i15')}")
e(f"v_lshlrev_b32 {r('bpa')}, 2, {r('ta')}")
e(f"v_lshlrev_b32 {r('ta')}, 4, {r('h4')}")
e(f"v_add_u32 {r('csr0')}, {CSX}, {r('ta')}")
e(f"s_lshl_b32 {T2}, {r('wave')}, 6")
e(f"v_add_u32 {r('csw')}, {T2}, {r('csr0')}")
e(f"s_lshl_b32 {T2}, {r('wodd')}, 6")
e(f"s_add_u32 {T2}, {T2}, 256")
e(f"v_add_u32 {r('csw2')}, {T2}, {r('csr0')}")
S("ho", 2, align=1)
e(f"s_lshl_b32 {T2}, {r('T1')}, 2")
e(f"s_add_u32 {T2}, {T2}, {r('wave')}")
e(f"s_mul_i32 {T2}, {T2}, 86")
e(f"s_add_u32 {T2}, {T2}, {r('b0')}")
e(f"s_lshl_b32 {T2}, {T2}, 10")
e(f"s_add_u32 {r('ho', 0, 1)}, {T2}, {HB}")
e(f"s_add_u32 {r('ho', 1, 1)}, {T2}, {HB + 44032}")
stamp("setup")
g.free("T1", "q", "tt2", "ns", "tok16", "whi")

V("wf", 32); V("kf", 40); V("vf", 16); V("ks", 16); V("kvp", 8)
g.wait(vm="sh")
for c in range(8):
    for j in range(4):
        src = r("shr", 2 * c + (j >> 1), 1)
        if j & 1:
            e(f"v_and_b32 {r('wf', j * 8 + c, 1)}, {r('hmask')}, {src}")
        else:
            e(f"v_lshlrev_b32 {r('wf', j * 8 + c, 1)}, 16, {src}")


def unpack(dst, doff, src, soff, ndw):
    it = []
    for d in range(ndw):
        it.append(E(f"v_lshlrev_b32 {r(dst, doff + 2 * d, 1)}, 16, {r(src, soff + d, 1)}"))
        it.append(E(f"v_and_b32 {r(dst, doff + 2 * d + 1, 1)}, {r('hmask')}, {r(src, soff + d, 1)}"))
    return it


kvc = unpack("kf", 24, "kr", 12, 8) + unpack("vf", 0, "vr", 0, 8) + [W(vm="k")] + unpack("kf", 0, "kr", 0, 12)
for t in range(2):
    for cp in range(4):
        d = r("ks", t * 8 + 2 * cp, 2)
        kvc.append(E(f"v_pk_mul_f32 {d}, {r('kf', (t + 0) * 8 + 2 * cp, 2)}, {r('wf', 3 * 8 + 2 * cp, 2)}"))
    for j in (2, 1, 0):
        for cp in range(4):
            d = r("ks", t * 8 + 2 * cp, 2)
            kvc.append(E(f"v_pk_fma_f32 {d}, {r('kf', (t + 3 - j) * 8 + 2 * cp, 2)}, {r('wf', j * 8 + 2 * cp, 2)}, {d}"))
    for cp in range(4):
        d = r("ks", t * 8 + 2 * cp, 2)
        kvc.append(E(f"v_pk_mul_f32 {d}, {d}, {r('vf', t * 8 + 2 * cp, 2)}"))
for c in range(8):
    kvc.append(E(f"v_cvt_pk_bf16_f32 {r('kvp', c, 1)}, {r('ks', 8 + c, 1)}, {r('ks', c, 1)}"))
    kvc.append(E(f"ds_write_b32 {r('kvw')}, {r('kvp', c, 1)} offset:{128 * c}", "kvw"))
run(weave(kvc, (dmaX(1), 2, 100)))
stamp("kv")
S("tag", 2)
g.wait(vm="W0", lg=0)
e(f"v_readfirstlane_b32 {T2}, {r('ep', 0, 1)}")
e(f"v_readfirstlane_b32 {T3}, {r('ep', 1, 1)}")
e("s_barrier")
e(f"ds_read_b128 {r('kvp', 0, 4)}, {r('kvr')}", "kvr")
e(f"ds_read_b128 {r('kvp', 4, 4)}, {r('kvr')} offset:1040", "kvr")
g.free("wf", "kf", "vf", "ks", "kr", "vr", "shr", "ep", "k0", "km", "sho", "kvw", "kvr")

AC("xf", 64, at=192)
AC("wa", 48, at=128); AC("ca", 16, at=176)
AC("w2a", 128, at=0)
V("acc", 48); V("cs", 8); V("rs", 8); V("gr", 8)


def xf(K, tb):
    return r("xf", ((K & 7) * 2 + tb) * 4, 4)


def rdX(ei):
    return [lambda: (stamp(f"bX{ei}", "g1"), g.wait(vm=f"X{ei}"), stamp(f"aX{ei}", "g1"))] + [E(f"ds_read_b128 {xf(ei * 2 + k, tb)}, {r('xrd', k, 1)} offset:{(ei % 3) * 4096 + tb * 2048}", f"rx{ei}")
                               for k in range(2) for tb in range(2)]


def wbase(K):
    return ((K >> 2) & 1) * 24576 + (K & 3) * 6144


def rdW(K):
    return [E(f"ds_read_b64_tr_b16 {r('wa', (K & 1) * 24 + fb * 4 + 2 * hf, 2)}, {r('w1r', fb & 1, 1)} offset:{wbase(K) + hf * 768 + fb * 32}", f"rw{K}")
            for fb in range(6) for hf in range(2)]


def rdC(K):
    return [E(f"ds_read_b64_tr_b16 {r('ca', (K & 1) * 8 + c * 4 + 2 * hf, 2)}, {r('csr', c, 1)} offset:{wbase(K) + hf * 768}", f"rc{K}")
            for c in range(2) for hf in range(2)]


def mfma(d, a, b, first):
    e(f"v_mfma_f32_16x16x32_bf16 {d}, {a}, {b}, {'0' if first else d}")


def mainM(K):
    items = []
    for fb in range(6):
        for tb in range(2):
            def it(fb=fb, tb=tb):
                if fb == 0 and tb == 0:
                    g.wait(lg=f"rw{K}")
                mfma(r("acc", (fb * 2 + tb) * 4, 4), r("wa", (K & 1) * 24 + fb * 4, 4), xf(K, tb), K == 0)
            items.append(it)
    return items


def statM(K):
    items = []
    for tb in range(2):
        items.append(lambda tb=tb: mfma(r("rs", tb * 4, 4), r("ones"), xf(K, tb), K == 0))
        items.append(lambda tb=tb: mfma(r("gr", tb * 4, 4), xf(K, tb), xf(K, tb), K == 0))
    return items


def csM(K):
    items = []
    for c in range(2):
        def it(c=c):
            if c == 0:
                g.wait(lg=f"rc{K}")
            mfma(r("cs", c * 4, 4), r("ca", (K & 1) * 8 + c * 4, 4), r("ones"), K == 0)
        items.append(it)
    return items


def setflag(addr, tagname):
    e("s_mov_b64 exec, 1")
    e(f"buffer_store_dwordx2 {r('vtag')}, {r('zero')}, {r('sWS')}, {addr} offen sc1", tagname)
    e("s_mov_b64 exec, -1")


def pollissue(voff, soff, tagname):
    e(f"buffer_load_dwordx2 {r('pf')}, {voff}, {r('sWS')}, {soff} offen sc1", tagname)


def pollcheck(voff, soff, tagname):
    g.wait(vm=tagname)
    if SPINMAX:
        e(f"s_mov_b32 {T4}, 0")
    g.label(f"L_{tagname}")
    e(f"v_cmp_ne_u64 vcc, {r('tag')}, {r('pf')}")
    e("s_cmp_eq_u64 vcc, 0")
    e(f"s_cbranch_scc1 L_{tagname}_ok")
    if SPINMAX:
        e(f"s_add_u32 {T4}, {T4}, 1")
        e(f"s_cmp_gt_u32 {T4}, {SPINMAX}")
        e(f"s_cbranch_scc1 L_{tagname}_ok")
    e("s_sleep 2")
    n = len(g.vm)
    pollissue(voff, soff, None)
    e("s_waitcnt vmcnt(0)")
    del g.vm[n:]
    e(f"s_branch L_{tagname}")
    g.label(f"L_{tagname}_ok")


run(rdW(0)); run(rdC(0))
e(f"s_mul_i32 {r('tag', 0, 1)}, {T2}, 0x9E3779B1")
e(f"s_add_u32 {r('tag', 0, 1)}, {r('tag', 0, 1)}, 0x7F4A7C15")
e(f"s_mul_i32 {r('tag', 1, 1)}, {T3}, 0x85EBCA6D")
e(f"s_add_u32 {r('tag', 1, 1)}, {r('tag', 1, 1)}, 0x165667B1")
e(f"v_mov_b32 {r('vtag', 0, 1)}, {r('tag', 0, 1)}")
e(f"v_mov_b32 {r('vtag', 1, 1)}, {r('tag', 1, 1)}")
e(f"s_add_u32 {T3}, {r('kvo')}, 32768")
g.wait(lg="kvr")
e(f"buffer_store_dwordx4 {r('kvp', 0, 4)}, {r('kvs')}, {r('sWS')}, {r('kvo')} offen sc1", "kvst")
e(f"buffer_store_dwordx4 {r('kvp', 4, 4)}, {r('kvs')}, {r('sWS')}, {T3} offen sc1", "kvst")
stamp("kvst")
g.free("kvo")
run(rdX(0))
w1_1 = dmaW1(1)
run(w1_1[:3])
g.wait(lg="rx0")
stamp("x0")

V("b1r", 12); V("skr", 12); V("sa"); V("sb"); V("sc")
small = []
small.append(lambda: (e(f"s_lshl_b32 {T2}, {r('chan')}, 12"), srd("sA", 4, 4096, add=T2),
                      e(f"s_lshl_b32 {T3}, {r('wodd')}, 11"), e(f"v_add_u32 {r('sa')}, {T3}, {r('l16')}"),
                      e(f"v_subrev_u32 {r('sb')}, 8, {r('sa')}"), e(f"v_add_u32 {r('sc')}, 1016, {r('sa')}")))
small.append(E(f"buffer_load_dwordx4 {r('skr', 2, 4)}, {r('sa')}, {r('sA')}, 0 offen", "sk"))
small.append(E(f"buffer_load_dwordx4 {r('skr', 8, 4)}, {r('sa')}, {r('sA')}, 0 offen offset:1024", "sk"))
small.append(E(f"buffer_load_dwordx2 {r('skr', 0, 2)}, {r('sb')}, {r('sA')}, 0 offen", "sk"))
small.append(E(f"buffer_load_dwordx2 {r('skr', 6, 2)}, {r('sc')}, {r('sA')}, 0 offen", "sk"))
small2 = [lambda: (e(f"s_lshl_b32 {T3}, {r('b0')}, 6"), e(f"v_lshl_add_u32 {r('sa')}, {r('h4')}, 3, {T3}"),
                   e(f"v_lshl_add_u32 {r('sb')}, {r('h4')}, 3, {r('ns128')}"))]
for fb in range(6):
    small2.append(E(f"global_load_dwordx2 {r('b1r', 2 * fb, 2)}, {r('sa')}, {ptr(8)} offset:{32 * fb}", "b1"))
for nb in range(4):
    small2.append(E(f"global_load_dwordx2 {r('b2r', 2 * nb, 2)}, {r('sb')}, {ptr(10)} offset:{32 * nb}", "b2"))

V("ke", 24); V("zz", 4)
kcopy = [W(vm="sk")]
for n in range(2):
    R = lambda k, c=1, n=n: r("skr", 6 * n + k, c)
    KE = lambda k, c=1, n=n: r("ke", 12 * n + k, c)
    kcopy.append(E(f"ds_write_b128 {r('kw')}, {R(2, 4)} offset:{3 * FP + 1024 * n}", "kc"))
    for k in range(4):
        kcopy.append(E(f"v_alignbit_b32 {KE(k)}, {R(k + 1)}, {R(k)}, 16"))
    kcopy.append(E(f"ds_write_b128 {r('kw')}, {KE(0, 4)} offset:{1024 * n}", "kc"))
    for k in range(4):
        kcopy.append(E(f"v_alignbit_b32 {KE(4 + k)}, {R(k + 2)}, {R(k + 1)}, 16"))
    kcopy.append(E(f"ds_write_b128 {r('kw')}, {KE(4, 4)} offset:{2 * FP + 1024 * n}", "kc"))
    for k in range(4):
        kcopy.append(E(f"v_mov_b32 {KE(8 + k)}, {R(1 + k)}"))
    kcopy.append(E(f"ds_write_b128 {r('kw')}, {KE(8, 4)} offset:{FP + 1024 * n}", "kc"))
zfill = [E(f"v_mov_b32 {r('zz', i, 1)}, 0") for i in range(4)] + [E(f"ds_write_b128 {r('za')}, {r('zz')}", "zw")]

W2SLOT = {0: ("o", 8192), 1: ("o", 0), 2: ("x", 0), 3: ("o", 4096), 4: ("x", S4 - S3),
          5: ("o", 8192), 6: ("o", 0), 7: ("x", 0), 8: ("o", 4096), 9: ("x", S4 - S3), 10: ("o", 8192)}
S("w2o")


def dmaW2(p):
    items = []
    kind, off = W2SLOT[p]
    for n in range(4):
        def it(n=n):
            if n == 0:
                if p >= 5:
                    g.wait(lg=f"rv{p - 5}")
                e(f"s_add_u32 m0, {r('own') if kind == 'o' else r('w4k')}, {off}")
                e(f"s_lshl_b32 {r('w2o')}, {r(f'kb{p}')}, 5")
            e(f"buffer_load_dwordx4 {r('w2s', n, 1)}, {r('sB')}, {r('w2o')} offen offset:{1024 * n} lds", f"V{p}")
        items.append(it)
    return items


def w2f(p, nb, off=0, n=4):
    k = (p * 4 + nb) * 4 + off
    return f"a[{k}:{k + n - 1}]"


def rdW2(p):
    kind, off = W2SLOT[p]
    items = [W(vm=f"V{p}")]
    for nb in range(4):
        for hf in range(2):
            items.append(E(f"ds_read_b64_tr_b16 {w2f(p, nb, 2 * hf, 2)}, {r('w2r', nb + (0 if kind == 'o' else 4), 1)} offset:{off + hf * 2048}", f"rv{p}"))
    return items


def after(tag, items):
    return [lambda: (g.wait(lg=tag), items[0]())] + items[1:]


bump = [E(f"v_add_u32 {r(x, i, 1)}, 49152, {r(x, i, 1)}") for x in ("w1r", "csr") for i in range(2)]
udma = [lambda: (stamp("bP1", "g1"), pollcheck(r("pf1o"), r("p1a"), "pf1"), stamp("aP1", "g1")),
        lambda: (e(f"s_lshl_b32 {T2}, {r('chan')}, 12"), srd("sA", 13, 4096, add=T2), e(f"s_mov_b32 m0, {r('um0')}"))]
for n in range(4):
    udma.append(E(f"buffer_load_dwordx4 {r('l16')}, {r('sA')}, {r('ush')} offen offset:{1024 * n} sc1 lds", "U"))

w1_2 = dmaW1(2); w1_3 = dmaW1(3)
x2, x3, x4, x5, x6, x7 = (dmaX(k) for k in range(2, 8))
f1set = [lambda: (g.wait(vm="kvst"), setflag(r("f1a"), "f1"))]
sB2 = [lambda: srd("sB", 9, 1409024)]
BG = {
    0: (w1_1[3:] + x2[:2], rdX(1)),
    1: (x2[2:] + x3[:3], []),
    2: (x3[3:] + w1_2[:4], []),
    3: (w1_2[4:] + x4[:2] + f1set, rdX(2)),
    4: (x4[2:] + x5[:3], []),
    5: (x5[3:] + w1_3[:4], rdX(3)),
    6: (w1_3[4:] + x6[:3], []),
    7: (x6[3:] + small, rdX(4)),
    8: (x7, sB2),
    9: (small2[:6], rdX(5)),
    10: (small2[6:] + dmaW2(0), kcopy[:16]),
    11: ([lambda: pollissue(r("pf1o"), r("p1a"), "pf1")] + dmaW2(2)[:0], rdX(6) + kcopy[16:]),
}
for K in range(12):
    if K & 3 == 3:
        stamp(f"bW{(K >> 2) + 1}", "g1")
        g.wait(vm=f"W{(K >> 2) + 1}", lg=0)
        stamp(f"aW{(K >> 2) + 1}", "g1")
        e("s_barrier")
        stamp(f"c{K >> 2}")
        stamp(f"c{K >> 2}", "g1")
        if K == 7:
            run(bump)
    vm_items, other = BG[K]
    if K and not K & 1:
        g.wait(lg=f"rx{K >> 1}")
    main = statM(K) + mainM(K) + csM(K)
    run(weave(main, (rdW(K + 1) + rdC(K + 1), 1, 16), (vm_items, 0, 17), (other, 6, 14)))
    if K == 1:
        g.free("kvp", "kvs", "pre")
g.free("w1s", "w1base", "w1lds", "sW1", "xbase", "rot", "so", "f1a", "ke", "skr", "kw", "sa", "sb", "sc")

V("sg", 2, align=1); V("sac", 4); V("stv", 4); V("u", 8, align=2)
EPS = f2u(1e-5)


def rb(dst, src):
    return [E(f"v_cvt_pk_bf16_f32 {dst}, {src}, {src}"), E(f"v_and_b32 {dst}, {r('hmask')}, {dst}")]


st1 = []
for tb in range(2):
    G = lambda k, tb=tb: r("gr", tb * 4 + k, 1)
    st1.append(E(f"v_cndmask_b32 {r('ta')}, {G(0)}, {G(1)}, {r('m1')}"))
    st1.append(E(f"v_cndmask_b32 {r('tb')}, {G(2)}, {G(3)}, {r('m1')}"))
    st1.append(E(f"v_cndmask_b32 {r('ta')}, {r('ta')}, {r('tb')}, {r('m2')}"))
    st1.append(E(f"ds_bpermute_b32 {r('sg', tb, 1)}, {r('bpa')}, {r('ta')}", "bp"))
st2 = []
chains = []
for tb in range(2):
    mu, var, t, w = (r("u", tb * 4 + k, 1) for k in range(4))
    mb, rsd = r("stv", tb * 2, 1), r("stv", tb * 2 + 1, 1)
    a_, c_ = r("sac", tb * 2, 1), r("sac", tb * 2 + 1, 1)
    c = []
    c.append(E(f"v_mul_f32 {mu}, 0x{f2u(1 / 512):08x}, {r('rs', tb * 4, 1)}"))
    c.append(E(f"v_mul_f32 {var}, 0x{f2u(1 / 512):08x}, {r('sg', tb, 1)}"))
    c.append(E(f"v_fma_f32 {var}, -{mu}, {mu}, {var}"))
    c.append(E(f"v_max_f32 {var}, 0, {var}"))
    c += rb(mb, mu)
    c += rb(t, var)
    c.append(E(f"v_add_f32 {t}, 0x{EPS:08x}, {t}"))
    c += rb(t, t)
    c.append(E(f"v_sqrt_f32 {t}, {t}"))
    c += rb(t, t)
    c.append(E(f"v_rcp_f32 {rsd}, {t}"))
    c.append(E(f"v_sub_f32 {mu}, {mu}, {mb}"))
    c.append(E(f"v_mul_f32 {mu}, {mu}, {rsd}"))
    c.append(E(f"v_mul_f32 {var}, {var}, {rsd}"))
    c.append(E(f"v_mul_f32 {var}, {var}, {rsd}"))
    c += rb(mu, mu)
    c += rb(t, var)
    c.append(E(f"v_add_f32 {t}, 0x{EPS:08x}, {t}"))
    c += rb(t, t)
    c.append(E(f"v_sqrt_f32 {t}, {t}"))
    c += rb(t, t)
    c.append(E(f"v_rcp_f32 {w}, {t}"))
    c.append(E(f"v_fma_f32 {mu}, {mb}, {rsd}, {mu}"))
    c.append(E(f"v_mul_f32 {a_}, {rsd}, {w}"))
    c.append(E(f"v_mul_f32 {c_}, {mu}, {w}"))
    chains.append(c)
for x, y in zip(*chains):
    st2 += [x, y]
csw = [lambda: (e("s_mov_b32 exec_lo, 0x00010001"), e("s_mov_b32 exec_hi, 0x00010001"),
                e(f"ds_write_b128 {r('csw')}, {r('cs', 0, 4)}", "csw"), e(f"ds_write_b128 {r('csw2')}, {r('cs', 4, 4)}", "csw"),
                e("s_mov_b64 exec, -1"))]
V("b1f", 24)
g.wait(lg="rx6")
run(weave(statM(12) + csM(12) + mainM(12), (rdC(13) + rdW(13), 1, 14), (rdC(14), 14, 17), (after("rx6", dmaW2(1)) + dmaW2(2)[:1], 0, 17), (zfill, 8, 16)))
run(weave(statM(13) + csM(13) + csM(14) + mainM(13), (rdW(14), 1, 12), (rdC(15), 8, 12), (rdX(7), 13, 18), (dmaW2(2)[1:] + udma, 0, 19)))
run(weave([W(lg="rx7")] + statM(14) + statM(15) + csM(15) + mainM(14), (rdW(15), 2, 12), (st1, 12, 19), (csw, 18, 18),
          (dmaW2(3), 3, 21), ([W(vm="b1")] + unpack("b1f", 0, "b1r", 0, 6), 14, 22)))
g.wait(lg=0)
e("s_barrier")
stamp("c3")
stamp("c3", "g1")
V("csf", 24)
rcs = [E(f"ds_read_b128 {r('csf', 4 * fb, 4)}, {r('csr0')} offset:{64 * fb}", "rcs") for fb in range(6)]
run(weave(mainM(15), (rcs, 0, 5), (st2[:30], 0, 11)))
run(weave(st2[30:], (unpack("b1f", 12, "b1r", 6, 6), 0, 40), (dmaW2(4), 0, 40)))
e("s_mov_b64 exec, 0xffff")
e(f"ds_write_b64 {r('stw')}, {r('stv', 0, 2)}", "stw")
e(f"ds_write_b64 {r('stw')}, {r('stv', 2, 2)} offset:128", "stw")
e("s_mov_b64 exec, -1")
g.free("wa", "ca", "xf", "rs", "gr", "cs", "sg", "bpa", "u", "m1", "m2", "csw", "csw2", "stw", "stv", "b1r", "w1r", "csr", "ones",
       "xrd", "zz", "za", "csr0", "pf1o", "p1a", "um0", "ush")
AC("w2b", 48, at=128)
stamp("g1")

K0 = -2.0 * 0.7978845608028654 * 1.4426950408889634
K1 = K0 * 0.044715
S("k1", 2); V("k0v", 2); V("ge", 16); V("hp", 8)
e(f"s_mov_b32 {r('k1', 0, 1)}, 0x{f2u(K1):08x}")
e(f"s_mov_b32 {r('k1', 1, 1)}, 0x{f2u(K1):08x}")
e(f"v_mov_b32 {r('k0v', 0, 1)}, 0x{f2u(K0):08x}")
e(f"v_mov_b32 {r('k0v', 1, 1)}, 0x{f2u(K0):08x}")
g.wait(lg="rcs")


def gelu(b, tb):
    it = []
    sac = r("sac", tb * 2, 2)
    prs = [(fb, h) for fb in (2 * b, 2 * b + 1) for h in range(2)]
    U = lambda k: r("acc", (prs[k][0] * 2 + tb) * 4 + 2 * prs[k][1], 2)
    Tm = lambda k: r("ge", (tb & 1) * 8 + 2 * k, 2)
    T1r = lambda k, x: r("ge", (tb & 1) * 8 + 2 * k + x, 1)
    for k, (fb, h) in enumerate(prs):
        it.append(E(f"v_pk_fma_f32 {Tm(k)}, {r('csf', fb * 4 + 2 * h, 2)}, {sac}, {r('b1f', fb * 4 + 2 * h, 2)} op_sel:[0,1,0] op_sel_hi:[1,1,1] neg_lo:[0,1,0] neg_hi:[0,1,0]"))
    for k in range(4):
        it.append(E(f"v_pk_fma_f32 {U(k)}, {U(k)}, {sac}, {Tm(k)} op_sel_hi:[1,0,1]"))
    for k in range(4):
        it.append(E(f"v_pk_mul_f32 {Tm(k)}, {U(k)}, {U(k)}"))
    for k in range(4):
        it.append(E(f"v_pk_fma_f32 {Tm(k)}, {Tm(k)}, {r('k1')}, {r('k0v')}"))
    for k in range(4):
        it.append(E(f"v_pk_mul_f32 {Tm(k)}, {Tm(k)}, {U(k)}"))
    for k in range(4):
        for x in range(2):
            it.append(E(f"v_exp_f32 {T1r(k, x)}, {T1r(k, x)}"))
    for k in range(4):
        it.append(E(f"v_pk_add_f32 {Tm(k)}, {Tm(k)}, 1.0 op_sel_hi:[1,0]"))
    for k in range(4):
        for x in range(2):
            it.append(E(f"v_rcp_f32 {T1r(k, x)}, {T1r(k, x)}"))
    for k in range(4):
        it.append(E(f"v_pk_mul_f32 {Tm(k)}, {Tm(k)}, {U(k)}"))
    for k in range(4):
        it.append(E(f"v_cvt_pk_bf16_f32 {r('hp', (tb & 1) * 4 + k, 1)}, {T1r(k, 0)}, {T1r(k, 1)}"))
    if b == 2 and tb == 0:
        it.append(lambda: (e(f"s_cmp_lt_u32 {r('nown')}, 3"), e(f"s_cselect_b32 {r('ho', 0, 1)}, 0x7f000000, {r('ho', 0, 1)}"),
                           e(f"s_cselect_b32 {r('ho', 1, 1)}, 0x7f000000, {r('ho', 1, 1)}")))
    it.append(E(f"buffer_store_dwordx4 {r('hp', (tb & 1) * 4, 4)}, {r('l16')}, {r('sWS')}, {r('ho', tb, 1)} offen offset:{1024 * b} sc1", "hst"))
    return it


AC("cf", 32, at=176); AC("cg", 32, at=208)


def rdF(it, c):
    return E(f"ds_read_b128 {r('cf', 4 * c, 4)}, {r('fa')} offset:{64 * it + 512 * c}", f"F{it}_{c}")


def rdG(it, d):
    return E(f"ds_read_b128 {r('cg', 4 * d, 4)}, {r('ga')} offset:{64 * it + 512 * (7 - d)}", f"G{it}_{d}")


run(weave(gelu(0, 0), (rdW2(0), 2, 40)))
run(weave(gelu(0, 1), (rdW2(1), 2, 40), (dmaW2(5), 6, 44)))
run(weave(gelu(1, 0), (rdW2(2), 2, 40), (dmaW2(6)[:2], 6, 44)))
run(weave(gelu(1, 1), (dmaW2(6)[2:], 6, 44)))
g.wait(vm="U", lg=0)
e("s_barrier")
stamp("b5")
init = []
for k in range(8):
    init += [rdF(0, 7 - k), rdG(0, k)]
run(weave(gelu(2, 0), (dmaW2(7)[:2], 6, 44)))
run(weave(gelu(2, 1), (init, 10, 46), (dmaW2(7)[2:], 6, 44)))
stamp("gelu")
g.free("acc", "csf", "b1f", "sac", "ge", "k0v", "k1", "ho", "nown", "b0")
V("cy", 32)

extra = {
    0: rdW2(3) + rdW2(4) + dmaW2(8),
    1: [lambda: (g.wait(vm="hst"), setflag(r("f2a"), "f2"))] + rdW2(5) + dmaW2(9) + rdW2(6),
    2: dmaW2(10) + rdW2(7) + rdW2(8),
    3: rdW2(9) + rdW2(10) + [lambda: pollissue(r("pf2o"), r("p2a"), "pf2")],
}
for it in range(4):
    seq = []
    for c in range(7, -1, -1):
        for d in range(0, 8 - c):
            t = c + d

            def m(c=c, d=d, t=t, it=it):
                if d == 0:
                    if c == 7 or it == 0:
                        pass
                    g.wait(lg=f"F{it}_{c}") if (c == 0 and it) else None
                if d == 7 - c:
                    pass
                first = (it == 0 and d == 0)
                if d == 0:
                    g.wait(lg=f"G{it}_{7 - c}")
                mfma(r("cy", 4 * t, 4), r("cf", 4 * c, 4), r("cg", 4 * d, 4), first)
                if it == 0 and c == 0:
                    mfma(r("cy", 4 * t, 4), r("fd"), r("cg", 4 * d, 4), False)
                if it < 3:
                    if d == 7 - c and c > 0:
                        rdF(it + 1, c)()
                    if c == 0:
                        rdG(it + 1, d)()
                        if d == 7:
                            rdF(it + 1, 0)()
            seq.append(m)
    run(weave(seq, (extra[it], 3, 27)))
stamp("conv")
g.free("cf", "cg", "fd", "fa", "ga", "w2s", "w2o", "w4k", "f2a", "hp")
V("ys", 8); V("cg", 24)
g.wait(lg=0)
e(f"s_cmp_lg_u32 {r('wodd')}, 0")
e("s_cbranch_scc1 L_odd1")
for k in range(4):
    e(f"ds_write_b128 {r('oa')}, {r('cy', 16 + 4 * k, 4)} offset:{1024 * k}")
e("s_branch L_j1")
g.label("L_odd1")
e("s_nop 4")
for k in range(4):
    e(f"ds_write_b128 {r('oa')}, {r('cy', 4 * k, 4)} offset:{1024 * k}")
g.wait(lg=0)
for k in range(8):
    e(f"v_pk_mov_b32 {r('cy', 2 * k, 2)}, {r('cy', 16 + 2 * k, 2)}, {r('cy', 16 + 2 * k, 2)} op_sel:[0,1]")
g.label("L_j1")
e(f"s_add_u32 m0, {r('own')}, 6144")
for p in range(11):
    e(f"s_min_u32 {r(f'kb{p}')}, {r(f'kb{p}')}, {42 * 1024}")
e(f"buffer_load_dwordx4 {r('xs', 0, 1)}, {r('sX')}, {r('tile0')} offen lds", "xt")
e(f"buffer_load_dwordx4 {r('xs', 1, 1)}, {r('sX')}, {r('tile0')} offen offset:1024 lds", "xt")
g.wait(lg=0)
e("s_barrier")
for k in range(4):
    e(f"ds_read_b128 {r('cg', 4 * k, 4)}, {r('pa')} offset:{1024 * k}", f"ex{k}")
for k in range(4):
    g.wait(lg=f"ex{k}")
    for hh in range(2):
        e(f"v_pk_add_f32 {r('cy', 4 * k + 2 * hh, 2)}, {r('cy', 4 * k + 2 * hh, 2)}, {r('cg', 4 * k + 2 * hh, 2)}")
    for hh in range(2):
        e(f"v_cvt_pk_bf16_f32 {r('cg', 16 + 2 * k + hh, 1)}, {r('cy', 4 * k + 2 * hh, 1)}, {r('cy', 4 * k + 2 * hh + 1, 1)}")
    e(f"ds_write_b64 {r('yw')}, {r('cg', 16 + 2 * k, 2)} offset:{4096 + 512 * k}", "yw")
g.wait(lg=0)
e(f"ds_read_b128 {r('ys', 0, 4)}, {r('oa')} offset:4096", "yr0")
e(f"ds_read_b128 {r('ys', 4, 4)}, {r('oa')} offset:5120", "yr1")
g.wait(lg="yr0")
e(f"buffer_store_dwordx4 {r('ys', 0, 4)}, {r('l16')}, {r('sWS')}, {r('yo')} offen sc1", "yst")
g.wait(lg="yr1")
e(f"buffer_store_dwordx4 {r('ys', 4, 4)}, {r('l16')}, {r('sWS')}, {r('yo')} offen offset:1024 sc1", "yst")
stamp("yst")
g.free("cy", "pa", "yw", "w2r", "cg", "yo")

AC("hfa", 80, at=176)
V("hf0", 44); V("hf1", 44); V("hf2", 8); V("ac2", 32)
HF = {}
for s_ in range(4):
    for p_ in range(11):
        k_ = s_ * 11 + p_
        HF[s_, p_] = r(f"hf{s_}", 4 * p_, 4) if k_ < 24 else r("hfa", 4 * (k_ - 24), 4)
pollcheck(r("pf2o"), r("p2a"), "pf2")
stamp("f2")
g.free("pf2o", "p2a")
hl = [E(f"buffer_load_dwordx4 {HF[s, p]}, {r('hv', s, 1)}, {r('sWS')}, {r(f'kb{p}')} offen sc1", f"H{s}_{p}")
      for s in range(4) for p in range(11)]


def g2(s):
    items = []
    for p in range(11):
        for nb in range(4):
            def it(p=p, nb=nb):
                if nb == 0:
                    g.wait(vm=f"H{s}_{p}")
                mfma(r("ac2", (s & 1) * 16 + 4 * nb, 4), w2f(p, nb), HF[s, p], p == 0)
            items.append(it)
    return items


def pwr(s):
    return [E(f"ds_write_b128 {r('pw', s, 1)}, {r('ac2', (s & 1) * 16 + 4 * nb, 4)} offset:{1024 * nb}", "pw") for nb in range(4)]


V("xr", 8); V("xfp", 16); V("xn", 16); V("sv", 2); V("b2f", 16)
pre = [W(vm="xt"), E(f"ds_read_b64 {r('sv')}, {r('svr')}", "sv")]
for nb in range(4):
    pre.append(E(f"ds_read_b64 {r('xr', 2 * nb, 2)}, {r('ea', nb, 1)} offset:6144", "xr"))
pre += unpack("b2f", 0, "b2r", 0, 8)
pre.append(W(lg="xr"))
for d in range(8):
    lo, hi = r("xfp", 2 * d, 1), r("xfp", 2 * d + 1, 1)
    a, b = r("xn", 2 * d, 1), r("xn", 2 * d + 1, 1)
    pre.append(E(f"v_lshlrev_b32 {lo}, 16, {r('xr', d, 1)}"))
    pre.append(E(f"v_and_b32 {hi}, {r('hmask')}, {r('xr', d, 1)}"))
    pre.append(E(f"v_sub_f32 {a}, {lo}, {r('sv', 0, 1)}"))
    pre.append(E(f"v_sub_f32 {b}, {hi}, {r('sv', 0, 1)}"))
    pre.append(E(f"v_cvt_pk_bf16_f32 {b}, {a}, {b}"))
    pre.append(E(f"v_lshlrev_b32 {a}, 16, {b}"))
    pre.append(E(f"v_and_b32 {b}, {r('hmask')}, {b}"))
    pre.append(E(f"v_mul_f32 {a}, {a}, {r('sv', 1, 1)}"))
    pre.append(E(f"v_mul_f32 {b}, {b}, {r('sv', 1, 1)}"))
    pre.append(E(f"v_cvt_pk_bf16_f32 {b}, {a}, {b}"))
    pre.append(E(f"v_lshlrev_b32 {a}, 16, {b}"))
    pre.append(E(f"v_and_b32 {b}, {r('hmask')}, {b}"))
NH0 = int(opt.get("nh0", 16))
run(hl[:6])
run(weave(pre, (hl[6:NH0], 0, len(pre) - 1)))
g.wait(vm="yst")
setflag(r("f3a"), "f3")
g.free("ys", "xr", "sv", "svr", "b2r")
stamp("f3set")
run(weave(g2(0), (hl[NH0:NH0 + 11], 3, 43)))
run(weave(g2(1), (hl[NH0 + 11:NH0 + 22], 3, 43), (pwr(0), 8, 20)))
run(weave(g2(2), (hl[NH0 + 22:] + [lambda: pollissue(r("pf3o"), r("p3a"), "pf3")], 3, 30), (pwr(1), 8, 20)))
stamp("g2s2")
s3 = g2(3)
run(s3[:8])
run(pwr(2))
g.wait(lg=0)
e("s_barrier")
g.free("hf0", "hf1")
V("ps", 48); V("zr", 8); V("hfv", 32)
rp = [E(f"ds_read_b128 {r('ps', 4 * k, 4)}, {r('psr')} offset:{PX + 1024 * k}", f"rp{k}") for k in range(12)]
run(weave(s3[8:24], (rp, 0, 12)))
adds = [W(lg="rp11")]
for k in range(16):
    adds.append(E(f"v_add_f32 {r('ps', k, 1)}, {r('ps', k, 1)}, {r('ps', 16 + k, 1)}"))
    adds.append(E(f"v_add_f32 {r('b2f', k, 1)}, {r('b2f', k, 1)}, {r('ps', 32 + k, 1)}"))
for k in range(16):
    adds.append(E(f"v_add_f32 {r('ps', k, 1)}, {r('ps', k, 1)}, {r('b2f', k, 1)}"))
run(weave(s3[24:], (adds, 0, 19)))
stamp("g2")
pollcheck(r("pf3o"), r("p3a"), "pf3")
stamp("f3")
e(f"s_add_u32 m0, {r('own')}, 8192")
e(f"s_add_u32 {T3}, {r('zo')}, {131072 - 1024}")
e(f"buffer_load_dwordx4 {r('zs')}, {r('sWS')}, {r('zo')} offen sc1 lds", "z")
e(f"buffer_load_dwordx4 {r('zs')}, {r('sWS')}, {T3} offen offset:1024 sc1 lds", "z")
S("nl2", 2)
e(f"s_mov_b32 {r('nl2', 0, 1)}, 0x{f2u(-1.4426950408889634):08x}")
e(f"s_mov_b32 {r('nl2', 1, 1)}, 0x{f2u(-1.4426950408889634):08x}")
srd("sA", 11, 2097152)
M = lambda k: r("ps", 2 * k, 2)
Tt = lambda k: r("ps", 16 + 2 * k, 2)
for k in range(8):
    e(f"v_pk_add_f32 {M(k)}, {M(k)}, {r('ac2', 16 + 2 * k, 2)}")
for k in range(8):
    e(f"v_pk_mul_f32 {Tt(k)}, {M(k)}, {r('nl2')}")
for k in range(16):
    e(f"v_exp_f32 {r('ps', 16 + k, 1)}, {r('ps', 16 + k, 1)}")
for k in range(8):
    e(f"v_pk_add_f32 {Tt(k)}, {Tt(k)}, 1.0 op_sel_hi:[1,0]")
for k in range(16):
    e(f"v_rcp_f32 {r('ps', 16 + k, 1)}, {r('ps', 16 + k, 1)}")
for k in range(8):
    e(f"v_pk_mul_f32 {M(k)}, {M(k)}, {Tt(k)}")
for k in range(8):
    e(f"v_pk_mul_f32 {M(k)}, {M(k)}, {r('xn', 2 * k, 2)}")
g.wait(vm="z")
for nb in range(4):
    e(f"ds_read_b64_tr_b16 {r('zr', 2 * nb, 2)}, {r('zt')} offset:{8192 + 512 * nb}", f"zr{nb}")
for nb in range(4):
    g.wait(lg=f"zr{nb}")
    run(unpack("ps", 16 + 4 * nb, "zr", 2 * nb, 2))
    for k in (2 * nb, 2 * nb + 1):
        e(f"v_pk_fma_f32 {M(k)}, {M(k)}, {Tt(k)}, {r('xfp', 2 * k, 2)}")
    for k in (2 * nb, 2 * nb + 1):
        e(f"v_cvt_pk_bf16_f32 {r('zr', k, 1)}, {r('ps', 2 * k, 1)}, {r('ps', 2 * k + 1, 1)}")
    e(f"ds_write_b64 {r('ea', nb, 1)}, {r('zr', 2 * nb, 2)} offset:10240", "ow")
g.wait(lg=0)
e(f"ds_read_b128 {r('ps', 32, 4)}, {r('oa')} offset:10240", "or0")
e(f"ds_read_b128 {r('ps', 36, 4)}, {r('oa')} offset:11264", "or1")
g.wait(lg="or0")
e(f"buffer_store_dwordx4 {r('ps', 32, 4)}, {r('xs', 0, 1)}, {r('sA')}, {r('tile0')} offen {OPOL}", "ost")
g.wait(lg="or1")
e(f"buffer_store_dwordx4 {r('ps', 36, 4)}, {r('xs', 1, 1)}, {r('sA')}, {r('tile0')} offen offset:1024 {OPOL}", "ost")
stamp("out")
e(f"s_or_b32 {T2}, s2, {r('wave')}")
e(f"s_cmp_lg_u32 {T2}, 0")
e("s_cbranch_scc1 L_nobump")
e(f"v_mul_u32_u24 {r('ta')}, {FSTR}, {r('h4')}")
e(f"v_lshl_add_u32 {r('ta')}, {r('i15')}, 4, {r('ta')}")
if SPINMAX:
    e(f"s_mov_b32 {T4}, 0")
g.label("L_bump")
e(f"s_mov_b32 {T2}, {F1B}")
for k in range(8):
    e(f"buffer_load_dwordx4 {r('hfv', 4 * k, 4)}, {r('ta')}, {r('sWS')}, {T2} offen sc1")
    e(f"s_add_u32 {T2}, {T2}, {4 * FSTR}")
e("s_waitcnt vmcnt(0)")
e(f"s_mov_b64 {r('nl2')}, 0")
for k in range(16):
    e(f"v_cmp_ne_u64 vcc, {r('tag')}, {r('hfv', 2 * k, 2)}")
    e(f"s_or_b64 {r('nl2')}, {r('nl2')}, vcc")
if SPINMAX:
    e(f"s_add_u32 {T4}, {T4}, 1")
    e(f"s_cmp_gt_u32 {T4}, {SPINMAX}")
    e("s_cbranch_scc1 L_nobump")
e(f"s_cmp_lg_u64 {r('nl2')}, 0")
e("s_cbranch_scc1 L_bump")
e(f"s_mov_b32 {T2}, {EPOCH}")
e("s_mov_b64 exec, 1")
e(f"buffer_store_dwordx2 {r('vtag')}, {r('zero')}, {r('sWS')}, {T2} offen sc1")
e("s_mov_b64 exec, -1")
g.label("L_nobump")
if STAMPS:
    e("s_waitcnt vmcnt(0)")
    stamp("end")
    flush_stamps(True)
    e(f"s_lshl_b32 {T2}, s2, 2")
    e(f"s_add_u32 {T2}, {T2}, {r('wave')}")
    e(f"s_lshl_b32 {T2}, {T2}, 7")
    e(f"s_add_u32 {T2}, {T2}, {STAMP}")
    e(f"v_lshlrev_b32 {r('ta')}, 2, {r('lane')}")
    e("s_mov_b32 exec_hi, 0")
    e(f"buffer_store_dword {r('stamps')}, {r('ta')}, {r('sWS')}, {T2} offen")
    if DBG:
        e(f"s_cmp_lg_u32 {T2}, {STAMP + (DBG - 1) * 512}")
        e("s_cbranch_scc1 L_end")
        e(f"v_readfirstlane_b32 {T3}, {r('stamps')}")
        e(f"v_subrev_u32 {r('tb')}, {T3}, {r('stamps')}")
        e(f"global_store_dword {r('ta')}, {r('tb')}, {ptr(12)}")
g.label("L_end")

body = g.finish()
hdr = open("cdna_kernels/" + NAME + ".s.ref").read().split("; @launch")[0]
nv = 256 + g.hw["a"]
txt = f"""{hdr}; @launch grid=(256,1,1) block=(256,1,1) lds={LDSZ}
.amdgcn_target "amdgcn-amd-amdhsa--gfx950"
.text
.globl {NAME}_kernel
.p2align 8
.type {NAME}_kernel,@function
{NAME}_kernel:
{body}
    s_endpgm
.section .rodata,"a"
.p2align 6
.amdhsa_kernel {NAME}_kernel
  .amdhsa_next_free_vgpr {nv}
  .amdhsa_next_free_sgpr 102
  .amdhsa_accum_offset 256
  .amdhsa_group_segment_fixed_size 0
  .amdhsa_kernarg_size 112
  .amdhsa_user_sgpr_count 2
  .amdhsa_user_sgpr_kernarg_segment_ptr 1
  .amdhsa_system_sgpr_workgroup_id_x 1
.end_amdhsa_kernel
"""
import subprocess, re
open("_g.s", "w").write(txt.replace("CODE_BYTES", "0x1000"))
subprocess.check_call(["clang", "-x", "assembler", "-target", "amdgcn-amd-amdhsa", "-mcpu=gfx950", "-c", "_g.s", "-o", "_g.o"])
hh = subprocess.check_output(["llvm-objdump", "-h", "_g.o"]).decode()
size = int(re.search(r"\.text\s+([0-9a-f]+)", hh).group(1), 16)
txt = txt.replace("CODE_BYTES", str((size - 1024) & ~3))
open(OUT, "w").write(txt)
print("code bytes", size, "instrs", len(g.ins), "nops", g.nops, "hw", g.hw, "stamps", nst[0], " ".join(stnames))
```

```python
import re

TRANS = ("v_exp_f32", "v_log_f32", "v_rcp_f32", "v_rsq_f32", "v_sqrt_f32", "v_sin_f32", "v_cos_f32")


def _regs(tok):
    tok = tok.strip()
    tok = tok.lstrip("-")
    if tok.startswith("abs(") or tok.startswith("|"):
        tok = tok.replace("abs(", "").replace(")", "").replace("|", "")
    m = re.fullmatch(r"([vas])\[(\d+):(\d+)\]", tok)
    if m:
        return [(m.group(1), i) for i in range(int(m.group(2)), int(m.group(3)) + 1)]
    m = re.fullmatch(r"([vas])(\d+)", tok)
    if m:
        return [(m.group(1), int(m.group(2)))]
    if tok == "vcc":
        return [("s", 106), ("s", 107)]
    if tok == "vcc_lo":
        return [("s", 106)]
    if tok == "vcc_hi":
        return [("s", 107)]
    if tok == "exec":
        return [("s", 126), ("s", 127)]
    if tok == "exec_lo":
        return [("s", 126)]
    if tok == "exec_hi":
        return [("s", 127)]
    if tok == "m0":
        return [("s", 124)]
    return []


class Ins:
    __slots__ = ("text", "op", "cls", "wr", "rd", "srcc", "ab", "lds", "wide_store")

    def __init__(self, text):
        self.text = text
        t = text.split(";")[0].strip()
        parts = t.split(None, 1)
        self.op = op = parts[0]
        rest = parts[1] if len(parts) > 1 else ""
        ops = []
        cur = ""
        depth = 0
        for ch in rest:
            if ch in "[(":
                depth += 1
            if ch in "])":
                depth -= 1
            if ch == "," and depth == 0:
                ops.append(cur.strip())
                cur = ""
            else:
                cur += ch
        if cur.strip():
            ops.append(cur.strip())
        mods = ""
        if ops:
            sp = ops[-1].split(None, 1)
            if len(sp) > 1:
                ops[-1] = sp[0]
                mods = sp[1]
        self.wr, self.rd, self.srcc, self.ab = [], [], [], []
        self.lds = False
        self.wide_store = False
        R = [_regs(o) for o in ops]
        if op.endswith(":") or op.startswith("."):
            self.cls = "label"
        elif op.startswith("v_mfma"):
            self.cls = "mfma"
            self.wr = R[0]
            self.ab = R[1] + R[2]
            self.srcc = R[3]
            self.rd = self.ab + self.srcc
        elif op.startswith("v_"):
            self.cls = "trans" if op.replace("_e32", "").replace("_e64", "") in TRANS else "valu"
            if op.startswith("v_cmp"):
                self.wr = R[0]
                self.rd = sum(R[1:], [])
                if op.startswith("v_cmpx"):
                    self.wr = self.wr + _regs("exec")
            elif op.startswith("v_add_co") or op.startswith("v_sub_co") or op.startswith("v_addc_co") or op.startswith("v_subb_co"):
                self.wr = R[0] + R[1]
                self.rd = sum(R[2:], [])
            elif op.startswith("v_permlane") and "swap" in op:
                self.wr = R[0] + R[1]
                self.rd = R[0] + R[1]
            else:
                self.wr = R[0]
                self.rd = sum(R[1:], [])
                if op.startswith("v_fmac") or op.startswith("v_dot2c") or "dpp" in op or "row_" in mods or "quad_perm" in mods:
                    self.rd = self.rd + R[0]
                if op.startswith("v_cndmask") and len(ops) == 3:
                    self.rd = self.rd + _regs("vcc")
            if "dpp" in op or "row_" in mods or "quad_perm" in mods:
                self.cls = "dpp"
        elif op.startswith("ds_"):
            self.cls = "ds"
            if op.startswith("ds_read") or op.startswith("ds_bpermute") or op.startswith("ds_permute") or op.startswith("ds_swizzle"):
                self.wr = R[0]
                self.rd = sum(R[1:], [])
            else:
                self.rd = sum(R, [])
        elif op.startswith("buffer_") or op.startswith("global_"):
            self.cls = "vmem"
            self.lds = bool(re.search(r"\blds\b", mods))
            if "load" in op and not self.lds:
                self.wr = R[0]
                self.rd = sum(R[1:], [])
            else:
                self.rd = sum(R, [])
                if self.lds:
                    self.rd = self.rd + _regs("m0")
                if "store" in op and ("x4" in op or "x3" in op):
                    self.wide_store = R[0] if op.startswith("buffer_") else R[1]
        elif op.startswith("s_"):
            self.cls = "salu"
            if op in ("s_waitcnt", "s_barrier", "s_nop", "s_sleep", "s_endpgm", "s_setprio") or op.startswith("s_cbranch") or op == "s_branch":
                self.cls = "sctl"
            elif op.startswith("s_cmp") or op.startswith("s_bitcmp"):
                self.rd = sum(R, [])
            elif op.startswith("s_load") or op.startswith("s_memtime") or op.startswith("s_memrealtime"):
                self.cls = "smem"
                self.wr = R[0]
                self.rd = sum(R[1:], [])
            else:
                self.wr = R[0]
                self.rd = sum(R[1:], [])
                if "saveexec" in op:
                    self.wr = self.wr + _regs("exec")
        else:
            raise ValueError("unknown op " + text)

    def states(self):
        if self.cls == "label":
            return 0
        if self.op == "s_nop":
            return int(self.text.split()[1]) + 1
        return 1


VALU_LIKE = ("valu", "trans", "dpp")


def need(p, c):
    n = 0
    pw = set(p.wr)
    if p.cls == "mfma":
        if c.cls == "mfma":
            if pw & set(c.ab):
                n = max(n, 8)
            if pw & set(c.srcc):
                if set(c.srcc) != pw:
                    n = max(n, 6)
            elif pw & set(c.wr):
                n = max(n, 6)
        elif c.cls in VALU_LIKE or c.cls in ("ds", "vmem"):
            if pw & (set(c.rd) | set(c.wr)):
                n = max(n, 8)
        if c.cls in VALU_LIKE and set(p.srcc) & set(c.wr):
            n = max(n, 3)
    if p.cls in VALU_LIKE:
        vw = {r for r in pw if r[0] in "va"}
        sw = {r for r in pw if r[0] == "s"}
        if c.cls == "mfma" and vw & set(c.rd):
            n = max(n, 2)
        if c.cls == "mfma" and (("s", 126) in sw):
            n = max(n, 4)
        if c.cls == "dpp" and vw & set(c.rd):
            n = max(n, 2)
        if c.cls == "dpp" and ("s", 126) in sw:
            n = max(n, 5)
        if c.op.startswith("v_permlane") and vw & set(c.rd):
            n = max(n, 2)
        if (c.op.startswith("v_readfirstlane") or c.op.startswith("v_readlane")) and vw & set(c.rd):
            n = max(n, 1)
        if c.cls == "vmem" and sw & set(c.rd):
            n = max(n, 5)
        if c.cls in VALU_LIKE and sw & set(c.rd):
            n = max(n, 4 if c.op.startswith("v_readlane") or c.op.startswith("v_writelane") else 2)
        if c.cls in ("salu", "sctl", "smem") and sw & set(c.rd):
            n = max(n, 1)
        if p.cls == "trans" and c.cls in ("valu", "dpp", "mfma", "ds", "vmem") and vw & set(c.rd):
            n = max(n, 1)
        if ("sdwa" in p.op or "op_sel" in p.text) and c.cls in VALU_LIKE and vw & (set(c.rd) | set(c.wr)) and not p.op.startswith("v_pk_"):
            n = max(n, 1)
    if p.cls == "salu":
        if ("s", 124) in pw and c.cls == "vmem" and c.lds:
            n = max(n, 1)
    if p.cls == "vmem" and p.wide_store:
        if set(p.wide_store) & set(c.wr):
            n = max(n, 2)
    return n


class Gen:
    def __init__(self):
        self.ins = []
        self.vm = []
        self.lg = []
        self.smem_out = False
        self.wlog = []
        self.pools = {"v": [None] * 256, "a": [None] * 256, "s": [None] * 102}
        self.names = {}
        self.hw = {"v": 0, "a": 0, "s": 0}

    def alloc(self, kind, name, n=1, align=None, lo=0, at=None):
        pool = self.pools[kind]
        if align is None:
            align = 1 if n == 1 else (2 if kind in "va" else (4 if n >= 4 else 2))
        assert name not in self.names, name
        rng = [at] if at is not None else range(lo, len(pool) - n + 1)
        for b in rng:
            if b % align:
                continue
            if all(pool[b + i] is None for i in range(n)):
                for i in range(n):
                    pool[b + i] = name
                self.names[name] = (kind, b, n)
                self.hw[kind] = max(self.hw[kind], b + n)
                return b
        raise RuntimeError(f"out of {kind} regs for {name} ({n}); used: {self.usage(kind)}")

    def usage(self, kind):
        return {k: v[1:] for k, v in self.names.items() if v[0] == kind}

    def free(self, *names):
        for name in names:
            kind, b, n = self.names.pop(name)
            for i in range(n):
                self.pools[kind][b + i] = None

    def r(self, name, off=0, n=None):
        kind, b, tot = self.names[name]
        if n is None:
            n = tot - off if off == 0 else 1
        assert off + n <= tot, (name, off, n, tot)
        if n == 1:
            return f"{kind}{b + off}"
        return f"{kind}[{b + off}:{b + off + n - 1}]"

    def e(self, text, tag=None):
        for line in text.split("\n"):
            line = line.strip()
            if not line:
                continue
            i = Ins(line)
            self.ins.append(i)
            if i.cls == "vmem":
                self.vm.append(tag)
            elif i.cls == "ds":
                self.lg.append(tag)
            elif i.cls == "smem":
                self.smem_out = True

    def label(self, name):
        self.ins.append(Ins(name + ":"))

    def comment(self, s):
        self.ins.append(Ins(".if 0"))
        self.ins.pop()

    def _cnt(self, lst, tag):
        idx = max(i for i, t in enumerate(lst) if t == tag)
        self.wlog.append((lst, tag, lst.count(tag)))
        return len(lst) - 1 - idx

    def wait(self, vm=None, lg=None):
        parts = []
        if vm is not None:
            n = 0 if vm == 0 else self._cnt(self.vm, vm)
            n = min(n, 63)
            parts.append(f"vmcnt({n})")
        if lg is not None:
            n = 0 if lg == 0 else self._cnt(self.lg, lg)
            if self.smem_out:
                n = 0
            n = min(n, 15)
            if n == 0:
                self.smem_out = False
            parts.append(f"lgkmcnt({n})")
        self.e("s_waitcnt " + " ".join(parts))

    def finish(self, align8=True):
        for lst, tag, c in self.wlog:
            assert lst.count(tag) == c, ("wait on partially issued group", tag, c, lst.count(tag))
        out = []
        hist = []
        nops = 0
        for i in self.ins:
            if i.cls != "label":
                req = 0
                dist = 0
                for p in reversed(hist):
                    nd = need(p, i)
                    if nd > dist:
                        req = max(req, nd - dist)
                    dist += p.states()
                    if dist >= 20:
                        break
                if req:
                    nop = Ins(f"s_nop {req - 1}")
                    out.append(nop)
                    hist.append(nop)
                    nops += 1
                hist.append(i)
            out.append(i)
        self.nops = nops
        return "\n".join(("" if x.cls == "label" else "    ") + x.text for x in out)


def interleave(main, fill, start=0, every=1, per=1):
    out = []
    f = list(fill)
    for n, m in enumerate(main):
        out.append(m)
        if n >= start and (n - start) % every == 0:
            for _ in range(per):
                if f:
                    out.append(f.pop(0))
    out.extend(f)
    return out


class It:
    __slots__ = ("fn", "cost", "lo", "hi")

    def __init__(self, fn, cost=1, lo=0, hi=10 ** 9):
        self.fn, self.cost, self.lo, self.hi = fn, cost, lo, hi

    def __call__(self):
        self.fn()


def win(items, lo, hi, pace=True):
    out = []
    n = len(items)
    for k, it in enumerate(items):
        if not isinstance(it, It):
            it = It(it)
        a = lo + (k * (hi - lo + 1)) // n if pace else lo
        b = max(a, hi - (n - 1 - k) // 2) if not pace else max(a, min(hi, a + max(1, (hi - lo + 1) // n)))
        out.append(It(it.fn, it.cost, a, b))
    return out


def schedule(main, queues, cap=2.3):
    qs = [list(q) for q in queues]
    for idx, m in enumerate(main):
        m()
        room = cap - (main[idx + 1].cost if idx + 1 < len(main) else 0)
        while True:
            cand = [q for q in qs if q and q[0].lo <= idx]
            if not cand:
                break
            q = min(cand, key=lambda q: min(x.hi for x in q[:8]))
            dl = min(x.hi for x in q[:8])
            if room >= q[0].cost or dl <= idx:
                it = q.pop(0)
                it()
                room -= it.cost
            else:
                alt = [c for c in cand if c[0].cost <= room]
                if not alt:
                    break
                q = min(alt, key=lambda q: min(x.hi for x in q[:8]))
                it = q.pop(0)
                it()
                room -= it.cost
    for q in qs:
        for it in q:
            it()
```

```python
import sys, struct
from dsl import Gen, It, win, schedule

NAME = "recurrent_scan__ssm_conv_h3__mixer_channel_mlp__prompt"
opt = dict(a.split("=") for a in sys.argv[2:])
OUT = sys.argv[1]
MAP1 = int(opt.get("map1", 4))
STAMPS = int(opt.get("stamps", 0))
KVPOL = opt.get("kvpol", "")
XPOL0 = opt.get("xpol", "")
SPINMAX = int(opt.get("spinmax", 0))
PREDIV = int(opt.get("prediv", 16))
OPOL = opt.get("opol", "")
DBG = int(opt.get("dbg", 0))
SSET = opt.get("sset", "main")
TOUCH = int(opt.get("touch", 0))
NH0 = int(opt.get("nh0", 16))
NX0 = int(opt.get("nx0", 7))

KVT, HB, YT, FL, EPOCH, STAMP = 0, 0x200000, 0x800000, 0xA00000, 0xB00000, 0xC00000
F1B, F2B, F3B, FSTR = FL, FL + 0x40000, FL + 0x80000, 4352
WSZ = 0xD00000
XST, KVIMG, CSX, STT = 98304, 147456, 155776, 156160
FP, GP = 4160, 4576
UB0 = 33280
S3, S4 = 53248, 73728
PX = 0
B1T, B2T = 157184, 157568
LDSZ = 157824


def f2u(x):
    return struct.unpack("<I", struct.pack("<f", x))[0]


g = Gen()
e, r = g.e, g.r
V = lambda n, c=1, **k: g.alloc("v", n, c, **k)
S = lambda n, c=1, **k: g.alloc("s", n, c, **k)
AC = lambda n, c=1, **k: g.alloc("a", n, c, **k)
W = lambda **k: It(lambda: g.wait(**k))
E = lambda s, t=None, cost=1: It(lambda: e(s, t), cost)


def run(items):
    for it in items:
        it()


def weave(main, *bgs):
    slots = [[] for _ in main]
    for items, a, b in bgs:
        b = min(b, len(main) - 1)
        n = len(items)
        for k, it in enumerate(items):
            slots[a + (k * (b - a + 1)) // max(n, 1)].append(it)
    out = []
    for m, s in zip(main, slots):
        out.append(m)
        out.extend(s)
    return out


S("karg", 2, at=0); S("wg", 1, at=2); S("t0", 1, at=3)
S("t45", 4, at=4)
for i_ in range(14):
    S(f"ptr{i_}", 2, at=8 + 2 * i_)
V("tid", 1, at=0)
nst = [0]
stnames = []
pend = []
if STAMPS:
    S("st", 8, at=94, align=2)
    V("stamps", 1, at=255)


def flush_stamps(force=False):
    if pend and (force or len(pend) == 4) and g.smem_out:
        g.wait(lg=0)
    if not g.smem_out:
        for k in pend:
            e(f"v_writelane_b32 {r('stamps')}, {r('st', 2 * (k % 4), 1)}, {k}")
        pend.clear()


def stamp(name, grp="main"):
    if STAMPS and (grp == SSET or name in ("start", "end")) and name not in opt.get("skip", "").split(","):
        assert nst[0] < 32
        flush_stamps()
        e(f"{'s_memtime' if STAMPS == 2 else 's_memrealtime'} {r('st', 2 * (nst[0] % 4), 2)}")
        pend.append(nst[0])
        nst[0] += 1
        stnames.append(name)


_wait = g.wait
_wn = [0]
VM0 = int(opt.get("vm0", 0))


def wait_hook(vm=None, lg=None):
    hook = SSET == "vm" and vm is not None and not str(vm).startswith("H")
    if hook:
        _wn[0] += 1
        hook = VM0 < _wn[0] <= VM0 + 15
    if hook:
        stamp(f"b{vm}", "vm")
    _wait(vm=vm, lg=lg)
    if hook:
        stamp(f"a{vm}", "vm")


g.wait = wait_hook


def ptr(i):
    if i == 13 and "ptr13" not in g.names:
        return r("sWS", 0, 2)
    return r(f"ptr{i}")


def plo(i):
    return "s" + ptr(i)[2:].split(":")[0]


def phi(i):
    return "s" + ptr(i).split(":")[1][:-1]


def srd(name, pi, nbytes, add=None):
    if add is None:
        e(f"s_mov_b64 {r(name,0,2)}, {ptr(pi)}")
    else:
        e(f"s_add_u32 {r(name,0,1)}, {plo(pi)}, {add}")
        e(f"s_addc_u32 {r(name,1,1)}, {phi(pi)}, 0")
    e(f"s_mov_b32 {r(name,2,1)}, {nbytes}")
    e(f"s_mov_b32 {r(name,3,1)}, 0x00020000")


T0, T1_, T2, T3, T4 = "s3", "s4", "s5", "s6", "s7"
ABL = opt.get("abl", "").split(",")
_e0 = g.e


def e(text, tag=None):
    t = tag or ""
    if ("x" in ABL and t.startswith("X") and t != "X0") or ("w" in ABL and t.startswith("W") and t != "W0") or \
            ("v" in ABL and t.startswith("V")):
        g.vm.append(tag)
        g.vm.pop()
        g.vm.insert(0, tag)
        return
    _e0(text, tag)


stamp("start")
e("s_load_dwordx16 s[8:23], s[0:1], 0")
e("s_load_dwordx8 s[24:31], s[0:1], 64")
e("s_load_dwordx4 s[32:35], s[0:1], 96")
e("s_cmp_ge_u32 s2, 256")
e("s_cbranch_scc1 L_end")
for n in ("lane", "ta", "tb", "tc", "td", "r8", "pc", "zero", "i15", "h4", "l16", "oa", "fa", "ga", "pa", "yw", "zs", "zt",
          "pf1o", "pf2o", "pf3o", "psr", "svr", "kw", "za", "bpa", "csw", "csw2", "csr0", "stw"):
    V(n)
V("vtag", 2); V("xs", 4, align=1); V("w2s", 4, align=1); V("w2r", 8, align=1); V("hv", 4, align=1)
V("pw", 3, align=1); V("ea", 4, align=1); V("fd", 4); V("pf", 2)
V("xrd", 2, align=1); V("w1r", 2, align=1); V("csr", 2, align=1); V("ones", 4); V("w1s", 3, align=1)
for n in ("wave", "T1", "q", "tt2", "ns", "rot", "b0", "nown", "tok16", "ns128", "tile0", "own", "hmask", "so",
          "f1a", "f2a", "f3a", "yo", "zo", "um0", "ush"):
    S(n)
sh_ = PREDIV.bit_length() - 1
V("pre")
e(f"s_lshr_b32 {T1_}, s2, 3")
e(f"v_lshrrev_b32 {r('tc')}, {sh_}, v0")
e(f"s_and_b32 {T2}, {T1_}, {PREDIV - 1}")
e(f"v_lshl_add_u32 {r('tc')}, {r('tc')}, {sh_}, {T2}")
e(f"v_lshlrev_b32 {r('tc')}, 7, {r('tc')}")
e(f"v_min_u32 {r('tc')}, CODE_BYTES, {r('tc')}")
e(f"s_getpc_b64 {r('t45', 2, 2)}")
e(f"global_load_dword {r('pre')}, {r('tc')}, {r('t45', 2, 2)}", "pre")
e(f"v_and_b32 {r('lane')}, 63, v0")
e(f"v_lshrrev_b32 {r('ta')}, 6, v0")
e(f"s_and_b32 {T0}, s2, 7")
e(f"v_readfirstlane_b32 {r('wave')}, {r('ta')}")
if MAP1 == 8:
    e(f"s_lshr_b32 {T2}, {T1_}, 4")
    e(f"s_lshl_b32 {r('T1')}, {T0}, 1")
    e(f"s_add_u32 {r('T1')}, {r('T1')}, {T2}")
    e(f"s_and_b32 {r('q')}, {T1_}, 15")
    e(f"s_lshl_b32 {T2}, {T2}, 2")
    e(f"s_add_u32 {r('rot')}, {T2}, {r('q')}")
else:
    e(f"s_lshr_b32 {T2}, {T0}, 1")
    e(f"s_lshl_b32 {T2}, {T2}, 2")
    e(f"s_lshr_b32 {T3}, {T1_}, 3")
    e(f"s_add_u32 {r('T1')}, {T2}, {T3}")
    e(f"s_and_b32 {T2}, {T0}, 1")
    e(f"s_lshl_b32 {T2}, {T2}, 3")
    e(f"s_and_b32 {T3}, {T1_}, 7")
    e(f"s_add_u32 {r('q')}, {T2}, {T3}")
    e(f"s_lshl_b32 {T2}, {r('T1')}, 1")
    e(f"s_add_u32 {r('rot')}, {T2}, {r('q')}")
e(f"s_and_b32 {r('rot')}, {r('rot')}, 7")
e(f"s_lshr_b32 {T2}, {r('q')}, 3")
e(f"s_lshl_b32 {r('tt2')}, {r('T1')}, 1")
e(f"s_add_u32 {r('tt2')}, {r('tt2')}, {T2}")
e(f"s_and_b32 {r('ns')}, {r('q')}, 7")
V("k0"); V("kd", 2, align=1); V("sho")
e(f"v_lshrrev_b32 {r('r8')}, 3, {r('lane')}")
e(f"v_and_b32 {r('pc')}, 7, {r('lane')}")
e(f"s_lshl_b32 {T2}, {r('tt2')}, 2")
e(f"s_add_u32 {r('tok16')}, {T2}, {r('wave')}")
e(f"s_lshl_b32 {T2}, {r('tok16')}, 14")
e(f"s_lshl_b32 {r('ns128')}, {r('ns')}, 7")
e(f"s_add_u32 {r('tile0')}, {T2}, {r('ns128')}")
e(f"v_lshlrev_b32 {r('tb')}, 4, {r('pc')}")
e(f"v_lshl_add_u32 {r('ta')}, {r('r8')}, 11, {r('tb')}")
e(f"v_add_u32 {r('k0')}, {r('tile0')}, {r('ta')}")
e(f"v_lshl_add_u32 {r('ta')}, {r('r8')}, 10, {r('tb')}")
e(f"v_add_u32 {r('kd', 1, 1)}, {r('tile0')}, {r('ta')}")
e(f"v_subrev_u32 {r('kd', 0, 1)}, 8192, {r('kd', 1, 1)}")
e(f"v_lshlrev_b32 {r('l16')}, 4, {r('lane')}")
e(f"s_lshl_b32 {T3}, {r('ns')}, 9")
e(f"v_add_u32 {r('sho')}, {T3}, {r('l16')}")
e(f"v_mov_b32 {r('zero')}, 0")
e(f"s_mul_i32 {r('own')}, {r('wave')}, 12288")
e(f"s_add_u32 {r('own')}, {r('own')}, {XST}")
S("sA", 4); S("sB", 4); S("sX", 4); S("sW1", 4); S("sWS", 4)
for nm, sz in (("sA", 2097152), ("sB", 2097152), ("sX", 4096), ("sW1", 1409024), ("sWS", WSZ)):
    e(f"s_mov_b32 {r(nm,2,1)}, {sz}")
    e(f"s_mov_b32 {r(nm,3,1)}, 0x00020000")
for c in range(3):
    e(f"v_add_u32 {r('ta')}, {64 * c}, {r('lane')}")
    e(f"v_mul_u32_u24 {r('tb')}, 43691, {r('ta')}")
    e(f"v_lshrrev_b32 {r('tb')}, 19, {r('tb')}")
    e(f"v_mul_u32_u24 {r('tc')}, 12, {r('tb')}")
    e(f"v_sub_u32 {r('tc')}, {r('ta')}, {r('tc')}")
    e(f"v_lshrrev_b32 {r('td')}, 2, {r('tb')}")
    e(f"v_and_b32 {r('td')}, 2, {r('td')}")
    e(f"v_xor_b32 {r('tc')}, {r('tc')}, {r('td')}")
    e(f"v_mul_u32_u24 {r('tb')}, 2752, {r('tb')}")
    e(f"v_lshl_add_u32 {r('tb')}, {r('tc')}, 4, {r('tb')}")
    e(f"v_subrev_u32 {r('w1s', c, 1)}, {1024 * c}, {r('tb')}")
e(f"s_mul_i32 {r('b0')}, {r('q')}, 43")
e(f"s_add_u32 {r('nown')}, {r('b0')}, 43")
e(f"s_lshr_b32 {r('b0')}, {r('b0')}, 4")
e(f"s_lshr_b32 {r('nown')}, {r('nown')}, 4")
e(f"s_sub_u32 {r('nown')}, {r('nown')}, {r('b0')}")
S("w1lds"); S("xbase"); S("xk"); S("wo"); S("wlim")
e(f"s_lshl_b32 {T3}, {r('b0')}, 6")
e(f"s_lshl_b32 {T2}, {r('T1')}, 2")
e(f"s_add_u32 {T2}, {T2}, {r('wave')}")
e(f"s_lshl_b32 {r('xbase')}, {T2}, 15")
e(f"s_lshl_b32 {r('xk')}, {r('rot')}, 7")
e(f"s_mul_i32 {T4}, {r('wave')}, {16 * 2752}")
e(f"s_add_u32 {T4}, {T4}, {T3}")
e(f"s_add_u32 {r('wlim')}, {T4}, {512 * 2752}")
e(f"s_mul_i32 {T2}, {r('rot')}, {64 * 2752}")
e(f"s_add_u32 {r('wo')}, {T2}, {T4}")
e(f"s_mul_i32 {r('w1lds')}, {r('wave')}, 3072")
e(f"v_lshrrev_b32 {r('ta')}, 1, {r('r8')}")
e(f"v_xor_b32 {r('ta')}, {r('ta')}, {r('pc')}")
e(f"v_lshlrev_b32 {r('ta')}, 4, {r('ta')}")
e(f"v_lshl_add_u32 {r('xs', 0, 1)}, {r('r8')}, 10, {r('ta')}")
e(f"v_xor_b32 {r('tb')}, 64, {r('xs', 0, 1)}")
e(f"v_add_u32 {r('xs', 1, 1)}, 7168, {r('tb')}")
e(f"v_add_u32 {r('xs', 2, 1)}, {2 * 7168}, {r('xs', 0, 1)}")
e(f"v_add_u32 {r('xs', 3, 1)}, {3 * 7168}, {r('tb')}")
e(f"s_add_u32 m0, {r('own')}, {8192 + 1024}")
e(f"s_mov_b32 {T0}, 7168")
V("vr", 8); V("bb", 2, align=1)
g.wait(lg=0)
e(f"s_mov_b64 {r('sA',0,2)}, {ptr(1)}")
e(f"s_mov_b64 {r('sB',0,2)}, {ptr(2)}")
e(f"buffer_load_dwordx4 {r('kd', 1, 1)}, {r('sA')}, 0 offen lds", "k")
e(f"buffer_load_dwordx4 {r('kd', 1, 1)}, {r('sA')}, {T0} offen offset:1024 lds", "k")
e(f"buffer_load_dwordx4 {r('vr', 0, 4)}, {r('k0')}, {r('sB')}, 0 offen {KVPOL}", "k")
e(f"buffer_load_dwordx4 {r('vr', 4, 4)}, {r('k0')}, {r('sB')}, 0 offen offset:1024 {KVPOL}", "k")
e(f"s_add_u32 m0, {r('own')}, 8192")
e("s_mov_b32 exec_lo, 0")
e("s_mov_b32 exec_hi, 0xffffff00")
e(f"buffer_load_dwordx4 {r('kd', 0, 1)}, {r('sA')}, 0 offen lds", "k")
e(f"s_add_u32 m0, {r('own')}, {8192 + 3072}")
e(f"s_mov_b64 {r('sX',0,2)}, {ptr(3)}")
e("s_mov_b32 exec_lo, -1")
e("s_mov_b32 exec_hi, 0")
e(f"buffer_load_dwordx4 {r('sho')}, {r('sX')}, 0 offen lds", "k")
e(f"s_mov_b64 {r('sWS',0,2)}, {ptr(13)}")
e("s_mov_b64 exec, -1")
e(f"s_mov_b64 {r('sW1',0,2)}, {ptr(7)}")
S("sD")
e(f"s_lshl_b32 {T2}, s2, 2")
e(f"s_load_dword {r('sD')}, {ptr(5)}, {T2}")
stamp("kviss")


def dmaW1(n):
    items = []
    for c in range(3):
        def it(c=c):
            if c == 0:
                e(f"s_add_u32 m0, {r('w1lds')}, {n * 12288}")
                if n:
                    e(f"s_cmp_ge_u32 {r('wo')}, {r('wlim')}")
                    e(f"s_cselect_b32 {T2}, {512 * 2752}, 0")
                    e(f"s_sub_u32 {r('wo')}, {r('wo')}, {T2}")
            e(f"buffer_load_dwordx4 {r('w1s', c, 1)}, {r('sW1')}, {r('wo')} offen offset:{1024 * c} lds", f"W{n}")
            if c == 2:
                e(f"s_add_u32 {r('wo')}, {r('wo')}, {64 * 2752}")
        items.append(It(it, (4, 1, 2)[c]))
    return items


def dmaX(ei):
    items = []
    for n in range(4):
        def it(n=n):
            xo = r("so")
            if n == 0:
                e(f"s_add_u32 m0, {r('own')}, {(ei % 3) * 4096}")
                e(f"s_or_b32 {xo}, {r('xk')}, {r('xbase')}")
            pol = XPOL0 if ei < 1 else ""
            e(f"buffer_load_dwordx4 {r('xs', n, 1)}, {r('sX')}, {xo} offen offset:{1024 * n} {pol} lds", f"X{ei}")
            if n == 1:
                e(f"s_add_u32 {r('xk')}, {r('xk')}, 128")
            if n == 2:
                e(f"s_and_b32 {r('xk')}, {r('xk')}, 0x3ff")
        items.append(It(it, (3, 2, 2, 1)[n]))
    return items


srd("sX", 0, 2097152)
x0 = dmaX(0) + dmaW1(0)
run(x0[:NX0])
stamp("p0iss")
g.free("ptr0", "ptr1", "ptr2", "ptr3", "ptr6", "ptr7", "ptr13", "karg", "k0", "kd", "sho", "rot")
if not DBG:
    g.free("ptr12")
V("kvw"); V("kvr"); V("kvs"); V("kra"); V("sra"); V("bw", 2, align=1); V("sa"); V("sb"); V("sc")
e(f"v_and_b32 {r('i15')}, 15, {r('lane')}")
e(f"v_lshrrev_b32 {r('h4')}, 4, {r('lane')}")
e(f"v_add_u32 {r('oa')}, {r('own')}, {r('l16')}")
e(f"v_lshlrev_b32 {r('ta')}, 4, {r('pc')}")
e(f"v_lshl_add_u32 {r('ta')}, {r('r8')}, 8, {r('ta')}")
e(f"v_add_u32 {r('kra')}, {r('own')}, {r('ta')}")
e(f"v_lshl_add_u32 {r('sra')}, {r('pc')}, 6, {r('own')}")
e(f"v_lshrrev_b32 {r('ta')}, 1, {r('i15')}")
e(f"v_xor_b32 {r('ta')}, {r('ta')}, {r('h4')}")
e(f"v_lshlrev_b32 {r('ta')}, 4, {r('ta')}")
e(f"v_lshl_add_u32 {r('ta')}, {r('i15')}, 7, {r('ta')}")
e(f"v_add_u32 {r('xrd', 0, 1)}, {r('own')}, {r('ta')}")
e(f"v_xor_b32 {r('xrd', 1, 1)}, 64, {r('xrd', 0, 1)}")
e(f"v_lshrrev_b32 {r('ta')}, 2, {r('i15')}")
e(f"v_lshl_add_u32 {r('ta')}, {r('h4')}, 3, {r('ta')}")
e(f"v_mul_u32_u24 {r('ta')}, 192, {r('ta')}")
e(f"v_and_b32 {r('tb')}, 3, {r('lane')}")
e(f"v_lshl_add_u32 {r('ta')}, {r('tb')}, 3, {r('ta')}")
e(f"v_and_b32 {r('tb')}, 1, {r('h4')}")
e(f"v_lshlrev_b32 {r('tb')}, 5, {r('tb')}")
e(f"v_add_u32 {r('w1r', 0, 1)}, {r('ta')}, {r('tb')}")
e(f"v_sub_u32 {r('w1r', 1, 1)}, {r('ta')}, {r('tb')}")
e(f"s_lshl_b32 {T2}, {r('wave')}, 5")
e(f"v_xor_b32 {r('tc')}, {T2}, {r('tb')}")
e(f"v_add_u32 {r('csr', 0, 1)}, {r('ta')}, {r('tc')}")
e(f"s_and_b32 {T2}, {T2}, 32")
e(f"s_add_u32 {T2}, {T2}, 128")
e(f"v_xor_b32 {r('tc')}, {T2}, {r('tb')}")
e(f"v_add_u32 {r('csr', 1, 1)}, {r('ta')}, {r('tc')}")
e(f"v_mul_u32_u24 {r('ta')}, 1040, {r('pc')}")
e(f"v_lshlrev_b32 {r('tb')}, 2, {r('r8')}")
e(f"v_sub_u32 {r('ta')}, {r('ta')}, {r('tb')}")
e(f"s_lshl_b32 {T2}, {r('wave')}, 5")
e(f"s_sub_u32 {T2}, {KVIMG + 124}, {T2}")
e(f"v_add_u32 {r('kvw')}, {T2}, {r('ta')}")
e(f"s_mul_i32 {T2}, {r('wave')}, 2080")
e(f"s_add_u32 {T2}, {T2}, {KVIMG}")
e(f"v_add_u32 {r('kvr')}, {T2}, {r('l16')}")
e(f"v_lshlrev_b32 {r('ta')}, 12, {r('r8')}")
e(f"v_lshl_add_u32 {r('kvs')}, {r('pc')}, 4, {r('ta')}")
for i in range(4):
    e(f"v_mov_b32 {r('ones', i, 1)}, 0x3f803f80")
e(f"s_mov_b32 {r('hmask')}, 0xffff0000")
S("kvo"); S("wodd"); S("whi"); S("chan")
e(f"s_and_b32 {r('wodd')}, {r('wave')}, 1")
e(f"s_lshr_b32 {r('whi')}, {r('wave')}, 1")
e(f"s_lshl_b32 {T2}, s2, 1")
e(f"s_add_u32 {r('chan')}, {T2}, {r('whi')}")
e(f"s_lshl_b32 {T2}, {r('ns')}, 2")
e(f"s_add_u32 {T2}, {T2}, {r('wave')}")
e(f"s_mul_i32 {r('f1a')}, {T2}, {FSTR}")
e(f"s_lshl_b32 {T3}, {r('tt2')}, 3")
e(f"s_add_u32 {r('f1a')}, {r('f1a')}, {T3}")
e(f"s_add_u32 {r('f1a')}, {r('f1a')}, {F1B}")
e(f"s_lshl_b32 {T2}, {T2}, 16")
e(f"s_sub_u32 {T3}, 31, {r('tt2')}")
e(f"s_lshl_b32 {T3}, {T3}, 7")
e(f"s_add_u32 {r('kvo')}, {T2}, {T3}")
e(f"s_lshl_b32 {T2}, {r('T1')}, 1")
e(f"s_add_u32 {T2}, {T2}, {r('whi')}")
e(f"s_mul_i32 {r('f2a')}, {T2}, {FSTR}")
e(f"s_lshl_b32 {T2}, {r('q')}, 1")
e(f"s_add_u32 {T2}, {T2}, {r('wodd')}")
e(f"s_lshl_b32 {T2}, {T2}, 3")
e(f"s_add_u32 {r('f2a')}, {r('f2a')}, {T2}")
e(f"s_add_u32 {r('f2a')}, {r('f2a')}, {F2B}")
e(f"s_lshr_b32 {T2}, {r('chan')}, 6")
e(f"s_lshl_b32 {T2}, {T2}, 1")
e(f"s_add_u32 {T2}, {T2}, {r('wodd')}")
e(f"s_mul_i32 {r('f3a')}, {T2}, {FSTR}")
e(f"s_and_b32 {T2}, {r('chan')}, 63")
e(f"s_lshl_b32 {T2}, {T2}, 3")
e(f"s_add_u32 {r('f3a')}, {r('f3a')}, {T2}")
e(f"s_add_u32 {r('f3a')}, {r('f3a')}, {F3B}")
e(f"v_lshlrev_b32 {r('tc')}, 3, {r('lane')}")
e(f"v_add_u32 {r('zt')}, {r('own')}, {r('tc')}")
e(f"s_mul_i32 {T2}, {T1_}, {FSTR}")
e(f"s_add_u32 {T2}, {T2}, {F1B}")
e(f"v_and_b32 {r('pf1o')}, 0xf8, {r('tc')}")
e(f"v_add_u32 {r('pf1o')}, {T2}, {r('pf1o')}")
e(f"s_lshr_b32 {T2}, {r('tt2')}, 4")
e(f"s_lshl_b32 {T3}, {r('ns')}, 1")
e(f"s_add_u32 {T2}, {T2}, {T3}")
e(f"s_mul_i32 {T2}, {T2}, {FSTR}")
e(f"s_add_u32 {T2}, {T2}, {F3B}")
e(f"v_add_u32 {r('pf3o')}, {T2}, {r('tc')}")
e(f"v_min_u32 {r('pf2o')}, 9, {r('lane')}")
e(f"s_lshl_b32 {T2}, {r('wave')}, 3")
e(f"v_add_u32 {r('pf2o')}, {T2}, {r('pf2o')}")
e(f"v_min_u32 {r('pf2o')}, 31, {r('pf2o')}")
e(f"s_mul_i32 {T2}, {r('tt2')}, {FSTR}")
e(f"s_add_u32 {T2}, {T2}, {F2B}")
e(f"v_lshl_add_u32 {r('pf2o')}, {r('pf2o')}, 3, {T2}")
e(f"v_min_u32 {r('ta')}, 47, {r('lane')}")
e(f"v_lshlrev_b32 {r('bw', 0, 1)}, 3, {r('ta')}")
e(f"v_add_u32 {r('bw', 0, 1)}, {B1T}, {r('bw', 0, 1)}")
e(f"s_lshl_b32 {T2}, {r('b0')}, 6")
e(f"v_lshl_add_u32 {r('bb', 0, 1)}, {r('ta')}, 2, {T2}")
e(f"v_and_b32 {r('ta')}, 31, {r('lane')}")
e(f"v_lshlrev_b32 {r('bw', 1, 1)}, 3, {r('ta')}")
e(f"v_add_u32 {r('bw', 1, 1)}, {B2T}, {r('bw', 1, 1)}")
e(f"v_lshl_add_u32 {r('bb', 1, 1)}, {r('ta')}, 2, {r('ns128')}")
e(f"v_and_b32 {r('ta')}, 6, {r('r8')}")
e(f"v_xor_b32 {r('ta')}, {r('ta')}, {r('pc')}")
e(f"v_lshlrev_b32 {r('ta')}, 4, {r('ta')}")
e(f"v_lshl_add_u32 {r('w2s', 0, 1)}, {r('r8')}, 10, {r('ta')}")
e(f"v_add_u32 {r('w2s', 0, 1)}, {r('ns128')}, {r('w2s', 0, 1)}")
for n in range(1, 4):
    e(f"v_add_u32 {r('w2s', n, 1)}, {7168 * n}, {r('w2s', 0, 1)}")
e(f"v_lshrrev_b32 {r('ta')}, 2, {r('i15')}")
e(f"v_lshl_add_u32 {r('ta')}, {r('h4')}, 2, {r('ta')}")
e(f"v_lshrrev_b32 {r('tb')}, 1, {r('ta')}")
e(f"v_and_b32 {r('tb')}, 3, {r('tb')}")
e(f"v_lshlrev_b32 {r('tb')}, 5, {r('tb')}")
e(f"v_lshl_add_u32 {r('tb')}, {r('ta')}, 7, {r('tb')}")
e(f"v_and_b32 {r('ta')}, 3, {r('lane')}")
e(f"v_lshl_add_u32 {r('tb')}, {r('ta')}, 3, {r('tb')}")
e(f"v_add_u32 {r('w2r', 0, 1)}, {r('own')}, {r('tb')}")
S("w4k")
e(f"s_lshl_b32 {r('w4k')}, {r('wave')}, 12")
e(f"s_add_u32 {r('w4k')}, {r('w4k')}, {S3}")
e(f"v_add_u32 {r('w2r', 4, 1)}, {r('w4k')}, {r('tb')}")
for nb in range(1, 4):
    e(f"v_xor_b32 {r('w2r', nb, 1)}, {32 * nb}, {r('w2r', 0, 1)}")
    e(f"v_xor_b32 {r('w2r', 4 + nb, 1)}, {32 * nb}, {r('w2r', 4, 1)}")
for p in range(11):
    S(f"kb{p}")
e(f"s_lshr_b32 {T0}, {T1_}, 3")
e(f"s_mul_i32 {T0}, {T0}, 3")
e(f"s_mul_i32 {T2}, {r('ns')}, 11")
e(f"s_lshr_b32 {T2}, {T2}, 3")
e(f"s_add_u32 {T0}, {T0}, {T2}")
e(f"s_cmp_ge_u32 {T0}, 11")
e(f"s_cselect_b32 {T2}, 11, 0")
e(f"s_sub_u32 {T0}, {T0}, {T2}")
e(f"s_mul_i32 {T3}, {r('wave')}, 11")
e(f"s_add_u32 {T0}, {T0}, {T3}")
e(f"s_add_u32 {T3}, {T3}, 11")
for p in range(11):
    e(f"s_lshl_b32 {r(f'kb{p}')}, {T0}, 15")
    if p < 10:
        e(f"s_add_u32 {T0}, {T0}, 1")
        e(f"s_cmp_ge_u32 {T0}, {T3}")
        e(f"s_cselect_b32 {T2}, 11, 0")
        e(f"s_sub_u32 {T0}, {T0}, {T2}")
e(f"v_and_b32 {r('ta')}, 3, {r('lane')}")
e(f"v_mul_u32_u24 {r('fa')}, {FP}, {r('ta')}")
e(f"v_lshrrev_b32 {r('tb')}, 2, {r('i15')}")
e(f"v_add_u32 {r('tb')}, {r('tb')}, {r('h4')}")
e(f"v_lshl_add_u32 {r('fa')}, {r('tb')}, 4, {r('fa')}")
e(f"s_lshl_b32 {T4}, {r('wodd')}, 8")
e(f"s_mul_i32 {T2}, {r('whi')}, {4 * FP}")
e(f"s_add_u32 {T3}, {T4}, {T2}")
e(f"v_add_u32 {r('fa')}, {T3}, {r('fa')}")
e(f"v_and_b32 {r('tc')}, 1, {r('lane')}")
e(f"v_mul_u32_u24 {r('ga')}, {GP}, {r('tc')}")
e(f"v_lshrrev_b32 {r('td')}, 1, {r('i15')}")
e(f"v_lshlrev_b32 {r('td')}, 2, {r('td')}")
e(f"v_sub_u32 {r('td')}, {r('h4')}, {r('td')}")
e(f"v_add_u32 {r('td')}, 28, {r('td')}")
e(f"v_lshl_add_u32 {r('ga')}, {r('td')}, 4, {r('ga')}")
e(f"s_mul_i32 {T3}, {r('whi')}, {2 * GP}")
e(f"s_add_u32 {T3}, {T3}, {T4}")
e(f"s_add_u32 {T3}, {T3}, {UB0}")
e(f"v_add_u32 {r('ga')}, {T3}, {r('ga')}")
g.wait(lg=0)
e(f"s_lshl_b32 {T3}, {r('whi')}, 4")
e(f"s_lshr_b32 {r('sD')}, {r('sD')}, {T3}")
e(f"s_and_b32 {r('sD')}, {r('sD')}, 0xffff")
e(f"s_cmp_eq_u32 {r('wodd')}, 0")
e(f"s_cselect_b32 {r('sD')}, {r('sD')}, 0")
e(f"v_xor_b32 {r('tc')}, 1, {r('tc')}")
e(f"v_lshlrev_b32 {r('tc')}, 4, {r('tc')}")
e(f"v_lshlrev_b32_e64 {r('tc')}, {r('tc')}, {r('sD')}")
e(f"v_cmp_eq_u32 vcc, 3, {r('tb')}")
e(f"v_cndmask_b32 {r('tc')}, 0, {r('tc')}, vcc")
e(f"v_cmp_lt_u32 vcc, 1, {r('ta')}")
e(f"v_cndmask_b32 {r('fd', 0, 1)}, 0, {r('tc')}, vcc")
e(f"v_sub_u32 {r('fd', 1, 1)}, {r('tc')}, {r('fd', 0, 1)}")
e(f"v_mov_b32 {r('fd', 2, 1)}, 0")
e(f"v_mov_b32 {r('fd', 3, 1)}, 0")
g.free("sD", "ptr5")
e(f"s_lshl_b32 {T3}, {r('wodd')}, 11")
e(f"v_add_u32 {r('sa')}, {T3}, {r('l16')}")
e(f"v_subrev_u32 {r('sb')}, 8, {r('sa')}")
e(f"v_add_u32 {r('sc')}, 1016, {r('sa')}")
e(f"s_add_u32 {T3}, {T2}, 48")
e(f"v_add_u32 {r('kw')}, {T3}, {r('sa')}")
e(f"s_mul_i32 {r('um0')}, {r('wave')}, {GP}")
e(f"s_add_u32 {r('um0')}, {r('um0')}, {UB0}")
e(f"s_lshl_b32 {T3}, {r('wodd')}, 3")
e(f"s_sub_u32 {r('ush')}, 8, {T3}")
e(f"s_add_u32 {T4}, {r('um0')}, 4096")
e(f"v_add_u32 {r('za')}, {T4}, {r('l16')}")
e(f"v_subrev_u32 {r('ta')}, 28, {r('lane')}")
e(f"v_min_u32 {r('ta')}, 5, {r('ta')}")
e(f"v_cmp_lt_u32 vcc, 2, {r('ta')}")
e(f"v_lshlrev_b32 {r('ta')}, 4, {r('ta')}")
e(f"v_add_u32 {r('tb')}, {FP - 48}, {r('ta')}")
e(f"v_cndmask_b32 {r('ta')}, {r('ta')}, {r('tb')}, vcc")
e(f"s_mul_i32 {T3}, {r('wave')}, {2 * FP}")
e(f"v_add_u32 {r('ta')}, {T3}, {r('ta')}")
e(f"v_cmp_lt_u32 vcc, 27, {r('lane')}")
e(f"v_cndmask_b32 {r('za')}, {r('za')}, {r('ta')}, vcc")
e(f"s_xor_b32 {T2}, {r('wave')}, 1")
e(f"s_mul_i32 {T2}, {T2}, 12288")
e(f"s_add_u32 {T2}, {T2}, {XST}")
e(f"v_add_u32 {r('pa')}, {T2}, {r('l16')}")
e(f"v_lshrrev_b32 {r('ta')}, 1, {r('i15')}")
e(f"v_lshlrev_b32 {r('ta')}, 6, {r('ta')}")
e(f"v_and_b32 {r('tb')}, 1, {r('lane')}")
e(f"v_lshl_add_u32 {r('ta')}, {r('tb')}, 3, {r('ta')}")
e(f"v_lshl_add_u32 {r('ta')}, {r('h4')}, 4, {r('ta')}")
e(f"v_add_u32 {r('yw')}, {r('own')}, {r('ta')}")
e(f"s_lshl_b32 {r('chan')}, {r('chan')}, 12")
e(f"s_lshl_b32 {T3}, {r('wodd')}, 11")
e(f"s_add_u32 {T2}, {r('chan')}, {T3}")
e(f"s_add_u32 {r('yo')}, {T2}, {YT}")
e(f"v_lshrrev_b32 {r('zs')}, 1, {r('lane')}")
e(f"v_lshlrev_b32 {r('zs')}, 12, {r('zs')}")
e(f"v_lshl_add_u32 {r('zs')}, {r('tb')}, 4, {r('zs')}")
e(f"s_lshl_b32 {T2}, {r('ns')}, 18")
e(f"s_lshl_b32 {T3}, {r('tok16')}, 5")
e(f"s_add_u32 {T2}, {T2}, {T3}")
e(f"s_add_u32 {r('zo')}, {T2}, {YT}")
for s in range(4):
    e(f"s_add_u32 {T2}, {r('wave')}, {s + 1}")
    e(f"s_and_b32 {T2}, {T2}, 3")
    e(f"s_mul_i32 {T3}, {T2}, 12288")
    if s < 3:
        if PX + 4096 * s:
            e(f"s_add_u32 {T3}, {T3}, {PX + 4096 * s}")
        e(f"v_add_u32 {r('pw', s, 1)}, {T3}, {r('l16')}")
    else:
        e(f"v_add_u32 {r('psr')}, {T3}, {r('l16')}")
    e(f"s_lshl_b32 {T3}, {r('tt2')}, 2")
    e(f"s_add_u32 {T2}, {T2}, {T3}")
    e(f"s_mul_i32 {T2}, {T2}, 44032")
    e(f"s_add_u32 {T2}, {T2}, {HB}")
    e(f"v_add_u32 {r('hv', s, 1)}, {T2}, {r('l16')}")
e(f"v_lshrrev_b32 {r('ta')}, 1, {r('i15')}")
e(f"v_lshrrev_b32 {r('tb')}, 1, {r('h4')}")
e(f"v_xor_b32 {r('ta')}, {r('ta')}, {r('tb')}")
e(f"v_lshlrev_b32 {r('ta')}, 4, {r('ta')}")
e(f"v_lshl_add_u32 {r('ta')}, {r('i15')}, 7, {r('ta')}")
e(f"v_and_b32 {r('tc')}, 1, {r('h4')}")
e(f"v_lshl_add_u32 {r('ta')}, {r('tc')}, 3, {r('ta')}")
e(f"v_add_u32 {r('ea', 0, 1)}, {r('own')}, {r('ta')}")
for nb in range(1, 4):
    e(f"v_xor_b32 {r('ea', nb, 1)}, {32 * nb}, {r('ea', 0, 1)}")
e(f"s_and_b32 {T2}, {r('tok16')}, 7")
e(f"s_lshl_b32 {T2}, {T2}, 7")
e(f"s_add_u32 {T2}, {T2}, {STT}")
e(f"v_lshl_add_u32 {r('svr')}, {r('i15')}, 3, {T2}")
e(f"s_lshl_b32 {T2}, {r('wave')}, 8")
e(f"s_add_u32 {T2}, {T2}, {STT}")
e(f"v_lshl_add_u32 {r('stw')}, {r('i15')}, 3, {T2}")
e(f"v_lshl_add_u32 {r('stw')}, {r('tb')}, 7, {r('stw')}")
S("m1", 2); S("m2", 2); S("m3", 2)
e(f"s_mov_b32 {r('m1', 0, 1)}, 0xaaaaaaaa"); e(f"s_mov_b32 {r('m1', 1, 1)}, 0xaaaaaaaa")
e(f"s_mov_b32 {r('m2', 0, 1)}, 0xcccccccc"); e(f"s_mov_b32 {r('m2', 1, 1)}, 0xcccccccc")
e(f"s_mov_b32 {r('m3', 0, 1)}, 0"); e(f"s_mov_b32 {r('m3', 1, 1)}, -1")
e(f"v_lshrrev_b32 {r('ta')}, 2, {r('i15')}")
e(f"v_lshl_add_u32 {r('ta')}, {r('ta')}, 4, {r('i15')}")
e(f"v_lshlrev_b32 {r('bpa')}, 2, {r('ta')}")
e(f"v_lshlrev_b32 {r('ta')}, 4, {r('h4')}")
e(f"v_add_u32 {r('csr0')}, {CSX}, {r('ta')}")
e(f"s_lshl_b32 {T2}, {r('wave')}, 6")
e(f"v_add_u32 {r('csw')}, {T2}, {r('csr0')}")
e(f"s_lshl_b32 {T2}, {r('wodd')}, 6")
e(f"s_add_u32 {T2}, {T2}, 256")
e(f"v_add_u32 {r('csw2')}, {T2}, {r('csr0')}")
S("ho", 2, align=1)
e(f"s_lshl_b32 {T2}, {r('T1')}, 2")
e(f"s_add_u32 {T2}, {T2}, {r('wave')}")
e(f"s_mul_i32 {T2}, {T2}, 86")
e(f"s_add_u32 {T2}, {T2}, {r('b0')}")
e(f"s_lshl_b32 {T2}, {T2}, 10")
e(f"s_add_u32 {r('ho', 0, 1)}, {T2}, {HB}")
e(f"s_add_u32 {r('ho', 1, 1)}, {T2}, {HB + 44032}")
srd("sA", 4, 4096, add=r("chan"))
srd("sB", 9, 1409024)
V("zz", 4)
for i in range(4):
    e(f"v_mov_b32 {r('zz', i, 1)}, 0")
stamp("setup")
run(x0[NX0:])
g.free("T1", "q", "tt2", "ns", "tok16", "whi", "b0", "ptr4", "ptr9", "ns128", "r8", "pc", "tid")

V("skr", 12)
small = [E(f"buffer_load_dwordx4 {r('skr', 2, 4)}, {r('sa')}, {r('sA')}, 0 offen", "sk"),
         E(f"buffer_load_dwordx4 {r('skr', 8, 4)}, {r('sa')}, {r('sA')}, 0 offen offset:1024", "sk"),
         E(f"global_load_dword {r('bb', 0, 1)}, {r('bb', 0, 1)}, {ptr(8)}", "sk"),
         E(f"global_load_dword {r('bb', 1, 1)}, {r('bb', 1, 1)}, {ptr(10)}", "sk"),
         It(lambda: (e(f"s_mov_b32 {T0}, {EPOCH}"), e("s_mov_b64 exec, 1"),
                     e(f"buffer_load_dwordx2 {r('pf')}, {r('zero')}, {r('sWS')}, {T0} offen sc1", "ep"), e("s_mov_b64 exec, -1")), 4)]
small2 = [E(f"buffer_load_dwordx2 {r('skr', 0, 2)}, {r('sb')}, {r('sA')}, 0 offen", "sk2"),
          E(f"buffer_load_dwordx2 {r('skr', 6, 2)}, {r('sc')}, {r('sA')}, 0 offen", "sk2")]
V("kvp", 8); V("kr", 20); V("shr", 16); V("wf", 32); V("kf", 40); V("vf", 16)


def unpack(dst, doff, src, soff, ndw):
    it = []
    for d in range(ndw):
        it.append(E(f"v_lshlrev_b32 {r(dst, doff + 2 * d, 1)}, 16, {r(src, soff + d, 1)}"))
        it.append(E(f"v_and_b32 {r(dst, doff + 2 * d + 1, 1)}, {r('hmask')}, {r(src, soff + d, 1)}"))
    return it


g.wait(vm="k")
stamp("karr")
for i in range(4):
    e(f"ds_read_b128 {r('shr', 4 * i, 4)}, {r('sra')} offset:{11264 + 16 * i}", "rs")
for k in range(5):
    e(f"ds_read_b128 {r('kr', 4 * k, 4)}, {r('kra')} offset:{8192 + 640 + 128 * k}", f"rk{k}")
run(unpack("vf", 0, "vr", 0, 8))
g.wait(lg="rs")
kvc = []
for c in range(8):
    for j in range(4):
        src = r("shr", 2 * c + (j >> 1), 1)
        if j & 1:
            kvc.append(E(f"v_and_b32 {r('wf', j * 8 + c, 1)}, {r('hmask')}, {src}"))
        else:
            kvc.append(E(f"v_lshlrev_b32 {r('wf', j * 8 + c, 1)}, 16, {src}"))
kvc.append(W(lg="rk4"))
kvc += unpack("kf", 0, "kr", 0, 20)
KS = lambda t, cp: r("kr", t * 8 + 2 * cp, 2)
for t in range(2):
    for cp in range(4):
        kvc.append(E(f"v_pk_mul_f32 {KS(t, cp)}, {r('kf', t * 8 + 2 * cp, 2)}, {r('wf', 24 + 2 * cp, 2)}"))
    for j in (2, 1, 0):
        for cp in range(4):
            kvc.append(E(f"v_pk_fma_f32 {KS(t, cp)}, {r('kf', (t + 3 - j) * 8 + 2 * cp, 2)}, {r('wf', j * 8 + 2 * cp, 2)}, {KS(t, cp)}"))
    for cp in range(4):
        kvc.append(E(f"v_pk_mul_f32 {KS(t, cp)}, {KS(t, cp)}, {r('vf', t * 8 + 2 * cp, 2)}"))
for c in range(8):
    kvc.append(E(f"v_cvt_pk_bf16_f32 {r('kvp', c, 1)}, {r('kr', 8 + c, 1)}, {r('kr', c, 1)}"))
    kvc.append(E(f"ds_write_b32 {r('kvw')}, {r('kvp', c, 1)} offset:{128 * c}", "kvw"))
NKV = int(opt.get("nkv", 8))
kvd = dmaW1(1) + small + dmaX(1)
run(weave(kvc, (kvd[:NKV], 0, 124)))
stamp("kv")

AC("xf", 64, at=192)
AC("wa", 48, at=128); AC("ca", 16, at=176)
AC("w2a", 128, at=0)


def xf(K, tb):
    return r("xf", ((K & 7) * 2 + tb) * 4, 4)


def rdX(ei):
    return [W(vm=f"X{ei}")] + [E(f"ds_read_b128 {xf(ei * 2 + k, tb)}, {r('xrd', k, 1)} offset:{(ei % 3) * 4096 + tb * 2048}", f"rx{ei}")
                               for k in range(2) for tb in range(2)]


def wbase(K):
    return ((K >> 2) & 1) * 24576 + (K & 3) * 6144


def rdW(K):
    return [E(f"ds_read_b64_tr_b16 {r('wa', (K & 1) * 24 + fb * 4 + 2 * hf, 2)}, {r('w1r', fb & 1, 1)} offset:{wbase(K) + hf * 768 + fb * 32}", f"rw{K}")
            for fb in range(6) for hf in range(2)]


def rdC(K):
    return [E(f"ds_read_b64_tr_b16 {r('ca', (K & 1) * 8 + c * 4 + 2 * hf, 2)}, {r('csr', c, 1)} offset:{wbase(K) + hf * 768}", f"rc{K}")
            for c in range(2) for hf in range(2)]


S("tag", 2)
run(rdX(0))
g.wait(vm="W0", lg="kvw")
e("s_barrier")
e(f"ds_read_b128 {r('kvp', 0, 4)}, {r('kvr')}", "kvr")
e(f"ds_read_b128 {r('kvp', 4, 4)}, {r('kvr')} offset:1040", "kvr")
g.free("wf", "kf", "vf", "kr", "vr", "shr", "kvw", "kvr", "kra", "sra")
run(rdW(0)); run(rdC(0))
e(f"s_add_u32 {T3}, {r('kvo')}, 32768")
stamp("x0")

V("acc", 48); V("cs", 8); V("rs", 8); V("gr", 8)
V("ke", 24)
g.names["bt"] = ("v", g.names["kvp"][1], 4)
g.names["u"] = ("v", g.names["kvp"][1] + 4, 4)


def mfma(d, a, b, first):
    e(f"v_mfma_f32_16x16x32_bf16 {d}, {a}, {b}, {'0' if first else d}")


def M(d, a, b, first, wait=None):
    def fn():
        if wait:
            g.wait(**wait)
        mfma(d, a, b, first)
    return It(fn, 1 if wait else 0)


def mainM(K):
    return [M(r("acc", (fb * 2 + tb) * 4, 4), r("wa", (K & 1) * 24 + fb * 4, 4), xf(K, tb), K == 0,
              dict(lg=f"rw{K}") if fb == 0 and tb == 0 else None) for fb in range(6) for tb in range(2)]


def statM(K):
    items = []
    for tb in range(2):
        items.append(M(r("rs", tb * 4, 4), r("ones"), xf(K, tb), K == 0, dict(lg=f"rx{K >> 1}") if (tb == 0 and not K & 1) else None))
        items.append(M(r("gr", tb * 4, 4), xf(K, tb), xf(K, tb), K == 0))
    return items


def csM(K):
    return [M(r("cs", c * 4, 4), r("ca", (K & 1) * 8 + c * 4, 4), r("ones"), K == 0, dict(lg=f"rc{K}") if c == 0 else None) for c in range(2)]


def setflag(addr, tagname):
    e("s_mov_b64 exec, 1")
    e(f"buffer_store_dwordx2 {r('vtag')}, {r('zero')}, {r('sWS')}, {addr} offen sc1", tagname)
    e("s_mov_b64 exec, -1")


def pollissue(voff, tagname):
    e(f"buffer_load_dwordx2 {r('pf')}, {voff}, {r('sWS')}, 0 offen sc1", tagname)


def pollcheck(voff, tagname):
    g.wait(vm=tagname)
    e(f"v_cmp_ne_u64 vcc, {r('tag')}, {r('pf')}")
    e("s_cmp_eq_u64 vcc, 0")
    e(f"s_cbranch_scc0 L_{tagname}")
    g.label(f"L_{tagname}_ok")

    def tail():
        g.label(f"L_{tagname}")
        if SPINMAX:
            e(f"s_mov_b32 {T4}, 0")
        g.label(f"L_{tagname}_l")
        e("s_sleep 1")
        e(f"buffer_load_dwordx2 {pfr}, {voff}, {sws}, 0 offen sc1")
        e("s_waitcnt vmcnt(0)")
        e(f"v_cmp_ne_u64 vcc, {tagr}, {pfr}")
        if SPINMAX:
            e(f"s_add_u32 {T4}, {T4}, 1")
            e(f"s_cmp_gt_u32 {T4}, {SPINMAX}")
            e(f"s_cbranch_scc1 L_{tagname}_ok")
        e("s_cmp_eq_u64 vcc, 0")
        e(f"s_cbranch_scc0 L_{tagname}_l")
        e(f"s_branch L_{tagname}_ok")
    pfr, sws, tagr = r("pf"), r("sWS"), r("tag")
    tails.append(tail)


tails = []
kcopy = [W(vm="sk2")]
for n in range(2):
    R = lambda k, c=1, n=n: r("skr", 6 * n + k, c)
    KE = lambda k, c=1, n=n: r("ke", 12 * n + k, c)
    for k in range(4):
        kcopy.append(E(f"v_alignbit_b32 {KE(k)}, {R(k + 1)}, {R(k)}, 16"))
    for k in range(4):
        kcopy.append(E(f"v_alignbit_b32 {KE(4 + k)}, {R(k + 2)}, {R(k + 1)}, 16"))
    for k in range(4):
        kcopy.append(E(f"v_mov_b32 {KE(8 + k)}, {R(1 + k)}"))
kwr = []
for n in range(2):
    kwr.append(E(f"ds_write_b128 {r('kw')}, {r('skr', 6 * n + 2, 4)} offset:{3 * FP + 1024 * n}", "kc", 2))
    kwr.append(E(f"ds_write_b128 {r('kw')}, {r('ke', 12 * n, 4)} offset:{1024 * n}", "kc", 2))
    kwr.append(E(f"ds_write_b128 {r('kw')}, {r('ke', 12 * n + 4, 4)} offset:{2 * FP + 1024 * n}", "kc", 2))
    kwr.append(E(f"ds_write_b128 {r('kw')}, {r('ke', 12 * n + 8, 4)} offset:{FP + 1024 * n}", "kc", 2))
btab = unpack("bt", 0, "bb", 0, 2) + [E(f"ds_write_b64 {r('bw', 0, 1)}, {r('bt', 0, 2)}", "btw"), E(f"ds_write_b64 {r('bw', 1, 1)}, {r('bt', 2, 2)}", "btw")]

W2SLOT = {0: ("o", 8192), 1: ("o", 0), 2: ("x", 0), 3: ("o", 4096), 4: ("x", S4 - S3),
          5: ("o", 8192), 6: ("o", 0), 7: ("x", 0), 8: ("o", 4096), 9: ("x", S4 - S3), 10: ("o", 8192)}


def dmaW2(p):
    items = []
    kind, off = W2SLOT[p]
    for n in range(4):
        def it(n=n):
            if n == 0:
                e(f"s_add_u32 m0, {r('own') if kind == 'o' else r('w4k')}, {off}")
                if p >= 5:
                    g.wait(lg=f"rv{p - 5}")
            e(f"buffer_load_dwordx4 {r('w2s', n, 1)}, {r('sB')}, {r(f'kb{p}')} offen offset:{1024 * n} lds", f"V{p}")
        items.append(It(it, 1 if n else 3))
    return items


def w2f(p, nb, off=0, n=4):
    k = (p * 4 + nb) * 4 + off
    return f"a[{k}:{k + n - 1}]"


def rdW2(p):
    kind, off = W2SLOT[p]
    items = [W(vm=f"V{p}")]
    for nb in range(4):
        for hf in range(2):
            items.append(E(f"ds_read_b64_tr_b16 {w2f(p, nb, 2 * hf, 2)}, {r('w2r', nb + (0 if kind == 'o' else 4), 1)} offset:{off + hf * 2048}", f"rv{p}"))
    return items


V("sg", 2, align=1); V("sac", 4); V("stv", 2)
EPS = f2u(1e-5)


def rb(dst, src):
    return [E(f"v_cvt_pk_bf16_f32 {dst}, {src}, {src}"), E(f"v_and_b32 {dst}, {r('hmask')}, {dst}")]


st = []
for tb in range(2):
    G = lambda k, tb=tb: r("gr", tb * 4 + k, 1)
    ta_, tb_ = (r("ta"), r("tb")) if tb == 0 else (r("tc"), r("td"))
    st.append(E(f"v_cndmask_b32 {ta_}, {G(0)}, {G(1)}, {r('m1')}"))
    st.append(E(f"v_cndmask_b32 {tb_}, {G(2)}, {G(3)}, {r('m1')}"))
    st.append(E(f"v_cndmask_b32 {ta_}, {ta_}, {tb_}, {r('m2')}"))
    st.append(E(f"ds_bpermute_b32 {r('sg', tb, 1)}, {r('bpa')}, {ta_}", "bp"))
mu, var, t, w = (r("u", k, 1) for k in range(4))
mb, rsd = r("stv", 0, 1), r("stv", 1, 1)
st.append(E(f"v_cndmask_b32 {mu}, {r('rs', 0, 1)}, {r('rs', 4, 1)}, {r('m3')}"))
st.append(E(f"v_mul_f32 {mu}, 0x{f2u(1 / 512):08x}, {mu}"))
st += rb(mb, mu)
st_b = [W(lg="bp")]
st_b.append(E(f"v_cndmask_b32 {var}, {r('sg', 0, 1)}, {r('sg', 1, 1)}, {r('m3')}"))
st_b.append(E(f"v_mul_f32 {var}, 0x{f2u(1 / 512):08x}, {var}"))
st_b.append(E(f"v_fma_f32 {var}, -{mu}, {mu}, {var}"))
st_b.append(E(f"v_max_f32 {var}, 0, {var}"))
st_b += rb(t, var)
st_b.append(E(f"v_add_f32 {t}, 0x{EPS:08x}, {t}"))
st_b += rb(t, t)
st_b.append(E(f"v_sqrt_f32 {t}, {t}", cost=2))
st_b.append(E(f"v_sub_f32 {mu}, {mu}, {mb}"))
st_b += rb(t, t)
st_b.append(E(f"v_rcp_f32 {rsd}, {t}", cost=2))
st_b.append(E("s_nop 0"))
st_b.append(E(f"v_mul_f32 {mu}, {mu}, {rsd}"))
st_b.append(E(f"v_mul_f32 {var}, {var}, {rsd}"))
st_b.append(E(f"v_mul_f32 {var}, {var}, {rsd}"))
st_b.append(E(f"ds_write_b64 {r('stw')}, {r('stv')}", "stw"))
st_b += rb(t, var)
st_b.append(E(f"v_add_f32 {t}, 0x{EPS:08x}, {t}"))
st_b += rb(t, t)
st_b.append(E(f"v_sqrt_f32 {t}, {t}", cost=2))
st_b += rb(mu, mu)
st_b += rb(t, t)
st_b.append(E(f"v_rcp_f32 {w}, {t}", cost=2))
st_b.append(E(f"v_fma_f32 {mu}, {mb}, {rsd}, {mu}"))
st_b.append(E(f"v_mul_f32 {r('sac', 0, 1)}, {rsd}, {w}"))
st_b.append(E(f"v_mul_f32 {r('sac', 1, 1)}, {mu}, {w}"))
st_b.append(E(f"v_mul_f32 {r('sac', 2, 1)}, {rsd}, {w}"))
st_b.append(E(f"v_mul_f32 {r('sac', 3, 1)}, {mu}, {w}"))
st_b.append(E("s_nop 0"))
st_b.append(E(f"v_permlane32_swap_b32 {r('sac', 0, 1)}, {r('sac', 2, 1)}"))
st_b.append(E(f"v_permlane32_swap_b32 {r('sac', 1, 1)}, {r('sac', 3, 1)}"))

main = []
at = {}


def add(items, name=None):
    if name:
        at[name] = len(main)
        if name.startswith("K") and SSET == "k":
            f0 = items[0].fn
            items = [It(lambda: (stamp(name, "k"), f0()), items[0].cost)] + items[1:]
    main.extend(items)


def bar(K):
    def fn():
        if K < 15:
            g.wait(vm=f"W{(K + 1) >> 1 if K < 11 else 7}", lg=0)
        else:
            g.wait(lg=0)
        e("s_barrier")
        if K in (3, 7, 11, 15):
            stamp(f"c{K >> 2}")
    return [It(fn, 0)]


for K in range(12):
    if K & 1:
        add(bar(K), f"B{K}")
    add(statM(K), f"K{K}"); add(mainM(K)); add(csM(K))
add(statM(12), "K12"); add(statM(13)); add(csM(12), "cs12"); add(mainM(12), "m12")
add(statM(14), "K13"); add(statM(15)); add(csM(13), "cs13"); add(csM(14)); add(mainM(13), "m13")
add(csM(15), "K14"); add(mainM(14), "m14")
add(bar(15), "C3")
add(mainM(15), "K15")
at["end"] = len(main)
A = lambda n: at[n]
QR = []
for K in range(1, 13):
    lo = A(f"K{K - 1}") - (1 if (K & 1 == 0) else 0)
    hi = (A(f"B{K}") - 4 if K & 1 else A(f"K{K}") - 2)
    if K == 8:
        QR += win([E(f"v_add_u32 {r(x, i, 1)}, 49152, {r(x, i, 1)}") for x in ("w1r", "csr") for i in range(2)], lo, lo, pace=False)
    QR += win(rdW(K) + rdC(K), lo, hi)
QR += win(rdC(13) + rdW(13), A("K12"), A("K13") - 6) + win(rdC(14), A("m12") + 6, A("K13") - 1)
QR += win(rdW(14), A("K13"), A("m13") + 2) + win(rdC(15), A("m13") + 3, A("K14") - 4)
QR += win(rdW(15), A("K14"), A("C3") - 3)
QX = []
for ei in range(1, 7):
    QX += win(rdX(ei), A(f"K{2 * ei - 1}") + 2, A(f"K{2 * ei}") - 4)
QX += win(rdX(7), A("K12") + 2, A("K13") - 4)
kvst = [It(lambda: (g.wait(lg="kvr"), e(f"buffer_store_dwordx4 {r('kvp', 0, 4)}, {r('kvs')}, {r('sWS')}, {r('kvo')} offen sc1", "kvst")), 3),
        E(f"buffer_store_dwordx4 {r('kvp', 4, 4)}, {r('kvs')}, {r('sWS')}, {T3} offen sc1", "kvst", 2)]
f1set = [It(lambda: (g.wait(vm="ep"), e(f"v_readfirstlane_b32 {r('tag', 0, 1)}, {r('pf', 0, 1)}"), e(f"v_readfirstlane_b32 {r('tag', 1, 1)}, {r('pf', 1, 1)}")), 3),
         It(lambda: (e(f"s_mul_i32 {r('tag', 0, 1)}, {r('tag', 0, 1)}, 0x9E3779B1"), e(f"s_mul_i32 {r('tag', 1, 1)}, {r('tag', 1, 1)}, 0x85EBCA6D")), 2),
         It(lambda: (e(f"s_add_u32 {r('tag', 0, 1)}, {r('tag', 0, 1)}, 0x7F4A7C15"), e(f"s_add_u32 {r('tag', 1, 1)}, {r('tag', 1, 1)}, 0x165667B1")), 2),
         It(lambda: (e(f"v_mov_b32 {r('vtag', 0, 1)}, {r('tag', 0, 1)}"), e(f"v_mov_b32 {r('vtag', 1, 1)}, {r('tag', 1, 1)}")), 2),
         It(lambda: (g.wait(vm="kvst"), setflag(r("f1a"), "f1")), 4)]
udma = [It(lambda: pollcheck(r("pf1o"), "pf1"), 4),
        It(lambda: (e(f"s_add_u32 {r('sA', 0, 1)}, {plo(13)}, {r('chan')}"), e(f"s_addc_u32 {r('sA', 1, 1)}, {phi(13)}, 0"), e(f"s_mov_b32 m0, {r('um0')}")), 3)]
for n in range(4):
    udma.append(E(f"buffer_load_dwordx4 {r('l16')}, {r('sA')}, {r('ush')} offen offset:{1024 * n} sc1 lds", "U"))
QV = win(kvd[NKV:] + kvst, 0, A("K1") - 3)
QV += win(dmaW1(2) + dmaX(2), A("K1") - 2, A("K2") + 6)
QV += win(dmaW1(3) + dmaX(3), A("K2") + 7, A("K4") - 1)
QV += win(dmaW1(4) + dmaX(4) + small2, A("K4"), A("K6") - 6)
QV += win(f1set[4:] + dmaW1(5) + dmaX(5), A("K6") - 5, A("K7") + 8)
QV += win(dmaW1(6) + dmaW1(7) + dmaX(6), A("K7") + 9, A("K9") + 6)
QV += win(dmaX(7), A("K9") + 7, A("K10") + 4)
QV += win(dmaW2(0), A("K10") + 5, A("K11") - 2)
QV += win(dmaW2(2), A("K11"), A("K12") - 1)
QV += win(dmaW2(1), A("K12"), A("K13") - 1)
QV += win([It(lambda: pollissue(r("pf1o"), "pf1"))] + dmaW2(3), A("K13"), A("K14") - 1)
QV += win(dmaW2(4) + udma, A("C3"), A("end") - 1)
csw = [It(lambda: (e("s_mov_b32 exec_lo, 0x00010001"), e("s_mov_b32 exec_hi, 0x00010001"),
                   e(f"ds_write_b128 {r('csw')}, {r('cs', 0, 4)}", "csw"), e(f"ds_write_b128 {r('csw2')}, {r('cs', 4, 4)}", "csw"),
                   e("s_mov_b64 exec, -1")), 5)]
g.names["csf"] = g.names.pop("ke")
V("b1f", 24)
rcs = [E(f"ds_read_b128 {r('csf', 4 * fb, 4)}, {r('csr0')} offset:{64 * fb}", "rcs") for fb in range(6)]
rb1 = [E(f"ds_read_b128 {r('b1f', 4 * fb, 4)}, {r('csr0')} offset:{B1T - CSX + 64 * fb}", "rb1") for fb in range(6)]
QM = win(f1set[:4], A("K3") + 2, A("K4") - 2)
QM += win(kcopy + btab, A("K7") + 4, A("K9") + 8)
QM += win(kwr, A("K9") + 9, A("K11") - 3)
QM += win([E(f"ds_write_b128 {r('za')}, {r('zz')}", "zw", 2)] + rb1, A("K11") + 1, A("K12") - 1)
QM += win(csw, A("m14") + 4, A("m14") + 5)
QM += win(rcs, A("C3"), A("C3") + 6)
QS = win(st, A("cs13") + 3, A("m13") + 6) + win(st_b, A("m13") + 9, A("end") - 1)
schedule(main, [QR, QX, QV, QM, QS])
g.free("w1s", "w1lds", "sW1", "so", "f1a", "skr", "kw", "sa", "sb", "sc", "kvp", "kvs", "pre", "kvo", "bb", "bw", "bt",
       "wa", "ca", "xf", "rs", "gr", "cs", "sg", "bpa", "u", "m1", "m2", "m3", "csw", "csw2", "stw", "stv", "w1r", "csr", "ones",
       "xrd", "zz", "za", "pf1o", "um0", "ush", "chan", "ptr8", "ptr10")
g.free("xbase", "xk", "wo", "wlim")
AC("w2b", 48, at=128)
stamp("g1")
stamp("g1", "k")

K0 = -2.0 * 0.7978845608028654 * 1.4426950408889634
K1 = K0 * 0.044715
S("k1", 2); V("k0v", 2); V("ge", 16); V("hp", 8)
e(f"s_mov_b32 {r('k1', 0, 1)}, 0x{f2u(K1):08x}")
e(f"s_mov_b32 {r('k1', 1, 1)}, 0x{f2u(K1):08x}")
e(f"v_mov_b32 {r('k0v', 0, 1)}, 0x{f2u(K0):08x}")
e(f"v_mov_b32 {r('k0v', 1, 1)}, 0x{f2u(K0):08x}")
g.wait(lg="rcs")
e(".p2align 3")


def gelu(b, tb):
    it = []
    sac = r("sac", tb * 2, 2)
    prs = [(fb, h) for fb in (2 * b, 2 * b + 1) for h in range(2)]
    U = lambda k: r("acc", (prs[k][0] * 2 + tb) * 4 + 2 * prs[k][1], 2)
    Tm = lambda k: r("ge", (tb & 1) * 8 + 2 * k, 2)
    T1r = lambda k, x: r("ge", (tb & 1) * 8 + 2 * k + x, 1)
    for k, (fb, h) in enumerate(prs):
        it.append(E(f"v_pk_fma_f32 {Tm(k)}, {r('csf', fb * 4 + 2 * h, 2)}, {sac}, {r('b1f', fb * 4 + 2 * h, 2)} op_sel:[0,1,0] op_sel_hi:[1,1,1] neg_lo:[0,1,0] neg_hi:[0,1,0]"))
    for k in range(4):
        it.append(E(f"v_pk_fma_f32 {U(k)}, {U(k)}, {sac}, {Tm(k)} op_sel_hi:[1,0,1]"))
    for k in range(4):
        it.append(E(f"v_pk_mul_f32 {Tm(k)}, {U(k)}, {U(k)}"))
    for k in range(4):
        it.append(E(f"v_pk_fma_f32 {Tm(k)}, {Tm(k)}, {r('k1')}, {r('k0v')}"))
    for k in range(4):
        it.append(E(f"v_pk_mul_f32 {Tm(k)}, {Tm(k)}, {U(k)}"))
    for k in range(4):
        for x in range(2):
            it.append(E(f"v_exp_f32 {T1r(k, x)}, {T1r(k, x)}"))
    for k in range(4):
        it.append(E(f"v_pk_add_f32 {Tm(k)}, {Tm(k)}, 1.0 op_sel_hi:[1,0]"))
    for k in range(4):
        for x in range(2):
            it.append(E(f"v_rcp_f32 {T1r(k, x)}, {T1r(k, x)}"))
    for k in range(4):
        it.append(E(f"v_pk_mul_f32 {Tm(k)}, {Tm(k)}, {U(k)}"))
    for k in range(4):
        it.append(E(f"v_cvt_pk_bf16_f32 {r('hp', (tb & 1) * 4 + k, 1)}, {T1r(k, 0)}, {T1r(k, 1)}"))
    it.append(E(f"buffer_store_dwordx4 {r('hp', (tb & 1) * 4, 4)}, {r('l16')}, {r('sWS')}, {r('ho', tb, 1)} offen offset:{1024 * b} sc1", "hst"))
    return it


AC("cf", 32, at=176); AC("cg", 32, at=208)


def rdF(it, c):
    return E(f"ds_read_b128 {r('cf', 4 * c, 4)}, {r('fa')} offset:{64 * it + 512 * c}", f"F{it}_{c}")


def rdG(it, d):
    return E(f"ds_read_b128 {r('cg', 4 * d, 4)}, {r('ga')} offset:{64 * it + 512 * (7 - d)}", f"G{it}_{d}")


run(gelu(0, 0)); run(gelu(0, 1)); run(gelu(1, 0)); run(gelu(1, 1))
g.wait(vm="U", lg=0)
e("s_barrier")
stamp("b5")
e(f"s_cmp_lt_u32 {r('nown')}, 3")
e(f"s_cselect_b32 {r('ho', 0, 1)}, 0x7f000000, {r('ho', 0, 1)}")
e(f"s_cselect_b32 {r('ho', 1, 1)}, 0x7f000000, {r('ho', 1, 1)}")
e(".p2align 3")
init = []
for k in range(8):
    init += [rdF(0, 7 - k), rdG(0, k)]
run(gelu(2, 0))
run(weave(gelu(2, 1), (init[:6], 30, 47)))
stamp("gelu")
g.free("acc", "csf", "b1f", "sac", "ge", "k0v", "k1", "ho", "nown")
V("cy", 32)

main = []
QF = win(init[6:], 0, 9)
for it in range(4):
    at[f"I{it}"] = len(main)
    for c in range(7, -1, -1):
        for d in range(0, 8 - c):
            t = c + d
            wt = None
            if d == 0:
                wt = dict(lg=f"F{it}_0") if (c == 0 and it) else dict(lg=f"G{it}_{7 - c}")
                if it and c in (5, 3, 2, 1):
                    wt = None if c != 5 else dict(lg=f"G{it}_3")
                if it and c == 4:
                    wt = None
                if it and c == 3:
                    wt = dict(lg=f"F{it}_0")
                if it and c == 0:
                    wt = None
            main.append(M(r("cy", 4 * t, 4), r("cf", 4 * c, 4), r("cg", 4 * d, 4), it == 0 and d == 0, wt))
            if it == 0 and c == 0:
                main.append(M(r("cy", 4 * t, 4), r("fd"), r("cg", 4 * d, 4), False))
            idx = len(main) - 1
            if it < 3:
                if d == 7 - c and c > 0:
                    QF += win([rdF(it + 1, c)], idx, idx + 2)
                if c == 0:
                    QF += win([rdG(it + 1, d)], idx, idx)
                    if d == 7:
                        QF += win([rdF(it + 1, 0)], idx, idx)
at["I4"] = len(main)
QW = win(rdW2(0) + rdW2(1) + rdW2(2) + rdW2(3) + rdW2(4), 8, A("I1") + 14)
QW += win(rdW2(5) + rdW2(6) + rdW2(7) + rdW2(8) + rdW2(9), A("I2") + 14, A("I4") - 6)
QV = win(dmaW2(5) + dmaW2(6) + dmaW2(7) + dmaW2(8) + dmaW2(9), 22, A("I2") - 2)
F2POS = int(opt.get("f2pos", 50))
QF2 = win([It(lambda: (g.wait(vm="hst"), setflag(r("f2a"), "f2")), 4)], F2POS, F2POS)
QV += win(dmaW2(10), A("I2") + 28, A("I3") + 4)
QV += win([It(lambda: pollissue(r("pf2o"), "pf2"))], A("I4") - 4, A("I4") - 4)
QM = win([E(f"s_lshr_b32 {r(f'kb{p}')}, {r(f'kb{p}')}, 5") for p in range(11)] +
         [E(f"s_min_u32 {r(f'kb{p}')}, {r(f'kb{p}')}, {42 * 1024}") for p in range(11)], A("I3") + 6, A("I4") - 2)
schedule(main, [QF, QW, QV, QM, QF2])
stamp("conv")
g.free("cf", "cg", "fd", "fa", "ga", "w2s", "w4k", "f2a", "hp")
V("ys", 8); V("cg", 24)
g.wait(lg=0)
e(f"s_cmp_lg_u32 {r('wodd')}, 0")
e("s_cbranch_scc1 L_odd1")
for k in range(4):
    e(f"ds_write_b128 {r('oa')}, {r('cy', 16 + 4 * k, 4)} offset:{1024 * k}")
e("s_branch L_j1")
g.label("L_odd1")
e("s_nop 4")
for k in range(4):
    e(f"ds_write_b128 {r('oa')}, {r('cy', 4 * k, 4)} offset:{1024 * k}")
g.wait(lg=0)
for k in range(8):
    e(f"v_pk_mov_b32 {r('cy', 2 * k, 2)}, {r('cy', 16 + 2 * k, 2)}, {r('cy', 16 + 2 * k, 2)} op_sel:[0,1]")
g.label("L_j1")
e(f"s_add_u32 m0, {r('own')}, 6144")
g.wait(lg=0)
e(f"buffer_load_dwordx4 {r('xs', 0, 1)}, {r('sX')}, {r('tile0')} offen lds", "xt")
e("s_barrier")
for k in range(4):
    e(f"ds_read_b128 {r('cg', 4 * k, 4)}, {r('pa')} offset:{1024 * k}", f"ex{k}")
e(f"buffer_load_dwordx4 {r('xs', 1, 1)}, {r('sX')}, {r('tile0')} offen offset:1024 lds", "xt")
for k in range(4):
    g.wait(lg=f"ex{k}")
    for hh in range(2):
        e(f"v_pk_add_f32 {r('cy', 4 * k + 2 * hh, 2)}, {r('cy', 4 * k + 2 * hh, 2)}, {r('cg', 4 * k + 2 * hh, 2)}")
    for hh in range(2):
        e(f"v_cvt_pk_bf16_f32 {r('cg', 16 + 2 * k + hh, 1)}, {r('cy', 4 * k + 2 * hh, 1)}, {r('cy', 4 * k + 2 * hh + 1, 1)}")
    e(f"ds_write_b64 {r('yw')}, {r('cg', 16 + 2 * k, 2)} offset:{4096 + 512 * k}", f"yw{k}")
    if k & 1:
        e(f"ds_read_b128 {r('ys', 2 * (k - 1), 4)}, {r('oa')} offset:{4096 + 512 * (k - 1)}", f"yr{k >> 1}")
g.wait(lg="yr0")
e(f"buffer_store_dwordx4 {r('ys', 0, 4)}, {r('l16')}, {r('sWS')}, {r('yo')} offen sc1", "yst")
g.wait(lg="yr1")
e(f"buffer_store_dwordx4 {r('ys', 4, 4)}, {r('l16')}, {r('sWS')}, {r('yo')} offen offset:1024 sc1", "yst")
stamp("yst")
rv10 = rdW2(10)
g.free("cy", "pa", "yw", "cg", "yo")

AC("hfa", 80, at=176)
V("hf0", 44); V("hf1", 44); V("hf2", 8); V("ac2", 32)
HF = {}
for s_ in range(4):
    for p_ in range(11):
        k_ = s_ * 11 + p_
        HF[s_, p_] = r(f"hf{s_}", 4 * p_, 4) if k_ < 24 else r("hfa", 4 * (k_ - 24), 4)
pollcheck(r("pf2o"), "pf2")
stamp("f2")
hl = [E(f"buffer_load_dwordx4 {HF[s, p]}, {r('hv', s, 1)}, {r('sWS')}, {r(f'kb{p}')} offen sc1", f"H{s}_{p}")
      for s in range(4) for p in range(11)]


def g2(s):
    return [M(r("ac2", (s & 1) * 16 + 4 * nb, 4), w2f(p, nb), HF[s, p], p == 0, dict(vm=f"H{s}_{p}") if nb == 0 else None)
            for p in range(11) for nb in range(4)]


def pwr(s):
    return [E(f"ds_write_b128 {r('pw', s, 1)}, {r('ac2', (s & 1) * 16 + 4 * nb, 4)} offset:{1024 * nb}", "pw", 2) for nb in range(4)]


V("xr", 8); V("xfp", 16); V("xn", 16); V("sv", 2)
pre = [W(vm="xt"), E(f"ds_read_b64 {r('sv')}, {r('svr')}", "sv")] + rv10[1:]
for nb in range(4):
    pre.append(E(f"ds_read_b64 {r('xr', 2 * nb, 2)}, {r('ea', nb, 1)} offset:6144", "xr"))
pre.append(W(lg="xr"))
pre += unpack("xfp", 0, "xr", 0, 8)
for d in range(8):
    pre.append(E(f"v_pk_add_f32 {r('xn', 2 * d, 2)}, {r('xfp', 2 * d, 2)}, {r('sv')} op_sel_hi:[1,0] neg_lo:[0,1] neg_hi:[0,1]"))
for d in range(8):
    pre.append(E(f"v_cvt_pk_bf16_f32 {r('xr', d, 1)}, {r('xn', 2 * d, 1)}, {r('xn', 2 * d + 1, 1)}"))
pre += unpack("xn", 0, "xr", 0, 8)
for d in range(8):
    pre.append(E(f"v_pk_mul_f32 {r('xn', 2 * d, 2)}, {r('xn', 2 * d, 2)}, {r('sv')} op_sel:[0,1] op_sel_hi:[1,1]"))
for d in range(8):
    pre.append(E(f"v_cvt_pk_bf16_f32 {r('xr', d, 1)}, {r('xn', 2 * d, 1)}, {r('xn', 2 * d + 1, 1)}"))
pre += unpack("xn", 0, "xr", 0, 8)
run(hl[:8])
run(weave(pre, (hl[8:NH0], 0, 60)))
g.wait(vm="yst")
setflag(r("f3a"), "f3")
g.free("ys", "xr", "sv", "svr", "pf2o", "w2r")
stamp("f3set")
ps_alias = {}
main = g2(0) + g2(1) + g2(2) + g2(3)[:8]
QH = win(hl[NH0:], 2, 2 + 4 * (44 - NH0))
QH += win([It(lambda: pollissue(r("pf3o"), "pf3"))], 120, 120)
QP = win(pwr(0), 52, 64) + win(pwr(1), 96, 108) + win(pwr(2), 135, 139)
schedule(main, [QH, QP])
stamp("g2s2")
g.wait(lg=0)
e("s_barrier")
g.free("hf0", "hf1")
V("ps", 48); V("zr", 8); V("b2f", 16)
g.names["hfv"] = ("v", g.names["ps"][1], 32)
rp = [E(f"ds_read_b128 {r('b2f', 4 * nb, 4)}, {r('csr0')} offset:{B2T - CSX + 64 * nb}", "rb2") for nb in range(4)]
rp += [E(f"ds_read_b128 {r('ps', 4 * k, 4)}, {r('psr')} offset:{PX + 1024 * k}", f"rp{k}") for k in range(12)]
adds = [W(lg="rp11")]
for k in range(16):
    adds.append(E(f"v_add_f32 {r('ps', k, 1)}, {r('ps', k, 1)}, {r('ps', 16 + k, 1)}"))
    adds.append(E(f"v_add_f32 {r('b2f', k, 1)}, {r('b2f', k, 1)}, {r('ps', 32 + k, 1)}"))
zd = [It(lambda: pollcheck(r("pf3o"), "pf3"), 4),
      It(lambda: (e(f"s_add_u32 m0, {r('own')}, 8192"), e(f"s_add_u32 {T3}, {r('zo')}, {131072 - 1024}"),
                  e(f"buffer_load_dwordx4 {r('zs')}, {r('sWS')}, {r('zo')} offen sc1 lds", "z")), 3),
      E(f"buffer_load_dwordx4 {r('zs')}, {r('sWS')}, {T3} offen offset:1024 sc1 lds", "z")]
ZPOS = int(opt.get("zpos", 30))
schedule(g2(3)[8:], [win(rp, 0, 9), win(adds, 15, 35), win(zd, ZPOS, ZPOS + 3)])
stamp("g2")
S("nl2", 2)
e(f"s_mov_b32 {r('nl2', 0, 1)}, 0x{f2u(-1.4426950408889634):08x}")
e(f"s_mov_b32 {r('nl2', 1, 1)}, 0x{f2u(-1.4426950408889634):08x}")
srd("sA", 11, 2097152)
Mm = lambda k: r("ps", 2 * k, 2)
Tt = lambda k: r("ps", 16 + 2 * k, 2)
e(".p2align 3")
for k in range(8):
    e(f"v_pk_add_f32 {Mm(k)}, {Mm(k)}, {r('b2f', 2 * k, 2)}")
for k in range(8):
    e(f"v_pk_add_f32 {Mm(k)}, {Mm(k)}, {r('ac2', 16 + 2 * k, 2)}")
for k in range(8):
    e(f"v_pk_mul_f32 {Tt(k)}, {Mm(k)}, {r('nl2')}")
for k in range(16):
    e(f"v_exp_f32 {r('ps', 16 + k, 1)}, {r('ps', 16 + k, 1)}")
for k in range(8):
    e(f"v_pk_mul_f32 {Mm(k)}, {Mm(k)}, {r('xn', 2 * k, 2)}")
for k in range(8):
    e(f"v_pk_add_f32 {Tt(k)}, {Tt(k)}, 1.0 op_sel_hi:[1,0]")
for k in range(16):
    e(f"v_rcp_f32 {r('ps', 16 + k, 1)}, {r('ps', 16 + k, 1)}")
g.wait(vm="z")
stamp("z")
for nb in range(4):
    e(f"ds_read_b64_tr_b16 {r('zr', 2 * nb, 2)}, {r('zt')} offset:{8192 + 512 * nb}", f"zr{nb}")
for k in range(8):
    e(f"v_pk_mul_f32 {Mm(k)}, {Mm(k)}, {Tt(k)}")
for nb in range(4):
    g.wait(lg=f"zr{nb}")
    run(unpack("ps", 16 + 4 * nb, "zr", 2 * nb, 2))
    for k in (2 * nb, 2 * nb + 1):
        e(f"v_pk_fma_f32 {Mm(k)}, {Mm(k)}, {Tt(k)}, {r('xfp', 2 * k, 2)}")
    for k in (2 * nb, 2 * nb + 1):
        e(f"v_cvt_pk_bf16_f32 {r('zr', k, 1)}, {r('ps', 2 * k, 1)}, {r('ps', 2 * k + 1, 1)}")
    e(f"ds_write_b64 {r('ea', nb, 1)}, {r('zr', 2 * nb, 2)} offset:10240", "ow")
e(f"ds_read_b128 {r('ps', 32, 4)}, {r('oa')} offset:10240", "or0")
e(f"ds_read_b128 {r('ps', 36, 4)}, {r('oa')} offset:11264", "or1")
g.wait(lg="or0")
e(f"buffer_store_dwordx4 {r('ps', 32, 4)}, {r('xs', 0, 1)}, {r('sA')}, {r('tile0')} offen {OPOL}", "ost")
g.wait(lg="or1")
e(f"buffer_store_dwordx4 {r('ps', 36, 4)}, {r('xs', 1, 1)}, {r('sA')}, {r('tile0')} offen offset:1024 {OPOL}", "ost")
stamp("out")
e(f"s_or_b32 {T2}, s2, {r('wave')}")
e(f"s_cmp_lg_u32 {T2}, 0")
e("s_cbranch_scc1 L_nobump")
e(f"v_mul_u32_u24 {r('ta')}, {FSTR}, {r('h4')}")
e(f"v_lshl_add_u32 {r('ta')}, {r('i15')}, 4, {r('ta')}")
if SPINMAX:
    e(f"s_mov_b32 {T4}, 0")
g.label("L_bump")
e(f"s_mov_b32 {T2}, {F1B}")
for k in range(8):
    e(f"buffer_load_dwordx4 {r('hfv', 4 * k, 4)}, {r('ta')}, {r('sWS')}, {T2} offen sc1")
    e(f"s_add_u32 {T2}, {T2}, {4 * FSTR}")
e("s_waitcnt vmcnt(0)")
e(f"s_mov_b64 {r('nl2')}, 0")
for k in range(16):
    e(f"v_cmp_ne_u64 vcc, {r('tag')}, {r('hfv', 2 * k, 2)}")
    e(f"s_or_b64 {r('nl2')}, {r('nl2')}, vcc")
if SPINMAX:
    e(f"s_add_u32 {T4}, {T4}, 1")
    e(f"s_cmp_gt_u32 {T4}, {SPINMAX}")
    e("s_cbranch_scc1 L_nobump")
e(f"s_cmp_lg_u64 {r('nl2')}, 0")
e("s_cbranch_scc1 L_bump")
e(f"s_mov_b32 {T2}, {EPOCH}")
e("s_mov_b64 exec, 1")
e(f"buffer_store_dwordx2 {r('vtag')}, {r('zero')}, {r('sWS')}, {T2} offen sc1")
e("s_mov_b64 exec, -1")
g.label("L_nobump")
if STAMPS:
    e("s_waitcnt vmcnt(0)")
    stamp("end")
    flush_stamps(True)
    e(f"s_lshl_b32 {T2}, s2, 2")
    e(f"s_add_u32 {T2}, {T2}, {r('wave')}")
    e(f"s_lshl_b32 {T2}, {T2}, 7")
    e(f"s_add_u32 {T2}, {T2}, {STAMP}")
    e(f"v_lshlrev_b32 {r('ta')}, 2, {r('lane')}")
    e("s_mov_b32 exec_hi, 0")
    e(f"buffer_store_dword {r('stamps')}, {r('ta')}, {r('sWS')}, {T2} offen")
    if DBG:
        e(f"s_cmp_lg_u32 {T2}, {STAMP + (DBG - 1) * 512}")
        e("s_cbranch_scc1 L_end")
        e(f"v_readfirstlane_b32 {T3}, {r('stamps')}")
        e(f"v_subrev_u32 {r('tb')}, {T3}, {r('stamps')}")
        e(f"global_store_dword {r('ta')}, {r('tb')}, {ptr(12)}")
g.label("L_end")
e("s_endpgm")
for t_ in tails:
    t_()

body = g.finish()
hdr = open("cdna_kernels/" + NAME + ".s.ref").read().split("; @launch")[0]
nv = 256 + g.hw["a"]
txt = f"""{hdr}; @launch grid=(256,1,1) block=(256,1,1) lds={LDSZ}
.amdgcn_target "amdgcn-amd-amdhsa--gfx950"
.text
.globl {NAME}_kernel
.p2align 8
.type {NAME}_kernel,@function
{NAME}_kernel:
{body}
    s_endpgm
.section .rodata,"a"
.p2align 6
.amdhsa_kernel {NAME}_kernel
  .amdhsa_next_free_vgpr {nv}
  .amdhsa_next_free_sgpr 102
  .amdhsa_accum_offset 256
  .amdhsa_group_segment_fixed_size 0
  .amdhsa_kernarg_size 112
  .amdhsa_user_sgpr_count 2
  .amdhsa_user_sgpr_kernarg_segment_ptr 1
  .amdhsa_system_sgpr_workgroup_id_x 1
.end_amdhsa_kernel
"""
import subprocess, re
open("_g.s", "w").write(txt.replace("CODE_BYTES", "0x1000"))
subprocess.check_call(["clang", "-x", "assembler", "-target", "amdgcn-amd-amdhsa", "-mcpu=gfx950", "-c", "_g.s", "-o", "_g.o"])
hh = subprocess.check_output(["llvm-objdump", "-h", "_g.o"]).decode()
size = int(re.search(r"\.text\s+([0-9a-f]+)", hh).group(1), 16)
txt = txt.replace("CODE_BYTES", str((size - 256) & ~3))
open(OUT, "w").write(txt)
print("code bytes", size, "instrs", len(g.ins), "nops", g.nops, "hw", g.hw, "stamps", nst[0], " ".join(stnames))
```

```python
import sys, struct
from dsl import Gen, It, win, schedule

NAME = "recurrent_scan__ssm_conv_h3__mixer_channel_mlp__prompt"
opt = dict(a.split("=") for a in sys.argv[2:])
OUT = sys.argv[1]
MAP1 = int(opt.get("map1", 4))
STAMPS = int(opt.get("stamps", 0))
KVPOL = opt.get("kvpol", "")
XPOL0 = opt.get("xpol", "")
SPINMAX = int(opt.get("spinmax", 0))
PREDIV = int(opt.get("prediv", 16))
OPOL = opt.get("opol", "")
DBG = int(opt.get("dbg", 0))
SSET = opt.get("sset", "main")
TOUCH = int(opt.get("touch", 0))
NH0 = int(opt.get("nh0", 16))
NX0 = int(opt.get("nx0", 7))

KP = int(opt.get("kp", 4352))
KVT, HB, YT, FL, EPOCH, STAMP = 0, 0x240000, 0x800000, 0xA40000, 0xB00000, 0xC00000
F1B, F2B, F3B, FSTR = FL, FL + 0x40000, FL + 0x80000, 4352
WSZ = 0xD00000
XST, KVIMG, CSX, STT = 98816, 147968, 156288, 156672
FP, GP = 4160, 4576
WR = 33280
UB0 = 33280
S3, S4 = 57856, 82432
PX = 0
B1T, B2T = 157696, 158080
LDSZ = 158336


def f2u(x):
    return struct.unpack("<I", struct.pack("<f", x))[0]


g = Gen()
e, r = g.e, g.r
V = lambda n, c=1, **k: g.alloc("v", n, c, **k)
S = lambda n, c=1, **k: g.alloc("s", n, c, **k)
AC = lambda n, c=1, **k: g.alloc("a", n, c, **k)
W = lambda **k: It(lambda: g.wait(**k), 0.3)
E = lambda s, t=None, cost=None: It(lambda: e(s, t), cost or (1.2 if s.startswith(('ds_', 'buffer_', 'global_')) else 0.3 if s.startswith('s_') else 1))


def run(items):
    for it in items:
        it()


def weave(main, *bgs):
    slots = [[] for _ in main]
    for items, a, b in bgs:
        b = min(b, len(main) - 1)
        n = len(items)
        for k, it in enumerate(items):
            slots[a + (k * (b - a + 1)) // max(n, 1)].append(it)
    out = []
    for m, s in zip(main, slots):
        out.append(m)
        out.extend(s)
    return out


S("karg", 2, at=0); S("wg", 1, at=2); S("t0", 1, at=3)
S("t45", 4, at=4)
for i_ in range(14):
    S(f"ptr{i_}", 2, at=8 + 2 * i_)
V("tid", 1, at=0)
nst = [0]
stnames = []
pend = []
if STAMPS:
    S("st", 8, at=94, align=2)
    V("stamps", 1, at=1)


def flush_stamps(force=False):
    if pend and (force or len(pend) == 4) and g.smem_out:
        g.wait(lg=0)
    if not g.smem_out:
        for k in pend:
            e(f"v_writelane_b32 {r('stamps')}, {r('st', 2 * (k % 4), 1)}, {k}")
        pend.clear()


def stamp(name, grp="main"):
    if STAMPS and (grp == SSET or name in ("start", "end")) and name not in opt.get("skip", "").split(","):
        assert nst[0] < 32
        flush_stamps()
        e(f"{'s_memtime' if STAMPS == 2 else 's_memrealtime'} {r('st', 2 * (nst[0] % 4), 2)}")
        pend.append(nst[0])
        nst[0] += 1
        stnames.append(name)


_wait = g.wait
_wn = [0]
VM0 = int(opt.get("vm0", 0))


def wait_hook(vm=None, lg=None):
    hook = SSET == "vm" and vm is not None and not str(vm).startswith("H")
    if hook:
        _wn[0] += 1
        hook = VM0 < _wn[0] <= VM0 + 15
    if hook:
        stamp(f"b{vm}", "vm")
    _wait(vm=vm, lg=lg)
    if hook:
        stamp(f"a{vm}", "vm")


g.wait = wait_hook


def ptr(i):
    if i == 13 and "ptr13" not in g.names:
        return r("sWS", 0, 2)
    return r(f"ptr{i}")


def plo(i):
    return "s" + ptr(i)[2:].split(":")[0]


def phi(i):
    return "s" + ptr(i).split(":")[1][:-1]


def srd(name, pi, nbytes, add=None):
    if add is None:
        e(f"s_mov_b64 {r(name,0,2)}, {ptr(pi)}")
    else:
        e(f"s_add_u32 {r(name,0,1)}, {plo(pi)}, {add}")
        e(f"s_addc_u32 {r(name,1,1)}, {phi(pi)}, 0")
    e(f"s_mov_b32 {r(name,2,1)}, {nbytes}")
    e(f"s_mov_b32 {r(name,3,1)}, 0x00020000")


T0, T1_, T2, T3, T4 = "s3", "s4", "s5", "s6", "s7"
ABL = opt.get("abl", "").split(",")
_e0 = g.e


def e(text, tag=None):
    t = tag or ""
    if ("x" in ABL and t.startswith("X") and t != "X0") or ("w" in ABL and t.startswith("W") and t != "W0") or \
            ("v" in ABL and t.startswith("V")):
        g.vm.append(tag)
        g.vm.pop()
        g.vm.insert(0, tag)
        return
    hook = SSET == "iss" and (text.startswith(("buffer_", "global_", "s_barrier")) or (text.startswith("s_waitcnt") and "vmcnt" in text))
    if hook:
        _in[0] += 1
        hook = VM0 < _in[0] <= VM0 + 15
    if hook:
        stamp("b" + (tag or text.split()[0][2:6]), "iss")
    _e0(text, tag)
    if hook:
        stamp("a", "iss")


_in = [0]
g.e = e


stamp("start")
e("s_load_dwordx16 s[8:23], s[0:1], 0")
e("s_load_dwordx8 s[24:31], s[0:1], 64")
e("s_load_dwordx4 s[32:35], s[0:1], 96")
e("s_cmp_ge_u32 s2, 256")
e("s_cbranch_scc1 L_end")
for n in ("lane", "ta", "tb", "tc", "td", "r8", "pc", "zero", "i15", "h4", "l16", "oa", "fa", "ga", "pa", "yw", "zs", "zt",
          "pf1o", "pf2o", "pf3o", "psr", "svr", "kw", "za", "bpa", "csw", "csw2", "csr0", "stw"):
    V(n)
V("vtag", 2); V("xs", 4, align=1); V("w2s", 4, align=1); V("w2r", 8, align=1); V("hv", 4, align=1)
V("pw", 3, align=1); V("ea", 4, align=1); V("pf", 2)
V("xrd", 2, align=1); V("w1r", 2, align=1); V("csr", 2, align=1); V("w1s", 3, align=1)
AC("fd", 4, at=240); AC("ones", 4, at=244); AC("zz", 4, at=248)
for n in ("wave", "T1", "q", "tt2", "ns", "rot", "b0", "nown", "tok16", "ns128", "tile0", "own", "hmask", "so",
          "f1a", "f2a", "f3a", "yo", "zo", "um0", "ush"):
    S(n)
sh_ = PREDIV.bit_length() - 1
V("pre")
e(f"s_lshr_b32 {T1_}, s2, 3")
e(f"v_lshrrev_b32 {r('tc')}, {sh_}, v0")
e(f"s_and_b32 {T2}, {T1_}, {PREDIV - 1}")
e(f"v_lshl_add_u32 {r('tc')}, {r('tc')}, {sh_}, {T2}")
e(f"v_lshlrev_b32 {r('tc')}, 7, {r('tc')}")
e(f"v_min_u32 {r('tc')}, CODE_BYTES, {r('tc')}")
e(f"s_getpc_b64 {r('t45', 2, 2)}")
e(f"global_load_dword {r('pre')}, {r('tc')}, {r('t45', 2, 2)}", "pre")
e(f"v_and_b32 {r('lane')}, 63, v0")
e(f"v_lshrrev_b32 {r('ta')}, 6, v0")
e(f"s_and_b32 {T0}, s2, 7")
e(f"v_readfirstlane_b32 {r('wave')}, {r('ta')}")
if MAP1 == 8:
    e(f"s_lshr_b32 {T2}, {T1_}, 4")
    e(f"s_lshl_b32 {r('T1')}, {T0}, 1")
    e(f"s_add_u32 {r('T1')}, {r('T1')}, {T2}")
    e(f"s_and_b32 {r('q')}, {T1_}, 15")
    e(f"s_lshl_b32 {T2}, {T2}, 2")
    e(f"s_add_u32 {r('rot')}, {T2}, {r('q')}")
else:
    e(f"s_lshr_b32 {T2}, {T0}, 1")
    e(f"s_lshl_b32 {T2}, {T2}, 2")
    e(f"s_lshr_b32 {T3}, {T1_}, 3")
    e(f"s_add_u32 {r('T1')}, {T2}, {T3}")
    e(f"s_and_b32 {T2}, {T0}, 1")
    e(f"s_lshl_b32 {T2}, {T2}, 3")
    e(f"s_and_b32 {T3}, {T1_}, 7")
    e(f"s_add_u32 {r('q')}, {T2}, {T3}")
    e(f"s_lshl_b32 {T2}, {r('T1')}, 1")
    e(f"s_add_u32 {r('rot')}, {T2}, {r('q')}")
e(f"s_and_b32 {r('rot')}, {r('rot')}, 7")
e(f"s_lshr_b32 {T2}, {r('q')}, 3")
e(f"s_lshl_b32 {r('tt2')}, {r('T1')}, 1")
e(f"s_add_u32 {r('tt2')}, {r('tt2')}, {T2}")
e(f"s_and_b32 {r('ns')}, {r('q')}, 7")
V("k0"); V("kd", 2, align=1); V("sho")
e(f"v_lshrrev_b32 {r('r8')}, 3, {r('lane')}")
e(f"v_and_b32 {r('pc')}, 7, {r('lane')}")
e(f"s_lshl_b32 {T2}, {r('tt2')}, 2")
e(f"s_add_u32 {r('tok16')}, {T2}, {r('wave')}")
e(f"s_lshl_b32 {T2}, {r('tok16')}, 14")
e(f"s_lshl_b32 {r('ns128')}, {r('ns')}, 7")
e(f"s_add_u32 {r('tile0')}, {T2}, {r('ns128')}")
e(f"s_mul_i32 {r('own')}, {r('wave')}, 12288")
e(f"s_add_u32 {r('own')}, {r('own')}, {XST}")
S("sA", 4); S("sB", 4); S("sX", 4); S("sW1", 4); S("sWS", 4)
for nm, sz in (("sX", 2097152), ("sW1", 1409024)):
    e(f"s_mov_b32 {r(nm,2,1)}, {sz}")
    e(f"s_mov_b32 {r(nm,3,1)}, 0x00020000")
for c in range(3):
    e(f"v_add_u32 {r('ta')}, {64 * c}, {r('lane')}")
    e(f"v_mul_u32_u24 {r('tb')}, 43691, {r('ta')}")
    e(f"v_lshrrev_b32 {r('tb')}, 19, {r('tb')}")
    e(f"v_mul_u32_u24 {r('tc')}, 12, {r('tb')}")
    e(f"v_sub_u32 {r('tc')}, {r('ta')}, {r('tc')}")
    e(f"v_lshrrev_b32 {r('td')}, 2, {r('tb')}")
    e(f"v_and_b32 {r('td')}, 2, {r('td')}")
    e(f"v_xor_b32 {r('tc')}, {r('tc')}, {r('td')}")
    e(f"v_mul_u32_u24 {r('tb')}, 2752, {r('tb')}")
    e(f"v_lshl_add_u32 {r('tb')}, {r('tc')}, 4, {r('tb')}")
    e(f"v_subrev_u32 {r('w1s', c, 1)}, {1024 * c}, {r('tb')}")
e(f"s_mul_i32 {r('b0')}, {r('q')}, 43")
e(f"s_add_u32 {r('nown')}, {r('b0')}, 43")
e(f"s_lshr_b32 {r('b0')}, {r('b0')}, 4")
e(f"s_lshr_b32 {r('nown')}, {r('nown')}, 4")
e(f"s_sub_u32 {r('nown')}, {r('nown')}, {r('b0')}")
S("w1lds"); S("xbase"); S("xk"); S("wo"); S("wlim")
e(f"s_lshl_b32 {T3}, {r('b0')}, 6")
e(f"s_lshl_b32 {T2}, {r('T1')}, 2")
e(f"s_add_u32 {T2}, {T2}, {r('wave')}")
e(f"s_lshl_b32 {r('xbase')}, {T2}, 15")
e(f"s_lshl_b32 {r('xk')}, {r('rot')}, 7")
e(f"s_mul_i32 {T4}, {r('wave')}, {16 * 2752}")
e(f"s_add_u32 {T4}, {T4}, {T3}")
e(f"s_add_u32 {r('wlim')}, {T4}, {512 * 2752}")
e(f"s_mul_i32 {T2}, {r('rot')}, {64 * 2752}")
e(f"s_add_u32 {r('wo')}, {T2}, {T4}")
e(f"s_mul_i32 {r('w1lds')}, {r('wave')}, 3072")
e(f"s_add_u32 {r('w1lds')}, {r('w1lds')}, {WR}")
e(f"v_lshrrev_b32 {r('ta')}, 1, {r('r8')}")
e(f"v_xor_b32 {r('ta')}, {r('ta')}, {r('pc')}")
e(f"v_lshlrev_b32 {r('ta')}, 4, {r('ta')}")
e(f"v_lshl_add_u32 {r('xs', 0, 1)}, {r('r8')}, 10, {r('ta')}")
e(f"v_xor_b32 {r('tb')}, 64, {r('xs', 0, 1)}")
e(f"v_add_u32 {r('xs', 1, 1)}, 7168, {r('tb')}")
e(f"v_add_u32 {r('xs', 2, 1)}, {2 * 7168}, {r('xs', 0, 1)}")
e(f"v_add_u32 {r('xs', 3, 1)}, {3 * 7168}, {r('tb')}")
g.wait(lg=0)
e(f"s_mov_b64 {r('sX',0,2)}, {ptr(0)}")
e(f"s_mov_b64 {r('sW1',0,2)}, {ptr(7)}")


def dmaW1(n):
    items = []
    for c in range(3):
        def it(c=c):
            if c == 0:
                e(f"s_add_u32 m0, {r('w1lds')}, {(n % 4) * 12288}")
                if n:
                    e(f"s_cmp_ge_u32 {r('wo')}, {r('wlim')}")
                    e(f"s_cselect_b32 {T2}, {512 * 2752}, 0")
                    e(f"s_sub_u32 {r('wo')}, {r('wo')}, {T2}")
            e(f"buffer_load_dwordx4 {r('w1s', c, 1)}, {r('sW1')}, {r('wo')} offen offset:{1024 * c} lds", f"W{n}")
            if c == 2:
                e(f"s_add_u32 {r('wo')}, {r('wo')}, {64 * 2752}")
        items.append(It(it, (2, 1.2, 1.5)[c]))
    return items


def dmaX(ei):
    items = []
    for n in range(4):
        def it(n=n):
            xo = r("so")
            if n == 0:
                e(f"s_add_u32 m0, {r('own')}, {(ei % 3) * 4096}")
                e(f"s_or_b32 {xo}, {r('xk')}, {r('xbase')}")
            pol = XPOL0 if ei < 1 else ""
            e(f"buffer_load_dwordx4 {r('xs', n, 1)}, {r('sX')}, {xo} offen offset:{1024 * n} {pol} lds", f"X{ei}")
            if n == 1:
                e(f"s_add_u32 {r('xk')}, {r('xk')}, 128")
            if n == 2:
                e(f"s_and_b32 {r('xk')}, {r('xk')}, 0x3ff")
        items.append(It(it, (1.8, 1.5, 1.5, 1.2)[n]))
    return items


run(dmaX(0) + dmaW1(0) + dmaW1(1))
S("sD")
e(f"s_lshl_b32 {T2}, s2, 2")
e(f"s_load_dword {r('sD')}, {ptr(5)}, {T2}")
stamp("p0iss")
srd("sWS", 13, WSZ)
g.free("ptr0", "ptr6", "ptr7", "ptr13", "karg", "rot")
if not DBG:
    g.free("ptr12")
e(f"v_lshlrev_b32 {r('tb')}, 4, {r('pc')}")
e(f"v_lshl_add_u32 {r('ta')}, {r('r8')}, 11, {r('tb')}")
e(f"v_add_u32 {r('k0')}, {r('tile0')}, {r('ta')}")
e(f"v_lshl_add_u32 {r('ta')}, {r('r8')}, 10, {r('tb')}")
e(f"v_add_u32 {r('kd', 1, 1)}, {r('tile0')}, {r('ta')}")
e(f"v_subrev_u32 {r('kd', 0, 1)}, 8192, {r('kd', 1, 1)}")
e(f"v_lshlrev_b32 {r('l16')}, 4, {r('lane')}")
e(f"s_lshl_b32 {T3}, {r('ns')}, 9")
e(f"v_add_u32 {r('sho')}, {T3}, {r('l16')}")
e(f"v_mov_b32 {r('zero')}, 0")
S("wodd"); S("whi"); S("chan"); V("sa"); V("sb"); V("bb", 2, align=1)
e(f"s_and_b32 {r('wodd')}, {r('wave')}, 1")
e(f"s_lshr_b32 {r('whi')}, {r('wave')}, 1")
e(f"s_lshl_b32 {T2}, s2, 1")
e(f"s_add_u32 {r('chan')}, {T2}, {r('whi')}")
e(f"s_lshl_b32 {r('chan')}, {r('chan')}, 12")
e(f"s_add_u32 {plo(4)}, {plo(4)}, {r('chan')}")
e(f"s_addc_u32 {phi(4)}, {phi(4)}, 0")
e(f"s_lshl_b32 {T3}, {r('wodd')}, 11")
e(f"v_add_u32 {r('sa')}, {T3}, {r('l16')}")
e(f"v_subrev_u32 {r('sb')}, 8, {r('sa')}")
S("kim")
e(f"s_lshl_b32 {r('kim')}, {r('wave')}, 12")
e(f"s_add_u32 {r('kim')}, {r('kim')}, {S4}")
srd("sA", 1, 2097152)
srd("sB", 2, 2097152)
g.free("ptr1", "ptr2")
V("kvw"); V("kvr"); V("kvs"); V("kra"); V("sra"); V("bw", 2, align=1)
e(f"v_and_b32 {r('i15')}, 15, {r('lane')}")
e(f"v_lshrrev_b32 {r('h4')}, 4, {r('lane')}")
e(f"v_add_u32 {r('oa')}, {r('own')}, {r('l16')}")
e(f"v_lshlrev_b32 {r('ta')}, 4, {r('pc')}")
e(f"v_lshl_add_u32 {r('ta')}, {r('r8')}, 8, {r('ta')}")
e(f"v_add_u32 {r('kra')}, {r('kim')}, {r('ta')}")
e(f"v_lshl_add_u32 {r('sra')}, {r('pc')}, 6, {r('kim')}")
e(f"v_lshrrev_b32 {r('ta')}, 1, {r('i15')}")
e(f"v_xor_b32 {r('ta')}, {r('ta')}, {r('h4')}")
e(f"v_lshlrev_b32 {r('ta')}, 4, {r('ta')}")
e(f"v_lshl_add_u32 {r('ta')}, {r('i15')}, 7, {r('ta')}")
e(f"v_add_u32 {r('xrd', 0, 1)}, {r('own')}, {r('ta')}")
e(f"v_xor_b32 {r('xrd', 1, 1)}, 64, {r('xrd', 0, 1)}")
e(f"v_lshrrev_b32 {r('ta')}, 2, {r('i15')}")
e(f"v_lshl_add_u32 {r('ta')}, {r('h4')}, 3, {r('ta')}")
e(f"v_mul_u32_u24 {r('ta')}, 192, {r('ta')}")
e(f"v_and_b32 {r('tb')}, 3, {r('lane')}")
e(f"v_lshl_add_u32 {r('ta')}, {r('tb')}, 3, {r('ta')}")
e(f"v_add_u32 {r('ta')}, {WR}, {r('ta')}")
e(f"v_and_b32 {r('tb')}, 1, {r('h4')}")
e(f"v_lshlrev_b32 {r('tb')}, 5, {r('tb')}")
e(f"v_add_u32 {r('w1r', 0, 1)}, {r('ta')}, {r('tb')}")
e(f"v_sub_u32 {r('w1r', 1, 1)}, {r('ta')}, {r('tb')}")
e(f"s_lshl_b32 {T2}, {r('wave')}, 5")
e(f"v_xor_b32 {r('tc')}, {T2}, {r('tb')}")
e(f"v_add_u32 {r('csr', 0, 1)}, {r('ta')}, {r('tc')}")
e(f"s_and_b32 {T2}, {T2}, 32")
e(f"s_add_u32 {T2}, {T2}, 128")
e(f"v_xor_b32 {r('tc')}, {T2}, {r('tb')}")
e(f"v_add_u32 {r('csr', 1, 1)}, {r('ta')}, {r('tc')}")
e(f"v_mul_u32_u24 {r('ta')}, 1040, {r('pc')}")
e(f"v_lshlrev_b32 {r('tb')}, 2, {r('r8')}")
e(f"v_sub_u32 {r('ta')}, {r('ta')}, {r('tb')}")
e(f"s_lshl_b32 {T2}, {r('wave')}, 5")
e(f"s_sub_u32 {T2}, {KVIMG + 124}, {T2}")
e(f"v_add_u32 {r('kvw')}, {T2}, {r('ta')}")
e(f"s_mul_i32 {T2}, {r('wave')}, 2080")
e(f"s_add_u32 {T2}, {T2}, {KVIMG}")
e(f"v_add_u32 {r('kvr')}, {T2}, {r('l16')}")
e(f"v_mul_u32_u24 {r('ta')}, {KP}, {r('r8')}")
e(f"v_lshl_add_u32 {r('kvs')}, {r('pc')}, 4, {r('ta')}")
e(f"v_mov_b32 {r('ta')}, 0x3f803f80")
for i in range(4):
    e(f"v_accvgpr_write_b32 {r('ones', i, 1)}, {r('ta')}")
e(f"s_mov_b32 {r('hmask')}, 0xffff0000")
S("kvo")
e(f"s_lshl_b32 {T2}, {r('ns')}, 2")
e(f"s_add_u32 {T2}, {T2}, {r('wave')}")
e(f"s_mul_i32 {r('f1a')}, {T2}, {FSTR}")
e(f"s_lshl_b32 {T3}, {r('tt2')}, 3")
e(f"s_add_u32 {r('f1a')}, {r('f1a')}, {T3}")
e(f"s_add_u32 {r('f1a')}, {r('f1a')}, {F1B}")
e(f"s_mul_i32 {T2}, {T2}, {16 * KP}")
e(f"s_sub_u32 {T3}, 31, {r('tt2')}")
e(f"s_lshl_b32 {T3}, {T3}, 7")
e(f"s_add_u32 {r('kvo')}, {T2}, {T3}")
e(f"s_lshl_b32 {T2}, {r('T1')}, 1")
e(f"s_add_u32 {T2}, {T2}, {r('whi')}")
e(f"s_mul_i32 {r('f2a')}, {T2}, {FSTR}")
e(f"s_lshl_b32 {T2}, {r('q')}, 1")
e(f"s_add_u32 {T2}, {T2}, {r('wodd')}")
e(f"s_lshl_b32 {T2}, {T2}, 3")
e(f"s_add_u32 {r('f2a')}, {r('f2a')}, {T2}")
e(f"s_add_u32 {r('f2a')}, {r('f2a')}, {F2B}")
e(f"s_lshr_b32 {T2}, {r('chan')}, 18")
e(f"s_lshl_b32 {T2}, {T2}, 1")
e(f"s_add_u32 {T2}, {T2}, {r('wodd')}")
e(f"s_mul_i32 {r('f3a')}, {T2}, {FSTR}")
e(f"s_lshr_b32 {T2}, {r('chan')}, 9")
e(f"s_and_b32 {T2}, {T2}, 0x1f8")
e(f"s_add_u32 {r('f3a')}, {r('f3a')}, {T2}")
e(f"s_add_u32 {r('f3a')}, {r('f3a')}, {F3B}")
e(f"v_lshlrev_b32 {r('tc')}, 3, {r('lane')}")
e(f"v_add_u32 {r('zt')}, {r('own')}, {r('tc')}")
e(f"s_mul_i32 {T2}, {T1_}, {FSTR}")
e(f"s_add_u32 {T2}, {T2}, {F1B}")
e(f"v_and_b32 {r('pf1o')}, 0xf8, {r('tc')}")
e(f"v_add_u32 {r('pf1o')}, {T2}, {r('pf1o')}")
e(f"s_lshr_b32 {T2}, {r('tt2')}, 4")
e(f"s_lshl_b32 {T3}, {r('ns')}, 1")
e(f"s_add_u32 {T2}, {T2}, {T3}")
e(f"s_mul_i32 {T2}, {T2}, {FSTR}")
e(f"s_add_u32 {T2}, {T2}, {F3B}")
e(f"v_add_u32 {r('pf3o')}, {T2}, {r('tc')}")
e(f"v_min_u32 {r('pf2o')}, 9, {r('lane')}")
e(f"s_lshl_b32 {T2}, {r('wave')}, 3")
e(f"v_add_u32 {r('pf2o')}, {T2}, {r('pf2o')}")
e(f"v_min_u32 {r('pf2o')}, 31, {r('pf2o')}")
e(f"s_mul_i32 {T2}, {r('tt2')}, {FSTR}")
e(f"s_add_u32 {T2}, {T2}, {F2B}")
e(f"v_lshl_add_u32 {r('pf2o')}, {r('pf2o')}, 3, {T2}")
e(f"v_min_u32 {r('ta')}, 47, {r('lane')}")
e(f"v_lshlrev_b32 {r('bw', 0, 1)}, 3, {r('ta')}")
e(f"v_add_u32 {r('bw', 0, 1)}, {B1T}, {r('bw', 0, 1)}")
e(f"s_lshl_b32 {T2}, {r('b0')}, 6")
e(f"v_lshl_add_u32 {r('bb', 0, 1)}, {r('ta')}, 2, {T2}")
e(f"v_and_b32 {r('ta')}, 31, {r('lane')}")
e(f"v_lshlrev_b32 {r('bw', 1, 1)}, 3, {r('ta')}")
e(f"v_add_u32 {r('bw', 1, 1)}, {B2T}, {r('bw', 1, 1)}")
e(f"v_lshl_add_u32 {r('bb', 1, 1)}, {r('ta')}, 2, {r('ns128')}")
e(f"v_and_b32 {r('ta')}, 6, {r('r8')}")
e(f"v_xor_b32 {r('ta')}, {r('ta')}, {r('pc')}")
e(f"v_lshlrev_b32 {r('ta')}, 4, {r('ta')}")
e(f"v_lshl_add_u32 {r('w2s', 0, 1)}, {r('r8')}, 10, {r('ta')}")
e(f"v_add_u32 {r('w2s', 0, 1)}, {r('ns128')}, {r('w2s', 0, 1)}")
for n in range(1, 4):
    e(f"v_add_u32 {r('w2s', n, 1)}, {7168 * n}, {r('w2s', 0, 1)}")
e(f"v_lshrrev_b32 {r('ta')}, 2, {r('i15')}")
e(f"v_lshl_add_u32 {r('ta')}, {r('h4')}, 2, {r('ta')}")
e(f"v_lshrrev_b32 {r('tb')}, 1, {r('ta')}")
e(f"v_and_b32 {r('tb')}, 3, {r('tb')}")
e(f"v_lshlrev_b32 {r('tb')}, 5, {r('tb')}")
e(f"v_lshl_add_u32 {r('tb')}, {r('ta')}, 7, {r('tb')}")
e(f"v_and_b32 {r('ta')}, 3, {r('lane')}")
e(f"v_lshl_add_u32 {r('tb')}, {r('ta')}, 3, {r('tb')}")
e(f"v_add_u32 {r('w2r', 0, 1)}, {r('own')}, {r('tb')}")
S("w4k")
e(f"s_lshl_b32 {r('w4k')}, {r('wave')}, 12")
e(f"s_add_u32 {r('w4k')}, {r('w4k')}, {S3}")
e(f"v_add_u32 {r('w2r', 4, 1)}, {r('w4k')}, {r('tb')}")
for nb in range(1, 4):
    e(f"v_xor_b32 {r('w2r', nb, 1)}, {32 * nb}, {r('w2r', 0, 1)}")
    e(f"v_xor_b32 {r('w2r', 4 + nb, 1)}, {32 * nb}, {r('w2r', 4, 1)}")
for p in range(11):
    S(f"kb{p}")
e(f"s_lshr_b32 {T0}, {T1_}, 3")
e(f"s_mul_i32 {T0}, {T0}, 3")
e(f"s_mul_i32 {T2}, {r('ns')}, 11")
e(f"s_lshr_b32 {T2}, {T2}, 3")
e(f"s_add_u32 {T0}, {T0}, {T2}")
e(f"s_cmp_ge_u32 {T0}, 11")
e(f"s_cselect_b32 {T2}, 11, 0")
e(f"s_sub_u32 {T0}, {T0}, {T2}")
e(f"s_mul_i32 {T3}, {r('wave')}, 11")
e(f"s_add_u32 {T0}, {T0}, {T3}")
e(f"s_add_u32 {T3}, {T3}, 11")
for p in range(11):
    e(f"s_lshl_b32 {r(f'kb{p}')}, {T0}, 15")
    if p < 10:
        e(f"s_add_u32 {T0}, {T0}, 1")
        e(f"s_cmp_ge_u32 {T0}, {T3}")
        e(f"s_cselect_b32 {T2}, 11, 0")
        e(f"s_sub_u32 {T0}, {T0}, {T2}")
e(f"v_and_b32 {r('ta')}, 3, {r('lane')}")
e(f"v_mul_u32_u24 {r('fa')}, {FP}, {r('ta')}")
e(f"v_lshrrev_b32 {r('tb')}, 2, {r('i15')}")
e(f"v_add_u32 {r('tb')}, {r('tb')}, {r('h4')}")
e(f"v_lshl_add_u32 {r('fa')}, {r('tb')}, 4, {r('fa')}")
e(f"s_lshl_b32 {T4}, {r('wodd')}, 8")
e(f"s_mul_i32 {T2}, {r('whi')}, {4 * FP}")
e(f"s_add_u32 {T3}, {T4}, {T2}")
e(f"v_add_u32 {r('fa')}, {T3}, {r('fa')}")
e(f"v_and_b32 {r('tc')}, 1, {r('lane')}")
e(f"v_mul_u32_u24 {r('ga')}, {GP}, {r('tc')}")
e(f"v_lshrrev_b32 {r('td')}, 1, {r('i15')}")
e(f"v_lshlrev_b32 {r('td')}, 2, {r('td')}")
e(f"v_sub_u32 {r('td')}, {r('h4')}, {r('td')}")
e(f"v_add_u32 {r('td')}, 28, {r('td')}")
e(f"v_lshl_add_u32 {r('ga')}, {r('td')}, 4, {r('ga')}")
e(f"s_mul_i32 {T3}, {r('whi')}, {2 * GP}")
e(f"s_add_u32 {T3}, {T3}, {T4}")
e(f"s_add_u32 {T3}, {T3}, {UB0}")
e(f"v_add_u32 {r('ga')}, {T3}, {r('ga')}")
g.wait(lg=0)
e(f"s_lshl_b32 {T3}, {r('whi')}, 4")
e(f"s_lshr_b32 {r('sD')}, {r('sD')}, {T3}")
e(f"s_and_b32 {r('sD')}, {r('sD')}, 0xffff")
e(f"s_cmp_eq_u32 {r('wodd')}, 0")
e(f"s_cselect_b32 {r('sD')}, {r('sD')}, 0")
e(f"v_xor_b32 {r('tc')}, 1, {r('tc')}")
e(f"v_lshlrev_b32 {r('tc')}, 4, {r('tc')}")
e(f"v_lshlrev_b32_e64 {r('tc')}, {r('tc')}, {r('sD')}")
e(f"v_cmp_eq_u32 vcc, 3, {r('tb')}")
e(f"v_cndmask_b32 {r('tc')}, 0, {r('tc')}, vcc")
e(f"v_cmp_lt_u32 vcc, 1, {r('ta')}")
e(f"v_cndmask_b32 {r('td')}, 0, {r('tc')}, vcc")
e(f"v_sub_u32 {r('tc')}, {r('tc')}, {r('td')}")
e(f"v_accvgpr_write_b32 {r('fd', 0, 1)}, {r('td')}")
e(f"v_accvgpr_write_b32 {r('fd', 1, 1)}, {r('tc')}")
e(f"v_accvgpr_write_b32 {r('fd', 2, 1)}, 0")
e(f"v_accvgpr_write_b32 {r('fd', 3, 1)}, 0")
g.free("sD", "ptr5")
e(f"s_add_u32 {T3}, {T2}, 48")
e(f"v_add_u32 {r('kw')}, {T3}, {r('sa')}")
e(f"s_mul_i32 {r('um0')}, {r('wave')}, {GP}")
e(f"s_add_u32 {r('um0')}, {r('um0')}, {UB0}")
e(f"s_lshl_b32 {T3}, {r('wodd')}, 3")
e(f"s_sub_u32 {r('ush')}, 8, {T3}")
e(f"s_add_u32 {T4}, {r('um0')}, 4096")
e(f"v_add_u32 {r('za')}, {T4}, {r('l16')}")
e(f"v_subrev_u32 {r('ta')}, 28, {r('lane')}")
e(f"v_min_u32 {r('ta')}, 5, {r('ta')}")
e(f"v_cmp_lt_u32 vcc, 2, {r('ta')}")
e(f"v_lshlrev_b32 {r('ta')}, 4, {r('ta')}")
e(f"v_add_u32 {r('tb')}, {FP - 48}, {r('ta')}")
e(f"v_cndmask_b32 {r('ta')}, {r('ta')}, {r('tb')}, vcc")
e(f"s_mul_i32 {T3}, {r('wave')}, {2 * FP}")
e(f"v_add_u32 {r('ta')}, {T3}, {r('ta')}")
e(f"v_cmp_lt_u32 vcc, 27, {r('lane')}")
e(f"v_cndmask_b32 {r('za')}, {r('za')}, {r('ta')}, vcc")
e(f"s_xor_b32 {T2}, {r('wave')}, 1")
e(f"s_mul_i32 {T2}, {T2}, 12288")
e(f"s_add_u32 {T2}, {T2}, {XST}")
e(f"v_add_u32 {r('pa')}, {T2}, {r('l16')}")
e(f"v_lshrrev_b32 {r('ta')}, 1, {r('i15')}")
e(f"v_lshlrev_b32 {r('ta')}, 6, {r('ta')}")
e(f"v_and_b32 {r('tb')}, 1, {r('lane')}")
e(f"v_lshl_add_u32 {r('ta')}, {r('tb')}, 3, {r('ta')}")
e(f"v_lshl_add_u32 {r('ta')}, {r('h4')}, 4, {r('ta')}")
e(f"v_add_u32 {r('yw')}, {r('own')}, {r('ta')}")
e(f"s_lshl_b32 {T3}, {r('wodd')}, 11")
e(f"s_lshr_b32 {r('chan')}, {r('chan')}, 12")
e(f"s_mul_i32 {r('chan')}, {r('chan')}, {KP}")
e(f"s_add_u32 {T2}, {r('chan')}, {T3}")
e(f"s_add_u32 {r('yo')}, {T2}, {YT}")
e(f"v_lshrrev_b32 {r('zs')}, 1, {r('lane')}")
e(f"v_mul_u32_u24 {r('zs')}, {KP}, {r('zs')}")
e(f"v_lshl_add_u32 {r('zs')}, {r('tb')}, 4, {r('zs')}")
e(f"s_mul_i32 {T2}, {r('ns')}, {64 * KP}")
e(f"s_lshl_b32 {T3}, {r('tok16')}, 5")
e(f"s_add_u32 {T2}, {T2}, {T3}")
e(f"s_add_u32 {r('zo')}, {T2}, {YT}")
for s in range(4):
    e(f"s_add_u32 {T2}, {r('wave')}, {s + 1}")
    e(f"s_and_b32 {T2}, {T2}, 3")
    e(f"s_mul_i32 {T3}, {T2}, 12288")
    if s < 3:
        if PX + 4096 * s:
            e(f"s_add_u32 {T3}, {T3}, {PX + 4096 * s}")
        e(f"v_add_u32 {r('pw', s, 1)}, {T3}, {r('l16')}")
    else:
        e(f"v_add_u32 {r('psr')}, {T3}, {r('l16')}")
    e(f"s_lshl_b32 {T3}, {r('tt2')}, 2")
    e(f"s_add_u32 {T2}, {T2}, {T3}")
    e(f"s_mul_i32 {T2}, {T2}, 44032")
    e(f"s_add_u32 {T2}, {T2}, {HB}")
    e(f"v_add_u32 {r('hv', s, 1)}, {T2}, {r('l16')}")
e(f"v_lshrrev_b32 {r('ta')}, 1, {r('i15')}")
e(f"v_lshrrev_b32 {r('tb')}, 1, {r('h4')}")
e(f"v_xor_b32 {r('ta')}, {r('ta')}, {r('tb')}")
e(f"v_lshlrev_b32 {r('ta')}, 4, {r('ta')}")
e(f"v_lshl_add_u32 {r('ta')}, {r('i15')}, 7, {r('ta')}")
e(f"v_and_b32 {r('tc')}, 1, {r('h4')}")
e(f"v_lshl_add_u32 {r('ta')}, {r('tc')}, 3, {r('ta')}")
e(f"v_add_u32 {r('ea', 0, 1)}, {r('own')}, {r('ta')}")
for nb in range(1, 4):
    e(f"v_xor_b32 {r('ea', nb, 1)}, {32 * nb}, {r('ea', 0, 1)}")
e(f"s_and_b32 {T2}, {r('tok16')}, 7")
e(f"s_lshl_b32 {T2}, {T2}, 7")
e(f"s_add_u32 {T2}, {T2}, {STT}")
e(f"v_lshl_add_u32 {r('svr')}, {r('i15')}, 3, {T2}")
e(f"s_lshl_b32 {T2}, {r('wave')}, 8")
e(f"s_add_u32 {T2}, {T2}, {STT}")
e(f"v_lshl_add_u32 {r('stw')}, {r('i15')}, 3, {T2}")
e(f"v_lshl_add_u32 {r('stw')}, {r('tb')}, 7, {r('stw')}")
S("m1", 2); S("m2", 2); S("m3", 2)
e(f"s_mov_b32 {r('m1', 0, 1)}, 0xaaaaaaaa"); e(f"s_mov_b32 {r('m1', 1, 1)}, 0xaaaaaaaa")
e(f"s_mov_b32 {r('m2', 0, 1)}, 0xcccccccc"); e(f"s_mov_b32 {r('m2', 1, 1)}, 0xcccccccc")
e(f"s_mov_b32 {r('m3', 0, 1)}, 0"); e(f"s_mov_b32 {r('m3', 1, 1)}, -1")
e(f"v_lshrrev_b32 {r('ta')}, 2, {r('i15')}")
e(f"v_lshl_add_u32 {r('ta')}, {r('ta')}, 4, {r('i15')}")
e(f"v_lshlrev_b32 {r('bpa')}, 2, {r('ta')}")
e(f"v_lshlrev_b32 {r('ta')}, 4, {r('h4')}")
e(f"v_add_u32 {r('csr0')}, {CSX}, {r('ta')}")
e(f"s_lshl_b32 {T2}, {r('wave')}, 6")
e(f"v_add_u32 {r('csw')}, {T2}, {r('csr0')}")
e(f"s_lshl_b32 {T2}, {r('wodd')}, 6")
e(f"s_add_u32 {T2}, {T2}, 256")
e(f"v_add_u32 {r('csw2')}, {T2}, {r('csr0')}")
S("ho", 2, align=1)
e(f"s_lshl_b32 {T2}, {r('T1')}, 2")
e(f"s_add_u32 {T2}, {T2}, {r('wave')}")
e(f"s_mul_i32 {T2}, {T2}, 86")
e(f"s_add_u32 {T2}, {T2}, {r('b0')}")
e(f"s_lshl_b32 {T2}, {T2}, 10")
e(f"s_add_u32 {r('ho', 0, 1)}, {T2}, {HB}")
e(f"s_add_u32 {r('ho', 1, 1)}, {T2}, {HB + 44032}")
for i in range(4):
    e(f"v_accvgpr_write_b32 {r('zz', i, 1)}, 0")
stamp("setup")
g.free("T1", "q", "tt2", "ns", "tok16", "whi", "b0", "ns128", "r8", "pc", "tid")


def unpack(dst, doff, src, soff, ndw):
    it = []
    for d in range(ndw):
        it.append(E(f"v_lshlrev_b32 {r(dst, doff + 2 * d, 1)}, 16, {r(src, soff + d, 1)}"))
        it.append(E(f"v_and_b32 {r(dst, doff + 2 * d + 1, 1)}, {r('hmask')}, {r(src, soff + d, 1)}"))
    return it


AC("xf", 128, at=0)
AC("wa", 48, at=128); AC("ca", 16, at=176)


def xf(K, tb):
    return r("xf", (K * 2 + tb) * 4, 4)


def rdX(ei):
    return [W(vm=f"X{ei}")] + [E(f"ds_read_b128 {xf(ei * 2 + k, tb)}, {r('xrd', k, 1)} offset:{(ei % 3) * 4096 + tb * 2048}", f"rx{ei}")
                               for k in range(2) for tb in range(2)]


def wbase(K):
    return ((K >> 1) % 4) * 12288 + (K & 1) * 6144


def rdW(K):
    return [E(f"ds_read_b64_tr_b16 {r('wa', (K & 1) * 24 + fb * 4 + 2 * hf, 2)}, {r('w1r', fb & 1, 1)} offset:{wbase(K) + hf * 768 + fb * 32}", f"rw{K}")
            for fb in range(6) for hf in range(2)]


def rdC(K):
    return [E(f"ds_read_b64_tr_b16 {r('ca', (K & 1) * 8 + c * 4 + 2 * hf, 2)}, {r('csr', c, 1)} offset:{wbase(K) + hf * 768}", f"rc{K}")
            for c in range(2) for hf in range(2)]


S("tag", 2)
run(dmaX(1))
run(rdX(0))
g.wait(vm="W0")
e("s_barrier")
run(rdW(0)); run(rdC(0))
stamp("x0")

V("acc", 48); AC("cs", 8, at=192); V("rs", 8); V("gr", 8)
V("big", 100)
B0 = g.names["big"][1]


def alias(name, off, n):
    g.names[name] = ("v", B0 + off, n)


alias("wf", 0, 32); alias("kf", 32, 40); alias("vr", 64, 8); alias("kr", 72, 20); alias("shr", 48, 16)
alias("vf", 72, 16)
small = [E(f"global_load_dword {r('bb', 0, 1)}, {r('bb', 0, 1)}, {ptr(8)}", "bb"),
         E(f"global_load_dword {r('bb', 1, 1)}, {r('bb', 1, 1)}, {ptr(10)}", "bb"),
         It(lambda: (e(f"s_mov_b32 {T0}, {EPOCH}"), e("s_mov_b64 exec, 1"),
                     e(f"buffer_load_dwordx2 {r('pf')}, {r('zero')}, {r('sWS')}, {T0} offen sc1", "ep"), e("s_mov_b64 exec, -1")), 2)]
alias("vr", 92, 8)
kvload = [It(lambda: (e(f"s_add_u32 m0, {r('kim')}, 1024"), e(f"s_mov_b32 {T0}, 7168"),
                      e(f"buffer_load_dwordx4 {r('kd', 1, 1)}, {r('sA')}, 0 offen lds", "k")), 2),
          E(f"buffer_load_dwordx4 {r('kd', 1, 1)}, {r('sA')}, {T0} offen offset:1024 lds", "k"),
          E(f"buffer_load_dwordx4 {r('vr', 0, 4)}, {r('k0')}, {r('sB')}, 0 offen {KVPOL}", "k"),
          E(f"buffer_load_dwordx4 {r('vr', 4, 4)}, {r('k0')}, {r('sB')}, 0 offen offset:1024 {KVPOL}", "k"),
          It(lambda: (e(f"s_mov_b32 m0, {r('kim')}"), e("s_mov_b32 exec_lo, 0"), e("s_mov_b32 exec_hi, 0xffffff00"),
                      e(f"buffer_load_dwordx4 {r('kd', 0, 1)}, {r('sA')}, 0 offen lds", "k"), e("s_mov_b64 exec, -1")), 2),
          It(lambda: (e(f"s_add_u32 m0, {r('kim')}, 3072"), e(f"s_mov_b64 {r('sA', 0, 2)}, {ptr(3)}"), e(f"s_mov_b32 {r('sA', 2, 1)}, 4096"),
                      e("s_mov_b32 exec_hi, 0"), e(f"buffer_load_dwordx4 {r('sho')}, {r('sA')}, 0 offen lds", "k"), e("s_mov_b64 exec, -1"),
                      e(f"s_mov_b64 {r('sA', 0, 2)}, {ptr(4)}"), e(f"s_mov_b64 {r('sB', 0, 2)}, {ptr(9)}"), e(f"s_mov_b32 {r('sB', 2, 1)}, 1409024")), 3)]
kvrd = [W(vm="k")]
kvrd += [E(f"ds_read_b128 {r('shr', 4 * i, 4)}, {r('sra')} offset:{3072 + 16 * i}", "rs") for i in range(4)]
kvrd += [E(f"ds_read_b128 {r('kr', 4 * k, 4)}, {r('kra')} offset:{640 + 128 * k}", "rk") for k in range(5)]
kvu = [W(lg="rs")]
for c in range(8):
    for j in range(4):
        src = r("shr", 2 * c + (j >> 1), 1)
        if j & 1:
            kvu.append(E(f"v_and_b32 {r('wf', j * 8 + c, 1)}, {r('hmask')}, {src}"))
        else:
            kvu.append(E(f"v_lshlrev_b32 {r('wf', j * 8 + c, 1)}, 16, {src}"))
kvu.append(W(lg="rk"))
kvu += unpack("kf", 0, "kr", 0, 20)
KS = lambda t, cp: r("kr", t * 8 + 2 * cp, 2)
kvc = []
for t in range(2):
    for cp in range(4):
        kvc.append(E(f"v_pk_mul_f32 {KS(t, cp)}, {r('kf', t * 8 + 2 * cp, 2)}, {r('wf', 24 + 2 * cp, 2)}"))
    for j in (2, 1, 0):
        for cp in range(4):
            kvc.append(E(f"v_pk_fma_f32 {KS(t, cp)}, {r('kf', (t + 3 - j) * 8 + 2 * cp, 2)}, {r('wf', j * 8 + 2 * cp, 2)}, {KS(t, cp)}"))
kvc += unpack("wf", 0, "vr", 0, 8)
for t in range(2):
    for cp in range(4):
        kvc.append(E(f"v_pk_mul_f32 {KS(t, cp)}, {KS(t, cp)}, {r('wf', t * 8 + 2 * cp, 2)}"))
alias("kvp", 92, 8)
for c in range(8):
    kvc.append(E(f"v_cvt_pk_bf16_f32 {r('kvp', c, 1)}, {r('kr', 8 + c, 1)}, {r('kr', c, 1)}"))
    kvc.append(E(f"ds_write_b32 {r('kvw')}, {r('kvp', c, 1)} offset:{128 * c}", "kvw"))
kvst = [E(f"ds_read_b128 {r('kvp', 0, 4)}, {r('kvr')}", "kvr0"), E(f"ds_read_b128 {r('kvp', 4, 4)}, {r('kvr')} offset:1040", "kvr1")]
kvst2 = [It(lambda: (g.wait(lg="kvr0"), e(f"buffer_store_dwordx4 {r('kvp', 0, 4)}, {r('kvs')}, {r('sWS')}, {r('kvo')} offen sc1", "kvst"),
                     e(f"s_add_u32 {r('kvo')}, {r('kvo')}, {8 * KP}")), 2),
         It(lambda: (g.wait(lg="kvr1"), e(f"buffer_store_dwordx4 {r('kvp', 4, 4)}, {r('kvs')}, {r('sWS')}, {r('kvo')} offen sc1", "kvst")), 2)]
alias("skr", 0, 12); alias("ke", 12, 24); alias("bt", 36, 4); alias("u", 40, 4); alias("b1f", 44, 24); alias("csf", 68, 24)
AC("ska", 12, at=200)
skload = [It(lambda: (e("s_mov_b64 exec, 1"), e(f"buffer_load_dwordx2 {r('ska', 0, 2)}, {r('sb')}, {r('sA')}, 0 offen", "sk"), e("s_mov_b64 exec, -1")), 2),
          E(f"buffer_load_dwordx4 {r('ska', 2, 4)}, {r('sa')}, {r('sA')}, 0 offen {KVPOL}", "sk"),
          E(f"buffer_load_dwordx4 {r('ska', 8, 4)}, {r('sa')}, {r('sA')}, 0 offen offset:1024 {KVPOL}", "sk")]
kcopy = [W(vm="sk")] + [E(f"v_accvgpr_read_b32 {r('skr', k, 1)}, {r('ska', k, 1)}") for k in (4, 5, 0, 1, 10, 11, 2, 3, 8, 9)]
for k in range(2):
    kcopy.append(E(f"v_mov_b32_dpp {r('skr', 6 + k, 1)}, {r('skr', 4 + k, 1)} wave_ror:1 row_mask:0xf bank_mask:0xf"))
for k in range(2):
    kcopy.append(E(f"v_mov_b32_dpp {r('skr', k, 1)}, {r('skr', 4 + k, 1)} wave_shr:1 row_mask:0xf bank_mask:0xf"))
for k in range(2):
    kcopy.append(E(f"v_mov_b32_dpp {r('skr', 6 + k, 1)}, {r('skr', 10 + k, 1)} wave_shr:1 row_mask:0xf bank_mask:0xf"))
for n in range(2):
    R = lambda k, c=1, n=n: r("skr", 6 * n + k, c)
    KE = lambda k, c=1, n=n: r("ke", 12 * n + k, c)
    kcopy.append(E(f"ds_write_b128 {r('kw')}, {R(2, 4)} offset:{3 * FP + 1024 * n}", "kc", 2))
    for k in range(4):
        kcopy.append(E(f"v_alignbit_b32 {KE(k)}, {R(k + 1)}, {R(k)}, 16"))
    kcopy.append(E(f"ds_write_b128 {r('kw')}, {KE(0, 4)} offset:{1024 * n}", "kc", 2))
    for k in range(4):
        kcopy.append(E(f"v_alignbit_b32 {KE(4 + k)}, {R(k + 2)}, {R(k + 1)}, 16"))
    kcopy.append(E(f"ds_write_b128 {r('kw')}, {KE(4, 4)} offset:{2 * FP + 1024 * n}", "kc", 2))
    for k in range(4):
        kcopy.append(E(f"v_mov_b32 {KE(8 + k)}, {R(1 + k)}"))
    kcopy.append(E(f"ds_write_b128 {r('kw')}, {KE(8, 4)} offset:{FP + 1024 * n}", "kc", 2))


def mfma(d, a, b, first):
    e(f"v_mfma_f32_16x16x32_bf16 {d}, {a}, {b}, {'0' if first else d}")


def M(d, a, b, first, wait=None):
    def fn():
        if wait:
            g.wait(**wait)
        mfma(d, a, b, first)
    return It(fn, 0.3 if wait else 0)


def mainM(K):
    return [M(r("acc", (fb * 2 + tb) * 4, 4), r("wa", (K & 1) * 24 + fb * 4, 4), xf(K, tb), K == 0,
              dict(lg=f"rw{K}") if fb == 0 and tb == 0 else None) for fb in range(6) for tb in range(2)]


def statM(K):
    items = []
    for tb in range(2):
        items.append(M(r("rs", tb * 4, 4), r("ones"), xf(K, tb), K == 0, dict(lg=f"rx{K >> 1}") if (tb == 0 and not K & 1) else None))
        items.append(M(r("gr", tb * 4, 4), xf(K, tb), xf(K, tb), K == 0))
    return items


def csM(K):
    return [M(r("cs", c * 4, 4), r("ca", (K & 1) * 8 + c * 4, 4), r("ones"), K == 0, dict(lg=f"rc{K}") if c == 0 else None) for c in range(2)]


def setflag(addr, tagname):
    e("s_mov_b64 exec, 1")
    e(f"buffer_store_dwordx2 {r('vtag')}, {r('zero')}, {r('sWS')}, {addr} offen sc1", tagname)
    e("s_mov_b64 exec, -1")


def pollissue(voff, tagname):
    e(f"buffer_load_dwordx2 {r('pf')}, {voff}, {r('sWS')}, 0 offen sc1", tagname)


def pollcheck(voff, tagname, before_spin=None):
    g.wait(vm=tagname)
    e(f"v_cmp_ne_u64 vcc, {r('tag')}, {r('pf')}")
    e("s_cmp_eq_u64 vcc, 0")
    e(f"s_cbranch_scc0 L_{tagname}")
    g.label(f"L_{tagname}_ok")

    def tail():
        g.label(f"L_{tagname}")
        if before_spin:
            for x in before_spin:
                e(x)
        if SPINMAX:
            e(f"s_mov_b32 {T4}, 0")
        g.label(f"L_{tagname}_l")
        e("s_sleep 1")
        e(f"buffer_load_dwordx2 {pfr}, {voff}, {sws}, 0 offen sc1")
        e("s_waitcnt vmcnt(0)")
        e(f"v_cmp_ne_u64 vcc, {tagr}, {pfr}")
        if SPINMAX:
            e(f"s_add_u32 {T4}, {T4}, 1")
            e(f"s_cmp_gt_u32 {T4}, {SPINMAX}")
            e(f"s_cbranch_scc1 L_{tagname}_ok")
        e("s_cmp_eq_u64 vcc, 0")
        e(f"s_cbranch_scc0 L_{tagname}_l")
        e(f"s_branch L_{tagname}_ok")
    pfr, sws, tagr = r("pf"), r("sWS"), r("tag")
    tails.append(tail)


tails = []
btab = [W(vm="bb")] + unpack("bt", 0, "bb", 0, 2) + [E(f"ds_write_b64 {r('bw', 0, 1)}, {r('bt', 0, 2)}", "btw"), E(f"ds_write_b64 {r('bw', 1, 1)}, {r('bt', 2, 2)}", "btw")]

W2SLOT = {0: ("x", S4 - S3), 1: ("o", 8192), 2: ("o", 0), 3: ("o", 4096), 4: ("x", 0),
          5: ("x", S4 - S3), 6: ("o", 8192), 7: ("o", 0), 8: ("o", 4096), 9: ("x", 0), 10: ("x", S4 - S3)}


def dmaW2(p):
    items = []
    kind, off = W2SLOT[p]
    for n in range(4):
        def it(n=n):
            if n == 0:
                e(f"s_add_u32 m0, {r('own') if kind == 'o' else r('w4k')}, {off}")
                if p >= 5:
                    g.wait(lg=f"rv{p - 5}")
            e(f"buffer_load_dwordx4 {r('w2s', n, 1)}, {r('sB')}, {r(f'kb{p}')} offen offset:{1024 * n} lds", f"V{p}")
        items.append(It(it, 1.2 if n else 1.8))
    return items


def w2f(p, nb, off=0, n=4):
    k = (p * 4 + nb) * 4 + off
    return f"a[{k}:{k + n - 1}]"


def rdW2(p):
    kind, off = W2SLOT[p]
    items = [W(vm=f"V{p}")]
    for nb in range(4):
        for hf in range(2):
            items.append(E(f"ds_read_b64_tr_b16 {w2f(p, nb, 2 * hf, 2)}, {r('w2r', nb + (0 if kind == 'o' else 4), 1)} offset:{off + hf * 2048}", f"rv{p}"))
    return items


alias("sg", 92, 2); alias("stv", 94, 2); alias("sac", 96, 4)
EPS = f2u(1e-5)


def rb(dst, src):
    return [E(f"v_cvt_pk_bf16_f32 {dst}, {src}, {src}"), E(f"v_and_b32 {dst}, {r('hmask')}, {dst}")]


st = []
for tb in range(2):
    G = lambda k, tb=tb: r("gr", tb * 4 + k, 1)
    ta_, tb_ = (r("ta"), r("tb")) if tb == 0 else (r("tc"), r("td"))
    st.append(E(f"v_cndmask_b32 {ta_}, {G(0)}, {G(1)}, {r('m1')}"))
    st.append(E(f"v_cndmask_b32 {tb_}, {G(2)}, {G(3)}, {r('m1')}"))
    st.append(E(f"v_cndmask_b32 {ta_}, {ta_}, {tb_}, {r('m2')}"))
    st.append(E(f"ds_bpermute_b32 {r('sg', tb, 1)}, {r('bpa')}, {ta_}", "bp"))
mu, var, t, w = (r("u", k, 1) for k in range(4))
mb, rsd = r("stv", 0, 1), r("stv", 1, 1)
st.append(E(f"v_cndmask_b32 {mu}, {r('rs', 0, 1)}, {r('rs', 4, 1)}, {r('m3')}"))
st.append(E(f"v_mul_f32 {mu}, 0x{f2u(1 / 512):08x}, {mu}"))
st += rb(mb, mu)
st_b = [W(lg="bp")]
st_b.append(E(f"v_cndmask_b32 {var}, {r('sg', 0, 1)}, {r('sg', 1, 1)}, {r('m3')}"))
st_b.append(E(f"v_mul_f32 {var}, 0x{f2u(1 / 512):08x}, {var}"))
st_b.append(E(f"v_fma_f32 {var}, -{mu}, {mu}, {var}"))
st_b.append(E(f"v_max_f32 {var}, 0, {var}"))
st_b += rb(t, var)
st_b.append(E(f"v_add_f32 {t}, 0x{EPS:08x}, {t}"))
st_b += rb(t, t)
st_b.append(E(f"v_sqrt_f32 {t}, {t}", cost=2))
st_b.append(E(f"v_sub_f32 {mu}, {mu}, {mb}"))
st_b += rb(t, t)
st_b.append(E(f"v_rcp_f32 {rsd}, {t}", cost=2))
st_b.append(E("s_nop 0"))
st_b.append(E(f"v_mul_f32 {mu}, {mu}, {rsd}"))
st_b.append(E(f"v_mul_f32 {var}, {var}, {rsd}"))
st_b.append(E(f"v_mul_f32 {var}, {var}, {rsd}"))
st_b.append(E(f"ds_write_b64 {r('stw')}, {r('stv')}", "stw"))
st_b += rb(t, var)
st_b.append(E(f"v_add_f32 {t}, 0x{EPS:08x}, {t}"))
st_b += rb(t, t)
st_b.append(E(f"v_sqrt_f32 {t}, {t}", cost=2))
st_b += rb(mu, mu)
st_b += rb(t, t)
st_b.append(E(f"v_rcp_f32 {w}, {t}", cost=2))
st_b.append(E(f"v_fma_f32 {mu}, {mb}, {rsd}, {mu}"))
st_b.append(E(f"v_mul_f32 {r('sac', 0, 1)}, {rsd}, {w}"))
st_b.append(E(f"v_mul_f32 {r('sac', 1, 1)}, {mu}, {w}"))
st_b.append(E(f"v_mul_f32 {r('sac', 2, 1)}, {rsd}, {w}"))
st_b.append(E(f"v_mul_f32 {r('sac', 3, 1)}, {mu}, {w}"))
st_b.append(E("s_nop 0"))
st_b.append(E(f"v_permlane32_swap_b32 {r('sac', 0, 1)}, {r('sac', 2, 1)}"))
st_b.append(E(f"v_permlane32_swap_b32 {r('sac', 1, 1)}, {r('sac', 3, 1)}"))

main = []
at = {}


def add(items, name=None):
    if name:
        at[name] = len(main)
        if name.startswith("K") and SSET == "k":
            f0 = items[0].fn
            items = [It(lambda: (stamp(name, "k"), f0()), items[0].cost)] + items[1:]
    main.extend(items)


def bar(K):
    def fn():
        if K < 15:
            g.wait(vm=f"W{(K + 1) >> 1}", lg=0)
        else:
            g.wait(lg=0)
        e("s_barrier")
        if K in (3, 7, 11, 15):
            stamp(f"c{K >> 2}")
    return [It(fn, 0)]


STAT = {K: [K] for K in range(10)}
STAT.update({10: [10, 11], 11: [12, 13], 12: [14, 15]})
KVK = int(opt.get("kvk", 7))
for K in range(13):
    if K == KVK:
        add([It(lambda: (stamp("kvb"), run(kvc), stamp("kv")), 0)], "KV")
    if K & 1:
        add(bar(K), f"B{K}")
    sm = sum((statM(k) for k in STAT[K]), [])
    add(sm + mainM(K), f"K{K}")
    at[f"m{K}"] = at[f"K{K}"] + len(sm)
    add(csM(K))
add(bar(13), "B13")
add(csM(13), "K13"); add(mainM(13), "m13")
add(csM(14), "K14"); add(csM(15)); add(mainM(14), "m14")
add(bar(15), "C3")
add(mainM(15), "K15")
at["end"] = len(main)
A = lambda n: at[n]
QR = []
for K in range(1, 14):
    lo = A(f"K{K - 1}") - (1 if (K & 1 == 0) else 0)
    hi = (A(f"B{K}") - 4 if K & 1 else A(f"K{K}") - 2)
    QR += win(rdW(K) + rdC(K), lo, hi)
QR += win(rdC(14), A("B13"), A("m13")) + win(rdC(15) + rdW(14), A("m13") + 1, A("K14") + 1)
QR += win(rdW(15), A("K14") + 2, A("C3") - 3)
XRD = {1: 1, 2: 3, 3: 5, 4: 7, 5: 9, 6: 10, 7: 11}
QX = []
for ei in range(1, 8):
    k = XRD[ei]
    QX += win(rdX(ei), A(f"K{k}") + 3, A(f"K{k}") + 12)


def aft(tag, items):
    f0 = items[0]
    return [It(lambda: (g.wait(lg=tag), f0()), f0.cost + 1)] + items[1:]


f1set = [It(lambda: (g.wait(vm="ep"), e(f"v_readfirstlane_b32 {r('tag', 0, 1)}, {r('pf', 0, 1)}"), e(f"v_readfirstlane_b32 {r('tag', 1, 1)}, {r('pf', 1, 1)}")), 3),
         It(lambda: (e(f"s_mul_i32 {r('tag', 0, 1)}, {r('tag', 0, 1)}, 0x9E3779B1"), e(f"s_mul_i32 {r('tag', 1, 1)}, {r('tag', 1, 1)}, 0x85EBCA6D")), 2),
         It(lambda: (e(f"s_add_u32 {r('tag', 0, 1)}, {r('tag', 0, 1)}, 0x7F4A7C15"), e(f"s_add_u32 {r('tag', 1, 1)}, {r('tag', 1, 1)}, 0x165667B1")), 2),
         It(lambda: (e(f"v_mov_b32 {r('vtag', 0, 1)}, {r('tag', 0, 1)}"), e(f"v_mov_b32 {r('vtag', 1, 1)}, {r('tag', 1, 1)}")), 2),
         It(lambda: (g.wait(vm="kvst"), setflag(r("f1a"), "f1")), 4)]
udma = [It(lambda: pollcheck(r("pf1o"), "pf1"), 4),
        It(lambda: (e(f"s_add_u32 {r('sA', 0, 1)}, {plo(13)}, {r('chan')}"), e(f"s_addc_u32 {r('sA', 1, 1)}, {phi(13)}, 0"), e(f"s_mov_b32 m0, {r('um0')}")), 3)]
for n in range(4):
    udma.append(E(f"buffer_load_dwordx4 {r('l16')}, {r('sA')}, {r('ush')} offen offset:{1024 * n} sc1 lds", "U"))
KW = lambda k0, k1=None: (A(f"K{k0}"), A(f"K{(k1 or k0) + 1}") - 2)
QV = win(dmaW1(2) + dmaX(2), *KW(0))
QV += win(dmaW1(3) + dmaX(3), *KW(1))
QV += win(kvload + skload + small, *KW(2))
QV += win(dmaW1(4) + dmaX(4), *KW(3))
QV += win(dmaW1(5) + dmaX(5), *KW(4, 5))
QV += win(dmaW1(6) + dmaX(6), A("K6"), A("KV") - 1)
QV += win(dmaW1(7) + kvst2, *KW(7))
QV += win(dmaX(7), *KW(8))
QV += win(dmaW2(0), *KW(9))
F1K = int(opt.get("f1k", 10))
QV += win(dmaW2(1) + (f1set[4:] if F1K == 10 else []), *KW(10))
QV += win(dmaW2(2) + (f1set[4:] if F1K == 11 else []), *KW(11))
QV += win(dmaW2(3), *KW(12))
QV += win([It(lambda: pollissue(r("pf1o"), "pf1"))], A("end") - 2, A("end") - 2)
csw = [It(lambda: (e("s_mov_b32 exec_lo, 0x00010001"), e("s_mov_b32 exec_hi, 0x00010001"),
                   e(f"ds_write_b128 {r('csw')}, {r('cs', 0, 4)}", "csw"), e(f"ds_write_b128 {r('csw2')}, {r('cs', 4, 4)}", "csw"),
                   e("s_mov_b64 exec, -1")), 5)]
rcs = [E(f"ds_read_b128 {r('csf', 4 * fb, 4)}, {r('csr0')} offset:{64 * fb}", "rcs") for fb in range(6)]
rb1 = [E(f"ds_read_b128 {r('b1f', 4 * fb, 4)}, {r('csr0')} offset:{B1T - CSX + 64 * fb}", "rb1") for fb in range(6)]
QM = win(kvrd, A("K5") + 1, A("K5") + 10)
QM += win(kvu, A("K5") + 12, A("KV") - 1)
QM += win(kvst, A("B7"), A("B7") + 1)
QM += win(f1set[:4] + btab, A("K7") + 4, A("K8") + 6)
QM += win(kcopy, A("K8") + 7, A("K11") - 2)
QM += win(rb1, *KW(11))
QM += win([E(f"ds_write_b128 {r('za')}, {r('zz')}", "zw", 2)], A("K12"), A("K12") + 4)
QM += win(csw, A("m14") + 4, A("m14") + 5)
QM += win(rcs, A("C3"), A("C3") + 6)
QS = win(st, A("m12") + 3, A("B13") - 1) + win(st_b, A("B13"), A("end") - 2)
schedule(main, [QR, QX, QV, QM, QS])
for n_ in ("wf", "kf", "vr", "kr", "shr", "vf", "kvp", "skr", "ke", "bt", "u", "sg", "stv"):
    del g.names[n_]
g.free("w1s", "w1lds", "sW1", "so", "f1a", "kvs", "pre", "kvo", "bb", "bw", "k0", "kd", "sho", "sa", "sb", "kvw", "kvr", "kra", "sra", "kw",
       "wa", "ca", "xf", "rs", "gr", "cs", "bpa", "m1", "m2", "m3", "csw", "csw2", "stw", "w1r", "csr", "ones",
       "xrd", "zz", "za", "ska", "ptr8", "ptr10", "ptr3", "ptr4", "ptr9", "kim", "xbase", "xk", "wo", "wlim")
AC("w2b", 176, at=0)
stamp("g1")
stamp("g1", "k")

K0 = -2.0 * 0.7978845608028654 * 1.4426950408889634
K1 = K0 * 0.044715
S("k1", 2); V("k0v", 2); V("ge", 16); V("hp", 8)
e(f"s_mov_b32 {r('k1', 0, 1)}, 0x{f2u(K1):08x}")
e(f"s_mov_b32 {r('k1', 1, 1)}, 0x{f2u(K1):08x}")
e(f"v_mov_b32 {r('k0v', 0, 1)}, 0x{f2u(K0):08x}")
e(f"v_mov_b32 {r('k0v', 1, 1)}, 0x{f2u(K0):08x}")
g.wait(lg="rcs")
e(".p2align 3")


def gelu(b, tb):
    it = []
    sac = r("sac", tb * 2, 2)
    prs = [(fb, h) for fb in (2 * b, 2 * b + 1) for h in range(2)]
    U = lambda k: r("acc", (prs[k][0] * 2 + tb) * 4 + 2 * prs[k][1], 2)
    Tm = lambda k: r("ge", (tb & 1) * 8 + 2 * k, 2)
    T1r = lambda k, x: r("ge", (tb & 1) * 8 + 2 * k + x, 1)
    for k, (fb, h) in enumerate(prs):
        it.append(E(f"v_pk_fma_f32 {Tm(k)}, {r('csf', fb * 4 + 2 * h, 2)}, {sac}, {r('b1f', fb * 4 + 2 * h, 2)} op_sel:[0,1,0] op_sel_hi:[1,1,1] neg_lo:[0,1,0] neg_hi:[0,1,0]"))
    for k in range(4):
        it.append(E(f"v_pk_fma_f32 {U(k)}, {U(k)}, {sac}, {Tm(k)} op_sel_hi:[1,0,1]"))
    for k in range(4):
        it.append(E(f"v_pk_mul_f32 {Tm(k)}, {U(k)}, {U(k)}"))
    for k in range(4):
        it.append(E(f"v_pk_fma_f32 {Tm(k)}, {Tm(k)}, {r('k1')}, {r('k0v')}"))
    for k in range(4):
        it.append(E(f"v_pk_mul_f32 {Tm(k)}, {Tm(k)}, {U(k)}"))
    for k in range(4):
        for x in range(2):
            it.append(E(f"v_exp_f32 {T1r(k, x)}, {T1r(k, x)}"))
    for k in range(4):
        it.append(E(f"v_pk_add_f32 {Tm(k)}, {Tm(k)}, 1.0 op_sel_hi:[1,0]"))
    for k in range(4):
        for x in range(2):
            it.append(E(f"v_rcp_f32 {T1r(k, x)}, {T1r(k, x)}"))
    for k in range(4):
        it.append(E(f"v_pk_mul_f32 {Tm(k)}, {Tm(k)}, {U(k)}"))
    for k in range(4):
        it.append(E(f"v_cvt_pk_bf16_f32 {r('hp', (tb & 1) * 4 + k, 1)}, {T1r(k, 0)}, {T1r(k, 1)}"))
    it.append(E(f"buffer_store_dwordx4 {r('hp', (tb & 1) * 4, 4)}, {r('l16')}, {r('sWS')}, {r('ho', tb, 1)} offen offset:{1024 * b} sc1", "hst"))
    return it


AC("cf", 32, at=176); AC("cg", 32, at=208)


def rdF(it, c):
    return E(f"ds_read_b128 {r('cf', 4 * c, 4)}, {r('fa')} offset:{64 * it + 512 * c}", f"F{it}_{c}")


def rdG(it, d):
    return E(f"ds_read_b128 {r('cg', 4 * d, 4)}, {r('ga')} offset:{64 * it + 512 * (7 - d)}", f"G{it}_{d}")


run(weave(gelu(0, 0), (dmaW2(4), 4, 44))); run(gelu(0, 1)); run(weave(gelu(1, 0), (udma, 0, 30))); run(gelu(1, 1))
g.free("pf1o", "um0", "ush", "chan")
e(f"s_cmp_lt_u32 {r('nown')}, 3")
e(f"s_cselect_b32 {r('ho', 0, 1)}, 0x7f000000, {r('ho', 0, 1)}")
e(f"s_cselect_b32 {r('ho', 1, 1)}, 0x7f000000, {r('ho', 1, 1)}")
e(".p2align 3")
init = []
for k in range(8):
    init += [rdF(0, 7 - k), rdG(0, k)]
run(gelu(2, 0))
g21 = gelu(2, 1)
run(g21[:28])
g.wait(vm="U", lg=0)
e("s_barrier")
stamp("b5")
run(weave(g21[28:], (init[:6], 0, 18)))
stamp("gelu")
del g.names["csf"], g.names["b1f"], g.names["sac"]
g.free("acc", "big", "ge", "k0v", "k1", "ho", "nown")
V("cy", 32, at=96)

main = []
QF = win(init[6:], 0, 9)
for it in range(4):
    at[f"I{it}"] = len(main)
    for c in range(7, -1, -1):
        for d in range(0, 8 - c):
            t = c + d
            wt = None
            if d == 0:
                wt = dict(lg=f"F{it}_0") if (c == 0 and it) else dict(lg=f"G{it}_{7 - c}")
                if it and c in (5, 3, 2, 1):
                    wt = None if c != 5 else dict(lg=f"G{it}_3")
                if it and c == 4:
                    wt = None
                if it and c == 3:
                    wt = dict(lg=f"F{it}_0")
                if it and c == 0:
                    wt = None
            main.append(M(r("cy", 4 * t, 4), r("cf", 4 * c, 4), r("cg", 4 * d, 4), it == 0 and d == 0, wt))
            if it == 0 and c == 0:
                main.append(M(r("cy", 4 * t, 4), r("fd"), r("cg", 4 * d, 4), False))
            idx = len(main) - 1
            if it < 3:
                if d == 7 - c and c > 0:
                    QF += win([rdF(it + 1, c)], idx, idx + 2)
                if c == 0:
                    QF += win([rdG(it + 1, d)], idx, idx)
                    if d == 7:
                        QF += win([rdF(it + 1, 0)], idx, idx)
at["I4"] = len(main)
QW = win(rdW2(0) + rdW2(1) + rdW2(2) + rdW2(3) + rdW2(4), 8, A("I1") + 14)
QW += win(rdW2(5) + rdW2(6) + rdW2(7) + rdW2(8) + rdW2(9), A("I2") + 14, A("I4") - 6)
QV = win(dmaW2(5) + dmaW2(6) + dmaW2(7) + dmaW2(8) + dmaW2(9), 22, A("I2") - 2)
F2POS = int(opt.get("f2pos", 30))
QF2 = win([It(lambda: (g.wait(vm="hst"), setflag(r("f2a"), "f2")), 4)], F2POS, F2POS)
QV += win(dmaW2(10), A("I2") + 28, A("I3") + 4)
P2A = int(opt.get("p2a", 20))
QV += win([It(lambda: pollissue(r("pf2o"), "pf2a"))], A("I4") - P2A, A("I4") - P2A)
V("sw", 8); V("swo"); S("early"); S("bumped")
QB = win([It(lambda: (e(f"v_mul_u32_u24 {r('swo')}, {4 * FSTR}, {r('h4')}"), e(f"v_lshl_add_u32 {r('swo')}, {r('i15')}, 4, {r('swo')}")), 2),
          It(lambda: (e(f"s_or_b32 {r('bumped')}, s2, {r('wave')}"), e(f"s_cselect_b32 {T2}, 0x7e000000, 0")), 2),
          It(lambda: (e(f"s_add_u32 {T2}, {T2}, {F1B}"), e(f"s_add_u32 {T3}, {T2}, {16 * FSTR}")), 2),
          E(f"buffer_load_dwordx4 {r('sw', 0, 4)}, {r('swo')}, {r('sWS')}, {T2} offen sc1", "sw"),
          E(f"buffer_load_dwordx4 {r('sw', 4, 4)}, {r('swo')}, {r('sWS')}, {T3} offen sc1", "sw")], 10, 18)
QM = win([E(f"s_lshr_b32 {r(f'kb{p}')}, {r(f'kb{p}')}, 5") for p in range(11)] +
         [E(f"s_min_u32 {r(f'kb{p}')}, {r(f'kb{p}')}, {42 * 1024}") for p in range(11)], A("I3") + 6, A("I4") - 2)
schedule(main, [QF, QW, QV, QM, QF2, QB])
stamp("conv")
g.free("cf", "cg", "fd", "fa", "ga", "w2s", "w4k", "f2a", "hp")
V("ys", 8); V("cg", 24); V("hf0", 44, at=212); V("hf1", 44, at=168); V("hf2", 8, at=160)
AC("hfa", 80, at=176)
HF = {}
for s_ in range(4):
    for p_ in range(11):
        k_ = s_ * 11 + p_
        HF[s_, p_] = r(f"hf{s_}", 4 * p_, 4) if k_ < 24 else r("hfa", 4 * (k_ - 24), 4)
HFIRST = int(opt.get("hfirst", 2))
HPOL = opt.get("hpol", "sc1").replace("+", " ")
HORD = [(s_, p_) for p_ in range(HFIRST) for s_ in range(4)]
HORD += [(s_, p_) for s_ in range(4) for p_ in range(HFIRST, 11)]
NE = int(opt.get("ne", 12))
HTXT = [f"buffer_load_dwordx4 {HF[s_, p_]}, {r('hv', s_, 1)}, {r('sWS')}, {r(f'kb{p_}')} offen {HPOL}" for s_, p_ in HORD]
hl_txt0 = HTXT[:NE]
g.wait(lg=0)
e(f"s_cmp_lg_u32 {r('wodd')}, 0")
e("s_cbranch_scc1 L_odd1")
for k in range(4):
    e(f"ds_write_b128 {r('oa')}, {r('cy', 16 + 4 * k, 4)} offset:{1024 * k}")
e("s_branch L_j1")
g.label("L_odd1")
e("s_nop 4")
for k in range(4):
    e(f"ds_write_b128 {r('oa')}, {r('cy', 4 * k, 4)} offset:{1024 * k}")
g.wait(lg=0)
for k in range(8):
    e(f"v_pk_mov_b32 {r('cy', 2 * k, 2)}, {r('cy', 16 + 2 * k, 2)}, {r('cy', 16 + 2 * k, 2)} op_sel:[0,1]")
g.label("L_j1")
e(f"s_add_u32 m0, {r('own')}, 6144")
g.wait(vm="pf2a")
e(f"v_cmp_ne_u64 vcc, {r('tag')}, {r('pf')}")
e(f"buffer_load_dwordx4 {r('xs', 0, 1)}, {r('sX')}, {r('tile0')} offen lds", "xt")
e(f"buffer_load_dwordx4 {r('xs', 1, 1)}, {r('sX')}, {r('tile0')} offen offset:1024 lds", "xt")
e("s_cmp_eq_u64 vcc, 0")
e(f"s_cselect_b32 {r('early')}, 1, 0")
g.wait(lg=0)
e("s_barrier")
for k in range(4):
    e(f"ds_read_b128 {r('cg', 4 * k, 4)}, {r('pa')} offset:{1024 * k}", f"ex{k}")
e("s_cbranch_scc0 L_noearly")
n_ = len(g.vm)
for x in hl_txt0:
    e(x)
del g.vm[n_:]
g.label("L_noearly")
pollissue(r("pf2o"), "pf2")
for k in range(4):
    g.wait(lg=f"ex{k}")
    for hh in range(2):
        e(f"v_pk_add_f32 {r('cy', 4 * k + 2 * hh, 2)}, {r('cy', 4 * k + 2 * hh, 2)}, {r('cg', 4 * k + 2 * hh, 2)}")
    for hh in range(2):
        e(f"v_cvt_pk_bf16_f32 {r('cg', 16 + 2 * k + hh, 1)}, {r('cy', 4 * k + 2 * hh, 1)}, {r('cy', 4 * k + 2 * hh + 1, 1)}")
    e(f"ds_write_b64 {r('yw')}, {r('cg', 16 + 2 * k, 2)} offset:{4096 + 512 * k}", f"yw{k}")
    if k & 1:
        e(f"ds_read_b128 {r('ys', 2 * (k - 1), 4)}, {r('oa')} offset:{4096 + 512 * (k - 1)}", f"yr{k >> 1}")
g.wait(lg="yr0")
e(f"buffer_store_dwordx4 {r('ys', 0, 4)}, {r('l16')}, {r('sWS')}, {r('yo')} offen sc1", "yst")
g.wait(lg="yr1")
e(f"buffer_store_dwordx4 {r('ys', 4, 4)}, {r('l16')}, {r('sWS')}, {r('yo')} offen offset:1024 sc1", "yst")
stamp("yst")
rv10 = rdW2(10)
g.free("cy", "pa", "yw", "cg", "yo")

V("ac2", 32)
e(f"s_cmp_eq_u32 {r('early')}, 1")
e("s_cbranch_scc1 L_haveH")
pollcheck(r("pf2o"), "pf2", before_spin=["s_waitcnt vmcnt(0)", "s_mov_b64 exec, 1",
          f"buffer_store_dwordx2 {r('vtag')}, {r('zero')}, {r('sWS')}, {r('f3a')} offen sc1", "s_mov_b64 exec, -1"])
for (s_, p_), x in zip(HORD, hl_txt0):
    e(x, f"H{s_}_{p_}")
g.label("L_haveH")
stamp("f2")
e(f"s_cmp_lg_u32 {r('bumped')}, 0")
e("s_cbranch_scc0 L_bump")
g.label("L_bumped")


def bump_tail():
    g.label("L_bump")
    if SPINMAX:
        e(f"s_mov_b32 {T4}, 0")
    g.label("L_bump_l")
    e(f"v_cmp_ne_u64 vcc, {tagr_}, {sw_[0]}")
    e(f"s_mov_b64 {r('t45', 0, 2)}, vcc")
    for k in range(1, 4):
        e(f"v_cmp_ne_u64 vcc, {tagr_}, {sw_[k]}")
        e(f"s_or_b64 {r('t45', 0, 2)}, {r('t45', 0, 2)}, vcc")
    e(f"s_cmp_eq_u64 {r('t45', 0, 2)}, 0")
    e("s_cbranch_scc1 L_bump_ok")
    if SPINMAX:
        e(f"s_add_u32 {T4}, {T4}, 1")
        e(f"s_cmp_gt_u32 {T4}, {SPINMAX}")
        e("s_cbranch_scc1 L_bumped")
    e(f"s_mov_b32 {T2}, {F1B}")
    e(f"s_mov_b32 {T3}, {F1B + 16 * FSTR}")
    e(f"buffer_load_dwordx4 {sw4_[0]}, {swo_}, {sws_}, {T2} offen sc1")
    e(f"buffer_load_dwordx4 {sw4_[1]}, {swo_}, {sws_}, {T3} offen sc1")
    e("s_waitcnt vmcnt(0)")
    e("s_branch L_bump_l")
    g.label("L_bump_ok")
    e(f"s_mov_b32 {T2}, {EPOCH}")
    e("s_mov_b64 exec, 1")
    e(f"buffer_store_dwordx2 {vtag_}, {zero_}, {sws_}, {T2} offen sc1")
    e("s_mov_b64 exec, -1")
    e("s_branch L_bumped")


tagr_, sws_, swo_, vtag_, zero_ = r("tag"), r("sWS"), r("swo"), r("vtag"), r("zero")
sw_ = [r("sw", 2 * k, 2) for k in range(4)]
sw4_ = [r("sw", 4 * k, 4) for k in range(2)]
tails.append(bump_tail)
g.free("sw", "swo", "bumped")
hl = [E(x, f"H{s_}_{p_}") for (s_, p_), x in zip(HORD, HTXT)]


def g2(s):
    return [M(r("ac2", (s & 1) * 16 + 4 * nb, 4), w2f(p, nb), HF[s, p], p == 0, dict(vm=f"H{s}_{p}") if nb == 0 else None)
            for p in range(11) for nb in range(4)]


def pwr(s):
    return [E(f"ds_write_b128 {r('pw', s, 1)}, {r('ac2', (s & 1) * 16 + 4 * nb, 4)} offset:{1024 * nb}", "pw", 2) for nb in range(4)]


V("xr", 8); V("xfp", 16); V("xn", 16); V("sv", 2)
pre = [W(vm="xt"), E(f"ds_read_b64 {r('sv')}, {r('svr')}", "sv")] + rv10[1:]
for nb in range(4):
    pre.append(E(f"ds_read_b64 {r('xr', 2 * nb, 2)}, {r('ea', nb, 1)} offset:6144", "xr"))
pre.append(W(lg="xr"))
pre += unpack("xfp", 0, "xr", 0, 8)
for d in range(8):
    pre.append(E(f"v_pk_add_f32 {r('xn', 2 * d, 2)}, {r('xfp', 2 * d, 2)}, {r('sv')} op_sel_hi:[1,0] neg_lo:[0,1] neg_hi:[0,1]"))
for d in range(8):
    pre.append(E(f"v_cvt_pk_bf16_f32 {r('xr', d, 1)}, {r('xn', 2 * d, 1)}, {r('xn', 2 * d + 1, 1)}"))
pre += unpack("xn", 0, "xr", 0, 8)
for d in range(8):
    pre.append(E(f"v_pk_mul_f32 {r('xn', 2 * d, 2)}, {r('xn', 2 * d, 2)}, {r('sv')} op_sel:[0,1] op_sel_hi:[1,1]"))
for d in range(8):
    pre.append(E(f"v_cvt_pk_bf16_f32 {r('xr', d, 1)}, {r('xn', 2 * d, 1)}, {r('xn', 2 * d + 1, 1)}"))
pre += unpack("xn", 0, "xr", 0, 8)
run(weave(pre, (hl[NE:NH0], 0, 40)))
g.wait(vm="yst")
setflag(r("f3a"), "f3")
g.free("ys", "xr", "sv", "svr", "pf2o", "w2r")
stamp("f3set")
ps_alias = {}
main = g2(0) + g2(1) + g2(2) + g2(3)[:8]
P3K = int(opt.get("p3k", 40))
HPACE = int(opt.get("hpace", 3))
QH = win(hl[NH0:P3K] + [It(lambda: pollissue(r("pf3o"), "pf3"))] + hl[P3K:], 1, 1 + HPACE * (44 - NH0))
QP = win(pwr(0), 52, 64) + win(pwr(1), 96, 108) + win(pwr(2), 135, 139)
schedule(main, [QH, QP])
stamp("g2s2")
g.wait(lg=0)
e("s_barrier")
g.free("hf0", "hf1")
V("ps", 48); V("zr", 8); V("b2f", 16)
rp = [E(f"ds_read_b128 {r('b2f', 4 * nb, 4)}, {r('csr0')} offset:{B2T - CSX + 64 * nb}", "rb2") for nb in range(4)]
rp += [E(f"ds_read_b128 {r('ps', 4 * k, 4)}, {r('psr')} offset:{PX + 1024 * k}", f"rp{k}") for k in range(12)]
adds = [W(lg="rp11")]
for k in range(16):
    adds.append(E(f"v_add_f32 {r('ps', k, 1)}, {r('ps', k, 1)}, {r('ps', 16 + k, 1)}"))
    adds.append(E(f"v_add_f32 {r('b2f', k, 1)}, {r('b2f', k, 1)}, {r('ps', 32 + k, 1)}"))
ztxt = [f"buffer_load_dwordx4 {r('zs')}, {r('sWS')}, {r('zo')} offen sc1 lds",
        f"buffer_load_dwordx4 {r('zs')}, {r('sWS')}, {T3} offen offset:1024 sc1 lds"]


def zfirst():
    g.wait(vm="pf3")
    e(f"v_cmp_ne_u64 vcc, {r('tag')}, {r('pf')}")
    e(f"s_add_u32 m0, {r('own')}, 8192")
    e(f"s_add_u32 {T3}, {r('zo')}, {32 * KP - 1024}")
    e("s_cmp_eq_u64 vcc, 0")
    e(f"s_cselect_b32 {r('early')}, 1, 0")
    e("s_cbranch_scc0 L_noz")
    n_ = len(g.vm)
    for x in ztxt:
        e(x)
    del g.vm[n_:]
    g.label("L_noz")
    pollissue(r("pf3o"), "pf3b")


ZPOS = int(opt.get("zpos", 12))
schedule(g2(3)[8:], [win(rp, 0, 9), win(adds, 15, 35), win([It(zfirst, 8)], ZPOS, ZPOS)])
stamp("g2")
S("nl2", 2)
e(f"s_mov_b32 {r('nl2', 0, 1)}, 0x{f2u(-1.4426950408889634):08x}")
e(f"s_mov_b32 {r('nl2', 1, 1)}, 0x{f2u(-1.4426950408889634):08x}")
srd("sA", 11, 2097152)
Mm = lambda k: r("ps", 2 * k, 2)
Tt = lambda k: r("ps", 16 + 2 * k, 2)
e(".p2align 3")
for k in range(8):
    e(f"v_pk_add_f32 {Mm(k)}, {Mm(k)}, {r('b2f', 2 * k, 2)}")
for k in range(8):
    e(f"v_pk_add_f32 {Mm(k)}, {Mm(k)}, {r('ac2', 16 + 2 * k, 2)}")
for k in range(8):
    e(f"v_pk_mul_f32 {Tt(k)}, {Mm(k)}, {r('nl2')}")
for k in range(16):
    e(f"v_exp_f32 {r('ps', 16 + k, 1)}, {r('ps', 16 + k, 1)}")
for k in range(8):
    e(f"v_pk_mul_f32 {Mm(k)}, {Mm(k)}, {r('xn', 2 * k, 2)}")
for k in range(8):
    e(f"v_pk_add_f32 {Tt(k)}, {Tt(k)}, 1.0 op_sel_hi:[1,0]")
for k in range(16):
    e(f"v_rcp_f32 {r('ps', 16 + k, 1)}, {r('ps', 16 + k, 1)}")
e(f"s_cmp_eq_u32 {r('early')}, 1")
e("s_cbranch_scc1 L_havez")
pollcheck(r("pf3o"), "pf3b")
for x in ztxt:
    e(x)
g.label("L_havez")
e("s_waitcnt vmcnt(0)")
stamp("z")
for nb in range(4):
    e(f"ds_read_b64_tr_b16 {r('zr', 2 * nb, 2)}, {r('zt')} offset:{8192 + 512 * nb}", f"zr{nb}")
for k in range(8):
    e(f"v_pk_mul_f32 {Mm(k)}, {Mm(k)}, {Tt(k)}")
for nb in range(4):
    g.wait(lg=f"zr{nb}")
    run(unpack("ps", 16 + 4 * nb, "zr", 2 * nb, 2))
    for k in (2 * nb, 2 * nb + 1):
        e(f"v_pk_fma_f32 {Mm(k)}, {Mm(k)}, {Tt(k)}, {r('xfp', 2 * k, 2)}")
    for k in (2 * nb, 2 * nb + 1):
        e(f"v_cvt_pk_bf16_f32 {r('zr', k, 1)}, {r('ps', 2 * k, 1)}, {r('ps', 2 * k + 1, 1)}")
    e(f"ds_write_b64 {r('ea', nb, 1)}, {r('zr', 2 * nb, 2)} offset:10240", "ow")
e(f"ds_read_b128 {r('ps', 32, 4)}, {r('oa')} offset:10240", "or0")
e(f"ds_read_b128 {r('ps', 36, 4)}, {r('oa')} offset:11264", "or1")
g.wait(lg="or0")
e(f"buffer_store_dwordx4 {r('ps', 32, 4)}, {r('xs', 0, 1)}, {r('sA')}, {r('tile0')} offen {OPOL}", "ost")
g.wait(lg="or1")
e(f"buffer_store_dwordx4 {r('ps', 36, 4)}, {r('xs', 1, 1)}, {r('sA')}, {r('tile0')} offen offset:1024 {OPOL}", "ost")
stamp("out")
if STAMPS:
    e("s_waitcnt vmcnt(0)")
    stamp("end")
    flush_stamps(True)
    e(f"s_lshl_b32 {T2}, s2, 2")
    e(f"s_add_u32 {T2}, {T2}, {r('wave')}")
    e(f"s_lshl_b32 {T2}, {T2}, 7")
    e(f"s_add_u32 {T2}, {T2}, {STAMP}")
    e(f"v_lshlrev_b32 {r('ta')}, 2, {r('lane')}")
    e("s_mov_b32 exec_hi, 0")
    e(f"buffer_store_dword {r('stamps')}, {r('ta')}, {r('sWS')}, {T2} offen")
    if DBG:
        e(f"s_cmp_lg_u32 {T2}, {STAMP + (DBG - 1) * 512}")
        e("s_cbranch_scc1 L_end")
        e(f"v_readfirstlane_b32 {T3}, {r('stamps')}")
        e(f"v_subrev_u32 {r('tb')}, {T3}, {r('stamps')}")
        e(f"global_store_dword {r('ta')}, {r('tb')}, {ptr(12)}")
g.label("L_end")
e("s_endpgm")
for t_ in tails:
    t_()

body = g.finish()
hdr = open("cdna_kernels/" + NAME + ".s.ref").read().split("; @launch")[0]
nv = 256 + g.hw["a"]
txt = f"""{hdr}; @launch grid=(256,1,1) block=(256,1,1) lds={LDSZ}
.amdgcn_target "amdgcn-amd-amdhsa--gfx950"
.text
.globl {NAME}_kernel
.p2align 8
.type {NAME}_kernel,@function
{NAME}_kernel:
{body}
    s_endpgm
.section .rodata,"a"
.p2align 6
.amdhsa_kernel {NAME}_kernel
  .amdhsa_next_free_vgpr {nv}
  .amdhsa_next_free_sgpr 102
  .amdhsa_accum_offset 256
  .amdhsa_group_segment_fixed_size 0
  .amdhsa_kernarg_size 112
  .amdhsa_user_sgpr_count 2
  .amdhsa_user_sgpr_kernarg_segment_ptr 1
  .amdhsa_system_sgpr_workgroup_id_x 1
.end_amdhsa_kernel
"""
import subprocess, re
open("_g.s", "w").write(txt.replace("CODE_BYTES", "0x1000"))
subprocess.check_call(["clang", "-x", "assembler", "-target", "amdgcn-amd-amdhsa", "-mcpu=gfx950", "-c", "_g.s", "-o", "_g.o"])
hh = subprocess.check_output(["llvm-objdump", "-h", "_g.o"]).decode()
size = int(re.search(r"\.text\s+([0-9a-f]+)", hh).group(1), 16)
txt = txt.replace("CODE_BYTES", str((size - 256) & ~3))
open(OUT, "w").write(txt)
print("code bytes", size, "instrs", len(g.ins), "nops", g.nops, "hw", g.hw, "stamps", nst[0], " ".join(stnames))
```

```python
import sys, struct
from dsl import Gen, It, win, schedule

NAME = "recurrent_scan__ssm_conv_h3__mixer_channel_mlp__prompt"
opt = dict(a.split("=") for a in sys.argv[2:])
OUT = sys.argv[1]
MAP1 = int(opt.get("map1", 4))
STAMPS = int(opt.get("stamps", 0))
KVPOL = opt.get("kvpol", "")
XPOL0 = opt.get("xpol", "")
SPINMAX = int(opt.get("spinmax", 0))
PREDIV = int(opt.get("prediv", 16))
OPOL = opt.get("opol", "")
DBG = int(opt.get("dbg", 0))
SSET = opt.get("sset", "main")
TOUCH = int(opt.get("touch", 0))
NH0 = int(opt.get("nh0", 16))
NX0 = int(opt.get("nx0", 7))

KP = int(opt.get("kp", 4352))
KVT, HB, YT, FL, EPOCH, STAMP = 0, 0x240000, 0x800000, 0xA40000, 0xB00000, 0xC00000
F1B, F2B, F3B, FSTR = FL, FL + 0x40000, FL + 0x80000, 4352
WSZ = 0xD00000
XST, KVIMG, CSX, STT = 98816, 147968, 156288, 156672
FP, GP = 4160, 4576
WR = 33280
UB0 = 33280
S3, S4 = 57856, 82432
PX = 0
B1T, B2T = 157696, 158080
LDSZ = 158336


def f2u(x):
    return struct.unpack("<I", struct.pack("<f", x))[0]


g = Gen()
e, r = g.e, g.r
V = lambda n, c=1, **k: g.alloc("v", n, c, **k)
S = lambda n, c=1, **k: g.alloc("s", n, c, **k)
AC = lambda n, c=1, **k: g.alloc("a", n, c, **k)
W = lambda **k: It(lambda: g.wait(**k), 0.3)
E = lambda s, t=None, cost=None: It(lambda: e(s, t), cost or (1.2 if s.startswith(('ds_', 'buffer_', 'global_')) else 0.3 if s.startswith('s_') else 1))


def run(items):
    for it in items:
        it()


def weave(main, *bgs):
    slots = [[] for _ in main]
    for items, a, b in bgs:
        b = min(b, len(main) - 1)
        n = len(items)
        for k, it in enumerate(items):
            slots[a + (k * (b - a + 1)) // max(n, 1)].append(it)
    out = []
    for m, s in zip(main, slots):
        out.append(m)
        out.extend(s)
    return out


S("karg", 2, at=0); S("wg", 1, at=2); S("t0", 1, at=3)
S("t45", 4, at=4)
for i_ in range(14):
    S(f"ptr{i_}", 2, at=8 + 2 * i_)
V("tid", 1, at=0)
nst = [0]
stnames = []
pend = []
if STAMPS:
    S("st", 8, at=94, align=2)
    V("stamps", 1, at=1)


def flush_stamps(force=False):
    if pend and (force or len(pend) == 4) and g.smem_out:
        g.wait(lg=0)
    if not g.smem_out:
        for k in pend:
            e(f"v_writelane_b32 {r('stamps')}, {r('st', 2 * (k % 4), 1)}, {k}")
        pend.clear()


def stamp(name, grp="main"):
    if STAMPS and (grp == SSET or name in ("start", "end")) and name not in opt.get("skip", "").split(","):
        assert nst[0] < 32
        flush_stamps()
        e(f"{'s_memtime' if STAMPS == 2 else 's_memrealtime'} {r('st', 2 * (nst[0] % 4), 2)}")
        pend.append(nst[0])
        nst[0] += 1
        stnames.append(name)


_wait = g.wait
_wn = [0]
VM0 = int(opt.get("vm0", 0))


def wait_hook(vm=None, lg=None):
    hook = SSET == "vm" and vm is not None and not str(vm).startswith("H")
    if hook:
        _wn[0] += 1
        hook = VM0 < _wn[0] <= VM0 + 15
    if hook:
        stamp(f"b{vm}", "vm")
    _wait(vm=vm, lg=lg)
    if hook:
        stamp(f"a{vm}", "vm")


g.wait = wait_hook


def ptr(i):
    if i == 13 and "ptr13" not in g.names:
        return r("sWS", 0, 2)
    return r(f"ptr{i}")


def plo(i):
    return "s" + ptr(i)[2:].split(":")[0]


def phi(i):
    return "s" + ptr(i).split(":")[1][:-1]


def srd(name, pi, nbytes, add=None):
    if add is None:
        e(f"s_mov_b64 {r(name,0,2)}, {ptr(pi)}")
    else:
        e(f"s_add_u32 {r(name,0,1)}, {plo(pi)}, {add}")
        e(f"s_addc_u32 {r(name,1,1)}, {phi(pi)}, 0")
    e(f"s_mov_b32 {r(name,2,1)}, {nbytes}")
    e(f"s_mov_b32 {r(name,3,1)}, 0x00020000")


T0, T1_, T2, T3, T4 = "s3", "s4", "s5", "s6", "s7"
ABL = opt.get("abl", "").split(",")
_e0 = g.e


def e(text, tag=None):
    t = tag or ""
    if ("x" in ABL and t.startswith("X") and t != "X0") or ("w" in ABL and t.startswith("W") and t != "W0") or \
            ("v" in ABL and t.startswith("V")):
        g.vm.append(tag)
        g.vm.pop()
        g.vm.insert(0, tag)
        return
    hook = SSET == "iss" and (text.startswith(("buffer_", "global_", "s_barrier")) or (text.startswith("s_waitcnt") and "vmcnt" in text))
    if hook:
        _in[0] += 1
        hook = VM0 < _in[0] <= VM0 + 15
    if hook:
        stamp("b" + (tag or text.split()[0][2:6]), "iss")
    _e0(text, tag)
    if hook:
        stamp("a", "iss")


_in = [0]
g.e = e


stamp("start")
e("s_load_dwordx16 s[8:23], s[0:1], 0")
e("s_load_dwordx8 s[24:31], s[0:1], 64")
e("s_load_dwordx4 s[32:35], s[0:1], 96")
e("s_cmp_ge_u32 s2, 256")
e("s_cbranch_scc1 L_end")
for n in ("lane", "ta", "tb", "tc", "td", "r8", "pc", "zero", "i15", "h4", "l16", "oa", "fa", "ga", "pa", "yw", "zs", "zt",
          "pf1o", "pf2o", "pf3o", "psr", "svr", "kw", "za", "bpa", "csw", "csw2", "csr0", "stw"):
    V(n)
V("vtag", 2); V("xs", 4, align=1); V("w2s", 4, align=1); V("w2r", 8, align=1); V("hv", 4, align=1)
V("pw", 3, align=1); V("ea", 4, align=1); V("pf", 2)
V("xrd", 2, align=1); V("w1r", 2, align=1); V("csr", 2, align=1); V("w1s", 3, align=1)
AC("fd", 4, at=240); AC("ones", 4, at=244); AC("zz", 4, at=248)
for n in ("wave", "T1", "q", "tt2", "ns", "rot", "b0", "nown", "tok16", "ns128", "tile0", "own", "hmask", "so",
          "f1a", "f2a", "f3a", "yo", "zo", "um0", "ush"):
    S(n)
sh_ = PREDIV.bit_length() - 1
V("pre")
e(f"s_lshr_b32 {T1_}, s2, 3")
e(f"v_lshrrev_b32 {r('tc')}, {sh_}, v0")
e(f"s_and_b32 {T2}, {T1_}, {PREDIV - 1}")
e(f"v_lshl_add_u32 {r('tc')}, {r('tc')}, {sh_}, {T2}")
e(f"v_lshlrev_b32 {r('tc')}, 7, {r('tc')}")
e(f"v_min_u32 {r('tc')}, CODE_BYTES, {r('tc')}")
e(f"s_getpc_b64 {r('t45', 2, 2)}")
e(f"global_load_dword {r('pre')}, {r('tc')}, {r('t45', 2, 2)}", "pre")
e(f"v_and_b32 {r('lane')}, 63, v0")
e(f"v_lshrrev_b32 {r('ta')}, 6, v0")
e(f"s_and_b32 {T0}, s2, 7")
e(f"v_readfirstlane_b32 {r('wave')}, {r('ta')}")
if MAP1 == 8:
    e(f"s_lshr_b32 {T2}, {T1_}, 4")
    e(f"s_lshl_b32 {r('T1')}, {T0}, 1")
    e(f"s_add_u32 {r('T1')}, {r('T1')}, {T2}")
    e(f"s_and_b32 {r('q')}, {T1_}, 15")
    e(f"s_lshl_b32 {T2}, {T2}, 2")
    e(f"s_add_u32 {r('rot')}, {T2}, {r('q')}")
else:
    e(f"s_lshr_b32 {T2}, {T0}, 1")
    e(f"s_lshl_b32 {T2}, {T2}, 2")
    e(f"s_lshr_b32 {T3}, {T1_}, 3")
    e(f"s_add_u32 {r('T1')}, {T2}, {T3}")
    e(f"s_and_b32 {T2}, {T0}, 1")
    e(f"s_lshl_b32 {T2}, {T2}, 3")
    e(f"s_and_b32 {T3}, {T1_}, 7")
    e(f"s_add_u32 {r('q')}, {T2}, {T3}")
    e(f"s_lshl_b32 {T2}, {r('T1')}, 1")
    e(f"s_add_u32 {r('rot')}, {T2}, {r('q')}")
e(f"s_and_b32 {r('rot')}, {r('rot')}, 7")
e(f"s_lshr_b32 {T2}, {r('q')}, 3")
e(f"s_lshl_b32 {r('tt2')}, {r('T1')}, 1")
e(f"s_add_u32 {r('tt2')}, {r('tt2')}, {T2}")
e(f"s_and_b32 {r('ns')}, {r('q')}, 7")
V("k0"); V("kd", 2, align=1); V("sho")
e(f"v_lshrrev_b32 {r('r8')}, 3, {r('lane')}")
e(f"v_and_b32 {r('pc')}, 7, {r('lane')}")
e(f"s_lshl_b32 {T2}, {r('tt2')}, 2")
e(f"s_add_u32 {r('tok16')}, {T2}, {r('wave')}")
e(f"s_lshl_b32 {T2}, {r('tok16')}, 14")
e(f"s_lshl_b32 {r('ns128')}, {r('ns')}, 7")
e(f"s_add_u32 {r('tile0')}, {T2}, {r('ns128')}")
e(f"s_mul_i32 {r('own')}, {r('wave')}, 12288")
e(f"s_add_u32 {r('own')}, {r('own')}, {XST}")
S("sA", 4); S("sB", 4); S("sX", 4); S("sW1", 4); S("sWS", 4)
for nm, sz in (("sX", 2097152), ("sW1", 1409024)):
    e(f"s_mov_b32 {r(nm,2,1)}, {sz}")
    e(f"s_mov_b32 {r(nm,3,1)}, 0x00020000")
for c in range(3):
    e(f"v_add_u32 {r('ta')}, {64 * c}, {r('lane')}")
    e(f"v_mul_u32_u24 {r('tb')}, 43691, {r('ta')}")
    e(f"v_lshrrev_b32 {r('tb')}, 19, {r('tb')}")
    e(f"v_mul_u32_u24 {r('tc')}, 12, {r('tb')}")
    e(f"v_sub_u32 {r('tc')}, {r('ta')}, {r('tc')}")
    e(f"v_lshrrev_b32 {r('td')}, 2, {r('tb')}")
    e(f"v_and_b32 {r('td')}, 2, {r('td')}")
    e(f"v_xor_b32 {r('tc')}, {r('tc')}, {r('td')}")
    e(f"v_mul_u32_u24 {r('tb')}, 2752, {r('tb')}")
    e(f"v_lshl_add_u32 {r('tb')}, {r('tc')}, 4, {r('tb')}")
    e(f"v_subrev_u32 {r('w1s', c, 1)}, {1024 * c}, {r('tb')}")
e(f"s_mul_i32 {r('b0')}, {r('q')}, 43")
e(f"s_add_u32 {r('nown')}, {r('b0')}, 43")
e(f"s_lshr_b32 {r('b0')}, {r('b0')}, 4")
e(f"s_lshr_b32 {r('nown')}, {r('nown')}, 4")
e(f"s_sub_u32 {r('nown')}, {r('nown')}, {r('b0')}")
S("w1lds"); S("xbase"); S("xk"); S("wo"); S("wlim")
e(f"s_lshl_b32 {T3}, {r('b0')}, 6")
e(f"s_lshl_b32 {T2}, {r('T1')}, 2")
e(f"s_add_u32 {T2}, {T2}, {r('wave')}")
e(f"s_lshl_b32 {r('xbase')}, {T2}, 15")
e(f"s_lshl_b32 {r('xk')}, {r('rot')}, 7")
e(f"s_mul_i32 {T4}, {r('wave')}, {16 * 2752}")
e(f"s_add_u32 {T4}, {T4}, {T3}")
e(f"s_add_u32 {r('wlim')}, {T4}, {512 * 2752}")
e(f"s_mul_i32 {T2}, {r('rot')}, {64 * 2752}")
e(f"s_add_u32 {r('wo')}, {T2}, {T4}")
e(f"s_mul_i32 {r('w1lds')}, {r('wave')}, 3072")
e(f"s_add_u32 {r('w1lds')}, {r('w1lds')}, {WR}")
e(f"v_lshrrev_b32 {r('ta')}, 1, {r('r8')}")
e(f"v_xor_b32 {r('ta')}, {r('ta')}, {r('pc')}")
e(f"v_lshlrev_b32 {r('ta')}, 4, {r('ta')}")
e(f"v_lshl_add_u32 {r('xs', 0, 1)}, {r('r8')}, 10, {r('ta')}")
e(f"v_xor_b32 {r('tb')}, 64, {r('xs', 0, 1)}")
e(f"v_add_u32 {r('xs', 1, 1)}, 7168, {r('tb')}")
e(f"v_add_u32 {r('xs', 2, 1)}, {2 * 7168}, {r('xs', 0, 1)}")
e(f"v_add_u32 {r('xs', 3, 1)}, {3 * 7168}, {r('tb')}")
g.wait(lg=0)
e(f"s_mov_b64 {r('sX',0,2)}, {ptr(0)}")
e(f"s_mov_b64 {r('sW1',0,2)}, {ptr(7)}")


def dmaW1(n):
    items = []
    for c in range(3):
        def it(c=c):
            if c == 0:
                e(f"s_add_u32 m0, {r('w1lds')}, {(n % 4) * 12288}")
                if n:
                    e(f"s_cmp_ge_u32 {r('wo')}, {r('wlim')}")
                    e(f"s_cselect_b32 {T2}, {512 * 2752}, 0")
                    e(f"s_sub_u32 {r('wo')}, {r('wo')}, {T2}")
            e(f"buffer_load_dwordx4 {r('w1s', c, 1)}, {r('sW1')}, {r('wo')} offen offset:{1024 * c} lds", f"W{n}")
            if c == 2:
                e(f"s_add_u32 {r('wo')}, {r('wo')}, {64 * 2752}")
        items.append(It(it, (2, 1.2, 1.5)[c]))
    return items


def dmaX(ei):
    items = []
    for n in range(4):
        def it(n=n):
            xo = r("so")
            if n == 0:
                e(f"s_add_u32 m0, {r('own')}, {(ei % 3) * 4096}")
                e(f"s_or_b32 {xo}, {r('xk')}, {r('xbase')}")
            pol = XPOL0 if ei < 1 else ""
            e(f"buffer_load_dwordx4 {r('xs', n, 1)}, {r('sX')}, {xo} offen offset:{1024 * n} {pol} lds", f"X{ei}")
            if n == 1:
                e(f"s_add_u32 {r('xk')}, {r('xk')}, 128")
            if n == 2:
                e(f"s_and_b32 {r('xk')}, {r('xk')}, 0x3ff")
        items.append(It(it, (1.8, 1.5, 1.5, 1.2)[n]))
    return items


run(dmaX(0) + dmaW1(0) + dmaW1(1))
S("sD")
e(f"s_lshl_b32 {T2}, s2, 2")
e(f"s_load_dword {r('sD')}, {ptr(5)}, {T2}")
stamp("p0iss")
srd("sWS", 13, WSZ)
g.free("ptr0", "ptr6", "ptr7", "ptr13", "karg", "rot")
if not DBG:
    g.free("ptr12")
e(f"v_lshlrev_b32 {r('tb')}, 4, {r('pc')}")
e(f"v_lshl_add_u32 {r('ta')}, {r('r8')}, 11, {r('tb')}")
e(f"v_add_u32 {r('k0')}, {r('tile0')}, {r('ta')}")
e(f"v_lshl_add_u32 {r('ta')}, {r('r8')}, 10, {r('tb')}")
e(f"v_add_u32 {r('kd', 1, 1)}, {r('tile0')}, {r('ta')}")
e(f"v_subrev_u32 {r('kd', 0, 1)}, 8192, {r('kd', 1, 1)}")
e(f"v_lshlrev_b32 {r('l16')}, 4, {r('lane')}")
e(f"s_lshl_b32 {T3}, {r('ns')}, 9")
e(f"v_add_u32 {r('sho')}, {T3}, {r('l16')}")
e(f"v_mov_b32 {r('zero')}, 0")
S("wodd"); S("whi"); S("chan"); V("sa"); V("sb"); V("bb", 2, align=1)
e(f"s_and_b32 {r('wodd')}, {r('wave')}, 1")
e(f"s_lshr_b32 {r('whi')}, {r('wave')}, 1")
e(f"s_lshl_b32 {T2}, s2, 1")
e(f"s_add_u32 {r('chan')}, {T2}, {r('whi')}")
e(f"s_lshl_b32 {r('chan')}, {r('chan')}, 12")
e(f"s_add_u32 {plo(4)}, {plo(4)}, {r('chan')}")
e(f"s_addc_u32 {phi(4)}, {phi(4)}, 0")
e(f"s_lshl_b32 {T3}, {r('wodd')}, 11")
e(f"v_add_u32 {r('sa')}, {T3}, {r('l16')}")
e(f"v_subrev_u32 {r('sb')}, 8, {r('sa')}")
S("kim")
e(f"s_lshl_b32 {r('kim')}, {r('wave')}, 12")
e(f"s_add_u32 {r('kim')}, {r('kim')}, {S4}")
srd("sA", 1, 2097152)
srd("sB", 2, 2097152)
g.free("ptr1", "ptr2")
V("kvw"); V("kvr"); V("kvs"); V("kra"); V("sra"); V("bw", 2, align=1)
e(f"v_and_b32 {r('i15')}, 15, {r('lane')}")
e(f"v_lshrrev_b32 {r('h4')}, 4, {r('lane')}")
e(f"v_add_u32 {r('oa')}, {r('own')}, {r('l16')}")
e(f"v_lshlrev_b32 {r('ta')}, 4, {r('pc')}")
e(f"v_lshl_add_u32 {r('ta')}, {r('r8')}, 8, {r('ta')}")
e(f"v_add_u32 {r('kra')}, {r('kim')}, {r('ta')}")
e(f"v_lshl_add_u32 {r('sra')}, {r('pc')}, 6, {r('kim')}")
e(f"v_lshrrev_b32 {r('ta')}, 1, {r('i15')}")
e(f"v_xor_b32 {r('ta')}, {r('ta')}, {r('h4')}")
e(f"v_lshlrev_b32 {r('ta')}, 4, {r('ta')}")
e(f"v_lshl_add_u32 {r('ta')}, {r('i15')}, 7, {r('ta')}")
e(f"v_add_u32 {r('xrd', 0, 1)}, {r('own')}, {r('ta')}")
e(f"v_xor_b32 {r('xrd', 1, 1)}, 64, {r('xrd', 0, 1)}")
e(f"v_lshrrev_b32 {r('ta')}, 2, {r('i15')}")
e(f"v_lshl_add_u32 {r('ta')}, {r('h4')}, 3, {r('ta')}")
e(f"v_mul_u32_u24 {r('ta')}, 192, {r('ta')}")
e(f"v_and_b32 {r('tb')}, 3, {r('lane')}")
e(f"v_lshl_add_u32 {r('ta')}, {r('tb')}, 3, {r('ta')}")
e(f"v_add_u32 {r('ta')}, {WR}, {r('ta')}")
e(f"v_and_b32 {r('tb')}, 1, {r('h4')}")
e(f"v_lshlrev_b32 {r('tb')}, 5, {r('tb')}")
e(f"v_add_u32 {r('w1r', 0, 1)}, {r('ta')}, {r('tb')}")
e(f"v_sub_u32 {r('w1r', 1, 1)}, {r('ta')}, {r('tb')}")
e(f"s_lshl_b32 {T2}, {r('wave')}, 5")
e(f"v_xor_b32 {r('tc')}, {T2}, {r('tb')}")
e(f"v_add_u32 {r('csr', 0, 1)}, {r('ta')}, {r('tc')}")
e(f"s_and_b32 {T2}, {T2}, 32")
e(f"s_add_u32 {T2}, {T2}, 128")
e(f"v_xor_b32 {r('tc')}, {T2}, {r('tb')}")
e(f"v_add_u32 {r('csr', 1, 1)}, {r('ta')}, {r('tc')}")
e(f"v_mul_u32_u24 {r('ta')}, 1040, {r('pc')}")
e(f"v_lshlrev_b32 {r('tb')}, 2, {r('r8')}")
e(f"v_sub_u32 {r('ta')}, {r('ta')}, {r('tb')}")
e(f"s_lshl_b32 {T2}, {r('wave')}, 5")
e(f"s_sub_u32 {T2}, {KVIMG + 124}, {T2}")
e(f"v_add_u32 {r('kvw')}, {T2}, {r('ta')}")
e(f"s_mul_i32 {T2}, {r('wave')}, 2080")
e(f"s_add_u32 {T2}, {T2}, {KVIMG}")
e(f"v_add_u32 {r('kvr')}, {T2}, {r('l16')}")
e(f"v_mul_u32_u24 {r('ta')}, {KP}, {r('r8')}")
e(f"v_lshl_add_u32 {r('kvs')}, {r('pc')}, 4, {r('ta')}")
e(f"v_mov_b32 {r('ta')}, 0x3f803f80")
for i in range(4):
    e(f"v_accvgpr_write_b32 {r('ones', i, 1)}, {r('ta')}")
e(f"s_mov_b32 {r('hmask')}, 0xffff0000")
S("kvo")
e(f"s_lshl_b32 {T2}, {r('ns')}, 2")
e(f"s_add_u32 {T2}, {T2}, {r('wave')}")
e(f"s_mul_i32 {r('f1a')}, {T2}, {FSTR}")
e(f"s_lshl_b32 {T3}, {r('tt2')}, 3")
e(f"s_add_u32 {r('f1a')}, {r('f1a')}, {T3}")
e(f"s_add_u32 {r('f1a')}, {r('f1a')}, {F1B}")
e(f"s_mul_i32 {T2}, {T2}, {16 * KP}")
e(f"s_sub_u32 {T3}, 31, {r('tt2')}")
e(f"s_lshl_b32 {T3}, {T3}, 7")
e(f"s_add_u32 {r('kvo')}, {T2}, {T3}")
e(f"s_lshl_b32 {T2}, {r('T1')}, 1")
e(f"s_add_u32 {T2}, {T2}, {r('whi')}")
e(f"s_mul_i32 {r('f2a')}, {T2}, {FSTR}")
e(f"s_lshl_b32 {T2}, {r('q')}, 1")
e(f"s_add_u32 {T2}, {T2}, {r('wodd')}")
e(f"s_lshl_b32 {T2}, {T2}, 3")
e(f"s_add_u32 {r('f2a')}, {r('f2a')}, {T2}")
e(f"s_add_u32 {r('f2a')}, {r('f2a')}, {F2B}")
e(f"s_lshr_b32 {T2}, {r('chan')}, 18")
e(f"s_lshl_b32 {T2}, {T2}, 1")
e(f"s_add_u32 {T2}, {T2}, {r('wodd')}")
e(f"s_mul_i32 {r('f3a')}, {T2}, {FSTR}")
e(f"s_lshr_b32 {T2}, {r('chan')}, 9")
e(f"s_and_b32 {T2}, {T2}, 0x1f8")
e(f"s_add_u32 {r('f3a')}, {r('f3a')}, {T2}")
e(f"s_add_u32 {r('f3a')}, {r('f3a')}, {F3B}")
e(f"v_lshlrev_b32 {r('tc')}, 3, {r('lane')}")
e(f"v_add_u32 {r('zt')}, {r('own')}, {r('tc')}")
e(f"s_mul_i32 {T2}, {T1_}, {FSTR}")
e(f"s_add_u32 {T2}, {T2}, {F1B}")
e(f"v_and_b32 {r('pf1o')}, 0xf8, {r('tc')}")
e(f"v_add_u32 {r('pf1o')}, {T2}, {r('pf1o')}")
e(f"s_lshr_b32 {T2}, {r('tt2')}, 4")
e(f"s_lshl_b32 {T3}, {r('ns')}, 1")
e(f"s_add_u32 {T2}, {T2}, {T3}")
e(f"s_mul_i32 {T2}, {T2}, {FSTR}")
e(f"s_add_u32 {T2}, {T2}, {F3B}")
e(f"v_add_u32 {r('pf3o')}, {T2}, {r('tc')}")
e(f"v_min_u32 {r('pf2o')}, 9, {r('lane')}")
e(f"s_lshl_b32 {T2}, {r('wave')}, 3")
e(f"v_add_u32 {r('pf2o')}, {T2}, {r('pf2o')}")
e(f"v_min_u32 {r('pf2o')}, 31, {r('pf2o')}")
e(f"s_mul_i32 {T2}, {r('tt2')}, {FSTR}")
e(f"s_add_u32 {T2}, {T2}, {F2B}")
e(f"v_lshl_add_u32 {r('pf2o')}, {r('pf2o')}, 3, {T2}")
e(f"v_min_u32 {r('ta')}, 47, {r('lane')}")
e(f"v_lshlrev_b32 {r('bw', 0, 1)}, 3, {r('ta')}")
e(f"v_add_u32 {r('bw', 0, 1)}, {B1T}, {r('bw', 0, 1)}")
e(f"s_lshl_b32 {T2}, {r('b0')}, 6")
e(f"v_lshl_add_u32 {r('bb', 0, 1)}, {r('ta')}, 2, {T2}")
e(f"v_and_b32 {r('ta')}, 31, {r('lane')}")
e(f"v_lshlrev_b32 {r('bw', 1, 1)}, 3, {r('ta')}")
e(f"v_add_u32 {r('bw', 1, 1)}, {B2T}, {r('bw', 1, 1)}")
e(f"v_lshl_add_u32 {r('bb', 1, 1)}, {r('ta')}, 2, {r('ns128')}")
e(f"v_and_b32 {r('ta')}, 6, {r('r8')}")
e(f"v_xor_b32 {r('ta')}, {r('ta')}, {r('pc')}")
e(f"v_lshlrev_b32 {r('ta')}, 4, {r('ta')}")
e(f"v_lshl_add_u32 {r('w2s', 0, 1)}, {r('r8')}, 10, {r('ta')}")
e(f"v_add_u32 {r('w2s', 0, 1)}, {r('ns128')}, {r('w2s', 0, 1)}")
for n in range(1, 4):
    e(f"v_add_u32 {r('w2s', n, 1)}, {7168 * n}, {r('w2s', 0, 1)}")
e(f"v_lshrrev_b32 {r('ta')}, 2, {r('i15')}")
e(f"v_lshl_add_u32 {r('ta')}, {r('h4')}, 2, {r('ta')}")
e(f"v_lshrrev_b32 {r('tb')}, 1, {r('ta')}")
e(f"v_and_b32 {r('tb')}, 3, {r('tb')}")
e(f"v_lshlrev_b32 {r('tb')}, 5, {r('tb')}")
e(f"v_lshl_add_u32 {r('tb')}, {r('ta')}, 7, {r('tb')}")
e(f"v_and_b32 {r('ta')}, 3, {r('lane')}")
e(f"v_lshl_add_u32 {r('tb')}, {r('ta')}, 3, {r('tb')}")
e(f"v_add_u32 {r('w2r', 0, 1)}, {r('own')}, {r('tb')}")
S("w4k")
e(f"s_lshl_b32 {r('w4k')}, {r('wave')}, 12")
e(f"s_add_u32 {r('w4k')}, {r('w4k')}, {S3}")
e(f"v_add_u32 {r('w2r', 4, 1)}, {r('w4k')}, {r('tb')}")
for nb in range(1, 4):
    e(f"v_xor_b32 {r('w2r', nb, 1)}, {32 * nb}, {r('w2r', 0, 1)}")
    e(f"v_xor_b32 {r('w2r', 4 + nb, 1)}, {32 * nb}, {r('w2r', 4, 1)}")
for p in range(11):
    S(f"kb{p}")
e(f"s_lshr_b32 {T0}, {T1_}, 3")
e(f"s_mul_i32 {T0}, {T0}, 3")
e(f"s_mul_i32 {T2}, {r('ns')}, 11")
e(f"s_lshr_b32 {T2}, {T2}, 3")
e(f"s_add_u32 {T0}, {T0}, {T2}")
e(f"s_cmp_ge_u32 {T0}, 11")
e(f"s_cselect_b32 {T2}, 11, 0")
e(f"s_sub_u32 {T0}, {T0}, {T2}")
e(f"s_mul_i32 {T3}, {r('wave')}, 11")
e(f"s_add_u32 {T0}, {T0}, {T3}")
e(f"s_add_u32 {T3}, {T3}, 11")
for p in range(11):
    e(f"s_lshl_b32 {r(f'kb{p}')}, {T0}, 15")
    if p < 10:
        e(f"s_add_u32 {T0}, {T0}, 1")
        e(f"s_cmp_ge_u32 {T0}, {T3}")
        e(f"s_cselect_b32 {T2}, 11, 0")
        e(f"s_sub_u32 {T0}, {T0}, {T2}")
e(f"v_and_b32 {r('ta')}, 3, {r('lane')}")
e(f"v_mul_u32_u24 {r('fa')}, {FP}, {r('ta')}")
e(f"v_lshrrev_b32 {r('tb')}, 2, {r('i15')}")
e(f"v_add_u32 {r('tb')}, {r('tb')}, {r('h4')}")
e(f"v_lshl_add_u32 {r('fa')}, {r('tb')}, 4, {r('fa')}")
e(f"s_lshl_b32 {T4}, {r('wodd')}, 8")
e(f"s_mul_i32 {T2}, {r('whi')}, {4 * FP}")
e(f"s_add_u32 {T3}, {T4}, {T2}")
e(f"v_add_u32 {r('fa')}, {T3}, {r('fa')}")
e(f"v_and_b32 {r('tc')}, 1, {r('lane')}")
e(f"v_mul_u32_u24 {r('ga')}, {GP}, {r('tc')}")
e(f"v_lshrrev_b32 {r('td')}, 1, {r('i15')}")
e(f"v_lshlrev_b32 {r('td')}, 2, {r('td')}")
e(f"v_sub_u32 {r('td')}, {r('h4')}, {r('td')}")
e(f"v_add_u32 {r('td')}, 28, {r('td')}")
e(f"v_lshl_add_u32 {r('ga')}, {r('td')}, 4, {r('ga')}")
e(f"s_mul_i32 {T3}, {r('whi')}, {2 * GP}")
e(f"s_add_u32 {T3}, {T3}, {T4}")
e(f"s_add_u32 {T3}, {T3}, {UB0}")
e(f"v_add_u32 {r('ga')}, {T3}, {r('ga')}")
g.wait(lg=0)
e(f"s_lshl_b32 {T3}, {r('whi')}, 4")
e(f"s_lshr_b32 {r('sD')}, {r('sD')}, {T3}")
e(f"s_and_b32 {r('sD')}, {r('sD')}, 0xffff")
e(f"s_cmp_eq_u32 {r('wodd')}, 0")
e(f"s_cselect_b32 {r('sD')}, {r('sD')}, 0")
e(f"v_xor_b32 {r('tc')}, 1, {r('tc')}")
e(f"v_lshlrev_b32 {r('tc')}, 4, {r('tc')}")
e(f"v_lshlrev_b32_e64 {r('tc')}, {r('tc')}, {r('sD')}")
e(f"v_cmp_eq_u32 vcc, 3, {r('tb')}")
e(f"v_cndmask_b32 {r('tc')}, 0, {r('tc')}, vcc")
e(f"v_cmp_lt_u32 vcc, 1, {r('ta')}")
e(f"v_cndmask_b32 {r('td')}, 0, {r('tc')}, vcc")
e(f"v_sub_u32 {r('tc')}, {r('tc')}, {r('td')}")
e(f"v_accvgpr_write_b32 {r('fd', 0, 1)}, {r('td')}")
e(f"v_accvgpr_write_b32 {r('fd', 1, 1)}, {r('tc')}")
e(f"v_accvgpr_write_b32 {r('fd', 2, 1)}, 0")
e(f"v_accvgpr_write_b32 {r('fd', 3, 1)}, 0")
g.free("sD", "ptr5")
e(f"s_add_u32 {T3}, {T2}, 48")
e(f"v_add_u32 {r('kw')}, {T3}, {r('sa')}")
e(f"s_mul_i32 {r('um0')}, {r('wave')}, {GP}")
e(f"s_add_u32 {r('um0')}, {r('um0')}, {UB0}")
e(f"s_lshl_b32 {T3}, {r('wodd')}, 3")
e(f"s_sub_u32 {r('ush')}, 8, {T3}")
e(f"s_add_u32 {T4}, {r('um0')}, 4096")
e(f"v_add_u32 {r('za')}, {T4}, {r('l16')}")
e(f"v_subrev_u32 {r('ta')}, 28, {r('lane')}")
e(f"v_min_u32 {r('ta')}, 5, {r('ta')}")
e(f"v_cmp_lt_u32 vcc, 2, {r('ta')}")
e(f"v_lshlrev_b32 {r('ta')}, 4, {r('ta')}")
e(f"v_add_u32 {r('tb')}, {FP - 48}, {r('ta')}")
e(f"v_cndmask_b32 {r('ta')}, {r('ta')}, {r('tb')}, vcc")
e(f"s_mul_i32 {T3}, {r('wave')}, {2 * FP}")
e(f"v_add_u32 {r('ta')}, {T3}, {r('ta')}")
e(f"v_cmp_lt_u32 vcc, 27, {r('lane')}")
e(f"v_cndmask_b32 {r('za')}, {r('za')}, {r('ta')}, vcc")
e(f"s_xor_b32 {T2}, {r('wave')}, 1")
e(f"s_mul_i32 {T2}, {T2}, 12288")
e(f"s_add_u32 {T2}, {T2}, {XST}")
e(f"v_add_u32 {r('pa')}, {T2}, {r('l16')}")
e(f"v_lshrrev_b32 {r('ta')}, 1, {r('i15')}")
e(f"v_lshlrev_b32 {r('ta')}, 6, {r('ta')}")
e(f"v_and_b32 {r('tb')}, 1, {r('lane')}")
e(f"v_lshl_add_u32 {r('ta')}, {r('tb')}, 3, {r('ta')}")
e(f"v_lshl_add_u32 {r('ta')}, {r('h4')}, 4, {r('ta')}")
e(f"v_add_u32 {r('yw')}, {r('own')}, {r('ta')}")
e(f"s_lshl_b32 {T3}, {r('wodd')}, 11")
e(f"s_lshr_b32 {r('chan')}, {r('chan')}, 12")
e(f"s_mul_i32 {r('chan')}, {r('chan')}, {KP}")
e(f"s_add_u32 {T2}, {r('chan')}, {T3}")
e(f"s_add_u32 {r('yo')}, {T2}, {YT}")
e(f"v_lshrrev_b32 {r('zs')}, 1, {r('lane')}")
e(f"v_mul_u32_u24 {r('zs')}, {KP}, {r('zs')}")
e(f"v_lshl_add_u32 {r('zs')}, {r('tb')}, 4, {r('zs')}")
e(f"s_mul_i32 {T2}, {r('ns')}, {64 * KP}")
e(f"s_lshl_b32 {T3}, {r('tok16')}, 5")
e(f"s_add_u32 {T2}, {T2}, {T3}")
e(f"s_add_u32 {r('zo')}, {T2}, {YT}")
for s in range(4):
    e(f"s_add_u32 {T2}, {r('wave')}, {s + 1}")
    e(f"s_and_b32 {T2}, {T2}, 3")
    e(f"s_mul_i32 {T3}, {T2}, 12288")
    if s < 3:
        if PX + 4096 * s:
            e(f"s_add_u32 {T3}, {T3}, {PX + 4096 * s}")
        e(f"v_add_u32 {r('pw', s, 1)}, {T3}, {r('l16')}")
    else:
        e(f"v_add_u32 {r('psr')}, {T3}, {r('l16')}")
    e(f"s_lshl_b32 {T3}, {r('tt2')}, 2")
    e(f"s_add_u32 {T2}, {T2}, {T3}")
    e(f"s_mul_i32 {T2}, {T2}, 44032")
    e(f"s_add_u32 {T2}, {T2}, {HB}")
    e(f"v_add_u32 {r('hv', s, 1)}, {T2}, {r('l16')}")
e(f"v_lshrrev_b32 {r('ta')}, 1, {r('i15')}")
e(f"v_lshrrev_b32 {r('tb')}, 1, {r('h4')}")
e(f"v_xor_b32 {r('ta')}, {r('ta')}, {r('tb')}")
e(f"v_lshlrev_b32 {r('ta')}, 4, {r('ta')}")
e(f"v_lshl_add_u32 {r('ta')}, {r('i15')}, 7, {r('ta')}")
e(f"v_and_b32 {r('tc')}, 1, {r('h4')}")
e(f"v_lshl_add_u32 {r('ta')}, {r('tc')}, 3, {r('ta')}")
e(f"v_add_u32 {r('ea', 0, 1)}, {r('own')}, {r('ta')}")
for nb in range(1, 4):
    e(f"v_xor_b32 {r('ea', nb, 1)}, {32 * nb}, {r('ea', 0, 1)}")
e(f"s_and_b32 {T2}, {r('tok16')}, 7")
e(f"s_lshl_b32 {T2}, {T2}, 7")
e(f"s_add_u32 {T2}, {T2}, {STT}")
e(f"v_lshl_add_u32 {r('svr')}, {r('i15')}, 3, {T2}")
e(f"s_lshl_b32 {T2}, {r('wave')}, 8")
e(f"s_add_u32 {T2}, {T2}, {STT}")
e(f"v_lshl_add_u32 {r('stw')}, {r('i15')}, 3, {T2}")
e(f"v_lshl_add_u32 {r('stw')}, {r('tb')}, 7, {r('stw')}")
S("m1", 2); S("m2", 2); S("m3", 2)
e(f"s_mov_b32 {r('m1', 0, 1)}, 0xaaaaaaaa"); e(f"s_mov_b32 {r('m1', 1, 1)}, 0xaaaaaaaa")
e(f"s_mov_b32 {r('m2', 0, 1)}, 0xcccccccc"); e(f"s_mov_b32 {r('m2', 1, 1)}, 0xcccccccc")
e(f"s_mov_b32 {r('m3', 0, 1)}, 0"); e(f"s_mov_b32 {r('m3', 1, 1)}, -1")
e(f"v_lshrrev_b32 {r('ta')}, 2, {r('i15')}")
e(f"v_lshl_add_u32 {r('ta')}, {r('ta')}, 4, {r('i15')}")
e(f"v_lshlrev_b32 {r('bpa')}, 2, {r('ta')}")
e(f"v_lshlrev_b32 {r('ta')}, 4, {r('h4')}")
e(f"v_add_u32 {r('csr0')}, {CSX}, {r('ta')}")
e(f"s_lshl_b32 {T2}, {r('wave')}, 6")
e(f"v_add_u32 {r('csw')}, {T2}, {r('csr0')}")
e(f"s_lshl_b32 {T2}, {r('wodd')}, 6")
e(f"s_add_u32 {T2}, {T2}, 256")
e(f"v_add_u32 {r('csw2')}, {T2}, {r('csr0')}")
S("ho", 2, align=1)
e(f"s_lshl_b32 {T2}, {r('T1')}, 2")
e(f"s_add_u32 {T2}, {T2}, {r('wave')}")
e(f"s_mul_i32 {T2}, {T2}, 86")
e(f"s_add_u32 {T2}, {T2}, {r('b0')}")
e(f"s_lshl_b32 {T2}, {T2}, 10")
e(f"s_add_u32 {r('ho', 0, 1)}, {T2}, {HB}")
e(f"s_add_u32 {r('ho', 1, 1)}, {T2}, {HB + 44032}")
for i in range(4):
    e(f"v_accvgpr_write_b32 {r('zz', i, 1)}, 0")
if TOUCH:
    V("tB", 2)
    wlo, whi_ = r("sWS", 0, 1), r("sWS", 1, 1)
    ent = [(r("sA", 0, 1), r("sA", 1, 1), r("tile0")), (r("sB", 0, 1), r("sB", 1, 1), r("tile0")), (plo(3), phi(3), None),
           (plo(4), phi(4), None), (plo(8), phi(8), None), (plo(10), phi(10), None),
           (plo(9), phi(9), None), (plo(9), phi(9), 1 << 20), (plo(11), phi(11), r("tile0")),
           (wlo, whi_, EPOCH + 256), (wlo, whi_, FL + 4096), (wlo, whi_, r("kvo")),
           (wlo, whi_, r("chan")), (wlo, whi_, r("ho", 0, 1)), (wlo, whi_, r("yo")), (wlo, whi_, r("zo")),
           (wlo, whi_, HB + 0x100000), (wlo, whi_, HB + 0x200000), (wlo, whi_, HB + 0x300000), (wlo, whi_, HB + 0x400000),
           (wlo, whi_, HB + 0x500000), (wlo, whi_, HB), (wlo, whi_, YT + 0x100000), (wlo, whi_, 0x100000)]
    e(f"v_mov_b32 {r('tB', 0, 1)}, {wlo}")
    e(f"v_mov_b32 {r('tB', 1, 1)}, {whi_}")
    for k, (lo, hi, off) in enumerate(ent):
        if off is None:
            e(f"v_writelane_b32 {r('tB', 0, 1)}, {lo}, {k}")
            e(f"v_writelane_b32 {r('tB', 1, 1)}, {hi}, {k}")
        else:
            e(f"s_add_u32 {T2}, {lo}, {off}")
            e(f"s_addc_u32 {T3}, {hi}, 0")
            e(f"v_writelane_b32 {r('tB', 0, 1)}, {T2}, {k}")
            e(f"v_writelane_b32 {r('tB', 1, 1)}, {T3}, {k}")
    e(f"s_mul_i32 {T2}, {r('wave')}, 6")
    e(f"s_lshl_b32 exec_lo, 63, {T2}")
    e("s_mov_b32 exec_hi, 0")
    if TOUCH == 2:
        e("s_mov_b32 exec_lo, 0xffffff")
    e(f"global_load_dword {r('pre')}, {r('tB')}, off sc1", "touch")
    e("s_mov_b64 exec, -1")
    g.free("tB")
stamp("setup")
g.free("T1", "q", "tt2", "ns", "tok16", "whi", "b0", "ns128", "r8", "pc", "tid")


def unpack(dst, doff, src, soff, ndw):
    it = []
    for d in range(ndw):
        it.append(E(f"v_lshlrev_b32 {r(dst, doff + 2 * d, 1)}, 16, {r(src, soff + d, 1)}"))
        it.append(E(f"v_and_b32 {r(dst, doff + 2 * d + 1, 1)}, {r('hmask')}, {r(src, soff + d, 1)}"))
    return it


AC("xf", 128, at=0)
AC("wa", 48, at=128); AC("ca", 16, at=176)


def xf(K, tb):
    return r("xf", (K * 2 + tb) * 4, 4)


def rdX(ei):
    return [W(vm=f"X{ei}")] + [E(f"ds_read_b128 {xf(ei * 2 + k, tb)}, {r('xrd', k, 1)} offset:{(ei % 3) * 4096 + tb * 2048}", f"rx{ei}")
                               for k in range(2) for tb in range(2)]


def wbase(K):
    return ((K >> 1) % 4) * 12288 + (K & 1) * 6144


def rdW(K):
    return [E(f"ds_read_b64_tr_b16 {r('wa', (K & 1) * 24 + fb * 4 + 2 * hf, 2)}, {r('w1r', fb & 1, 1)} offset:{wbase(K) + hf * 768 + fb * 32}", f"rw{K}")
            for fb in range(6) for hf in range(2)]


def rdC(K):
    return [E(f"ds_read_b64_tr_b16 {r('ca', (K & 1) * 8 + c * 4 + 2 * hf, 2)}, {r('csr', c, 1)} offset:{wbase(K) + hf * 768}", f"rc{K}")
            for c in range(2) for hf in range(2)]


S("tag", 2)
run(dmaX(1))
run(rdX(0))
g.wait(vm="W0")
e("s_barrier")
run(rdW(0)); run(rdC(0))
stamp("x0")

V("acc", 48); AC("cs", 8, at=192); V("rs", 8); V("gr", 8)
V("big", 100)
B0 = g.names["big"][1]


def alias(name, off, n):
    g.names[name] = ("v", B0 + off, n)


alias("wf", 0, 32); alias("kf", 32, 40); alias("vr", 64, 8); alias("kr", 72, 20); alias("shr", 48, 16)
alias("vf", 72, 16)
small = [E(f"global_load_dword {r('bb', 0, 1)}, {r('bb', 0, 1)}, {ptr(8)}", "bb"),
         E(f"global_load_dword {r('bb', 1, 1)}, {r('bb', 1, 1)}, {ptr(10)}", "bb"),
         It(lambda: (e(f"s_mov_b32 {T0}, {EPOCH}"), e("s_mov_b64 exec, 1"),
                     e(f"buffer_load_dwordx2 {r('pf')}, {r('zero')}, {r('sWS')}, {T0} offen sc1", "ep"), e("s_mov_b64 exec, -1")), 2)]
alias("vr", 92, 8)
kvload = [It(lambda: (e(f"s_add_u32 m0, {r('kim')}, 1024"), e(f"s_mov_b32 {T0}, 7168"),
                      e(f"buffer_load_dwordx4 {r('kd', 1, 1)}, {r('sA')}, 0 offen lds", "k")), 2),
          E(f"buffer_load_dwordx4 {r('kd', 1, 1)}, {r('sA')}, {T0} offen offset:1024 lds", "k"),
          E(f"buffer_load_dwordx4 {r('vr', 0, 4)}, {r('k0')}, {r('sB')}, 0 offen {KVPOL}", "k"),
          E(f"buffer_load_dwordx4 {r('vr', 4, 4)}, {r('k0')}, {r('sB')}, 0 offen offset:1024 {KVPOL}", "k"),
          It(lambda: (e(f"s_mov_b32 m0, {r('kim')}"), e("s_mov_b32 exec_lo, 0"), e("s_mov_b32 exec_hi, 0xffffff00"),
                      e(f"buffer_load_dwordx4 {r('kd', 0, 1)}, {r('sA')}, 0 offen lds", "k"), e("s_mov_b64 exec, -1")), 2),
          It(lambda: (e(f"s_add_u32 m0, {r('kim')}, 3072"), e(f"s_mov_b64 {r('sA', 0, 2)}, {ptr(3)}"), e(f"s_mov_b32 {r('sA', 2, 1)}, 4096"),
                      e("s_mov_b32 exec_hi, 0"), e(f"buffer_load_dwordx4 {r('sho')}, {r('sA')}, 0 offen lds", "k"), e("s_mov_b64 exec, -1"),
                      e(f"s_mov_b64 {r('sA', 0, 2)}, {ptr(4)}"), e(f"s_mov_b64 {r('sB', 0, 2)}, {ptr(9)}"), e(f"s_mov_b32 {r('sB', 2, 1)}, 1409024")), 3)]
kvrd = [W(vm="k")]
kvrd += [E(f"ds_read_b128 {r('shr', 4 * i, 4)}, {r('sra')} offset:{3072 + 16 * i}", "rs") for i in range(4)]
kvrd += [E(f"ds_read_b128 {r('kr', 4 * k, 4)}, {r('kra')} offset:{640 + 128 * k}", "rk") for k in range(5)]
kvu = [W(lg="rs")]
for c in range(8):
    for j in range(4):
        src = r("shr", 2 * c + (j >> 1), 1)
        if j & 1:
            kvu.append(E(f"v_and_b32 {r('wf', j * 8 + c, 1)}, {r('hmask')}, {src}"))
        else:
            kvu.append(E(f"v_lshlrev_b32 {r('wf', j * 8 + c, 1)}, 16, {src}"))
kvu.append(W(lg="rk"))
kvu += unpack("kf", 0, "kr", 0, 20)
KS = lambda t, cp: r("kr", t * 8 + 2 * cp, 2)
kvc = []
for t in range(2):
    for cp in range(4):
        kvc.append(E(f"v_pk_mul_f32 {KS(t, cp)}, {r('kf', t * 8 + 2 * cp, 2)}, {r('wf', 24 + 2 * cp, 2)}"))
    for j in (2, 1, 0):
        for cp in range(4):
            kvc.append(E(f"v_pk_fma_f32 {KS(t, cp)}, {r('kf', (t + 3 - j) * 8 + 2 * cp, 2)}, {r('wf', j * 8 + 2 * cp, 2)}, {KS(t, cp)}"))
kvc += unpack("wf", 0, "vr", 0, 8)
for t in range(2):
    for cp in range(4):
        kvc.append(E(f"v_pk_mul_f32 {KS(t, cp)}, {KS(t, cp)}, {r('wf', t * 8 + 2 * cp, 2)}"))
alias("kvp", 92, 8)
for c in range(8):
    kvc.append(E(f"v_cvt_pk_bf16_f32 {r('kvp', c, 1)}, {r('kr', 8 + c, 1)}, {r('kr', c, 1)}"))
    kvc.append(E(f"ds_write_b32 {r('kvw')}, {r('kvp', c, 1)} offset:{128 * c}", "kvw"))
kvst = [E(f"ds_read_b128 {r('kvp', 0, 4)}, {r('kvr')}", "kvr0"), E(f"ds_read_b128 {r('kvp', 4, 4)}, {r('kvr')} offset:1040", "kvr1")]
kvst2 = [It(lambda: (g.wait(lg="kvr0"), e(f"buffer_store_dwordx4 {r('kvp', 0, 4)}, {r('kvs')}, {r('sWS')}, {r('kvo')} offen sc1", "kvst"),
                     e(f"s_add_u32 {r('kvo')}, {r('kvo')}, {8 * KP}")), 2),
         It(lambda: (g.wait(lg="kvr1"), e(f"buffer_store_dwordx4 {r('kvp', 4, 4)}, {r('kvs')}, {r('sWS')}, {r('kvo')} offen sc1", "kvst")), 2)]
alias("skr", 0, 12); alias("ke", 12, 24); alias("bt", 36, 4); alias("u", 40, 4); alias("b1f", 44, 24); alias("csf", 68, 24)
AC("ska", 12, at=200)
skload = [It(lambda: (e("s_mov_b64 exec, 1"), e(f"buffer_load_dwordx2 {r('ska', 0, 2)}, {r('sb')}, {r('sA')}, 0 offen", "sk"), e("s_mov_b64 exec, -1")), 2),
          E(f"buffer_load_dwordx4 {r('ska', 2, 4)}, {r('sa')}, {r('sA')}, 0 offen {KVPOL}", "sk"),
          E(f"buffer_load_dwordx4 {r('ska', 8, 4)}, {r('sa')}, {r('sA')}, 0 offen offset:1024 {KVPOL}", "sk")]
kcopy = [W(vm="sk")] + [E(f"v_accvgpr_read_b32 {r('skr', k, 1)}, {r('ska', k, 1)}") for k in (4, 5, 0, 1, 10, 11, 2, 3, 8, 9)]
for k in range(2):
    kcopy.append(E(f"v_mov_b32_dpp {r('skr', 6 + k, 1)}, {r('skr', 4 + k, 1)} wave_ror:1 row_mask:0xf bank_mask:0xf"))
for k in range(2):
    kcopy.append(E(f"v_mov_b32_dpp {r('skr', k, 1)}, {r('skr', 4 + k, 1)} wave_shr:1 row_mask:0xf bank_mask:0xf"))
for k in range(2):
    kcopy.append(E(f"v_mov_b32_dpp {r('skr', 6 + k, 1)}, {r('skr', 10 + k, 1)} wave_shr:1 row_mask:0xf bank_mask:0xf"))
for n in range(2):
    R = lambda k, c=1, n=n: r("skr", 6 * n + k, c)
    KE = lambda k, c=1, n=n: r("ke", 12 * n + k, c)
    kcopy.append(E(f"ds_write_b128 {r('kw')}, {R(2, 4)} offset:{3 * FP + 1024 * n}", "kc", 2))
    for k in range(4):
        kcopy.append(E(f"v_alignbit_b32 {KE(k)}, {R(k + 1)}, {R(k)}, 16"))
    kcopy.append(E(f"ds_write_b128 {r('kw')}, {KE(0, 4)} offset:{1024 * n}", "kc", 2))
    for k in range(4):
        kcopy.append(E(f"v_alignbit_b32 {KE(4 + k)}, {R(k + 2)}, {R(k + 1)}, 16"))
    kcopy.append(E(f"ds_write_b128 {r('kw')}, {KE(4, 4)} offset:{2 * FP + 1024 * n}", "kc", 2))
    for k in range(4):
        kcopy.append(E(f"v_mov_b32 {KE(8 + k)}, {R(1 + k)}"))
    kcopy.append(E(f"ds_write_b128 {r('kw')}, {KE(8, 4)} offset:{FP + 1024 * n}", "kc", 2))


def mfma(d, a, b, first):
    e(f"v_mfma_f32_16x16x32_bf16 {d}, {a}, {b}, {'0' if first else d}")


def M(d, a, b, first, wait=None):
    def fn():
        if wait:
            g.wait(**wait)
        mfma(d, a, b, first)
    return It(fn, 0.3 if wait else 0)


def mainM(K):
    return [M(r("acc", (fb * 2 + tb) * 4, 4), r("wa", (K & 1) * 24 + fb * 4, 4), xf(K, tb), K == 0,
              dict(lg=f"rw{K}") if fb == 0 and tb == 0 else None) for fb in range(6) for tb in range(2)]


def statM(K):
    items = []
    for tb in range(2):
        items.append(M(r("rs", tb * 4, 4), r("ones"), xf(K, tb), K == 0, dict(lg=f"rx{K >> 1}") if (tb == 0 and not K & 1) else None))
        items.append(M(r("gr", tb * 4, 4), xf(K, tb), xf(K, tb), K == 0))
    return items


def csM(K):
    return [M(r("cs", c * 4, 4), r("ca", (K & 1) * 8 + c * 4, 4), r("ones"), K == 0, dict(lg=f"rc{K}") if c == 0 else None) for c in range(2)]


def setflag(addr, tagname):
    e("s_mov_b64 exec, 1")
    e(f"buffer_store_dwordx2 {r('vtag')}, {r('zero')}, {r('sWS')}, {addr} offen sc1", tagname)
    e("s_mov_b64 exec, -1")


def pollissue(voff, tagname):
    e(f"buffer_load_dwordx2 {r('pf')}, {voff}, {r('sWS')}, 0 offen sc1", tagname)


def pollcheck(voff, tagname, before_spin=None):
    g.wait(vm=tagname)
    e(f"v_cmp_ne_u64 vcc, {r('tag')}, {r('pf')}")
    e("s_cmp_eq_u64 vcc, 0")
    e(f"s_cbranch_scc0 L_{tagname}")
    g.label(f"L_{tagname}_ok")

    def tail():
        g.label(f"L_{tagname}")
        if before_spin:
            for x in before_spin:
                e(x)
        if SPINMAX:
            e(f"s_mov_b32 {T4}, 0")
        g.label(f"L_{tagname}_l")
        e("s_sleep 1")
        e(f"buffer_load_dwordx2 {pfr}, {voff}, {sws}, 0 offen sc1")
        e("s_waitcnt vmcnt(0)")
        e(f"v_cmp_ne_u64 vcc, {tagr}, {pfr}")
        if SPINMAX:
            e(f"s_add_u32 {T4}, {T4}, 1")
            e(f"s_cmp_gt_u32 {T4}, {SPINMAX}")
            e(f"s_cbranch_scc1 L_{tagname}_ok")
        e("s_cmp_eq_u64 vcc, 0")
        e(f"s_cbranch_scc0 L_{tagname}_l")
        e(f"s_branch L_{tagname}_ok")
    pfr, sws, tagr = r("pf"), r("sWS"), r("tag")
    tails.append(tail)


tails = []
btab = [W(vm="bb")] + unpack("bt", 0, "bb", 0, 2) + [E(f"ds_write_b64 {r('bw', 0, 1)}, {r('bt', 0, 2)}", "btw"), E(f"ds_write_b64 {r('bw', 1, 1)}, {r('bt', 2, 2)}", "btw")]

W2SLOT = {0: ("x", S4 - S3), 1: ("o", 8192), 2: ("o", 0), 3: ("o", 4096), 4: ("x", 0),
          5: ("x", S4 - S3), 6: ("o", 8192), 7: ("o", 0), 8: ("o", 4096), 9: ("x", 0), 10: ("x", S4 - S3)}


def dmaW2(p):
    items = []
    kind, off = W2SLOT[p]
    for n in range(4):
        def it(n=n):
            if n == 0:
                e(f"s_add_u32 m0, {r('own') if kind == 'o' else r('w4k')}, {off}")
                if p >= 5:
                    g.wait(lg=f"rv{p - 5}")
            e(f"buffer_load_dwordx4 {r('w2s', n, 1)}, {r('sB')}, {r(f'kb{p}')} offen offset:{1024 * n} lds", f"V{p}")
        items.append(It(it, 1.2 if n else 1.8))
    return items


def w2f(p, nb, off=0, n=4):
    k = (p * 4 + nb) * 4 + off
    return f"a[{k}:{k + n - 1}]"


def rdW2(p):
    kind, off = W2SLOT[p]
    items = [W(vm=f"V{p}")]
    for nb in range(4):
        for hf in range(2):
            items.append(E(f"ds_read_b64_tr_b16 {w2f(p, nb, 2 * hf, 2)}, {r('w2r', nb + (0 if kind == 'o' else 4), 1)} offset:{off + hf * 2048}", f"rv{p}"))
    return items


alias("sg", 92, 2); alias("stv", 94, 2); alias("sac", 96, 4)
EPS = f2u(1e-5)


def rb(dst, src):
    return [E(f"v_cvt_pk_bf16_f32 {dst}, {src}, {src}"), E(f"v_and_b32 {dst}, {r('hmask')}, {dst}")]


st = []
for tb in range(2):
    G = lambda k, tb=tb: r("gr", tb * 4 + k, 1)
    ta_, tb_ = (r("ta"), r("tb")) if tb == 0 else (r("tc"), r("td"))
    st.append(E(f"v_cndmask_b32 {ta_}, {G(0)}, {G(1)}, {r('m1')}"))
    st.append(E(f"v_cndmask_b32 {tb_}, {G(2)}, {G(3)}, {r('m1')}"))
    st.append(E(f"v_cndmask_b32 {ta_}, {ta_}, {tb_}, {r('m2')}"))
    st.append(E(f"ds_bpermute_b32 {r('sg', tb, 1)}, {r('bpa')}, {ta_}", "bp"))
mu, var, t, w = (r("u", k, 1) for k in range(4))
mb, rsd = r("stv", 0, 1), r("stv", 1, 1)
st.append(E(f"v_cndmask_b32 {mu}, {r('rs', 0, 1)}, {r('rs', 4, 1)}, {r('m3')}"))
st.append(E(f"v_mul_f32 {mu}, 0x{f2u(1 / 512):08x}, {mu}"))
st += rb(mb, mu)
st_b = [W(lg="bp")]
st_b.append(E(f"v_cndmask_b32 {var}, {r('sg', 0, 1)}, {r('sg', 1, 1)}, {r('m3')}"))
st_b.append(E(f"v_mul_f32 {var}, 0x{f2u(1 / 512):08x}, {var}"))
st_b.append(E(f"v_fma_f32 {var}, -{mu}, {mu}, {var}"))
st_b.append(E(f"v_max_f32 {var}, 0, {var}"))
st_b += rb(t, var)
st_b.append(E(f"v_add_f32 {t}, 0x{EPS:08x}, {t}"))
st_b += rb(t, t)
st_b.append(E(f"v_sqrt_f32 {t}, {t}", cost=2))
st_b.append(E(f"v_sub_f32 {mu}, {mu}, {mb}"))
st_b += rb(t, t)
st_b.append(E(f"v_rcp_f32 {rsd}, {t}", cost=2))
st_b.append(E("s_nop 0"))
st_b.append(E(f"v_mul_f32 {mu}, {mu}, {rsd}"))
st_b.append(E(f"v_mul_f32 {var}, {var}, {rsd}"))
st_b.append(E(f"v_mul_f32 {var}, {var}, {rsd}"))
st_b.append(E(f"ds_write_b64 {r('stw')}, {r('stv')}", "stw"))
st_b += rb(t, var)
st_b.append(E(f"v_add_f32 {t}, 0x{EPS:08x}, {t}"))
st_b += rb(t, t)
st_b.append(E(f"v_sqrt_f32 {t}, {t}", cost=2))
st_b += rb(mu, mu)
st_b += rb(t, t)
st_b.append(E(f"v_rcp_f32 {w}, {t}", cost=2))
st_b.append(E(f"v_fma_f32 {mu}, {mb}, {rsd}, {mu}"))
st_b.append(E(f"v_mul_f32 {r('sac', 0, 1)}, {rsd}, {w}"))
st_b.append(E(f"v_mul_f32 {r('sac', 1, 1)}, {mu}, {w}"))
st_b.append(E(f"v_mul_f32 {r('sac', 2, 1)}, {rsd}, {w}"))
st_b.append(E(f"v_mul_f32 {r('sac', 3, 1)}, {mu}, {w}"))
st_b.append(E("s_nop 0"))
st_b.append(E(f"v_permlane32_swap_b32 {r('sac', 0, 1)}, {r('sac', 2, 1)}"))
st_b.append(E(f"v_permlane32_swap_b32 {r('sac', 1, 1)}, {r('sac', 3, 1)}"))

main = []
at = {}


def add(items, name=None):
    if name:
        at[name] = len(main)
        if name.startswith("K") and SSET == "k":
            f0 = items[0].fn
            items = [It(lambda: (stamp(name, "k"), f0()), items[0].cost)] + items[1:]
    main.extend(items)


def bar(K):
    def fn():
        if K < 15:
            g.wait(vm=f"W{(K + 1) >> 1}", lg=0)
        else:
            g.wait(lg=0)
        e("s_barrier")
        if K in (3, 7, 11, 15):
            stamp(f"c{K >> 2}")
    return [It(fn, 0)]


STAT = {K: [K] for K in range(10)}
STAT.update({10: [10, 11], 11: [12, 13], 12: [14, 15]})
KVK = int(opt.get("kvk", 7))
for K in range(13):
    if K == KVK:
        add([It(lambda: (stamp("kvb"), run(kvc), stamp("kv")), 0)], "KV")
    if K & 1:
        add(bar(K), f"B{K}")
    sm = sum((statM(k) for k in STAT[K]), [])
    add(sm + mainM(K), f"K{K}")
    at[f"m{K}"] = at[f"K{K}"] + len(sm)
    add(csM(K))
add(bar(13), "B13")
add(csM(13), "K13"); add(mainM(13), "m13")
add(csM(14), "K14"); add(csM(15)); add(mainM(14), "m14")
add(bar(15), "C3")
add(mainM(15), "K15")
at["end"] = len(main)
A = lambda n: at[n]
QR = []
for K in range(1, 14):
    lo = A(f"K{K - 1}") - (1 if (K & 1 == 0) else 0)
    hi = (A(f"B{K}") - 4 if K & 1 else A(f"K{K}") - 2)
    QR += win(rdW(K) + rdC(K), lo, hi)
QR += win(rdC(14), A("B13"), A("m13")) + win(rdC(15) + rdW(14), A("m13") + 1, A("K14") + 1)
QR += win(rdW(15), A("K14") + 2, A("C3") - 3)
XRD = {1: 1, 2: 3, 3: 5, 4: 7, 5: 9, 6: 10, 7: 11}
QX = []
for ei in range(1, 8):
    k = XRD[ei]
    QX += win(rdX(ei), A(f"K{k}") + 3, A(f"K{k}") + 12)


def aft(tag, items):
    f0 = items[0]
    return [It(lambda: (g.wait(lg=tag), f0()), f0.cost + 1)] + items[1:]


f1set = [It(lambda: (g.wait(vm="ep"), e(f"v_readfirstlane_b32 {r('tag', 0, 1)}, {r('pf', 0, 1)}"), e(f"v_readfirstlane_b32 {r('tag', 1, 1)}, {r('pf', 1, 1)}")), 3),
         It(lambda: (e(f"s_mul_i32 {r('tag', 0, 1)}, {r('tag', 0, 1)}, 0x9E3779B1"), e(f"s_mul_i32 {r('tag', 1, 1)}, {r('tag', 1, 1)}, 0x85EBCA6D")), 2),
         It(lambda: (e(f"s_add_u32 {r('tag', 0, 1)}, {r('tag', 0, 1)}, 0x7F4A7C15"), e(f"s_add_u32 {r('tag', 1, 1)}, {r('tag', 1, 1)}, 0x165667B1")), 2),
         It(lambda: (e(f"v_mov_b32 {r('vtag', 0, 1)}, {r('tag', 0, 1)}"), e(f"v_mov_b32 {r('vtag', 1, 1)}, {r('tag', 1, 1)}")), 2),
         It(lambda: (g.wait(vm="kvst"), setflag(r("f1a"), "f1")), 4)]
udma = [It(lambda: pollcheck(r("pf1o"), "pf1"), 4),
        It(lambda: (e(f"s_add_u32 {r('sA', 0, 1)}, {plo(13)}, {r('chan')}"), e(f"s_addc_u32 {r('sA', 1, 1)}, {phi(13)}, 0"), e(f"s_mov_b32 m0, {r('um0')}")), 3)]
for n in range(4):
    udma.append(E(f"buffer_load_dwordx4 {r('l16')}, {r('sA')}, {r('ush')} offen offset:{1024 * n} sc1 lds", "U"))
KW = lambda k0, k1=None: (A(f"K{k0}"), A(f"K{(k1 or k0) + 1}") - 2)
QV = win(dmaW1(2) + dmaX(2), *KW(0))
QV += win(dmaW1(3) + dmaX(3), *KW(1))
QV += win(kvload + skload + small, *KW(2))
QV += win(dmaW1(4) + dmaX(4), *KW(3))
QV += win(dmaW1(5) + dmaX(5), *KW(4, 5))
QV += win(dmaW1(6) + dmaX(6), A("K6"), A("KV") - 1)
QV += win(dmaW1(7) + kvst2, *KW(7))
QV += win(dmaX(7), *KW(8))
QV += win(dmaW2(0), *KW(9))
F1K = int(opt.get("f1k", 10))
QV += win(dmaW2(1) + (f1set[4:] if F1K == 10 else []), *KW(10))
QV += win(dmaW2(2) + (f1set[4:] if F1K == 11 else []), *KW(11))
QV += win(dmaW2(3), *KW(12))
QV += win([It(lambda: pollissue(r("pf1o"), "pf1"))], A("end") - 2, A("end") - 2)
csw = [It(lambda: (e("s_mov_b32 exec_lo, 0x00010001"), e("s_mov_b32 exec_hi, 0x00010001"),
                   e(f"ds_write_b128 {r('csw')}, {r('cs', 0, 4)}", "csw"), e(f"ds_write_b128 {r('csw2')}, {r('cs', 4, 4)}", "csw"),
                   e("s_mov_b64 exec, -1")), 5)]
rcs = [E(f"ds_read_b128 {r('csf', 4 * fb, 4)}, {r('csr0')} offset:{64 * fb}", "rcs") for fb in range(6)]
rb1 = [E(f"ds_read_b128 {r('b1f', 4 * fb, 4)}, {r('csr0')} offset:{B1T - CSX + 64 * fb}", "rb1") for fb in range(6)]
QM = win(kvrd, A("K5") + 1, A("K5") + 10)
QM += win(kvu, A("K5") + 12, A("KV") - 1)
QM += win(kvst, A("B7"), A("B7") + 1)
QM += win(f1set[:4] + btab, A("K7") + 4, A("K8") + 6)
QM += win(kcopy, A("K8") + 7, A("K11") - 2)
QM += win(rb1, *KW(11))
QM += win([E(f"ds_write_b128 {r('za')}, {r('zz')}", "zw", 2)], A("K12"), A("K12") + 4)
QM += win(csw, A("m14") + 4, A("m14") + 5)
QM += win(rcs, A("C3"), A("C3") + 6)
QS = win(st, A("m12") + 3, A("B13") - 1) + win(st_b, A("B13"), A("end") - 2)
schedule(main, [QR, QX, QV, QM, QS])
for n_ in ("wf", "kf", "vr", "kr", "shr", "vf", "kvp", "skr", "ke", "bt", "u", "sg", "stv"):
    del g.names[n_]
g.free("w1s", "w1lds", "sW1", "so", "f1a", "kvs", "pre", "kvo", "bb", "bw", "k0", "kd", "sho", "sa", "sb", "kvw", "kvr", "kra", "sra", "kw",
       "wa", "ca", "xf", "rs", "gr", "cs", "bpa", "m1", "m2", "m3", "csw", "csw2", "stw", "w1r", "csr", "ones",
       "xrd", "zz", "za", "ska", "ptr8", "ptr10", "ptr3", "ptr4", "ptr9", "kim", "xbase", "xk", "wo", "wlim")
AC("w2b", 176, at=0)
stamp("g1")
stamp("g1", "k")

K0 = -2.0 * 0.7978845608028654 * 1.4426950408889634
K1 = K0 * 0.044715
S("k1", 2); V("k0v", 2); V("ge", 16); V("hp", 8)
e(f"s_mov_b32 {r('k1', 0, 1)}, 0x{f2u(K1):08x}")
e(f"s_mov_b32 {r('k1', 1, 1)}, 0x{f2u(K1):08x}")
e(f"v_mov_b32 {r('k0v', 0, 1)}, 0x{f2u(K0):08x}")
e(f"v_mov_b32 {r('k0v', 1, 1)}, 0x{f2u(K0):08x}")
g.wait(lg="rcs")
e(".p2align 3")


def gelu(b, tb):
    it = []
    sac = r("sac", tb * 2, 2)
    prs = [(fb, h) for fb in (2 * b, 2 * b + 1) for h in range(2)]
    U = lambda k: r("acc", (prs[k][0] * 2 + tb) * 4 + 2 * prs[k][1], 2)
    Tm = lambda k: r("ge", (tb & 1) * 8 + 2 * k, 2)
    T1r = lambda k, x: r("ge", (tb & 1) * 8 + 2 * k + x, 1)
    for k, (fb, h) in enumerate(prs):
        it.append(E(f"v_pk_fma_f32 {Tm(k)}, {r('csf', fb * 4 + 2 * h, 2)}, {sac}, {r('b1f', fb * 4 + 2 * h, 2)} op_sel:[0,1,0] op_sel_hi:[1,1,1] neg_lo:[0,1,0] neg_hi:[0,1,0]"))
    for k in range(4):
        it.append(E(f"v_pk_fma_f32 {U(k)}, {U(k)}, {sac}, {Tm(k)} op_sel_hi:[1,0,1]"))
    for k in range(4):
        it.append(E(f"v_pk_mul_f32 {Tm(k)}, {U(k)}, {U(k)}"))
    for k in range(4):
        it.append(E(f"v_pk_fma_f32 {Tm(k)}, {Tm(k)}, {r('k1')}, {r('k0v')}"))
    for k in range(4):
        it.append(E(f"v_pk_mul_f32 {Tm(k)}, {Tm(k)}, {U(k)}"))
    for k in range(4):
        for x in range(2):
            it.append(E(f"v_exp_f32 {T1r(k, x)}, {T1r(k, x)}"))
    for k in range(4):
        it.append(E(f"v_pk_add_f32 {Tm(k)}, {Tm(k)}, 1.0 op_sel_hi:[1,0]"))
    for k in range(4):
        for x in range(2):
            it.append(E(f"v_rcp_f32 {T1r(k, x)}, {T1r(k, x)}"))
    for k in range(4):
        it.append(E(f"v_pk_mul_f32 {Tm(k)}, {Tm(k)}, {U(k)}"))
    for k in range(4):
        it.append(E(f"v_cvt_pk_bf16_f32 {r('hp', (tb & 1) * 4 + k, 1)}, {T1r(k, 0)}, {T1r(k, 1)}"))
    it.append(E(f"buffer_store_dwordx4 {r('hp', (tb & 1) * 4, 4)}, {r('l16')}, {r('sWS')}, {r('ho', tb, 1)} offen offset:{1024 * b} sc1", "hst"))
    return it


AC("cf", 32, at=176); AC("cg", 32, at=208)


def rdF(it, c):
    return E(f"ds_read_b128 {r('cf', 4 * c, 4)}, {r('fa')} offset:{64 * it + 512 * c}", f"F{it}_{c}")


def rdG(it, d):
    return E(f"ds_read_b128 {r('cg', 4 * d, 4)}, {r('ga')} offset:{64 * it + 512 * (7 - d)}", f"G{it}_{d}")


run(weave(gelu(0, 0), (dmaW2(4), 4, 44))); run(gelu(0, 1)); run(weave(gelu(1, 0), (udma, 0, 30))); run(gelu(1, 1))
g.free("pf1o", "um0", "ush", "chan")
e(f"s_cmp_lt_u32 {r('nown')}, 3")
e(f"s_cselect_b32 {r('ho', 0, 1)}, 0x7f000000, {r('ho', 0, 1)}")
e(f"s_cselect_b32 {r('ho', 1, 1)}, 0x7f000000, {r('ho', 1, 1)}")
e(".p2align 3")
init = []
for k in range(8):
    init += [rdF(0, 7 - k), rdG(0, k)]
run(gelu(2, 0))
g21 = gelu(2, 1)
run(g21[:28])
g.wait(vm="U", lg=0)
e("s_barrier")
stamp("b5")
run(weave(g21[28:], (init[:6], 0, 18)))
stamp("gelu")
del g.names["csf"], g.names["b1f"], g.names["sac"]
g.free("acc", "big", "ge", "k0v", "k1", "ho", "nown")
V("cy", 32, at=96)

main = []
QF = win(init[6:], 0, 9)
for it in range(4):
    at[f"I{it}"] = len(main)
    for c in range(7, -1, -1):
        for d in range(0, 8 - c):
            t = c + d
            wt = None
            if d == 0:
                wt = dict(lg=f"F{it}_0") if (c == 0 and it) else dict(lg=f"G{it}_{7 - c}")
                if it and c in (5, 3, 2, 1):
                    wt = None if c != 5 else dict(lg=f"G{it}_3")
                if it and c == 4:
                    wt = None
                if it and c == 3:
                    wt = dict(lg=f"F{it}_0")
                if it and c == 0:
                    wt = None
            main.append(M(r("cy", 4 * t, 4), r("cf", 4 * c, 4), r("cg", 4 * d, 4), it == 0 and d == 0, wt))
            if it == 0 and c == 0:
                main.append(M(r("cy", 4 * t, 4), r("fd"), r("cg", 4 * d, 4), False))
            idx = len(main) - 1
            if it < 3:
                if d == 7 - c and c > 0:
                    QF += win([rdF(it + 1, c)], idx, idx + 2)
                if c == 0:
                    QF += win([rdG(it + 1, d)], idx, idx)
                    if d == 7:
                        QF += win([rdF(it + 1, 0)], idx, idx)
at["I4"] = len(main)
QW = win(rdW2(0) + rdW2(1) + rdW2(2) + rdW2(3) + rdW2(4), 8, A("I1") + 14)
QW += win(rdW2(5) + rdW2(6) + rdW2(7) + rdW2(8) + rdW2(9), A("I2") + 14, A("I4") - 6)
QV = win(dmaW2(5) + dmaW2(6) + dmaW2(7) + dmaW2(8) + dmaW2(9), 22, A("I2") - 2)
F2POS = int(opt.get("f2pos", 30))
QF2 = win([It(lambda: (g.wait(vm="hst"), setflag(r("f2a"), "f2")), 4)], F2POS, F2POS)
QV += win(dmaW2(10), A("I2") + 28, A("I3") + 4)
P2A = int(opt.get("p2a", 20))
QV += win([It(lambda: pollissue(r("pf2o"), "pf2a"))], A("I4") - P2A, A("I4") - P2A)
V("sw", 8); V("swo"); S("early"); S("bumped")
QB = win([It(lambda: (e(f"v_mul_u32_u24 {r('swo')}, {4 * FSTR}, {r('h4')}"), e(f"v_lshl_add_u32 {r('swo')}, {r('i15')}, 4, {r('swo')}")), 2),
          It(lambda: (e(f"s_or_b32 {r('bumped')}, s2, {r('wave')}"), e(f"s_cselect_b32 {T2}, 0x7e000000, 0")), 2),
          It(lambda: (e(f"s_add_u32 {T2}, {T2}, {F1B}"), e(f"s_add_u32 {T3}, {T2}, {16 * FSTR}")), 2),
          E(f"buffer_load_dwordx4 {r('sw', 0, 4)}, {r('swo')}, {r('sWS')}, {T2} offen sc1", "sw"),
          E(f"buffer_load_dwordx4 {r('sw', 4, 4)}, {r('swo')}, {r('sWS')}, {T3} offen sc1", "sw")], 10, 18)
QM = win([E(f"s_lshr_b32 {r(f'kb{p}')}, {r(f'kb{p}')}, 5") for p in range(11)] +
         [E(f"s_min_u32 {r(f'kb{p}')}, {r(f'kb{p}')}, {42 * 1024}") for p in range(11)], A("I3") + 6, A("I4") - 2)
schedule(main, [QF, QW, QV, QM, QF2, QB])
stamp("conv")
g.free("cf", "cg", "fd", "fa", "ga", "w2s", "w4k", "f2a", "hp")
V("ys", 8); V("cg", 24); V("hf0", 44, at=212); V("hf1", 44, at=168); V("hf2", 8, at=160)
AC("hfa", 80, at=176)
HF = {}
for s_ in range(4):
    for p_ in range(11):
        k_ = s_ * 11 + p_
        HF[s_, p_] = r(f"hf{s_}", 4 * p_, 4) if k_ < 24 else r("hfa", 4 * (k_ - 24), 4)
HFIRST = int(opt.get("hfirst", 2))
HPOL = opt.get("hpol", "sc1").replace("+", " ")
HORD = [(s_, p_) for p_ in range(HFIRST) for s_ in range(4)]
HORD += [(s_, p_) for s_ in range(4) for p_ in range(HFIRST, 11)]
NE = int(opt.get("ne", 12))
HTXT = [f"buffer_load_dwordx4 {HF[s_, p_]}, {r('hv', s_, 1)}, {r('sWS')}, {r(f'kb{p_}')} offen {HPOL}" for s_, p_ in HORD]
hl_txt0 = HTXT[:NE]
g.wait(lg=0)
e(f"s_cmp_lg_u32 {r('wodd')}, 0")
e("s_cbranch_scc1 L_odd1")
for k in range(4):
    e(f"ds_write_b128 {r('oa')}, {r('cy', 16 + 4 * k, 4)} offset:{1024 * k}")
e("s_branch L_j1")
g.label("L_odd1")
e("s_nop 4")
for k in range(4):
    e(f"ds_write_b128 {r('oa')}, {r('cy', 4 * k, 4)} offset:{1024 * k}")
g.wait(lg=0)
for k in range(8):
    e(f"v_pk_mov_b32 {r('cy', 2 * k, 2)}, {r('cy', 16 + 2 * k, 2)}, {r('cy', 16 + 2 * k, 2)} op_sel:[0,1]")
g.label("L_j1")
e(f"s_add_u32 m0, {r('own')}, 6144")
g.wait(vm="pf2a")
e(f"v_cmp_ne_u64 vcc, {r('tag')}, {r('pf')}")
e(f"buffer_load_dwordx4 {r('xs', 0, 1)}, {r('sX')}, {r('tile0')} offen lds", "xt")
e(f"buffer_load_dwordx4 {r('xs', 1, 1)}, {r('sX')}, {r('tile0')} offen offset:1024 lds", "xt")
e("s_cmp_eq_u64 vcc, 0")
e(f"s_cselect_b32 {r('early')}, 1, 0")
g.wait(lg=0)
e("s_barrier")
for k in range(4):
    e(f"ds_read_b128 {r('cg', 4 * k, 4)}, {r('pa')} offset:{1024 * k}", f"ex{k}")
e("s_cbranch_scc0 L_noearly")
n_ = len(g.vm)
for x in hl_txt0:
    e(x)
del g.vm[n_:]
g.label("L_noearly")
pollissue(r("pf2o"), "pf2")
for k in range(4):
    g.wait(lg=f"ex{k}")
    for hh in range(2):
        e(f"v_pk_add_f32 {r('cy', 4 * k + 2 * hh, 2)}, {r('cy', 4 * k + 2 * hh, 2)}, {r('cg', 4 * k + 2 * hh, 2)}")
    for hh in range(2):
        e(f"v_cvt_pk_bf16_f32 {r('cg', 16 + 2 * k + hh, 1)}, {r('cy', 4 * k + 2 * hh, 1)}, {r('cy', 4 * k + 2 * hh + 1, 1)}")
    e(f"ds_write_b64 {r('yw')}, {r('cg', 16 + 2 * k, 2)} offset:{4096 + 512 * k}", f"yw{k}")
    if k & 1:
        e(f"ds_read_b128 {r('ys', 2 * (k - 1), 4)}, {r('oa')} offset:{4096 + 512 * (k - 1)}", f"yr{k >> 1}")
g.wait(lg="yr0")
e(f"buffer_store_dwordx4 {r('ys', 0, 4)}, {r('l16')}, {r('sWS')}, {r('yo')} offen sc1", "yst")
g.wait(lg="yr1")
e(f"buffer_store_dwordx4 {r('ys', 4, 4)}, {r('l16')}, {r('sWS')}, {r('yo')} offen offset:1024 sc1", "yst")
stamp("yst")
rv10 = rdW2(10)
g.free("cy", "pa", "yw", "cg", "yo")

V("ac2", 32)
e(f"s_cmp_eq_u32 {r('early')}, 1")
e("s_cbranch_scc1 L_haveH")
pollcheck(r("pf2o"), "pf2", before_spin=["s_waitcnt vmcnt(0)", "s_mov_b64 exec, 1",
          f"buffer_store_dwordx2 {r('vtag')}, {r('zero')}, {r('sWS')}, {r('f3a')} offen sc1", "s_mov_b64 exec, -1"])
for (s_, p_), x in zip(HORD, hl_txt0):
    e(x, f"H{s_}_{p_}")
g.label("L_haveH")
stamp("f2")
e(f"s_cmp_lg_u32 {r('bumped')}, 0")
e("s_cbranch_scc0 L_bump")
g.label("L_bumped")


def bump_tail():
    g.label("L_bump")
    if SPINMAX:
        e(f"s_mov_b32 {T4}, 0")
    g.label("L_bump_l")
    e(f"v_cmp_ne_u64 vcc, {tagr_}, {sw_[0]}")
    e(f"s_mov_b64 {r('t45', 0, 2)}, vcc")
    for k in range(1, 4):
        e(f"v_cmp_ne_u64 vcc, {tagr_}, {sw_[k]}")
        e(f"s_or_b64 {r('t45', 0, 2)}, {r('t45', 0, 2)}, vcc")
    e(f"s_cmp_eq_u64 {r('t45', 0, 2)}, 0")
    e("s_cbranch_scc1 L_bump_ok")
    if SPINMAX:
        e(f"s_add_u32 {T4}, {T4}, 1")
        e(f"s_cmp_gt_u32 {T4}, {SPINMAX}")
        e("s_cbranch_scc1 L_bumped")
    e(f"s_mov_b32 {T2}, {F1B}")
    e(f"s_mov_b32 {T3}, {F1B + 16 * FSTR}")
    e(f"buffer_load_dwordx4 {sw4_[0]}, {swo_}, {sws_}, {T2} offen sc1")
    e(f"buffer_load_dwordx4 {sw4_[1]}, {swo_}, {sws_}, {T3} offen sc1")
    e("s_waitcnt vmcnt(0)")
    e("s_branch L_bump_l")
    g.label("L_bump_ok")
    e(f"s_mov_b32 {T2}, {EPOCH}")
    e("s_mov_b64 exec, 1")
    e(f"buffer_store_dwordx2 {vtag_}, {zero_}, {sws_}, {T2} offen sc1")
    e("s_mov_b64 exec, -1")
    e("s_branch L_bumped")


tagr_, sws_, swo_, vtag_, zero_ = r("tag"), r("sWS"), r("swo"), r("vtag"), r("zero")
sw_ = [r("sw", 2 * k, 2) for k in range(4)]
sw4_ = [r("sw", 4 * k, 4) for k in range(2)]
tails.append(bump_tail)
g.free("sw", "swo", "bumped")
hl = [E(x, f"H{s_}_{p_}") for (s_, p_), x in zip(HORD, HTXT)]


def g2(s):
    return [M(r("ac2", (s & 1) * 16 + 4 * nb, 4), w2f(p, nb), HF[s, p], p == 0, dict(vm=f"H{s}_{p}") if nb == 0 else None)
            for p in range(11) for nb in range(4)]


def pwr(s):
    return [E(f"ds_write_b128 {r('pw', s, 1)}, {r('ac2', (s & 1) * 16 + 4 * nb, 4)} offset:{1024 * nb}", "pw", 2) for nb in range(4)]


V("xr", 8); V("xfp", 16); V("xn", 16); V("sv", 2)
pre = [W(vm="xt"), E(f"ds_read_b64 {r('sv')}, {r('svr')}", "sv")] + rv10[1:]
for nb in range(4):
    pre.append(E(f"ds_read_b64 {r('xr', 2 * nb, 2)}, {r('ea', nb, 1)} offset:6144", "xr"))
pre.append(W(lg="xr"))
pre += unpack("xfp", 0, "xr", 0, 8)
for d in range(8):
    pre.append(E(f"v_pk_add_f32 {r('xn', 2 * d, 2)}, {r('xfp', 2 * d, 2)}, {r('sv')} op_sel_hi:[1,0] neg_lo:[0,1] neg_hi:[0,1]"))
for d in range(8):
    pre.append(E(f"v_cvt_pk_bf16_f32 {r('xr', d, 1)}, {r('xn', 2 * d, 1)}, {r('xn', 2 * d + 1, 1)}"))
pre += unpack("xn", 0, "xr", 0, 8)
for d in range(8):
    pre.append(E(f"v_pk_mul_f32 {r('xn', 2 * d, 2)}, {r('xn', 2 * d, 2)}, {r('sv')} op_sel:[0,1] op_sel_hi:[1,1]"))
for d in range(8):
    pre.append(E(f"v_cvt_pk_bf16_f32 {r('xr', d, 1)}, {r('xn', 2 * d, 1)}, {r('xn', 2 * d + 1, 1)}"))
pre += unpack("xn", 0, "xr", 0, 8)
run(weave(pre, (hl[NE:NH0], 0, 40)))
g.wait(vm="yst")
setflag(r("f3a"), "f3")
g.free("ys", "xr", "sv", "svr", "pf2o", "w2r")
stamp("f3set")
ps_alias = {}
main = g2(0) + g2(1) + g2(2) + g2(3)[:8]
P3K = int(opt.get("p3k", 40))
HPACE = int(opt.get("hpace", 3))
QH = win(hl[NH0:P3K] + [It(lambda: pollissue(r("pf3o"), "pf3"))] + hl[P3K:], 1, 1 + HPACE * (44 - NH0))
QP = win(pwr(0), 52, 64) + win(pwr(1), 96, 108) + win(pwr(2), 135, 139)
schedule(main, [QH, QP])
stamp("g2s2")
g.wait(lg=0)
e("s_barrier")
g.free("hf0", "hf1")
V("ps", 48); V("zr", 8); V("b2f", 16)
rp = [E(f"ds_read_b128 {r('b2f', 4 * nb, 4)}, {r('csr0')} offset:{B2T - CSX + 64 * nb}", "rb2") for nb in range(4)]
rp += [E(f"ds_read_b128 {r('ps', 4 * k, 4)}, {r('psr')} offset:{PX + 1024 * k}", f"rp{k}") for k in range(12)]
adds = [W(lg="rp11")]
for k in range(16):
    adds.append(E(f"v_add_f32 {r('ps', k, 1)}, {r('ps', k, 1)}, {r('ps', 16 + k, 1)}"))
    adds.append(E(f"v_add_f32 {r('b2f', k, 1)}, {r('b2f', k, 1)}, {r('ps', 32 + k, 1)}"))
ztxt = [f"buffer_load_dwordx4 {r('zs')}, {r('sWS')}, {r('zo')} offen sc1 lds",
        f"buffer_load_dwordx4 {r('zs')}, {r('sWS')}, {T3} offen offset:1024 sc1 lds"]


def zfirst():
    g.wait(vm="pf3")
    e(f"v_cmp_ne_u64 vcc, {r('tag')}, {r('pf')}")
    e(f"s_add_u32 m0, {r('own')}, 8192")
    e(f"s_add_u32 {T3}, {r('zo')}, {32 * KP - 1024}")
    e("s_cmp_eq_u64 vcc, 0")
    e(f"s_cselect_b32 {r('early')}, 1, 0")
    e("s_cbranch_scc0 L_noz")
    n_ = len(g.vm)
    for x in ztxt:
        e(x)
    del g.vm[n_:]
    g.label("L_noz")
    pollissue(r("pf3o"), "pf3b")


ZPOS = int(opt.get("zpos", 12))
schedule(g2(3)[8:], [win(rp, 0, 9), win(adds, 15, 35), win([It(zfirst, 8)], ZPOS, ZPOS)])
stamp("g2")
S("nl2", 2)
e(f"s_mov_b32 {r('nl2', 0, 1)}, 0x{f2u(-1.4426950408889634):08x}")
e(f"s_mov_b32 {r('nl2', 1, 1)}, 0x{f2u(-1.4426950408889634):08x}")
srd("sA", 11, 2097152)
Mm = lambda k: r("ps", 2 * k, 2)
Tt = lambda k: r("ps", 16 + 2 * k, 2)
e(".p2align 3")
for k in range(8):
    e(f"v_pk_add_f32 {Mm(k)}, {Mm(k)}, {r('b2f', 2 * k, 2)}")
for k in range(8):
    e(f"v_pk_add_f32 {Mm(k)}, {Mm(k)}, {r('ac2', 16 + 2 * k, 2)}")
for k in range(8):
    e(f"v_pk_mul_f32 {Tt(k)}, {Mm(k)}, {r('nl2')}")
for k in range(16):
    e(f"v_exp_f32 {r('ps', 16 + k, 1)}, {r('ps', 16 + k, 1)}")
for k in range(8):
    e(f"v_pk_mul_f32 {Mm(k)}, {Mm(k)}, {r('xn', 2 * k, 2)}")
for k in range(8):
    e(f"v_pk_add_f32 {Tt(k)}, {Tt(k)}, 1.0 op_sel_hi:[1,0]")
for k in range(16):
    e(f"v_rcp_f32 {r('ps', 16 + k, 1)}, {r('ps', 16 + k, 1)}")
e(f"s_cmp_eq_u32 {r('early')}, 1")
e("s_cbranch_scc1 L_havez")
pollcheck(r("pf3o"), "pf3b")
for x in ztxt:
    e(x)
g.label("L_havez")
e("s_waitcnt vmcnt(0)")
stamp("z")
for nb in range(4):
    e(f"ds_read_b64_tr_b16 {r('zr', 2 * nb, 2)}, {r('zt')} offset:{8192 + 512 * nb}", f"zr{nb}")
for k in range(8):
    e(f"v_pk_mul_f32 {Mm(k)}, {Mm(k)}, {Tt(k)}")
for nb in range(4):
    g.wait(lg=f"zr{nb}")
    run(unpack("ps", 16 + 4 * nb, "zr", 2 * nb, 2))
    for k in (2 * nb, 2 * nb + 1):
        e(f"v_pk_fma_f32 {Mm(k)}, {Mm(k)}, {Tt(k)}, {r('xfp', 2 * k, 2)}")
    for k in (2 * nb, 2 * nb + 1):
        e(f"v_cvt_pk_bf16_f32 {r('zr', k, 1)}, {r('ps', 2 * k, 1)}, {r('ps', 2 * k + 1, 1)}")
    e(f"ds_write_b64 {r('ea', nb, 1)}, {r('zr', 2 * nb, 2)} offset:10240", "ow")
e(f"ds_read_b128 {r('ps', 32, 4)}, {r('oa')} offset:10240", "or0")
e(f"ds_read_b128 {r('ps', 36, 4)}, {r('oa')} offset:11264", "or1")
g.wait(lg="or0")
e(f"buffer_store_dwordx4 {r('ps', 32, 4)}, {r('xs', 0, 1)}, {r('sA')}, {r('tile0')} offen {OPOL}", "ost")
g.wait(lg="or1")
e(f"buffer_store_dwordx4 {r('ps', 36, 4)}, {r('xs', 1, 1)}, {r('sA')}, {r('tile0')} offen offset:1024 {OPOL}", "ost")
stamp("out")
if STAMPS:
    e("s_waitcnt vmcnt(0)")
    stamp("end")
    flush_stamps(True)
    e(f"s_lshl_b32 {T2}, s2, 2")
    e(f"s_add_u32 {T2}, {T2}, {r('wave')}")
    e(f"s_lshl_b32 {T2}, {T2}, 7")
    e(f"s_add_u32 {T2}, {T2}, {STAMP}")
    e(f"v_lshlrev_b32 {r('ta')}, 2, {r('lane')}")
    e("s_mov_b32 exec_hi, 0")
    e(f"buffer_store_dword {r('stamps')}, {r('ta')}, {r('sWS')}, {T2} offen")
    if DBG:
        e(f"s_cmp_lg_u32 {T2}, {STAMP + (DBG - 1) * 512}")
        e("s_cbranch_scc1 L_end")
        e(f"v_readfirstlane_b32 {T3}, {r('stamps')}")
        e(f"v_subrev_u32 {r('tb')}, {T3}, {r('stamps')}")
        e(f"global_store_dword {r('ta')}, {r('tb')}, {ptr(12)}")
PAD = int(opt.get("pad", 0))
if PAD:
    e(f"s_mov_b32 {T2}, 0")
    g.label("L_pad")
    for _ in range(120):
        e(f"v_add_u32 {r('ta')}, 1, {r('tb')}")
    e(f"s_add_u32 {T2}, {T2}, 1")
    e(f"s_cmp_lt_u32 {T2}, {PAD}")
    e("s_cbranch_scc1 L_pad")
g.label("L_end")
e("s_endpgm")
for t_ in tails:
    t_()

body = g.finish()
hdr = open("cdna_kernels/" + NAME + ".s.ref").read().split("; @launch")[0]
nv = 256 + g.hw["a"]
txt = f"""{hdr}; @launch grid=(256,1,1) block=(256,1,1) lds={LDSZ}
.amdgcn_target "amdgcn-amd-amdhsa--gfx950"
.text
.globl {NAME}_kernel
.p2align 8
.type {NAME}_kernel,@function
{NAME}_kernel:
{body}
    s_endpgm
.section .rodata,"a"
.p2align 6
.amdhsa_kernel {NAME}_kernel
  .amdhsa_next_free_vgpr {nv}
  .amdhsa_next_free_sgpr 102
  .amdhsa_accum_offset 256
  .amdhsa_group_segment_fixed_size 0
  .amdhsa_kernarg_size 112
  .amdhsa_user_sgpr_count 2
  .amdhsa_user_sgpr_kernarg_segment_ptr 1
  .amdhsa_system_sgpr_workgroup_id_x 1
.end_amdhsa_kernel
"""
import subprocess, re
open("_g.s", "w").write(txt.replace("CODE_BYTES", "0x1000"))
subprocess.check_call(["clang", "-x", "assembler", "-target", "amdgcn-amd-amdhsa", "-mcpu=gfx950", "-c", "_g.s", "-o", "_g.o"])
hh = subprocess.check_output(["llvm-objdump", "-h", "_g.o"]).decode()
size = int(re.search(r"\.text\s+([0-9a-f]+)", hh).group(1), 16)
txt = txt.replace("CODE_BYTES", str((size - 256) & ~3))
open(OUT, "w").write(txt)
print("code bytes", size, "instrs", len(g.ins), "nops", g.nops, "hw", g.hw, "stamps", nst[0], " ".join(stnames))
```

```python
import re

TRANS = ("v_exp_f32", "v_log_f32", "v_rcp_f32", "v_rsq_f32", "v_sqrt_f32", "v_sin_f32", "v_cos_f32")


def _regs(tok):
    tok = tok.strip()
    tok = tok.lstrip("-")
    if tok.startswith("abs(") or tok.startswith("|"):
        tok = tok.replace("abs(", "").replace(")", "").replace("|", "")
    m = re.fullmatch(r"([vas])\[(\d+):(\d+)\]", tok)
    if m:
        return [(m.group(1), i) for i in range(int(m.group(2)), int(m.group(3)) + 1)]
    m = re.fullmatch(r"([vas])(\d+)", tok)
    if m:
        return [(m.group(1), int(m.group(2)))]
    if tok == "vcc":
        return [("s", 106), ("s", 107)]
    if tok == "vcc_lo":
        return [("s", 106)]
    if tok == "vcc_hi":
        return [("s", 107)]
    if tok == "exec":
        return [("s", 126), ("s", 127)]
    if tok == "exec_lo":
        return [("s", 126)]
    if tok == "exec_hi":
        return [("s", 127)]
    if tok == "m0":
        return [("s", 124)]
    return []


class Ins:
    __slots__ = ("text", "op", "cls", "wr", "rd", "srcc", "ab", "lds", "wide_store")

    def __init__(self, text):
        self.text = text
        t = text.split(";")[0].strip()
        parts = t.split(None, 1)
        self.op = op = parts[0]
        rest = parts[1] if len(parts) > 1 else ""
        ops = []
        cur = ""
        depth = 0
        for ch in rest:
            if ch in "[(":
                depth += 1
            if ch in "])":
                depth -= 1
            if ch == "," and depth == 0:
                ops.append(cur.strip())
                cur = ""
            else:
                cur += ch
        if cur.strip():
            ops.append(cur.strip())
        mods = ""
        if ops:
            sp = ops[-1].split(None, 1)
            if len(sp) > 1:
                ops[-1] = sp[0]
                mods = sp[1]
        self.wr, self.rd, self.srcc, self.ab = [], [], [], []
        self.lds = False
        self.wide_store = False
        R = [_regs(o) for o in ops]
        if op.endswith(":") or op.startswith("."):
            self.cls = "label"
        elif op.startswith("v_mfma"):
            self.cls = "mfma"
            self.wr = R[0]
            self.ab = R[1] + R[2]
            self.srcc = R[3]
            self.rd = self.ab + self.srcc
        elif op.startswith("v_"):
            self.cls = "trans" if op.replace("_e32", "").replace("_e64", "") in TRANS else "valu"
            if op.startswith("v_cmp"):
                self.wr = R[0]
                self.rd = sum(R[1:], [])
                if op.startswith("v_cmpx"):
                    self.wr = self.wr + _regs("exec")
            elif op.startswith("v_add_co") or op.startswith("v_sub_co") or op.startswith("v_addc_co") or op.startswith("v_subb_co"):
                self.wr = R[0] + R[1]
                self.rd = sum(R[2:], [])
            elif op.startswith("v_permlane") and "swap" in op:
                self.wr = R[0] + R[1]
                self.rd = R[0] + R[1]
            else:
                self.wr = R[0]
                self.rd = sum(R[1:], [])
                if op.startswith("v_fmac") or op.startswith("v_dot2c") or "dpp" in op or "row_" in mods or "quad_perm" in mods:
                    self.rd = self.rd + R[0]
                if op.startswith("v_cndmask") and len(ops) == 3:
                    self.rd = self.rd + _regs("vcc")
            if "dpp" in op or "row_" in mods or "quad_perm" in mods:
                self.cls = "dpp"
        elif op.startswith("ds_"):
            self.cls = "ds"
            if op.startswith("ds_read") or op.startswith("ds_bpermute") or op.startswith("ds_permute") or op.startswith("ds_swizzle"):
                self.wr = R[0]
                self.rd = sum(R[1:], [])
            else:
                self.rd = sum(R, [])
        elif op.startswith("buffer_") or op.startswith("global_"):
            self.cls = "vmem"
            self.lds = bool(re.search(r"\blds\b", mods))
            if "load" in op and not self.lds:
                self.wr = R[0]
                self.rd = sum(R[1:], [])
            else:
                self.rd = sum(R, [])
                if self.lds:
                    self.rd = self.rd + _regs("m0")
                if "store" in op and ("x4" in op or "x3" in op):
                    self.wide_store = R[0] if op.startswith("buffer_") else R[1]
        elif op.startswith("s_"):
            self.cls = "salu"
            if op in ("s_waitcnt", "s_barrier", "s_nop", "s_sleep", "s_endpgm", "s_setprio") or op.startswith("s_cbranch") or op == "s_branch":
                self.cls = "sctl"
            elif op.startswith("s_cmp") or op.startswith("s_bitcmp"):
                self.rd = sum(R, [])
            elif op.startswith("s_load") or op.startswith("s_memtime") or op.startswith("s_memrealtime"):
                self.cls = "smem"
                self.wr = R[0]
                self.rd = sum(R[1:], [])
            else:
                self.wr = R[0]
                self.rd = sum(R[1:], [])
                if "saveexec" in op:
                    self.wr = self.wr + _regs("exec")
        else:
            raise ValueError("unknown op " + text)

    def states(self):
        if self.cls == "label":
            return 0
        if self.op == "s_nop":
            return int(self.text.split()[1]) + 1
        return 1


VALU_LIKE = ("valu", "trans", "dpp")


def need(p, c):
    n = 0
    pw = set(p.wr)
    if p.cls == "mfma":
        if c.cls == "mfma":
            if pw & set(c.ab):
                n = max(n, 8)
            if pw & set(c.srcc):
                if set(c.srcc) != pw:
                    n = max(n, 6)
            elif pw & set(c.wr):
                n = max(n, 6)
        elif c.cls in VALU_LIKE or c.cls in ("ds", "vmem"):
            if pw & (set(c.rd) | set(c.wr)):
                n = max(n, 8)
        if c.cls in VALU_LIKE and set(p.srcc) & set(c.wr):
            n = max(n, 3)
    if p.cls in VALU_LIKE:
        vw = {r for r in pw if r[0] in "va"}
        sw = {r for r in pw if r[0] == "s"}
        if c.cls == "mfma" and vw & set(c.rd):
            n = max(n, 2)
        if c.cls == "mfma" and (("s", 126) in sw):
            n = max(n, 4)
        if c.cls == "dpp" and vw & set(c.rd):
            n = max(n, 2)
        if c.cls == "dpp" and ("s", 126) in sw:
            n = max(n, 5)
        if c.op.startswith("v_permlane") and vw & set(c.rd):
            n = max(n, 2)
        if (c.op.startswith("v_readfirstlane") or c.op.startswith("v_readlane")) and vw & set(c.rd):
            n = max(n, 1)
        if c.cls == "vmem" and sw & set(c.rd):
            n = max(n, 5)
        if c.cls in VALU_LIKE and sw & set(c.rd):
            n = max(n, 4 if c.op.startswith("v_readlane") or c.op.startswith("v_writelane") else 2)
        if c.cls in ("salu", "sctl", "smem") and sw & set(c.rd):
            n = max(n, 1)
        if p.op.startswith("v_dot") and vw & (set(c.rd) | set(c.wr)):
            same_c = c.op == p.op and not (vw & set(c.rd[:-1] if c.rd else []))
            if not same_c:
                n = max(n, 3)
        if p.cls == "trans" and c.cls in ("valu", "dpp", "mfma", "ds", "vmem") and vw & set(c.rd):
            n = max(n, 1)
        if ("sdwa" in p.op or "op_sel" in p.text) and c.cls in VALU_LIKE and vw & (set(c.rd) | set(c.wr)) and not p.op.startswith("v_pk_"):
            n = max(n, 1)
    if p.cls == "salu":
        if ("s", 124) in pw and c.cls == "vmem" and c.lds:
            n = max(n, 1)
    if p.cls == "vmem" and p.wide_store:
        if set(p.wide_store) & set(c.wr):
            n = max(n, 2)
    return n


class Gen:
    def __init__(self):
        self.ins = []
        self.vm = []
        self.lg = []
        self.smem_out = False
        self.wlog = []
        self.pools = {"v": [None] * 256, "a": [None] * 256, "s": [None] * 102}
        self.names = {}
        self.hw = {"v": 0, "a": 0, "s": 0}

    def alloc(self, kind, name, n=1, align=None, lo=0, at=None):
        pool = self.pools[kind]
        if align is None:
            align = 1 if n == 1 else (2 if kind in "va" else (4 if n >= 4 else 2))
        assert name not in self.names, name
        rng = [at] if at is not None else range(lo, len(pool) - n + 1)
        for b in rng:
            if b % align:
                continue
            if all(pool[b + i] is None for i in range(n)):
                for i in range(n):
                    pool[b + i] = name
                self.names[name] = (kind, b, n)
                self.hw[kind] = max(self.hw[kind], b + n)
                return b
        raise RuntimeError(f"out of {kind} regs for {name} ({n}); used: {self.usage(kind)}")

    def usage(self, kind):
        return {k: v[1:] for k, v in self.names.items() if v[0] == kind}

    def free(self, *names):
        for name in names:
            kind, b, n = self.names.pop(name)
            for i in range(n):
                self.pools[kind][b + i] = None

    def r(self, name, off=0, n=None):
        kind, b, tot = self.names[name]
        if n is None:
            n = tot - off if off == 0 else 1
        assert off + n <= tot, (name, off, n, tot)
        if n == 1:
            return f"{kind}{b + off}"
        return f"{kind}[{b + off}:{b + off + n - 1}]"

    def e(self, text, tag=None):
        for line in text.split("\n"):
            line = line.strip()
            if not line:
                continue
            i = Ins(line)
            self.ins.append(i)
            if i.cls == "vmem":
                self.vm.append(tag)
            elif i.cls == "ds":
                self.lg.append(tag)
            elif i.cls == "smem":
                self.smem_out = True

    def label(self, name):
        self.ins.append(Ins(name + ":"))

    def comment(self, s):
        self.ins.append(Ins(".if 0"))
        self.ins.pop()

    def _cnt(self, lst, tag):
        idx = max(i for i, t in enumerate(lst) if t == tag)
        self.wlog.append((lst, tag, lst.count(tag)))
        return len(lst) - 1 - idx

    def wait(self, vm=None, lg=None):
        parts = []
        if vm is not None:
            n = 0 if vm == 0 else self._cnt(self.vm, vm)
            n = min(n, 63)
            parts.append(f"vmcnt({n})")
        if lg is not None:
            n = 0 if lg == 0 else self._cnt(self.lg, lg)
            if self.smem_out:
                n = 0
            n = min(n, 15)
            if n == 0:
                self.smem_out = False
            parts.append(f"lgkmcnt({n})")
        self.e("s_waitcnt " + " ".join(parts))

    def finish(self, align8=True):
        for lst, tag, c in self.wlog:
            assert lst.count(tag) == c, ("wait on partially issued group", tag, c, lst.count(tag))
        out = []
        hist = []
        nops = 0
        for i in self.ins:
            if i.cls != "label":
                req = 0
                dist = 0
                for p in reversed(hist):
                    nd = need(p, i)
                    if nd > dist:
                        req = max(req, nd - dist)
                    dist += p.states()
                    if dist >= 20:
                        break
                if req:
                    nop = Ins(f"s_nop {req - 1}")
                    out.append(nop)
                    hist.append(nop)
                    nops += 1
                hist.append(i)
            out.append(i)
        self.nops = nops
        return "\n".join(("" if x.cls == "label" else "    ") + x.text for x in out)


def interleave(main, fill, start=0, every=1, per=1):
    out = []
    f = list(fill)
    for n, m in enumerate(main):
        out.append(m)
        if n >= start and (n - start) % every == 0:
            for _ in range(per):
                if f:
                    out.append(f.pop(0))
    out.extend(f)
    return out


class It:
    __slots__ = ("fn", "cost", "lo", "hi")

    def __init__(self, fn, cost=1, lo=0, hi=10 ** 9):
        self.fn, self.cost, self.lo, self.hi = fn, cost, lo, hi

    def __call__(self):
        self.fn()


def win(items, lo, hi, pace=True):
    out = []
    n = len(items)
    for k, it in enumerate(items):
        if not isinstance(it, It):
            it = It(it)
        a = lo + (k * (hi - lo + 1)) // n if pace else lo
        b = max(a, hi - (n - 1 - k) // 2) if not pace else max(a, min(hi, a + max(1, (hi - lo + 1) // n)))
        out.append(It(it.fn, it.cost, a, b))
    return out


def schedule(main, queues, cap=2.3):
    qs = [list(q) for q in queues]
    for idx, m in enumerate(main):
        m()
        room = cap - (main[idx + 1].cost if idx + 1 < len(main) else 0)
        while True:
            cand = [q for q in qs if q and q[0].lo <= idx]
            if not cand:
                break
            q = min(cand, key=lambda q: min(x.hi for x in q[:8]))
            dl = min(x.hi for x in q[:8])
            if room >= q[0].cost or dl <= idx:
                it = q.pop(0)
                it()
                room -= it.cost
            else:
                alt = [c for c in cand if c[0].cost <= room]
                if not alt:
                    break
                q = min(alt, key=lambda q: min(x.hi for x in q[:8]))
                it = q.pop(0)
                it()
                room -= it.cost
    for q in qs:
        for it in q:
            it()
```

```python
import sys, struct
from dsl import Gen, It, win, schedule

NAME = "recurrent_scan__ssm_conv_h3__mixer_channel_mlp__prompt"
opt = dict(a.split("=") for a in sys.argv[2:])
OUT = sys.argv[1]
MAP1 = int(opt.get("map1", 4))
STAMPS = int(opt.get("stamps", 0))
KVPOL = opt.get("kvpol", "")
XPOL0 = opt.get("xpol", "")
SPINMAX = int(opt.get("spinmax", 0))
PREDIV = int(opt.get("prediv", 16))
OPOL = opt.get("opol", "")
DBG = int(opt.get("dbg", 0))
SSET = opt.get("sset", "main")
TOUCH = int(opt.get("touch", 0))
NH0 = int(opt.get("nh0", 12))
NX0 = int(opt.get("nx0", 7))

KP = int(opt.get("kp", 4352))
KVT, HB, YT, FL, EPOCH, STAMP = 0, 0x240000, 0x800000, 0xA40000, 0xB00000, 0xC00000
F1B, F2B, F3B, FSTR = FL, FL + 0x40000, FL + 0x80000, 4352
STA, STB = 0xAE0000, 0xAE8000
HALT = int(opt.get("halt", "0"), 0)
WSZ = 0xD00000 + HALT
XST, KVIMG, CSX, STT = 98816, 147968, 156288, 156672
FP, GP = 4160, 4576
WR = 49664
UB0 = 66048
S3, S4 = 49664, 33280
PX = 0
B1T, B2T = 157696, 158080
LDSZ = 158336


def f2u(x):
    return struct.unpack("<I", struct.pack("<f", x))[0]


g = Gen()
e, r = g.e, g.r
V = lambda n, c=1, **k: g.alloc("v", n, c, **k)
S = lambda n, c=1, **k: g.alloc("s", n, c, **k)
AC = lambda n, c=1, **k: g.alloc("a", n, c, **k)
W = lambda **k: It(lambda: g.wait(**k), 0.3)
E = lambda s, t=None, cost=None: It(lambda: e(s, t), cost or (1.2 if s.startswith(('ds_', 'buffer_', 'global_')) else 0.3 if s.startswith('s_') else 1))


def run(items):
    for it in items:
        it()


def weave(main, *bgs):
    slots = [[] for _ in main]
    for items, a, b in bgs:
        b = min(b, len(main) - 1)
        n = len(items)
        for k, it in enumerate(items):
            slots[a + (k * (b - a + 1)) // max(n, 1)].append(it)
    out = []
    for m, s in zip(main, slots):
        out.append(m)
        out.extend(s)
    return out


S("karg", 2, at=0); S("wg", 1, at=2); S("t0", 1, at=3)
S("t45", 4, at=4)
for i_ in range(14):
    S(f"ptr{i_}", 2, at=8 + 2 * i_)
V("tid", 1, at=0)
nst = [0]
stnames = []
pend = []
if STAMPS:
    S("st", 8, at=94, align=2)
    V("stamps", 1, at=1)


def flush_stamps(force=False):
    if pend and (force or len(pend) == 4) and g.smem_out:
        g.wait(lg=0)
    if not g.smem_out:
        for k in pend:
            e(f"v_writelane_b32 {r('stamps')}, {r('st', 2 * (k % 4), 1)}, {k}")
        pend.clear()


def stamp(name, grp="main"):
    if STAMPS and (grp == SSET or name in ("start", "end")) and name not in opt.get("skip", "").split(","):
        assert nst[0] < 32
        flush_stamps()
        e(f"{'s_memtime' if STAMPS == 2 else 's_memrealtime'} {r('st', 2 * (nst[0] % 4), 2)}")
        pend.append(nst[0])
        nst[0] += 1
        stnames.append(name)


_wait = g.wait
_wn = [0]
VM0 = int(opt.get("vm0", 0))


def wait_hook(vm=None, lg=None):
    hook = SSET == "vm" and vm is not None and not str(vm).startswith("H")
    if hook:
        _wn[0] += 1
        hook = VM0 < _wn[0] <= VM0 + 15
    if hook:
        stamp(f"b{vm}", "vm")
    _wait(vm=vm, lg=lg)
    if hook:
        stamp(f"a{vm}", "vm")


g.wait = wait_hook


def ptr(i):
    if i == 13 and "ptr13" not in g.names:
        return r("sWS", 0, 2)
    return r(f"ptr{i}")


def plo(i):
    return "s" + ptr(i)[2:].split(":")[0]


def phi(i):
    return "s" + ptr(i).split(":")[1][:-1]


def srd(name, pi, nbytes, add=None):
    if add is None:
        e(f"s_mov_b64 {r(name,0,2)}, {ptr(pi)}")
    else:
        e(f"s_add_u32 {r(name,0,1)}, {plo(pi)}, {add}")
        e(f"s_addc_u32 {r(name,1,1)}, {phi(pi)}, 0")
    e(f"s_mov_b32 {r(name,2,1)}, {nbytes}")
    e(f"s_mov_b32 {r(name,3,1)}, 0x00020000")


T0, T1_, T2, T3, T4 = "s3", "s4", "s5", "s6", "s7"
ABL = opt.get("abl", "").split(",")
_e0 = g.e


def e(text, tag=None):
    t = tag or ""
    if ("x" in ABL and t.startswith("X") and t != "X0") or ("w" in ABL and t.startswith("W") and t != "W0") or \
            ("v" in ABL and t.startswith("V")):
        g.vm.append(tag)
        g.vm.pop()
        g.vm.insert(0, tag)
        return
    hook = SSET == "iss" and (text.startswith(("buffer_", "global_", "s_barrier")) or (text.startswith("s_waitcnt") and "vmcnt" in text))
    if hook:
        _in[0] += 1
        hook = VM0 < _in[0] <= VM0 + 15
    if hook:
        stamp("b" + (tag or text.split()[0][2:6]), "iss")
    _e0(text, tag)
    if hook:
        stamp("a", "iss")


_in = [0]
g.e = e


UNTIL = int(opt.get("until", 0))
if UNTIL:
    S("t_start", 2, at=92)
    e(f"s_memrealtime {r('t_start')}")
stamp("start")
e("s_load_dwordx16 s[8:23], s[0:1], 0")
e("s_load_dwordx8 s[24:31], s[0:1], 64")
e("s_load_dwordx4 s[32:35], s[0:1], 96")
e("s_cmp_ge_u32 s2, 256")
e("s_cbranch_scc1 L_end")
for n in ("lane", "ta", "tb", "tc", "td", "r8", "pc", "zero", "i15", "h4", "l16", "oa", "fa", "ga", "pa", "yw", "zs", "zt",
          "pf1o", "pf2o", "pf3o", "psr", "svr", "kw", "za", "sgo", "csw", "csw2", "csr0", "stw"):
    V(n)
V("vtag", 2); V("xs", 4, align=1); V("w2s", 4, align=1); V("w2r", 8, align=1); V("hv", 4, align=1)
V("pw", 3, align=1); V("ea", 4, align=1); V("pf", 2)
V("xrd", 2, align=1); V("w1r", 2, align=1); V("csr", 2, align=1); V("w1s", 3, align=1)
AC("fd", 4, at=240); AC("ones", 4, at=244); AC("zz", 4, at=248)
for n in ("wave", "T1", "q", "tt2", "ns", "rot", "b0", "nown", "tok16", "ns128", "tile0", "own", "hmask", "so",
          "f1a", "f2a", "f3a", "yo", "zo", "um0", "ush"):
    S(n)
sh_ = PREDIV.bit_length() - 1
V("pre")
e(f"s_lshr_b32 {T1_}, s2, 3")
e(f"v_lshrrev_b32 {r('tc')}, {sh_}, v0")
e(f"s_and_b32 {T2}, {T1_}, {PREDIV - 1}")
e(f"v_lshl_add_u32 {r('tc')}, {r('tc')}, {sh_}, {T2}")
e(f"v_lshlrev_b32 {r('tc')}, 7, {r('tc')}")
e(f"v_min_u32 {r('tc')}, CODE_BYTES, {r('tc')}")
e(f"s_getpc_b64 {r('t45', 2, 2)}")
e(f"global_load_dword {r('pre')}, {r('tc')}, {r('t45', 2, 2)}", "pre")
e(f"v_and_b32 {r('lane')}, 63, v0")
e(f"v_lshrrev_b32 {r('ta')}, 6, v0")
e(f"s_and_b32 {T0}, s2, 7")
e(f"v_readfirstlane_b32 {r('wave')}, {r('ta')}")
if MAP1 == 8:
    e(f"s_lshr_b32 {T2}, {T1_}, 4")
    e(f"s_lshl_b32 {r('T1')}, {T0}, 1")
    e(f"s_add_u32 {r('T1')}, {r('T1')}, {T2}")
    e(f"s_and_b32 {r('q')}, {T1_}, 15")
    e(f"s_lshl_b32 {T2}, {T2}, 2")
    e(f"s_add_u32 {r('rot')}, {T2}, {r('q')}")
else:
    e(f"s_lshr_b32 {T2}, {T0}, 1")
    e(f"s_lshl_b32 {T2}, {T2}, 2")
    e(f"s_lshr_b32 {T3}, {T1_}, 3")
    e(f"s_add_u32 {r('T1')}, {T2}, {T3}")
    e(f"s_and_b32 {T2}, {T0}, 1")
    e(f"s_lshl_b32 {T2}, {T2}, 3")
    e(f"s_and_b32 {T3}, {T1_}, 7")
    e(f"s_add_u32 {r('q')}, {T2}, {T3}")
    e(f"s_lshl_b32 {T2}, {r('T1')}, 1")
    e(f"s_add_u32 {r('rot')}, {T2}, {r('q')}")
e(f"s_and_b32 {r('rot')}, {r('rot')}, 7")
e(f"s_lshr_b32 {T2}, {r('q')}, 3")
e(f"s_lshl_b32 {r('tt2')}, {r('T1')}, 1")
e(f"s_add_u32 {r('tt2')}, {r('tt2')}, {T2}")
e(f"s_and_b32 {r('ns')}, {r('q')}, 7")
V("k0"); V("kd", 2, align=1); V("sho")
e(f"v_lshrrev_b32 {r('r8')}, 3, {r('lane')}")
e(f"v_and_b32 {r('pc')}, 7, {r('lane')}")
e(f"s_lshl_b32 {T2}, {r('tt2')}, 2")
e(f"s_add_u32 {r('tok16')}, {T2}, {r('wave')}")
e(f"s_lshl_b32 {T2}, {r('tok16')}, 14")
e(f"s_lshl_b32 {r('ns128')}, {r('ns')}, 7")
e(f"s_add_u32 {r('tile0')}, {T2}, {r('ns128')}")
e(f"s_mul_i32 {r('own')}, {r('wave')}, 12288")
e(f"s_add_u32 {r('own')}, {r('own')}, {XST}")
S("sA", 4); S("sB", 4); S("sX", 4); S("sW1", 4); S("sWS", 4)
for nm, sz in (("sX", 2097152), ("sW1", 1409024)):
    e(f"s_mov_b32 {r(nm,2,1)}, {sz}")
    e(f"s_mov_b32 {r(nm,3,1)}, 0x00020000")
for c in range(3):
    e(f"v_add_u32 {r('ta')}, {64 * c}, {r('lane')}")
    e(f"v_mul_u32_u24 {r('tb')}, 43691, {r('ta')}")
    e(f"v_lshrrev_b32 {r('tb')}, 19, {r('tb')}")
    e(f"v_mul_u32_u24 {r('tc')}, 12, {r('tb')}")
    e(f"v_sub_u32 {r('tc')}, {r('ta')}, {r('tc')}")
    e(f"v_lshrrev_b32 {r('td')}, 2, {r('tb')}")
    e(f"v_and_b32 {r('td')}, 2, {r('td')}")
    e(f"v_xor_b32 {r('tc')}, {r('tc')}, {r('td')}")
    e(f"v_mul_u32_u24 {r('tb')}, 2752, {r('tb')}")
    e(f"v_lshl_add_u32 {r('tb')}, {r('tc')}, 4, {r('tb')}")
    e(f"v_subrev_u32 {r('w1s', c, 1)}, {1024 * c}, {r('tb')}")
e(f"s_mul_i32 {r('b0')}, {r('q')}, 43")
e(f"s_add_u32 {r('nown')}, {r('b0')}, 43")
e(f"s_lshr_b32 {r('b0')}, {r('b0')}, 4")
e(f"s_lshr_b32 {r('nown')}, {r('nown')}, 4")
e(f"s_sub_u32 {r('nown')}, {r('nown')}, {r('b0')}")
S("w1lds"); S("xbase"); S("xk"); S("wo"); S("wlim")
e(f"s_lshl_b32 {T3}, {r('b0')}, 6")
e(f"s_lshl_b32 {T2}, {r('T1')}, 2")
e(f"s_add_u32 {T2}, {T2}, {r('wave')}")
e(f"s_lshl_b32 {r('xbase')}, {T2}, 15")
e(f"s_lshl_b32 {r('xk')}, {r('rot')}, 7")
e(f"s_mul_i32 {T4}, {r('wave')}, {16 * 2752}")
e(f"s_add_u32 {T4}, {T4}, {T3}")
e(f"s_add_u32 {r('wlim')}, {T4}, {512 * 2752}")
e(f"s_mul_i32 {T2}, {r('rot')}, {64 * 2752}")
e(f"s_add_u32 {r('wo')}, {T2}, {T4}")
e(f"s_mul_i32 {r('w1lds')}, {r('wave')}, 3072")
e(f"s_add_u32 {r('w1lds')}, {r('w1lds')}, {WR}")
e(f"v_lshrrev_b32 {r('ta')}, 1, {r('r8')}")
e(f"v_xor_b32 {r('ta')}, {r('ta')}, {r('pc')}")
e(f"v_lshlrev_b32 {r('ta')}, 4, {r('ta')}")
e(f"v_lshl_add_u32 {r('xs', 0, 1)}, {r('r8')}, 10, {r('ta')}")
e(f"v_xor_b32 {r('tb')}, 64, {r('xs', 0, 1)}")
e(f"v_add_u32 {r('xs', 1, 1)}, 7168, {r('tb')}")
e(f"v_add_u32 {r('xs', 2, 1)}, {2 * 7168}, {r('xs', 0, 1)}")
e(f"v_add_u32 {r('xs', 3, 1)}, {3 * 7168}, {r('tb')}")
g.wait(lg=0)
e(f"s_mov_b64 {r('sX',0,2)}, {ptr(0)}")
e(f"s_mov_b64 {r('sW1',0,2)}, {ptr(7)}")


def dmaW1(n):
    items = []
    for c in range(3):
        def it(c=c):
            if c == 0:
                e(f"s_add_u32 m0, {r('w1lds')}, {(n % 4) * 12288}")
                if n:
                    e(f"s_cmp_ge_u32 {r('wo')}, {r('wlim')}")
                    e(f"s_cselect_b32 {T2}, {512 * 2752}, 0")
                    e(f"s_sub_u32 {r('wo')}, {r('wo')}, {T2}")
            e(f"buffer_load_dwordx4 {r('w1s', c, 1)}, {r('sW1')}, {r('wo')} offen offset:{1024 * c} lds", f"W{n}")
            if c == 2:
                e(f"s_add_u32 {r('wo')}, {r('wo')}, {64 * 2752}")
        items.append(It(it, (2, 1.2, 1.5)[c]))
    return items


def dmaX(ei):
    items = []
    for n in range(4):
        def it(n=n):
            xo = r("so")
            if n == 0:
                e(f"s_add_u32 m0, {r('own')}, {(ei % 3) * 4096}")
                e(f"s_or_b32 {xo}, {r('xk')}, {r('xbase')}")
            pol = XPOL0 if ei < 1 else ""
            e(f"buffer_load_dwordx4 {r('xs', n, 1)}, {r('sX')}, {xo} offen offset:{1024 * n} {pol} lds", f"X{ei}")
            if n == 1:
                e(f"s_add_u32 {r('xk')}, {r('xk')}, 128")
            if n == 2:
                e(f"s_and_b32 {r('xk')}, {r('xk')}, 0x3ff")
        items.append(It(it, (1.8, 1.5, 1.5, 1.2)[n]))
    return items


srd("sWS", 13, WSZ)
V("sx", 8, at=200); V("sacc", 4); V("u", 4); V("gq", 4); V("stv", 2)
e(f"v_mov_b32 {r('zero')}, 0")
e(f"s_mov_b32 {T0}, {EPOCH}")
e("s_mov_b64 exec, 1")
e(f"buffer_load_dwordx2 {r('pf')}, {r('zero')}, {r('sWS')}, {T0} offen sc1", "ep")
e("s_mov_b64 exec, -1")
e(f"v_lshrrev_b32 {r('ta')}, 5, {r('lane')}")
e(f"v_and_b32 {r('tb')}, 31, {r('lane')}")
e(f"v_lshlrev_b32 {r('tb')}, 4, {r('tb')}")
e(f"v_lshl_add_u32 {r('tb')}, {r('ta')}, 10, {r('tb')}")
e(f"s_lshl_b32 {T2}, {r('T1')}, 4")
e(f"s_add_u32 {T2}, {T2}, {r('q')}")
e(f"s_lshl_b32 {T2}, {T2}, 2")
e(f"s_add_u32 {T2}, {T2}, {r('wave')}")
e(f"s_lshl_b32 {T3}, {T2}, 11")
e(f"buffer_load_dwordx4 {r('sx', 0, 4)}, {r('tb')}, {r('sX')}, {T3} offen", "sx")
e(f"buffer_load_dwordx4 {r('sx', 4, 4)}, {r('tb')}, {r('sX')}, {T3} offen offset:512", "sx")
e(f"s_lshl_b32 {T2}, {T2}, 5")
e(f"s_add_u32 {T2}, {T2}, {STA}")
e(f"v_lshl_add_u32 {r('stw')}, {r('ta')}, 4, {T2}")
e(f"v_and_b32 {r('ta')}, 1, {r('lane')}")
e(f"v_lshl_add_u32 {r('stw')}, {r('ta')}, 15, {r('stw')}")
run(dmaX(0) + dmaW1(0) + dmaW1(1))
S("sD")
e(f"s_lshl_b32 {T2}, s2, 2")
e(f"s_load_dword {r('sD')}, {ptr(5)}, {T2}")
stamp("p0iss")
g.free("ptr0", "ptr6", "ptr7", "ptr13", "karg", "rot")
if not DBG:
    g.free("ptr12")
e(f"v_lshlrev_b32 {r('tb')}, 4, {r('pc')}")
e(f"v_lshl_add_u32 {r('ta')}, {r('r8')}, 11, {r('tb')}")
e(f"v_add_u32 {r('k0')}, {r('tile0')}, {r('ta')}")
e(f"v_lshl_add_u32 {r('ta')}, {r('r8')}, 10, {r('tb')}")
e(f"v_add_u32 {r('kd', 1, 1)}, {r('tile0')}, {r('ta')}")
e(f"v_subrev_u32 {r('kd', 0, 1)}, 8192, {r('kd', 1, 1)}")
e(f"v_lshlrev_b32 {r('l16')}, 4, {r('lane')}")
e(f"s_lshl_b32 {T3}, {r('ns')}, 9")
e(f"v_add_u32 {r('sho')}, {T3}, {r('l16')}")
e(f"v_mov_b32 {r('zero')}, 0")
S("wodd"); S("whi"); S("chan"); V("sa"); V("sb"); V("bb", 2, align=1)
e(f"s_and_b32 {r('wodd')}, {r('wave')}, 1")
e(f"s_lshr_b32 {r('whi')}, {r('wave')}, 1")
e(f"s_lshl_b32 {T2}, s2, 1")
e(f"s_add_u32 {r('chan')}, {T2}, {r('whi')}")
e(f"s_lshl_b32 {r('chan')}, {r('chan')}, 12")
e(f"s_add_u32 {plo(4)}, {plo(4)}, {r('chan')}")
e(f"s_addc_u32 {phi(4)}, {phi(4)}, 0")
e(f"s_lshl_b32 {T3}, {r('wodd')}, 11")
e(f"v_add_u32 {r('sa')}, {T3}, {r('l16')}")
e(f"v_subrev_u32 {r('sb')}, 8, {r('sa')}")
S("kim")
e(f"s_lshl_b32 {r('kim')}, {r('wave')}, 12")
e(f"s_add_u32 {r('kim')}, {r('kim')}, {S4}")
srd("sA", 1, 2097152)
srd("sB", 2, 2097152)
g.free("ptr1", "ptr2")
V("kvw"); V("kvr"); V("kvs"); V("kra"); V("sra"); V("bw", 2, align=1)
e(f"v_and_b32 {r('i15')}, 15, {r('lane')}")
e(f"v_lshrrev_b32 {r('h4')}, 4, {r('lane')}")
e(f"v_add_u32 {r('oa')}, {r('own')}, {r('l16')}")
e(f"v_lshlrev_b32 {r('ta')}, 4, {r('pc')}")
e(f"v_lshl_add_u32 {r('ta')}, {r('r8')}, 8, {r('ta')}")
e(f"v_add_u32 {r('kra')}, {r('kim')}, {r('ta')}")
e(f"v_lshl_add_u32 {r('sra')}, {r('pc')}, 6, {r('kim')}")
e(f"v_lshrrev_b32 {r('ta')}, 1, {r('i15')}")
e(f"v_xor_b32 {r('ta')}, {r('ta')}, {r('h4')}")
e(f"v_lshlrev_b32 {r('ta')}, 4, {r('ta')}")
e(f"v_lshl_add_u32 {r('ta')}, {r('i15')}, 7, {r('ta')}")
e(f"v_add_u32 {r('xrd', 0, 1)}, {r('own')}, {r('ta')}")
e(f"v_xor_b32 {r('xrd', 1, 1)}, 64, {r('xrd', 0, 1)}")
e(f"v_lshrrev_b32 {r('ta')}, 2, {r('i15')}")
e(f"v_lshl_add_u32 {r('ta')}, {r('h4')}, 3, {r('ta')}")
e(f"v_mul_u32_u24 {r('ta')}, 192, {r('ta')}")
e(f"v_and_b32 {r('tb')}, 3, {r('lane')}")
e(f"v_lshl_add_u32 {r('ta')}, {r('tb')}, 3, {r('ta')}")
e(f"v_add_u32 {r('ta')}, {WR}, {r('ta')}")
e(f"v_and_b32 {r('tb')}, 1, {r('h4')}")
e(f"v_lshlrev_b32 {r('tb')}, 5, {r('tb')}")
e(f"v_add_u32 {r('w1r', 0, 1)}, {r('ta')}, {r('tb')}")
e(f"v_sub_u32 {r('w1r', 1, 1)}, {r('ta')}, {r('tb')}")
e(f"s_lshl_b32 {T2}, {r('wave')}, 5")
e(f"v_xor_b32 {r('tc')}, {T2}, {r('tb')}")
e(f"v_add_u32 {r('csr', 0, 1)}, {r('ta')}, {r('tc')}")
e(f"s_and_b32 {T2}, {T2}, 32")
e(f"s_add_u32 {T2}, {T2}, 128")
e(f"v_xor_b32 {r('tc')}, {T2}, {r('tb')}")
e(f"v_add_u32 {r('csr', 1, 1)}, {r('ta')}, {r('tc')}")
e(f"v_mul_u32_u24 {r('ta')}, 1040, {r('pc')}")
e(f"v_lshlrev_b32 {r('tb')}, 2, {r('r8')}")
e(f"v_sub_u32 {r('ta')}, {r('ta')}, {r('tb')}")
e(f"s_lshl_b32 {T2}, {r('wave')}, 5")
e(f"s_sub_u32 {T2}, {KVIMG + 124}, {T2}")
e(f"v_add_u32 {r('kvw')}, {T2}, {r('ta')}")
e(f"s_mul_i32 {T2}, {r('wave')}, 2080")
e(f"s_add_u32 {T2}, {T2}, {KVIMG}")
e(f"v_add_u32 {r('kvr')}, {T2}, {r('l16')}")
e(f"v_mul_u32_u24 {r('ta')}, {KP}, {r('r8')}")
e(f"v_lshl_add_u32 {r('kvs')}, {r('pc')}, 4, {r('ta')}")
e(f"v_mov_b32 {r('ta')}, 0x3f803f80")
for i in range(4):
    e(f"v_accvgpr_write_b32 {r('ones', i, 1)}, {r('ta')}")
e(f"s_mov_b32 {r('hmask')}, 0xffff0000")
S("kvo")
e(f"s_lshl_b32 {T2}, {r('ns')}, 2")
e(f"s_add_u32 {T2}, {T2}, {r('wave')}")
e(f"s_mul_i32 {r('f1a')}, {T2}, {FSTR}")
e(f"s_lshl_b32 {T3}, {r('tt2')}, 3")
e(f"s_add_u32 {r('f1a')}, {r('f1a')}, {T3}")
e(f"s_add_u32 {r('f1a')}, {r('f1a')}, {F1B}")
e(f"s_mul_i32 {T2}, {T2}, {16 * KP}")
e(f"s_sub_u32 {T3}, 31, {r('tt2')}")
e(f"s_lshl_b32 {T3}, {T3}, 7")
e(f"s_add_u32 {r('kvo')}, {T2}, {T3}")
e(f"s_lshl_b32 {T2}, {r('T1')}, 1")
e(f"s_add_u32 {T2}, {T2}, {r('whi')}")
e(f"s_mul_i32 {r('f2a')}, {T2}, {FSTR}")
e(f"s_lshl_b32 {T2}, {r('q')}, 1")
e(f"s_add_u32 {T2}, {T2}, {r('wodd')}")
e(f"s_lshl_b32 {T2}, {T2}, 3")
e(f"s_add_u32 {r('f2a')}, {r('f2a')}, {T2}")
e(f"s_add_u32 {r('f2a')}, {r('f2a')}, {F2B}")
e(f"s_lshr_b32 {T2}, {r('chan')}, 18")
e(f"s_lshl_b32 {T2}, {T2}, 1")
e(f"s_add_u32 {T2}, {T2}, {r('wodd')}")
e(f"s_mul_i32 {r('f3a')}, {T2}, {FSTR}")
e(f"s_lshr_b32 {T2}, {r('chan')}, 9")
e(f"s_and_b32 {T2}, {T2}, 0x1f8")
e(f"s_add_u32 {r('f3a')}, {r('f3a')}, {T2}")
e(f"s_add_u32 {r('f3a')}, {r('f3a')}, {F3B}")
e(f"v_lshlrev_b32 {r('tc')}, 3, {r('lane')}")
e(f"v_add_u32 {r('zt')}, {r('own')}, {r('tc')}")
e(f"s_mul_i32 {T2}, {T1_}, {FSTR}")
e(f"s_add_u32 {T2}, {T2}, {F1B}")
e(f"v_and_b32 {r('pf1o')}, 0xf8, {r('tc')}")
e(f"v_add_u32 {r('pf1o')}, {T2}, {r('pf1o')}")
e(f"s_lshr_b32 {T2}, {r('tt2')}, 4")
e(f"s_lshl_b32 {T3}, {r('ns')}, 1")
e(f"s_add_u32 {T2}, {T2}, {T3}")
e(f"s_mul_i32 {T2}, {T2}, {FSTR}")
e(f"s_add_u32 {T2}, {T2}, {F3B}")
e(f"v_add_u32 {r('pf3o')}, {T2}, {r('tc')}")
e(f"v_min_u32 {r('pf2o')}, 9, {r('lane')}")
e(f"s_lshl_b32 {T2}, {r('wave')}, 3")
e(f"v_add_u32 {r('pf2o')}, {T2}, {r('pf2o')}")
e(f"v_min_u32 {r('pf2o')}, 31, {r('pf2o')}")
e(f"s_mul_i32 {T2}, {r('tt2')}, {FSTR}")
e(f"s_add_u32 {T2}, {T2}, {F2B}")
e(f"v_lshl_add_u32 {r('pf2o')}, {r('pf2o')}, 3, {T2}")
e(f"v_min_u32 {r('ta')}, 47, {r('lane')}")
e(f"v_lshlrev_b32 {r('bw', 0, 1)}, 3, {r('ta')}")
e(f"v_add_u32 {r('bw', 0, 1)}, {B1T}, {r('bw', 0, 1)}")
e(f"s_lshl_b32 {T2}, {r('b0')}, 6")
e(f"v_lshl_add_u32 {r('bb', 0, 1)}, {r('ta')}, 2, {T2}")
e(f"v_and_b32 {r('ta')}, 31, {r('lane')}")
e(f"v_lshlrev_b32 {r('bw', 1, 1)}, 3, {r('ta')}")
e(f"v_add_u32 {r('bw', 1, 1)}, {B2T}, {r('bw', 1, 1)}")
e(f"v_lshl_add_u32 {r('bb', 1, 1)}, {r('ta')}, 2, {r('ns128')}")
e(f"v_and_b32 {r('ta')}, 6, {r('r8')}")
e(f"v_xor_b32 {r('ta')}, {r('ta')}, {r('pc')}")
e(f"v_lshlrev_b32 {r('ta')}, 4, {r('ta')}")
e(f"v_lshl_add_u32 {r('w2s', 0, 1)}, {r('r8')}, 10, {r('ta')}")
e(f"v_add_u32 {r('w2s', 0, 1)}, {r('ns128')}, {r('w2s', 0, 1)}")
for n in range(1, 4):
    e(f"v_add_u32 {r('w2s', n, 1)}, {7168 * n}, {r('w2s', 0, 1)}")
e(f"v_lshrrev_b32 {r('ta')}, 2, {r('i15')}")
e(f"v_lshl_add_u32 {r('ta')}, {r('h4')}, 2, {r('ta')}")
e(f"v_lshrrev_b32 {r('tb')}, 1, {r('ta')}")
e(f"v_and_b32 {r('tb')}, 3, {r('tb')}")
e(f"v_lshlrev_b32 {r('tb')}, 5, {r('tb')}")
e(f"v_lshl_add_u32 {r('tb')}, {r('ta')}, 7, {r('tb')}")
e(f"v_and_b32 {r('ta')}, 3, {r('lane')}")
e(f"v_lshl_add_u32 {r('tb')}, {r('ta')}, 3, {r('tb')}")
e(f"v_add_u32 {r('w2r', 0, 1)}, {r('own')}, {r('tb')}")
S("w4k")
e(f"s_lshl_b32 {r('w4k')}, {r('wave')}, 12")
e(f"v_add_u32 {r('w2r', 4, 1)}, {r('w4k')}, {r('tb')}")
for nb in range(1, 4):
    e(f"v_xor_b32 {r('w2r', nb, 1)}, {32 * nb}, {r('w2r', 0, 1)}")
    e(f"v_xor_b32 {r('w2r', 4 + nb, 1)}, {32 * nb}, {r('w2r', 4, 1)}")
for p in range(11):
    S(f"kb{p}")
e(f"s_lshr_b32 {T0}, {T1_}, 3")
e(f"s_mul_i32 {T0}, {T0}, 3")
e(f"s_mul_i32 {T2}, {r('ns')}, 11")
e(f"s_lshr_b32 {T2}, {T2}, 3")
e(f"s_add_u32 {T0}, {T0}, {T2}")
e(f"s_cmp_ge_u32 {T0}, 11")
e(f"s_cselect_b32 {T2}, 11, 0")
e(f"s_sub_u32 {T0}, {T0}, {T2}")
e(f"s_mul_i32 {T3}, {r('wave')}, 11")
e(f"s_add_u32 {T0}, {T0}, {T3}")
e(f"s_add_u32 {T3}, {T3}, 11")
for p in range(11):
    e(f"s_lshl_b32 {r(f'kb{p}')}, {T0}, 15")
    if p < 10:
        e(f"s_add_u32 {T0}, {T0}, 1")
        e(f"s_cmp_ge_u32 {T0}, {T3}")
        e(f"s_cselect_b32 {T2}, 11, 0")
        e(f"s_sub_u32 {T0}, {T0}, {T2}")
e(f"v_and_b32 {r('ta')}, 3, {r('lane')}")
e(f"v_mul_u32_u24 {r('fa')}, {FP}, {r('ta')}")
e(f"v_lshrrev_b32 {r('tb')}, 2, {r('i15')}")
e(f"v_add_u32 {r('tb')}, {r('tb')}, {r('h4')}")
e(f"v_lshl_add_u32 {r('fa')}, {r('tb')}, 4, {r('fa')}")
e(f"s_lshl_b32 {T4}, {r('wodd')}, 8")
e(f"s_mul_i32 {T2}, {r('whi')}, {4 * FP}")
e(f"s_add_u32 {T3}, {T4}, {T2}")
e(f"v_add_u32 {r('fa')}, {T3}, {r('fa')}")
e(f"v_and_b32 {r('tc')}, 1, {r('lane')}")
e(f"v_mul_u32_u24 {r('ga')}, {GP}, {r('tc')}")
e(f"v_lshrrev_b32 {r('td')}, 1, {r('i15')}")
e(f"v_lshlrev_b32 {r('td')}, 2, {r('td')}")
e(f"v_sub_u32 {r('td')}, {r('h4')}, {r('td')}")
e(f"v_add_u32 {r('td')}, 28, {r('td')}")
e(f"v_lshl_add_u32 {r('ga')}, {r('td')}, 4, {r('ga')}")
e(f"s_mul_i32 {T3}, {r('whi')}, {2 * GP}")
e(f"s_add_u32 {T3}, {T3}, {T4}")
e(f"s_add_u32 {T3}, {T3}, {UB0}")
e(f"v_add_u32 {r('ga')}, {T3}, {r('ga')}")
g.wait(lg=0)
e(f"s_lshl_b32 {T3}, {r('whi')}, 4")
e(f"s_lshr_b32 {r('sD')}, {r('sD')}, {T3}")
e(f"s_and_b32 {r('sD')}, {r('sD')}, 0xffff")
e(f"s_cmp_eq_u32 {r('wodd')}, 0")
e(f"s_cselect_b32 {r('sD')}, {r('sD')}, 0")
e(f"v_xor_b32 {r('tc')}, 1, {r('tc')}")
e(f"v_lshlrev_b32 {r('tc')}, 4, {r('tc')}")
e(f"v_lshlrev_b32_e64 {r('tc')}, {r('tc')}, {r('sD')}")
e(f"v_cmp_eq_u32 vcc, 3, {r('tb')}")
e(f"v_cndmask_b32 {r('tc')}, 0, {r('tc')}, vcc")
e(f"v_cmp_lt_u32 vcc, 1, {r('ta')}")
e(f"v_cndmask_b32 {r('td')}, 0, {r('tc')}, vcc")
e(f"v_sub_u32 {r('tc')}, {r('tc')}, {r('td')}")
e(f"v_accvgpr_write_b32 {r('fd', 0, 1)}, {r('td')}")
e(f"v_accvgpr_write_b32 {r('fd', 1, 1)}, {r('tc')}")
e(f"v_accvgpr_write_b32 {r('fd', 2, 1)}, 0")
e(f"v_accvgpr_write_b32 {r('fd', 3, 1)}, 0")
g.free("sD", "ptr5")
e(f"s_add_u32 {T3}, {T2}, 48")
e(f"v_add_u32 {r('kw')}, {T3}, {r('sa')}")
e(f"s_mul_i32 {r('um0')}, {r('wave')}, {GP}")
e(f"s_add_u32 {r('um0')}, {r('um0')}, {UB0}")
e(f"s_lshl_b32 {T3}, {r('wodd')}, 3")
e(f"s_sub_u32 {r('ush')}, 8, {T3}")
e(f"s_add_u32 {T4}, {r('um0')}, 4096")
e(f"v_add_u32 {r('za')}, {T4}, {r('l16')}")
e(f"v_subrev_u32 {r('ta')}, 28, {r('lane')}")
e(f"v_min_u32 {r('ta')}, 5, {r('ta')}")
e(f"v_cmp_lt_u32 vcc, 2, {r('ta')}")
e(f"v_lshlrev_b32 {r('ta')}, 4, {r('ta')}")
e(f"v_add_u32 {r('tb')}, {FP - 48}, {r('ta')}")
e(f"v_cndmask_b32 {r('ta')}, {r('ta')}, {r('tb')}, vcc")
e(f"s_mul_i32 {T3}, {r('wave')}, {2 * FP}")
e(f"v_add_u32 {r('ta')}, {T3}, {r('ta')}")
e(f"v_cmp_lt_u32 vcc, 27, {r('lane')}")
e(f"v_cndmask_b32 {r('za')}, {r('za')}, {r('ta')}, vcc")
e(f"s_xor_b32 {T2}, {r('wave')}, 1")
e(f"s_mul_i32 {T2}, {T2}, 12288")
e(f"s_add_u32 {T2}, {T2}, {XST}")
e(f"v_add_u32 {r('pa')}, {T2}, {r('l16')}")
e(f"v_lshrrev_b32 {r('ta')}, 1, {r('i15')}")
e(f"v_lshlrev_b32 {r('ta')}, 6, {r('ta')}")
e(f"v_and_b32 {r('tb')}, 1, {r('lane')}")
e(f"v_lshl_add_u32 {r('ta')}, {r('tb')}, 3, {r('ta')}")
e(f"v_lshl_add_u32 {r('ta')}, {r('h4')}, 4, {r('ta')}")
e(f"v_add_u32 {r('yw')}, {r('own')}, {r('ta')}")
e(f"s_lshl_b32 {T3}, {r('wodd')}, 11")
e(f"s_lshr_b32 {r('chan')}, {r('chan')}, 12")
e(f"s_mul_i32 {r('chan')}, {r('chan')}, {KP}")
e(f"s_add_u32 {T2}, {r('chan')}, {T3}")
e(f"s_add_u32 {r('yo')}, {T2}, {YT}")
e(f"v_lshrrev_b32 {r('zs')}, 1, {r('lane')}")
e(f"v_mul_u32_u24 {r('zs')}, {KP}, {r('zs')}")
e(f"v_lshl_add_u32 {r('zs')}, {r('tb')}, 4, {r('zs')}")
e(f"s_mul_i32 {T2}, {r('ns')}, {64 * KP}")
e(f"s_lshl_b32 {T3}, {r('tok16')}, 5")
e(f"s_add_u32 {T2}, {T2}, {T3}")
e(f"s_add_u32 {r('zo')}, {T2}, {YT}")
for s in range(4):
    e(f"s_add_u32 {T2}, {r('wave')}, {s + 1}")
    e(f"s_and_b32 {T2}, {T2}, 3")
    e(f"s_mul_i32 {T3}, {T2}, 12288")
    if s < 3:
        if PX + 4096 * s:
            e(f"s_add_u32 {T3}, {T3}, {PX + 4096 * s}")
        e(f"v_add_u32 {r('pw', s, 1)}, {T3}, {r('l16')}")
    else:
        e(f"v_add_u32 {r('psr')}, {T3}, {r('l16')}")
    e(f"s_lshl_b32 {T3}, {r('tt2')}, 2")
    e(f"s_add_u32 {T2}, {T2}, {T3}")
    e(f"s_mul_i32 {T2}, {T2}, 44032")
    e(f"s_add_u32 {T2}, {T2}, {HB + HALT}")
    e(f"v_add_u32 {r('hv', s, 1)}, {T2}, {r('l16')}")
e(f"v_lshrrev_b32 {r('ta')}, 1, {r('i15')}")
e(f"v_lshrrev_b32 {r('tb')}, 1, {r('h4')}")
e(f"v_xor_b32 {r('ta')}, {r('ta')}, {r('tb')}")
e(f"v_lshlrev_b32 {r('ta')}, 4, {r('ta')}")
e(f"v_lshl_add_u32 {r('ta')}, {r('i15')}, 7, {r('ta')}")
e(f"v_and_b32 {r('tc')}, 1, {r('h4')}")
e(f"v_lshl_add_u32 {r('ta')}, {r('tc')}, 3, {r('ta')}")
e(f"v_add_u32 {r('ea', 0, 1)}, {r('own')}, {r('ta')}")
for nb in range(1, 4):
    e(f"v_xor_b32 {r('ea', nb, 1)}, {32 * nb}, {r('ea', 0, 1)}")
e(f"s_lshl_b32 {T2}, {r('tok16')}, 8")
e(f"s_add_u32 {T2}, {T2}, {STB}")
e(f"v_lshl_add_u32 {r('svr')}, {r('i15')}, 4, {T2}")
e(f"s_lshr_b32 {T2}, {r('xbase')}, 6")
e(f"s_add_u32 {T2}, {T2}, {STA}")
e(f"v_lshl_add_u32 {r('sgo')}, {r('i15')}, 4, {T2}")
e(f"v_lshl_add_u32 {r('sgo')}, {r('tb')}, 8, {r('sgo')}")
S("m1", 2)
e(f"s_mov_b32 {r('m1', 0, 1)}, 0xaaaaaaaa"); e(f"s_mov_b32 {r('m1', 1, 1)}, 0xaaaaaaaa")
e(f"v_lshlrev_b32 {r('ta')}, 4, {r('h4')}")
e(f"v_add_u32 {r('csr0')}, {CSX}, {r('ta')}")
e(f"s_lshl_b32 {T2}, {r('wave')}, 6")
e(f"v_add_u32 {r('csw')}, {T2}, {r('csr0')}")
e(f"s_lshl_b32 {T2}, {r('wodd')}, 6")
e(f"s_add_u32 {T2}, {T2}, 256")
e(f"v_add_u32 {r('csw2')}, {T2}, {r('csr0')}")
S("ho", 2, align=1)
e(f"s_lshl_b32 {T2}, {r('T1')}, 2")
e(f"s_add_u32 {T2}, {T2}, {r('wave')}")
e(f"s_mul_i32 {T2}, {T2}, 86")
e(f"s_add_u32 {T2}, {T2}, {r('b0')}")
e(f"s_lshl_b32 {T2}, {T2}, 10")
e(f"s_add_u32 {r('ho', 0, 1)}, {T2}, {HB}")
e(f"s_add_u32 {r('ho', 1, 1)}, {T2}, {HB + 44032}")
for i in range(4):
    e(f"v_accvgpr_write_b32 {r('zz', i, 1)}, 0")
if TOUCH:
    V("tB", 2)
    wlo, whi_ = r("sWS", 0, 1), r("sWS", 1, 1)
    ent = [(r("sA", 0, 1), r("sA", 1, 1), r("tile0")), (r("sB", 0, 1), r("sB", 1, 1), r("tile0")), (plo(3), phi(3), None),
           (plo(4), phi(4), None), (plo(8), phi(8), None), (plo(10), phi(10), None),
           (plo(9), phi(9), None), (plo(9), phi(9), 1 << 20), (plo(11), phi(11), r("tile0")),
           (wlo, whi_, EPOCH + 256), (wlo, whi_, FL + 4096), (wlo, whi_, r("kvo")),
           (wlo, whi_, r("chan")), (wlo, whi_, r("ho", 0, 1)), (wlo, whi_, r("yo")), (wlo, whi_, r("zo")),
           (wlo, whi_, HB + 0x100000), (wlo, whi_, HB + 0x200000), (wlo, whi_, HB + 0x300000), (wlo, whi_, HB + 0x400000),
           (wlo, whi_, HB + 0x500000), (wlo, whi_, HB), (wlo, whi_, YT + 0x100000), (wlo, whi_, 0x100000)]
    e(f"v_mov_b32 {r('tB', 0, 1)}, {wlo}")
    e(f"v_mov_b32 {r('tB', 1, 1)}, {whi_}")
    for k, (lo, hi, off) in enumerate(ent):
        if off is None:
            e(f"v_writelane_b32 {r('tB', 0, 1)}, {lo}, {k}")
            e(f"v_writelane_b32 {r('tB', 1, 1)}, {hi}, {k}")
        else:
            e(f"s_add_u32 {T2}, {lo}, {off}")
            e(f"s_addc_u32 {T3}, {hi}, 0")
            e(f"v_writelane_b32 {r('tB', 0, 1)}, {T2}, {k}")
            e(f"v_writelane_b32 {r('tB', 1, 1)}, {T3}, {k}")
    e(f"s_mul_i32 {T2}, {r('wave')}, 6")
    e(f"s_lshl_b32 exec_lo, 63, {T2}")
    e("s_mov_b32 exec_hi, 0")
    if TOUCH == 2:
        e("s_mov_b32 exec_lo, 0xffffff")
    e(f"global_load_dword {r('pre')}, {r('tB')}, off sc1", "touch")
    e("s_mov_b64 exec, -1")
    g.free("tB")
stamp("setup")
g.free("T1", "q", "tt2", "ns", "tok16", "whi", "b0", "ns128", "r8", "pc", "tid")


def unpack(dst, doff, src, soff, ndw):
    it = []
    for d in range(ndw):
        it.append(E(f"v_lshlrev_b32 {r(dst, doff + 2 * d, 1)}, 16, {r(src, soff + d, 1)}"))
        it.append(E(f"v_and_b32 {r(dst, doff + 2 * d + 1, 1)}, {r('hmask')}, {r(src, soff + d, 1)}"))
    return it


AC("xf", 64, at=64)
AC("wa", 48, at=128); AC("ca", 16, at=176)


def xf(K, tb):
    return r("xf", ((K & 7) * 2 + tb) * 4, 4)


def rdX(ei):
    return [W(vm=f"X{ei}")] + [E(f"ds_read_b128 {xf(ei * 2 + k, tb)}, {r('xrd', k, 1)} offset:{(ei % 3) * 4096 + tb * 2048}", f"rx{ei}")
                               for k in range(2) for tb in range(2)]


def wbase(K):
    return ((K >> 1) % 4) * 12288 + (K & 1) * 6144


def rdW(K):
    return [E(f"ds_read_b64_tr_b16 {r('wa', (K & 1) * 24 + fb * 4 + 2 * hf, 2)}, {r('w1r', fb & 1, 1)} offset:{wbase(K) + hf * 768 + fb * 32}", f"rw{K}")
            for fb in range(6) for hf in range(2)]


def rdC(K):
    return [E(f"ds_read_b64_tr_b16 {r('ca', (K & 1) * 8 + c * 4 + 2 * hf, 2)}, {r('csr', c, 1)} offset:{wbase(K) + hf * 768}", f"rc{K}")
            for c in range(2) for hf in range(2)]


S("tag", 2)
run(dmaX(1))
g.wait(vm="sx")
e(f"s_mov_b32 {T2}, 0x3f803f80")
for d in range(8):
    e(f"v_dot2_f32_bf16 {r('sacc', d & 1, 1)}, {r('sx', d, 1)}, {T2}, {'0' if d < 2 else r('sacc', d & 1, 1)}")
    e(f"v_dot2_f32_bf16 {r('sacc', 2 + (d & 1), 1)}, {r('sx', d, 1)}, {r('sx', d, 1)}, {'0' if d < 2 else r('sacc', 2 + (d & 1), 1)}")
e(f"v_readfirstlane_b32 {r('tag', 0, 1)}, {r('pf', 0, 1)}")
e(f"v_readfirstlane_b32 {r('tag', 1, 1)}, {r('pf', 1, 1)}")
g.free("sx")
run(rdX(0))
e(f"s_mul_i32 {r('tag', 0, 1)}, {r('tag', 0, 1)}, 0x9E3779B1")
e(f"s_mul_i32 {r('tag', 1, 1)}, {r('tag', 1, 1)}, 0x85EBCA6D")
e(f"s_add_u32 {r('tag', 0, 1)}, {r('tag', 0, 1)}, 0x7F4A7C15")
e(f"s_add_u32 {r('tag', 1, 1)}, {r('tag', 1, 1)}, 0x165667B1")
e(f"v_add_f32 {r('sacc', 0, 1)}, {r('sacc', 0, 1)}, {r('sacc', 1, 1)}")
e(f"v_add_f32 {r('sacc', 2, 1)}, {r('sacc', 2, 1)}, {r('sacc', 3, 1)}")
for i in range(2):
    e(f"v_mov_b32 {r('vtag', i, 1)}, {r('tag', i, 1)}")
    e(f"v_mov_b32 {r('gq', 2 + i, 1)}, {r('tag', i, 1)}")
g.wait(vm="W0")
e("s_barrier")
run(rdW(0)); run(rdC(0))
stamp("x0")

V("acc", 48); AC("cs", 8, at=192)
V("big", 100)
B0 = g.names["big"][1]


def alias(name, off, n):
    g.names[name] = ("v", B0 + off, n)


alias("wf", 0, 32); alias("kf", 32, 40); alias("vr", 64, 8); alias("kr", 72, 20); alias("shr", 48, 16)
alias("vf", 72, 16)
small = [E(f"global_load_dword {r('bb', 0, 1)}, {r('bb', 0, 1)}, {ptr(8)}", "bb"),
         E(f"global_load_dword {r('bb', 1, 1)}, {r('bb', 1, 1)}, {ptr(10)}", "bb"),
         ]
alias("vr", 92, 8)
kvload = [It(lambda: (e(f"s_add_u32 m0, {r('kim')}, 1024"), e(f"s_mov_b32 {T0}, 7168"),
                      e(f"buffer_load_dwordx4 {r('kd', 1, 1)}, {r('sA')}, 0 offen lds", "k")), 2),
          E(f"buffer_load_dwordx4 {r('kd', 1, 1)}, {r('sA')}, {T0} offen offset:1024 lds", "k"),
          E(f"buffer_load_dwordx4 {r('vr', 0, 4)}, {r('k0')}, {r('sB')}, 0 offen {KVPOL}", "k"),
          E(f"buffer_load_dwordx4 {r('vr', 4, 4)}, {r('k0')}, {r('sB')}, 0 offen offset:1024 {KVPOL}", "k"),
          It(lambda: (e(f"s_mov_b32 m0, {r('kim')}"), e("s_mov_b32 exec_lo, 0"), e("s_mov_b32 exec_hi, 0xffffff00"),
                      e(f"buffer_load_dwordx4 {r('kd', 0, 1)}, {r('sA')}, 0 offen lds", "k"), e("s_mov_b64 exec, -1")), 2),
          It(lambda: (e(f"s_add_u32 m0, {r('kim')}, 3072"), e(f"s_mov_b64 {r('sA', 0, 2)}, {ptr(3)}"), e(f"s_mov_b32 {r('sA', 2, 1)}, 4096"),
                      e("s_mov_b32 exec_hi, 0"), e(f"buffer_load_dwordx4 {r('sho')}, {r('sA')}, 0 offen lds", "k"), e("s_mov_b64 exec, -1"),
                      e(f"s_mov_b64 {r('sA', 0, 2)}, {ptr(4)}"), e(f"s_mov_b64 {r('sB', 0, 2)}, {ptr(9)}"), e(f"s_mov_b32 {r('sB', 2, 1)}, 1409024")), 3)]
kvrd = [W(vm="k")]
kvrd += [E(f"ds_read_b128 {r('shr', 4 * i, 4)}, {r('sra')} offset:{3072 + 16 * i}", "rs") for i in range(4)]
kvrd += [E(f"ds_read_b128 {r('kr', 4 * k, 4)}, {r('kra')} offset:{640 + 128 * k}", "rk") for k in range(5)]
kvu = [W(lg="rs")]
for c in range(8):
    for j in range(4):
        src = r("shr", 2 * c + (j >> 1), 1)
        if j & 1:
            kvu.append(E(f"v_and_b32 {r('wf', j * 8 + c, 1)}, {r('hmask')}, {src}"))
        else:
            kvu.append(E(f"v_lshlrev_b32 {r('wf', j * 8 + c, 1)}, 16, {src}"))
kvu.append(W(lg="rk"))
kvu += unpack("kf", 0, "kr", 0, 20)
KS = lambda t, cp: r("kr", t * 8 + 2 * cp, 2)
kvc = []
for t in range(2):
    for cp in range(4):
        kvc.append(E(f"v_pk_mul_f32 {KS(t, cp)}, {r('kf', t * 8 + 2 * cp, 2)}, {r('wf', 24 + 2 * cp, 2)}"))
    for j in (2, 1, 0):
        for cp in range(4):
            kvc.append(E(f"v_pk_fma_f32 {KS(t, cp)}, {r('kf', (t + 3 - j) * 8 + 2 * cp, 2)}, {r('wf', j * 8 + 2 * cp, 2)}, {KS(t, cp)}"))
kvc += unpack("wf", 0, "vr", 0, 8)
for t in range(2):
    for cp in range(4):
        kvc.append(E(f"v_pk_mul_f32 {KS(t, cp)}, {KS(t, cp)}, {r('wf', t * 8 + 2 * cp, 2)}"))
alias("kvp", 92, 8)
for c in range(8):
    kvc.append(E(f"v_cvt_pk_bf16_f32 {r('kvp', c, 1)}, {r('kr', 8 + c, 1)}, {r('kr', c, 1)}"))
    kvc.append(E(f"ds_write_b32 {r('kvw')}, {r('kvp', c, 1)} offset:{128 * c}", "kvw"))
kvst = [E(f"ds_read_b128 {r('kvp', 0, 4)}, {r('kvr')}", "kvr0"), E(f"ds_read_b128 {r('kvp', 4, 4)}, {r('kvr')} offset:1040", "kvr1")]
kvst2 = [It(lambda: (g.wait(lg="kvr0"), e(f"buffer_store_dwordx4 {r('kvp', 0, 4)}, {r('kvs')}, {r('sWS')}, {r('kvo')} offen sc1", "kvst"),
                     e(f"s_add_u32 {r('kvo')}, {r('kvo')}, {8 * KP}")), 2),
         It(lambda: (g.wait(lg="kvr1"), e(f"buffer_store_dwordx4 {r('kvp', 4, 4)}, {r('kvs')}, {r('sWS')}, {r('kvo')} offen sc1", "kvst")), 2)]
alias("skr", 0, 12); alias("ke", 12, 24); alias("bt", 36, 4); alias("b1f", 44, 24); alias("csf", 68, 24)
AC("ska", 12, at=228)
skload = [It(lambda: (e("s_mov_b64 exec, 1"), e(f"buffer_load_dwordx2 {r('ska', 0, 2)}, {r('sb')}, {r('sA')}, 0 offen", "sk"), e("s_mov_b64 exec, -1")), 2),
          E(f"buffer_load_dwordx4 {r('ska', 2, 4)}, {r('sa')}, {r('sA')}, 0 offen {KVPOL}", "sk"),
          E(f"buffer_load_dwordx4 {r('ska', 8, 4)}, {r('sa')}, {r('sA')}, 0 offen offset:1024 {KVPOL}", "sk")]
kcopy = [W(vm="sk")] + [E(f"v_accvgpr_read_b32 {r('skr', k, 1)}, {r('ska', k, 1)}") for k in (4, 5, 0, 1, 10, 11, 2, 3, 8, 9)]
for k in range(2):
    kcopy.append(E(f"v_mov_b32_dpp {r('skr', 6 + k, 1)}, {r('skr', 4 + k, 1)} wave_ror:1 row_mask:0xf bank_mask:0xf"))
for k in range(2):
    kcopy.append(E(f"v_mov_b32_dpp {r('skr', k, 1)}, {r('skr', 4 + k, 1)} wave_shr:1 row_mask:0xf bank_mask:0xf"))
for k in range(2):
    kcopy.append(E(f"v_mov_b32_dpp {r('skr', 6 + k, 1)}, {r('skr', 10 + k, 1)} wave_shr:1 row_mask:0xf bank_mask:0xf"))
for n in range(2):
    R = lambda k, c=1, n=n: r("skr", 6 * n + k, c)
    KE = lambda k, c=1, n=n: r("ke", 12 * n + k, c)
    kcopy.append(E(f"ds_write_b128 {r('kw')}, {R(2, 4)} offset:{3 * FP + 1024 * n}", "kc", 2))
    for k in range(4):
        kcopy.append(E(f"v_alignbit_b32 {KE(k)}, {R(k + 1)}, {R(k)}, 16"))
    kcopy.append(E(f"ds_write_b128 {r('kw')}, {KE(0, 4)} offset:{1024 * n}", "kc", 2))
    for k in range(4):
        kcopy.append(E(f"v_alignbit_b32 {KE(4 + k)}, {R(k + 2)}, {R(k + 1)}, 16"))
    kcopy.append(E(f"ds_write_b128 {r('kw')}, {KE(4, 4)} offset:{2 * FP + 1024 * n}", "kc", 2))
    for k in range(4):
        kcopy.append(E(f"v_mov_b32 {KE(8 + k)}, {R(1 + k)}"))
    kcopy.append(E(f"ds_write_b128 {r('kw')}, {KE(8, 4)} offset:{FP + 1024 * n}", "kc", 2))


def mfma(d, a, b, first):
    e(f"v_mfma_f32_16x16x32_bf16 {d}, {a}, {b}, {'0' if first else d}")


def M(d, a, b, first, wait=None):
    def fn():
        if wait:
            w_ = dict(wait)
            l2 = w_.pop("lg2", None)
            if l2 and max(i for i, t in enumerate(g.lg) if t == l2) > max(i for i, t in enumerate(g.lg) if t == w_["lg"]):
                g._cnt(g.lg, w_["lg"])
                w_["lg"] = l2
            elif l2:
                g._cnt(g.lg, l2)
            g.wait(**w_)
        mfma(d, a, b, first)
    return It(fn, 0.3 if wait else 0)


def mainM(K):
    return [M(r("acc", (fb * 2 + tb) * 4, 4), r("wa", (K & 1) * 24 + fb * 4, 4), xf(K, tb), K == 0,
              dict(lg=f"rw{K}", lg2=(None if K & 1 else f"rx{K >> 1}")) if fb == 0 and tb == 0 else None) for fb in range(6) for tb in range(2)]


def statM(K):
    items = []
    for tb in range(2):
        items.append(M(r("rs", tb * 4, 4), r("ones"), xf(K, tb), K == 0, dict(lg=f"rx{K >> 1}") if (tb == 0 and not K & 1) else None))
        items.append(M(r("gr", tb * 4, 4), xf(K, tb), xf(K, tb), K == 0))
    return items


def csM(K):
    return [M(r("cs", c * 4, 4), r("ca", (K & 1) * 8 + c * 4, 4), r("ones"), K == 0, dict(lg=f"rc{K}") if c == 0 else None) for c in range(2)]


def setflag(addr, tagname):
    e("s_mov_b64 exec, 1")
    e(f"buffer_store_dwordx2 {r('vtag')}, {r('zero')}, {r('sWS')}, {addr} offen sc1", tagname)
    e("s_mov_b64 exec, -1")


def pollissue(voff, tagname):
    e(f"buffer_load_dwordx2 {r('pf')}, {voff}, {r('sWS')}, 0 offen sc1", tagname)


def pollcheck(voff, tagname, before_spin=None):
    g.wait(vm=tagname)
    e(f"v_cmp_ne_u64 vcc, {r('tag')}, {r('pf')}")
    e("s_cmp_eq_u64 vcc, 0")
    e(f"s_cbranch_scc0 L_{tagname}")
    g.label(f"L_{tagname}_ok")

    def tail():
        g.label(f"L_{tagname}")
        if before_spin:
            for x in before_spin:
                e(x)
        if SPINMAX:
            e(f"s_mov_b32 {T4}, 0")
        g.label(f"L_{tagname}_l")
        e(f"s_sleep {int(opt.get('sleep', 1))}")
        e(f"buffer_load_dwordx2 {pfr}, {voff}, {sws}, 0 offen sc1")
        e("s_waitcnt vmcnt(0)")
        e(f"v_cmp_ne_u64 vcc, {tagr}, {pfr}")
        if SPINMAX:
            e(f"s_add_u32 {T4}, {T4}, 1")
            e(f"s_cmp_gt_u32 {T4}, {SPINMAX}")
            e(f"s_cbranch_scc1 L_{tagname}_ok")
        e("s_cmp_eq_u64 vcc, 0")
        e(f"s_cbranch_scc0 L_{tagname}_l")
        e(f"s_branch L_{tagname}_ok")
    pfr, sws, tagr = r("pf"), r("sWS"), r("tag")
    tails.append(tail)


tails = []
btab = [W(vm="bb")] + unpack("bt", 0, "bb", 0, 2) + [E(f"ds_write_b64 {r('bw', 0, 1)}, {r('bt', 0, 2)}", "btw"), E(f"ds_write_b64 {r('bw', 1, 1)}, {r('bt', 2, 2)}", "btw")]

W2SLOT = {0: ("x", 0), 1: ("x", 16384), 2: ("x", S4), 3: ("o", 8192), 4: ("o", 0), 5: ("o", 4096), 6: ("x", S3),
          7: ("x", S4), 8: ("o", 8192), 9: ("o", 0), 10: ("x", S3)}
W2PREV = {7: 2, 8: 3, 9: 4, 10: 6}


def dmaW2(p):
    items = []
    kind, off = W2SLOT[p]
    for n in range(4):
        def it(n=n):
            if n == 0:
                e(f"s_add_u32 m0, {r('own') if kind == 'o' else r('w4k')}, {off}")
                if p in W2PREV:
                    g.wait(lg=f"rv{W2PREV[p]}")
            e(f"buffer_load_dwordx4 {r('w2s', n, 1)}, {r('sB')}, {r(f'kb{p}')} offen offset:{1024 * n} lds", f"V{p}")
        items.append(It(it, 1.2 if n else 1.8))
    return items


def w2f(p, nb, off=0, n=4):
    k = (p * 4 + nb) * 4 + off
    return f"a[{k}:{k + n - 1}]"


def rdW2(p):
    kind, off = W2SLOT[p]
    items = [W(vm=f"V{p}")]
    for nb in range(4):
        for hf in range(2):
            items.append(E(f"ds_read_b64_tr_b16 {w2f(p, nb, 2 * hf, 2)}, {r('w2r', nb + (0 if kind == 'o' else 4), 1)} offset:{off + hf * 2048}", f"rv{p}"))
    return items


alias("sac", 96, 4); alias("sgr", 92, 4)
EPS = f2u(1e-5)


def rb(dst, src):
    return [E(f"v_cvt_pk_bf16_f32 {dst}, {src}, {src}"), E(f"v_and_b32 {dst}, {r('hmask')}, {dst}")]


s1, s1b, s2, s2b = (r("sacc", k, 1) for k in range(4))
st = []
for sh in (8, 4, 2, 1):
    st.append(E(f"v_add_f32_dpp {s1}, {s1}, {s1} row_ror:{sh} row_mask:0xf bank_mask:0xf"))
    st.append(E(f"v_add_f32_dpp {s2}, {s2}, {s2} row_ror:{sh} row_mask:0xf bank_mask:0xf"))
st.append(E(f"v_mov_b32 {s1b}, {s1}")); st.append(E(f"v_mov_b32 {s2b}, {s2}"))
st.append(E(f"v_permlane16_swap_b32 {s1}, {s1b}")); st.append(E(f"v_permlane16_swap_b32 {s2}, {s2b}"))
mu, var, t, w = (r("u", k, 1) for k in range(4))
mb, rsd = r("stv", 0, 1), r("stv", 1, 1)
st.append(E(f"v_add_f32 {mu}, {s1}, {s1b}")); st.append(E(f"v_add_f32 {var}, {s2}, {s2b}"))
st.append(E(f"v_mul_f32 {mu}, 0x{f2u(1 / 512):08x}, {mu}"))
st.append(E(f"v_mul_f32 {var}, 0x{f2u(1 / 512):08x}, {var}"))
st += rb(mb, mu)
st.append(E(f"v_fma_f32 {var}, -{mu}, {mu}, {var}"))
st.append(E(f"v_max_f32 {var}, 0, {var}"))
st += rb(t, var)
st.append(E(f"v_add_f32 {t}, 0x{EPS:08x}, {t}"))
st += rb(t, t)
st.append(E(f"v_sqrt_f32 {t}, {t}", cost=2))
st.append(E(f"v_sub_f32 {mu}, {mu}, {mb}"))
st += rb(t, t)
st.append(E(f"v_rcp_f32 {rsd}, {t}", cost=2))
st.append(E(f"v_mul_f32 {mu}, {mu}, {rsd}"))
st.append(E(f"v_mul_f32 {var}, {var}, {rsd}"))
st.append(E(f"v_mul_f32 {var}, {var}, {rsd}"))
st += rb(t, var)
st.append(E(f"v_add_f32 {t}, 0x{EPS:08x}, {t}"))
st += rb(t, t)
st.append(E(f"v_sqrt_f32 {t}, {t}", cost=2))
st += rb(mu, mu)
st += rb(t, t)
st.append(E(f"v_rcp_f32 {w}, {t}", cost=2))
st.append(E(f"v_fma_f32 {mu}, {mb}, {rsd}, {mu}"))
st.append(E(f"v_mul_f32 {t}, {rsd}, {w}"))
st.append(E(f"v_mul_f32 {mu}, {mu}, {w}"))
st.append(E(f"v_cndmask_b32 {r('gq', 0, 1)}, {t}, {mb}, {r('m1')}"))
st.append(E(f"v_cndmask_b32 {r('gq', 1, 1)}, {mu}, {rsd}, {r('m1')}"))
ststore = [It(lambda: (e("s_mov_b32 exec_lo, 3"), e("s_mov_b32 exec_hi, 3"),
                       e(f"buffer_store_dwordx4 {r('gq')}, {r('stw')}, {r('sWS')}, 0 offen sc1", "sts"), e("s_mov_b64 exec, -1")), 2)]


def gcheck(name, voff, tagname):
    g.wait(vm=tagname)
    e(f"v_cmp_ne_u64 vcc, {r('tag')}, {r(name, 2, 2)}")
    e("s_cmp_eq_u64 vcc, 0")
    e(f"s_cbranch_scc0 L_{tagname}")
    g.label(f"L_{tagname}_ok")
    q4, q2, sws, tagr = r(name, 0, 4), r(name, 2, 2), r("sWS"), r("tag")

    def tail():
        g.label(f"L_{tagname}")
        if SPINMAX:
            e(f"s_mov_b32 {T4}, 0")
        g.label(f"L_{tagname}_l")
        e("s_sleep 2")
        e(f"buffer_load_dwordx4 {q4}, {voff}, {sws}, 0 offen sc1")
        e("s_waitcnt vmcnt(0)")
        e(f"v_cmp_ne_u64 vcc, {tagr}, {q2}")
        if SPINMAX:
            e(f"s_add_u32 {T4}, {T4}, 1")
            e(f"s_cmp_gt_u32 {T4}, {SPINMAX}")
            e(f"s_cbranch_scc1 L_{tagname}_ok")
        e("s_cmp_eq_u64 vcc, 0")
        e(f"s_cbranch_scc0 L_{tagname}_l")
        e(f"s_branch L_{tagname}_ok")
    tails.append(tail)


sgld = [E(f"buffer_load_dwordx4 {r('sgr')}, {r('sgo')}, {r('sWS')}, 0 offen sc1", "sg")]
sguse = [It(lambda: gcheck("sgr", r("sgo"), "sg"), 2)]
sguse += [E(f"v_mov_b32 {r('sac', k, 1)}, {r('sgr', k & 1, 1)}") for k in range(4)]
sguse += [E(f"v_permlane32_swap_b32 {r('sac', 0, 1)}, {r('sac', 2, 1)}"), E(f"v_permlane32_swap_b32 {r('sac', 1, 1)}, {r('sac', 3, 1)}")]

main = []
at = {}


def add(items, name=None):
    if name:
        at[name] = len(main)
        if name.startswith("K") and SSET == "k":
            f0 = items[0].fn
            items = [It(lambda: (stamp(name, "k"), f0()), items[0].cost)] + items[1:]
    main.extend(items)


def bar(K):
    def fn():
        if K == KVK:
            g.wait(vm=f"W{(K + 1) >> 1}", lg="kvw")
        elif K < 15:
            g.wait(vm=f"W{(K + 1) >> 1}")
        else:
            g.wait(lg=0)
        e("s_barrier")
        if K in (3, 7, 11, 15):
            stamp(f"c{K >> 2}")
    return [It(fn, 0)]


STAT = {K: [] for K in range(13)}
KVK = int(opt.get("kvk", 3))
for K in range(13):
    if K == KVK:
        add([It(lambda: (stamp("kvb"), run(weave(kvu[KVU:] + kvc, (kvdma, 4, len(kvu) - KVU + len(kvc) - 4))), stamp("kv")), 0)], "KV")
    if K & 1:
        add(bar(K), f"B{K}")
    sm = sum((statM(k) for k in STAT[K]), [])
    add(sm + mainM(K), f"K{K}")
    at[f"m{K}"] = at[f"K{K}"] + len(sm)
    add(csM(K))
add(bar(13), "B13")
add(csM(13), "K13"); add(mainM(13), "m13")
add(csM(14), "K14"); add(csM(15)); add(mainM(14), "m14")
add(bar(15), "C3")
add(mainM(15), "K15")
at["end"] = len(main)
A = lambda n: at[n]
QR = []
for K in range(1, 14):
    lo = A(f"K{K - 1}") - (1 if (K & 1 == 0) else 0)
    hi = A(f"K{K}") - 3 - (1 if K & 1 else 0) - (1 if K == KVK else 0)
    QR += win(rdW(K) + rdC(K), lo, hi)
QR += win(rdC(14), A("B13"), A("m13")) + win(rdC(15) + rdW(14), A("m13") + 1, A("K14") - 1)
QR += win(rdW(15), A("K14"), A("C3") - 6)
XRD = {1: 1, 2: 3, 3: 5, 4: 7, 5: 9, 6: 11, 7: 13}
QX = []
for ei in range(1, 8):
    k = XRD[ei]
    QX += win(rdX(ei), A(f"K{k}") + 1, A(f"K{k}") + 8)


def aft(tag, items):
    f0 = items[0]
    return [It(lambda: (g.wait(lg=tag), f0()), f0.cost + 1)] + items[1:]


f1set = [None] * 4 + [It(lambda: (g.wait(vm="kvst"), setflag(r("f1a"), "f1")), 2)]
udma = [It(lambda: pollcheck(r("pf1o"), "pf1"), 4),
        It(lambda: (e(f"s_add_u32 {r('sA', 0, 1)}, {plo(13)}, {r('chan')}"), e(f"s_addc_u32 {r('sA', 1, 1)}, {phi(13)}, 0"), e(f"s_mov_b32 m0, {r('um0')}")), 3)]
for n in range(4):
    udma.append(E(f"buffer_load_dwordx4 {r('l16')}, {r('sA')}, {r('ush')} offen offset:{1024 * n} sc1 lds", "U"))
KW = lambda k0, k1=None: (A(f"K{k0}"), A(f"K{(k1 or k0) + 1}") - 2)
F1K = int(opt.get("f1k", KVK + 3))
f1 = lambda k: f1set[4:] if F1K == k else []
KVU = int(opt.get("kvu", 8))
assert KVK == 3
QV = win(kvload, *KW(0))
QV += win(dmaW1(2) + dmaX(2)[:2], *KW(1))
QV += win(dmaX(2)[2:] + small, A("K2"), A("KV") - 1)
kvdma = dmaW1(3) + dmaX(3) + ststore + dmaX(4)
QV += win(kvst2 + dmaW1(4), *KW(3))
QV += win(dmaX(5) + skload[:1], *KW(4))
QV += win(dmaW1(5) + skload[1:], *KW(5))
QV += win(dmaX(6) + f1(6), *KW(6))
QV += win(dmaW1(6) + f1(7) + dmaW2(0)[:2], *KW(7))
QV += win(dmaW2(0)[2:] + dmaX(7)[:3], *KW(8))
QV += win(dmaX(7)[3:] + dmaW1(7), *KW(9))
QV += win(sgld + dmaW2(1), *KW(10))
QV += win(dmaW2(2), *KW(11))
QV += win([It(lambda: pollissue(r("pf1o"), "pf1"))], A("K14"), A("K14"))
QW1 = win(rdW2(0), *KW(12)) + win(rdW2(1), A("m13") + 6, A("C3") - 2)
XX = '''
QV += win(dmaW2(0) + f1(9), *KW(9))
QV += win(dmaW2(1) + f1(10), *KW(10))
QV += win(dmaW2(2) + f1(11), *KW(11))
QV += win(dmaW2(3), *KW(12))
'''
csw = [It(lambda: (e("s_mov_b32 exec_lo, 0x00010001"), e("s_mov_b32 exec_hi, 0x00010001"),
                   e(f"ds_write_b128 {r('csw')}, {r('cs', 0, 4)}", "csw"), e(f"ds_write_b128 {r('csw2')}, {r('cs', 4, 4)}", "csw"),
                   e("s_mov_b64 exec, -1")), 5)]
rcs = [E(f"ds_read_b128 {r('csf', 4 * fb, 4)}, {r('csr0')} offset:{64 * fb}", "rcs") for fb in range(6)]
rb1 = [E(f"ds_read_b128 {r('b1f', 4 * fb, 4)}, {r('csr0')} offset:{B1T - CSX + 64 * fb}", "rb1") for fb in range(6)]
QM = win(kvrd, A(f"K{KVK - 1}") + 1, A(f"K{KVK - 1}") + 8)
QM += win(kvu[:KVU], A(f"K{KVK - 1}") + 10, A("KV") - 1)
QM += win(kvst, A(f"B{KVK}"), A(f"B{KVK}") + 1)
QM += win(btab, A(f"K{KVK}") + 4, A(f"B{KVK + 2}") - 2)
QM += win(rb1, *KW(10))
QM += win(csw, A("m14") + 4, A("m14") + 5)
QM += win(rcs + [E(f"ds_write_b128 {r('za')}, {r('zz')}", "zw", 2)], A("C3"), A("C3") + 8)
QS = win(st, 0, A("KV") - 1 if KVK == 3 else A("K3") + 6) + win(sguse, A("m14") + 2, A("end") - 2)
schedule(main, [QR, QX, QV, QM, QS, QW1])
for n_ in ("wf", "kf", "vr", "kr", "shr", "vf", "kvp", "skr", "ke", "bt", "sgr"):
    del g.names[n_]
g.free("w1s", "w1lds", "sW1", "so", "f1a", "kvs", "pre", "kvo", "bb", "bw", "k0", "kd", "sho", "sa", "sb", "kvw", "kvr", "kra", "sra",
       "wa", "ca", "xf", "cs", "sgo", "m1", "csw", "csw2", "stw", "w1r", "csr", "ones", "sacc", "u", "gq", "stv",
       "xrd", "zz", "za", "ptr8", "ptr10", "ptr3", "ptr4", "ptr9", "kim", "xbase", "xk", "wo", "wlim")
AC("w2b", 176, at=0)
stamp("g1")
stamp("g1", "k")

K0 = -2.0 * 0.7978845608028654 * 1.4426950408889634
K1 = K0 * 0.044715
S("k1", 2); V("k0v", 2); V("ge", 16); V("hp", 8)
e(f"s_mov_b32 {r('k1', 0, 1)}, 0x{f2u(K1):08x}")
e(f"s_mov_b32 {r('k1', 1, 1)}, 0x{f2u(K1):08x}")
e(f"v_mov_b32 {r('k0v', 0, 1)}, 0x{f2u(K0):08x}")
e(f"v_mov_b32 {r('k0v', 1, 1)}, 0x{f2u(K0):08x}")
g.wait(lg="rcs")
e(".p2align 3")


def gelu(b, tb):
    it = []
    sac = r("sac", tb * 2, 2)
    prs = [(fb, h) for fb in (2 * b, 2 * b + 1) for h in range(2)]
    U = lambda k: r("acc", (prs[k][0] * 2 + tb) * 4 + 2 * prs[k][1], 2)
    Tm = lambda k: r("ge", (tb & 1) * 8 + 2 * k, 2)
    T1r = lambda k, x: r("ge", (tb & 1) * 8 + 2 * k + x, 1)
    for k, (fb, h) in enumerate(prs):
        it.append(E(f"v_pk_fma_f32 {Tm(k)}, {r('csf', fb * 4 + 2 * h, 2)}, {sac}, {r('b1f', fb * 4 + 2 * h, 2)} op_sel:[0,1,0] op_sel_hi:[1,1,1] neg_lo:[0,1,0] neg_hi:[0,1,0]"))
    for k in range(4):
        it.append(E(f"v_pk_fma_f32 {U(k)}, {U(k)}, {sac}, {Tm(k)} op_sel_hi:[1,0,1]"))
    for k in range(4):
        it.append(E(f"v_pk_mul_f32 {Tm(k)}, {U(k)}, {U(k)}"))
    for k in range(4):
        it.append(E(f"v_pk_fma_f32 {Tm(k)}, {Tm(k)}, {r('k1')}, {r('k0v')}"))
    for k in range(4):
        it.append(E(f"v_pk_mul_f32 {Tm(k)}, {Tm(k)}, {U(k)}"))
    for k in range(4):
        for x in range(2):
            it.append(E(f"v_exp_f32 {T1r(k, x)}, {T1r(k, x)}"))
    for k in range(4):
        it.append(E(f"v_pk_add_f32 {Tm(k)}, {Tm(k)}, 1.0 op_sel_hi:[1,0]"))
    for k in range(4):
        for x in range(2):
            it.append(E(f"v_rcp_f32 {T1r(k, x)}, {T1r(k, x)}"))
    for k in range(4):
        it.append(E(f"v_pk_mul_f32 {Tm(k)}, {Tm(k)}, {U(k)}"))
    for k in range(4):
        it.append(E(f"v_cvt_pk_bf16_f32 {r('hp', (tb & 1) * 4 + k, 1)}, {T1r(k, 0)}, {T1r(k, 1)}"))
    it.append(E(f"buffer_store_dwordx4 {r('hp', (tb & 1) * 4, 4)}, {r('l16')}, {r('sWS')}, {r('ho', tb, 1)} offen offset:{1024 * b} sc1", "hst"))
    return it


UDB = int(opt.get("udb", 1))
for n_, (b_, t_) in enumerate(((0, 0), (0, 1), (1, 0), (1, 1))):
    run(weave(gelu(b_, t_), (udma if n_ == UDB else [], 0, 40)))
g.free("pf1o", "um0", "ush", "chan")
e(f"s_cmp_lt_u32 {r('nown')}, 3")
e(f"s_cselect_b32 {r('ho', 0, 1)}, 0x7f000000, {r('ho', 0, 1)}")
e(f"s_cselect_b32 {r('ho', 1, 1)}, 0x7f000000, {r('ho', 1, 1)}")
e(".p2align 3")
run(gelu(2, 0)); run(gelu(2, 1))
stamp("gelu")
run(weave(kcopy, (dmaW2(3) + dmaW2(4), 2, 48)))
g.free("ska", "kw")
AC("cf", 32, at=176); AC("cg", 32, at=208)


def rdF(it, c):
    return E(f"ds_read_b128 {r('cf', 4 * c, 4)}, {r('fa')} offset:{64 * it + 512 * c}", f"F{it}_{c}")


def rdG(it, d):
    return E(f"ds_read_b128 {r('cg', 4 * d, 4)}, {r('ga')} offset:{64 * it + 512 * (7 - d)}", f"G{it}_{d}")


init = []
for k in range(8):
    init += [rdF(0, 7 - k), rdG(0, k)]
g.wait(vm="U", lg=0)
e("s_barrier")
stamp("b5")
run(init[:6])
del g.names["csf"], g.names["b1f"], g.names["sac"]
g.free("acc", "big", "ge", "k0v", "k1", "ho", "nown")
V("cy", 32, at=96)
V("hfv", 96, at=160)
HFIRST = int(opt.get("hfirst", 2))
HPOL = opt.get("hpol", "sc1").replace("+", " ")
HORD = [(s_, p_) for p_ in range(HFIRST) for s_ in range(4)]
HORD += [(s_, p_) for s_ in range(4) for p_ in range(HFIRST, 11)]
HF = {}
for k_, sp in enumerate(HORD):
    HF[sp] = r("hfv", 4 * k_, 4) if k_ < 24 else f"a[{176 + 4 * (k_ - 24)}:{179 + 4 * (k_ - 24)}]"
S("sH", 4)
for p in range(11):
    S(f"hb{p}")
NE = int(opt.get("ne", 1))
HTXT = [f"buffer_load_dwordx4 {HF[s_, p_]}, {r('hv', s_, 1)}, SRD, {r(f'hb{p_}')} offen {HPOL}" for s_, p_ in HORD]

main = []
QF = win(init[6:], 0, 9)
for it in range(4):
    at[f"I{it}"] = len(main)
    for c in range(7, -1, -1):
        for d in range(0, 8 - c):
            t = c + d
            wt = None
            if d == 0:
                wt = dict(lg=f"F{it}_0") if (c == 0 and it) else dict(lg=f"G{it}_{7 - c}")
                if it and c in (5, 3, 2, 1):
                    wt = None if c != 5 else dict(lg=f"G{it}_3")
                if it and c == 4:
                    wt = None
                if it and c == 3:
                    wt = dict(lg=f"F{it}_0")
                if it and c == 0:
                    wt = None
            main.append(M(r("cy", 4 * t, 4), r("cf", 4 * c, 4), r("cg", 4 * d, 4), it == 0 and d == 0, wt))
            if it == 0 and c == 0:
                main.append(M(r("cy", 4 * t, 4), r("fd"), r("cg", 4 * d, 4), False))
            idx = len(main) - 1
            if it < 3:
                if d == 7 - c and c > 0:
                    QF += win([rdF(it + 1, c)], idx, idx + 2)
                if c == 0:
                    QF += win([rdG(it + 1, d)], idx, idx)
                    if d == 7:
                        QF += win([rdF(it + 1, 0)], idx, idx)
at["I4"] = len(main)
QW = win(rdW2(2), 10, 24) + win(rdW2(3) + rdW2(4) + rdW2(5) + rdW2(6), 30, 82)
QW += win(rdW2(7) + rdW2(8) + rdW2(9) + rdW2(10), 90, A("I4") - 4)
QV = win(dmaW2(5) + dmaW2(6) + dmaW2(7), 1, 48) + win(dmaW2(8) + dmaW2(9), 49, 80)
F2POS = int(opt.get("f2pos", 20))
QF2 = win([It(lambda: (g.wait(vm="hst"), setflag(r("f2a"), "f2")), 2)], F2POS, F2POS)
QV += win(dmaW2(10), 86, 101)
P2A = int(opt.get("p2a", 128))
P2C = int(opt.get("p2c", 146))
QV += win([It(lambda: pollissue(r("pf2o"), "pf2a"))], P2A, P2A)


def chk2a():
    g.wait(vm="pf2a")
    e(f"v_cmp_ne_u64 vcc, {r('tag')}, {r('pf')}")
    e(f"s_mov_b64 {r('sH', 0, 2)}, {r('sWS', 0, 2)}")
    e(f"s_mov_b32 {r('sH', 3, 1)}, 0x00020000")
    e("s_cmp_eq_u64 vcc, 0")
    e(f"s_cselect_b32 {r('sH', 2, 1)}, {WSZ}, 0")


QV += win([It(chk2a, 2)], P2C, P2C)
QV += win([E(x.replace("SRD", r("sH")), f"H{s_}_{p_}") for (s_, p_), x in zip(HORD[:NE], HTXT)], P2C + 1, A("I4") - 3)
QV += win([It(lambda: pollissue(r("pf2o"), "pf2"))], A("I4") - 2, A("I4") - 2)
V("sw", 8); V("swo"); S("early"); S("bumped")
QB = win([It(lambda: (e(f"v_mul_u32_u24 {r('swo')}, {4 * FSTR}, {r('h4')}"), e(f"v_lshl_add_u32 {r('swo')}, {r('i15')}, 4, {r('swo')}")), 2),
          It(lambda: (e(f"s_or_b32 {r('bumped')}, s2, {r('wave')}"), e(f"s_cselect_b32 {T2}, 0x7e000000, 0")), 2),
          It(lambda: (e(f"s_add_u32 {T2}, {T2}, {F1B}"), e(f"s_add_u32 {T3}, {T2}, {16 * FSTR}")), 2),
          E(f"buffer_load_dwordx4 {r('sw', 0, 4)}, {r('swo')}, {r('sWS')}, {T2} offen sc1", "sw"),
          E(f"buffer_load_dwordx4 {r('sw', 4, 4)}, {r('swo')}, {r('sWS')}, {T3} offen sc1", "sw")], 10, 18)
QM = win([It(lambda p=p: (e(f"s_lshr_b32 {r(f'hb{p}')}, {r(f'kb{p}')}, 5"), e(f"s_min_u32 {r(f'hb{p}')}, {r(f'hb{p}')}, {42 * 1024}")), 0.6)
          for p in range(11)], 30, 70)
schedule(main, [QF, QW, QV, QM, QF2, QB])
stamp("conv")
g.free("cf", "cg", "fd", "fa", "ga", "w2s", "w4k", "f2a", "hp", "w2r")
for p in range(11):
    g.free(f"kb{p}")
V("ys", 8); V("cg", 24); V("sv", 4)
AC("hfa", 80, at=176)
e(f"buffer_load_dwordx4 {r('sv')}, {r('svr')}, {r('sWS')}, 0 offen sc1", "sv")
g.wait(lg=0)
e(f"s_cmp_lg_u32 {r('wodd')}, 0")
e("s_cbranch_scc1 L_odd1")
for k in range(4):
    e(f"ds_write_b128 {r('oa')}, {r('cy', 16 + 4 * k, 4)} offset:{1024 * k}")
e("s_branch L_j1")
g.label("L_odd1")
e("s_nop 4")
for k in range(4):
    e(f"ds_write_b128 {r('oa')}, {r('cy', 4 * k, 4)} offset:{1024 * k}")
g.wait(lg=0)
for k in range(8):
    e(f"v_pk_mov_b32 {r('cy', 2 * k, 2)}, {r('cy', 16 + 2 * k, 2)}, {r('cy', 16 + 2 * k, 2)} op_sel:[0,1]")
g.label("L_j1")
e(f"s_add_u32 m0, {r('own')}, 6144")
g.wait(lg=0)
e(f"buffer_load_dwordx4 {r('xs', 0, 1)}, {r('sX')}, {r('tile0')} offen lds", "xt")
e("s_barrier")
for k in range(4):
    e(f"ds_read_b128 {r('cg', 4 * k, 4)}, {r('pa')} offset:{1024 * k}", f"ex{k}")
e(f"buffer_load_dwordx4 {r('xs', 1, 1)}, {r('sX')}, {r('tile0')} offen offset:1024 lds", "xt")
for k in range(4):
    g.wait(lg=f"ex{k}")
    for hh in range(2):
        e(f"v_pk_add_f32 {r('cy', 4 * k + 2 * hh, 2)}, {r('cy', 4 * k + 2 * hh, 2)}, {r('cg', 4 * k + 2 * hh, 2)}")
    for hh in range(2):
        e(f"v_cvt_pk_bf16_f32 {r('cg', 16 + 2 * k + hh, 1)}, {r('cy', 4 * k + 2 * hh, 1)}, {r('cy', 4 * k + 2 * hh + 1, 1)}")
    e(f"ds_write_b64 {r('yw')}, {r('cg', 16 + 2 * k, 2)} offset:{4096 + 512 * k}", f"yw{k}")
    if k & 1:
        e(f"ds_read_b128 {r('ys', 2 * (k - 1), 4)}, {r('oa')} offset:{4096 + 512 * (k - 1)}", f"yr{k >> 1}")
g.wait(lg="yr0")
e(f"buffer_store_dwordx4 {r('ys', 0, 4)}, {r('l16')}, {r('sWS')}, {r('yo')} offen sc1", "yst")
g.wait(lg="yr1")
e(f"buffer_store_dwordx4 {r('ys', 4, 4)}, {r('l16')}, {r('sWS')}, {r('yo')} offen offset:1024 sc1", "yst")
stamp("yst")
g.free("cy", "pa", "yw", "cg", "yo")

V("ac2", 32)
e(f"s_cmp_lg_u32 {r('sH', 2, 1)}, 0")
e("s_cbranch_scc1 L_haveH")
pollcheck(r("pf2o"), "pf2", before_spin=["s_waitcnt vmcnt(0)", "s_mov_b64 exec, 1",
          f"buffer_store_dwordx2 {r('vtag')}, {r('zero')}, {r('sWS')}, {r('f3a')} offen sc1", "s_mov_b64 exec, -1"])
n_ = len(g.vm)
for x in HTXT[:NE]:
    e(x.replace("SRD", r("sWS")))
del g.vm[n_:]
g.label("L_haveH")
n_late = len(g.vm)
stamp("f2")
e(f"s_cmp_lg_u32 {r('bumped')}, 0")
e("s_cbranch_scc0 L_bump")
g.label("L_bumped")


def bump_tail():
    g.label("L_bump")
    if SPINMAX:
        e(f"s_mov_b32 {T4}, 0")
    g.label("L_bump_l")
    e(f"v_cmp_ne_u64 vcc, {tagr_}, {sw_[0]}")
    e(f"s_mov_b64 {r('t45', 0, 2)}, vcc")
    for k in range(1, 4):
        e(f"v_cmp_ne_u64 vcc, {tagr_}, {sw_[k]}")
        e(f"s_or_b64 {r('t45', 0, 2)}, {r('t45', 0, 2)}, vcc")
    e(f"s_cmp_eq_u64 {r('t45', 0, 2)}, 0")
    e("s_cbranch_scc1 L_bump_ok")
    if SPINMAX:
        e(f"s_add_u32 {T4}, {T4}, 1")
        e(f"s_cmp_gt_u32 {T4}, {SPINMAX}")
        e("s_cbranch_scc1 L_bumped")
    e(f"s_mov_b32 {T2}, {F1B}")
    e(f"s_mov_b32 {T3}, {F1B + 16 * FSTR}")
    e(f"buffer_load_dwordx4 {sw4_[0]}, {swo_}, {sws_}, {T2} offen sc1")
    e(f"buffer_load_dwordx4 {sw4_[1]}, {swo_}, {sws_}, {T3} offen sc1")
    e("s_waitcnt vmcnt(0)")
    e("s_branch L_bump_l")
    g.label("L_bump_ok")
    e(f"s_mov_b32 {T2}, {EPOCH}")
    e("s_mov_b64 exec, 1")
    e(f"buffer_store_dwordx2 {vtag_}, {zero_}, {sws_}, {T2} offen sc1")
    e("s_mov_b64 exec, -1")
    e("s_branch L_bumped")


tagr_, sws_, swo_, vtag_, zero_ = r("tag"), r("sWS"), r("swo"), r("vtag"), r("zero")
sw_ = [r("sw", 2 * k, 2) for k in range(4)]
sw4_ = [r("sw", 4 * k, 4) for k in range(2)]
tails.append(bump_tail)
g.free("sw", "swo", "bumped")
hl = [E(x.replace("SRD", r("sWS")), f"H{s_}_{p_}") for (s_, p_), x in zip(HORD, HTXT)]


def g2(s):
    return [M(r("ac2", (s & 1) * 16 + 4 * nb, 4), w2f(p, nb), HF[s, p], p == 0, dict(vm=f"H{s}_{p}") if nb == 0 else None)
            for p in range(11) for nb in range(4)]


def pwr(s):
    return [E(f"ds_write_b128 {r('pw', s, 1)}, {r('ac2', (s & 1) * 16 + 4 * nb, 4)} offset:{1024 * nb}", "pw", 2) for nb in range(4)]


V("xr", 8); V("xfp", 16); V("xn", 16)
pre = [It(lambda: gcheck("sv", r("svr"), "sv")), W(vm="xt")]
for nb in range(4):
    pre.append(E(f"ds_read_b64 {r('xr', 2 * nb, 2)}, {r('ea', nb, 1)} offset:6144", "xr"))
pre.append(W(lg="xr"))
pre += unpack("xfp", 0, "xr", 0, 8)
for d in range(8):
    pre.append(E(f"v_pk_add_f32 {r('xn', 2 * d, 2)}, {r('xfp', 2 * d, 2)}, {r('sv', 0, 2)} op_sel_hi:[1,0] neg_lo:[0,1] neg_hi:[0,1]"))
for d in range(8):
    pre.append(E(f"v_cvt_pk_bf16_f32 {r('xr', d, 1)}, {r('xn', 2 * d, 1)}, {r('xn', 2 * d + 1, 1)}"))
pre += unpack("xn", 0, "xr", 0, 8)
for d in range(8):
    pre.append(E(f"v_pk_mul_f32 {r('xn', 2 * d, 2)}, {r('xn', 2 * d, 2)}, {r('sv', 0, 2)} op_sel:[0,1] op_sel_hi:[1,1]"))
for d in range(8):
    pre.append(E(f"v_cvt_pk_bf16_f32 {r('xr', d, 1)}, {r('xn', 2 * d, 1)}, {r('xn', 2 * d + 1, 1)}"))
pre += unpack("xn", 0, "xr", 0, 8)
run(weave(pre, (hl[NE:NH0], 0, 88)))
g.free("xr", "sv", "svr", "pf2o")
e(f"s_cmp_lg_u32 {r('sH', 2, 1)}, 0")
e("s_cbranch_scc1 L_lateok")
e(f"s_waitcnt vmcnt({len(g.vm) - n_late})")
g.label("L_lateok")
stamp("f3set")
ps_alias = {}
main = g2(0) + g2(1) + g2(2) + g2(3)[:8]
P3K = int(opt.get("p3k", 44))
HPACE = int(opt.get("hpace", 4))
QH = win(hl[NH0:P3K] + [It(lambda: pollissue(r("pf3o"), "pf3"))] + hl[P3K:], 1, 1 + HPACE * (44 - NH0))
QP = win(pwr(0), 52, 64) + win(pwr(1), 96, 108) + win(pwr(2), 135, 139)
F3POS = int(opt.get("f3pos", 1))
QF3 = win([It(lambda: (g.wait(vm="yst"), setflag(r("f3a"), "f3")), 2)], F3POS, F3POS)
schedule(main, [QH, QP, QF3])
g.free("ys")
stamp("g2s2")
g.wait(lg=0)
e("s_barrier")
g.free("hfv")
V("ps", 48); V("zr", 8); V("b2f", 16)
rp = [E(f"ds_read_b128 {r('b2f', 4 * nb, 4)}, {r('csr0')} offset:{B2T - CSX + 64 * nb}", "rb2") for nb in range(4)]
rp += [E(f"ds_read_b128 {r('ps', 4 * k, 4)}, {r('psr')} offset:{PX + 1024 * k}", f"rp{k}") for k in range(12)]
adds = [W(lg="rp11")]
for k in range(16):
    adds.append(E(f"v_add_f32 {r('ps', k, 1)}, {r('ps', k, 1)}, {r('ps', 16 + k, 1)}"))
    adds.append(E(f"v_add_f32 {r('b2f', k, 1)}, {r('b2f', k, 1)}, {r('ps', 32 + k, 1)}"))
ztxt = [f"buffer_load_dwordx4 {r('zs')}, {r('sWS')}, {r('zo')} offen sc1 lds",
        f"buffer_load_dwordx4 {r('zs')}, {r('sWS')}, {T3} offen offset:1024 sc1 lds"]


def zfirst():
    g.wait(vm="pf3")
    e(f"v_cmp_ne_u64 vcc, {r('tag')}, {r('pf')}")
    e(f"s_add_u32 m0, {r('own')}, 8192")
    e(f"s_add_u32 {T3}, {r('zo')}, {32 * KP - 1024}")
    e("s_cmp_eq_u64 vcc, 0")
    e(f"s_cselect_b32 {r('early')}, 1, 0")
    e("s_cbranch_scc0 L_noz")
    n_ = len(g.vm)
    for x in ztxt:
        e(x)
    del g.vm[n_:]
    g.label("L_noz")
    pollissue(r("pf3o"), "pf3b")


ZPOS = int(opt.get("zpos", 30))
schedule(g2(3)[8:], [win(rp, 0, 9), win(adds, 15, 35), win([It(zfirst, 8)], ZPOS, ZPOS)])
stamp("g2")
S("nl2", 2)
e(f"s_mov_b32 {r('nl2', 0, 1)}, 0x{f2u(-1.4426950408889634):08x}")
e(f"s_mov_b32 {r('nl2', 1, 1)}, 0x{f2u(-1.4426950408889634):08x}")
srd("sA", 11, 2097152)
Mm = lambda k: r("ps", 2 * k, 2)
Tt = lambda k: r("ps", 16 + 2 * k, 2)
e(".p2align 3")
for k in range(8):
    e(f"v_pk_add_f32 {Mm(k)}, {Mm(k)}, {r('b2f', 2 * k, 2)}")
for k in range(8):
    e(f"v_pk_add_f32 {Mm(k)}, {Mm(k)}, {r('ac2', 16 + 2 * k, 2)}")
for k in range(8):
    e(f"v_pk_mul_f32 {Tt(k)}, {Mm(k)}, {r('nl2')}")
for k in range(16):
    e(f"v_exp_f32 {r('ps', 16 + k, 1)}, {r('ps', 16 + k, 1)}")
for k in range(8):
    e(f"v_pk_mul_f32 {Mm(k)}, {Mm(k)}, {r('xn', 2 * k, 2)}")
for k in range(8):
    e(f"v_pk_add_f32 {Tt(k)}, {Tt(k)}, 1.0 op_sel_hi:[1,0]")
for k in range(16):
    e(f"v_rcp_f32 {r('ps', 16 + k, 1)}, {r('ps', 16 + k, 1)}")
e(f"s_cmp_eq_u32 {r('early')}, 1")
e("s_cbranch_scc1 L_havez")
pollcheck(r("pf3o"), "pf3b")
for x in ztxt:
    e(x)
g.label("L_havez")
e("s_waitcnt vmcnt(0)")
stamp("z")
for nb in range(4):
    e(f"ds_read_b64_tr_b16 {r('zr', 2 * nb, 2)}, {r('zt')} offset:{8192 + 512 * nb}", f"zr{nb}")
for k in range(8):
    e(f"v_pk_mul_f32 {Mm(k)}, {Mm(k)}, {Tt(k)}")
for nb in range(4):
    g.wait(lg=f"zr{nb}")
    run(unpack("ps", 16 + 4 * nb, "zr", 2 * nb, 2))
    for k in (2 * nb, 2 * nb + 1):
        e(f"v_pk_fma_f32 {Mm(k)}, {Mm(k)}, {Tt(k)}, {r('xfp', 2 * k, 2)}")
    for k in (2 * nb, 2 * nb + 1):
        e(f"v_cvt_pk_bf16_f32 {r('zr', k, 1)}, {r('ps', 2 * k, 1)}, {r('ps', 2 * k + 1, 1)}")
    e(f"ds_write_b64 {r('ea', nb, 1)}, {r('zr', 2 * nb, 2)} offset:10240", "ow")
e(f"ds_read_b128 {r('ps', 32, 4)}, {r('oa')} offset:10240", "or0")
e(f"ds_read_b128 {r('ps', 36, 4)}, {r('oa')} offset:11264", "or1")
g.wait(lg="or0")
e(f"buffer_store_dwordx4 {r('ps', 32, 4)}, {r('xs', 0, 1)}, {r('sA')}, {r('tile0')} offen {OPOL}", "ost")
g.wait(lg="or1")
e(f"buffer_store_dwordx4 {r('ps', 36, 4)}, {r('xs', 1, 1)}, {r('sA')}, {r('tile0')} offen offset:1024 {OPOL}", "ost")
stamp("out")
if STAMPS:
    e("s_waitcnt vmcnt(0)")
    stamp("end")
    flush_stamps(True)
    e(f"s_lshl_b32 {T2}, s2, 2")
    e(f"s_add_u32 {T2}, {T2}, {r('wave')}")
    e(f"s_lshl_b32 {T2}, {T2}, 7")
    e(f"s_add_u32 {T2}, {T2}, {STAMP}")
    e(f"v_lshlrev_b32 {r('ta')}, 2, {r('lane')}")
    e("s_mov_b32 exec_hi, 0")
    e(f"buffer_store_dword {r('stamps')}, {r('ta')}, {r('sWS')}, {T2} offen")
    if DBG:
        e(f"s_cmp_lg_u32 {T2}, {STAMP + (DBG - 1) * 512}")
        e("s_cbranch_scc1 L_end")
        e(f"v_readfirstlane_b32 {T3}, {r('stamps')}")
        e(f"v_subrev_u32 {r('tb')}, {T3}, {r('stamps')}")
        e(f"global_store_dword {r('ta')}, {r('tb')}, {ptr(12)}")
if UNTIL:
    g.label("L_until")
    e(f"s_memrealtime {r('t45', 0, 2)}")
    e("s_waitcnt lgkmcnt(0)")
    e(f"s_sub_u32 {T1_}, {T1_}, {r('t_start', 0, 1)}")
    e(f"s_cmp_lt_u32 {T1_}, {UNTIL}")
    e("s_cbranch_scc1 L_until")
PAD = int(opt.get("pad", 0))
if PAD:
    e(f"s_mov_b32 {T2}, 0")
    g.label("L_pad")
    for _ in range(120):
        e(f"v_add_u32 {r('ta')}, 1, {r('tb')}")
    e(f"s_add_u32 {T2}, {T2}, 1")
    e(f"s_cmp_lt_u32 {T2}, {PAD}")
    e("s_cbranch_scc1 L_pad")
g.label("L_end")
e("s_endpgm")
for t_ in tails:
    t_()

body = g.finish()
hdr = open("cdna_kernels/" + NAME + ".s.ref").read().split("; @launch")[0]
nv = 256 + g.hw["a"]
txt = f"""{hdr}; @launch grid=(256,1,1) block=(256,1,1) lds={LDSZ}
.amdgcn_target "amdgcn-amd-amdhsa--gfx950"
.text
.globl {NAME}_kernel
.p2align 8
.type {NAME}_kernel,@function
{NAME}_kernel:
{body}
    s_endpgm
.section .rodata,"a"
.p2align 6
.amdhsa_kernel {NAME}_kernel
  .amdhsa_next_free_vgpr {nv}
  .amdhsa_next_free_sgpr 102
  .amdhsa_accum_offset 256
  .amdhsa_group_segment_fixed_size 0
  .amdhsa_kernarg_size 112
  .amdhsa_user_sgpr_count 2
  .amdhsa_user_sgpr_kernarg_segment_ptr 1
  .amdhsa_system_sgpr_workgroup_id_x 1
.end_amdhsa_kernel
"""
import subprocess, re
open("_g.s", "w").write(txt.replace("CODE_BYTES", "0x1000"))
subprocess.check_call(["clang", "-x", "assembler", "-target", "amdgcn-amd-amdhsa", "-mcpu=gfx950", "-c", "_g.s", "-o", "_g.o"])
hh = subprocess.check_output(["llvm-objdump", "-h", "_g.o"]).decode()
size = int(re.search(r"\.text\s+([0-9a-f]+)", hh).group(1), 16)
txt = txt.replace("CODE_BYTES", str((size - 256) & ~3))
open(OUT, "w").write(txt)
print("code bytes", size, "instrs", len(g.ins), "nops", g.nops, "hw", g.hw, "stamps", nst[0], " ".join(stnames))
```

```python
import re

TRANS = ("v_exp_f32", "v_log_f32", "v_rcp_f32", "v_rsq_f32", "v_sqrt_f32", "v_sin_f32", "v_cos_f32")


def _regs(tok):
    tok = tok.strip()
    tok = tok.lstrip("-")
    if tok.startswith("abs(") or tok.startswith("|"):
        tok = tok.replace("abs(", "").replace(")", "").replace("|", "")
    m = re.fullmatch(r"([vas])\[(\d+):(\d+)\]", tok)
    if m:
        return [(m.group(1), i) for i in range(int(m.group(2)), int(m.group(3)) + 1)]
    m = re.fullmatch(r"([vas])(\d+)", tok)
    if m:
        return [(m.group(1), int(m.group(2)))]
    if tok == "vcc":
        return [("s", 106), ("s", 107)]
    if tok == "vcc_lo":
        return [("s", 106)]
    if tok == "vcc_hi":
        return [("s", 107)]
    if tok == "exec":
        return [("s", 126), ("s", 127)]
    if tok == "exec_lo":
        return [("s", 126)]
    if tok == "exec_hi":
        return [("s", 127)]
    if tok == "m0":
        return [("s", 124)]
    return []


class Ins:
    __slots__ = ("text", "op", "cls", "wr", "rd", "srcc", "ab", "lds", "wide_store")

    def __init__(self, text):
        self.text = text
        t = text.split(";")[0].strip()
        parts = t.split(None, 1)
        self.op = op = parts[0]
        rest = parts[1] if len(parts) > 1 else ""
        ops = []
        cur = ""
        depth = 0
        for ch in rest:
            if ch in "[(":
                depth += 1
            if ch in "])":
                depth -= 1
            if ch == "," and depth == 0:
                ops.append(cur.strip())
                cur = ""
            else:
                cur += ch
        if cur.strip():
            ops.append(cur.strip())
        mods = ""
        if ops:
            sp = ops[-1].split(None, 1)
            if len(sp) > 1:
                ops[-1] = sp[0]
                mods = sp[1]
        self.wr, self.rd, self.srcc, self.ab = [], [], [], []
        self.lds = False
        self.wide_store = False
        R = [_regs(o) for o in ops]
        if op.endswith(":") or op.startswith("."):
            self.cls = "label"
        elif op.startswith("v_mfma"):
            self.cls = "mfma"
            self.wr = R[0]
            self.ab = R[1] + R[2]
            self.srcc = R[3]
            self.rd = self.ab + self.srcc
        elif op.startswith("v_"):
            self.cls = "trans" if op.replace("_e32", "").replace("_e64", "") in TRANS else "valu"
            if op.startswith("v_cmp"):
                self.wr = R[0]
                self.rd = sum(R[1:], [])
                if op.startswith("v_cmpx"):
                    self.wr = self.wr + _regs("exec")
            elif op.startswith("v_add_co") or op.startswith("v_sub_co") or op.startswith("v_addc_co") or op.startswith("v_subb_co"):
                self.wr = R[0] + R[1]
                self.rd = sum(R[2:], [])
            elif op.startswith("v_permlane") and "swap" in op:
                self.wr = R[0] + R[1]
                self.rd = R[0] + R[1]
            else:
                self.wr = R[0]
                self.rd = sum(R[1:], [])
                if op.startswith("v_fmac") or op.startswith("v_dot2c") or "dpp" in op or "row_" in mods or "quad_perm" in mods:
                    self.rd = self.rd + R[0]
                if op.startswith("v_cndmask") and len(ops) == 3:
                    self.rd = self.rd + _regs("vcc")
            if "dpp" in op or "row_" in mods or "quad_perm" in mods:
                self.cls = "dpp"
        elif op.startswith("ds_"):
            self.cls = "ds"
            if op.startswith("ds_read") or op.startswith("ds_bpermute") or op.startswith("ds_permute") or op.startswith("ds_swizzle"):
                self.wr = R[0]
                self.rd = sum(R[1:], [])
            else:
                self.rd = sum(R, [])
        elif op.startswith("buffer_") or op.startswith("global_"):
            self.cls = "vmem"
            self.lds = bool(re.search(r"\blds\b", mods))
            if "load" in op and not self.lds:
                self.wr = R[0]
                self.rd = sum(R[1:], [])
            else:
                self.rd = sum(R, [])
                if self.lds:
                    self.rd = self.rd + _regs("m0")
                if "store" in op and ("x4" in op or "x3" in op):
                    self.wide_store = R[0] if op.startswith("buffer_") else R[1]
        elif op.startswith("s_"):
            self.cls = "salu"
            if op in ("s_waitcnt", "s_barrier", "s_nop", "s_sleep", "s_endpgm", "s_setprio") or op.startswith("s_cbranch") or op == "s_branch":
                self.cls = "sctl"
            elif op.startswith("s_cmp") or op.startswith("s_bitcmp"):
                self.rd = sum(R, [])
            elif op.startswith("s_load") or op.startswith("s_memtime") or op.startswith("s_memrealtime"):
                self.cls = "smem"
                self.wr = R[0]
                self.rd = sum(R[1:], [])
            else:
                self.wr = R[0]
                self.rd = sum(R[1:], [])
                if "saveexec" in op:
                    self.wr = self.wr + _regs("exec")
        else:
            raise ValueError("unknown op " + text)

    def states(self):
        if self.cls == "label":
            return 0
        if self.op == "s_nop":
            return int(self.text.split()[1]) + 1
        return 1


VALU_LIKE = ("valu", "trans", "dpp")


def need(p, c):
    n = 0
    pw = set(p.wr)
    if p.cls == "mfma":
        if c.cls == "mfma":
            if pw & set(c.ab):
                n = max(n, 8)
            if pw & set(c.srcc):
                if set(c.srcc) != pw:
                    n = max(n, 6)
            elif pw & set(c.wr):
                n = max(n, 6)
        elif c.cls in VALU_LIKE or c.cls in ("ds", "vmem"):
            if pw & (set(c.rd) | set(c.wr)):
                n = max(n, 8)
        if c.cls in VALU_LIKE and set(p.srcc) & set(c.wr):
            n = max(n, 3)
    if p.cls in VALU_LIKE:
        vw = {r for r in pw if r[0] in "va"}
        sw = {r for r in pw if r[0] == "s"}
        if c.cls == "mfma" and vw & set(c.rd):
            n = max(n, 2)
        if c.cls == "mfma" and (("s", 126) in sw):
            n = max(n, 4)
        if c.cls == "dpp" and vw & set(c.rd):
            n = max(n, 2)
        if c.cls == "dpp" and ("s", 126) in sw:
            n = max(n, 5)
        if c.op.startswith("v_permlane") and vw & set(c.rd):
            n = max(n, 2)
        if (c.op.startswith("v_readfirstlane") or c.op.startswith("v_readlane")) and vw & set(c.rd):
            n = max(n, 1)
        if c.cls == "vmem" and sw & set(c.rd):
            n = max(n, 5)
        if c.cls in VALU_LIKE and sw & set(c.rd):
            n = max(n, 4 if c.op.startswith("v_readlane") or c.op.startswith("v_writelane") else 2)
        if c.cls in ("salu", "sctl", "smem") and sw & set(c.rd):
            n = max(n, 1)
        if p.op.startswith("v_dot") and vw & (set(c.rd) | set(c.wr)):
            same_c = c.op == p.op and not (vw & set(c.rd[:-1] if c.rd else []))
            if not same_c:
                n = max(n, 3)
        if p.cls == "trans" and c.cls in ("valu", "dpp", "mfma", "ds", "vmem") and vw & set(c.rd):
            n = max(n, 1)
        if ("sdwa" in p.op or "op_sel" in p.text) and c.cls in VALU_LIKE and vw & (set(c.rd) | set(c.wr)) and not p.op.startswith("v_pk_"):
            n = max(n, 1)
    if p.cls == "salu":
        if ("s", 124) in pw and c.cls == "vmem" and c.lds:
            n = max(n, 1)
    if p.cls == "vmem" and p.wide_store:
        if set(p.wide_store) & set(c.wr):
            n = max(n, 2)
    return n


class Gen:
    def __init__(self):
        self.ins = []
        self.vm = []
        self.lg = []
        self.smem_out = False
        self.wlog = []
        self.vm_done = 0
        self.lg_done = 0
        self.pools = {"v": [None] * 256, "a": [None] * 256, "s": [None] * 102}
        self.names = {}
        self.hw = {"v": 0, "a": 0, "s": 0}

    def alloc(self, kind, name, n=1, align=None, lo=0, at=None):
        pool = self.pools[kind]
        if align is None:
            align = 1 if n == 1 else (2 if kind in "va" else (4 if n >= 4 else 2))
        assert name not in self.names, name
        rng = [at] if at is not None else range(lo, len(pool) - n + 1)
        for b in rng:
            if b % align:
                continue
            if all(pool[b + i] is None for i in range(n)):
                for i in range(n):
                    pool[b + i] = name
                self.names[name] = (kind, b, n)
                self.hw[kind] = max(self.hw[kind], b + n)
                return b
        raise RuntimeError(f"out of {kind} regs for {name} ({n}); used: {self.usage(kind)}")

    def usage(self, kind):
        return {k: v[1:] for k, v in self.names.items() if v[0] == kind}

    def free(self, *names):
        for name in names:
            kind, b, n = self.names.pop(name)
            for i in range(n):
                self.pools[kind][b + i] = None

    def r(self, name, off=0, n=None):
        kind, b, tot = self.names[name]
        if n is None:
            n = tot - off if off == 0 else 1
        assert off + n <= tot, (name, off, n, tot)
        if n == 1:
            return f"{kind}{b + off}"
        return f"{kind}[{b + off}:{b + off + n - 1}]"

    def e(self, text, tag=None):
        for line in text.split("\n"):
            line = line.strip()
            if not line:
                continue
            i = Ins(line)
            self.ins.append(i)
            if i.cls == "vmem":
                self.vm.append(tag)
            elif i.cls == "ds":
                self.lg.append(tag)
            elif i.cls == "smem":
                self.smem_out = True

    def label(self, name):
        self.ins.append(Ins(name + ":"))

    def comment(self, s):
        self.ins.append(Ins(".if 0"))
        self.ins.pop()

    def _cnt(self, lst, tag):
        idx = max(i for i, t in enumerate(lst) if t == tag)
        self.wlog.append((lst, tag, lst.count(tag)))
        return len(lst) - 1 - idx

    def wait(self, vm=None, lg=None):
        parts = []
        if vm is not None:
            n = 0 if vm == 0 else self._cnt(self.vm, vm)
            done = len(self.vm) - n
            if done > self.vm_done or vm == 0:
                n = min(n, 63)
                self.vm_done = max(self.vm_done, len(self.vm) - n)
                parts.append(f"vmcnt({n})")
        if lg is not None:
            n = 0 if lg == 0 else self._cnt(self.lg, lg)
            done = len(self.lg) - n
            if done > self.lg_done or lg == 0:
                if self.smem_out:
                    n = 0
                n = min(n, 15)
                if n == 0:
                    self.smem_out = False
                self.lg_done = max(self.lg_done, len(self.lg) - n)
                parts.append(f"lgkmcnt({n})")
        if parts:
            self.e("s_waitcnt " + " ".join(parts))

    def finish(self, align8=True):
        for lst, tag, c in self.wlog:
            assert lst.count(tag) == c, ("wait on partially issued group", tag, c, lst.count(tag))
        out = []
        hist = []
        nops = 0
        for i in self.ins:
            if i.cls != "label":
                req = 0
                dist = 0
                for p in reversed(hist):
                    nd = need(p, i)
                    if nd > dist:
                        req = max(req, nd - dist)
                    dist += p.states()
                    if dist >= 20:
                        break
                if req:
                    nop = Ins(f"s_nop {req - 1}")
                    out.append(nop)
                    hist.append(nop)
                    nops += 1
                hist.append(i)
            out.append(i)
        self.nops = nops
        return "\n".join(("" if x.cls == "label" else "    ") + x.text for x in out)


def interleave(main, fill, start=0, every=1, per=1):
    out = []
    f = list(fill)
    for n, m in enumerate(main):
        out.append(m)
        if n >= start and (n - start) % every == 0:
            for _ in range(per):
                if f:
                    out.append(f.pop(0))
    out.extend(f)
    return out


class It:
    __slots__ = ("fn", "cost", "lo", "hi")

    def __init__(self, fn, cost=1, lo=0, hi=10 ** 9):
        self.fn, self.cost, self.lo, self.hi = fn, cost, lo, hi

    def __call__(self):
        self.fn()


def win(items, lo, hi, pace=True):
    out = []
    n = len(items)
    for k, it in enumerate(items):
        if not isinstance(it, It):
            it = It(it)
        a = lo + (k * (hi - lo + 1)) // n if pace else lo
        b = max(a, hi - (n - 1 - k) // 2) if not pace else max(a, min(hi, a + max(1, (hi - lo + 1) // n)))
        out.append(It(it.fn, it.cost, a, b))
    return out


def schedule(main, queues, cap=2.3):
    qs = [list(q) for q in queues]
    for idx, m in enumerate(main):
        m()
        room = cap - (main[idx + 1].cost if idx + 1 < len(main) else 0)
        while True:
            cand = [q for q in qs if q and q[0].lo <= idx]
            if not cand:
                break
            q = min(cand, key=lambda q: min(x.hi for x in q[:8]))
            dl = min(x.hi for x in q[:8])
            if room >= q[0].cost or dl <= idx:
                it = q.pop(0)
                it()
                room -= it.cost
            else:
                alt = [c for c in cand if c[0].cost <= room]
                if not alt:
                    break
                q = min(alt, key=lambda q: min(x.hi for x in q[:8]))
                it = q.pop(0)
                it()
                room -= it.cost
    for q in qs:
        for it in q:
            it()
```

```python
import sys, struct, re
from dsl import Gen, It, win, schedule

NAME = "recurrent_scan__ssm_conv_h3__mixer_channel_mlp__prompt"
opt = dict(a.split("=") for a in sys.argv[2:])
OUT = sys.argv[1]
MAP1 = int(opt.get("map1", 4))
STAMPS = int(opt.get("stamps", 0))
KVPOL = opt.get("kvpol", "")
XPOL0 = opt.get("xpol", "")
KPOL = opt.get("kpol", "")
SPINMAX = int(opt.get("spinmax", 0))
PREDIV = int(opt.get("prediv", 16))
OPOL = opt.get("opol", "")
DBG = int(opt.get("dbg", 0))
SSET = opt.get("sset", "main")
TOUCH = int(opt.get("touch", 0))
NH0 = int(opt.get("nh0", 14))
NX0 = int(opt.get("nx0", 7))

KP = int(opt.get("kp", 4352))
KVT, HB, YT, FL, EPOCH, STAMP = 0, 0x240000, 0x800000, 0xA40000, 0xB00000, 0xC00000
F1B, F2B, F3B = FL, FL + 0x30000, FL + 0x60000
L1S, L2S, L3S = (int(opt.get(k, d)) for k, d in (("l1s", 6), ("l2s", 6), ("l3s", 6)))
G1S, G2S, G3S = max(32 << L1S, 256) + 256, max(32 << L2S, 256) + 256, max(64 << L3S, 256) + 256
STA, STB = 0xAE0000, 0xAE0010
HALT = int(opt.get("halt", "0"), 0)
WSZ = 0xD00000 + HALT
XST, KVIMG, CSX, STT = 98816, 147968, 156288, 156672
FP, GP = 4160, 4576
WR = 49664
UB0 = 66048
S3, S4 = 49664, 33280
PX = 49664
B1T, B2T = 157696, 158080
LDSZ = 158336


def f2u(x):
    return struct.unpack("<I", struct.pack("<f", x))[0]


g = Gen()
e, r = g.e, g.r
V = lambda n, c=1, **k: g.alloc("v", n, c, **k)
S = lambda n, c=1, **k: g.alloc("s", n, c, **k)
AC = lambda n, c=1, **k: g.alloc("a", n, c, **k)
W = lambda **k: It(lambda: g.wait(**k), 0.3)
E = lambda s, t=None, cost=None: It(lambda: e(s, t), cost or (1.2 if s.startswith(('ds_', 'buffer_', 'global_')) else 0.3 if s.startswith('s_') else 1))


def run(items):
    for it in items:
        it()


def weave(main, *bgs):
    slots = [[] for _ in main]
    for items, a, b in bgs:
        b = min(b, len(main) - 1)
        n = len(items)
        for k, it in enumerate(items):
            slots[a + (k * (b - a + 1)) // max(n, 1)].append(it)
    out = []
    for m, s in zip(main, slots):
        out.append(m)
        out.extend(s)
    return out


S("karg", 2, at=0); S("wg", 1, at=2); S("t0", 1, at=3)
S("t45", 4, at=4)
for i_ in range(14):
    S(f"ptr{i_}", 2, at=8 + 2 * i_)
V("tid", 1, at=0)
nst = [0]
stnames = []
pend = []
if STAMPS:
    S("st", 8, at=94, align=2)
    V("stamps", 1, at=1)


def flush_stamps(force=False):
    if pend and (force or len(pend) == 4) and g.smem_out:
        g.wait(lg=0)
    if not g.smem_out:
        for k in pend:
            e(f"v_writelane_b32 {r('stamps')}, {r('st', 2 * (k % 4), 1)}, {k}")
        pend.clear()


def stamp(name, grp="main"):
    if STAMPS and (grp == SSET or name in ("start", "end")) and name not in opt.get("skip", "").split(","):
        assert nst[0] < 32
        if STAMPS == 3:
            if len(pend) == 3:
                k = pend.pop(0)
                e(f"v_writelane_b32 {r('stamps')}, {r('st', 2 * (k % 4), 1)}, {k}")
            so_ = g.smem_out
            e(f"s_memtime {r('st', 2 * (nst[0] % 4), 2)}")
            g.smem_out = so_
            pend.append(nst[0]); nst[0] += 1; stnames.append(name)
            return
        flush_stamps()
        e(f"{'s_memtime' if STAMPS == 2 else 's_memrealtime'} {r('st', 2 * (nst[0] % 4), 2)}")
        pend.append(nst[0])
        nst[0] += 1
        stnames.append(name)


_wait = g.wait
_wn = [0]
VM0 = int(opt.get("vm0", 0))


def wait_hook(vm=None, lg=None):
    hook = SSET == "vm" and vm is not None and not str(vm).startswith("H")
    if hook:
        _wn[0] += 1
        hook = VM0 < _wn[0] <= VM0 + 15
    if hook:
        stamp(f"b{vm}", "vm")
    _wait(vm=vm, lg=lg)
    if hook:
        stamp(f"a{vm}", "vm")


g.wait = wait_hook


def ptr(i):
    if i == 13 and "ptr13" not in g.names:
        return r("sWS", 0, 2)
    return r(f"ptr{i}")


def plo(i):
    return "s" + ptr(i)[2:].split(":")[0]


def phi(i):
    return "s" + ptr(i).split(":")[1][:-1]


def srd(name, pi, nbytes, add=None):
    if add is None:
        e(f"s_mov_b64 {r(name,0,2)}, {ptr(pi)}")
    else:
        e(f"s_add_u32 {r(name,0,1)}, {plo(pi)}, {add}")
        e(f"s_addc_u32 {r(name,1,1)}, {phi(pi)}, 0")
    e(f"s_mov_b32 {r(name,2,1)}, {nbytes}")
    e(f"s_mov_b32 {r(name,3,1)}, 0x00020000")


T0, T1_, T2, T3, T4 = "s3", "s4", "s5", "s6", "s7"
ABL = opt.get("abl", "").split(",")
_e0 = g.e


LATE = None


def e(text, tag=None):
    if LATE is not None:
        LATE.append(text)
        return
    t = tag or ""
    if ("x" in ABL and t.startswith("X") and t != "X0") or ("w" in ABL and t.startswith("W") and t != "W0") or \
            ("v" in ABL and t.startswith("V")):
        g.vm.append(tag)
        g.vm.pop()
        g.vm.insert(0, tag)
        return
    hook = SSET == "iss" and (text.startswith(("buffer_", "global_", "s_barrier")) or (text.startswith("s_waitcnt") and "vmcnt" in text))
    if hook:
        _in[0] += 1
        hook = VM0 < _in[0] <= VM0 + 15
    if hook:
        stamp("b" + (tag or text.split()[0][2:6]), "iss")
    _e0(text, tag)
    if hook:
        stamp("a", "iss")


_in = [0]
g.e = e


UNTIL = int(opt.get("until", 0))
if UNTIL:
    S("t_start", 2, at=92)
    e(f"s_memrealtime {r('t_start')}")
stamp("start")
e("s_load_dwordx16 s[8:23], s[0:1], 0")
e("s_load_dwordx8 s[24:31], s[0:1], 64")
e("s_load_dwordx4 s[32:35], s[0:1], 96")
e("s_cmp_ge_u32 s2, 256")
e("s_cbranch_scc1 L_end")
for n in ("lane", "ta", "tb", "tc", "td", "r8", "pc", "zero", "i15", "h4", "l16", "oa", "fa", "ga", "pa", "yw", "zs", "zt",
          "pf1o", "pf2o", "pf3o", "psr", "svr", "kw", "za", "sgo", "csr0", "stw"):
    V(n)
V("vtag", 4); V("xs", 4, align=1); V("w2s", 4, align=1); V("w2r", 8, align=1); V("hv", 4, align=1)
V("pw", 3, align=1); V("ea", 4, align=1); V("pf", 2)
V("xrd", 2, align=1); V("w1r", 6, align=1); V("ctr", 3, align=1); V("w1s", 3, align=1)
AC("fd", 4, at=240); AC("ones", 4, at=244); AC("zz", 4, at=248)
for n in ("wave", "T1", "q", "tt2", "ns", "rot", "b0", "nown", "tok16", "ns128", "tile0", "own", "hmask", "so",
          "f1a", "f2a", "f3a", "yo", "zo", "um0", "ush"):
    S(n)
sh_ = PREDIV.bit_length() - 1
V("pre")
e(f"s_lshr_b32 {T1_}, s2, 3")
e(f"v_lshrrev_b32 {r('tc')}, {sh_}, v0")
e(f"s_and_b32 {T2}, {T1_}, {PREDIV - 1}")
e(f"v_lshl_add_u32 {r('tc')}, {r('tc')}, {sh_}, {T2}")
e(f"v_lshlrev_b32 {r('tc')}, 7, {r('tc')}")
e(f"v_min_u32 {r('tc')}, CODE_BYTES, {r('tc')}")
e(f"s_getpc_b64 {r('t45', 2, 2)}")
e(f"global_load_dword {r('pre')}, {r('tc')}, {r('t45', 2, 2)}", "pre")
e(f"v_and_b32 {r('lane')}, 63, v0")
e(f"v_lshrrev_b32 {r('ta')}, 6, v0")
e(f"s_and_b32 {T0}, s2, 7")
e(f"v_readfirstlane_b32 {r('wave')}, {r('ta')}")
if MAP1 == 8:
    e(f"s_lshr_b32 {T2}, {T1_}, 4")
    e(f"s_lshl_b32 {r('T1')}, {T0}, 1")
    e(f"s_add_u32 {r('T1')}, {r('T1')}, {T2}")
    e(f"s_and_b32 {r('q')}, {T1_}, 15")
    e(f"s_lshl_b32 {T2}, {T2}, 2")
    e(f"s_add_u32 {r('rot')}, {T2}, {r('q')}")
else:
    e(f"s_lshr_b32 {T2}, {T0}, 1")
    e(f"s_lshl_b32 {T2}, {T2}, 2")
    e(f"s_lshr_b32 {T3}, {T1_}, 3")
    e(f"s_add_u32 {r('T1')}, {T2}, {T3}")
    e(f"s_and_b32 {T2}, {T0}, 1")
    e(f"s_lshl_b32 {T2}, {T2}, 3")
    e(f"s_add_u32 {T3}, {T1_}, {int(opt.get('jrot', 0))}")
    e(f"s_and_b32 {T3}, {T3}, 7")
    e(f"s_add_u32 {r('q')}, {T2}, {T3}")
    e(f"s_lshl_b32 {T2}, {r('T1')}, 1")
    e(f"s_add_u32 {r('rot')}, {T2}, {r('q')}")
e(f"s_and_b32 {r('rot')}, {r('rot')}, 7")
e(f"s_lshr_b32 {T2}, {r('q')}, 3")
e(f"s_lshl_b32 {r('tt2')}, {r('T1')}, 1")
e(f"s_add_u32 {r('tt2')}, {r('tt2')}, {T2}")
e(f"s_and_b32 {r('ns')}, {r('q')}, 7")
V("k0"); V("kd", 2, align=1); V("sho")
e(f"v_lshrrev_b32 {r('r8')}, 3, {r('lane')}")
e(f"v_and_b32 {r('pc')}, 7, {r('lane')}")
e(f"s_lshl_b32 {T2}, {r('tt2')}, 2")
e(f"s_add_u32 {r('tok16')}, {T2}, {r('wave')}")
e(f"s_lshl_b32 {T2}, {r('tok16')}, 14")
e(f"s_lshl_b32 {r('ns128')}, {r('ns')}, 7")
e(f"s_add_u32 {r('tile0')}, {T2}, {r('ns128')}")
e(f"s_mul_i32 {r('own')}, {r('wave')}, 12288")
e(f"s_add_u32 {r('own')}, {r('own')}, {XST}")
S("sA", 4); S("sB", 4); S("sX", 4); S("sW1", 4); S("sWS", 4)
for nm, sz in (("sX", 2097152), ("sW1", 1409024)):
    e(f"s_mov_b32 {r(nm,2,1)}, {sz}")
    e(f"s_mov_b32 {r(nm,3,1)}, 0x00020000")
for c in range(3):
    e(f"v_add_u32 {r('ta')}, {64 * c}, {r('lane')}")
    e(f"v_mul_u32_u24 {r('tb')}, 43691, {r('ta')}")
    e(f"v_lshrrev_b32 {r('tb')}, 19, {r('tb')}")
    e(f"v_mul_u32_u24 {r('tc')}, 12, {r('tb')}")
    e(f"v_sub_u32 {r('tc')}, {r('ta')}, {r('tc')}")
    e(f"v_lshrrev_b32 {r('td')}, 2, {r('tb')}")
    e(f"v_and_b32 {r('td')}, 2, {r('td')}")
    e(f"v_xor_b32 {r('tc')}, {r('tc')}, {r('td')}")
    e(f"v_mul_u32_u24 {r('tb')}, 2752, {r('tb')}")
    e(f"v_lshl_add_u32 {r('tb')}, {r('tc')}, 4, {r('tb')}")
    e(f"v_subrev_u32 {r('w1s', c, 1)}, {1024 * c}, {r('tb')}")
e(f"s_mul_i32 {r('b0')}, {r('q')}, 3")
e(f"s_lshr_b32 {T2}, {r('q')}, 2")
e(f"s_sub_u32 {r('b0')}, {r('b0')}, {T2}")
e(f"s_min_u32 {T2}, {r('q')}, 1")
e(f"s_sub_u32 {r('b0')}, {r('b0')}, {T2}")
e(f"s_bitcmp1_b32 0x8889, {r('q')}")
e(f"s_cselect_b32 {r('nown')}, 2, 3")
S("w1lds"); S("xbase"); S("xk"); S("wo"); S("wlim")
e(f"s_lshl_b32 {T3}, {r('b0')}, 6")
e(f"s_lshl_b32 {T2}, {r('T1')}, 2")
e(f"s_add_u32 {T2}, {T2}, {r('wave')}")
e(f"s_lshl_b32 {r('xbase')}, {T2}, 15")
e(f"s_lshl_b32 {r('xk')}, {r('rot')}, 7")
e(f"s_mul_i32 {T4}, {r('wave')}, {16 * 2752}")
e(f"s_add_u32 {T4}, {T4}, {T3}")
e(f"s_add_u32 {r('wlim')}, {T4}, {512 * 2752}")
e(f"s_mul_i32 {T2}, {r('rot')}, {64 * 2752}")
e(f"s_add_u32 {r('wo')}, {T2}, {T4}")
e(f"s_mul_i32 {r('w1lds')}, {r('wave')}, 3072")
e(f"s_add_u32 {r('w1lds')}, {r('w1lds')}, {WR}")
e(f"v_lshrrev_b32 {r('ta')}, 1, {r('r8')}")
e(f"v_xor_b32 {r('ta')}, {r('ta')}, {r('pc')}")
e(f"v_lshlrev_b32 {r('ta')}, 4, {r('ta')}")
e(f"v_lshl_add_u32 {r('xs', 0, 1)}, {r('r8')}, 10, {r('ta')}")
e(f"v_xor_b32 {r('tb')}, 64, {r('xs', 0, 1)}")
e(f"v_add_u32 {r('xs', 1, 1)}, 7168, {r('tb')}")
e(f"v_add_u32 {r('xs', 2, 1)}, {2 * 7168}, {r('xs', 0, 1)}")
e(f"v_add_u32 {r('xs', 3, 1)}, {3 * 7168}, {r('tb')}")
g.wait(lg=0)
e(f"s_mov_b64 {r('sX',0,2)}, {ptr(0)}")
e(f"s_mov_b64 {r('sW1',0,2)}, {ptr(7)}")


def dmaW1(n):
    items = []
    for c in range(3):
        def it(c=c):
            if c == 0:
                e(f"s_add_u32 m0, {r('w1lds')}, {(n % 4) * 12288}")
                if n:
                    e(f"s_cmp_ge_u32 {r('wo')}, {r('wlim')}")
                    e(f"s_cselect_b32 {T2}, {512 * 2752}, 0")
                    e(f"s_sub_u32 {r('wo')}, {r('wo')}, {T2}")
            e(f"buffer_load_dwordx4 {r('w1s', c, 1)}, {r('sW1')}, {r('wo')} offen offset:{1024 * c} lds", f"W{n}")
            if c == 2:
                e(f"s_add_u32 {r('wo')}, {r('wo')}, {64 * 2752}")
        items.append(It(it, (2, 1.2, 1.5)[c]))
    return items


def dmaX(ei):
    items = []
    for n in range(4):
        def it(n=n):
            xo = r("so")
            if n == 0:
                e(f"s_add_u32 m0, {r('own')}, {(ei % 3) * 4096}")
                e(f"s_or_b32 {xo}, {r('xk')}, {r('xbase')}")
            pol = XPOL0 if ei < 1 else ""
            e(f"buffer_load_dwordx4 {r('xs', n, 1)}, {r('sX')}, {xo} offen offset:{1024 * n} {pol} lds", f"X{ei}")
            if n == 1:
                e(f"s_add_u32 {r('xk')}, {r('xk')}, 128")
            if n == 2:
                e(f"s_and_b32 {r('xk')}, {r('xk')}, 0x3ff")
        items.append(It(it, (1.8, 1.5, 1.5, 1.2)[n]))
    return items


srd("sWS", 13, WSZ, add=(int(opt.get("wsb", 0)) << 20) or None)
V("sx", 8, at=200); V("sacc", 4); V("u", 4); V("gq", 4); V("stv", 2)
e(f"v_mov_b32 {r('zero')}, 0")
e(f"s_mov_b32 {T0}, {EPOCH}")
e("s_mov_b64 exec, 1")
e(f"buffer_load_dwordx2 {r('pf')}, {r('zero')}, {r('sWS')}, {T0} offen sc1", "ep")
e("s_mov_b64 exec, -1")
e(f"v_lshrrev_b32 {r('ta')}, 5, {r('lane')}")
e(f"v_and_b32 {r('tb')}, 31, {r('lane')}")
e(f"v_lshlrev_b32 {r('tb')}, 4, {r('tb')}")
e(f"v_lshl_add_u32 {r('tb')}, {r('ta')}, 10, {r('tb')}")
e(f"s_lshl_b32 {T2}, {r('T1')}, 4")
e(f"s_add_u32 {T2}, {T2}, {r('q')}")
e(f"s_lshl_b32 {T2}, {T2}, 2")
e(f"s_add_u32 {T2}, {T2}, {r('wave')}")
e(f"s_lshl_b32 {T3}, {T2}, 11")
e(f"buffer_load_dwordx4 {r('sx', 0, 4)}, {r('tb')}, {r('sX')}, {T3} offen", "sx")
e(f"buffer_load_dwordx4 {r('sx', 4, 4)}, {r('tb')}, {r('sX')}, {T3} offen offset:512", "sx")
e(f"s_lshl_b32 {T2}, {T2}, 6")
e(f"s_add_u32 {T2}, {T2}, {STA}")
e(f"v_lshl_add_u32 {r('stw')}, {r('lane')}, 4, {T2}")
run(dmaX(0) + dmaW1(0) + dmaW1(1))
S("sD")
e(f"s_lshl_b32 {T2}, s2, 2")
e(f"s_load_dword {r('sD')}, {ptr(5)}, {T2}")
stamp("p0iss")
g.free("ptr0", "ptr6", "ptr7", "ptr13", "karg", "rot", "ptr5")
S("tag", 2)
if not DBG:
    g.free("ptr12")
e(f"v_lshlrev_b32 {r('tb')}, 4, {r('pc')}")
e(f"v_lshl_add_u32 {r('ta')}, {r('r8')}, 11, {r('tb')}")
KVX = int(opt.get("kvx", 4))
e(f"s_xor_b32 {T4}, {r('tile0')}, {128 * KVX}")
e(f"v_add_u32 {r('k0')}, {T4}, {r('ta')}")
e(f"v_lshl_add_u32 {r('ta')}, {r('r8')}, 10, {r('tb')}")
e(f"v_add_u32 {r('kd', 1, 1)}, {T4}, {r('ta')}")
e(f"v_subrev_u32 {r('kd', 0, 1)}, 8192, {r('kd', 1, 1)}")
e(f"v_lshlrev_b32 {r('l16')}, 4, {r('lane')}")
e(f"s_lshl_b32 {T3}, {r('ns')}, 9")
e(f"s_xor_b32 {T3}, {T3}, {512 * KVX}")
e(f"v_add_u32 {r('sho')}, {T3}, {r('l16')}")
e(f"v_mov_b32 {r('zero')}, 0")
S("wodd"); S("whi"); S("chan"); V("sa"); V("sb"); V("bb", 2, align=1)
e(f"s_and_b32 {r('wodd')}, {r('wave')}, 1")
e(f"s_lshr_b32 {r('whi')}, {r('wave')}, 1")
e(f"s_lshl_b32 {T2}, s2, 1")
e(f"s_add_u32 {r('chan')}, {T2}, {r('whi')}")
e(f"s_lshl_b32 {r('chan')}, {r('chan')}, 12")
e(f"s_add_u32 {plo(4)}, {plo(4)}, {r('chan')}")
e(f"s_addc_u32 {phi(4)}, {phi(4)}, 0")
e(f"s_lshl_b32 {T3}, {r('wodd')}, 11")
e(f"v_add_u32 {r('sa')}, {T3}, {r('l16')}")
e(f"v_subrev_u32 {r('sb')}, 8, {r('sa')}")
S("kim")
e(f"s_lshl_b32 {r('kim')}, {r('wave')}, 12")
e(f"s_add_u32 {r('kim')}, {r('kim')}, {S4}")
srd("sA", 1, 2097152)
srd("sB", 2, 2097152)
g.free("ptr1", "ptr2")
lateA, lateB, lateC = [], [], []
S("L0"); S("L2"); S("L3"); S("L4")
V("kvw"); V("kvr"); V("kvs"); V("kra"); V("sra"); V("bw", 2, align=1)
e(f"v_and_b32 {r('i15')}, 15, {r('lane')}")
e(f"v_lshrrev_b32 {r('h4')}, 4, {r('lane')}")
e(f"v_add_u32 {r('oa')}, {r('own')}, {r('l16')}")
e(f"v_lshlrev_b32 {r('ta')}, 4, {r('pc')}")
e(f"v_lshl_add_u32 {r('ta')}, {r('r8')}, 8, {r('ta')}")
e(f"v_add_u32 {r('kra')}, {r('kim')}, {r('ta')}")
e(f"v_lshl_add_u32 {r('sra')}, {r('pc')}, 6, {r('kim')}")
e(f"v_lshrrev_b32 {r('ta')}, 1, {r('i15')}")
e(f"v_xor_b32 {r('ta')}, {r('ta')}, {r('h4')}")
e(f"v_lshlrev_b32 {r('ta')}, 4, {r('ta')}")
e(f"v_lshl_add_u32 {r('ta')}, {r('i15')}, 7, {r('ta')}")
e(f"v_add_u32 {r('xrd', 0, 1)}, {r('own')}, {r('ta')}")
e(f"v_xor_b32 {r('xrd', 1, 1)}, 64, {r('xrd', 0, 1)}")
e(f"v_lshrrev_b32 {r('ta')}, 2, {r('i15')}")
e(f"v_lshl_add_u32 {r('ta')}, {r('h4')}, 3, {r('ta')}")
e(f"v_mul_u32_u24 {r('ta')}, 192, {r('ta')}")
e(f"v_and_b32 {r('tb')}, 3, {r('lane')}")
e(f"v_lshl_add_u32 {r('ta')}, {r('tb')}, 3, {r('ta')}")
e(f"v_add_u32 {r('ta')}, {WR}, {r('ta')}")
e(f"v_and_b32 {r('tb')}, 1, {r('h4')}")
e(f"v_lshlrev_b32 {r('tb')}, 5, {r('tb')}")
e(f"v_add_u32 {r('tc')}, {r('ta')}, {r('tb')}")
e(f"v_sub_u32 {r('td')}, {r('ta')}, {r('tb')}")
S("bp", 3, align=1)
for jp in range(3):
    e(f"s_add_u32 {T2}, {r('wave')}, {jp}")
    e(f"s_cmp_ge_u32 {T2}, 3")
    e(f"s_cselect_b32 {T3}, 3, 0")
    e(f"s_sub_u32 {r('bp', jp, 1)}, {T2}, {T3}")
    e(f"s_lshl_b32 {T2}, {r('bp', jp, 1)}, 6")
    e(f"v_add_u32 {r('w1r', 2 * jp, 1)}, {T2}, {r('tc')}")
    e(f"v_add_u32 {r('w1r', 2 * jp + 1, 1)}, {T2}, {r('td')}")
e(f"v_mul_u32_u24 {r('ta')}, 1040, {r('pc')}")
e(f"v_lshlrev_b32 {r('tb')}, 2, {r('r8')}")
e(f"v_sub_u32 {r('ta')}, {r('ta')}, {r('tb')}")
e(f"s_lshl_b32 {T2}, {r('wave')}, 5")
e(f"s_sub_u32 {T2}, {KVIMG + 124}, {T2}")
e(f"v_add_u32 {r('kvw')}, {T2}, {r('ta')}")
e(f"s_mul_i32 {T2}, {r('wave')}, 2080")
e(f"s_add_u32 {T2}, {T2}, {KVIMG}")
e(f"v_add_u32 {r('kvr')}, {T2}, {r('l16')}")
e(f"v_mul_u32_u24 {r('ta')}, {KP}, {r('r8')}")
e(f"v_lshl_add_u32 {r('kvs')}, {r('pc')}, 4, {r('ta')}")
e(f"v_mov_b32 {r('ta')}, 0x3f803f80")
for i in range(4):
    e(f"v_accvgpr_write_b32 {r('ones', i, 1)}, {r('ta')}")
e(f"s_mov_b32 {r('hmask')}, 0xffff0000")
S("kvo")
e(f"s_lshl_b32 {T2}, {r('ns')}, 2")
e(f"s_xor_b32 {T2}, {T2}, {4 * KVX}")
e(f"s_add_u32 {T2}, {T2}, {r('wave')}")
e(f"s_mul_i32 {r('f1a')}, {T2}, {G1S}")
e(f"s_lshl_b32 {T3}, {r('tt2')}, {L1S}")
e(f"s_add_u32 {r('f1a')}, {r('f1a')}, {T3}")
e(f"s_add_u32 {r('f1a')}, {r('f1a')}, {F1B}")
e(f"s_mul_i32 {T2}, {T2}, {16 * KP}")
e(f"s_sub_u32 {T3}, 31, {r('tt2')}")
e(f"s_lshl_b32 {T3}, {T3}, 7")
e(f"s_add_u32 {r('kvo')}, {T2}, {T3}")
LATE = lateB
e(f"s_lshl_b32 {T2}, {r('T1')}, 1")
e(f"s_add_u32 {T2}, {T2}, {r('whi')}")
e(f"s_mul_i32 {r('f2a')}, {T2}, {G2S}")
e(f"s_lshl_b32 {T2}, {r('q')}, 1")
e(f"s_add_u32 {T2}, {T2}, {r('wodd')}")
e(f"s_lshl_b32 {T2}, {T2}, {L2S}")
e(f"s_add_u32 {r('f2a')}, {r('f2a')}, {T2}")
e(f"s_add_u32 {r('f2a')}, {r('f2a')}, {F2B}")
e(f"s_lshr_b32 {T2}, {r('chan')}, 18")
e(f"s_lshl_b32 {T2}, {T2}, 1")
e(f"s_add_u32 {T2}, {T2}, {r('wodd')}")
e(f"s_mul_i32 {r('f3a')}, {T2}, {G3S}")
e(f"s_lshr_b32 {T2}, {r('chan')}, 12")
e(f"s_and_b32 {T2}, {T2}, 63")
e(f"s_lshl_b32 {T2}, {T2}, {L3S}")
e(f"s_add_u32 {r('f3a')}, {r('f3a')}, {T2}")
e(f"s_add_u32 {r('f3a')}, {r('f3a')}, {F3B}")
e(f"v_lshlrev_b32 {r('tc')}, 3, {r('lane')}")
e(f"v_add_u32 {r('zt')}, {r('own')}, {r('tc')}")
e(f"s_mul_i32 {T2}, {T1_}, {G1S}")
e(f"s_add_u32 {T2}, {T2}, {F1B}")
e(f"v_lshrrev_b32 {r('pf1o')}, 1, {r('lane')}")
e(f"v_lshl_add_u32 {r('pf1o')}, {r('pf1o')}, {L1S}, {T2}")
e(f"s_lshr_b32 {T2}, {r('tt2')}, 4")
e(f"s_lshl_b32 {T3}, {r('ns')}, 1")
e(f"s_add_u32 {T2}, {T2}, {T3}")
e(f"s_mul_i32 {T2}, {T2}, {G3S}")
e(f"s_add_u32 {T2}, {T2}, {F3B}")
e(f"v_lshl_add_u32 {r('pf3o')}, {r('lane')}, {L3S}, {T2}")
e(f"v_min_u32 {r('pf2o')}, 9, {r('lane')}")
e(f"s_lshl_b32 {T2}, {r('wave')}, 3")
e(f"v_add_u32 {r('pf2o')}, {T2}, {r('pf2o')}")
e(f"v_min_u32 {r('pf2o')}, 31, {r('pf2o')}")
e(f"s_mul_i32 {T2}, {r('tt2')}, {G2S}")
e(f"s_add_u32 {T2}, {T2}, {F2B}")
e(f"v_lshl_add_u32 {r('pf2o')}, {r('pf2o')}, {L2S}, {T2}")
LATE = None
e(f"v_min_u32 {r('ta')}, 47, {r('lane')}")
e(f"v_lshlrev_b32 {r('bw', 0, 1)}, 3, {r('ta')}")
e(f"v_add_u32 {r('bw', 0, 1)}, {B1T}, {r('bw', 0, 1)}")
e(f"s_lshl_b32 {T2}, {r('b0')}, 6")
e(f"v_lshl_add_u32 {r('bb', 0, 1)}, {r('ta')}, 2, {T2}")
e(f"v_min_u32 {r('bb', 0, 1)}, 2748, {r('bb', 0, 1)}")
e(f"v_and_b32 {r('ta')}, 31, {r('lane')}")
e(f"v_lshlrev_b32 {r('bw', 1, 1)}, 3, {r('ta')}")
e(f"v_add_u32 {r('bw', 1, 1)}, {B2T}, {r('bw', 1, 1)}")
e(f"v_lshl_add_u32 {r('bb', 1, 1)}, {r('ta')}, 2, {r('ns128')}")
LATE = lateA
e(f"v_and_b32 {r('ta')}, 6, {r('r8')}")
e(f"v_xor_b32 {r('ta')}, {r('ta')}, {r('pc')}")
e(f"v_lshlrev_b32 {r('ta')}, 4, {r('ta')}")
e(f"v_lshl_add_u32 {r('w2s', 0, 1)}, {r('r8')}, 10, {r('ta')}")
e(f"v_add_u32 {r('w2s', 0, 1)}, {r('ns128')}, {r('w2s', 0, 1)}")
for n in range(1, 4):
    e(f"v_add_u32 {r('w2s', n, 1)}, {7168 * n}, {r('w2s', 0, 1)}")
e(f"v_lshrrev_b32 {r('ta')}, 2, {r('i15')}")
e(f"v_lshl_add_u32 {r('ta')}, {r('h4')}, 2, {r('ta')}")
e(f"v_lshrrev_b32 {r('tb')}, 1, {r('ta')}")
e(f"v_and_b32 {r('tb')}, 3, {r('tb')}")
e(f"v_lshlrev_b32 {r('tb')}, 5, {r('tb')}")
e(f"v_lshl_add_u32 {r('tb')}, {r('ta')}, 7, {r('tb')}")
e(f"v_and_b32 {r('ta')}, 3, {r('lane')}")
e(f"v_lshl_add_u32 {r('tb')}, {r('ta')}, 3, {r('tb')}")
e(f"v_add_u32 {r('w2r', 0, 1)}, {r('own')}, {r('tb')}")
S("w4k")
e(f"s_lshl_b32 {r('w4k')}, {r('wave')}, 12")
e(f"v_add_u32 {r('w2r', 4, 1)}, {r('w4k')}, {r('tb')}")
for nb in range(1, 4):
    e(f"v_xor_b32 {r('w2r', nb, 1)}, {32 * nb}, {r('w2r', 0, 1)}")
    e(f"v_xor_b32 {r('w2r', 4 + nb, 1)}, {32 * nb}, {r('w2r', 4, 1)}")
for p in range(11):
    S(f"kb{p}")
e(f"s_lshr_b32 {T0}, {T1_}, 3")
e(f"s_mul_i32 {T0}, {T0}, 3")
e(f"s_mul_i32 {T2}, {r('ns')}, 11")
e(f"s_lshr_b32 {T2}, {T2}, 3")
e(f"s_add_u32 {T0}, {T0}, {T2}")
e(f"s_cmp_ge_u32 {T0}, 11")
e(f"s_cselect_b32 {T2}, 11, 0")
e(f"s_sub_u32 {T0}, {T0}, {T2}")
e(f"s_mul_i32 {T3}, {r('wave')}, 11")
e(f"s_add_u32 {T0}, {T0}, {T3}")
e(f"s_add_u32 {T3}, {T3}, 11")
for p in range(11):
    e(f"s_lshl_b32 {r(f'kb{p}')}, {T0}, 15")
    if p < 10:
        e(f"s_add_u32 {T0}, {T0}, 1")
        e(f"s_cmp_ge_u32 {T0}, {T3}")
        e(f"s_cselect_b32 {T2}, 11, 0")
        e(f"s_sub_u32 {T0}, {T0}, {T2}")
LATE = None
LATE = lateB
e(f"v_and_b32 {r('ta')}, 3, {r('lane')}")
e(f"v_mul_u32_u24 {r('fa')}, {FP}, {r('ta')}")
e(f"v_lshrrev_b32 {r('tb')}, 2, {r('i15')}")
e(f"v_add_u32 {r('tb')}, {r('tb')}, {r('h4')}")
e(f"v_lshl_add_u32 {r('fa')}, {r('tb')}, 4, {r('fa')}")
e(f"s_lshl_b32 {T4}, {r('wodd')}, 8")
e(f"s_mul_i32 {T2}, {r('whi')}, {4 * FP}")
e(f"s_add_u32 {T3}, {T4}, {T2}")
e(f"v_add_u32 {r('fa')}, {T3}, {r('fa')}")
e(f"v_and_b32 {r('tc')}, 1, {r('lane')}")
e(f"v_mul_u32_u24 {r('ga')}, {GP}, {r('tc')}")
e(f"v_lshrrev_b32 {r('td')}, 1, {r('i15')}")
e(f"v_lshlrev_b32 {r('td')}, 2, {r('td')}")
e(f"v_sub_u32 {r('td')}, {r('h4')}, {r('td')}")
e(f"v_add_u32 {r('td')}, 28, {r('td')}")
e(f"v_lshl_add_u32 {r('ga')}, {r('td')}, 4, {r('ga')}")
e(f"s_mul_i32 {T3}, {r('whi')}, {2 * GP}")
e(f"s_add_u32 {T3}, {T3}, {T4}")
e(f"s_add_u32 {T3}, {T3}, {UB0}")
e(f"v_add_u32 {r('ga')}, {T3}, {r('ga')}")
e(f"s_lshl_b32 {T3}, {r('whi')}, 4")
e(f"s_lshr_b32 {r('sD')}, {r('sD')}, {T3}")
e(f"s_and_b32 {r('sD')}, {r('sD')}, 0xffff")
e(f"s_cmp_eq_u32 {r('wodd')}, 0")
e(f"s_cselect_b32 {r('sD')}, {r('sD')}, 0")
e(f"v_xor_b32 {r('tc')}, 1, {r('tc')}")
e(f"v_lshlrev_b32 {r('tc')}, 4, {r('tc')}")
e(f"v_lshlrev_b32_e64 {r('tc')}, {r('tc')}, {r('sD')}")
e(f"v_cmp_eq_u32 vcc, 3, {r('tb')}")
e(f"v_cndmask_b32 {r('tc')}, 0, {r('tc')}, vcc")
e(f"v_cmp_lt_u32 vcc, 1, {r('ta')}")
e(f"v_cndmask_b32 {r('td')}, 0, {r('tc')}, vcc")
e(f"v_sub_u32 {r('tc')}, {r('tc')}, {r('td')}")
e(f"v_accvgpr_write_b32 {r('fd', 0, 1)}, {r('td')}")
e(f"v_accvgpr_write_b32 {r('fd', 1, 1)}, {r('tc')}")
e(f"v_accvgpr_write_b32 {r('fd', 2, 1)}, 0")
e(f"v_accvgpr_write_b32 {r('fd', 3, 1)}, 0")
e(f"s_add_u32 {T3}, {T2}, 48")
e(f"v_add_u32 {r('kw')}, {T3}, {r('sa')}")
e(f"s_mul_i32 {r('um0')}, {r('wave')}, {GP}")
e(f"s_add_u32 {r('um0')}, {r('um0')}, {UB0}")
e(f"s_lshl_b32 {T3}, {r('wodd')}, 3")
e(f"s_sub_u32 {r('ush')}, 8, {T3}")
e(f"s_add_u32 {T4}, {r('um0')}, 4096")
e(f"v_add_u32 {r('za')}, {T4}, {r('l16')}")
e(f"v_subrev_u32 {r('ta')}, 28, {r('lane')}")
e(f"v_min_u32 {r('ta')}, 5, {r('ta')}")
e(f"v_cmp_lt_u32 vcc, 2, {r('ta')}")
e(f"v_lshlrev_b32 {r('ta')}, 4, {r('ta')}")
e(f"v_add_u32 {r('tb')}, {FP - 48}, {r('ta')}")
e(f"v_cndmask_b32 {r('ta')}, {r('ta')}, {r('tb')}, vcc")
e(f"s_mul_i32 {T3}, {r('wave')}, {2 * FP}")
e(f"v_add_u32 {r('ta')}, {T3}, {r('ta')}")
e(f"v_cmp_lt_u32 vcc, 27, {r('lane')}")
e(f"v_cndmask_b32 {r('za')}, {r('za')}, {r('ta')}, vcc")
e(f"s_xor_b32 {T2}, {r('wave')}, 1")
e(f"s_mul_i32 {T2}, {T2}, 12288")
e(f"s_add_u32 {T2}, {T2}, {XST}")
e(f"v_add_u32 {r('pa')}, {T2}, {r('l16')}")
e(f"v_lshrrev_b32 {r('ta')}, 1, {r('i15')}")
e(f"v_lshlrev_b32 {r('ta')}, 6, {r('ta')}")
e(f"v_and_b32 {r('tb')}, 1, {r('lane')}")
e(f"v_lshl_add_u32 {r('ta')}, {r('tb')}, 3, {r('ta')}")
e(f"v_lshl_add_u32 {r('ta')}, {r('h4')}, 4, {r('ta')}")
e(f"v_add_u32 {r('yw')}, {r('own')}, {r('ta')}")
e(f"s_lshl_b32 {T3}, {r('wodd')}, 11")
e(f"s_lshr_b32 {r('chan')}, {r('chan')}, 12")
e(f"s_mul_i32 {r('chan')}, {r('chan')}, {KP}")
e(f"s_add_u32 {T2}, {r('chan')}, {T3}")
e(f"s_add_u32 {r('yo')}, {T2}, {YT}")
LATE = None
LATE = lateC
e(f"v_lshrrev_b32 {r('zs')}, 1, {r('lane')}")
e(f"v_mul_u32_u24 {r('zs')}, {KP}, {r('zs')}")
e(f"v_and_b32 {r('tb')}, 1, {r('lane')}")
e(f"v_lshl_add_u32 {r('zs')}, {r('tb')}, 4, {r('zs')}")
e(f"s_mul_i32 {T2}, {r('ns')}, {64 * KP}")
e(f"s_lshl_b32 {T3}, {r('tok16')}, 5")
e(f"s_add_u32 {T2}, {T2}, {T3}")
e(f"s_add_u32 {r('zo')}, {T2}, {YT}")
for s in range(4):
    e(f"s_add_u32 {T2}, {r('wave')}, {s + 1}")
    e(f"s_and_b32 {T2}, {T2}, 3")
    e(f"s_mul_i32 {T3}, {T2}, 12288")
    if s < 3:
        if PX + 4096 * s:
            e(f"s_add_u32 {T3}, {T3}, {PX + 4096 * s}")
        e(f"v_lshl_add_u32 {r('pw', s, 1)}, {r('lane')}, 3, {T3}")
    else:
        e(f"s_add_u32 {T3}, {T3}, {PX}")
        e(f"v_lshl_add_u32 {r('psr')}, {r('lane')}, 3, {T3}")
    e(f"s_lshl_b32 {T3}, {r('tt2')}, 2")
    e(f"s_add_u32 {T2}, {T2}, {T3}")
    e(f"s_mul_i32 {T2}, {T2}, 44032")
    e(f"s_add_u32 {T2}, {T2}, {HB + HALT}")
    e(f"v_add_u32 {r('hv', s, 1)}, {T2}, {r('l16')}")
e(f"v_lshrrev_b32 {r('ta')}, 1, {r('i15')}")
e(f"v_lshrrev_b32 {r('tb')}, 1, {r('h4')}")
e(f"v_xor_b32 {r('ta')}, {r('ta')}, {r('tb')}")
e(f"v_lshlrev_b32 {r('ta')}, 4, {r('ta')}")
e(f"v_lshl_add_u32 {r('ta')}, {r('i15')}, 7, {r('ta')}")
e(f"v_and_b32 {r('tc')}, 1, {r('h4')}")
e(f"v_lshl_add_u32 {r('ta')}, {r('tc')}, 3, {r('ta')}")
e(f"v_add_u32 {r('ea', 0, 1)}, {r('own')}, {r('ta')}")
for nb in range(1, 4):
    e(f"v_xor_b32 {r('ea', nb, 1)}, {32 * nb}, {r('ea', 0, 1)}")
e(f"s_lshl_b32 {T2}, {r('tok16')}, 9")
e(f"s_add_u32 {T2}, {T2}, {STB}")
e(f"v_lshl_add_u32 {r('svr')}, {r('i15')}, 5, {T2}")
LATE = None
LATE = lateA
e(f"v_lshrrev_b32 {r('tb')}, 1, {r('h4')}")
e(f"s_lshr_b32 {T2}, {r('xbase')}, 5")
e(f"s_add_u32 {T2}, {T2}, {STA}")
e(f"v_lshl_add_u32 {r('sgo')}, {r('i15')}, 5, {T2}")
e(f"v_lshl_add_u32 {r('sgo')}, {r('tb')}, 9, {r('sgo')}")
LATE = None
S("m1", 2)
e(f"s_mov_b32 {r('m1', 0, 1)}, 0xaaaaaaaa"); e(f"s_mov_b32 {r('m1', 1, 1)}, 0xaaaaaaaa")
LATE = lateA
e(f"v_lshlrev_b32 {r('ta')}, 4, {r('h4')}")
e(f"v_add_u32 {r('csr0')}, {CSX}, {r('ta')}")
for jp in range(3):
    g.names[f"ho{jp}"] = ("s", g.names["bp"][1] + jp, 1)
e(f"s_lshl_b32 {T2}, {r('T1')}, 2")
e(f"s_add_u32 {T2}, {T2}, {r('wave')}")
e(f"s_mul_i32 {T2}, {T2}, 86")
e(f"s_add_u32 {T2}, {T2}, {r('b0')}")
for jp in range(3):
    e(f"s_lshl_b32 {T3}, {r('bp', jp, 1)}, 7")
    e(f"v_add_u32 {r('ctr', jp, 1)}, {T3}, {r('csr0')}")
    e(f"s_add_u32 {T3}, {T2}, {r('bp', jp, 1)}")
    e(f"s_lshl_b32 {T3}, {T3}, 10")
    e(f"s_add_u32 {T3}, {T3}, {HB}")
    e(f"s_cmp_lt_u32 {r('bp', jp, 1)}, {r('nown')}")
    e(f"s_cselect_b32 {r(f'ho{jp}')}, {T3}, 0x7f000000")
for i in range(4):
    e(f"v_accvgpr_write_b32 {r('zz', i, 1)}, 0")
LATE = None
if TOUCH:
    V("tB", 2)
    wlo, whi_ = r("sWS", 0, 1), r("sWS", 1, 1)
    ent = [(r("sA", 0, 1), r("sA", 1, 1), r("tile0")), (r("sB", 0, 1), r("sB", 1, 1), r("tile0")), (plo(3), phi(3), None),
           (plo(4), phi(4), None), (plo(8), phi(8), None), (plo(10), phi(10), None),
           (plo(9), phi(9), None), (plo(9), phi(9), 1 << 20), (plo(11), phi(11), r("tile0")),
           (wlo, whi_, EPOCH + 256), (wlo, whi_, FL + 4096), (wlo, whi_, r("kvo")),
           (wlo, whi_, r("chan")), (wlo, whi_, HB + 64), (wlo, whi_, r("yo")), (wlo, whi_, r("zo")),
           (wlo, whi_, HB + 0x100000), (wlo, whi_, HB + 0x200000), (wlo, whi_, HB + 0x300000), (wlo, whi_, HB + 0x400000),
           (wlo, whi_, HB + 0x500000), (wlo, whi_, HB), (wlo, whi_, YT + 0x100000), (wlo, whi_, 0x100000)]
    e(f"v_mov_b32 {r('tB', 0, 1)}, {wlo}")
    e(f"v_mov_b32 {r('tB', 1, 1)}, {whi_}")
    for k, (lo, hi, off) in enumerate(ent):
        if off is None:
            e(f"v_writelane_b32 {r('tB', 0, 1)}, {lo}, {k}")
            e(f"v_writelane_b32 {r('tB', 1, 1)}, {hi}, {k}")
        else:
            e(f"s_add_u32 {T2}, {lo}, {off}")
            e(f"s_addc_u32 {T3}, {hi}, 0")
            e(f"v_writelane_b32 {r('tB', 0, 1)}, {T2}, {k}")
            e(f"v_writelane_b32 {r('tB', 1, 1)}, {T3}, {k}")
    e(f"s_mul_i32 {T2}, {r('wave')}, 6")
    e(f"s_lshl_b32 exec_lo, 63, {T2}")
    e("s_mov_b32 exec_hi, 0")
    if TOUCH == 2:
        e("s_mov_b32 exec_lo, 0xffffff")
    e(f"global_load_dword {r('pre')}, {r('tB')}, off sc1", "touch")
    e("s_mov_b64 exec, -1")
    g.free("tB")
stamp("setup")
g.free("tid")


def late_items(lst):
    ren = {"s3": r("L0"), "s5": r("L2"), "s6": r("L3"), "s7": r("L4")}
    txt = [re.sub(r"\bs[3567]\b", lambda m: ren[m.group(0)], x) for x in lst]
    items, grp = [], []
    for x in txt:
        op = x.split()[0]
        if grp or op.startswith(("s_cmp", "v_cmp")):
            grp.append(x)
            if op.startswith(("s_cselect", "v_cndmask")):
                items.append(grp); grp = []
        else:
            items.append([x])
    assert not grp
    cost = lambda gx: sum(0.3 if y.startswith("s_") else 1 for y in gx)
    return [It(lambda gx=gx: [e(y) for y in gx], cost(gx)) for gx in items]


def unpack(dst, doff, src, soff, ndw):
    it = []
    for d in range(ndw):
        it.append(E(f"v_lshlrev_b32 {r(dst, doff + 2 * d, 1)}, 16, {r(src, soff + d, 1)}"))
        it.append(E(f"v_and_b32 {r(dst, doff + 2 * d + 1, 1)}, {r('hmask')}, {r(src, soff + d, 1)}"))
    return it


run(dmaX(1))
LATEAB = int(opt.get("lateab", 1))
if LATEAB < 2:
    run(late_items(lateA)); lateA = []
if LATEAB < 1:
    g.wait(lg=0)
    run(late_items(lateB)); lateB = []
AC("xf", 64, at=64)
AC("wa", 48, at=128)


def xf(K, tb):
    return r("xf", ((K & 7) * 2 + tb) * 4, 4)


def rdX(ei):
    return [W(vm=f"X{ei}")] + [E(f"ds_read_b128 {xf(ei * 2 + k, tb)}, {r('xrd', k, 1)} offset:{(ei % 3) * 4096 + tb * 2048}", f"rx{ei}")
                               for k in range(2) for tb in range(2)]


def wbase(K):
    return ((K >> 1) % 4) * 12288 + (K & 1) * 6144


def rdW(K):
    return [E(f"ds_read_b64_tr_b16 {r('wa', (K & 1) * 24 + fb * 4 + 2 * hf, 2)}, {r('w1r', fb, 1)} offset:{wbase(K) + hf * 768 + (fb & 1) * 32}", f"rw{K}_{fb}")
            for fb in range(6) for hf in range(2)]


g.wait(vm="sx")
e(f"s_mov_b32 {T2}, 0x3f803f80")
for d in range(8):
    e(f"v_dot2_f32_bf16 {r('sacc', d & 1, 1)}, {r('sx', d, 1)}, {T2}, {'0' if d < 2 else r('sacc', d & 1, 1)}")
    e(f"v_dot2_f32_bf16 {r('sacc', 2 + (d & 1), 1)}, {r('sx', d, 1)}, {r('sx', d, 1)}, {'0' if d < 2 else r('sacc', 2 + (d & 1), 1)}")
e(f"v_readfirstlane_b32 {r('tag', 0, 1)}, {r('pf', 0, 1)}")
e(f"v_readfirstlane_b32 {r('tag', 1, 1)}, {r('pf', 1, 1)}")
g.free("sx")
run(rdX(0))
e(f"s_mul_i32 {r('tag', 0, 1)}, {r('tag', 0, 1)}, 0x9E3779B1")
e(f"s_mul_i32 {r('tag', 1, 1)}, {r('tag', 1, 1)}, 0x85EBCA6D")
e(f"s_add_u32 {r('tag', 0, 1)}, {r('tag', 0, 1)}, 0x7F4A7C15")
e(f"s_add_u32 {r('tag', 1, 1)}, {r('tag', 1, 1)}, 0x165667B1")
e(f"v_add_f32 {r('sacc', 0, 1)}, {r('sacc', 0, 1)}, {r('sacc', 1, 1)}")
e(f"v_add_f32 {r('sacc', 2, 1)}, {r('sacc', 2, 1)}, {r('sacc', 3, 1)}")
for i in range(2):
    e(f"v_mov_b32 {r('vtag', i, 1)}, {r('tag', i, 1)}")
    e(f"v_mov_b32 {r('vtag', 2 + i, 1)}, {r('tag', i, 1)}")
    e(f"v_mov_b32 {r('gq', 2 + i, 1)}, {r('tag', i, 1)}")
g.wait(vm="W1" if int(opt.get("nob1", 0)) else "W0")
e("s_barrier")
run(rdW(0))
stamp("x0")

V("acc", 48); AC("cs", 8, at=192)
V("big", 100)
B0 = g.names["big"][1]


def alias(name, off, n):
    g.names[name] = ("v", B0 + off, n)


alias("wf", 0, 32); alias("kf", 32, 40); alias("vr", 64, 8); alias("kr", 72, 20); alias("shr", 48, 16)
alias("vf", 72, 16)
small = [E(f"global_load_dword {r('bb', 0, 1)}, {r('bb', 0, 1)}, {ptr(8)}", "bb"),
         E(f"global_load_dword {r('bb', 1, 1)}, {r('bb', 1, 1)}, {ptr(10)}", "bb"),
         ]
alias("vr", 92, 8)
kvload = [It(lambda: (e(f"s_add_u32 m0, {r('kim')}, 1024"), e(f"s_mov_b32 {T0}, 7168"),
                      e(f"buffer_load_dwordx4 {r('kd', 1, 1)}, {r('sA')}, 0 offen {KPOL} lds", "k")), 2),
          E(f"buffer_load_dwordx4 {r('kd', 1, 1)}, {r('sA')}, {T0} offen offset:1024 {KPOL} lds", "k"),
          E(f"buffer_load_dwordx4 {r('vr', 0, 4)}, {r('k0')}, {r('sB')}, 0 offen {KVPOL}", "k"),
          E(f"buffer_load_dwordx4 {r('vr', 4, 4)}, {r('k0')}, {r('sB')}, 0 offen offset:1024 {KVPOL}", "k"),
          It(lambda: (e(f"s_mov_b32 m0, {r('kim')}"), e("s_mov_b32 exec_lo, 0"), e("s_mov_b32 exec_hi, 0xffffff00"),
                      e(f"buffer_load_dwordx4 {r('kd', 0, 1)}, {r('sA')}, 0 offen lds", "k"), e("s_mov_b64 exec, -1")), 2),
          It(lambda: (e(f"s_add_u32 m0, {r('kim')}, 3072"), e(f"s_mov_b64 {r('sA', 0, 2)}, {ptr(3)}"), e(f"s_mov_b32 {r('sA', 2, 1)}, 4096"),
                      e("s_mov_b32 exec_hi, 0"), e(f"buffer_load_dwordx4 {r('sho')}, {r('sA')}, 0 offen lds", "k"), e("s_mov_b64 exec, -1"),
                      e(f"s_mov_b64 {r('sA', 0, 2)}, {ptr(4)}"), e(f"s_mov_b64 {r('sB', 0, 2)}, {ptr(9)}"), e(f"s_mov_b32 {r('sB', 2, 1)}, 1409024")), 3)]
W2T = int(opt.get("w2t", 1))
if W2T:
    kvload.append(It(lambda: (e(f"s_lshl_b32 {T0}, s2, 2"), e(f"s_add_u32 {T0}, {T0}, {r('wave')}"), e(f"s_mul_i32 {T0}, {T0}, {11 * 128}"),
                              e(f"v_lshlrev_b32 {r('pre')}, 3, {r('l16')}"), e("s_mov_b64 exec, 0x7ff"),
                              e(f"buffer_load_dword {r('pre')}, {r('pre')}, {r('sB')}, {T0} offen", "w2t"), e("s_mov_b64 exec, -1")), 3))
kvrd = [W(vm="k")]
kvrd += [E(f"ds_read_b128 {r('shr', 4 * i, 4)}, {r('sra')} offset:{3072 + 16 * i}", "rs") for i in range(4)]
kvrd += [E(f"ds_read_b128 {r('kr', 4 * k, 4)}, {r('kra')} offset:{640 + 128 * k}", "rk") for k in range(5)]
kvu = [W(lg="rs")]
for c in range(8):
    for j in range(4):
        src = r("shr", 2 * c + (j >> 1), 1)
        if j & 1:
            kvu.append(E(f"v_and_b32 {r('wf', j * 8 + c, 1)}, {r('hmask')}, {src}"))
        else:
            kvu.append(E(f"v_lshlrev_b32 {r('wf', j * 8 + c, 1)}, 16, {src}"))
kvu.append(W(lg="rk"))
kvu += unpack("kf", 0, "kr", 0, 20)
KS = lambda t, cp: r("kr", t * 8 + 2 * cp, 2)
kvc = []
for t in range(2):
    for cp in range(4):
        kvc.append(E(f"v_pk_mul_f32 {KS(t, cp)}, {r('kf', t * 8 + 2 * cp, 2)}, {r('wf', 24 + 2 * cp, 2)}"))
    for j in (2, 1, 0):
        for cp in range(4):
            kvc.append(E(f"v_pk_fma_f32 {KS(t, cp)}, {r('kf', (t + 3 - j) * 8 + 2 * cp, 2)}, {r('wf', j * 8 + 2 * cp, 2)}, {KS(t, cp)}"))
kvc += unpack("wf", 0, "vr", 0, 8)
for t in range(2):
    for cp in range(4):
        kvc.append(E(f"v_pk_mul_f32 {KS(t, cp)}, {KS(t, cp)}, {r('wf', t * 8 + 2 * cp, 2)}"))
alias("kvp", 92, 8)
for c in range(8):
    kvc.append(E(f"v_cvt_pk_bf16_f32 {r('kvp', c, 1)}, {r('kr', 8 + c, 1)}, {r('kr', c, 1)}"))
    kvc.append(E(f"ds_write_b32 {r('kvw')}, {r('kvp', c, 1)} offset:{128 * c}", "kvw"))
kvst = [E(f"ds_read_b128 {r('kvp', 0, 4)}, {r('kvr')}", "kvr0"), E(f"ds_read_b128 {r('kvp', 4, 4)}, {r('kvr')} offset:1040", "kvr1")]
kvst2 = [It(lambda: (g.wait(lg="kvr0"), e(f"buffer_store_dwordx4 {r('kvp', 0, 4)}, {r('kvs')}, {r('sWS')}, {r('kvo')} offen sc1", "kvst"),
                     e(f"s_add_u32 {r('kvo')}, {r('kvo')}, {8 * KP}")), 2),
         It(lambda: (g.wait(lg="kvr1"), e(f"buffer_store_dwordx4 {r('kvp', 4, 4)}, {r('kvs')}, {r('sWS')}, {r('kvo')} offen sc1", "kvst")), 2)]
alias("skr", 0, 12); alias("ke", 12, 24); alias("bt", 36, 4); alias("b1f", 44, 24); alias("csf", 68, 24)
AC("ska", 12, at=228)
skload = [It(lambda: (e("s_mov_b64 exec, 1"), e(f"buffer_load_dwordx2 {r('ska', 0, 2)}, {r('sb')}, {r('sA')}, 0 offen", "sk"), e("s_mov_b64 exec, -1")), 2),
          E(f"buffer_load_dwordx4 {r('ska', 2, 4)}, {r('sa')}, {r('sA')}, 0 offen {KVPOL}", "sk"),
          E(f"buffer_load_dwordx4 {r('ska', 8, 4)}, {r('sa')}, {r('sA')}, 0 offen offset:1024 {KVPOL}", "sk")]
kcopy = [W(vm="sk")] + [E(f"v_accvgpr_read_b32 {r('skr', k, 1)}, {r('ska', k, 1)}") for k in (4, 5, 0, 1, 10, 11, 2, 3, 8, 9)]
for k in range(2):
    kcopy.append(E(f"v_mov_b32_dpp {r('skr', 6 + k, 1)}, {r('skr', 4 + k, 1)} wave_ror:1 row_mask:0xf bank_mask:0xf"))
for k in range(2):
    kcopy.append(E(f"v_mov_b32_dpp {r('skr', k, 1)}, {r('skr', 4 + k, 1)} wave_shr:1 row_mask:0xf bank_mask:0xf"))
for k in range(2):
    kcopy.append(E(f"v_mov_b32_dpp {r('skr', 6 + k, 1)}, {r('skr', 10 + k, 1)} wave_shr:1 row_mask:0xf bank_mask:0xf"))
for n in range(2):
    R = lambda k, c=1, n=n: r("skr", 6 * n + k, c)
    KE = lambda k, c=1, n=n: r("ke", 12 * n + k, c)
    kcopy.append(E(f"ds_write_b128 {r('kw')}, {R(2, 4)} offset:{3 * FP + 1024 * n}", "kc", 2))
    for k in range(4):
        kcopy.append(E(f"v_alignbit_b32 {KE(k)}, {R(k + 1)}, {R(k)}, 16"))
    kcopy.append(E(f"ds_write_b128 {r('kw')}, {KE(0, 4)} offset:{1024 * n}", "kc", 2))
    for k in range(4):
        kcopy.append(E(f"v_alignbit_b32 {KE(4 + k)}, {R(k + 2)}, {R(k + 1)}, 16"))
    kcopy.append(E(f"ds_write_b128 {r('kw')}, {KE(4, 4)} offset:{2 * FP + 1024 * n}", "kc", 2))
    for k in range(4):
        kcopy.append(E(f"v_mov_b32 {KE(8 + k)}, {R(1 + k)}"))
    kcopy.append(E(f"ds_write_b128 {r('kw')}, {KE(8, 4)} offset:{FP + 1024 * n}", "kc", 2))


def mfma(d, a, b, first):
    e(f"v_mfma_f32_16x16x32_bf16 {d}, {a}, {b}, {'0' if first else d}")


def M(d, a, b, first, wait=None):
    def fn():
        if wait:
            w_ = dict(wait)
            l2 = w_.pop("lg2", None)
            if l2 and max(i for i, t in enumerate(g.lg) if t == l2) > max(i for i, t in enumerate(g.lg) if t == w_["lg"]):
                g._cnt(g.lg, w_["lg"])
                w_["lg"] = l2
            elif l2:
                g._cnt(g.lg, l2)
            g.wait(**w_)
        mfma(d, a, b, first)
    return It(fn, 0.3 if wait else 0)


def mainM(K):
    return [M(r("acc", (fb * 2 + tb) * 4, 4), r("wa", (K & 1) * 24 + fb * 4, 4), xf(K, tb), K == 0,
              dict(lg=f"rw{K}_{fb}", lg2=(None if (K & 1 or fb) else f"rx{K >> 1}")) if tb == 0 else None) for fb in range(6) for tb in range(2)]


def statM(K):
    items = []
    for tb in range(2):
        items.append(M(r("rs", tb * 4, 4), r("ones"), xf(K, tb), K == 0, dict(lg=f"rx{K >> 1}") if (tb == 0 and not K & 1) else None))
        items.append(M(r("gr", tb * 4, 4), xf(K, tb), xf(K, tb), K == 0))
    return items


def csM(K):
    return [M(r("cs", c * 4, 4), r("wa", (K & 1) * 24 + c * 4, 4), r("ones"), K == 0, dict(lg=f"rw{K}_{c}")) for c in range(2)]


FULL = int(opt.get("full", 1))


def flagtxt(addr, ls):
    if FULL and ls >= 4:
        return [f"s_mov_b64 exec, {(1 << (1 << (ls - 4))) - 1}",
                f"buffer_store_dwordx4 {r('vtag')}, {r('l16')}, {r('sWS')}, {addr} offen sc1", "s_mov_b64 exec, -1"]
    return ["s_mov_b64 exec, 1", f"buffer_store_dwordx2 {r('vtag', 0, 2)}, {r('zero')}, {r('sWS')}, {addr} offen sc1", "s_mov_b64 exec, -1"]


def setflag(addr, tagname):
    t_ = flagtxt(addr, {"f1": L1S, "f2": L2S, "f3": L3S}[tagname])
    e(t_[0]); e(t_[1], tagname); e(t_[2])


def pollissue(voff, tagname):
    e(f"buffer_load_dwordx2 {r('pf')}, {voff}, {r('sWS')}, 0 offen sc1", tagname)


def pollcheck(voff, tagname, before_spin=None):
    g.wait(vm=tagname)
    e(f"v_cmp_ne_u64 vcc, {r('tag')}, {r('pf')}")
    e("s_cmp_eq_u64 vcc, 0")
    e(f"s_cbranch_scc0 L_{tagname}")
    g.label(f"L_{tagname}_ok")

    def tail():
        g.label(f"L_{tagname}")
        if before_spin:
            for x in before_spin:
                e(x)
        if SPINMAX:
            e(f"s_mov_b32 {T4}, 0")
        g.label(f"L_{tagname}_l")
        e(f"s_sleep {int(opt.get('sleep', 1))}")
        e(f"buffer_load_dwordx2 {pfr}, {voff}, {sws}, 0 offen sc1")
        e("s_waitcnt vmcnt(0)")
        e(f"v_cmp_ne_u64 vcc, {tagr}, {pfr}")
        if SPINMAX:
            e(f"s_add_u32 {T4}, {T4}, 1")
            e(f"s_cmp_gt_u32 {T4}, {SPINMAX}")
            e(f"s_cbranch_scc1 L_{tagname}_ok")
        e("s_cmp_eq_u64 vcc, 0")
        e(f"s_cbranch_scc0 L_{tagname}_l")
        e(f"s_branch L_{tagname}_ok")
    pfr, sws, tagr = r("pf"), r("sWS"), r("tag")
    tails.append(tail)


tails = []
btab = [W(vm="bb")] + unpack("bt", 0, "bb", 0, 2) + [E(f"ds_write_b64 {r('bw', 0, 1)}, {r('bt', 0, 2)}", "btw"), E(f"ds_write_b64 {r('bw', 1, 1)}, {r('bt', 2, 2)}", "btw")]

W2SLOT = {0: ("x", S4), 1: ("o", 8192), 2: ("o", 0), 3: ("o", 4096), 4: ("x", S3),
          5: ("x", S4), 6: ("o", 8192), 7: ("o", 0), 8: ("o", 4096), 9: ("x", S3), 10: ("x", S4)}
W2PREV = {p: p - 5 for p in range(5, 11)}
VMODE = opt.get("vmode", "F")
if VMODE == "F":
    W2SLOT = {0: ("x", 0), 1: ("x", 16384), 2: ("x", S4), 3: ("o", 8192), 4: ("o", 0), 5: ("o", 4096), 6: ("x", S3),
              7: ("x", S4), 8: ("o", 8192), 9: ("o", 0), 10: ("o", 8192)}
    W2PREV = {7: 2, 8: 3, 9: 4, 10: 8}


def dmaW2(p):
    items = []
    kind, off = W2SLOT[p]
    for n in range(4):
        def it(n=n):
            if n == 0:
                e(f"s_add_u32 m0, {r('own') if kind == 'o' else r('w4k')}, {off}")
                if p in W2PREV:
                    g.wait(lg=f"rv{W2PREV[p]}")
            e(f"buffer_load_dwordx4 {r('w2s', n, 1)}, {r('sB')}, {r(f'kb{p}')} offen offset:{1024 * n} lds", f"V{p}")
        items.append(It(it, 1.2 if n else 1.8))
    return items


def w2f(p, nb, off=0, n=4):
    k = (p * 4 + nb) * 4 + off
    return f"a[{k}:{k + n - 1}]"


def rdW2(p):
    kind, off = W2SLOT[p]
    items = [W(vm=f"V{p}")]
    for nb in range(4):
        for hf in range(2):
            items.append(E(f"ds_read_b64_tr_b16 {w2f(p, nb, 2 * hf, 2)}, {r('w2r', nb + (0 if kind == 'o' else 4), 1)} offset:{off + hf * 2048}", f"rv{p}"))
    return items


alias("sac", 96, 4); alias("sgr", 92, 4)
EPS = f2u(1e-5)


def rb(dst, src):
    return [E(f"v_cvt_pk_bf16_f32 {dst}, {src}, {src}"), E(f"v_and_b32 {dst}, {r('hmask')}, {dst}")]


s1, s1b, s2, s2b = (r("sacc", k, 1) for k in range(4))
st = []
for sh in (8, 4, 2, 1):
    st.append(E(f"v_add_f32_dpp {s1}, {s1}, {s1} row_ror:{sh} row_mask:0xf bank_mask:0xf"))
    st.append(E(f"v_add_f32_dpp {s2}, {s2}, {s2} row_ror:{sh} row_mask:0xf bank_mask:0xf"))
st.append(E(f"v_mov_b32 {s1b}, {s1}")); st.append(E(f"v_mov_b32 {s2b}, {s2}"))
st.append(E(f"v_permlane16_swap_b32 {s1}, {s1b}")); st.append(E(f"v_permlane16_swap_b32 {s2}, {s2b}"))
mu, var, t, w = (r("u", k, 1) for k in range(4))
mb, rsd = r("stv", 0, 1), r("stv", 1, 1)
st.append(E(f"v_add_f32 {mu}, {s1}, {s1b}")); st.append(E(f"v_add_f32 {var}, {s2}, {s2b}"))
st.append(E(f"v_mul_f32 {mu}, 0x{f2u(1 / 512):08x}, {mu}"))
st.append(E(f"v_mul_f32 {var}, 0x{f2u(1 / 512):08x}, {var}"))
st += rb(mb, mu)
st.append(E(f"v_fma_f32 {var}, -{mu}, {mu}, {var}"))
st.append(E(f"v_max_f32 {var}, 0, {var}"))
st += rb(t, var)
st.append(E(f"v_add_f32 {t}, 0x{EPS:08x}, {t}"))
st += rb(t, t)
st.append(E(f"v_sqrt_f32 {t}, {t}", cost=2))
st.append(E(f"v_sub_f32 {mu}, {mu}, {mb}"))
st += rb(t, t)
st.append(E(f"v_rcp_f32 {rsd}, {t}", cost=2))
st.append(E(f"v_mul_f32 {mu}, {mu}, {rsd}"))
st.append(E(f"v_mul_f32 {var}, {var}, {rsd}"))
st.append(E(f"v_mul_f32 {var}, {var}, {rsd}"))
st += rb(t, var)
st.append(E(f"v_add_f32 {t}, 0x{EPS:08x}, {t}"))
st += rb(t, t)
st.append(E(f"v_sqrt_f32 {t}, {t}", cost=2))
st += rb(mu, mu)
st += rb(t, t)
st.append(E(f"v_rcp_f32 {w}, {t}", cost=2))
st.append(E(f"v_fma_f32 {mu}, {mb}, {rsd}, {mu}"))
st.append(E(f"v_mul_f32 {t}, {rsd}, {w}"))
st.append(E(f"v_mul_f32 {mu}, {mu}, {w}"))
st.append(E(f"v_cndmask_b32 {r('gq', 0, 1)}, {t}, {mb}, {r('m1')}"))
st.append(E(f"v_cndmask_b32 {r('gq', 1, 1)}, {mu}, {rsd}, {r('m1')}"))
st.append(E(f"v_mov_b32 {s1}, {r('gq', 0, 1)}")); st.append(E(f"v_mov_b32 {s2}, {r('gq', 1, 1)}"))
st.append(E(f"v_permlane32_swap_b32 {r('gq', 0, 1)}, {s1}")); st.append(E(f"v_permlane32_swap_b32 {r('gq', 1, 1)}, {s2}"))
st.append(It(lambda: (e("s_mov_b64 exec, 12"), e(f"v_mov_b32 {r('gq', 0, 1)}, {s1}"), e(f"v_mov_b32 {r('gq', 1, 1)}, {s2}"), e("s_mov_b64 exec, -1")), 2.6))
ststore = [It(lambda: (e("s_mov_b64 exec, 15"),
                       e(f"buffer_store_dwordx4 {r('gq')}, {r('stw')}, {r('sWS')}, 0 offen sc1", "sts"), e("s_mov_b64 exec, -1")), 2)]


def gcheck(name, voff, tagname):
    g.wait(vm=tagname)
    e(f"v_cmp_ne_u64 vcc, {r('tag')}, {r(name, 2, 2)}")
    e("s_cmp_eq_u64 vcc, 0")
    e(f"s_cbranch_scc0 L_{tagname}")
    g.label(f"L_{tagname}_ok")
    q4, q2, sws, tagr = r(name, 0, 4), r(name, 2, 2), r("sWS"), r("tag")

    def tail():
        g.label(f"L_{tagname}")
        if SPINMAX:
            e(f"s_mov_b32 {T4}, 0")
        g.label(f"L_{tagname}_l")
        e("s_sleep 2")
        e(f"buffer_load_dwordx4 {q4}, {voff}, {sws}, 0 offen sc1")
        e("s_waitcnt vmcnt(0)")
        e(f"v_cmp_ne_u64 vcc, {tagr}, {q2}")
        if SPINMAX:
            e(f"s_add_u32 {T4}, {T4}, 1")
            e(f"s_cmp_gt_u32 {T4}, {SPINMAX}")
            e(f"s_cbranch_scc1 L_{tagname}_ok")
        e("s_cmp_eq_u64 vcc, 0")
        e(f"s_cbranch_scc0 L_{tagname}_l")
        e(f"s_branch L_{tagname}_ok")
    tails.append(tail)


sgld = [E(f"buffer_load_dwordx4 {r('sgr')}, {r('sgo')}, {r('sWS')}, 0 offen sc1", "sg")]
sguse = [It(lambda: gcheck("sgr", r("sgo"), "sg"), 2)]
sguse += [E(f"v_mov_b32 {r('sac', k, 1)}, {r('sgr', k & 1, 1)}") for k in range(4)]
sguse += [E(f"v_permlane32_swap_b32 {r('sac', 0, 1)}, {r('sac', 2, 1)}"), E(f"v_permlane32_swap_b32 {r('sac', 1, 1)}, {r('sac', 3, 1)}")]

main = []
at = {}


def add(items, name=None):
    if name:
        at[name] = len(main)
        if name.startswith("K") and SSET == "k":
            f0 = items[0].fn
            items = [It(lambda: (stamp(name, "k"), f0()), items[0].cost)] + items[1:]
    main.extend(items)


NOB1 = int(opt.get("nob1", 0))
BARS = {1: 1, 3: 3, 7: 5, 11: 7}
if NOB1:
    del BARS[1]


def bar(K):
    def fn():
        if K == KVK:
            g.wait(vm=f"W{BARS[K]}", lg="kvw")
        elif K == 7:
            g.wait(vm=f"W{BARS[K]}", lg="rw7_5")
        elif K < 15:
            g.wait(vm=f"W{BARS[K]}")
        else:
            g.wait(lg=0)
        e("s_barrier")
        if K in (3, 7, 11, 15):
            stamp(f"c{K >> 2}")
    return [It(fn, 0)]


STAT = {K: [] for K in range(13)}
KVK = int(opt.get("kvk", 3))
for K in range(13):
    if K == KVK:
        add([It(lambda: (stamp("kvb"), run(weave(kvu[KVU:] + kvc, (kvdma, 4, len(kvu) - KVU + len(kvc) - 4))), stamp("kv")), 0)], "KV")
    if K in BARS:
        add(bar(K), f"B{K}")
    sm = sum((statM(k) for k in STAT[K]), [])
    add(sm + mainM(K), f"K{K}")
    at[f"m{K}"] = at[f"K{K}"] + len(sm)
    add(csM(K))
add(mainM(13) + csM(13), "K13")
m14 = mainM(14)
add(m14[:2] + csM(14) + m14[2:8], "K14"); add(csM(15), "cs15"); add(m14[8:])
at["m14"] = at["K14"]; at["m13"] = at["K13"]
add(bar(15), "C3")
add(mainM(15), "K15")
at["end"] = len(main)
if SSET == "fine":
    F0 = int(opt.get("f0", 0))
    for k_ in range(F0, min(F0 + 120, len(main)), 4):
        main[k_] = It(lambda f=main[k_].fn, k_=k_: (stamp(f"m{k_}", "fine"), f()), main[k_].cost)
A = lambda n: at[n]
QR = []
for K in range(1, 15):
    lo = A(f"K{K - 1}") - (1 if (K - 1) in BARS else 0)
    hi = A(f"K{K}") - 2 - (1 if K in BARS else 0) - (1 if K == KVK else 0) - (3 if K == 7 else 0)
    QR += win(rdW(K), lo, hi)
QR += win(rdW(15), A("K14"), A("C3") - 5)
XRD = {1: 1, 2: 3, 3: 5, 4: 7, 5: 9, 6: 11, 7: 13}
QX = []
for ei in range(1, 8):
    k = XRD[ei]
    QX += win(rdX(ei), A(f"K{k}"), A(f"K{k}") + 5)


def aft(tag, items):
    f0 = items[0]
    return [It(lambda: (g.wait(lg=tag), f0()), f0.cost + 1)] + items[1:]


kc_txt = []
kcv = [it for it in kcopy if it.cost != 2]
kcw = [it for it in kcopy if it.cost == 2]
f1set = [None] * 4 + [It(lambda: (g.wait(vm="kvst"), setflag(r("f1a"), "f1")), 2)]
udma = [It(lambda: pollcheck(r("pf1o"), "pf1"), 4),
        It(lambda: (e(f"s_add_u32 {r('sA', 0, 1)}, {plo(13)}, {r('chan')}"), e(f"s_addc_u32 {r('sA', 1, 1)}, {phi(13)}, 0"), e(f"s_mov_b32 m0, {r('um0')}")), 3)]
for n in range(4):
    udma.append(E(f"buffer_load_dwordx4 {r('l16')}, {r('sA')}, {r('ush')} offen offset:{1024 * n} sc1 lds", "U"))
KW = lambda k0, k1=None: (A(f"K{k0}"), A(f"K{(k1 or k0) + 1}") - 2)
F1K = int(opt.get("f1k", KVK + 3))
f1 = lambda k: f1set[4:] if F1K == k else []
KVU = int(opt.get("kvu", 8))
assert KVK == 3
KV0 = int(opt.get("kv0", 6))
run(kvload[:KV0])
QV = win(kvload[KV0:] + dmaW1(2), *KW(0))
QV += win(dmaX(2), *KW(1))
QV += win(dmaW1(3), A("K2"), A("KV") - 1)
kvdma = dmaX(3) + dmaX(4) + small + skload + ststore
QV += win(dmaW1(4) + kvst2, *KW(3))
QV += win(dmaW1(5), *KW(4))
QV += win(dmaX(5), *KW(5))
QV += win(dmaX(6) + f1(6), *KW(6))
NV3 = int(opt.get("nv3", 1))
if VMODE == "F":
    QV += win(dmaW1(6) + f1(7) + dmaW1(7)[:1], *KW(7))
    QV += win(dmaW1(7)[1:] + dmaX(7)[:3], *KW(8))
    QV += win(dmaX(7)[3:] + sgld + dmaW2(0)[:3], *KW(9))
    QV += win(dmaW2(0)[3:] + dmaW2(1), *KW(10))
    QV += win(dmaW2(2), *KW(11))
    if NV3:
        QV += win(dmaW2(3), *KW(12)) + win(dmaW2(4), *KW(13))
else:
    QV += win(dmaW1(6) + f1(7), *KW(7))
    QV += win(dmaW1(7) + dmaX(7)[:1], *KW(8))
    QV += win(dmaX(7)[1:] + sgld, *KW(9))
    QV += win(dmaW2(0), *KW(10))
    QV += win(dmaW2(1), *KW(11))
    QV += win(dmaW2(2), *KW(12))
    if NV3:
        QV += win(dmaW2(3), A("K14"), A("C3") - 1)
QV += win([It(lambda: pollissue(r("pf1o"), "pf1"))], A("end") - 4, A("end") - 4)
QW1 = (win(rdW2(0), *KW(13)) + win(rdW2(1), A("K14"), A("C3") - 3)) if VMODE == "F" else []
XX = '''
QV += win(dmaW2(0) + f1(9), *KW(9))
QV += win(dmaW2(1) + f1(10), *KW(10))
QV += win(dmaW2(2) + f1(11), *KW(11))
QV += win(dmaW2(3), *KW(12))
'''
csw = [It(lambda: (e("s_mov_b32 exec_lo, 0x00010001"), e("s_mov_b32 exec_hi, 0x00010001"),
                   e(f"ds_write_b128 {r('ctr', 0, 1)}, {r('cs', 0, 4)}", "csw"), e(f"ds_write_b128 {r('ctr', 0, 1)}, {r('cs', 4, 4)} offset:64", "csw"),
                   e("s_mov_b64 exec, -1")), 5)]
rcs = [E(f"ds_read_b128 {r('csf', 4 * fb, 4)}, {r('ctr', fb >> 1, 1)} offset:{64 * (fb & 1)}", "rcs") for fb in range(6)]
rb1 = [E(f"ds_read_b128 {r('b1f', 4 * fb, 4)}, {r('ctr', fb >> 1, 1)} offset:{B1T - CSX + 64 * (fb & 1)}", "rb1") for fb in range(6)]
QM = win(kvrd, A(f"K{KVK - 1}") + 1, A(f"K{KVK - 1}") + 8)
QM += win(kvu[:KVU], A(f"K{KVK - 1}") + 10, A("KV") - 1)
QM += win(kvst, A(f"B{KVK}"), A(f"B{KVK}") + 1)
QM += win(btab, *KW(5))
KCV = int(opt.get("kcv", 1))
if KCV:
    QM += win(kcv, A("K7"), A("K11") - 2)
QM += win(rb1, *KW(11))
KCW = int(opt.get("kcw", 0))
QM += win(kcw[:KCW], A("K13"), A("K14") + 8)
QM += win(csw, A("C3") - 2, A("C3") - 2)
QM += win(rcs + [E(f"ds_write_b128 {r('za')}, {r('zz')}", "zw", 2)], A("C3"), A("C3") + 7)
if KCV:
    pass
QS = win(st, 0, A("KV") - 1 if KVK == 3 else A("K3") + 6) + win(sguse, A("m14") + 2, A("end") - 2)
QL = win(late_items(lateA), A("K3") + 2, A("K9") - 1) + win(late_items(lateB), A("K9") if lateA else A("K4"), A("C3") - 3)
schedule(main, [QR, QX, QV, QM, QS, QW1, QL])
lateC_items = late_items(lateC)
g.free("T1", "q", "whi", "b0", "ns128", "r8", "pc", "nown", "sD")
del g.names["bp"]
for n_ in ("wf", "kf", "vr", "kr", "shr", "vf", "kvp", "skr", "ke", "bt", "sgr"):
    del g.names[n_]
g.free("w1s", "w1lds", "sW1", "so", "f1a", "kvs", "pre", "kvo", "bb", "bw", "k0", "kd", "sho", "sa", "sb", "kvw", "kvr", "kra", "sra",
       "wa", "xf", "cs", "sgo", "m1", "stw", "w1r", "ctr", "ones", "sacc", "u", "gq", "stv",
       "xrd", "zz", "za", "ptr8", "ptr10", "ptr3", "ptr4", "ptr9", "kim", "xbase", "xk", "wo", "wlim")
AC("w2b", 176, at=0)
stamp("g1")
stamp("g1", "k")

K0 = -2.0 * 0.7978845608028654 * 1.4426950408889634
K1 = K0 * 0.044715
S("k1", 2); V("k0v", 2); V("ge", 16); V("hp", 8)
e(f"s_mov_b32 {r('k1', 0, 1)}, 0x{f2u(K1):08x}")
e(f"s_mov_b32 {r('k1', 1, 1)}, 0x{f2u(K1):08x}")
e(f"v_mov_b32 {r('k0v', 0, 1)}, 0x{f2u(K0):08x}")
e(f"v_mov_b32 {r('k0v', 1, 1)}, 0x{f2u(K0):08x}")
g.wait(lg="rcs")
e(".p2align 3")


def gelu(b, tb):
    it = []
    sac = r("sac", tb * 2, 2)
    prs = [(fb, h) for fb in (2 * b, 2 * b + 1) for h in range(2)]
    U = lambda k: r("acc", (prs[k][0] * 2 + tb) * 4 + 2 * prs[k][1], 2)
    Tm = lambda k: r("ge", (tb & 1) * 8 + 2 * k, 2)
    T1r = lambda k, x: r("ge", (tb & 1) * 8 + 2 * k + x, 1)
    for k, (fb, h) in enumerate(prs):
        it.append(E(f"v_pk_fma_f32 {Tm(k)}, {r('csf', fb * 4 + 2 * h, 2)}, {sac}, {r('b1f', fb * 4 + 2 * h, 2)} op_sel:[0,1,0] op_sel_hi:[1,1,1] neg_lo:[0,1,0] neg_hi:[0,1,0]"))
    for k in range(4):
        it.append(E(f"v_pk_fma_f32 {U(k)}, {U(k)}, {sac}, {Tm(k)} op_sel_hi:[1,0,1]"))
    for k in range(4):
        it.append(E(f"v_pk_mul_f32 {Tm(k)}, {U(k)}, {U(k)}"))
    for k in range(4):
        it.append(E(f"v_pk_fma_f32 {Tm(k)}, {Tm(k)}, {r('k1')}, {r('k0v')}"))
    for k in range(4):
        it.append(E(f"v_pk_mul_f32 {Tm(k)}, {Tm(k)}, {U(k)}"))
    for k in range(4):
        for x in range(2):
            it.append(E(f"v_exp_f32 {T1r(k, x)}, {T1r(k, x)}"))
    for k in range(4):
        it.append(E(f"v_pk_add_f32 {Tm(k)}, {Tm(k)}, 1.0 op_sel_hi:[1,0]"))
    for k in range(4):
        for x in range(2):
            it.append(E(f"v_rcp_f32 {T1r(k, x)}, {T1r(k, x)}"))
    for k in range(4):
        it.append(E(f"v_pk_mul_f32 {Tm(k)}, {Tm(k)}, {U(k)}"))
    for k in range(4):
        it.append(E(f"v_cvt_pk_bf16_f32 {r('hp', (tb & 1) * 4 + k, 1)}, {T1r(k, 0)}, {T1r(k, 1)}"))
    it.append(E(f"buffer_store_dwordx4 {r('hp', (tb & 1) * 4, 4)}, {r('l16')}, {r('sWS')}, {r(f'ho{b}')} offen sc1", "hst"))
    if tb == 0:
        it.append(E(f"s_add_u32 {r(f'ho{b}')}, {r(f'ho{b}')}, 44032"))
    return it


g.free("ska")
AC("cf", 32, at=176); AC("cg", 32, at=208)


def rdF(it, c):
    return E(f"ds_read_b128 {r('cf', 4 * c, 4)}, {r('fa')} offset:{64 * it + 512 * c}", f"F{it}_{c}")


def rdG(it, d):
    return E(f"ds_read_b128 {r('cg', 4 * d, 4)}, {r('ga')} offset:{64 * it + 512 * (7 - d)}", f"G{it}_{d}")


init = []
for k in range(8):
    init += [rdF(0, 7 - k), rdG(0, k)]
SKIP = int(opt.get("skip2", 1))
for jp in range(3):
    if jp == 1:
        run(udma[:2])
    if SKIP:
        e(f"s_cmp_eq_u32 {r(f'ho{jp}')}, 0x7f000000")
        e(f"s_cbranch_scc1 L_gskip{jp}")
    e(".p2align 3")
    n0 = len(g.ins)
    if jp < 2:
        run(weave(gelu(jp, 0) + gelu(jp, 1), (udma[2:] if jp == 1 else [], 2, 60), (kcw[KCW:][jp::2], 12, 90)))
    else:
        g2x = gelu(2, 0) + gelu(2, 1)
        run(g2x[:80])
        g.wait(vm="U", lg=0)
        e("s_barrier")
        stamp("b5")
        run(weave(g2x[80:], (init[:6], 0, 16)))
    if SKIP:
        keep = [i.text for i in g.ins[n0:] if (not i.op.startswith("v_") or i.op.startswith("v_writelane")) and i.cls != "label"]
        g.label(f"L_gdone{jp}")

        def skip_tail(jp=jp, keep=keep):
            g.label(f"L_gskip{jp}")
            for x in keep:
                e(x)
            e(f"s_branch L_gdone{jp}")
        tails.append(skip_tail)
stamp("gelu")
g.free("pf1o", "um0", "ush", "chan", "kw")
del g.names["csf"], g.names["b1f"], g.names["sac"]
g.free("acc", "big", "ge", "k0v", "k1", "ho0", "ho1", "ho2")
V("cy", 32, at=96)
V("hfv", 96, at=160)
HFIRST = int(opt.get("hfirst", 2))
HPOL = opt.get("hpol", "sc1").replace("+", " ")
HORD = [(s_, p_) for p_ in range(HFIRST) for s_ in range(4)]
HORD += [(s_, p_) for s_ in range(4) for p_ in range(HFIRST, 11)]
HF = {}
for k_, sp in enumerate(HORD):
    HF[sp] = r("hfv", 4 * k_, 4) if k_ < 24 else f"a[{176 + 4 * (k_ - 24)}:{179 + 4 * (k_ - 24)}]"
S("sH", 4)
for p in range(11):
    S(f"hb{p}")
NE0 = int(opt.get("ne", 1))
NEX = int(opt.get("nex", 6))
NE = NE0 + NEX
HTXT = [f"buffer_load_dwordx4 {HF[s_, p_]}, {r('hv', s_, 1)}, SRD, {r(f'hb{p_}')} offen {HPOL}" for s_, p_ in HORD]

main = []
QF = win(init[6:], 0, 9)
for it in range(4):
    at[f"I{it}"] = len(main)
    for c in range(7, -1, -1):
        for d in range(0, 8 - c):
            t = c + d
            wt = None
            if d == 0:
                wt = dict(lg=f"F{it}_0") if (c == 0 and it) else dict(lg=f"G{it}_{7 - c}")
                if it and c in (5, 3, 2, 1):
                    wt = None if c != 5 else dict(lg=f"G{it}_3")
                if it and c == 4:
                    wt = None
                if it and c == 3:
                    wt = dict(lg=f"F{it}_0")
                if it and c == 0:
                    wt = None
            main.append(M(r("cy", 4 * t, 4), r("cf", 4 * c, 4), r("cg", 4 * d, 4), it == 0 and d == 0, wt))
            if it == 0 and c == 0:
                main.append(M(r("cy", 4 * t, 4), r("fd"), r("cg", 4 * d, 4), False))
            idx = len(main) - 1
            if it < 3:
                if d == 7 - c and c > 0:
                    QF += win([rdF(it + 1, c)], idx, idx + 2)
                if c == 0:
                    QF += win([rdG(it + 1, d)], idx, idx)
                    if d == 7:
                        QF += win([rdF(it + 1, 0)], idx, idx)
at["I4"] = len(main)
if SSET == "cv":
    for k_ in range(0, 152, 8):
        main[k_] = It(lambda f=main[k_].fn, k_=k_: (stamp(f"m{k_}", "cv"), f()), main[k_].cost)
if VMODE == "F" and NV3:
    QW = win(rdW2(2) + rdW2(3) + rdW2(4), 8, 44) + win(rdW2(5) + rdW2(6), 48, 76) + win(rdW2(7) + rdW2(8), 78, 104) + win(rdW2(9), 108, 124)
    QV = win(dmaW2(5) + dmaW2(6) + dmaW2(7), 0, 46) + win(dmaW2(8) + dmaW2(9), 48, 78)
elif VMODE == "F":
    QW = win(rdW2(2), 10, 24) + win(rdW2(3) + rdW2(4), 40, 66) + win(rdW2(5) + rdW2(6) + rdW2(7), 68, 104)
    QW += win(rdW2(8), 106, 118) + win(rdW2(9), 124, A("I4") - 4)
    QV = win(dmaW2(3) + dmaW2(4) + dmaW2(5) + dmaW2(6) + dmaW2(7), 0, 70) + win(dmaW2(8) + dmaW2(9), 72, 98)
else:
    QW = win(rdW2(0) + rdW2(1) + rdW2(2) + rdW2(3), 8, 50) + win(rdW2(4) + rdW2(5) + rdW2(6), 56, 100)
    QW += win(rdW2(7) + rdW2(8) + rdW2(9), 104, A("I4") - 4)
    QV = win(([] if NV3 else dmaW2(3)) + dmaW2(4), 0, 15) + win(dmaW2(5) + dmaW2(6) + dmaW2(7) + dmaW2(8) + dmaW2(9), 22, 98)
F2POS = int(opt.get("f2pos", 52 if KCV else 20))
QF2 = win([It(lambda: (g.wait(vm="hst"), setflag(r("f2a"), "f2")), 2)], F2POS, F2POS)
QV += win(dmaW2(10), *((100, 114) if VMODE != "F" else (108, 120) if NV3 else (121, 134)))
P2A = int(opt.get("p2a", 124))
P2C = int(opt.get("p2c", 146))
QF2 += win([It(lambda: pollissue(r("pf2o"), "pf2a"))], P2A, P2A)


def chk2a():
    g.wait(vm="pf2a")
    e(f"v_cmp_ne_u64 vcc, {r('tag')}, {r('pf')}")
    e(f"s_mov_b64 {r('sH', 0, 2)}, {r('sWS', 0, 2)}")
    e(f"s_mov_b32 {r('sH', 3, 1)}, 0x00020000")
    e("s_cmp_eq_u64 vcc, 0")
    e(f"s_cselect_b32 {r('sH', 2, 1)}, {WSZ}, 0")


QV += win([It(chk2a, 2)], P2C, P2C)
QV += win([E(x.replace("SRD", r("sH")), f"H{s_}_{p_}") for (s_, p_), x in zip(HORD[:NE0], HTXT)], P2C + 1, A("I4") - 3)
hex_ = [E(x.replace("SRD", r("sH")), f"H{s_}_{p_}") for (s_, p_), x in list(zip(HORD, HTXT))[NE0:NE]]


def hx():
    if hex_:
        hex_.pop(0)()
QV += win([It(lambda: pollissue(r("pf2o"), "pf2"))], A("I4") - 2, A("I4") - 2)
S("early")
QB = []
QM = win([It(lambda p=p: (e(f"s_lshr_b32 {r(f'hb{p}')}, {r(f'kb{p}')}, 5"), e(f"s_min_u32 {r(f'hb{p}')}, {r(f'hb{p}')}, {42 * 1024}")), 0.6)
          for p in range(11)], 30, 70)
QB = win(lateC_items, 4, 100)
schedule(main, [QF, QW, QV, QM, QF2, QB])
g.free("tt2", "ns", "tok16", "L0", "L2", "L3", "L4")
stamp("conv")
stamp("conv", "g2")
rv10 = rdW2(10) if KCV else []
g.free("cf", "cg", "fd", "fa", "ga", "w2s", "w4k", "f2a", "hp")
for p in range(11):
    g.free(f"kb{p}")
V("ys", 8); V("cg", 24); V("sv", 4)
AC("hfa", 80, at=176)
hx()
g.wait(lg=0)
e(f"s_cmp_lg_u32 {r('wodd')}, 0")
e("s_cbranch_scc1 L_odd1")
lsv_ = g.lg_done
for k in range(4):
    e(f"ds_write_b128 {r('oa')}, {r('cy', 16 + 4 * k, 4)} offset:{1024 * k}")
e("s_branch L_j1")
g.label("L_odd1")
e("s_nop 4")
for k in range(4):
    e(f"ds_write_b128 {r('oa')}, {r('cy', 4 * k, 4)} offset:{1024 * k}")
g.wait(lg=0)
for k in range(8):
    e(f"v_pk_mov_b32 {r('cy', 2 * k, 2)}, {r('cy', 16 + 2 * k, 2)}, {r('cy', 16 + 2 * k, 2)} op_sel:[0,1]")
g.label("L_j1")
g.lg_done = lsv_
hx()
g.wait(lg=0)
e("s_barrier")
for k in range(4):
    e(f"ds_read_b128 {r('cg', 4 * k, 4)}, {r('pa')} offset:{1024 * k}", f"ex{k}")
hx(); hx()
for k in range(4):
    g.wait(lg=f"ex{k}")
    for hh in range(2):
        e(f"v_pk_add_f32 {r('cy', 4 * k + 2 * hh, 2)}, {r('cy', 4 * k + 2 * hh, 2)}, {r('cg', 4 * k + 2 * hh, 2)}")
    for hh in range(2):
        e(f"v_cvt_pk_bf16_f32 {r('cg', 16 + 2 * k + hh, 1)}, {r('cy', 4 * k + 2 * hh, 1)}, {r('cy', 4 * k + 2 * hh + 1, 1)}")
    e(f"ds_write_b64 {r('yw')}, {r('cg', 16 + 2 * k, 2)} offset:{4096 + 512 * k}", f"yw{k}")
    if k & 1:
        e(f"ds_read_b128 {r('ys', 2 * (k - 1), 4)}, {r('oa')} offset:{4096 + 512 * (k - 1)}", f"yr{k >> 1}")
hx()
g.wait(lg="yr0")
e(f"buffer_store_dwordx4 {r('ys', 0, 4)}, {r('l16')}, {r('sWS')}, {r('yo')} offen sc1", "yst")
g.wait(lg="yr1")
e(f"buffer_store_dwordx4 {r('ys', 4, 4)}, {r('l16')}, {r('sWS')}, {r('yo')} offen offset:1024 sc1", "yst")
stamp("yst")
stamp("yst", "g2")
while hex_:
    hx()
g.free("cy", "pa", "yw", "cg", "yo")

V("ac2", 32)
e(f"s_cmp_lg_u32 {r('sH', 2, 1)}, 0")
e("s_cbranch_scc1 L_haveH")
sv_ = g.vm_done
pollcheck(r("pf2o"), "pf2", before_spin=["s_waitcnt vmcnt(0)"] + flagtxt(r("f3a"), L3S))
n_ = len(g.vm)
for x in HTXT[:NE]:
    e(x.replace("SRD", r("sWS")))
del g.vm[n_:]
g.label("L_haveH")
g.vm_done = 0
n_late = len(g.vm)
stamp("f2")
hl = [E(x.replace("SRD", r("sWS")), f"H{s_}_{p_}") for (s_, p_), x in zip(HORD, HTXT)]


def g2(s):
    return [M(r("ac2", (s & 1) * 16 + 4 * nb, 4), w2f(p, nb), HF[s, p], p == 0,
              (dict(vm=f"H{s}_{p}", lg="rv10") if (s == 0 and p == 10) else dict(vm=f"H{s}_{p}")) if nb == 0 else None)
            for p in range(11) for nb in range(4)]


def pwr(s):
    return [E(f"ds_write_b64 {r('pw', s, 1)}, {r('ac2', (s & 1) * 16 + 2 * k, 2)} offset:{512 * k}", "pw", 1.5) for k in range(8)]


V("xr", 8); V("xfp", 16); V("xn", 16)
pre = rv10 + [It(lambda: gcheck("sv", r("svr"), "sv")), W(vm="xt")]
for nb in range(4):
    pre.append(E(f"ds_read_b64 {r('xr', 2 * nb, 2)}, {r('ea', nb, 1)} offset:6144", "xr"))
PRESH = int(opt.get("presh", 1))
pre2 = [W(lg="xr")]
if PRESH:
    for d in range(8):
        lo, hi = r("xfp", 2 * d, 1), r("xfp", 2 * d + 1, 1)
        a_, b_ = r("xn", 2 * d, 1), r("xn", 2 * d + 1, 1)
        pre2.append(E(f"v_lshlrev_b32 {lo}, 16, {r('xr', d, 1)}"))
        pre2.append(E(f"v_and_b32 {hi}, {r('hmask')}, {r('xr', d, 1)}"))
        pre2.append(E(f"v_sub_f32 {a_}, {lo}, {r('sv', 0, 1)}"))
        pre2.append(E(f"v_sub_f32 {b_}, {hi}, {r('sv', 0, 1)}"))
        pre2.append(E(f"v_cvt_pk_bf16_f32 {b_}, {a_}, {b_}"))
        pre2.append(E(f"v_lshlrev_b32 {a_}, 16, {b_}"))
        pre2.append(E(f"v_and_b32 {b_}, {r('hmask')}, {b_}"))
        pre2.append(E(f"v_mul_f32 {a_}, {a_}, {r('sv', 1, 1)}"))
        pre2.append(E(f"v_mul_f32 {b_}, {b_}, {r('sv', 1, 1)}"))
        pre2.append(E(f"v_cvt_pk_bf16_f32 {b_}, {a_}, {b_}"))
        pre2.append(E(f"v_lshlrev_b32 {a_}, 16, {b_}"))
        pre2.append(E(f"v_and_b32 {b_}, {r('hmask')}, {b_}"))
else:
    pre2 += unpack("xfp", 0, "xr", 0, 8)
    for d in range(8):
        pre2.append(E(f"v_pk_add_f32 {r('xn', 2 * d, 2)}, {r('xfp', 2 * d, 2)}, {r('sv', 0, 2)} op_sel_hi:[1,0] neg_lo:[0,1] neg_hi:[0,1]"))
    for d in range(8):
        pre2.append(E(f"v_cvt_pk_bf16_f32 {r('xr', d, 1)}, {r('xn', 2 * d, 1)}, {r('xn', 2 * d + 1, 1)}"))
    pre2 += unpack("xn", 0, "xr", 0, 8)
    for d in range(8):
        pre2.append(E(f"v_pk_mul_f32 {r('xn', 2 * d, 2)}, {r('xn', 2 * d, 2)}, {r('sv', 0, 2)} op_sel:[0,1] op_sel_hi:[1,1]"))
    for d in range(8):
        pre2.append(E(f"v_cvt_pk_bf16_f32 {r('xr', d, 1)}, {r('xn', 2 * d, 1)}, {r('xn', 2 * d + 1, 1)}"))
    pre2 += unpack("xn", 0, "xr", 0, 8)
if PRESH:
    run(weave(rv10 or [It(lambda: None)], (hl[NE:NH0], 0, 9)))
    QPRE = win(pre[len(rv10):], 66, 72) + win(pre2, 78, 138)
else:
    run(weave(pre + pre2, (hl[NE:NH0], 0, 88)))
    QPRE = []
e(f"s_cmp_lg_u32 {r('sH', 2, 1)}, 0")
e("s_cbranch_scc1 L_lateok")
e(f"s_waitcnt vmcnt({len(g.vm) - n_late})")
g.label("L_lateok")
stamp("f3set")
stamp("f3set", "g2")
ps_alias = {}
B7P = 14
main = g2(0) + g2(1) + g2(2) + g2(3)[:B7P]
if SSET == "g2b":
    for k_ in range(0, 140, 8):
        main[k_] = It(lambda f=main[k_].fn, k_=k_: (stamp(f"m{k_}", "g2b"), f()), main[k_].cost)
P3K = int(opt.get("p3k", 44))
HPACE = float(opt.get("hpace", 3.8))
xtl = [It(lambda: (e(f"s_add_u32 m0, {r('own')}, 6144"), e("s_nop 0"), e(f"buffer_load_dwordx4 {r('xs', 0, 1)}, {r('sX')}, {r('tile0')} offen lds", "xt")), 1.5),
       E(f"buffer_load_dwordx4 {r('xs', 1, 1)}, {r('sX')}, {r('tile0')} offen offset:1024 lds", "xt"),
       E(f"buffer_load_dwordx4 {r('sv')}, {r('svr')}, {r('sWS')}, 0 offen sc1", "sv")]
XK = NH0 + 6
QH = win(hl[NH0:XK] + xtl + hl[XK:P3K] + [It(lambda: pollissue(r("pf3o"), "pf3"))] + hl[P3K:], 0, int(HPACE * (47 - NH0)))
QP = win(pwr(0), 48, 70) + win(pwr(1), 92, 114) + win(pwr(2), 134, 143)
F3POS = int(opt.get("f3pos", 34))
QF3 = win([It(lambda: (g.wait(vm="yst"), setflag(r("f3a"), "f3")), 2)], F3POS, F3POS)
schedule(main, [QH, QP, QF3, QPRE])
g.free("ys", "xr", "sv", "svr", "pf2o", "w2r")
stamp("g2s2")
stamp("g2s2", "g2")
g.wait(lg=0)
stamp("b7a", "g2")
e("s_barrier")
stamp("b7b", "g2")
g.free("hfv")
V("ps", 48); V("zr", 8); V("b2f", 16)
rp = [E(f"ds_read_b128 {r('b2f', 4 * nb, 4)}, {r('csr0')} offset:{B2T - CSX + 64 * nb}", "rb2") for nb in range(4)]
rp += [E(f"ds_read2st64_b64 {r('ps', 4 * k, 4)}, {r('psr')} offset0:{2 * k} offset1:{2 * k + 1}", f"rp{k}") for k in range(12)]
adds = [W(lg="rp11")]
for k in range(16):
    adds.append(E(f"v_add_f32 {r('ps', k, 1)}, {r('ps', k, 1)}, {r('ps', 16 + k, 1)}"))
    adds.append(E(f"v_add_f32 {r('b2f', k, 1)}, {r('b2f', k, 1)}, {r('ps', 32 + k, 1)}"))
ztxt = [f"buffer_load_dwordx4 {r('zs')}, {r('sWS')}, {r('zo')} offen sc1 lds",
        f"buffer_load_dwordx4 {r('zs')}, {r('sWS')}, {T3} offen offset:1024 sc1 lds"]


def zfirst():
    stamp("zfa", "g2")
    g.wait(vm="pf3")
    stamp("zfb", "g2")
    e(f"v_cmp_ne_u64 vcc, {r('tag')}, {r('pf')}")
    e(f"s_add_u32 m0, {r('own')}, 8192")
    e(f"s_add_u32 {T3}, {r('zo')}, {32 * KP - 1024}")
    e("s_cmp_eq_u64 vcc, 0")
    e(f"s_cselect_b32 {r('early')}, 1, 0")
    e("s_cbranch_scc0 L_noz")
    n_ = len(g.vm)
    for x in ztxt:
        e(x)
    del g.vm[n_:]
    g.label("L_noz")
    pollissue(r("pf3o"), "pf3b")


ZPOS = int(opt.get("zpos", 8))
schedule(g2(3)[B7P:], [win(rp, 0, 11), win(adds, 16, 29), win([It(zfirst, 3)], ZPOS, ZPOS)])
stamp("g2")
stamp("g2", "g2")
S("nl2", 2)
e(f"s_mov_b32 {r('nl2', 0, 1)}, 0x{f2u(-1.4426950408889634):08x}")
e(f"s_mov_b32 {r('nl2', 1, 1)}, 0x{f2u(-1.4426950408889634):08x}")
srd("sA", 11, 2097152)
Mm = lambda k: r("ps", 2 * k, 2)
Tt = lambda k: r("ps", 16 + 2 * k, 2)
e(".p2align 3")
for k in range(8):
    e(f"v_pk_add_f32 {Mm(k)}, {Mm(k)}, {r('b2f', 2 * k, 2)}")
for k in range(8):
    e(f"v_pk_add_f32 {Mm(k)}, {Mm(k)}, {r('ac2', 16 + 2 * k, 2)}")
for k in range(8):
    e(f"v_pk_mul_f32 {Tt(k)}, {Mm(k)}, {r('nl2')}")
for k in range(16):
    e(f"v_exp_f32 {r('ps', 16 + k, 1)}, {r('ps', 16 + k, 1)}")
for k in range(8):
    e(f"v_pk_mul_f32 {Mm(k)}, {Mm(k)}, {r('xn', 2 * k, 2)}")
for k in range(8):
    e(f"v_pk_add_f32 {Tt(k)}, {Tt(k)}, 1.0 op_sel_hi:[1,0]")
for k in range(16):
    e(f"v_rcp_f32 {r('ps', 16 + k, 1)}, {r('ps', 16 + k, 1)}")
e(f"s_cmp_eq_u32 {r('early')}, 1")
e("s_cbranch_scc1 L_havez")
pollcheck(r("pf3o"), "pf3b")
for x in ztxt:
    e(x)
g.label("L_havez")
e(f"s_or_b32 {T2}, s2, {r('wave')}")
e("s_cbranch_scc0 L_bump")
g.label("L_bumped")


def bump_tail():
    g.label("L_bump")
    e(f"v_and_b32 {ta_}, 7, {lane_}")
    if MAP1 == 8:
        e(f"v_lshrrev_b32 {tb_}, 2, {ta_}")
        e(f"v_and_b32 {ta_}, 3, {ta_}")
    else:
        e(f"v_lshrrev_b32 {tb_}, 1, {ta_}")
        e(f"v_and_b32 {ta_}, 1, {ta_}")
    e(f"v_mul_u32_u24 {tb_}, {2 * G2S}, {tb_}")
    e(f"v_lshl_add_u32 {ta_}, {ta_}, {L2S + 3}, {tb_}")
    e(f"s_mov_b32 {T2}, {F2B}")
    if SPINMAX:
        e(f"s_mov_b32 {T4}, 0")
    g.label("L_bump_l")
    e(f"buffer_load_dwordx2 {pf_}, {ta_}, {sws_}, {T2} offen sc1")
    e("s_waitcnt vmcnt(0)")
    e(f"v_cmp_ne_u64 vcc, {tagr_}, {pf_}")
    if SPINMAX:
        e(f"s_add_u32 {T4}, {T4}, 1")
        e(f"s_cmp_gt_u32 {T4}, {SPINMAX}")
        e("s_cbranch_scc1 L_bumped")
    e("s_cmp_eq_u64 vcc, 0")
    e("s_cbranch_scc0 L_bump_l")
    e(f"s_mov_b32 {T2}, {EPOCH}")
    e("s_mov_b64 exec, 1")
    e(f"buffer_store_dwordx2 {vtag_}, {zero_}, {sws_}, {T2} offen sc1")
    e("s_mov_b64 exec, -1")
    e("s_branch L_bumped2")


tagr_, sws_, vtag_, zero_, ta_, tb_, lane_, pf_ = r("tag"), r("sWS"), r("vtag", 0, 2), r("zero"), r("ta"), r("tb"), r("lane"), r("pf")
tails.append(bump_tail)
e("s_waitcnt vmcnt(0)")
g.label("L_bumped2")
stamp("z")
stamp("z", "g2")
for nb in range(4):
    e(f"ds_read_b64_tr_b16 {r('zr', 2 * nb, 2)}, {r('zt')} offset:{8192 + 512 * nb}", f"zr{nb}")
for k in range(8):
    e(f"v_pk_mul_f32 {Mm(k)}, {Mm(k)}, {Tt(k)}")
for nb in range(4):
    g.wait(lg=f"zr{nb}")
    run(unpack("ps", 16 + 4 * nb, "zr", 2 * nb, 2))
    for k in (2 * nb, 2 * nb + 1):
        e(f"v_pk_fma_f32 {Mm(k)}, {Mm(k)}, {Tt(k)}, {r('xfp', 2 * k, 2)}")
    for k in (2 * nb, 2 * nb + 1):
        e(f"v_cvt_pk_bf16_f32 {r('zr', k, 1)}, {r('ps', 2 * k, 1)}, {r('ps', 2 * k + 1, 1)}")
    e(f"ds_write_b64 {r('ea', nb, 1)}, {r('zr', 2 * nb, 2)} offset:10240", "ow")
e(f"ds_read_b128 {r('ps', 32, 4)}, {r('oa')} offset:10240", "or0")
e(f"ds_read_b128 {r('ps', 36, 4)}, {r('oa')} offset:11264", "or1")
g.wait(lg="or0")
e(f"buffer_store_dwordx4 {r('ps', 32, 4)}, {r('xs', 0, 1)}, {r('sA')}, {r('tile0')} offen {OPOL}", "ost")
g.wait(lg="or1")
e(f"buffer_store_dwordx4 {r('ps', 36, 4)}, {r('xs', 1, 1)}, {r('sA')}, {r('tile0')} offen offset:1024 {OPOL}", "ost")
stamp("out")
stamp("out", "g2")
if STAMPS:
    e("s_waitcnt vmcnt(0)")
    stamp("end")
    g.smem_out = True
    flush_stamps(True)
    e(f"s_lshl_b32 {T2}, s2, 2")
    e(f"s_add_u32 {T2}, {T2}, {r('wave')}")
    e(f"s_lshl_b32 {T2}, {T2}, 7")
    e(f"s_add_u32 {T2}, {T2}, {STAMP}")
    e(f"v_lshlrev_b32 {r('ta')}, 2, {r('lane')}")
    e("s_mov_b32 exec_hi, 0")
    e(f"buffer_store_dword {r('stamps')}, {r('ta')}, {r('sWS')}, {T2} offen")
    if DBG:
        e(f"s_cmp_lg_u32 {T2}, {STAMP + (DBG - 1) * 512}")
        e("s_cbranch_scc1 L_end")
        e(f"v_readfirstlane_b32 {T3}, {r('stamps')}")
        e(f"v_subrev_u32 {r('tb')}, {T3}, {r('stamps')}")
        e(f"global_store_dword {r('ta')}, {r('tb')}, {ptr(12)}")
if UNTIL:
    g.label("L_until")
    e(f"s_memrealtime {r('t45', 0, 2)}")
    e("s_waitcnt lgkmcnt(0)")
    e(f"s_sub_u32 {T1_}, {T1_}, {r('t_start', 0, 1)}")
    e(f"s_cmp_lt_u32 {T1_}, {UNTIL}")
    e("s_cbranch_scc1 L_until")
PAD = int(opt.get("pad", 0))
if PAD:
    e(f"s_mov_b32 {T2}, 0")
    g.label("L_pad")
    for _ in range(120):
        e(f"v_add_u32 {r('ta')}, 1, {r('tb')}")
    e(f"s_add_u32 {T2}, {T2}, 1")
    e(f"s_cmp_lt_u32 {T2}, {PAD}")
    e("s_cbranch_scc1 L_pad")
g.label("L_end")
e("s_endpgm")
for t_ in tails:
    t_()

body = g.finish()
hdr = open("cdna_kernels/" + NAME + ".s.ref").read().split("; @launch")[0]
nv = 256 + g.hw["a"]
txt = f"""{hdr}; @launch grid=(256,1,1) block=(256,1,1) lds={LDSZ}
.amdgcn_target "amdgcn-amd-amdhsa--gfx950"
.text
.globl {NAME}_kernel
.p2align 8
.type {NAME}_kernel,@function
{NAME}_kernel:
{body}
    s_endpgm
.section .rodata,"a"
.p2align 6
.amdhsa_kernel {NAME}_kernel
  .amdhsa_next_free_vgpr {nv}
  .amdhsa_next_free_sgpr 102
  .amdhsa_accum_offset 256
  .amdhsa_group_segment_fixed_size 0
  .amdhsa_kernarg_size 112
  .amdhsa_user_sgpr_count 2
  .amdhsa_user_sgpr_kernarg_segment_ptr 1
  .amdhsa_system_sgpr_workgroup_id_x 1
.end_amdhsa_kernel
"""
import subprocess, re
open("_g.s", "w").write(txt.replace("CODE_BYTES", "0x1000"))
subprocess.check_call(["clang", "-x", "assembler", "-target", "amdgcn-amd-amdhsa", "-mcpu=gfx950", "-c", "_g.s", "-o", "_g.o"])
hh = subprocess.check_output(["llvm-objdump", "-h", "_g.o"]).decode()
size = int(re.search(r"\.text\s+([0-9a-f]+)", hh).group(1), 16)
txt = txt.replace("CODE_BYTES", str((size - 256) & ~3))
open(OUT, "w").write(txt)
print("code bytes", size, "instrs", len(g.ins), "nops", g.nops, "hw", g.hw, "stamps", nst[0], " ".join(stnames))
```

```python
import sys, struct, re
from dsl import Gen, It, win, schedule

NAME = "recurrent_scan__ssm_conv_h3__mixer_channel_mlp__prompt"
opt = dict(a.split("=") for a in sys.argv[2:])
OUT = sys.argv[1]
MAP1 = int(opt.get("map1", 4))
STAMPS = int(opt.get("stamps", 0))
KVPOL = opt.get("kvpol", "")
XPOL0 = opt.get("xpol", "")
KPOL = opt.get("kpol", "")
SPINMAX = int(opt.get("spinmax", 0))
PREDIV = int(opt.get("prediv", 16))
OPOL = opt.get("opol", "")
DBG = int(opt.get("dbg", 0))
SSET = opt.get("sset", "main")
TOUCH = int(opt.get("touch", 0))
NH0 = int(opt.get("nh0", 14))
NX0 = int(opt.get("nx0", 7))

KP = int(opt.get("kp", 4352))
KVT, HB, YT, FL, EPOCH, STAMP = 0, 0x240000, 0x800000, 0xA40000, 0xB00000, 0xC00000
F1B, F2B, F3B = FL, FL + 0x30000, FL + 0x60000
L1S, L2S, L3S = (int(opt.get(k, d)) for k, d in (("l1s", 6), ("l2s", 6), ("l3s", 6)))
G1S, G2S, G3S = max(32 << L1S, 256) + 256, max(32 << L2S, 256) + 256, max(64 << L3S, 256) + 256
STA, STB = 0xAE0000, 0xAE0010
HALT = int(opt.get("halt", "0"), 0)
WSZ = 0xD00000 + HALT
XST, KVIMG, CSX, STT = 98816, 147968, 156288, 156672
FP, GP = 4160, 4576
WR = 49664
UB0 = 66048
S3, S4 = 49664, 33280
PX = 49664
B1T, B2T = 157696, 158080
LDSZ = 158336


def f2u(x):
    return struct.unpack("<I", struct.pack("<f", x))[0]


g = Gen()
e, r = g.e, g.r
V = lambda n, c=1, **k: g.alloc("v", n, c, **k)
S = lambda n, c=1, **k: g.alloc("s", n, c, **k)
AC = lambda n, c=1, **k: g.alloc("a", n, c, **k)
W = lambda **k: It(lambda: g.wait(**k), 0.3)
E = lambda s, t=None, cost=None: It(lambda: e(s, t), cost or (1.2 if s.startswith(('ds_', 'buffer_', 'global_')) else 0.3 if s.startswith('s_') else 1))


def run(items):
    for it in items:
        it()


def weave(main, *bgs):
    slots = [[] for _ in main]
    for items, a, b in bgs:
        b = min(b, len(main) - 1)
        n = len(items)
        for k, it in enumerate(items):
            slots[a + (k * (b - a + 1)) // max(n, 1)].append(it)
    out = []
    for m, s in zip(main, slots):
        out.append(m)
        out.extend(s)
    return out


S("karg", 2, at=0); S("wg", 1, at=2); S("t0", 1, at=3)
S("t45", 4, at=4)
for i_ in range(14):
    S(f"ptr{i_}", 2, at=8 + 2 * i_)
V("tid", 1, at=0)
nst = [0]
stnames = []
pend = []
if STAMPS:
    S("st", 8, at=94, align=2)
    V("stamps", 1, at=1)


def flush_stamps(force=False):
    if pend and (force or len(pend) == 4) and g.smem_out:
        g.wait(lg=0)
    if not g.smem_out:
        for k in pend:
            e(f"v_writelane_b32 {r('stamps')}, {r('st', 2 * (k % 4), 1)}, {k}")
        pend.clear()


AMP = opt.get("amp", "")


def stamp(name, grp="main"):
    if AMP and grp == "main" and name in ("start", AMP):
        so_ = g.smem_out
        e(f"s_memrealtime s[{96 if name == 'start' else 98}:{97 if name == 'start' else 99}]")
        if name != "start":
            g.smem_out = so_
    if STAMPS and (grp == SSET or name in ("start", "end")) and name not in opt.get("skip", "").split(","):
        assert nst[0] < 32
        if STAMPS == 3:
            if len(pend) == 3:
                k = pend.pop(0)
                e(f"v_writelane_b32 {r('stamps')}, {r('st', 2 * (k % 4), 1)}, {k}")
            so_ = g.smem_out
            e(f"s_memtime {r('st', 2 * (nst[0] % 4), 2)}")
            g.smem_out = so_
            pend.append(nst[0]); nst[0] += 1; stnames.append(name)
            return
        flush_stamps()
        e(f"{'s_memtime' if STAMPS == 2 else 's_memrealtime'} {r('st', 2 * (nst[0] % 4), 2)}")
        pend.append(nst[0])
        nst[0] += 1
        stnames.append(name)


_wait = g.wait
_wn = [0]
VM0 = int(opt.get("vm0", 0))


def wait_hook(vm=None, lg=None):
    hook = SSET == "vm" and vm is not None and not str(vm).startswith("H")
    if hook:
        _wn[0] += 1
        hook = VM0 < _wn[0] <= VM0 + 15
    if hook:
        stamp(f"b{vm}", "vm")
    _wait(vm=vm, lg=lg)
    if hook:
        stamp(f"a{vm}", "vm")


g.wait = wait_hook


def ptr(i):
    if i == 13 and "ptr13" not in g.names:
        return r("sWS", 0, 2)
    return r(f"ptr{i}")


def plo(i):
    return "s" + ptr(i)[2:].split(":")[0]


def phi(i):
    return "s" + ptr(i).split(":")[1][:-1]


def srd(name, pi, nbytes, add=None):
    if add is None:
        e(f"s_mov_b64 {r(name,0,2)}, {ptr(pi)}")
    else:
        e(f"s_add_u32 {r(name,0,1)}, {plo(pi)}, {add}")
        e(f"s_addc_u32 {r(name,1,1)}, {phi(pi)}, 0")
    e(f"s_mov_b32 {r(name,2,1)}, {nbytes}")
    e(f"s_mov_b32 {r(name,3,1)}, 0x00020000")


T0, T1_, T2, T3, T4 = "s3", "s4", "s5", "s6", "s7"
ABL = opt.get("abl", "").split(",")
_e0 = g.e


LATE = None


def e(text, tag=None):
    if LATE is not None:
        LATE.append(text)
        return
    t = tag or ""
    if ("x" in ABL and t.startswith("X") and t != "X0") or ("w" in ABL and t.startswith("W") and t != "W0") or \
            ("v" in ABL and t.startswith("V")):
        g.vm.append(tag)
        g.vm.pop()
        g.vm.insert(0, tag)
        return
    hook = SSET == "iss" and (text.startswith(("buffer_", "global_", "s_barrier")) or (text.startswith("s_waitcnt") and "vmcnt" in text))
    if hook:
        _in[0] += 1
        hook = VM0 < _in[0] <= VM0 + 15
    if hook:
        stamp("b" + (tag or text.split()[0][2:6]), "iss")
    _e0(text, tag)
    if hook:
        stamp("a", "iss")


_in = [0]
g.e = e


UNTIL = int(opt.get("until", 0))
if UNTIL:
    S("t_start", 2, at=92)
    e(f"s_memrealtime {r('t_start')}")
stamp("start")
e("s_load_dwordx16 s[8:23], s[0:1], 0")
e("s_load_dwordx8 s[24:31], s[0:1], 64")
e("s_load_dwordx4 s[32:35], s[0:1], 96")
e("s_cmp_ge_u32 s2, 256")
e("s_cbranch_scc1 L_end")
for n in ("lane", "ta", "tb", "tc", "td", "r8", "pc", "zero", "i15", "h4", "l16", "oa", "fa", "ga", "pa", "yw", "zs", "zt",
          "pf1o", "pf2o", "pf3o", "psr", "svr", "kw", "za", "sgo", "csr0", "stw"):
    V(n)
V("vtag", 4); V("xs", 4, align=1); V("w2s", 4, align=1); V("w2r", 8, align=1); V("hv", 4, align=1)
V("pw", 3, align=1); V("ea", 4, align=1); V("pf", 2)
V("xrd", 2, align=1); V("w1r", 6, align=1); V("ctr", 3, align=1); V("w1s", 3, align=1)
AC("fd", 4, at=240); AC("ones", 4, at=244); AC("zz", 4, at=248)
for n in ("wave", "T1", "q", "tt2", "ns", "rot", "b0", "nown", "tok16", "ns128", "tile0", "own", "hmask", "so",
          "f1a", "f2a", "f3a", "yo", "zo", "um0", "ush"):
    S(n)
sh_ = PREDIV.bit_length() - 1
V("pre")
e(f"s_lshr_b32 {T1_}, s2, 3")
e(f"v_lshrrev_b32 {r('tc')}, {sh_}, v0")
e(f"s_and_b32 {T2}, {T1_}, {PREDIV - 1}")
e(f"v_lshl_add_u32 {r('tc')}, {r('tc')}, {sh_}, {T2}")
e(f"v_lshlrev_b32 {r('tc')}, 7, {r('tc')}")
e(f"v_min_u32 {r('tc')}, CODE_BYTES, {r('tc')}")
e(f"s_getpc_b64 {r('t45', 2, 2)}")
e(f"global_load_dword {r('pre')}, {r('tc')}, {r('t45', 2, 2)}", "pre")
e(f"v_and_b32 {r('lane')}, 63, v0")
e(f"v_lshrrev_b32 {r('ta')}, 6, v0")
e(f"s_and_b32 {T0}, s2, 7")
e(f"v_readfirstlane_b32 {r('wave')}, {r('ta')}")
if MAP1 == 8:
    e(f"s_lshr_b32 {T2}, {T1_}, 4")
    e(f"s_lshl_b32 {r('T1')}, {T0}, 1")
    e(f"s_add_u32 {r('T1')}, {r('T1')}, {T2}")
    e(f"s_and_b32 {r('q')}, {T1_}, 15")
    e(f"s_lshl_b32 {T2}, {T2}, 2")
    e(f"s_add_u32 {r('rot')}, {T2}, {r('q')}")
else:
    e(f"s_lshr_b32 {T2}, {T0}, 1")
    e(f"s_lshl_b32 {T2}, {T2}, 2")
    e(f"s_lshr_b32 {T3}, {T1_}, 3")
    e(f"s_add_u32 {r('T1')}, {T2}, {T3}")
    e(f"s_and_b32 {T2}, {T0}, 1")
    e(f"s_lshl_b32 {T2}, {T2}, 3")
    e(f"s_add_u32 {T3}, {T1_}, {int(opt.get('jrot', 0))}")
    e(f"s_and_b32 {T3}, {T3}, 7")
    e(f"s_add_u32 {r('q')}, {T2}, {T3}")
    e(f"s_lshl_b32 {T2}, {r('T1')}, 1")
    e(f"s_add_u32 {r('rot')}, {T2}, {r('q')}")
e(f"s_and_b32 {r('rot')}, {r('rot')}, 7")
e(f"s_lshr_b32 {T2}, {r('q')}, 3")
e(f"s_lshl_b32 {r('tt2')}, {r('T1')}, 1")
e(f"s_add_u32 {r('tt2')}, {r('tt2')}, {T2}")
e(f"s_and_b32 {r('ns')}, {r('q')}, 7")
V("k0"); V("kd", 2, align=1); V("sho")
e(f"v_lshrrev_b32 {r('r8')}, 3, {r('lane')}")
e(f"v_and_b32 {r('pc')}, 7, {r('lane')}")
e(f"s_lshl_b32 {T2}, {r('tt2')}, 2")
e(f"s_add_u32 {r('tok16')}, {T2}, {r('wave')}")
e(f"s_lshl_b32 {T2}, {r('tok16')}, 14")
e(f"s_lshl_b32 {r('ns128')}, {r('ns')}, 7")
e(f"s_add_u32 {r('tile0')}, {T2}, {r('ns128')}")
e(f"s_mul_i32 {r('own')}, {r('wave')}, 12288")
e(f"s_add_u32 {r('own')}, {r('own')}, {XST}")
S("sA", 4); S("sB", 4); S("sX", 4); S("sW1", 4); S("sWS", 4)
for nm, sz in (("sX", 2097152), ("sW1", 1409024)):
    e(f"s_mov_b32 {r(nm,2,1)}, {sz}")
    e(f"s_mov_b32 {r(nm,3,1)}, 0x00020000")
for c in range(3):
    e(f"v_add_u32 {r('ta')}, {64 * c}, {r('lane')}")
    e(f"v_mul_u32_u24 {r('tb')}, 43691, {r('ta')}")
    e(f"v_lshrrev_b32 {r('tb')}, 19, {r('tb')}")
    e(f"v_mul_u32_u24 {r('tc')}, 12, {r('tb')}")
    e(f"v_sub_u32 {r('tc')}, {r('ta')}, {r('tc')}")
    e(f"v_lshrrev_b32 {r('td')}, 2, {r('tb')}")
    e(f"v_and_b32 {r('td')}, 2, {r('td')}")
    e(f"v_xor_b32 {r('tc')}, {r('tc')}, {r('td')}")
    e(f"v_mul_u32_u24 {r('tb')}, 2752, {r('tb')}")
    e(f"v_lshl_add_u32 {r('tb')}, {r('tc')}, 4, {r('tb')}")
    e(f"v_subrev_u32 {r('w1s', c, 1)}, {1024 * c}, {r('tb')}")
e(f"s_mul_i32 {r('b0')}, {r('q')}, 3")
e(f"s_lshr_b32 {T2}, {r('q')}, 2")
e(f"s_sub_u32 {r('b0')}, {r('b0')}, {T2}")
e(f"s_min_u32 {T2}, {r('q')}, 1")
e(f"s_sub_u32 {r('b0')}, {r('b0')}, {T2}")
e(f"s_bitcmp1_b32 0x8889, {r('q')}")
e(f"s_cselect_b32 {r('nown')}, 2, 3")
S("w1lds"); S("xbase"); S("xk"); S("wo"); S("wlim")
e(f"s_lshl_b32 {T3}, {r('b0')}, 6")
e(f"s_lshl_b32 {T2}, {r('T1')}, 2")
e(f"s_add_u32 {T2}, {T2}, {r('wave')}")
e(f"s_lshl_b32 {r('xbase')}, {T2}, 15")
e(f"s_lshl_b32 {r('xk')}, {r('rot')}, 7")
e(f"s_mul_i32 {T4}, {r('wave')}, {16 * 2752}")
e(f"s_add_u32 {T4}, {T4}, {T3}")
e(f"s_add_u32 {r('wlim')}, {T4}, {512 * 2752}")
e(f"s_mul_i32 {T2}, {r('rot')}, {64 * 2752}")
e(f"s_add_u32 {r('wo')}, {T2}, {T4}")
e(f"s_mul_i32 {r('w1lds')}, {r('wave')}, 3072")
e(f"s_add_u32 {r('w1lds')}, {r('w1lds')}, {WR}")
e(f"v_lshrrev_b32 {r('ta')}, 1, {r('r8')}")
e(f"v_xor_b32 {r('ta')}, {r('ta')}, {r('pc')}")
e(f"v_lshlrev_b32 {r('ta')}, 4, {r('ta')}")
e(f"v_lshl_add_u32 {r('xs', 0, 1)}, {r('r8')}, 10, {r('ta')}")
e(f"v_xor_b32 {r('tb')}, 64, {r('xs', 0, 1)}")
e(f"v_add_u32 {r('xs', 1, 1)}, 7168, {r('tb')}")
e(f"v_add_u32 {r('xs', 2, 1)}, {2 * 7168}, {r('xs', 0, 1)}")
e(f"v_add_u32 {r('xs', 3, 1)}, {3 * 7168}, {r('tb')}")
g.wait(lg=0)
e(f"s_mov_b64 {r('sX',0,2)}, {ptr(0)}")
e(f"s_mov_b64 {r('sW1',0,2)}, {ptr(7)}")


def dmaW1(n):
    items = []
    for c in range(3):
        def it(c=c):
            if c == 0:
                e(f"s_add_u32 m0, {r('w1lds')}, {(n % 4) * 12288}")
                if n:
                    e(f"s_cmp_ge_u32 {r('wo')}, {r('wlim')}")
                    e(f"s_cselect_b32 {T2}, {512 * 2752}, 0")
                    e(f"s_sub_u32 {r('wo')}, {r('wo')}, {T2}")
            e(f"buffer_load_dwordx4 {r('w1s', c, 1)}, {r('sW1')}, {r('wo')} offen offset:{1024 * c} lds", f"W{n}")
            if c == 2:
                e(f"s_add_u32 {r('wo')}, {r('wo')}, {64 * 2752}")
        items.append(It(it, (2, 1.2, 1.5)[c]))
    return items


def dmaX(ei):
    items = []
    for n in range(4):
        def it(n=n):
            xo = r("so")
            if n == 0:
                e(f"s_add_u32 m0, {r('own')}, {(ei % 3) * 4096}")
                e(f"s_or_b32 {xo}, {r('xk')}, {r('xbase')}")
            pol = XPOL0 if ei < 1 else ""
            e(f"buffer_load_dwordx4 {r('xs', n, 1)}, {r('sX')}, {xo} offen offset:{1024 * n} {pol} lds", f"X{ei}")
            if n == 1:
                e(f"s_add_u32 {r('xk')}, {r('xk')}, 128")
            if n == 2:
                e(f"s_and_b32 {r('xk')}, {r('xk')}, 0x3ff")
        items.append(It(it, (1.8, 1.5, 1.5, 1.2)[n]))
    return items


srd("sWS", 13, WSZ, add=(int(opt.get("wsb", 0)) << 20) or None)
V("sx", 8, at=200); V("sacc", 4); V("u", 4); V("gq", 4); V("stv", 2)
e(f"v_mov_b32 {r('zero')}, 0")
e(f"s_mov_b32 {T0}, {EPOCH}")
e("s_mov_b64 exec, 1")
e(f"buffer_load_dwordx2 {r('pf')}, {r('zero')}, {r('sWS')}, {T0} offen sc1", "ep")
e("s_mov_b64 exec, -1")
e(f"v_lshrrev_b32 {r('ta')}, 5, {r('lane')}")
e(f"v_and_b32 {r('tb')}, 31, {r('lane')}")
e(f"v_lshlrev_b32 {r('tb')}, 4, {r('tb')}")
e(f"v_lshl_add_u32 {r('tb')}, {r('ta')}, 10, {r('tb')}")
e(f"s_lshl_b32 {T2}, {r('T1')}, 4")
e(f"s_add_u32 {T2}, {T2}, {r('q')}")
e(f"s_lshl_b32 {T2}, {T2}, 2")
e(f"s_add_u32 {T2}, {T2}, {r('wave')}")
e(f"s_lshl_b32 {T3}, {T2}, 11")
e(f"buffer_load_dwordx4 {r('sx', 0, 4)}, {r('tb')}, {r('sX')}, {T3} offen", "sx")
e(f"buffer_load_dwordx4 {r('sx', 4, 4)}, {r('tb')}, {r('sX')}, {T3} offen offset:512", "sx")
e(f"s_lshl_b32 {T2}, {T2}, 6")
e(f"s_add_u32 {T2}, {T2}, {STA}")
e(f"v_lshl_add_u32 {r('stw')}, {r('lane')}, 4, {T2}")
run(dmaX(0) + dmaW1(0) + dmaW1(1))
S("sD")
e(f"s_lshl_b32 {T2}, s2, 2")
e(f"s_load_dword {r('sD')}, {ptr(5)}, {T2}")
stamp("p0iss")
g.free("ptr0", "ptr6", "ptr7", "ptr13", "karg", "rot", "ptr5")
S("tag", 2)
if not DBG:
    g.free("ptr12")
e(f"v_lshlrev_b32 {r('tb')}, 4, {r('pc')}")
e(f"v_lshl_add_u32 {r('ta')}, {r('r8')}, 11, {r('tb')}")
KVX = int(opt.get("kvx", 4))
e(f"s_xor_b32 {T4}, {r('tile0')}, {128 * KVX}")
e(f"v_add_u32 {r('k0')}, {T4}, {r('ta')}")
e(f"v_lshl_add_u32 {r('ta')}, {r('r8')}, 10, {r('tb')}")
e(f"v_add_u32 {r('kd', 1, 1)}, {T4}, {r('ta')}")
e(f"v_subrev_u32 {r('kd', 0, 1)}, 8192, {r('kd', 1, 1)}")
e(f"v_lshlrev_b32 {r('l16')}, 4, {r('lane')}")
e(f"s_lshl_b32 {T3}, {r('ns')}, 9")
e(f"s_xor_b32 {T3}, {T3}, {512 * KVX}")
e(f"v_add_u32 {r('sho')}, {T3}, {r('l16')}")
e(f"v_mov_b32 {r('zero')}, 0")
S("wodd"); S("whi"); S("chan"); V("sa"); V("sb"); V("bb", 2, align=1)
e(f"s_and_b32 {r('wodd')}, {r('wave')}, 1")
e(f"s_lshr_b32 {r('whi')}, {r('wave')}, 1")
e(f"s_lshl_b32 {T2}, s2, 1")
e(f"s_add_u32 {r('chan')}, {T2}, {r('whi')}")
e(f"s_lshl_b32 {r('chan')}, {r('chan')}, 12")
e(f"s_add_u32 {plo(4)}, {plo(4)}, {r('chan')}")
e(f"s_addc_u32 {phi(4)}, {phi(4)}, 0")
e(f"s_lshl_b32 {T3}, {r('wodd')}, 11")
e(f"v_add_u32 {r('sa')}, {T3}, {r('l16')}")
e(f"v_subrev_u32 {r('sb')}, 8, {r('sa')}")
S("kim")
e(f"s_lshl_b32 {r('kim')}, {r('wave')}, 12")
e(f"s_add_u32 {r('kim')}, {r('kim')}, {S4}")
srd("sA", 1, 2097152)
srd("sB", 2, 2097152)
g.free("ptr1", "ptr2")
lateA, lateB, lateC = [], [], []
S("L0"); S("L2"); S("L3"); S("L4")
V("kvw"); V("kvr"); V("kvs"); V("kra"); V("sra"); V("bw", 2, align=1)
e(f"v_and_b32 {r('i15')}, 15, {r('lane')}")
e(f"v_lshrrev_b32 {r('h4')}, 4, {r('lane')}")
e(f"v_add_u32 {r('oa')}, {r('own')}, {r('l16')}")
e(f"v_lshlrev_b32 {r('ta')}, 4, {r('pc')}")
e(f"v_lshl_add_u32 {r('ta')}, {r('r8')}, 8, {r('ta')}")
e(f"v_add_u32 {r('kra')}, {r('kim')}, {r('ta')}")
e(f"v_lshl_add_u32 {r('sra')}, {r('pc')}, 6, {r('kim')}")
e(f"v_lshrrev_b32 {r('ta')}, 1, {r('i15')}")
e(f"v_xor_b32 {r('ta')}, {r('ta')}, {r('h4')}")
e(f"v_lshlrev_b32 {r('ta')}, 4, {r('ta')}")
e(f"v_lshl_add_u32 {r('ta')}, {r('i15')}, 7, {r('ta')}")
e(f"v_add_u32 {r('xrd', 0, 1)}, {r('own')}, {r('ta')}")
e(f"v_xor_b32 {r('xrd', 1, 1)}, 64, {r('xrd', 0, 1)}")
e(f"v_lshrrev_b32 {r('ta')}, 2, {r('i15')}")
e(f"v_lshl_add_u32 {r('ta')}, {r('h4')}, 3, {r('ta')}")
e(f"v_mul_u32_u24 {r('ta')}, 192, {r('ta')}")
e(f"v_and_b32 {r('tb')}, 3, {r('lane')}")
e(f"v_lshl_add_u32 {r('ta')}, {r('tb')}, 3, {r('ta')}")
e(f"v_add_u32 {r('ta')}, {WR}, {r('ta')}")
e(f"v_and_b32 {r('tb')}, 1, {r('h4')}")
e(f"v_lshlrev_b32 {r('tb')}, 5, {r('tb')}")
e(f"v_add_u32 {r('tc')}, {r('ta')}, {r('tb')}")
e(f"v_sub_u32 {r('td')}, {r('ta')}, {r('tb')}")
S("bp", 3, align=1)
for jp in range(3):
    e(f"s_add_u32 {T2}, {r('wave')}, {jp}")
    e(f"s_cmp_ge_u32 {T2}, 3")
    e(f"s_cselect_b32 {T3}, 3, 0")
    e(f"s_sub_u32 {r('bp', jp, 1)}, {T2}, {T3}")
    e(f"s_lshl_b32 {T2}, {r('bp', jp, 1)}, 6")
    e(f"v_add_u32 {r('w1r', 2 * jp, 1)}, {T2}, {r('tc')}")
    e(f"v_add_u32 {r('w1r', 2 * jp + 1, 1)}, {T2}, {r('td')}")
e(f"v_mul_u32_u24 {r('ta')}, 1040, {r('pc')}")
e(f"v_lshlrev_b32 {r('tb')}, 2, {r('r8')}")
e(f"v_sub_u32 {r('ta')}, {r('ta')}, {r('tb')}")
e(f"s_lshl_b32 {T2}, {r('wave')}, 5")
e(f"s_sub_u32 {T2}, {KVIMG + 124}, {T2}")
e(f"v_add_u32 {r('kvw')}, {T2}, {r('ta')}")
e(f"s_mul_i32 {T2}, {r('wave')}, 2080")
e(f"s_add_u32 {T2}, {T2}, {KVIMG}")
e(f"v_add_u32 {r('kvr')}, {T2}, {r('l16')}")
e(f"v_mul_u32_u24 {r('ta')}, {KP}, {r('r8')}")
e(f"v_lshl_add_u32 {r('kvs')}, {r('pc')}, 4, {r('ta')}")
e(f"v_mov_b32 {r('ta')}, 0x3f803f80")
for i in range(4):
    e(f"v_accvgpr_write_b32 {r('ones', i, 1)}, {r('ta')}")
e(f"s_mov_b32 {r('hmask')}, 0xffff0000")
S("kvo")
e(f"s_lshl_b32 {T2}, {r('ns')}, 2")
e(f"s_xor_b32 {T2}, {T2}, {4 * KVX}")
e(f"s_add_u32 {T2}, {T2}, {r('wave')}")
e(f"s_mul_i32 {r('f1a')}, {T2}, {G1S}")
e(f"s_lshl_b32 {T3}, {r('tt2')}, {L1S}")
e(f"s_add_u32 {r('f1a')}, {r('f1a')}, {T3}")
e(f"s_add_u32 {r('f1a')}, {r('f1a')}, {F1B}")
e(f"s_mul_i32 {T2}, {T2}, {16 * KP}")
e(f"s_sub_u32 {T3}, 31, {r('tt2')}")
e(f"s_lshl_b32 {T3}, {T3}, 7")
e(f"s_add_u32 {r('kvo')}, {T2}, {T3}")
LATE = lateB
e(f"s_lshl_b32 {T2}, {r('T1')}, 1")
e(f"s_add_u32 {T2}, {T2}, {r('whi')}")
e(f"s_mul_i32 {r('f2a')}, {T2}, {G2S}")
e(f"s_lshl_b32 {T2}, {r('q')}, 1")
e(f"s_add_u32 {T2}, {T2}, {r('wodd')}")
e(f"s_lshl_b32 {T2}, {T2}, {L2S}")
e(f"s_add_u32 {r('f2a')}, {r('f2a')}, {T2}")
e(f"s_add_u32 {r('f2a')}, {r('f2a')}, {F2B}")
e(f"s_lshr_b32 {T2}, {r('chan')}, 18")
e(f"s_lshl_b32 {T2}, {T2}, 1")
e(f"s_add_u32 {T2}, {T2}, {r('wodd')}")
e(f"s_mul_i32 {r('f3a')}, {T2}, {G3S}")
e(f"s_lshr_b32 {T2}, {r('chan')}, 12")
e(f"s_and_b32 {T2}, {T2}, 63")
e(f"s_lshl_b32 {T2}, {T2}, {L3S}")
e(f"s_add_u32 {r('f3a')}, {r('f3a')}, {T2}")
e(f"s_add_u32 {r('f3a')}, {r('f3a')}, {F3B}")
e(f"v_lshlrev_b32 {r('tc')}, 3, {r('lane')}")
e(f"v_add_u32 {r('zt')}, {r('own')}, {r('tc')}")
e(f"s_mul_i32 {T2}, {T1_}, {G1S}")
e(f"s_add_u32 {T2}, {T2}, {F1B}")
e(f"v_lshrrev_b32 {r('pf1o')}, 1, {r('lane')}")
e(f"v_lshl_add_u32 {r('pf1o')}, {r('pf1o')}, {L1S}, {T2}")
e(f"s_lshr_b32 {T2}, {r('tt2')}, 4")
e(f"s_lshl_b32 {T3}, {r('ns')}, 1")
e(f"s_add_u32 {T2}, {T2}, {T3}")
e(f"s_mul_i32 {T2}, {T2}, {G3S}")
e(f"s_add_u32 {T2}, {T2}, {F3B}")
e(f"v_lshl_add_u32 {r('pf3o')}, {r('lane')}, {L3S}, {T2}")
e(f"v_min_u32 {r('pf2o')}, 9, {r('lane')}")
e(f"s_lshl_b32 {T2}, {r('wave')}, 3")
e(f"v_add_u32 {r('pf2o')}, {T2}, {r('pf2o')}")
e(f"v_min_u32 {r('pf2o')}, 31, {r('pf2o')}")
e(f"s_mul_i32 {T2}, {r('tt2')}, {G2S}")
e(f"s_add_u32 {T2}, {T2}, {F2B}")
e(f"v_lshl_add_u32 {r('pf2o')}, {r('pf2o')}, {L2S}, {T2}")
LATE = None
e(f"v_min_u32 {r('ta')}, 47, {r('lane')}")
e(f"v_lshlrev_b32 {r('bw', 0, 1)}, 3, {r('ta')}")
e(f"v_add_u32 {r('bw', 0, 1)}, {B1T}, {r('bw', 0, 1)}")
e(f"s_lshl_b32 {T2}, {r('b0')}, 6")
e(f"v_lshl_add_u32 {r('bb', 0, 1)}, {r('ta')}, 2, {T2}")
e(f"v_min_u32 {r('bb', 0, 1)}, 2748, {r('bb', 0, 1)}")
e(f"v_and_b32 {r('ta')}, 31, {r('lane')}")
e(f"v_lshlrev_b32 {r('bw', 1, 1)}, 3, {r('ta')}")
e(f"v_add_u32 {r('bw', 1, 1)}, {B2T}, {r('bw', 1, 1)}")
e(f"v_lshl_add_u32 {r('bb', 1, 1)}, {r('ta')}, 2, {r('ns128')}")
LATE = lateA
e(f"v_and_b32 {r('ta')}, 6, {r('r8')}")
e(f"v_xor_b32 {r('ta')}, {r('ta')}, {r('pc')}")
e(f"v_lshlrev_b32 {r('ta')}, 4, {r('ta')}")
e(f"v_lshl_add_u32 {r('w2s', 0, 1)}, {r('r8')}, 10, {r('ta')}")
e(f"v_add_u32 {r('w2s', 0, 1)}, {r('ns128')}, {r('w2s', 0, 1)}")
for n in range(1, 4):
    e(f"v_add_u32 {r('w2s', n, 1)}, {7168 * n}, {r('w2s', 0, 1)}")
e(f"v_lshrrev_b32 {r('ta')}, 2, {r('i15')}")
e(f"v_lshl_add_u32 {r('ta')}, {r('h4')}, 2, {r('ta')}")
e(f"v_lshrrev_b32 {r('tb')}, 1, {r('ta')}")
e(f"v_and_b32 {r('tb')}, 3, {r('tb')}")
e(f"v_lshlrev_b32 {r('tb')}, 5, {r('tb')}")
e(f"v_lshl_add_u32 {r('tb')}, {r('ta')}, 7, {r('tb')}")
e(f"v_and_b32 {r('ta')}, 3, {r('lane')}")
e(f"v_lshl_add_u32 {r('tb')}, {r('ta')}, 3, {r('tb')}")
e(f"v_add_u32 {r('w2r', 0, 1)}, {r('own')}, {r('tb')}")
S("w4k")
e(f"s_lshl_b32 {r('w4k')}, {r('wave')}, 12")
e(f"v_add_u32 {r('w2r', 4, 1)}, {r('w4k')}, {r('tb')}")
for nb in range(1, 4):
    e(f"v_xor_b32 {r('w2r', nb, 1)}, {32 * nb}, {r('w2r', 0, 1)}")
    e(f"v_xor_b32 {r('w2r', 4 + nb, 1)}, {32 * nb}, {r('w2r', 4, 1)}")
for p in range(11):
    S(f"kb{p}")
e(f"s_lshr_b32 {T0}, {T1_}, 3")
e(f"s_mul_i32 {T0}, {T0}, 3")
e(f"s_mul_i32 {T2}, {r('ns')}, 11")
e(f"s_lshr_b32 {T2}, {T2}, 3")
e(f"s_add_u32 {T0}, {T0}, {T2}")
e(f"s_cmp_ge_u32 {T0}, 11")
e(f"s_cselect_b32 {T2}, 11, 0")
e(f"s_sub_u32 {T0}, {T0}, {T2}")
e(f"s_mul_i32 {T3}, {r('wave')}, 11")
e(f"s_add_u32 {T0}, {T0}, {T3}")
e(f"s_add_u32 {T3}, {T3}, 11")
for p in range(11):
    e(f"s_lshl_b32 {r(f'kb{p}')}, {T0}, 15")
    if p < 10:
        e(f"s_add_u32 {T0}, {T0}, 1")
        e(f"s_cmp_ge_u32 {T0}, {T3}")
        e(f"s_cselect_b32 {T2}, 11, 0")
        e(f"s_sub_u32 {T0}, {T0}, {T2}")
LATE = None
LATE = lateB
e(f"v_and_b32 {r('ta')}, 3, {r('lane')}")
e(f"v_mul_u32_u24 {r('fa')}, {FP}, {r('ta')}")
e(f"v_lshrrev_b32 {r('tb')}, 2, {r('i15')}")
e(f"v_add_u32 {r('tb')}, {r('tb')}, {r('h4')}")
e(f"v_lshl_add_u32 {r('fa')}, {r('tb')}, 4, {r('fa')}")
e(f"s_lshl_b32 {T4}, {r('wodd')}, 8")
e(f"s_mul_i32 {T2}, {r('whi')}, {4 * FP}")
e(f"s_add_u32 {T3}, {T4}, {T2}")
e(f"v_add_u32 {r('fa')}, {T3}, {r('fa')}")
e(f"v_and_b32 {r('tc')}, 1, {r('lane')}")
e(f"v_mul_u32_u24 {r('ga')}, {GP}, {r('tc')}")
e(f"v_lshrrev_b32 {r('td')}, 1, {r('i15')}")
e(f"v_lshlrev_b32 {r('td')}, 2, {r('td')}")
e(f"v_sub_u32 {r('td')}, {r('h4')}, {r('td')}")
e(f"v_add_u32 {r('td')}, 28, {r('td')}")
e(f"v_lshl_add_u32 {r('ga')}, {r('td')}, 4, {r('ga')}")
e(f"s_mul_i32 {T3}, {r('whi')}, {2 * GP}")
e(f"s_add_u32 {T3}, {T3}, {T4}")
e(f"s_add_u32 {T3}, {T3}, {UB0}")
e(f"v_add_u32 {r('ga')}, {T3}, {r('ga')}")
e(f"s_lshl_b32 {T3}, {r('whi')}, 4")
e(f"s_lshr_b32 {r('sD')}, {r('sD')}, {T3}")
e(f"s_and_b32 {r('sD')}, {r('sD')}, 0xffff")
e(f"s_cmp_eq_u32 {r('wodd')}, 0")
e(f"s_cselect_b32 {r('sD')}, {r('sD')}, 0")
e(f"v_xor_b32 {r('tc')}, 1, {r('tc')}")
e(f"v_lshlrev_b32 {r('tc')}, 4, {r('tc')}")
e(f"v_lshlrev_b32_e64 {r('tc')}, {r('tc')}, {r('sD')}")
e(f"v_cmp_eq_u32 vcc, 3, {r('tb')}")
e(f"v_cndmask_b32 {r('tc')}, 0, {r('tc')}, vcc")
e(f"v_cmp_lt_u32 vcc, 1, {r('ta')}")
e(f"v_cndmask_b32 {r('td')}, 0, {r('tc')}, vcc")
e(f"v_sub_u32 {r('tc')}, {r('tc')}, {r('td')}")
e(f"v_accvgpr_write_b32 {r('fd', 0, 1)}, {r('td')}")
e(f"v_accvgpr_write_b32 {r('fd', 1, 1)}, {r('tc')}")
e(f"v_accvgpr_write_b32 {r('fd', 2, 1)}, 0")
e(f"v_accvgpr_write_b32 {r('fd', 3, 1)}, 0")
e(f"s_add_u32 {T3}, {T2}, 48")
e(f"v_add_u32 {r('kw')}, {T3}, {r('sa')}")
e(f"s_mul_i32 {r('um0')}, {r('wave')}, {GP}")
e(f"s_add_u32 {r('um0')}, {r('um0')}, {UB0}")
e(f"s_lshl_b32 {T3}, {r('wodd')}, 3")
e(f"s_sub_u32 {r('ush')}, 8, {T3}")
e(f"s_add_u32 {T4}, {r('um0')}, 4096")
e(f"v_add_u32 {r('za')}, {T4}, {r('l16')}")
e(f"v_subrev_u32 {r('ta')}, 28, {r('lane')}")
e(f"v_min_u32 {r('ta')}, 5, {r('ta')}")
e(f"v_cmp_lt_u32 vcc, 2, {r('ta')}")
e(f"v_lshlrev_b32 {r('ta')}, 4, {r('ta')}")
e(f"v_add_u32 {r('tb')}, {FP - 48}, {r('ta')}")
e(f"v_cndmask_b32 {r('ta')}, {r('ta')}, {r('tb')}, vcc")
e(f"s_mul_i32 {T3}, {r('wave')}, {2 * FP}")
e(f"v_add_u32 {r('ta')}, {T3}, {r('ta')}")
e(f"v_cmp_lt_u32 vcc, 27, {r('lane')}")
e(f"v_cndmask_b32 {r('za')}, {r('za')}, {r('ta')}, vcc")
e(f"s_xor_b32 {T2}, {r('wave')}, 1")
e(f"s_mul_i32 {T2}, {T2}, 12288")
e(f"s_add_u32 {T2}, {T2}, {XST}")
e(f"v_add_u32 {r('pa')}, {T2}, {r('l16')}")
e(f"v_lshrrev_b32 {r('ta')}, 1, {r('i15')}")
e(f"v_lshlrev_b32 {r('ta')}, 6, {r('ta')}")
e(f"v_and_b32 {r('tb')}, 1, {r('lane')}")
e(f"v_lshl_add_u32 {r('ta')}, {r('tb')}, 3, {r('ta')}")
e(f"v_lshl_add_u32 {r('ta')}, {r('h4')}, 4, {r('ta')}")
e(f"v_add_u32 {r('yw')}, {r('own')}, {r('ta')}")
e(f"s_lshl_b32 {T3}, {r('wodd')}, 11")
e(f"s_lshr_b32 {r('chan')}, {r('chan')}, 12")
e(f"s_mul_i32 {r('chan')}, {r('chan')}, {KP}")
e(f"s_add_u32 {T2}, {r('chan')}, {T3}")
e(f"s_add_u32 {r('yo')}, {T2}, {YT}")
LATE = None
LATE = lateC
e(f"v_lshrrev_b32 {r('zs')}, 1, {r('lane')}")
e(f"v_mul_u32_u24 {r('zs')}, {KP}, {r('zs')}")
e(f"v_and_b32 {r('tb')}, 1, {r('lane')}")
e(f"v_lshl_add_u32 {r('zs')}, {r('tb')}, 4, {r('zs')}")
e(f"s_mul_i32 {T2}, {r('ns')}, {64 * KP}")
e(f"s_lshl_b32 {T3}, {r('tok16')}, 5")
e(f"s_add_u32 {T2}, {T2}, {T3}")
e(f"s_add_u32 {r('zo')}, {T2}, {YT}")
for s in range(4):
    e(f"s_add_u32 {T2}, {r('wave')}, {s + 1}")
    e(f"s_and_b32 {T2}, {T2}, 3")
    e(f"s_mul_i32 {T3}, {T2}, 12288")
    if s < 3:
        if PX + 4096 * s:
            e(f"s_add_u32 {T3}, {T3}, {PX + 4096 * s}")
        e(f"v_lshl_add_u32 {r('pw', s, 1)}, {r('lane')}, 3, {T3}")
    else:
        e(f"s_add_u32 {T3}, {T3}, {PX}")
        e(f"v_lshl_add_u32 {r('psr')}, {r('lane')}, 3, {T3}")
    e(f"s_lshl_b32 {T3}, {r('tt2')}, 2")
    e(f"s_add_u32 {T2}, {T2}, {T3}")
    e(f"s_mul_i32 {T2}, {T2}, 44032")
    e(f"s_add_u32 {T2}, {T2}, {HB + HALT}")
    e(f"v_add_u32 {r('hv', s, 1)}, {T2}, {r('l16')}")
e(f"v_lshrrev_b32 {r('ta')}, 1, {r('i15')}")
e(f"v_lshrrev_b32 {r('tb')}, 1, {r('h4')}")
e(f"v_xor_b32 {r('ta')}, {r('ta')}, {r('tb')}")
e(f"v_lshlrev_b32 {r('ta')}, 4, {r('ta')}")
e(f"v_lshl_add_u32 {r('ta')}, {r('i15')}, 7, {r('ta')}")
e(f"v_and_b32 {r('tc')}, 1, {r('h4')}")
e(f"v_lshl_add_u32 {r('ta')}, {r('tc')}, 3, {r('ta')}")
e(f"v_add_u32 {r('ea', 0, 1)}, {r('own')}, {r('ta')}")
for nb in range(1, 4):
    e(f"v_xor_b32 {r('ea', nb, 1)}, {32 * nb}, {r('ea', 0, 1)}")
e(f"s_lshl_b32 {T2}, {r('tok16')}, 9")
e(f"s_add_u32 {T2}, {T2}, {STB}")
e(f"v_lshl_add_u32 {r('svr')}, {r('i15')}, 5, {T2}")
LATE = None
LATE = lateA
e(f"v_lshrrev_b32 {r('tb')}, 1, {r('h4')}")
e(f"s_lshr_b32 {T2}, {r('xbase')}, 5")
e(f"s_add_u32 {T2}, {T2}, {STA}")
e(f"v_lshl_add_u32 {r('sgo')}, {r('i15')}, 5, {T2}")
e(f"v_lshl_add_u32 {r('sgo')}, {r('tb')}, 9, {r('sgo')}")
LATE = None
S("m1", 2)
e(f"s_mov_b32 {r('m1', 0, 1)}, 0xaaaaaaaa"); e(f"s_mov_b32 {r('m1', 1, 1)}, 0xaaaaaaaa")
LATE = lateA
e(f"v_lshlrev_b32 {r('ta')}, 4, {r('h4')}")
e(f"v_add_u32 {r('csr0')}, {CSX}, {r('ta')}")
for jp in range(3):
    g.names[f"ho{jp}"] = ("s", g.names["bp"][1] + jp, 1)
e(f"s_lshl_b32 {T2}, {r('T1')}, 2")
e(f"s_add_u32 {T2}, {T2}, {r('wave')}")
e(f"s_mul_i32 {T2}, {T2}, 86")
e(f"s_add_u32 {T2}, {T2}, {r('b0')}")
for jp in range(3):
    e(f"s_lshl_b32 {T3}, {r('bp', jp, 1)}, 7")
    e(f"v_add_u32 {r('ctr', jp, 1)}, {T3}, {r('csr0')}")
    e(f"s_add_u32 {T3}, {T2}, {r('bp', jp, 1)}")
    e(f"s_lshl_b32 {T3}, {T3}, 10")
    e(f"s_add_u32 {T3}, {T3}, {HB}")
    e(f"s_cmp_lt_u32 {r('bp', jp, 1)}, {r('nown')}")
    e(f"s_cselect_b32 {r(f'ho{jp}')}, {T3}, 0x7f000000")
for i in range(4):
    e(f"v_accvgpr_write_b32 {r('zz', i, 1)}, 0")
LATE = None
if TOUCH:
    V("tB", 2)
    wlo, whi_ = r("sWS", 0, 1), r("sWS", 1, 1)
    ent = [(r("sA", 0, 1), r("sA", 1, 1), r("tile0")), (r("sB", 0, 1), r("sB", 1, 1), r("tile0")), (plo(3), phi(3), None),
           (plo(4), phi(4), None), (plo(8), phi(8), None), (plo(10), phi(10), None),
           (plo(9), phi(9), None), (plo(9), phi(9), 1 << 20), (plo(11), phi(11), r("tile0")),
           (wlo, whi_, EPOCH + 256), (wlo, whi_, FL + 4096), (wlo, whi_, r("kvo")),
           (wlo, whi_, r("chan")), (wlo, whi_, HB + 64), (wlo, whi_, r("yo")), (wlo, whi_, r("zo")),
           (wlo, whi_, HB + 0x100000), (wlo, whi_, HB + 0x200000), (wlo, whi_, HB + 0x300000), (wlo, whi_, HB + 0x400000),
           (wlo, whi_, HB + 0x500000), (wlo, whi_, HB), (wlo, whi_, YT + 0x100000), (wlo, whi_, 0x100000)]
    e(f"v_mov_b32 {r('tB', 0, 1)}, {wlo}")
    e(f"v_mov_b32 {r('tB', 1, 1)}, {whi_}")
    for k, (lo, hi, off) in enumerate(ent):
        if off is None:
            e(f"v_writelane_b32 {r('tB', 0, 1)}, {lo}, {k}")
            e(f"v_writelane_b32 {r('tB', 1, 1)}, {hi}, {k}")
        else:
            e(f"s_add_u32 {T2}, {lo}, {off}")
            e(f"s_addc_u32 {T3}, {hi}, 0")
            e(f"v_writelane_b32 {r('tB', 0, 1)}, {T2}, {k}")
            e(f"v_writelane_b32 {r('tB', 1, 1)}, {T3}, {k}")
    e(f"s_mul_i32 {T2}, {r('wave')}, 6")
    e(f"s_lshl_b32 exec_lo, 63, {T2}")
    e("s_mov_b32 exec_hi, 0")
    if TOUCH == 2:
        e("s_mov_b32 exec_lo, 0xffffff")
    e(f"global_load_dword {r('pre')}, {r('tB')}, off sc1", "touch")
    e("s_mov_b64 exec, -1")
    g.free("tB")
stamp("setup")
g.free("tid")


def late_items(lst):
    ren = {"s3": r("L0"), "s5": r("L2"), "s6": r("L3"), "s7": r("L4")}
    txt = [re.sub(r"\bs[3567]\b", lambda m: ren[m.group(0)], x) for x in lst]
    items, grp = [], []
    for x in txt:
        op = x.split()[0]
        if grp or op.startswith(("s_cmp", "v_cmp")):
            grp.append(x)
            if op.startswith(("s_cselect", "v_cndmask")):
                items.append(grp); grp = []
        else:
            items.append([x])
    assert not grp
    cost = lambda gx: sum(0.3 if y.startswith("s_") else 1 for y in gx)
    return [It(lambda gx=gx: [e(y) for y in gx], cost(gx)) for gx in items]


def unpack(dst, doff, src, soff, ndw):
    it = []
    for d in range(ndw):
        it.append(E(f"v_lshlrev_b32 {r(dst, doff + 2 * d, 1)}, 16, {r(src, soff + d, 1)}"))
        it.append(E(f"v_and_b32 {r(dst, doff + 2 * d + 1, 1)}, {r('hmask')}, {r(src, soff + d, 1)}"))
    return it


run(dmaX(1))
LATEAB = int(opt.get("lateab", 1))
if LATEAB < 2:
    run(late_items(lateA)); lateA = []
if LATEAB < 1:
    g.wait(lg=0)
    run(late_items(lateB)); lateB = []
AC("xf", 64, at=64)
AC("wa", 48, at=128)


def xf(K, tb):
    return r("xf", ((K & 7) * 2 + tb) * 4, 4)


def rdX(ei):
    return [W(vm=f"X{ei}")] + [E(f"ds_read_b128 {xf(ei * 2 + k, tb)}, {r('xrd', k, 1)} offset:{(ei % 3) * 4096 + tb * 2048}", f"rx{ei}")
                               for k in range(2) for tb in range(2)]


def wbase(K):
    return ((K >> 1) % 4) * 12288 + (K & 1) * 6144


def rdW(K):
    return [E(f"ds_read_b64_tr_b16 {r('wa', (K & 1) * 24 + fb * 4 + 2 * hf, 2)}, {r('w1r', fb, 1)} offset:{wbase(K) + hf * 768 + (fb & 1) * 32}", f"rw{K}_{fb}")
            for fb in range(6) for hf in range(2)]


g.wait(vm="sx")
e(f"s_mov_b32 {T2}, 0x3f803f80")
for d in range(8):
    e(f"v_dot2_f32_bf16 {r('sacc', d & 1, 1)}, {r('sx', d, 1)}, {T2}, {'0' if d < 2 else r('sacc', d & 1, 1)}")
    e(f"v_dot2_f32_bf16 {r('sacc', 2 + (d & 1), 1)}, {r('sx', d, 1)}, {r('sx', d, 1)}, {'0' if d < 2 else r('sacc', 2 + (d & 1), 1)}")
e(f"v_readfirstlane_b32 {r('tag', 0, 1)}, {r('pf', 0, 1)}")
e(f"v_readfirstlane_b32 {r('tag', 1, 1)}, {r('pf', 1, 1)}")
g.free("sx")
run(rdX(0))
e(f"s_mul_i32 {r('tag', 0, 1)}, {r('tag', 0, 1)}, 0x9E3779B1")
e(f"s_mul_i32 {r('tag', 1, 1)}, {r('tag', 1, 1)}, 0x85EBCA6D")
e(f"s_add_u32 {r('tag', 0, 1)}, {r('tag', 0, 1)}, 0x7F4A7C15")
e(f"s_add_u32 {r('tag', 1, 1)}, {r('tag', 1, 1)}, 0x165667B1")
e(f"v_add_f32 {r('sacc', 0, 1)}, {r('sacc', 0, 1)}, {r('sacc', 1, 1)}")
e(f"v_add_f32 {r('sacc', 2, 1)}, {r('sacc', 2, 1)}, {r('sacc', 3, 1)}")
for i in range(2):
    e(f"v_mov_b32 {r('vtag', i, 1)}, {r('tag', i, 1)}")
    e(f"v_mov_b32 {r('vtag', 2 + i, 1)}, {r('tag', i, 1)}")
    e(f"v_mov_b32 {r('gq', 2 + i, 1)}, {r('tag', i, 1)}")
g.wait(vm="W1" if int(opt.get("nob1", 0)) else "W0")
e("s_barrier")
run(rdW(0))
stamp("x0")

V("acc", 48); AC("cs", 8, at=192)
V("big", 100)
B0 = g.names["big"][1]


def alias(name, off, n):
    g.names[name] = ("v", B0 + off, n)


alias("wf", 0, 32); alias("kf", 32, 40); alias("vr", 64, 8); alias("kr", 72, 20); alias("shr", 48, 16)
alias("vf", 72, 16)
small = [E(f"global_load_dword {r('bb', 0, 1)}, {r('bb', 0, 1)}, {ptr(8)}", "bb"),
         E(f"global_load_dword {r('bb', 1, 1)}, {r('bb', 1, 1)}, {ptr(10)}", "bb"),
         ]
alias("vr", 92, 8)
kvload = [It(lambda: (e(f"s_add_u32 m0, {r('kim')}, 1024"), e(f"s_mov_b32 {T0}, 7168"),
                      e(f"buffer_load_dwordx4 {r('kd', 1, 1)}, {r('sA')}, 0 offen {KPOL} lds", "k")), 2),
          E(f"buffer_load_dwordx4 {r('kd', 1, 1)}, {r('sA')}, {T0} offen offset:1024 {KPOL} lds", "k"),
          E(f"buffer_load_dwordx4 {r('vr', 0, 4)}, {r('k0')}, {r('sB')}, 0 offen {KVPOL}", "k"),
          E(f"buffer_load_dwordx4 {r('vr', 4, 4)}, {r('k0')}, {r('sB')}, 0 offen offset:1024 {KVPOL}", "k"),
          It(lambda: (e(f"s_mov_b32 m0, {r('kim')}"), e("s_mov_b32 exec_lo, 0"), e("s_mov_b32 exec_hi, 0xffffff00"),
                      e(f"buffer_load_dwordx4 {r('kd', 0, 1)}, {r('sA')}, 0 offen lds", "k"), e("s_mov_b64 exec, -1")), 2),
          It(lambda: (e(f"s_add_u32 m0, {r('kim')}, 3072"), e(f"s_mov_b64 {r('sA', 0, 2)}, {ptr(3)}"), e(f"s_mov_b32 {r('sA', 2, 1)}, 4096"),
                      e("s_mov_b32 exec_hi, 0"), e(f"buffer_load_dwordx4 {r('sho')}, {r('sA')}, 0 offen lds", "k"), e("s_mov_b64 exec, -1"),
                      e(f"s_mov_b64 {r('sA', 0, 2)}, {ptr(4)}"), e(f"s_mov_b64 {r('sB', 0, 2)}, {ptr(9)}"), e(f"s_mov_b32 {r('sB', 2, 1)}, 1409024")), 3)]
W2T = int(opt.get("w2t", 1))
if W2T:
    kvload.append(It(lambda: (e(f"s_lshl_b32 {T0}, s2, 2"), e(f"s_add_u32 {T0}, {T0}, {r('wave')}"), e(f"s_mul_i32 {T0}, {T0}, {11 * 128}"),
                              e(f"v_lshlrev_b32 {r('pre')}, 3, {r('l16')}"), e("s_mov_b64 exec, 0x7ff"),
                              e(f"buffer_load_dword {r('pre')}, {r('pre')}, {r('sB')}, {T0} offen", "w2t"), e("s_mov_b64 exec, -1")), 3))
kvrd = [W(vm="k")]
kvrd += [E(f"ds_read_b128 {r('shr', 4 * i, 4)}, {r('sra')} offset:{3072 + 16 * i}", "rs") for i in range(4)]
kvrd += [E(f"ds_read_b128 {r('kr', 4 * k, 4)}, {r('kra')} offset:{640 + 128 * k}", "rk") for k in range(5)]
kvu = [W(lg="rs")]
for c in range(8):
    for j in range(4):
        src = r("shr", 2 * c + (j >> 1), 1)
        if j & 1:
            kvu.append(E(f"v_and_b32 {r('wf', j * 8 + c, 1)}, {r('hmask')}, {src}"))
        else:
            kvu.append(E(f"v_lshlrev_b32 {r('wf', j * 8 + c, 1)}, 16, {src}"))
kvu.append(W(lg="rk"))
kvu += unpack("kf", 0, "kr", 0, 20)
KS = lambda t, cp: r("kr", t * 8 + 2 * cp, 2)
kvc = []
for t in range(2):
    for cp in range(4):
        kvc.append(E(f"v_pk_mul_f32 {KS(t, cp)}, {r('kf', t * 8 + 2 * cp, 2)}, {r('wf', 24 + 2 * cp, 2)}"))
    for j in (2, 1, 0):
        for cp in range(4):
            kvc.append(E(f"v_pk_fma_f32 {KS(t, cp)}, {r('kf', (t + 3 - j) * 8 + 2 * cp, 2)}, {r('wf', j * 8 + 2 * cp, 2)}, {KS(t, cp)}"))
kvc += unpack("wf", 0, "vr", 0, 8)
for t in range(2):
    for cp in range(4):
        kvc.append(E(f"v_pk_mul_f32 {KS(t, cp)}, {KS(t, cp)}, {r('wf', t * 8 + 2 * cp, 2)}"))
alias("kvp", 92, 8)
for c in range(8):
    kvc.append(E(f"v_cvt_pk_bf16_f32 {r('kvp', c, 1)}, {r('kr', 8 + c, 1)}, {r('kr', c, 1)}"))
    kvc.append(E(f"ds_write_b32 {r('kvw')}, {r('kvp', c, 1)} offset:{128 * c}", "kvw"))
kvst = [E(f"ds_read_b128 {r('kvp', 0, 4)}, {r('kvr')}", "kvr0"), E(f"ds_read_b128 {r('kvp', 4, 4)}, {r('kvr')} offset:1040", "kvr1")]
kvst2 = [It(lambda: (g.wait(lg="kvr0"), e(f"buffer_store_dwordx4 {r('kvp', 0, 4)}, {r('kvs')}, {r('sWS')}, {r('kvo')} offen sc1", "kvst"),
                     e(f"s_add_u32 {r('kvo')}, {r('kvo')}, {8 * KP}")), 2),
         It(lambda: (g.wait(lg="kvr1"), e(f"buffer_store_dwordx4 {r('kvp', 4, 4)}, {r('kvs')}, {r('sWS')}, {r('kvo')} offen sc1", "kvst")), 2)]
alias("skr", 0, 12); alias("ke", 12, 24); alias("bt", 36, 4); alias("b1f", 44, 24); alias("csf", 68, 24)
AC("ska", 12, at=228)
skload = [It(lambda: (e("s_mov_b64 exec, 1"), e(f"buffer_load_dwordx2 {r('ska', 0, 2)}, {r('sb')}, {r('sA')}, 0 offen", "sk"), e("s_mov_b64 exec, -1")), 2),
          E(f"buffer_load_dwordx4 {r('ska', 2, 4)}, {r('sa')}, {r('sA')}, 0 offen {KVPOL}", "sk"),
          E(f"buffer_load_dwordx4 {r('ska', 8, 4)}, {r('sa')}, {r('sA')}, 0 offen offset:1024 {KVPOL}", "sk")]
kcopy = [W(vm="sk")] + [E(f"v_accvgpr_read_b32 {r('skr', k, 1)}, {r('ska', k, 1)}") for k in (4, 5, 0, 1, 10, 11, 2, 3, 8, 9)]
for k in range(2):
    kcopy.append(E(f"v_mov_b32_dpp {r('skr', 6 + k, 1)}, {r('skr', 4 + k, 1)} wave_ror:1 row_mask:0xf bank_mask:0xf"))
for k in range(2):
    kcopy.append(E(f"v_mov_b32_dpp {r('skr', k, 1)}, {r('skr', 4 + k, 1)} wave_shr:1 row_mask:0xf bank_mask:0xf"))
for k in range(2):
    kcopy.append(E(f"v_mov_b32_dpp {r('skr', 6 + k, 1)}, {r('skr', 10 + k, 1)} wave_shr:1 row_mask:0xf bank_mask:0xf"))
for n in range(2):
    R = lambda k, c=1, n=n: r("skr", 6 * n + k, c)
    KE = lambda k, c=1, n=n: r("ke", 12 * n + k, c)
    kcopy.append(E(f"ds_write_b128 {r('kw')}, {R(2, 4)} offset:{3 * FP + 1024 * n}", "kc", 2))
    for k in range(4):
        kcopy.append(E(f"v_alignbit_b32 {KE(k)}, {R(k + 1)}, {R(k)}, 16"))
    kcopy.append(E(f"ds_write_b128 {r('kw')}, {KE(0, 4)} offset:{1024 * n}", "kc", 2))
    for k in range(4):
        kcopy.append(E(f"v_alignbit_b32 {KE(4 + k)}, {R(k + 2)}, {R(k + 1)}, 16"))
    kcopy.append(E(f"ds_write_b128 {r('kw')}, {KE(4, 4)} offset:{2 * FP + 1024 * n}", "kc", 2))
    for k in range(4):
        kcopy.append(E(f"v_mov_b32 {KE(8 + k)}, {R(1 + k)}"))
    kcopy.append(E(f"ds_write_b128 {r('kw')}, {KE(8, 4)} offset:{FP + 1024 * n}", "kc", 2))


def mfma(d, a, b, first):
    e(f"v_mfma_f32_16x16x32_bf16 {d}, {a}, {b}, {'0' if first else d}")


def M(d, a, b, first, wait=None):
    def fn():
        if wait:
            w_ = dict(wait)
            l2 = w_.pop("lg2", None)
            if l2 and max(i for i, t in enumerate(g.lg) if t == l2) > max(i for i, t in enumerate(g.lg) if t == w_["lg"]):
                g._cnt(g.lg, w_["lg"])
                w_["lg"] = l2
            elif l2:
                g._cnt(g.lg, l2)
            g.wait(**w_)
        mfma(d, a, b, first)
    return It(fn, 0.3 if wait else 0)


def mainM(K):
    return [M(r("acc", (fb * 2 + tb) * 4, 4), r("wa", (K & 1) * 24 + fb * 4, 4), xf(K, tb), K == 0,
              dict(lg=f"rw{K}_{fb}", lg2=(None if (K & 1 or fb) else f"rx{K >> 1}")) if tb == 0 else None) for fb in range(6) for tb in range(2)]


def statM(K):
    items = []
    for tb in range(2):
        items.append(M(r("rs", tb * 4, 4), r("ones"), xf(K, tb), K == 0, dict(lg=f"rx{K >> 1}") if (tb == 0 and not K & 1) else None))
        items.append(M(r("gr", tb * 4, 4), xf(K, tb), xf(K, tb), K == 0))
    return items


def csM(K):
    return [M(r("cs", c * 4, 4), r("wa", (K & 1) * 24 + c * 4, 4), r("ones"), K == 0, dict(lg=f"rw{K}_{c}")) for c in range(2)]


FULL = int(opt.get("full", 1))


def flagtxt(addr, ls):
    if FULL and ls >= 4:
        return [f"s_mov_b64 exec, {(1 << (1 << (ls - 4))) - 1}",
                f"buffer_store_dwordx4 {r('vtag')}, {r('l16')}, {r('sWS')}, {addr} offen sc1", "s_mov_b64 exec, -1"]
    return ["s_mov_b64 exec, 1", f"buffer_store_dwordx2 {r('vtag', 0, 2)}, {r('zero')}, {r('sWS')}, {addr} offen sc1", "s_mov_b64 exec, -1"]


def setflag(addr, tagname):
    t_ = flagtxt(addr, {"f1": L1S, "f2": L2S, "f3": L3S}[tagname])
    e(t_[0]); e(t_[1], tagname); e(t_[2])


def pollissue(voff, tagname):
    e(f"buffer_load_dwordx2 {r('pf')}, {voff}, {r('sWS')}, 0 offen sc1", tagname)


def pollcheck(voff, tagname, before_spin=None):
    g.wait(vm=tagname)
    e(f"v_cmp_ne_u64 vcc, {r('tag')}, {r('pf')}")
    e("s_cmp_eq_u64 vcc, 0")
    e(f"s_cbranch_scc0 L_{tagname}")
    g.label(f"L_{tagname}_ok")

    def tail():
        g.label(f"L_{tagname}")
        if before_spin:
            for x in before_spin:
                e(x)
        if SPINMAX:
            e(f"s_mov_b32 {T4}, 0")
        g.label(f"L_{tagname}_l")
        e(f"s_sleep {int(opt.get('sleep', 1))}")
        e(f"buffer_load_dwordx2 {pfr}, {voff}, {sws}, 0 offen sc1")
        e("s_waitcnt vmcnt(0)")
        e(f"v_cmp_ne_u64 vcc, {tagr}, {pfr}")
        if SPINMAX:
            e(f"s_add_u32 {T4}, {T4}, 1")
            e(f"s_cmp_gt_u32 {T4}, {SPINMAX}")
            e(f"s_cbranch_scc1 L_{tagname}_ok")
        e("s_cmp_eq_u64 vcc, 0")
        e(f"s_cbranch_scc0 L_{tagname}_l")
        e(f"s_branch L_{tagname}_ok")
    pfr, sws, tagr = r("pf"), r("sWS"), r("tag")
    tails.append(tail)


tails = []
btab = [W(vm="bb")] + unpack("bt", 0, "bb", 0, 2) + [E(f"ds_write_b64 {r('bw', 0, 1)}, {r('bt', 0, 2)}", "btw"), E(f"ds_write_b64 {r('bw', 1, 1)}, {r('bt', 2, 2)}", "btw")]

W2SLOT = {0: ("x", S4), 1: ("o", 8192), 2: ("o", 0), 3: ("o", 4096), 4: ("x", S3),
          5: ("x", S4), 6: ("o", 8192), 7: ("o", 0), 8: ("o", 4096), 9: ("x", S3), 10: ("x", S4)}
W2PREV = {p: p - 5 for p in range(5, 11)}
VMODE = opt.get("vmode", "F")
if VMODE == "F":
    W2SLOT = {0: ("x", 0), 1: ("x", 16384), 2: ("x", S4), 3: ("o", 8192), 4: ("o", 0), 5: ("o", 4096), 6: ("x", S3),
              7: ("x", S4), 8: ("o", 8192), 9: ("o", 0), 10: ("o", 8192)}
    W2PREV = {7: 2, 8: 3, 9: 4, 10: 8}


def dmaW2(p):
    items = []
    kind, off = W2SLOT[p]
    for n in range(4):
        def it(n=n):
            if n == 0:
                e(f"s_add_u32 m0, {r('own') if kind == 'o' else r('w4k')}, {off}")
                if p in W2PREV:
                    g.wait(lg=f"rv{W2PREV[p]}")
            e(f"buffer_load_dwordx4 {r('w2s', n, 1)}, {r('sB')}, {r(f'kb{p}')} offen offset:{1024 * n} lds", f"V{p}")
        items.append(It(it, 1.2 if n else 1.8))
    return items


def w2f(p, nb, off=0, n=4):
    k = (p * 4 + nb) * 4 + off
    return f"a[{k}:{k + n - 1}]"


def rdW2(p):
    kind, off = W2SLOT[p]
    items = [W(vm=f"V{p}")]
    for nb in range(4):
        for hf in range(2):
            items.append(E(f"ds_read_b64_tr_b16 {w2f(p, nb, 2 * hf, 2)}, {r('w2r', nb + (0 if kind == 'o' else 4), 1)} offset:{off + hf * 2048}", f"rv{p}"))
    return items


alias("sac", 96, 4); alias("sgr", 92, 4)
EPS = f2u(1e-5)


def rb(dst, src):
    return [E(f"v_cvt_pk_bf16_f32 {dst}, {src}, {src}"), E(f"v_and_b32 {dst}, {r('hmask')}, {dst}")]


s1, s1b, s2, s2b = (r("sacc", k, 1) for k in range(4))
st = []
for sh in (8, 4, 2, 1):
    st.append(E(f"v_add_f32_dpp {s1}, {s1}, {s1} row_ror:{sh} row_mask:0xf bank_mask:0xf"))
    st.append(E(f"v_add_f32_dpp {s2}, {s2}, {s2} row_ror:{sh} row_mask:0xf bank_mask:0xf"))
st.append(E(f"v_mov_b32 {s1b}, {s1}")); st.append(E(f"v_mov_b32 {s2b}, {s2}"))
st.append(E(f"v_permlane16_swap_b32 {s1}, {s1b}")); st.append(E(f"v_permlane16_swap_b32 {s2}, {s2b}"))
mu, var, t, w = (r("u", k, 1) for k in range(4))
mb, rsd = r("stv", 0, 1), r("stv", 1, 1)
st.append(E(f"v_add_f32 {mu}, {s1}, {s1b}")); st.append(E(f"v_add_f32 {var}, {s2}, {s2b}"))
st.append(E(f"v_mul_f32 {mu}, 0x{f2u(1 / 512):08x}, {mu}"))
st.append(E(f"v_mul_f32 {var}, 0x{f2u(1 / 512):08x}, {var}"))
st += rb(mb, mu)
st.append(E(f"v_fma_f32 {var}, -{mu}, {mu}, {var}"))
st.append(E(f"v_max_f32 {var}, 0, {var}"))
st += rb(t, var)
st.append(E(f"v_add_f32 {t}, 0x{EPS:08x}, {t}"))
st += rb(t, t)
st.append(E(f"v_sqrt_f32 {t}, {t}", cost=2))
st.append(E(f"v_sub_f32 {mu}, {mu}, {mb}"))
st += rb(t, t)
st.append(E(f"v_rcp_f32 {rsd}, {t}", cost=2))
st.append(E(f"v_mul_f32 {mu}, {mu}, {rsd}"))
st.append(E(f"v_mul_f32 {var}, {var}, {rsd}"))
st.append(E(f"v_mul_f32 {var}, {var}, {rsd}"))
st += rb(t, var)
st.append(E(f"v_add_f32 {t}, 0x{EPS:08x}, {t}"))
st += rb(t, t)
st.append(E(f"v_sqrt_f32 {t}, {t}", cost=2))
st += rb(mu, mu)
st += rb(t, t)
st.append(E(f"v_rcp_f32 {w}, {t}", cost=2))
st.append(E(f"v_fma_f32 {mu}, {mb}, {rsd}, {mu}"))
st.append(E(f"v_mul_f32 {t}, {rsd}, {w}"))
st.append(E(f"v_mul_f32 {mu}, {mu}, {w}"))
st.append(E(f"v_cndmask_b32 {r('gq', 0, 1)}, {t}, {mb}, {r('m1')}"))
st.append(E(f"v_cndmask_b32 {r('gq', 1, 1)}, {mu}, {rsd}, {r('m1')}"))
st.append(E(f"v_mov_b32 {s1}, {r('gq', 0, 1)}")); st.append(E(f"v_mov_b32 {s2}, {r('gq', 1, 1)}"))
st.append(E(f"v_permlane32_swap_b32 {r('gq', 0, 1)}, {s1}")); st.append(E(f"v_permlane32_swap_b32 {r('gq', 1, 1)}, {s2}"))
st.append(It(lambda: (e("s_mov_b64 exec, 12"), e(f"v_mov_b32 {r('gq', 0, 1)}, {s1}"), e(f"v_mov_b32 {r('gq', 1, 1)}, {s2}"), e("s_mov_b64 exec, -1")), 2.6))
ststore = [It(lambda: (e("s_mov_b64 exec, 15"),
                       e(f"buffer_store_dwordx4 {r('gq')}, {r('stw')}, {r('sWS')}, 0 offen sc1", "sts"), e("s_mov_b64 exec, -1")), 2)]


def gcheck(name, voff, tagname):
    g.wait(vm=tagname)
    e(f"v_cmp_ne_u64 vcc, {r('tag')}, {r(name, 2, 2)}")
    e("s_cmp_eq_u64 vcc, 0")
    e(f"s_cbranch_scc0 L_{tagname}")
    g.label(f"L_{tagname}_ok")
    q4, q2, sws, tagr = r(name, 0, 4), r(name, 2, 2), r("sWS"), r("tag")

    def tail():
        g.label(f"L_{tagname}")
        if SPINMAX:
            e(f"s_mov_b32 {T4}, 0")
        g.label(f"L_{tagname}_l")
        e("s_sleep 2")
        e(f"buffer_load_dwordx4 {q4}, {voff}, {sws}, 0 offen sc1")
        e("s_waitcnt vmcnt(0)")
        e(f"v_cmp_ne_u64 vcc, {tagr}, {q2}")
        if SPINMAX:
            e(f"s_add_u32 {T4}, {T4}, 1")
            e(f"s_cmp_gt_u32 {T4}, {SPINMAX}")
            e(f"s_cbranch_scc1 L_{tagname}_ok")
        e("s_cmp_eq_u64 vcc, 0")
        e(f"s_cbranch_scc0 L_{tagname}_l")
        e(f"s_branch L_{tagname}_ok")
    tails.append(tail)


sgld = [E(f"buffer_load_dwordx4 {r('sgr')}, {r('sgo')}, {r('sWS')}, 0 offen sc1", "sg")]
sguse = [It(lambda: gcheck("sgr", r("sgo"), "sg"), 2)]
sguse += [E(f"v_mov_b32 {r('sac', k, 1)}, {r('sgr', k & 1, 1)}") for k in range(4)]
sguse += [E(f"v_permlane32_swap_b32 {r('sac', 0, 1)}, {r('sac', 2, 1)}"), E(f"v_permlane32_swap_b32 {r('sac', 1, 1)}, {r('sac', 3, 1)}")]

main = []
at = {}


def add(items, name=None):
    if name:
        at[name] = len(main)
        if name.startswith("K") and SSET == "k":
            f0 = items[0].fn
            items = [It(lambda: (stamp(name, "k"), f0()), items[0].cost)] + items[1:]
    main.extend(items)


NOB1 = int(opt.get("nob1", 0))
BARS = {1: 1, 3: 3, 7: 5, 11: 7}
if NOB1:
    del BARS[1]


def bar(K):
    def fn():
        if K == KVK:
            g.wait(vm=f"W{BARS[K]}", lg="kvw")
        elif K == 7:
            g.wait(vm=f"W{BARS[K]}", lg="rw7_5")
        elif K < 15:
            g.wait(vm=f"W{BARS[K]}")
        else:
            g.wait(lg=0)
        e("s_barrier")
        if K in (3, 7, 11, 15):
            stamp(f"c{K >> 2}")
    return [It(fn, 0)]


STAT = {K: [] for K in range(13)}
KVK = int(opt.get("kvk", 3))
for K in range(13):
    if K == KVK:
        add([It(lambda: (stamp("kvb"), run(weave(kvu[KVU:] + kvc, (kvdma, 4, len(kvu) - KVU + len(kvc) - 4))), stamp("kv")), 0)], "KV")
    if K in BARS:
        add(bar(K), f"B{K}")
    sm = sum((statM(k) for k in STAT[K]), [])
    add(sm + mainM(K), f"K{K}")
    at[f"m{K}"] = at[f"K{K}"] + len(sm)
    add(csM(K))
add(mainM(13) + csM(13), "K13")
m14 = mainM(14)
add(m14[:2] + csM(14) + m14[2:8], "K14"); add(csM(15), "cs15"); add(m14[8:])
at["m14"] = at["K14"]; at["m13"] = at["K13"]
add(bar(15), "C3")
add(mainM(15), "K15")
at["end"] = len(main)
if SSET == "fine":
    F0 = int(opt.get("f0", 0))
    for k_ in range(F0, min(F0 + 120, len(main)), 4):
        main[k_] = It(lambda f=main[k_].fn, k_=k_: (stamp(f"m{k_}", "fine"), f()), main[k_].cost)
A = lambda n: at[n]
QR = []
for K in range(1, 15):
    lo = A(f"K{K - 1}") - (1 if (K - 1) in BARS else 0)
    hi = A(f"K{K}") - 2 - (1 if K in BARS else 0) - (1 if K == KVK else 0) - (3 if K == 7 else 0)
    QR += win(rdW(K), lo, hi)
QR += win(rdW(15), A("K14"), A("C3") - 5)
XRD = {1: 1, 2: 3, 3: 5, 4: 7, 5: 9, 6: 11, 7: 13}
QX = []
for ei in range(1, 8):
    k = XRD[ei]
    QX += win(rdX(ei), A(f"K{k}"), A(f"K{k}") + 5)


def aft(tag, items):
    f0 = items[0]
    return [It(lambda: (g.wait(lg=tag), f0()), f0.cost + 1)] + items[1:]


kc_txt = []
kcv = [it for it in kcopy if it.cost != 2]
kcw = [it for it in kcopy if it.cost == 2]
f1set = [None] * 4 + [It(lambda: (g.wait(vm="kvst"), setflag(r("f1a"), "f1")), 2)]
udma = [It(lambda: pollcheck(r("pf1o"), "pf1"), 4),
        It(lambda: (e(f"s_add_u32 {r('sA', 0, 1)}, {plo(13)}, {r('chan')}"), e(f"s_addc_u32 {r('sA', 1, 1)}, {phi(13)}, 0"), e(f"s_mov_b32 m0, {r('um0')}")), 3)]
for n in range(4):
    udma.append(E(f"buffer_load_dwordx4 {r('l16')}, {r('sA')}, {r('ush')} offen offset:{1024 * n} sc1 lds", "U"))
KW = lambda k0, k1=None: (A(f"K{k0}"), A(f"K{(k1 or k0) + 1}") - 2)
F1K = int(opt.get("f1k", KVK + 3))
f1 = lambda k: f1set[4:] if F1K == k else []
KVU = int(opt.get("kvu", 8))
assert KVK == 3
KV0 = int(opt.get("kv0", 6))
run(kvload[:KV0])
QV = win(kvload[KV0:] + dmaW1(2), *KW(0))
QV += win(dmaX(2), *KW(1))
QV += win(dmaW1(3), A("K2"), A("KV") - 1)
kvdma = dmaX(3) + dmaX(4) + small + skload + ststore
QV += win(dmaW1(4) + kvst2, *KW(3))
QV += win(dmaW1(5), *KW(4))
QV += win(dmaX(5), *KW(5))
QV += win(dmaX(6) + f1(6), *KW(6))
NV3 = int(opt.get("nv3", 1))
if VMODE == "F":
    QV += win(dmaW1(6) + f1(7) + dmaW1(7)[:1], *KW(7))
    QV += win(dmaW1(7)[1:] + dmaX(7)[:3], *KW(8))
    QV += win(dmaX(7)[3:] + sgld + dmaW2(0)[:3], *KW(9))
    QV += win(dmaW2(0)[3:] + dmaW2(1), *KW(10))
    QV += win(dmaW2(2), *KW(11))
    if NV3:
        QV += win(dmaW2(3), *KW(12)) + win(dmaW2(4), *KW(13))
else:
    QV += win(dmaW1(6) + f1(7), *KW(7))
    QV += win(dmaW1(7) + dmaX(7)[:1], *KW(8))
    QV += win(dmaX(7)[1:] + sgld, *KW(9))
    QV += win(dmaW2(0), *KW(10))
    QV += win(dmaW2(1), *KW(11))
    QV += win(dmaW2(2), *KW(12))
    if NV3:
        QV += win(dmaW2(3), A("K14"), A("C3") - 1)
QV += win([It(lambda: pollissue(r("pf1o"), "pf1"))], A("end") - 4, A("end") - 4)
QW1 = (win(rdW2(0), *KW(13)) + win(rdW2(1), A("K14"), A("C3") - 3)) if VMODE == "F" else []
XX = '''
QV += win(dmaW2(0) + f1(9), *KW(9))
QV += win(dmaW2(1) + f1(10), *KW(10))
QV += win(dmaW2(2) + f1(11), *KW(11))
QV += win(dmaW2(3), *KW(12))
'''
csw = [It(lambda: (e("s_mov_b32 exec_lo, 0x00010001"), e("s_mov_b32 exec_hi, 0x00010001"),
                   e(f"ds_write_b128 {r('ctr', 0, 1)}, {r('cs', 0, 4)}", "csw"), e(f"ds_write_b128 {r('ctr', 0, 1)}, {r('cs', 4, 4)} offset:64", "csw"),
                   e("s_mov_b64 exec, -1")), 5)]
rcs = [E(f"ds_read_b128 {r('csf', 4 * fb, 4)}, {r('ctr', fb >> 1, 1)} offset:{64 * (fb & 1)}", "rcs") for fb in range(6)]
rb1 = [E(f"ds_read_b128 {r('b1f', 4 * fb, 4)}, {r('ctr', fb >> 1, 1)} offset:{B1T - CSX + 64 * (fb & 1)}", "rb1") for fb in range(6)]
QM = win(kvrd, A(f"K{KVK - 1}") + 1, A(f"K{KVK - 1}") + 8)
QM += win(kvu[:KVU], A(f"K{KVK - 1}") + 10, A("KV") - 1)
QM += win(kvst, A(f"B{KVK}"), A(f"B{KVK}") + 1)
QM += win(btab, *KW(5))
KCV = int(opt.get("kcv", 1))
if KCV:
    QM += win(kcv, A("K7"), A("K11") - 2)
QM += win(rb1, *KW(11))
KCW = int(opt.get("kcw", 0))
QM += win(kcw[:KCW], A("K13"), A("K14") + 8)
QM += win(csw, A("C3") - 2, A("C3") - 2)
QM += win(rcs + [E(f"ds_write_b128 {r('za')}, {r('zz')}", "zw", 2)], A("C3"), A("C3") + 7)
if KCV:
    pass
QS = win(st, 0, A("KV") - 1 if KVK == 3 else A("K3") + 6) + win(sguse, A("m14") + 2, A("end") - 2)
QL = win(late_items(lateA), A("K3") + 2, A("K9") - 1) + win(late_items(lateB), A("K9") if lateA else A("K4"), A("C3") - 3)
schedule(main, [QR, QX, QV, QM, QS, QW1, QL])
lateC_items = late_items(lateC)
g.free("T1", "q", "whi", "b0", "ns128", "r8", "pc", "nown", "sD")
del g.names["bp"]
for n_ in ("wf", "kf", "vr", "kr", "shr", "vf", "kvp", "skr", "ke", "bt", "sgr"):
    del g.names[n_]
g.free("w1s", "w1lds", "sW1", "so", "f1a", "kvs", "pre", "kvo", "bb", "bw", "k0", "kd", "sho", "sa", "sb", "kvw", "kvr", "kra", "sra",
       "wa", "xf", "cs", "sgo", "m1", "stw", "w1r", "ctr", "ones", "sacc", "u", "gq", "stv",
       "xrd", "zz", "za", "ptr8", "ptr10", "ptr3", "ptr4", "ptr9", "kim", "xbase", "xk", "wo", "wlim")
AC("w2b", 176, at=0)
stamp("g1")
stamp("g1", "k")

K0 = -2.0 * 0.7978845608028654 * 1.4426950408889634
K1 = K0 * 0.044715
S("k1", 2); V("k0v", 2); V("ge", 16); V("hp", 8)
e(f"s_mov_b32 {r('k1', 0, 1)}, 0x{f2u(K1):08x}")
e(f"s_mov_b32 {r('k1', 1, 1)}, 0x{f2u(K1):08x}")
e(f"v_mov_b32 {r('k0v', 0, 1)}, 0x{f2u(K0):08x}")
e(f"v_mov_b32 {r('k0v', 1, 1)}, 0x{f2u(K0):08x}")
g.wait(lg="rcs")
e(".p2align 3")


def gelu(b, tb):
    it = []
    sac = r("sac", tb * 2, 2)
    prs = [(fb, h) for fb in (2 * b, 2 * b + 1) for h in range(2)]
    U = lambda k: r("acc", (prs[k][0] * 2 + tb) * 4 + 2 * prs[k][1], 2)
    Tm = lambda k: r("ge", (tb & 1) * 8 + 2 * k, 2)
    T1r = lambda k, x: r("ge", (tb & 1) * 8 + 2 * k + x, 1)
    for k, (fb, h) in enumerate(prs):
        it.append(E(f"v_pk_fma_f32 {Tm(k)}, {r('csf', fb * 4 + 2 * h, 2)}, {sac}, {r('b1f', fb * 4 + 2 * h, 2)} op_sel:[0,1,0] op_sel_hi:[1,1,1] neg_lo:[0,1,0] neg_hi:[0,1,0]"))
    for k in range(4):
        it.append(E(f"v_pk_fma_f32 {U(k)}, {U(k)}, {sac}, {Tm(k)} op_sel_hi:[1,0,1]"))
    for k in range(4):
        it.append(E(f"v_pk_mul_f32 {Tm(k)}, {U(k)}, {U(k)}"))
    for k in range(4):
        it.append(E(f"v_pk_fma_f32 {Tm(k)}, {Tm(k)}, {r('k1')}, {r('k0v')}"))
    for k in range(4):
        it.append(E(f"v_pk_mul_f32 {Tm(k)}, {Tm(k)}, {U(k)}"))
    for k in range(4):
        for x in range(2):
            it.append(E(f"v_exp_f32 {T1r(k, x)}, {T1r(k, x)}"))
    for k in range(4):
        it.append(E(f"v_pk_add_f32 {Tm(k)}, {Tm(k)}, 1.0 op_sel_hi:[1,0]"))
    for k in range(4):
        for x in range(2):
            it.append(E(f"v_rcp_f32 {T1r(k, x)}, {T1r(k, x)}"))
    for k in range(4):
        it.append(E(f"v_pk_mul_f32 {Tm(k)}, {Tm(k)}, {U(k)}"))
    for k in range(4):
        it.append(E(f"v_cvt_pk_bf16_f32 {r('hp', (tb & 1) * 4 + k, 1)}, {T1r(k, 0)}, {T1r(k, 1)}"))
    it.append(E(f"buffer_store_dwordx4 {r('hp', (tb & 1) * 4, 4)}, {r('l16')}, {r('sWS')}, {r(f'ho{b}')} offen sc1", "hst"))
    if tb == 0:
        it.append(E(f"s_add_u32 {r(f'ho{b}')}, {r(f'ho{b}')}, 44032"))
    return it


g.free("ska")
AC("cf", 32, at=176); AC("cg", 32, at=208)


def rdF(it, c):
    return E(f"ds_read_b128 {r('cf', 4 * c, 4)}, {r('fa')} offset:{64 * it + 512 * c}", f"F{it}_{c}")


def rdG(it, d):
    return E(f"ds_read_b128 {r('cg', 4 * d, 4)}, {r('ga')} offset:{64 * it + 512 * (7 - d)}", f"G{it}_{d}")


init = []
for k in range(8):
    init += [rdF(0, 7 - k), rdG(0, k)]
SKIP = int(opt.get("skip2", 1))
for jp in range(3):
    if jp == 1:
        run(udma[:2])
    if SKIP:
        e(f"s_cmp_eq_u32 {r(f'ho{jp}')}, 0x7f000000")
        e(f"s_cbranch_scc1 L_gskip{jp}")
    e(".p2align 3")
    n0 = len(g.ins)
    if jp < 2:
        run(weave(gelu(jp, 0) + gelu(jp, 1), (udma[2:] if jp == 1 else [], 2, 60), (kcw[KCW:][jp::2], 12, 90)))
    else:
        g2x = gelu(2, 0) + gelu(2, 1)
        run(g2x[:80])
        g.wait(vm="U", lg=0)
        e("s_barrier")
        stamp("b5")
        run(weave(g2x[80:], (init[:6], 0, 16)))
    if SKIP:
        keep = [i.text for i in g.ins[n0:] if (not i.op.startswith("v_") or i.op.startswith("v_writelane")) and i.cls != "label"]
        g.label(f"L_gdone{jp}")

        def skip_tail(jp=jp, keep=keep):
            g.label(f"L_gskip{jp}")
            for x in keep:
                e(x)
            e(f"s_branch L_gdone{jp}")
        tails.append(skip_tail)
stamp("gelu")
g.free("pf1o", "um0", "ush", "chan", "kw")
del g.names["csf"], g.names["b1f"], g.names["sac"]
g.free("acc", "big", "ge", "k0v", "k1", "ho0", "ho1", "ho2")
V("cy", 32, at=96)
V("hfv", 96, at=160)
HFIRST = int(opt.get("hfirst", 2))
HPOL = opt.get("hpol", "sc1").replace("+", " ")
HORD = [(s_, p_) for p_ in range(HFIRST) for s_ in range(4)]
HORD += [(s_, p_) for s_ in range(4) for p_ in range(HFIRST, 11)]
HF = {}
for k_, sp in enumerate(HORD):
    HF[sp] = r("hfv", 4 * k_, 4) if k_ < 24 else f"a[{176 + 4 * (k_ - 24)}:{179 + 4 * (k_ - 24)}]"
S("sH", 4)
for p in range(11):
    S(f"hb{p}")
NE0 = int(opt.get("ne", 1))
NEX = int(opt.get("nex", 6))
NE = NE0 + NEX
HTXT = [f"buffer_load_dwordx4 {HF[s_, p_]}, {r('hv', s_, 1)}, SRD, {r(f'hb{p_}')} offen {HPOL}" for s_, p_ in HORD]

main = []
QF = win(init[6:], 0, 9)
for it in range(4):
    at[f"I{it}"] = len(main)
    for c in range(7, -1, -1):
        for d in range(0, 8 - c):
            t = c + d
            wt = None
            if d == 0:
                wt = dict(lg=f"F{it}_0") if (c == 0 and it) else dict(lg=f"G{it}_{7 - c}")
                if it and c in (5, 3, 2, 1):
                    wt = None if c != 5 else dict(lg=f"G{it}_3")
                if it and c == 4:
                    wt = None
                if it and c == 3:
                    wt = dict(lg=f"F{it}_0")
                if it and c == 0:
                    wt = None
            main.append(M(r("cy", 4 * t, 4), r("cf", 4 * c, 4), r("cg", 4 * d, 4), it == 0 and d == 0, wt))
            if it == 0 and c == 0:
                main.append(M(r("cy", 4 * t, 4), r("fd"), r("cg", 4 * d, 4), False))
            idx = len(main) - 1
            if it < 3:
                if d == 7 - c and c > 0:
                    QF += win([rdF(it + 1, c)], idx, idx + 2)
                if c == 0:
                    QF += win([rdG(it + 1, d)], idx, idx)
                    if d == 7:
                        QF += win([rdF(it + 1, 0)], idx, idx)
at["I4"] = len(main)
if SSET == "cv":
    for k_ in range(0, 152, 8):
        main[k_] = It(lambda f=main[k_].fn, k_=k_: (stamp(f"m{k_}", "cv"), f()), main[k_].cost)
if VMODE == "F" and NV3:
    QW = win(rdW2(2) + rdW2(3) + rdW2(4), 8, 44) + win(rdW2(5) + rdW2(6), 48, 76) + win(rdW2(7) + rdW2(8), 78, 104) + win(rdW2(9), 108, 124)
    QV = win(dmaW2(5) + dmaW2(6) + dmaW2(7), 0, 46) + win(dmaW2(8) + dmaW2(9), 48, 78)
elif VMODE == "F":
    QW = win(rdW2(2), 10, 24) + win(rdW2(3) + rdW2(4), 40, 66) + win(rdW2(5) + rdW2(6) + rdW2(7), 68, 104)
    QW += win(rdW2(8), 106, 118) + win(rdW2(9), 124, A("I4") - 4)
    QV = win(dmaW2(3) + dmaW2(4) + dmaW2(5) + dmaW2(6) + dmaW2(7), 0, 70) + win(dmaW2(8) + dmaW2(9), 72, 98)
else:
    QW = win(rdW2(0) + rdW2(1) + rdW2(2) + rdW2(3), 8, 50) + win(rdW2(4) + rdW2(5) + rdW2(6), 56, 100)
    QW += win(rdW2(7) + rdW2(8) + rdW2(9), 104, A("I4") - 4)
    QV = win(([] if NV3 else dmaW2(3)) + dmaW2(4), 0, 15) + win(dmaW2(5) + dmaW2(6) + dmaW2(7) + dmaW2(8) + dmaW2(9), 22, 98)
F2POS = int(opt.get("f2pos", 52 if KCV else 20))
QF2 = win([It(lambda: (g.wait(vm="hst"), setflag(r("f2a"), "f2")), 2)], F2POS, F2POS)
QV += win(dmaW2(10), *((100, 114) if VMODE != "F" else (108, 120) if NV3 else (121, 134)))
P2A = int(opt.get("p2a", 124))
P2C = int(opt.get("p2c", 146))
QF2 += win([It(lambda: pollissue(r("pf2o"), "pf2a"))], P2A, P2A)


def chk2a():
    g.wait(vm="pf2a")
    e(f"v_cmp_ne_u64 vcc, {r('tag')}, {r('pf')}")
    e(f"s_mov_b64 {r('sH', 0, 2)}, {r('sWS', 0, 2)}")
    e(f"s_mov_b32 {r('sH', 3, 1)}, 0x00020000")
    e("s_cmp_eq_u64 vcc, 0")
    e(f"s_cselect_b32 {r('sH', 2, 1)}, {WSZ}, 0")


QV += win([It(chk2a, 2)], P2C, P2C)
QV += win([E(x.replace("SRD", r("sH")), f"H{s_}_{p_}") for (s_, p_), x in zip(HORD[:NE0], HTXT)], P2C + 1, A("I4") - 3)
hex_ = [E(x.replace("SRD", r("sH")), f"H{s_}_{p_}") for (s_, p_), x in list(zip(HORD, HTXT))[NE0:NE]]


def hx():
    if hex_:
        hex_.pop(0)()
QV += win([It(lambda: pollissue(r("pf2o"), "pf2"))], A("I4") - 2, A("I4") - 2)
S("early")
QB = []
QM = win([It(lambda p=p: (e(f"s_lshr_b32 {r(f'hb{p}')}, {r(f'kb{p}')}, 5"), e(f"s_min_u32 {r(f'hb{p}')}, {r(f'hb{p}')}, {42 * 1024}")), 0.6)
          for p in range(11)], 30, 70)
QB = win(lateC_items, 4, 100)
schedule(main, [QF, QW, QV, QM, QF2, QB])
g.free("tt2", "ns", "tok16", "L0", "L2", "L3", "L4")
stamp("conv")
stamp("conv", "g2")
rv10 = rdW2(10) if KCV else []
g.free("cf", "cg", "fd", "fa", "ga", "w2s", "w4k", "f2a", "hp")
for p in range(11):
    g.free(f"kb{p}")
V("ys", 8); V("cg", 24); V("sv", 4)
AC("hfa", 80, at=176)
hx()
g.wait(lg=0)
e(f"s_cmp_lg_u32 {r('wodd')}, 0")
e("s_cbranch_scc1 L_odd1")
lsv_ = g.lg_done
for k in range(4):
    e(f"ds_write_b128 {r('oa')}, {r('cy', 16 + 4 * k, 4)} offset:{1024 * k}")
e("s_branch L_j1")
g.label("L_odd1")
e("s_nop 4")
for k in range(4):
    e(f"ds_write_b128 {r('oa')}, {r('cy', 4 * k, 4)} offset:{1024 * k}")
g.wait(lg=0)
for k in range(8):
    e(f"v_pk_mov_b32 {r('cy', 2 * k, 2)}, {r('cy', 16 + 2 * k, 2)}, {r('cy', 16 + 2 * k, 2)} op_sel:[0,1]")
g.label("L_j1")
g.lg_done = lsv_
hx()
g.wait(lg=0)
e("s_barrier")
for k in range(4):
    e(f"ds_read_b128 {r('cg', 4 * k, 4)}, {r('pa')} offset:{1024 * k}", f"ex{k}")
hx(); hx()
for k in range(4):
    g.wait(lg=f"ex{k}")
    for hh in range(2):
        e(f"v_pk_add_f32 {r('cy', 4 * k + 2 * hh, 2)}, {r('cy', 4 * k + 2 * hh, 2)}, {r('cg', 4 * k + 2 * hh, 2)}")
    for hh in range(2):
        e(f"v_cvt_pk_bf16_f32 {r('cg', 16 + 2 * k + hh, 1)}, {r('cy', 4 * k + 2 * hh, 1)}, {r('cy', 4 * k + 2 * hh + 1, 1)}")
    e(f"ds_write_b64 {r('yw')}, {r('cg', 16 + 2 * k, 2)} offset:{4096 + 512 * k}", f"yw{k}")
    if k & 1:
        e(f"ds_read_b128 {r('ys', 2 * (k - 1), 4)}, {r('oa')} offset:{4096 + 512 * (k - 1)}", f"yr{k >> 1}")
hx()
g.wait(lg="yr0")
e(f"buffer_store_dwordx4 {r('ys', 0, 4)}, {r('l16')}, {r('sWS')}, {r('yo')} offen sc1", "yst")
g.wait(lg="yr1")
e(f"buffer_store_dwordx4 {r('ys', 4, 4)}, {r('l16')}, {r('sWS')}, {r('yo')} offen offset:1024 sc1", "yst")
stamp("yst")
stamp("yst", "g2")
while hex_:
    hx()
g.free("cy", "pa", "yw", "cg", "yo")

V("ac2", 32)
e(f"s_cmp_lg_u32 {r('sH', 2, 1)}, 0")
e("s_cbranch_scc1 L_haveH")
sv_ = g.vm_done
pollcheck(r("pf2o"), "pf2", before_spin=["s_waitcnt vmcnt(0)"] + flagtxt(r("f3a"), L3S))
n_ = len(g.vm)
for x in HTXT[:NE]:
    e(x.replace("SRD", r("sWS")))
del g.vm[n_:]
g.label("L_haveH")
g.vm_done = 0
n_late = len(g.vm)
stamp("f2")
hl = [E(x.replace("SRD", r("sWS")), f"H{s_}_{p_}") for (s_, p_), x in zip(HORD, HTXT)]


def g2(s):
    return [M(r("ac2", (s & 1) * 16 + 4 * nb, 4), w2f(p, nb), HF[s, p], p == 0,
              (dict(vm=f"H{s}_{p}", lg="rv10") if (s == 0 and p == 10) else dict(vm=f"H{s}_{p}")) if nb == 0 else None)
            for p in range(11) for nb in range(4)]


def pwr(s):
    return [E(f"ds_write_b64 {r('pw', s, 1)}, {r('ac2', (s & 1) * 16 + 2 * k, 2)} offset:{512 * k}", "pw", 1.5) for k in range(8)]


V("xr", 8); V("xfp", 16); V("xn", 16)
pre = rv10 + [It(lambda: gcheck("sv", r("svr"), "sv")), W(vm="xt")]
for nb in range(4):
    pre.append(E(f"ds_read_b64 {r('xr', 2 * nb, 2)}, {r('ea', nb, 1)} offset:6144", "xr"))
PRESH = int(opt.get("presh", 1))
pre2 = [W(lg="xr")]
if PRESH:
    for d in range(8):
        lo, hi = r("xfp", 2 * d, 1), r("xfp", 2 * d + 1, 1)
        a_, b_ = r("xn", 2 * d, 1), r("xn", 2 * d + 1, 1)
        pre2.append(E(f"v_lshlrev_b32 {lo}, 16, {r('xr', d, 1)}"))
        pre2.append(E(f"v_and_b32 {hi}, {r('hmask')}, {r('xr', d, 1)}"))
        pre2.append(E(f"v_sub_f32 {a_}, {lo}, {r('sv', 0, 1)}"))
        pre2.append(E(f"v_sub_f32 {b_}, {hi}, {r('sv', 0, 1)}"))
        pre2.append(E(f"v_cvt_pk_bf16_f32 {b_}, {a_}, {b_}"))
        pre2.append(E(f"v_lshlrev_b32 {a_}, 16, {b_}"))
        pre2.append(E(f"v_and_b32 {b_}, {r('hmask')}, {b_}"))
        pre2.append(E(f"v_mul_f32 {a_}, {a_}, {r('sv', 1, 1)}"))
        pre2.append(E(f"v_mul_f32 {b_}, {b_}, {r('sv', 1, 1)}"))
        pre2.append(E(f"v_cvt_pk_bf16_f32 {b_}, {a_}, {b_}"))
        pre2.append(E(f"v_lshlrev_b32 {a_}, 16, {b_}"))
        pre2.append(E(f"v_and_b32 {b_}, {r('hmask')}, {b_}"))
else:
    pre2 += unpack("xfp", 0, "xr", 0, 8)
    for d in range(8):
        pre2.append(E(f"v_pk_add_f32 {r('xn', 2 * d, 2)}, {r('xfp', 2 * d, 2)}, {r('sv', 0, 2)} op_sel_hi:[1,0] neg_lo:[0,1] neg_hi:[0,1]"))
    for d in range(8):
        pre2.append(E(f"v_cvt_pk_bf16_f32 {r('xr', d, 1)}, {r('xn', 2 * d, 1)}, {r('xn', 2 * d + 1, 1)}"))
    pre2 += unpack("xn", 0, "xr", 0, 8)
    for d in range(8):
        pre2.append(E(f"v_pk_mul_f32 {r('xn', 2 * d, 2)}, {r('xn', 2 * d, 2)}, {r('sv', 0, 2)} op_sel:[0,1] op_sel_hi:[1,1]"))
    for d in range(8):
        pre2.append(E(f"v_cvt_pk_bf16_f32 {r('xr', d, 1)}, {r('xn', 2 * d, 1)}, {r('xn', 2 * d + 1, 1)}"))
    pre2 += unpack("xn", 0, "xr", 0, 8)
if PRESH:
    run(weave(rv10 or [It(lambda: None)], (hl[NE:NH0], 0, 9)))
    QPRE = win(pre[len(rv10):], 66, 72) + win(pre2, 78, 138)
else:
    run(weave(pre + pre2, (hl[NE:NH0], 0, 88)))
    QPRE = []
e(f"s_cmp_lg_u32 {r('sH', 2, 1)}, 0")
e("s_cbranch_scc1 L_lateok")
e(f"s_waitcnt vmcnt({len(g.vm) - n_late})")
g.label("L_lateok")
stamp("f3set")
stamp("f3set", "g2")
ps_alias = {}
B7P = 14
main = g2(0) + g2(1) + g2(2) + g2(3)[:B7P]
if SSET == "g2b":
    for k_ in range(0, 140, 8):
        main[k_] = It(lambda f=main[k_].fn, k_=k_: (stamp(f"m{k_}", "g2b"), f()), main[k_].cost)
P3K = int(opt.get("p3k", 44))
HPACE = float(opt.get("hpace", 3.8))
xtl = [It(lambda: (e(f"s_add_u32 m0, {r('own')}, 6144"), e("s_nop 0"), e(f"buffer_load_dwordx4 {r('xs', 0, 1)}, {r('sX')}, {r('tile0')} offen lds", "xt")), 1.5),
       E(f"buffer_load_dwordx4 {r('xs', 1, 1)}, {r('sX')}, {r('tile0')} offen offset:1024 lds", "xt"),
       E(f"buffer_load_dwordx4 {r('sv')}, {r('svr')}, {r('sWS')}, 0 offen sc1", "sv")]
XK = NH0 + 6
QH = win(hl[NH0:XK] + xtl + hl[XK:P3K] + [It(lambda: pollissue(r("pf3o"), "pf3"))] + hl[P3K:], 0, int(HPACE * (47 - NH0)))
QP = win(pwr(0), 48, 70) + win(pwr(1), 92, 114) + win(pwr(2), 134, 143)
F3POS = int(opt.get("f3pos", 34))
QF3 = win([It(lambda: (g.wait(vm="yst"), setflag(r("f3a"), "f3")), 2)], F3POS, F3POS)
schedule(main, [QH, QP, QF3, QPRE])
g.free("ys", "xr", "sv", "svr", "pf2o", "w2r")
stamp("g2s2")
stamp("g2s2", "g2")
g.wait(lg=0)
stamp("b7a", "g2")
e("s_barrier")
stamp("b7b", "g2")
g.free("hfv")
V("ps", 48); V("zr", 8); V("b2f", 16)
rp = [E(f"ds_read_b128 {r('b2f', 4 * nb, 4)}, {r('csr0')} offset:{B2T - CSX + 64 * nb}", "rb2") for nb in range(4)]
rp += [E(f"ds_read2st64_b64 {r('ps', 4 * k, 4)}, {r('psr')} offset0:{2 * k} offset1:{2 * k + 1}", f"rp{k}") for k in range(12)]
adds = [W(lg="rp11")]
for k in range(16):
    adds.append(E(f"v_add_f32 {r('ps', k, 1)}, {r('ps', k, 1)}, {r('ps', 16 + k, 1)}"))
    adds.append(E(f"v_add_f32 {r('b2f', k, 1)}, {r('b2f', k, 1)}, {r('ps', 32 + k, 1)}"))
ztxt = [f"buffer_load_dwordx4 {r('zs')}, {r('sWS')}, {r('zo')} offen sc1 lds",
        f"buffer_load_dwordx4 {r('zs')}, {r('sWS')}, {T3} offen offset:1024 sc1 lds"]


def zfirst():
    stamp("zfa", "g2")
    g.wait(vm="pf3")
    stamp("zfb", "g2")
    e(f"v_cmp_ne_u64 vcc, {r('tag')}, {r('pf')}")
    e(f"s_add_u32 m0, {r('own')}, 8192")
    e(f"s_add_u32 {T3}, {r('zo')}, {32 * KP - 1024}")
    e("s_cmp_eq_u64 vcc, 0")
    e(f"s_cselect_b32 {r('early')}, 1, 0")
    e("s_cbranch_scc0 L_noz")
    n_ = len(g.vm)
    for x in ztxt:
        e(x)
    del g.vm[n_:]
    g.label("L_noz")
    pollissue(r("pf3o"), "pf3b")


ZPOS = int(opt.get("zpos", 8))
schedule(g2(3)[B7P:], [win(rp, 0, 11), win(adds, 16, 29), win([It(zfirst, 3)], ZPOS, ZPOS)])
stamp("g2")
stamp("g2", "g2")
S("nl2", 2)
e(f"s_mov_b32 {r('nl2', 0, 1)}, 0x{f2u(-1.4426950408889634):08x}")
e(f"s_mov_b32 {r('nl2', 1, 1)}, 0x{f2u(-1.4426950408889634):08x}")
srd("sA", 11, 2097152)
Mm = lambda k: r("ps", 2 * k, 2)
Tt = lambda k: r("ps", 16 + 2 * k, 2)
e(".p2align 3")
for k in range(8):
    e(f"v_pk_add_f32 {Mm(k)}, {Mm(k)}, {r('b2f', 2 * k, 2)}")
for k in range(8):
    e(f"v_pk_add_f32 {Mm(k)}, {Mm(k)}, {r('ac2', 16 + 2 * k, 2)}")
for k in range(8):
    e(f"v_pk_mul_f32 {Tt(k)}, {Mm(k)}, {r('nl2')}")
for k in range(16):
    e(f"v_exp_f32 {r('ps', 16 + k, 1)}, {r('ps', 16 + k, 1)}")
for k in range(8):
    e(f"v_pk_mul_f32 {Mm(k)}, {Mm(k)}, {r('xn', 2 * k, 2)}")
for k in range(8):
    e(f"v_pk_add_f32 {Tt(k)}, {Tt(k)}, 1.0 op_sel_hi:[1,0]")
for k in range(16):
    e(f"v_rcp_f32 {r('ps', 16 + k, 1)}, {r('ps', 16 + k, 1)}")
e(f"s_cmp_eq_u32 {r('early')}, 1")
e("s_cbranch_scc1 L_havez")
pollcheck(r("pf3o"), "pf3b")
for x in ztxt:
    e(x)
g.label("L_havez")
e(f"s_or_b32 {T2}, s2, {r('wave')}")
e("s_cbranch_scc0 L_bump")
g.label("L_bumped")


def bump_tail():
    g.label("L_bump")
    e(f"v_and_b32 {ta_}, 7, {lane_}")
    if MAP1 == 8:
        e(f"v_lshrrev_b32 {tb_}, 2, {ta_}")
        e(f"v_and_b32 {ta_}, 3, {ta_}")
    else:
        e(f"v_lshrrev_b32 {tb_}, 1, {ta_}")
        e(f"v_and_b32 {ta_}, 1, {ta_}")
    e(f"v_mul_u32_u24 {tb_}, {2 * G2S}, {tb_}")
    e(f"v_lshl_add_u32 {ta_}, {ta_}, {L2S + 3}, {tb_}")
    e(f"s_mov_b32 {T2}, {F2B}")
    if SPINMAX:
        e(f"s_mov_b32 {T4}, 0")
    g.label("L_bump_l")
    e(f"buffer_load_dwordx2 {pf_}, {ta_}, {sws_}, {T2} offen sc1")
    e("s_waitcnt vmcnt(0)")
    e(f"v_cmp_ne_u64 vcc, {tagr_}, {pf_}")
    if SPINMAX:
        e(f"s_add_u32 {T4}, {T4}, 1")
        e(f"s_cmp_gt_u32 {T4}, {SPINMAX}")
        e("s_cbranch_scc1 L_bumped")
    e("s_cmp_eq_u64 vcc, 0")
    e("s_cbranch_scc0 L_bump_l")
    e(f"s_mov_b32 {T2}, {EPOCH}")
    e("s_mov_b64 exec, 1")
    e(f"buffer_store_dwordx2 {vtag_}, {zero_}, {sws_}, {T2} offen sc1")
    e("s_mov_b64 exec, -1")
    e("s_branch L_bumped2")


tagr_, sws_, vtag_, zero_, ta_, tb_, lane_, pf_ = r("tag"), r("sWS"), r("vtag", 0, 2), r("zero"), r("ta"), r("tb"), r("lane"), r("pf")
tails.append(bump_tail)
e("s_waitcnt vmcnt(0)")
g.label("L_bumped2")
stamp("z")
stamp("z", "g2")
for nb in range(4):
    e(f"ds_read_b64_tr_b16 {r('zr', 2 * nb, 2)}, {r('zt')} offset:{8192 + 512 * nb}", f"zr{nb}")
for k in range(8):
    e(f"v_pk_mul_f32 {Mm(k)}, {Mm(k)}, {Tt(k)}")
for nb in range(4):
    g.wait(lg=f"zr{nb}")
    run(unpack("ps", 16 + 4 * nb, "zr", 2 * nb, 2))
    for k in (2 * nb, 2 * nb + 1):
        e(f"v_pk_fma_f32 {Mm(k)}, {Mm(k)}, {Tt(k)}, {r('xfp', 2 * k, 2)}")
    for k in (2 * nb, 2 * nb + 1):
        e(f"v_cvt_pk_bf16_f32 {r('zr', k, 1)}, {r('ps', 2 * k, 1)}, {r('ps', 2 * k + 1, 1)}")
    e(f"ds_write_b64 {r('ea', nb, 1)}, {r('zr', 2 * nb, 2)} offset:10240", "ow")
e(f"ds_read_b128 {r('ps', 32, 4)}, {r('oa')} offset:10240", "or0")
e(f"ds_read_b128 {r('ps', 36, 4)}, {r('oa')} offset:11264", "or1")
g.wait(lg="or0")
e(f"buffer_store_dwordx4 {r('ps', 32, 4)}, {r('xs', 0, 1)}, {r('sA')}, {r('tile0')} offen {OPOL}", "ost")
g.wait(lg="or1")
e(f"buffer_store_dwordx4 {r('ps', 36, 4)}, {r('xs', 1, 1)}, {r('sA')}, {r('tile0')} offen offset:1024 {OPOL}", "ost")
stamp("out")
stamp("out", "g2")
if STAMPS:
    e("s_waitcnt vmcnt(0)")
    stamp("end")
    g.smem_out = True
    flush_stamps(True)
    e(f"s_lshl_b32 {T2}, s2, 2")
    e(f"s_add_u32 {T2}, {T2}, {r('wave')}")
    e(f"s_lshl_b32 {T2}, {T2}, 7")
    e(f"s_add_u32 {T2}, {T2}, {STAMP}")
    e(f"v_lshlrev_b32 {r('ta')}, 2, {r('lane')}")
    e("s_mov_b32 exec_hi, 0")
    e(f"buffer_store_dword {r('stamps')}, {r('ta')}, {r('sWS')}, {T2} offen")
    if DBG:
        e(f"s_cmp_lg_u32 {T2}, {STAMP + (DBG - 1) * 512}")
        e("s_cbranch_scc1 L_end")
        e(f"v_readfirstlane_b32 {T3}, {r('stamps')}")
        e(f"v_subrev_u32 {r('tb')}, {T3}, {r('stamps')}")
        e(f"global_store_dword {r('ta')}, {r('tb')}, {ptr(12)}")
if AMP:
    e("s_waitcnt vmcnt(0) lgkmcnt(0)")
    e("s_memrealtime s[100:101]")
    e("s_sub_u32 s98, s98, s96")
    e("s_lshl_b32 s98, s98, 1")
    e("s_waitcnt lgkmcnt(0)")
    g.label("L_amp")
    e(f"s_memrealtime {r('t45', 0, 2)}")
    e("s_waitcnt lgkmcnt(0)")
    e(f"s_sub_u32 {T1_}, {T1_}, s100")
    e(f"s_cmp_lt_u32 {T1_}, s98")
    e("s_cbranch_scc1 L_amp")
if UNTIL:
    g.label("L_until")
    e(f"s_memrealtime {r('t45', 0, 2)}")
    e("s_waitcnt lgkmcnt(0)")
    e(f"s_sub_u32 {T1_}, {T1_}, {r('t_start', 0, 1)}")
    e(f"s_cmp_lt_u32 {T1_}, {UNTIL}")
    e("s_cbranch_scc1 L_until")
PAD = int(opt.get("pad", 0))
if PAD:
    e(f"s_mov_b32 {T2}, 0")
    g.label("L_pad")
    for _ in range(120):
        e(f"v_add_u32 {r('ta')}, 1, {r('tb')}")
    e(f"s_add_u32 {T2}, {T2}, 1")
    e(f"s_cmp_lt_u32 {T2}, {PAD}")
    e("s_cbranch_scc1 L_pad")
g.label("L_end")
e("s_endpgm")
for t_ in tails:
    t_()

body = g.finish()
hdr = open("cdna_kernels/" + NAME + ".s.ref").read().split("; @launch")[0]
nv = 256 + g.hw["a"]
txt = f"""{hdr}; @launch grid=(256,1,1) block=(256,1,1) lds={LDSZ}
.amdgcn_target "amdgcn-amd-amdhsa--gfx950"
.text
.globl {NAME}_kernel
.p2align 8
.type {NAME}_kernel,@function
{NAME}_kernel:
{body}
    s_endpgm
.section .rodata,"a"
.p2align 6
.amdhsa_kernel {NAME}_kernel
  .amdhsa_next_free_vgpr {nv}
  .amdhsa_next_free_sgpr 102
  .amdhsa_accum_offset 256
  .amdhsa_group_segment_fixed_size 0
  .amdhsa_kernarg_size 112
  .amdhsa_user_sgpr_count 2
  .amdhsa_user_sgpr_kernarg_segment_ptr 1
  .amdhsa_system_sgpr_workgroup_id_x 1
.end_amdhsa_kernel
"""
import subprocess, re
open("_g.s", "w").write(txt.replace("CODE_BYTES", "0x1000"))
subprocess.check_call(["clang", "-x", "assembler", "-target", "amdgcn-amd-amdhsa", "-mcpu=gfx950", "-c", "_g.s", "-o", "_g.o"])
hh = subprocess.check_output(["llvm-objdump", "-h", "_g.o"]).decode()
size = int(re.search(r"\.text\s+([0-9a-f]+)", hh).group(1), 16)
txt = txt.replace("CODE_BYTES", str((size - 256) & ~3))
open(OUT, "w").write(txt)
print("code bytes", size, "instrs", len(g.ins), "nops", g.nops, "hw", g.hw, "stamps", nst[0], " ".join(stnames))
```

```python
import sys, struct, re
from dsl import Gen, It, win, schedule

NAME = "recurrent_scan__ssm_conv_h3__mixer_channel_mlp__prompt"
opt = dict(a.split("=") for a in sys.argv[2:])
OUT = sys.argv[1]
MAP1 = int(opt.get("map1", 4))
STAMPS = int(opt.get("stamps", 0))
KVPOL = opt.get("kvpol", "")
XPOL0 = opt.get("xpol", "")
KPOL = opt.get("kpol", "")
SPINMAX = int(opt.get("spinmax", 0))
PREDIV = int(opt.get("prediv", 16))
OPOL = opt.get("opol", "")
DBG = int(opt.get("dbg", 0))
SSET = opt.get("sset", "main")
TOUCH = int(opt.get("touch", 0))
NH0 = int(opt.get("nh0", 14))
NX0 = int(opt.get("nx0", 7))

KP = int(opt.get("kp", 4352))
KVT, HB, YT, FL, EPOCH, STAMP = 0, 0x240000, 0x800000, 0xA40000, 0xB00000, 0xC00000
F1B, F2B, F3B = FL, FL + 0x30000, FL + 0x60000
L1S, L2S, L3S = (int(opt.get(k, d)) for k, d in (("l1s", 6), ("l2s", 6), ("l3s", 6)))
G1S, G2S, G3S = max(32 << L1S, 256) + 256, max(32 << L2S, 256) + 256, max(64 << L3S, 256) + 256
STA, STB = 0xAE0000, 0xAE0010
HALT = int(opt.get("halt", "0"), 0)
WSZ = 0xD00000 + HALT
XST, KVIMG, CSX, STT = 98816, 147968, 156288, 156672
FP, GP = 4160, 4576
WR = 49664
UB0 = 66048
S3, S4 = 49664, 33280
PX = 49664
B1T, B2T = 157696, 158080
LDSZ = 158336


def f2u(x):
    return struct.unpack("<I", struct.pack("<f", x))[0]


g = Gen()
e, r = g.e, g.r
V = lambda n, c=1, **k: g.alloc("v", n, c, **k)
S = lambda n, c=1, **k: g.alloc("s", n, c, **k)
AC = lambda n, c=1, **k: g.alloc("a", n, c, **k)
W = lambda **k: It(lambda: g.wait(**k), 0.3)
E = lambda s, t=None, cost=None: It(lambda: e(s, t), cost or (1.2 if s.startswith(('ds_', 'buffer_', 'global_')) else 0.3 if s.startswith('s_') else 1))


def run(items):
    for it in items:
        it()


def weave(main, *bgs):
    slots = [[] for _ in main]
    for items, a, b in bgs:
        b = min(b, len(main) - 1)
        n = len(items)
        for k, it in enumerate(items):
            slots[a + (k * (b - a + 1)) // max(n, 1)].append(it)
    out = []
    for m, s in zip(main, slots):
        out.append(m)
        out.extend(s)
    return out


S("karg", 2, at=0); S("wg", 1, at=2); S("t0", 1, at=3)
S("t45", 4, at=4)
for i_ in range(14):
    S(f"ptr{i_}", 2, at=8 + 2 * i_)
V("tid", 1, at=0)
nst = [0]
stnames = []
pend = []
if STAMPS:
    S("st", 8, at=94, align=2)
    V("stamps", 1, at=1)


def flush_stamps(force=False):
    if pend and (force or len(pend) == 4) and g.smem_out:
        g.wait(lg=0)
    if not g.smem_out:
        for k in pend:
            e(f"v_writelane_b32 {r('stamps')}, {r('st', 2 * (k % 4), 1)}, {k}")
        pend.clear()


AMP = opt.get("amp", "")


def stamp(name, grp="main"):
    if AMP and grp == "main" and name in ("start", AMP):
        so_ = g.smem_out
        e(f"s_memrealtime s[{96 if name == 'start' else 98}:{97 if name == 'start' else 99}]")
        if name != "start":
            g.smem_out = so_
    if STAMPS and (grp == SSET or name in ("start", "end")) and name not in opt.get("skip", "").split(","):
        assert nst[0] < 32
        if STAMPS == 3:
            if len(pend) == 3:
                k = pend.pop(0)
                e(f"v_writelane_b32 {r('stamps')}, {r('st', 2 * (k % 4), 1)}, {k}")
            so_ = g.smem_out
            e(f"s_memtime {r('st', 2 * (nst[0] % 4), 2)}")
            g.smem_out = so_
            pend.append(nst[0]); nst[0] += 1; stnames.append(name)
            return
        flush_stamps()
        e(f"{'s_memtime' if STAMPS == 2 else 's_memrealtime'} {r('st', 2 * (nst[0] % 4), 2)}")
        pend.append(nst[0])
        nst[0] += 1
        stnames.append(name)


_wait = g.wait
_wn = [0]
VM0 = int(opt.get("vm0", 0))


def wait_hook(vm=None, lg=None):
    hook = SSET == "vm" and vm is not None and not str(vm).startswith("H")
    if hook:
        _wn[0] += 1
        hook = VM0 < _wn[0] <= VM0 + 15
    if hook:
        stamp(f"b{vm}", "vm")
    _wait(vm=vm, lg=lg)
    if hook:
        stamp(f"a{vm}", "vm")


g.wait = wait_hook


def ptr(i):
    if i == 13 and "ptr13" not in g.names:
        return r("sWS", 0, 2)
    return r(f"ptr{i}")


def plo(i):
    return "s" + ptr(i)[2:].split(":")[0]


def phi(i):
    return "s" + ptr(i).split(":")[1][:-1]


def srd(name, pi, nbytes, add=None):
    if add is None:
        e(f"s_mov_b64 {r(name,0,2)}, {ptr(pi)}")
    else:
        e(f"s_add_u32 {r(name,0,1)}, {plo(pi)}, {add}")
        e(f"s_addc_u32 {r(name,1,1)}, {phi(pi)}, 0")
    e(f"s_mov_b32 {r(name,2,1)}, {nbytes}")
    e(f"s_mov_b32 {r(name,3,1)}, 0x00020000")


T0, T1_, T2, T3, T4 = "s3", "s4", "s5", "s6", "s7"
ABL = opt.get("abl", "").split(",")
_e0 = g.e


LATE = None


def e(text, tag=None):
    if LATE is not None:
        LATE.append(text)
        return
    t = tag or ""
    if ("x" in ABL and t.startswith("X") and t != "X0") or ("w" in ABL and t.startswith("W") and t != "W0") or \
            ("v" in ABL and t.startswith("V")):
        g.vm.append(tag)
        g.vm.pop()
        g.vm.insert(0, tag)
        return
    hook = SSET == "iss" and (text.startswith(("buffer_", "global_", "s_barrier")) or (text.startswith("s_waitcnt") and "vmcnt" in text))
    if hook:
        _in[0] += 1
        hook = VM0 < _in[0] <= VM0 + 15
    if hook:
        stamp("b" + (tag or text.split()[0][2:6]), "iss")
    _e0(text, tag)
    if hook:
        stamp("a", "iss")


_in = [0]
g.e = e


UNTIL = int(opt.get("until", 0))
if UNTIL:
    S("t_start", 2, at=92)
    e(f"s_memrealtime {r('t_start')}")
stamp("start")
e("s_load_dwordx16 s[8:23], s[0:1], 0")
e("s_load_dwordx8 s[24:31], s[0:1], 64")
e("s_load_dwordx4 s[32:35], s[0:1], 96")
e("s_cmp_ge_u32 s2, 256")
e("s_cbranch_scc1 L_end")
for n in ("lane", "ta", "tb", "tc", "td", "r8", "pc", "zero", "i15", "h4", "l16", "oa", "fa", "ga", "pa", "yw", "zs", "zt",
          "pf1o", "pf2o", "pf3o", "psr", "svr", "kw", "za", "sgo", "csr0", "stw"):
    V(n)
V("vtag", 4); V("xs", 4, align=1); V("w2s", 4, align=1); V("w2r", 8, align=1); V("hv", 4, align=1)
V("pw", 3, align=1); V("ea", 4, align=1); V("pf", 2)
V("xrd", 2, align=1); V("w1r", 6, align=1); V("ctr", 3, align=1); V("w1s", 3, align=1)
AC("fd", 4, at=240); AC("ones", 4, at=244); AC("zz", 4, at=248)
for n in ("wave", "T1", "q", "tt2", "ns", "rot", "b0", "nown", "tok16", "ns128", "tile0", "own", "hmask", "so",
          "f1a", "f2a", "f3a", "yo", "zo", "um0", "ush"):
    S(n)
sh_ = PREDIV.bit_length() - 1
V("pre")
e(f"s_lshr_b32 {T1_}, s2, 3")
e(f"v_lshrrev_b32 {r('tc')}, {sh_}, v0")
e(f"s_and_b32 {T2}, {T1_}, {PREDIV - 1}")
e(f"v_lshl_add_u32 {r('tc')}, {r('tc')}, {sh_}, {T2}")
e(f"v_lshlrev_b32 {r('tc')}, 7, {r('tc')}")
e(f"v_min_u32 {r('tc')}, CODE_BYTES, {r('tc')}")
e(f"s_getpc_b64 {r('t45', 2, 2)}")
e(f"global_load_dword {r('pre')}, {r('tc')}, {r('t45', 2, 2)}", "pre")
e(f"v_and_b32 {r('lane')}, 63, v0")
e(f"v_lshrrev_b32 {r('ta')}, 6, v0")
e(f"s_and_b32 {T0}, s2, 7")
e(f"v_readfirstlane_b32 {r('wave')}, {r('ta')}")
if MAP1 == 8:
    e(f"s_lshr_b32 {T2}, {T1_}, 4")
    e(f"s_lshl_b32 {r('T1')}, {T0}, 1")
    e(f"s_add_u32 {r('T1')}, {r('T1')}, {T2}")
    e(f"s_and_b32 {r('q')}, {T1_}, 15")
    e(f"s_lshl_b32 {T2}, {T2}, 2")
    e(f"s_add_u32 {r('rot')}, {T2}, {r('q')}")
else:
    e(f"s_lshr_b32 {T2}, {T0}, 1")
    e(f"s_lshl_b32 {T2}, {T2}, 2")
    e(f"s_lshr_b32 {T3}, {T1_}, 3")
    e(f"s_add_u32 {r('T1')}, {T2}, {T3}")
    e(f"s_and_b32 {T2}, {T0}, 1")
    e(f"s_lshl_b32 {T2}, {T2}, 3")
    e(f"s_add_u32 {T3}, {T1_}, {int(opt.get('jrot', 0))}")
    e(f"s_and_b32 {T3}, {T3}, 7")
    e(f"s_add_u32 {r('q')}, {T2}, {T3}")
    e(f"s_lshl_b32 {T2}, {r('T1')}, 1")
    e(f"s_add_u32 {r('rot')}, {T2}, {r('q')}")
e(f"s_and_b32 {r('rot')}, {r('rot')}, 7")
e(f"s_lshr_b32 {T2}, {r('q')}, 3")
e(f"s_lshl_b32 {r('tt2')}, {r('T1')}, 1")
e(f"s_add_u32 {r('tt2')}, {r('tt2')}, {T2}")
e(f"s_and_b32 {r('ns')}, {r('q')}, 7")
V("k0"); V("kd", 2, align=1); V("sho")
e(f"v_lshrrev_b32 {r('r8')}, 3, {r('lane')}")
e(f"v_and_b32 {r('pc')}, 7, {r('lane')}")
e(f"s_lshl_b32 {T2}, {r('tt2')}, 2")
e(f"s_add_u32 {r('tok16')}, {T2}, {r('wave')}")
e(f"s_lshl_b32 {T2}, {r('tok16')}, 14")
e(f"s_lshl_b32 {r('ns128')}, {r('ns')}, 7")
e(f"s_add_u32 {r('tile0')}, {T2}, {r('ns128')}")
e(f"s_mul_i32 {r('own')}, {r('wave')}, 12288")
e(f"s_add_u32 {r('own')}, {r('own')}, {XST}")
S("sA", 4); S("sB", 4); S("sX", 4); S("sW1", 4); S("sWS", 4)
for nm, sz in (("sX", 2097152), ("sW1", 1409024)):
    e(f"s_mov_b32 {r(nm,2,1)}, {sz}")
    e(f"s_mov_b32 {r(nm,3,1)}, 0x00020000")
for c in range(3):
    e(f"v_add_u32 {r('ta')}, {64 * c}, {r('lane')}")
    e(f"v_mul_u32_u24 {r('tb')}, 43691, {r('ta')}")
    e(f"v_lshrrev_b32 {r('tb')}, 19, {r('tb')}")
    e(f"v_mul_u32_u24 {r('tc')}, 12, {r('tb')}")
    e(f"v_sub_u32 {r('tc')}, {r('ta')}, {r('tc')}")
    e(f"v_lshrrev_b32 {r('td')}, 2, {r('tb')}")
    e(f"v_and_b32 {r('td')}, 2, {r('td')}")
    e(f"v_xor_b32 {r('tc')}, {r('tc')}, {r('td')}")
    e(f"v_mul_u32_u24 {r('tb')}, 2752, {r('tb')}")
    e(f"v_lshl_add_u32 {r('tb')}, {r('tc')}, 4, {r('tb')}")
    e(f"v_subrev_u32 {r('w1s', c, 1)}, {1024 * c}, {r('tb')}")
e(f"s_mul_i32 {r('b0')}, {r('q')}, 3")
e(f"s_lshr_b32 {T2}, {r('q')}, 2")
e(f"s_sub_u32 {r('b0')}, {r('b0')}, {T2}")
e(f"s_min_u32 {T2}, {r('q')}, 1")
e(f"s_sub_u32 {r('b0')}, {r('b0')}, {T2}")
e(f"s_bitcmp1_b32 0x8889, {r('q')}")
e(f"s_cselect_b32 {r('nown')}, 2, 3")
S("w1lds"); S("xbase"); S("xk"); S("wo"); S("wlim")
e(f"s_lshl_b32 {T3}, {r('b0')}, 6")
e(f"s_lshl_b32 {T2}, {r('T1')}, 2")
e(f"s_add_u32 {T2}, {T2}, {r('wave')}")
e(f"s_lshl_b32 {r('xbase')}, {T2}, 15")
e(f"s_lshl_b32 {r('xk')}, {r('rot')}, 7")
e(f"s_mul_i32 {T4}, {r('wave')}, {16 * 2752}")
e(f"s_add_u32 {T4}, {T4}, {T3}")
e(f"s_add_u32 {r('wlim')}, {T4}, {512 * 2752}")
e(f"s_mul_i32 {T2}, {r('rot')}, {64 * 2752}")
e(f"s_add_u32 {r('wo')}, {T2}, {T4}")
e(f"s_mul_i32 {r('w1lds')}, {r('wave')}, 3072")
e(f"s_add_u32 {r('w1lds')}, {r('w1lds')}, {WR}")
e(f"v_lshrrev_b32 {r('ta')}, 1, {r('r8')}")
e(f"v_xor_b32 {r('ta')}, {r('ta')}, {r('pc')}")
e(f"v_lshlrev_b32 {r('ta')}, 4, {r('ta')}")
e(f"v_lshl_add_u32 {r('xs', 0, 1)}, {r('r8')}, 10, {r('ta')}")
e(f"v_xor_b32 {r('tb')}, 64, {r('xs', 0, 1)}")
e(f"v_add_u32 {r('xs', 1, 1)}, 7168, {r('tb')}")
e(f"v_add_u32 {r('xs', 2, 1)}, {2 * 7168}, {r('xs', 0, 1)}")
e(f"v_add_u32 {r('xs', 3, 1)}, {3 * 7168}, {r('tb')}")
g.wait(lg=0)
e(f"s_mov_b64 {r('sX',0,2)}, {ptr(0)}")
e(f"s_mov_b64 {r('sW1',0,2)}, {ptr(7)}")


def dmaW1(n):
    items = []
    for c in range(3):
        def it(c=c):
            if c == 0:
                e(f"s_add_u32 m0, {r('w1lds')}, {(n % 4) * 12288}")
                if n:
                    e(f"s_cmp_ge_u32 {r('wo')}, {r('wlim')}")
                    e(f"s_cselect_b32 {T2}, {512 * 2752}, 0")
                    e(f"s_sub_u32 {r('wo')}, {r('wo')}, {T2}")
            e(f"buffer_load_dwordx4 {r('w1s', c, 1)}, {r('sW1')}, {r('wo')} offen offset:{1024 * c} lds", f"W{n}")
            if c == 2:
                e(f"s_add_u32 {r('wo')}, {r('wo')}, {64 * 2752}")
        items.append(It(it, (2, 1.2, 1.5)[c]))
    return items


def dmaX(ei):
    items = []
    for n in range(4):
        def it(n=n):
            xo = r("so")
            if n == 0:
                e(f"s_add_u32 m0, {r('own')}, {(ei % 3) * 4096}")
                e(f"s_or_b32 {xo}, {r('xk')}, {r('xbase')}")
            pol = XPOL0 if ei < 1 else ""
            e(f"buffer_load_dwordx4 {r('xs', n, 1)}, {r('sX')}, {xo} offen offset:{1024 * n} {pol} lds", f"X{ei}")
            if n == 1:
                e(f"s_add_u32 {r('xk')}, {r('xk')}, 128")
            if n == 2:
                e(f"s_and_b32 {r('xk')}, {r('xk')}, 0x3ff")
        items.append(It(it, (1.8, 1.5, 1.5, 1.2)[n]))
    return items


srd("sWS", 13, WSZ, add=(int(opt.get("wsb", 0)) << 20) or None)
V("sx", 8, at=200); V("sacc", 4); V("u", 4); V("gq", 4); V("stv", 2)
e(f"v_mov_b32 {r('zero')}, 0")
e(f"s_mov_b32 {T0}, {EPOCH}")
e("s_mov_b64 exec, 1")
e(f"buffer_load_dwordx2 {r('pf')}, {r('zero')}, {r('sWS')}, {T0} offen sc1", "ep")
e("s_mov_b64 exec, -1")
e(f"v_lshrrev_b32 {r('ta')}, 5, {r('lane')}")
e(f"v_and_b32 {r('tb')}, 31, {r('lane')}")
e(f"v_lshlrev_b32 {r('tb')}, 4, {r('tb')}")
e(f"v_lshl_add_u32 {r('tb')}, {r('ta')}, 10, {r('tb')}")
e(f"s_lshl_b32 {T2}, {r('T1')}, 4")
e(f"s_add_u32 {T2}, {T2}, {r('q')}")
e(f"s_lshl_b32 {T2}, {T2}, 2")
e(f"s_add_u32 {T2}, {T2}, {r('wave')}")
e(f"s_lshl_b32 {T3}, {T2}, 11")
e(f"buffer_load_dwordx4 {r('sx', 0, 4)}, {r('tb')}, {r('sX')}, {T3} offen", "sx")
e(f"buffer_load_dwordx4 {r('sx', 4, 4)}, {r('tb')}, {r('sX')}, {T3} offen offset:512", "sx")
e(f"s_lshl_b32 {T2}, {T2}, 6")
e(f"s_add_u32 {T2}, {T2}, {STA}")
e(f"v_lshl_add_u32 {r('stw')}, {r('lane')}, 4, {T2}")
run(dmaX(0) + dmaW1(0) + dmaW1(1))
S("sD")
e(f"s_lshl_b32 {T2}, s2, 2")
e(f"s_load_dword {r('sD')}, {ptr(5)}, {T2}")
stamp("p0iss")
g.free("ptr0", "ptr6", "ptr7", "ptr13", "karg", "rot", "ptr5")
S("tag", 2)
if not DBG:
    g.free("ptr12")
e(f"v_lshlrev_b32 {r('tb')}, 4, {r('pc')}")
e(f"v_lshl_add_u32 {r('ta')}, {r('r8')}, 11, {r('tb')}")
KVX = int(opt.get("kvx", 4))
e(f"s_xor_b32 {T4}, {r('tile0')}, {128 * KVX}")
e(f"v_add_u32 {r('k0')}, {T4}, {r('ta')}")
e(f"v_lshl_add_u32 {r('ta')}, {r('r8')}, 10, {r('tb')}")
e(f"v_add_u32 {r('kd', 1, 1)}, {T4}, {r('ta')}")
e(f"v_subrev_u32 {r('kd', 0, 1)}, 8192, {r('kd', 1, 1)}")
e(f"v_lshlrev_b32 {r('l16')}, 4, {r('lane')}")
e(f"s_lshl_b32 {T3}, {r('ns')}, 9")
e(f"s_xor_b32 {T3}, {T3}, {512 * KVX}")
e(f"v_add_u32 {r('sho')}, {T3}, {r('l16')}")
e(f"v_mov_b32 {r('zero')}, 0")
S("wodd"); S("whi"); S("chan"); V("sa"); V("sb"); V("bb", 2, align=1)
e(f"s_and_b32 {r('wodd')}, {r('wave')}, 1")
e(f"s_lshr_b32 {r('whi')}, {r('wave')}, 1")
e(f"s_lshl_b32 {T2}, s2, 1")
e(f"s_add_u32 {r('chan')}, {T2}, {r('whi')}")
e(f"s_lshl_b32 {r('chan')}, {r('chan')}, 12")
e(f"s_add_u32 {plo(4)}, {plo(4)}, {r('chan')}")
e(f"s_addc_u32 {phi(4)}, {phi(4)}, 0")
e(f"s_lshl_b32 {T3}, {r('wodd')}, 11")
e(f"v_add_u32 {r('sa')}, {T3}, {r('l16')}")
e(f"v_subrev_u32 {r('sb')}, 8, {r('sa')}")
S("kim")
e(f"s_lshl_b32 {r('kim')}, {r('wave')}, 12")
e(f"s_add_u32 {r('kim')}, {r('kim')}, {S4}")
srd("sA", 1, 2097152)
srd("sB", 2, 2097152)
g.free("ptr1", "ptr2")
lateA, lateB, lateC = [], [], []
S("L0"); S("L2"); S("L3"); S("L4")
V("kvw"); V("kvr"); V("kvs"); V("kra"); V("sra"); V("bw", 2, align=1)
e(f"v_and_b32 {r('i15')}, 15, {r('lane')}")
e(f"v_lshrrev_b32 {r('h4')}, 4, {r('lane')}")
e(f"v_add_u32 {r('oa')}, {r('own')}, {r('l16')}")
e(f"v_lshlrev_b32 {r('ta')}, 4, {r('pc')}")
e(f"v_lshl_add_u32 {r('ta')}, {r('r8')}, 8, {r('ta')}")
e(f"v_add_u32 {r('kra')}, {r('kim')}, {r('ta')}")
e(f"v_lshl_add_u32 {r('sra')}, {r('pc')}, 6, {r('kim')}")
e(f"v_lshrrev_b32 {r('ta')}, 1, {r('i15')}")
e(f"v_xor_b32 {r('ta')}, {r('ta')}, {r('h4')}")
e(f"v_lshlrev_b32 {r('ta')}, 4, {r('ta')}")
e(f"v_lshl_add_u32 {r('ta')}, {r('i15')}, 7, {r('ta')}")
e(f"v_add_u32 {r('xrd', 0, 1)}, {r('own')}, {r('ta')}")
e(f"v_xor_b32 {r('xrd', 1, 1)}, 64, {r('xrd', 0, 1)}")
e(f"v_lshrrev_b32 {r('ta')}, 2, {r('i15')}")
e(f"v_lshl_add_u32 {r('ta')}, {r('h4')}, 3, {r('ta')}")
e(f"v_mul_u32_u24 {r('ta')}, 192, {r('ta')}")
e(f"v_and_b32 {r('tb')}, 3, {r('lane')}")
e(f"v_lshl_add_u32 {r('ta')}, {r('tb')}, 3, {r('ta')}")
e(f"v_add_u32 {r('ta')}, {WR}, {r('ta')}")
e(f"v_and_b32 {r('tb')}, 1, {r('h4')}")
e(f"v_lshlrev_b32 {r('tb')}, 5, {r('tb')}")
e(f"v_add_u32 {r('tc')}, {r('ta')}, {r('tb')}")
e(f"v_sub_u32 {r('td')}, {r('ta')}, {r('tb')}")
S("bp", 3, align=1)
for jp in range(3):
    e(f"s_add_u32 {T2}, {r('wave')}, {jp}")
    e(f"s_cmp_ge_u32 {T2}, 3")
    e(f"s_cselect_b32 {T3}, 3, 0")
    e(f"s_sub_u32 {r('bp', jp, 1)}, {T2}, {T3}")
    e(f"s_lshl_b32 {T2}, {r('bp', jp, 1)}, 6")
    e(f"v_add_u32 {r('w1r', 2 * jp, 1)}, {T2}, {r('tc')}")
    e(f"v_add_u32 {r('w1r', 2 * jp + 1, 1)}, {T2}, {r('td')}")
e(f"v_mul_u32_u24 {r('ta')}, 1040, {r('pc')}")
e(f"v_lshlrev_b32 {r('tb')}, 2, {r('r8')}")
e(f"v_sub_u32 {r('ta')}, {r('ta')}, {r('tb')}")
e(f"s_lshl_b32 {T2}, {r('wave')}, 5")
e(f"s_sub_u32 {T2}, {KVIMG + 124}, {T2}")
e(f"v_add_u32 {r('kvw')}, {T2}, {r('ta')}")
e(f"s_mul_i32 {T2}, {r('wave')}, 2080")
e(f"s_add_u32 {T2}, {T2}, {KVIMG}")
e(f"v_add_u32 {r('kvr')}, {T2}, {r('l16')}")
e(f"v_mul_u32_u24 {r('ta')}, {KP}, {r('r8')}")
e(f"v_lshl_add_u32 {r('kvs')}, {r('pc')}, 4, {r('ta')}")
e(f"v_mov_b32 {r('ta')}, 0x3f803f80")
for i in range(4):
    e(f"v_accvgpr_write_b32 {r('ones', i, 1)}, {r('ta')}")
e(f"s_mov_b32 {r('hmask')}, 0xffff0000")
S("kvo")
e(f"s_lshl_b32 {T2}, {r('ns')}, 2")
e(f"s_xor_b32 {T2}, {T2}, {4 * KVX}")
e(f"s_add_u32 {T2}, {T2}, {r('wave')}")
e(f"s_mul_i32 {r('f1a')}, {T2}, {G1S}")
e(f"s_lshl_b32 {T3}, {r('tt2')}, {L1S}")
e(f"s_add_u32 {r('f1a')}, {r('f1a')}, {T3}")
e(f"s_add_u32 {r('f1a')}, {r('f1a')}, {F1B}")
e(f"s_mul_i32 {T2}, {T2}, {16 * KP}")
e(f"s_sub_u32 {T3}, 31, {r('tt2')}")
e(f"s_lshl_b32 {T3}, {T3}, 7")
e(f"s_add_u32 {r('kvo')}, {T2}, {T3}")
LATE = lateB
e(f"s_lshl_b32 {T2}, {r('T1')}, 1")
e(f"s_add_u32 {T2}, {T2}, {r('whi')}")
e(f"s_mul_i32 {r('f2a')}, {T2}, {G2S}")
e(f"s_lshl_b32 {T2}, {r('q')}, 1")
e(f"s_add_u32 {T2}, {T2}, {r('wodd')}")
e(f"s_lshl_b32 {T2}, {T2}, {L2S}")
e(f"s_add_u32 {r('f2a')}, {r('f2a')}, {T2}")
e(f"s_add_u32 {r('f2a')}, {r('f2a')}, {F2B}")
e(f"s_lshr_b32 {T2}, {r('chan')}, 18")
e(f"s_lshl_b32 {T2}, {T2}, 1")
e(f"s_add_u32 {T2}, {T2}, {r('wodd')}")
e(f"s_mul_i32 {r('f3a')}, {T2}, {G3S}")
e(f"s_lshr_b32 {T2}, {r('chan')}, 12")
e(f"s_and_b32 {T2}, {T2}, 63")
e(f"s_lshl_b32 {T2}, {T2}, {L3S}")
e(f"s_add_u32 {r('f3a')}, {r('f3a')}, {T2}")
e(f"s_add_u32 {r('f3a')}, {r('f3a')}, {F3B}")
e(f"v_lshlrev_b32 {r('tc')}, 3, {r('lane')}")
e(f"v_add_u32 {r('zt')}, {r('own')}, {r('tc')}")
e(f"s_mul_i32 {T2}, {T1_}, {G1S}")
e(f"s_add_u32 {T2}, {T2}, {F1B}")
e(f"v_lshrrev_b32 {r('pf1o')}, 1, {r('lane')}")
e(f"v_lshl_add_u32 {r('pf1o')}, {r('pf1o')}, {L1S}, {T2}")
e(f"s_lshr_b32 {T2}, {r('tt2')}, 4")
e(f"s_lshl_b32 {T3}, {r('ns')}, 1")
e(f"s_add_u32 {T2}, {T2}, {T3}")
e(f"s_mul_i32 {T2}, {T2}, {G3S}")
e(f"s_add_u32 {T2}, {T2}, {F3B}")
e(f"v_lshl_add_u32 {r('pf3o')}, {r('lane')}, {L3S}, {T2}")
e(f"v_min_u32 {r('pf2o')}, 9, {r('lane')}")
e(f"s_lshl_b32 {T2}, {r('wave')}, 3")
e(f"v_add_u32 {r('pf2o')}, {T2}, {r('pf2o')}")
e(f"v_min_u32 {r('pf2o')}, 31, {r('pf2o')}")
e(f"s_mul_i32 {T2}, {r('tt2')}, {G2S}")
e(f"s_add_u32 {T2}, {T2}, {F2B}")
e(f"v_lshl_add_u32 {r('pf2o')}, {r('pf2o')}, {L2S}, {T2}")
LATE = None
e(f"v_min_u32 {r('ta')}, 47, {r('lane')}")
e(f"v_lshlrev_b32 {r('bw', 0, 1)}, 3, {r('ta')}")
e(f"v_add_u32 {r('bw', 0, 1)}, {B1T}, {r('bw', 0, 1)}")
e(f"s_lshl_b32 {T2}, {r('b0')}, 6")
e(f"v_lshl_add_u32 {r('bb', 0, 1)}, {r('ta')}, 2, {T2}")
e(f"v_min_u32 {r('bb', 0, 1)}, 2748, {r('bb', 0, 1)}")
e(f"v_and_b32 {r('ta')}, 31, {r('lane')}")
e(f"v_lshlrev_b32 {r('bw', 1, 1)}, 3, {r('ta')}")
e(f"v_add_u32 {r('bw', 1, 1)}, {B2T}, {r('bw', 1, 1)}")
e(f"v_lshl_add_u32 {r('bb', 1, 1)}, {r('ta')}, 2, {r('ns128')}")
LATE = lateA
e(f"v_and_b32 {r('ta')}, 6, {r('r8')}")
e(f"v_xor_b32 {r('ta')}, {r('ta')}, {r('pc')}")
e(f"v_lshlrev_b32 {r('ta')}, 4, {r('ta')}")
e(f"v_lshl_add_u32 {r('w2s', 0, 1)}, {r('r8')}, 10, {r('ta')}")
e(f"v_add_u32 {r('w2s', 0, 1)}, {r('ns128')}, {r('w2s', 0, 1)}")
for n in range(1, 4):
    e(f"v_add_u32 {r('w2s', n, 1)}, {7168 * n}, {r('w2s', 0, 1)}")
e(f"v_lshrrev_b32 {r('ta')}, 2, {r('i15')}")
e(f"v_lshl_add_u32 {r('ta')}, {r('h4')}, 2, {r('ta')}")
e(f"v_lshrrev_b32 {r('tb')}, 1, {r('ta')}")
e(f"v_and_b32 {r('tb')}, 3, {r('tb')}")
e(f"v_lshlrev_b32 {r('tb')}, 5, {r('tb')}")
e(f"v_lshl_add_u32 {r('tb')}, {r('ta')}, 7, {r('tb')}")
e(f"v_and_b32 {r('ta')}, 3, {r('lane')}")
e(f"v_lshl_add_u32 {r('tb')}, {r('ta')}, 3, {r('tb')}")
e(f"v_add_u32 {r('w2r', 0, 1)}, {r('own')}, {r('tb')}")
S("w4k")
e(f"s_lshl_b32 {r('w4k')}, {r('wave')}, 12")
e(f"v_add_u32 {r('w2r', 4, 1)}, {r('w4k')}, {r('tb')}")
for nb in range(1, 4):
    e(f"v_xor_b32 {r('w2r', nb, 1)}, {32 * nb}, {r('w2r', 0, 1)}")
    e(f"v_xor_b32 {r('w2r', 4 + nb, 1)}, {32 * nb}, {r('w2r', 4, 1)}")
for p in range(11):
    S(f"kb{p}")
e(f"s_lshr_b32 {T0}, {T1_}, 3")
e(f"s_mul_i32 {T0}, {T0}, 3")
e(f"s_mul_i32 {T2}, {r('ns')}, 11")
e(f"s_lshr_b32 {T2}, {T2}, 3")
e(f"s_add_u32 {T0}, {T0}, {T2}")
e(f"s_cmp_ge_u32 {T0}, 11")
e(f"s_cselect_b32 {T2}, 11, 0")
e(f"s_sub_u32 {T0}, {T0}, {T2}")
e(f"s_mul_i32 {T3}, {r('wave')}, 11")
e(f"s_add_u32 {T0}, {T0}, {T3}")
e(f"s_add_u32 {T3}, {T3}, 11")
for p in range(11):
    e(f"s_lshl_b32 {r(f'kb{p}')}, {T0}, 15")
    if p < 10:
        e(f"s_add_u32 {T0}, {T0}, 1")
        e(f"s_cmp_ge_u32 {T0}, {T3}")
        e(f"s_cselect_b32 {T2}, 11, 0")
        e(f"s_sub_u32 {T0}, {T0}, {T2}")
LATE = None
LATE = lateB
e(f"v_and_b32 {r('ta')}, 3, {r('lane')}")
e(f"v_mul_u32_u24 {r('fa')}, {FP}, {r('ta')}")
e(f"v_lshrrev_b32 {r('tb')}, 2, {r('i15')}")
e(f"v_add_u32 {r('tb')}, {r('tb')}, {r('h4')}")
e(f"v_lshl_add_u32 {r('fa')}, {r('tb')}, 4, {r('fa')}")
e(f"s_lshl_b32 {T4}, {r('wodd')}, 8")
e(f"s_mul_i32 {T2}, {r('whi')}, {4 * FP}")
e(f"s_add_u32 {T3}, {T4}, {T2}")
e(f"v_add_u32 {r('fa')}, {T3}, {r('fa')}")
e(f"v_and_b32 {r('tc')}, 1, {r('lane')}")
e(f"v_mul_u32_u24 {r('ga')}, {GP}, {r('tc')}")
e(f"v_lshrrev_b32 {r('td')}, 1, {r('i15')}")
e(f"v_lshlrev_b32 {r('td')}, 2, {r('td')}")
e(f"v_sub_u32 {r('td')}, {r('h4')}, {r('td')}")
e(f"v_add_u32 {r('td')}, 28, {r('td')}")
e(f"v_lshl_add_u32 {r('ga')}, {r('td')}, 4, {r('ga')}")
e(f"s_mul_i32 {T3}, {r('whi')}, {2 * GP}")
e(f"s_add_u32 {T3}, {T3}, {T4}")
e(f"s_add_u32 {T3}, {T3}, {UB0}")
e(f"v_add_u32 {r('ga')}, {T3}, {r('ga')}")
e(f"s_lshl_b32 {T3}, {r('whi')}, 4")
e(f"s_lshr_b32 {r('sD')}, {r('sD')}, {T3}")
e(f"s_and_b32 {r('sD')}, {r('sD')}, 0xffff")
e(f"s_cmp_eq_u32 {r('wodd')}, 0")
e(f"s_cselect_b32 {r('sD')}, {r('sD')}, 0")
e(f"v_xor_b32 {r('tc')}, 1, {r('tc')}")
e(f"v_lshlrev_b32 {r('tc')}, 4, {r('tc')}")
e(f"v_lshlrev_b32_e64 {r('tc')}, {r('tc')}, {r('sD')}")
e(f"v_cmp_eq_u32 vcc, 3, {r('tb')}")
e(f"v_cndmask_b32 {r('tc')}, 0, {r('tc')}, vcc")
e(f"v_cmp_lt_u32 vcc, 1, {r('ta')}")
e(f"v_cndmask_b32 {r('td')}, 0, {r('tc')}, vcc")
e(f"v_sub_u32 {r('tc')}, {r('tc')}, {r('td')}")
e(f"v_accvgpr_write_b32 {r('fd', 0, 1)}, {r('td')}")
e(f"v_accvgpr_write_b32 {r('fd', 1, 1)}, {r('tc')}")
e(f"v_accvgpr_write_b32 {r('fd', 2, 1)}, 0")
e(f"v_accvgpr_write_b32 {r('fd', 3, 1)}, 0")
e(f"s_add_u32 {T3}, {T2}, 48")
e(f"v_add_u32 {r('kw')}, {T3}, {r('sa')}")
e(f"s_mul_i32 {r('um0')}, {r('wave')}, {GP}")
e(f"s_add_u32 {r('um0')}, {r('um0')}, {UB0}")
e(f"s_lshl_b32 {T3}, {r('wodd')}, 3")
e(f"s_sub_u32 {r('ush')}, 8, {T3}")
e(f"s_add_u32 {T4}, {r('um0')}, 4096")
e(f"v_add_u32 {r('za')}, {T4}, {r('l16')}")
e(f"v_subrev_u32 {r('ta')}, 28, {r('lane')}")
e(f"v_min_u32 {r('ta')}, 5, {r('ta')}")
e(f"v_cmp_lt_u32 vcc, 2, {r('ta')}")
e(f"v_lshlrev_b32 {r('ta')}, 4, {r('ta')}")
e(f"v_add_u32 {r('tb')}, {FP - 48}, {r('ta')}")
e(f"v_cndmask_b32 {r('ta')}, {r('ta')}, {r('tb')}, vcc")
e(f"s_mul_i32 {T3}, {r('wave')}, {2 * FP}")
e(f"v_add_u32 {r('ta')}, {T3}, {r('ta')}")
e(f"v_cmp_lt_u32 vcc, 27, {r('lane')}")
e(f"v_cndmask_b32 {r('za')}, {r('za')}, {r('ta')}, vcc")
e(f"s_xor_b32 {T2}, {r('wave')}, 1")
e(f"s_mul_i32 {T2}, {T2}, 12288")
e(f"s_add_u32 {T2}, {T2}, {XST}")
e(f"v_add_u32 {r('pa')}, {T2}, {r('l16')}")
e(f"v_lshrrev_b32 {r('ta')}, 1, {r('i15')}")
e(f"v_lshlrev_b32 {r('ta')}, 6, {r('ta')}")
e(f"v_and_b32 {r('tb')}, 1, {r('lane')}")
e(f"v_lshl_add_u32 {r('ta')}, {r('tb')}, 3, {r('ta')}")
e(f"v_lshl_add_u32 {r('ta')}, {r('h4')}, 4, {r('ta')}")
e(f"v_add_u32 {r('yw')}, {r('own')}, {r('ta')}")
e(f"s_lshl_b32 {T3}, {r('wodd')}, 11")
e(f"s_lshr_b32 {r('chan')}, {r('chan')}, 12")
e(f"s_mul_i32 {r('chan')}, {r('chan')}, {KP}")
e(f"s_add_u32 {T2}, {r('chan')}, {T3}")
e(f"s_add_u32 {r('yo')}, {T2}, {YT}")
LATE = None
LATE = lateC
e(f"v_lshrrev_b32 {r('zs')}, 1, {r('lane')}")
e(f"v_mul_u32_u24 {r('zs')}, {KP}, {r('zs')}")
e(f"v_and_b32 {r('tb')}, 1, {r('lane')}")
e(f"v_lshl_add_u32 {r('zs')}, {r('tb')}, 4, {r('zs')}")
e(f"s_mul_i32 {T2}, {r('ns')}, {64 * KP}")
e(f"s_lshl_b32 {T3}, {r('tok16')}, 5")
e(f"s_add_u32 {T2}, {T2}, {T3}")
e(f"s_add_u32 {r('zo')}, {T2}, {YT}")
for s in range(4):
    e(f"s_add_u32 {T2}, {r('wave')}, {s + 1}")
    e(f"s_and_b32 {T2}, {T2}, 3")
    e(f"s_mul_i32 {T3}, {T2}, 12288")
    if s < 3:
        if PX + 4096 * s:
            e(f"s_add_u32 {T3}, {T3}, {PX + 4096 * s}")
        e(f"v_lshl_add_u32 {r('pw', s, 1)}, {r('lane')}, 3, {T3}")
    else:
        e(f"s_add_u32 {T3}, {T3}, {PX}")
        e(f"v_lshl_add_u32 {r('psr')}, {r('lane')}, 3, {T3}")
    e(f"s_lshl_b32 {T3}, {r('tt2')}, 2")
    e(f"s_add_u32 {T2}, {T2}, {T3}")
    e(f"s_mul_i32 {T2}, {T2}, 44032")
    e(f"s_add_u32 {T2}, {T2}, {HB + HALT}")
    e(f"v_add_u32 {r('hv', s, 1)}, {T2}, {r('l16')}")
e(f"v_lshrrev_b32 {r('ta')}, 1, {r('i15')}")
e(f"v_lshrrev_b32 {r('tb')}, 1, {r('h4')}")
e(f"v_xor_b32 {r('ta')}, {r('ta')}, {r('tb')}")
e(f"v_lshlrev_b32 {r('ta')}, 4, {r('ta')}")
e(f"v_lshl_add_u32 {r('ta')}, {r('i15')}, 7, {r('ta')}")
e(f"v_and_b32 {r('tc')}, 1, {r('h4')}")
e(f"v_lshl_add_u32 {r('ta')}, {r('tc')}, 3, {r('ta')}")
e(f"v_add_u32 {r('ea', 0, 1)}, {r('own')}, {r('ta')}")
for nb in range(1, 4):
    e(f"v_xor_b32 {r('ea', nb, 1)}, {32 * nb}, {r('ea', 0, 1)}")
e(f"s_lshl_b32 {T2}, {r('tok16')}, 9")
e(f"s_add_u32 {T2}, {T2}, {STB}")
e(f"v_lshl_add_u32 {r('svr')}, {r('i15')}, 5, {T2}")
LATE = None
LATE = lateA
e(f"v_lshrrev_b32 {r('tb')}, 1, {r('h4')}")
e(f"s_lshr_b32 {T2}, {r('xbase')}, 5")
e(f"s_add_u32 {T2}, {T2}, {STA}")
e(f"v_lshl_add_u32 {r('sgo')}, {r('i15')}, 5, {T2}")
e(f"v_lshl_add_u32 {r('sgo')}, {r('tb')}, 9, {r('sgo')}")
LATE = None
S("m1", 2)
e(f"s_mov_b32 {r('m1', 0, 1)}, 0xaaaaaaaa"); e(f"s_mov_b32 {r('m1', 1, 1)}, 0xaaaaaaaa")
LATE = lateA
e(f"v_lshlrev_b32 {r('ta')}, 4, {r('h4')}")
e(f"v_add_u32 {r('csr0')}, {CSX}, {r('ta')}")
for jp in range(3):
    g.names[f"ho{jp}"] = ("s", g.names["bp"][1] + jp, 1)
e(f"s_lshl_b32 {T2}, {r('T1')}, 2")
e(f"s_add_u32 {T2}, {T2}, {r('wave')}")
e(f"s_mul_i32 {T2}, {T2}, 86")
e(f"s_add_u32 {T2}, {T2}, {r('b0')}")
for jp in range(3):
    e(f"s_lshl_b32 {T3}, {r('bp', jp, 1)}, 7")
    e(f"v_add_u32 {r('ctr', jp, 1)}, {T3}, {r('csr0')}")
    e(f"s_add_u32 {T3}, {T2}, {r('bp', jp, 1)}")
    e(f"s_lshl_b32 {T3}, {T3}, 10")
    e(f"s_add_u32 {T3}, {T3}, {HB}")
    e(f"s_cmp_lt_u32 {r('bp', jp, 1)}, {r('nown')}")
    e(f"s_cselect_b32 {r(f'ho{jp}')}, {T3}, 0x7f000000")
for i in range(4):
    e(f"v_accvgpr_write_b32 {r('zz', i, 1)}, 0")
LATE = None
if TOUCH:
    V("tB", 2)
    wlo, whi_ = r("sWS", 0, 1), r("sWS", 1, 1)
    ent = [(r("sA", 0, 1), r("sA", 1, 1), r("tile0")), (r("sB", 0, 1), r("sB", 1, 1), r("tile0")), (plo(3), phi(3), None),
           (plo(4), phi(4), None), (plo(8), phi(8), None), (plo(10), phi(10), None),
           (plo(9), phi(9), None), (plo(9), phi(9), 1 << 20), (plo(11), phi(11), r("tile0")),
           (wlo, whi_, EPOCH + 256), (wlo, whi_, FL + 4096), (wlo, whi_, r("kvo")),
           (wlo, whi_, r("chan")), (wlo, whi_, HB + 64), (wlo, whi_, r("yo")), (wlo, whi_, r("zo")),
           (wlo, whi_, HB + 0x100000), (wlo, whi_, HB + 0x200000), (wlo, whi_, HB + 0x300000), (wlo, whi_, HB + 0x400000),
           (wlo, whi_, HB + 0x500000), (wlo, whi_, HB), (wlo, whi_, YT + 0x100000), (wlo, whi_, 0x100000)]
    e(f"v_mov_b32 {r('tB', 0, 1)}, {wlo}")
    e(f"v_mov_b32 {r('tB', 1, 1)}, {whi_}")
    for k, (lo, hi, off) in enumerate(ent):
        if off is None:
            e(f"v_writelane_b32 {r('tB', 0, 1)}, {lo}, {k}")
            e(f"v_writelane_b32 {r('tB', 1, 1)}, {hi}, {k}")
        else:
            e(f"s_add_u32 {T2}, {lo}, {off}")
            e(f"s_addc_u32 {T3}, {hi}, 0")
            e(f"v_writelane_b32 {r('tB', 0, 1)}, {T2}, {k}")
            e(f"v_writelane_b32 {r('tB', 1, 1)}, {T3}, {k}")
    e(f"s_mul_i32 {T2}, {r('wave')}, 6")
    e(f"s_lshl_b32 exec_lo, 63, {T2}")
    e("s_mov_b32 exec_hi, 0")
    if TOUCH == 2:
        e("s_mov_b32 exec_lo, 0xffffff")
    e(f"global_load_dword {r('pre')}, {r('tB')}, off sc1", "touch")
    e("s_mov_b64 exec, -1")
    g.free("tB")
stamp("setup")
g.free("tid")


def late_items(lst):
    ren = {"s3": r("L0"), "s5": r("L2"), "s6": r("L3"), "s7": r("L4")}
    txt = [re.sub(r"\bs[3567]\b", lambda m: ren[m.group(0)], x) for x in lst]
    items, grp = [], []
    for x in txt:
        op = x.split()[0]
        if grp or op.startswith(("s_cmp", "v_cmp")):
            grp.append(x)
            if op.startswith(("s_cselect", "v_cndmask")):
                items.append(grp); grp = []
        else:
            items.append([x])
    assert not grp
    cost = lambda gx: sum(0.3 if y.startswith("s_") else 1 for y in gx)
    return [It(lambda gx=gx: [e(y) for y in gx], cost(gx)) for gx in items]


def unpack(dst, doff, src, soff, ndw):
    it = []
    for d in range(ndw):
        it.append(E(f"v_lshlrev_b32 {r(dst, doff + 2 * d, 1)}, 16, {r(src, soff + d, 1)}"))
        it.append(E(f"v_and_b32 {r(dst, doff + 2 * d + 1, 1)}, {r('hmask')}, {r(src, soff + d, 1)}"))
    return it


run(dmaX(1))
LATEAB = int(opt.get("lateab", 1))
if LATEAB < 2:
    run(late_items(lateA)); lateA = []
if LATEAB < 1:
    g.wait(lg=0)
    run(late_items(lateB)); lateB = []
AC("xf", 64, at=64)
AC("wa", 48, at=128)


def xf(K, tb):
    return r("xf", ((K & 7) * 2 + tb) * 4, 4)


def rdX(ei):
    return [W(vm=f"X{ei}")] + [E(f"ds_read_b128 {xf(ei * 2 + k, tb)}, {r('xrd', k, 1)} offset:{(ei % 3) * 4096 + tb * 2048}", f"rx{ei}")
                               for k in range(2) for tb in range(2)]


def wbase(K):
    return ((K >> 1) % 4) * 12288 + (K & 1) * 6144


def rdW(K):
    return [E(f"ds_read_b64_tr_b16 {r('wa', (K & 1) * 24 + fb * 4 + 2 * hf, 2)}, {r('w1r', fb, 1)} offset:{wbase(K) + hf * 768 + (fb & 1) * 32}", f"rw{K}_{fb}")
            for fb in range(6) for hf in range(2)]


g.wait(vm="sx")
e(f"s_mov_b32 {T2}, 0x3f803f80")
for d in range(8):
    e(f"v_dot2_f32_bf16 {r('sacc', d & 1, 1)}, {r('sx', d, 1)}, {T2}, {'0' if d < 2 else r('sacc', d & 1, 1)}")
    e(f"v_dot2_f32_bf16 {r('sacc', 2 + (d & 1), 1)}, {r('sx', d, 1)}, {r('sx', d, 1)}, {'0' if d < 2 else r('sacc', 2 + (d & 1), 1)}")
e(f"v_readfirstlane_b32 {r('tag', 0, 1)}, {r('pf', 0, 1)}")
e(f"v_readfirstlane_b32 {r('tag', 1, 1)}, {r('pf', 1, 1)}")
g.free("sx")
run(rdX(0))
e(f"s_mul_i32 {r('tag', 0, 1)}, {r('tag', 0, 1)}, 0x9E3779B1")
e(f"s_mul_i32 {r('tag', 1, 1)}, {r('tag', 1, 1)}, 0x85EBCA6D")
e(f"s_add_u32 {r('tag', 0, 1)}, {r('tag', 0, 1)}, 0x7F4A7C15")
e(f"s_add_u32 {r('tag', 1, 1)}, {r('tag', 1, 1)}, 0x165667B1")
e(f"v_add_f32 {r('sacc', 0, 1)}, {r('sacc', 0, 1)}, {r('sacc', 1, 1)}")
e(f"v_add_f32 {r('sacc', 2, 1)}, {r('sacc', 2, 1)}, {r('sacc', 3, 1)}")
for i in range(2):
    e(f"v_mov_b32 {r('vtag', i, 1)}, {r('tag', i, 1)}")
    e(f"v_mov_b32 {r('vtag', 2 + i, 1)}, {r('tag', i, 1)}")
    e(f"v_mov_b32 {r('gq', 2 + i, 1)}, {r('tag', i, 1)}")
g.wait(vm="W1" if int(opt.get("nob1", 0)) else "W0")
e("s_barrier")
run(rdW(0))
stamp("x0")

V("acc", 48); AC("cs", 8, at=192)
V("big", 100)
B0 = g.names["big"][1]


def alias(name, off, n):
    g.names[name] = ("v", B0 + off, n)


alias("wf", 0, 32); alias("kf", 32, 40); alias("vr", 64, 8); alias("kr", 72, 20); alias("shr", 48, 16)
alias("vf", 72, 16)
small = [E(f"global_load_dword {r('bb', 0, 1)}, {r('bb', 0, 1)}, {ptr(8)}", "bb"),
         E(f"global_load_dword {r('bb', 1, 1)}, {r('bb', 1, 1)}, {ptr(10)}", "bb"),
         ]
alias("vr", 92, 8)
kvload = [It(lambda: (e(f"s_add_u32 m0, {r('kim')}, 1024"), e(f"s_mov_b32 {T0}, 7168"),
                      e(f"buffer_load_dwordx4 {r('kd', 1, 1)}, {r('sA')}, 0 offen {KPOL} lds", "k")), 2),
          E(f"buffer_load_dwordx4 {r('kd', 1, 1)}, {r('sA')}, {T0} offen offset:1024 {KPOL} lds", "k"),
          E(f"buffer_load_dwordx4 {r('vr', 0, 4)}, {r('k0')}, {r('sB')}, 0 offen {KVPOL}", "k"),
          E(f"buffer_load_dwordx4 {r('vr', 4, 4)}, {r('k0')}, {r('sB')}, 0 offen offset:1024 {KVPOL}", "k"),
          It(lambda: (e(f"s_mov_b32 m0, {r('kim')}"), e("s_mov_b32 exec_lo, 0"), e("s_mov_b32 exec_hi, 0xffffff00"),
                      e(f"buffer_load_dwordx4 {r('kd', 0, 1)}, {r('sA')}, 0 offen lds", "k"), e("s_mov_b64 exec, -1")), 2),
          It(lambda: (e(f"s_add_u32 m0, {r('kim')}, 3072"), e(f"s_mov_b64 {r('sA', 0, 2)}, {ptr(3)}"), e(f"s_mov_b32 {r('sA', 2, 1)}, 4096"),
                      e("s_mov_b32 exec_hi, 0"), e(f"buffer_load_dwordx4 {r('sho')}, {r('sA')}, 0 offen lds", "k"), e("s_mov_b64 exec, -1"),
                      e(f"s_mov_b64 {r('sA', 0, 2)}, {ptr(4)}"), e(f"s_mov_b64 {r('sB', 0, 2)}, {ptr(9)}"), e(f"s_mov_b32 {r('sB', 2, 1)}, 1409024")), 3)]
W2T = int(opt.get("w2t", 2))
w2touch = []
if W2T:
    w2touch = []
    (kvload if W2T == 1 else w2touch).append(It(lambda: (e(f"s_lshl_b32 {T0}, s2, 2"), e(f"s_add_u32 {T0}, {T0}, {r('wave')}"), e(f"s_mul_i32 {T0}, {T0}, {11 * 128}"),
                              e(f"v_lshlrev_b32 {r('pre')}, 3, {r('l16')}"), e("s_mov_b64 exec, 0x7ff"),
                              e(f"buffer_load_dword {r('pre')}, {r('pre')}, {r('sB')}, {T0} offen", "w2t"), e("s_mov_b64 exec, -1")), 3))
kvrd = [W(vm="k")]
kvrd += [E(f"ds_read_b128 {r('shr', 4 * i, 4)}, {r('sra')} offset:{3072 + 16 * i}", "rs") for i in range(4)]
kvrd += [E(f"ds_read_b128 {r('kr', 4 * k, 4)}, {r('kra')} offset:{640 + 128 * k}", "rk") for k in range(5)]
kvu = [W(lg="rs")]
for c in range(8):
    for j in range(4):
        src = r("shr", 2 * c + (j >> 1), 1)
        if j & 1:
            kvu.append(E(f"v_and_b32 {r('wf', j * 8 + c, 1)}, {r('hmask')}, {src}"))
        else:
            kvu.append(E(f"v_lshlrev_b32 {r('wf', j * 8 + c, 1)}, 16, {src}"))
kvu.append(W(lg="rk"))
kvu += unpack("kf", 0, "kr", 0, 20)
KS = lambda t, cp: r("kr", t * 8 + 2 * cp, 2)
kvc = []
for t in range(2):
    for cp in range(4):
        kvc.append(E(f"v_pk_mul_f32 {KS(t, cp)}, {r('kf', t * 8 + 2 * cp, 2)}, {r('wf', 24 + 2 * cp, 2)}"))
    for j in (2, 1, 0):
        for cp in range(4):
            kvc.append(E(f"v_pk_fma_f32 {KS(t, cp)}, {r('kf', (t + 3 - j) * 8 + 2 * cp, 2)}, {r('wf', j * 8 + 2 * cp, 2)}, {KS(t, cp)}"))
kvc += unpack("wf", 0, "vr", 0, 8)
for t in range(2):
    for cp in range(4):
        kvc.append(E(f"v_pk_mul_f32 {KS(t, cp)}, {KS(t, cp)}, {r('wf', t * 8 + 2 * cp, 2)}"))
alias("kvp", 92, 8)
for c in range(8):
    kvc.append(E(f"v_cvt_pk_bf16_f32 {r('kvp', c, 1)}, {r('kr', 8 + c, 1)}, {r('kr', c, 1)}"))
    kvc.append(E(f"ds_write_b32 {r('kvw')}, {r('kvp', c, 1)} offset:{128 * c}", "kvw"))
kvst = [E(f"ds_read_b128 {r('kvp', 0, 4)}, {r('kvr')}", "kvr0"), E(f"ds_read_b128 {r('kvp', 4, 4)}, {r('kvr')} offset:1040", "kvr1")]
kvst2 = [It(lambda: (g.wait(lg="kvr0"), e(f"buffer_store_dwordx4 {r('kvp', 0, 4)}, {r('kvs')}, {r('sWS')}, {r('kvo')} offen sc1", "kvst"),
                     e(f"s_add_u32 {r('kvo')}, {r('kvo')}, {8 * KP}")), 2),
         It(lambda: (g.wait(lg="kvr1"), e(f"buffer_store_dwordx4 {r('kvp', 4, 4)}, {r('kvs')}, {r('sWS')}, {r('kvo')} offen sc1", "kvst")), 2)]
alias("skr", 0, 12); alias("ke", 12, 24); alias("bt", 36, 4); alias("b1f", 44, 24); alias("csf", 68, 24)
AC("ska", 12, at=228)
skload = [It(lambda: (e("s_mov_b64 exec, 1"), e(f"buffer_load_dwordx2 {r('ska', 0, 2)}, {r('sb')}, {r('sA')}, 0 offen", "sk"), e("s_mov_b64 exec, -1")), 2),
          E(f"buffer_load_dwordx4 {r('ska', 2, 4)}, {r('sa')}, {r('sA')}, 0 offen {KVPOL}", "sk"),
          E(f"buffer_load_dwordx4 {r('ska', 8, 4)}, {r('sa')}, {r('sA')}, 0 offen offset:1024 {KVPOL}", "sk")]
kcopy = [W(vm="sk")] + [E(f"v_accvgpr_read_b32 {r('skr', k, 1)}, {r('ska', k, 1)}") for k in (4, 5, 0, 1, 10, 11, 2, 3, 8, 9)]
for k in range(2):
    kcopy.append(E(f"v_mov_b32_dpp {r('skr', 6 + k, 1)}, {r('skr', 4 + k, 1)} wave_ror:1 row_mask:0xf bank_mask:0xf"))
for k in range(2):
    kcopy.append(E(f"v_mov_b32_dpp {r('skr', k, 1)}, {r('skr', 4 + k, 1)} wave_shr:1 row_mask:0xf bank_mask:0xf"))
for k in range(2):
    kcopy.append(E(f"v_mov_b32_dpp {r('skr', 6 + k, 1)}, {r('skr', 10 + k, 1)} wave_shr:1 row_mask:0xf bank_mask:0xf"))
for n in range(2):
    R = lambda k, c=1, n=n: r("skr", 6 * n + k, c)
    KE = lambda k, c=1, n=n: r("ke", 12 * n + k, c)
    kcopy.append(E(f"ds_write_b128 {r('kw')}, {R(2, 4)} offset:{3 * FP + 1024 * n}", "kc", 2))
    for k in range(4):
        kcopy.append(E(f"v_alignbit_b32 {KE(k)}, {R(k + 1)}, {R(k)}, 16"))
    kcopy.append(E(f"ds_write_b128 {r('kw')}, {KE(0, 4)} offset:{1024 * n}", "kc", 2))
    for k in range(4):
        kcopy.append(E(f"v_alignbit_b32 {KE(4 + k)}, {R(k + 2)}, {R(k + 1)}, 16"))
    kcopy.append(E(f"ds_write_b128 {r('kw')}, {KE(4, 4)} offset:{2 * FP + 1024 * n}", "kc", 2))
    for k in range(4):
        kcopy.append(E(f"v_mov_b32 {KE(8 + k)}, {R(1 + k)}"))
    kcopy.append(E(f"ds_write_b128 {r('kw')}, {KE(8, 4)} offset:{FP + 1024 * n}", "kc", 2))


def mfma(d, a, b, first):
    e(f"v_mfma_f32_16x16x32_bf16 {d}, {a}, {b}, {'0' if first else d}")


def M(d, a, b, first, wait=None):
    def fn():
        if wait:
            w_ = dict(wait)
            l2 = w_.pop("lg2", None)
            if l2 and max(i for i, t in enumerate(g.lg) if t == l2) > max(i for i, t in enumerate(g.lg) if t == w_["lg"]):
                g._cnt(g.lg, w_["lg"])
                w_["lg"] = l2
            elif l2:
                g._cnt(g.lg, l2)
            g.wait(**w_)
        mfma(d, a, b, first)
    return It(fn, 0.3 if wait else 0)


def mainM(K):
    return [M(r("acc", (fb * 2 + tb) * 4, 4), r("wa", (K & 1) * 24 + fb * 4, 4), xf(K, tb), K == 0,
              dict(lg=f"rw{K}_{fb}", lg2=(None if (K & 1 or fb) else f"rx{K >> 1}")) if tb == 0 else None) for fb in range(6) for tb in range(2)]


def statM(K):
    items = []
    for tb in range(2):
        items.append(M(r("rs", tb * 4, 4), r("ones"), xf(K, tb), K == 0, dict(lg=f"rx{K >> 1}") if (tb == 0 and not K & 1) else None))
        items.append(M(r("gr", tb * 4, 4), xf(K, tb), xf(K, tb), K == 0))
    return items


def csM(K):
    return [M(r("cs", c * 4, 4), r("wa", (K & 1) * 24 + c * 4, 4), r("ones"), K == 0, dict(lg=f"rw{K}_{c}")) for c in range(2)]


FULL = int(opt.get("full", 1))


def flagtxt(addr, ls):
    if FULL and ls >= 4:
        return [f"s_mov_b64 exec, {(1 << (1 << (ls - 4))) - 1}",
                f"buffer_store_dwordx4 {r('vtag')}, {r('l16')}, {r('sWS')}, {addr} offen sc1", "s_mov_b64 exec, -1"]
    return ["s_mov_b64 exec, 1", f"buffer_store_dwordx2 {r('vtag', 0, 2)}, {r('zero')}, {r('sWS')}, {addr} offen sc1", "s_mov_b64 exec, -1"]


def setflag(addr, tagname):
    t_ = flagtxt(addr, {"f1": L1S, "f2": L2S, "f3": L3S}[tagname])
    e(t_[0]); e(t_[1], tagname); e(t_[2])


def pollissue(voff, tagname):
    e(f"buffer_load_dwordx2 {r('pf')}, {voff}, {r('sWS')}, 0 offen sc1", tagname)


def pollcheck(voff, tagname, before_spin=None):
    g.wait(vm=tagname)
    e(f"v_cmp_ne_u64 vcc, {r('tag')}, {r('pf')}")
    e("s_cmp_eq_u64 vcc, 0")
    e(f"s_cbranch_scc0 L_{tagname}")
    g.label(f"L_{tagname}_ok")

    def tail():
        g.label(f"L_{tagname}")
        if before_spin:
            for x in before_spin:
                e(x)
        if SPINMAX:
            e(f"s_mov_b32 {T4}, 0")
        g.label(f"L_{tagname}_l")
        e(f"s_sleep {int(opt.get('sleep', 1))}")
        e(f"buffer_load_dwordx2 {pfr}, {voff}, {sws}, 0 offen sc1")
        e("s_waitcnt vmcnt(0)")
        e(f"v_cmp_ne_u64 vcc, {tagr}, {pfr}")
        if SPINMAX:
            e(f"s_add_u32 {T4}, {T4}, 1")
            e(f"s_cmp_gt_u32 {T4}, {SPINMAX}")
            e(f"s_cbranch_scc1 L_{tagname}_ok")
        e("s_cmp_eq_u64 vcc, 0")
        e(f"s_cbranch_scc0 L_{tagname}_l")
        e(f"s_branch L_{tagname}_ok")
    pfr, sws, tagr = r("pf"), r("sWS"), r("tag")
    tails.append(tail)


tails = []
btab = [W(vm="bb")] + unpack("bt", 0, "bb", 0, 2) + [E(f"ds_write_b64 {r('bw', 0, 1)}, {r('bt', 0, 2)}", "btw"), E(f"ds_write_b64 {r('bw', 1, 1)}, {r('bt', 2, 2)}", "btw")]

W2SLOT = {0: ("x", S4), 1: ("o", 8192), 2: ("o", 0), 3: ("o", 4096), 4: ("x", S3),
          5: ("x", S4), 6: ("o", 8192), 7: ("o", 0), 8: ("o", 4096), 9: ("x", S3), 10: ("x", S4)}
W2PREV = {p: p - 5 for p in range(5, 11)}
VMODE = opt.get("vmode", "E")
if VMODE == "F":
    W2SLOT = {0: ("x", 0), 1: ("x", 16384), 2: ("x", S4), 3: ("o", 8192), 4: ("o", 0), 5: ("o", 4096), 6: ("x", S3),
              7: ("x", S4), 8: ("o", 8192), 9: ("o", 0), 10: ("o", 8192)}
    W2PREV = {7: 2, 8: 3, 9: 4, 10: 8}


def dmaW2(p):
    items = []
    kind, off = W2SLOT[p]
    for n in range(4):
        def it(n=n):
            if n == 0:
                e(f"s_add_u32 m0, {r('own') if kind == 'o' else r('w4k')}, {off}")
                if p in W2PREV:
                    g.wait(lg=f"rv{W2PREV[p]}")
            e(f"buffer_load_dwordx4 {r('w2s', n, 1)}, {r('sB')}, {r(f'kb{p}')} offen offset:{1024 * n} lds", f"V{p}")
        items.append(It(it, 1.2 if n else 1.8))
    return items


def w2f(p, nb, off=0, n=4):
    k = (p * 4 + nb) * 4 + off
    return f"a[{k}:{k + n - 1}]"


def rdW2(p):
    kind, off = W2SLOT[p]
    items = [W(vm=f"V{p}")]
    for nb in range(4):
        for hf in range(2):
            items.append(E(f"ds_read_b64_tr_b16 {w2f(p, nb, 2 * hf, 2)}, {r('w2r', nb + (0 if kind == 'o' else 4), 1)} offset:{off + hf * 2048}", f"rv{p}"))
    return items


alias("sac", 96, 4); alias("sgr", 92, 4)
EPS = f2u(1e-5)


def rb(dst, src):
    return [E(f"v_cvt_pk_bf16_f32 {dst}, {src}, {src}"), E(f"v_and_b32 {dst}, {r('hmask')}, {dst}")]


s1, s1b, s2, s2b = (r("sacc", k, 1) for k in range(4))
st = []
for sh in (8, 4, 2, 1):
    st.append(E(f"v_add_f32_dpp {s1}, {s1}, {s1} row_ror:{sh} row_mask:0xf bank_mask:0xf"))
    st.append(E(f"v_add_f32_dpp {s2}, {s2}, {s2} row_ror:{sh} row_mask:0xf bank_mask:0xf"))
st.append(E(f"v_mov_b32 {s1b}, {s1}")); st.append(E(f"v_mov_b32 {s2b}, {s2}"))
st.append(E(f"v_permlane16_swap_b32 {s1}, {s1b}")); st.append(E(f"v_permlane16_swap_b32 {s2}, {s2b}"))
mu, var, t, w = (r("u", k, 1) for k in range(4))
mb, rsd = r("stv", 0, 1), r("stv", 1, 1)
st.append(E(f"v_add_f32 {mu}, {s1}, {s1b}")); st.append(E(f"v_add_f32 {var}, {s2}, {s2b}"))
st.append(E(f"v_mul_f32 {mu}, 0x{f2u(1 / 512):08x}, {mu}"))
st.append(E(f"v_mul_f32 {var}, 0x{f2u(1 / 512):08x}, {var}"))
st += rb(mb, mu)
st.append(E(f"v_fma_f32 {var}, -{mu}, {mu}, {var}"))
st.append(E(f"v_max_f32 {var}, 0, {var}"))
st += rb(t, var)
st.append(E(f"v_add_f32 {t}, 0x{EPS:08x}, {t}"))
st += rb(t, t)
st.append(E(f"v_sqrt_f32 {t}, {t}", cost=2))
st.append(E(f"v_sub_f32 {mu}, {mu}, {mb}"))
st += rb(t, t)
st.append(E(f"v_rcp_f32 {rsd}, {t}", cost=2))
st.append(E(f"v_mul_f32 {mu}, {mu}, {rsd}"))
st.append(E(f"v_mul_f32 {var}, {var}, {rsd}"))
st.append(E(f"v_mul_f32 {var}, {var}, {rsd}"))
st += rb(t, var)
st.append(E(f"v_add_f32 {t}, 0x{EPS:08x}, {t}"))
st += rb(t, t)
st.append(E(f"v_sqrt_f32 {t}, {t}", cost=2))
st += rb(mu, mu)
st += rb(t, t)
st.append(E(f"v_rcp_f32 {w}, {t}", cost=2))
st.append(E(f"v_fma_f32 {mu}, {mb}, {rsd}, {mu}"))
st.append(E(f"v_mul_f32 {t}, {rsd}, {w}"))
st.append(E(f"v_mul_f32 {mu}, {mu}, {w}"))
st.append(E(f"v_cndmask_b32 {r('gq', 0, 1)}, {t}, {mb}, {r('m1')}"))
st.append(E(f"v_cndmask_b32 {r('gq', 1, 1)}, {mu}, {rsd}, {r('m1')}"))
st.append(E(f"v_mov_b32 {s1}, {r('gq', 0, 1)}")); st.append(E(f"v_mov_b32 {s2}, {r('gq', 1, 1)}"))
st.append(E(f"v_permlane32_swap_b32 {r('gq', 0, 1)}, {s1}")); st.append(E(f"v_permlane32_swap_b32 {r('gq', 1, 1)}, {s2}"))
st.append(It(lambda: (e("s_mov_b64 exec, 12"), e(f"v_mov_b32 {r('gq', 0, 1)}, {s1}"), e(f"v_mov_b32 {r('gq', 1, 1)}, {s2}"), e("s_mov_b64 exec, -1")), 2.6))
ststore = [It(lambda: (e("s_mov_b64 exec, 15"),
                       e(f"buffer_store_dwordx4 {r('gq')}, {r('stw')}, {r('sWS')}, 0 offen sc1", "sts"), e("s_mov_b64 exec, -1")), 2)]


def gcheck(name, voff, tagname):
    g.wait(vm=tagname)
    e(f"v_cmp_ne_u64 vcc, {r('tag')}, {r(name, 2, 2)}")
    e("s_cmp_eq_u64 vcc, 0")
    e(f"s_cbranch_scc0 L_{tagname}")
    g.label(f"L_{tagname}_ok")
    q4, q2, sws, tagr = r(name, 0, 4), r(name, 2, 2), r("sWS"), r("tag")

    def tail():
        g.label(f"L_{tagname}")
        if SPINMAX:
            e(f"s_mov_b32 {T4}, 0")
        g.label(f"L_{tagname}_l")
        e("s_sleep 2")
        e(f"buffer_load_dwordx4 {q4}, {voff}, {sws}, 0 offen sc1")
        e("s_waitcnt vmcnt(0)")
        e(f"v_cmp_ne_u64 vcc, {tagr}, {q2}")
        if SPINMAX:
            e(f"s_add_u32 {T4}, {T4}, 1")
            e(f"s_cmp_gt_u32 {T4}, {SPINMAX}")
            e(f"s_cbranch_scc1 L_{tagname}_ok")
        e("s_cmp_eq_u64 vcc, 0")
        e(f"s_cbranch_scc0 L_{tagname}_l")
        e(f"s_branch L_{tagname}_ok")
    tails.append(tail)


sgld = [E(f"buffer_load_dwordx4 {r('sgr')}, {r('sgo')}, {r('sWS')}, 0 offen sc1", "sg")]
sguse = [It(lambda: gcheck("sgr", r("sgo"), "sg"), 2)]
sguse += [E(f"v_mov_b32 {r('sac', k, 1)}, {r('sgr', k & 1, 1)}") for k in range(4)]
sguse += [E(f"v_permlane32_swap_b32 {r('sac', 0, 1)}, {r('sac', 2, 1)}"), E(f"v_permlane32_swap_b32 {r('sac', 1, 1)}, {r('sac', 3, 1)}")]

main = []
at = {}


def add(items, name=None):
    if name:
        at[name] = len(main)
        if name.startswith("K") and SSET == "k":
            f0 = items[0].fn
            items = [It(lambda: (stamp(name, "k"), f0()), items[0].cost)] + items[1:]
    main.extend(items)


NOB1 = int(opt.get("nob1", 0))
KVK = int(opt.get("kvk", 3))
BARS = {1: 1, 3: 3, 7: 5, 11: 7} if KVK == 3 else {1: 1, 3: 2, 5: 4, 9: 6, 13: 7}
if NOB1:
    del BARS[1]


def bar(K):
    def fn():
        if K == KVK:
            g.wait(vm=f"W{BARS[K]}", lg="kvw")
        elif K == 7 or (KVK == 5 and K in (3, 9)):
            g.wait(vm=f"W{BARS[K]}", lg=f"rw{K}_5")
        elif K < 15:
            g.wait(vm=f"W{BARS[K]}")
        else:
            g.wait(lg=0)
        e("s_barrier")
        if K in ((3, 7, 11, 15) if KVK == 3 else (5, 9, 13, 15)):
            stamp(f"c{K >> 2}")
    return [It(fn, 0)]


STAT = {K: [] for K in range(13)}

for K in range(13):
    if K == KVK:
        add([It(lambda: (stamp("kvb"), run(weave(kvu[KVU:] + kvc, (kvdma, 4, len(kvu) - KVU + len(kvc) - 4))), stamp("kv")), 0)], "KV")
    if K in BARS:
        add(bar(K), f"B{K}")
    sm = sum((statM(k) for k in STAT[K]), [])
    add(sm + mainM(K), f"K{K}")
    at[f"m{K}"] = at[f"K{K}"] + len(sm)
    add(csM(K))
if 13 in BARS:
    add(bar(13), "B13")
add(mainM(13) + csM(13), "K13")
m14 = mainM(14)
add(m14[:2] + csM(14) + m14[2:8], "K14"); add(csM(15), "cs15"); add(m14[8:])
at["m14"] = at["K14"]; at["m13"] = at["K13"]
add(bar(15), "C3")
add(mainM(15), "K15")
at["end"] = len(main)
if SSET == "fine":
    F0 = int(opt.get("f0", 0))
    for k_ in range(F0, min(F0 + 120, len(main)), 4):
        main[k_] = It(lambda f=main[k_].fn, k_=k_: (stamp(f"m{k_}", "fine"), f()), main[k_].cost)
A = lambda n: at[n]
QR = []
for K in range(1, 15):
    lo = A(f"K{K - 1}") - (1 if (K - 1) in BARS else 0)
    hi = A(f"K{K}") - 2 - (1 if K in BARS else 0) - (1 if K == KVK else 0) - (3 if (K == 7 and KVK == 3) or (KVK == 5 and K in (3, 9)) else 0)
    QR += win(rdW(K), lo, hi)
QR += win(rdW(15), A("K14"), A("C3") - 5)
XRD = {1: 1, 2: 3, 3: 5, 4: 7, 5: 9, 6: 11, 7: 13}
QX = []
for ei in range(1, 8):
    k = XRD[ei]
    QX += win(rdX(ei), A(f"K{k}"), A(f"K{k}") + 5)


def aft(tag, items):
    f0 = items[0]
    return [It(lambda: (g.wait(lg=tag), f0()), f0.cost + 1)] + items[1:]


kc_txt = []
kcv = [it for it in kcopy if it.cost != 2]
kcw = [it for it in kcopy if it.cost == 2]
f1set = [None] * 4 + [It(lambda: (g.wait(vm="kvst"), setflag(r("f1a"), "f1")), 2)]
udma = [It(lambda: pollcheck(r("pf1o"), "pf1"), 4),
        It(lambda: (e(f"s_add_u32 {r('sA', 0, 1)}, {plo(13)}, {r('chan')}"), e(f"s_addc_u32 {r('sA', 1, 1)}, {phi(13)}, 0"), e(f"s_mov_b32 m0, {r('um0')}")), 3)]
for n in range(4):
    udma.append(E(f"buffer_load_dwordx4 {r('l16')}, {r('sA')}, {r('ush')} offen offset:{1024 * n} sc1 lds", "U"))
KW = lambda k0, k1=None: (A(f"K{k0}"), A(f"K{(k1 or k0) + 1}") - 2)
F1K = int(opt.get("f1k", KVK + 3))
f1 = lambda k: f1set[4:] if F1K == k else []
KVU = int(opt.get("kvu", 8))
KV0 = int(opt.get("kv0", 6 if KVK == 3 else 0))
run(kvload[:KV0])
if KVK == 3:
    QV = win(kvload[KV0:] + dmaW1(2), *KW(0))
    QV += win(dmaX(2), *KW(1))
    QV += win(dmaW1(3), A("K2"), A("KV") - 1)
    kvdma = dmaX(3) + dmaX(4) + small + skload + w2touch + ststore
    QV += win(dmaW1(4) + kvst2, *KW(3))
    QV += win(dmaW1(5), *KW(4))
    QV += win(dmaX(5), *KW(5))
    QV += win(dmaX(6) + f1(6), *KW(6))
else:
    assert VMODE != "F"
    run(dmaW1(2) + dmaX(2))
    QV = win(kvload[KV0:], *KW(0))
    QV += win(dmaW1(3), *KW(1))
    QV += win(dmaX(3), *KW(2))
    QV += win(dmaW1(4) + ststore, *KW(3))
    QV += win(dmaW1(5), A("K4"), A("KV") - 1)
    kvdma = dmaX(4) + dmaX(5) + small + skload + w2touch
    QV += win(kvst2 + dmaW1(6), *KW(5))
    QV += win(dmaX(6), *KW(6))
    QV += win(f1(7), *KW(7))
    QV += win(dmaX(7) + f1(8), *KW(8))
    QV += win(dmaW1(7) + sgld, *KW(9))
NV3 = int(opt.get("nv3", 1))
if VMODE == "F":
    QV += win(dmaW1(6) + f1(7) + dmaW1(7)[:1], *KW(7))
    QV += win(dmaW1(7)[1:] + dmaX(7)[:3], *KW(8))
    QV += win(dmaX(7)[3:] + sgld + dmaW2(0)[:3], *KW(9))
    QV += win(dmaW2(0)[3:] + dmaW2(1), *KW(10))
    QV += win(dmaW2(2), *KW(11))
    if NV3:
        QV += win(dmaW2(3), *KW(12)) + win(dmaW2(4), *KW(13))
else:
    if KVK == 3:
        QV += win(dmaW1(6) + f1(7), *KW(7))
        QV += win(dmaW1(7) + dmaX(7)[:1], *KW(8))
        QV += win(dmaX(7)[1:] + sgld, *KW(9))
    QV += win(dmaW2(0), *KW(10))
    QV += win(dmaW2(1), *KW(11))
    QV += win(dmaW2(2), *KW(12))
    if NV3:
        QV += win(dmaW2(3), A("K14"), A("C3") - 1)
QV += win([It(lambda: pollissue(r("pf1o"), "pf1"))], A("end") - 4, A("end") - 4)
QW1 = (win(rdW2(0), *KW(13)) + win(rdW2(1), A("K14"), A("C3") - 3)) if VMODE == "F" else []
XX = '''
QV += win(dmaW2(0) + f1(9), *KW(9))
QV += win(dmaW2(1) + f1(10), *KW(10))
QV += win(dmaW2(2) + f1(11), *KW(11))
QV += win(dmaW2(3), *KW(12))
'''
csw = [It(lambda: (e("s_mov_b32 exec_lo, 0x00010001"), e("s_mov_b32 exec_hi, 0x00010001"),
                   e(f"ds_write_b128 {r('ctr', 0, 1)}, {r('cs', 0, 4)}", "csw"), e(f"ds_write_b128 {r('ctr', 0, 1)}, {r('cs', 4, 4)} offset:64", "csw"),
                   e("s_mov_b64 exec, -1")), 5)]
rcs = [E(f"ds_read_b128 {r('csf', 4 * fb, 4)}, {r('ctr', fb >> 1, 1)} offset:{64 * (fb & 1)}", "rcs") for fb in range(6)]
rb1 = [E(f"ds_read_b128 {r('b1f', 4 * fb, 4)}, {r('ctr', fb >> 1, 1)} offset:{B1T - CSX + 64 * (fb & 1)}", "rb1") for fb in range(6)]
QM = win(kvrd, A(f"K{KVK - 1}") + 1, A(f"K{KVK - 1}") + 8)
QM += win(kvu[:KVU], A(f"K{KVK - 1}") + 10, A("KV") - 1)
QM += win(kvst, A(f"B{KVK}"), A(f"B{KVK}") + 1)
QM += win(btab, *KW(KVK + 2))
KCV = int(opt.get("kcv", 1))
if KCV:
    QM += win(kcv, A(f"K{KVK + 4}"), A("K11" if KVK == 3 else "K13") - 2)
QM += win(rb1, *KW(11 if KVK == 3 else 13))
KCW = int(opt.get("kcw", 0))
QM += win(kcw[:KCW], A("K13"), A("K14") + 8)
QM += win(csw, A("C3") - 2, A("C3") - 2)
QM += win(rcs + [E(f"ds_write_b128 {r('za')}, {r('zz')}", "zw", 2)], A("C3"), A("C3") + 7)
if KCV:
    pass
QS = win(st, 0, A("KV") - 1 if KVK == 3 else A("K3") + 6) + win(sguse, A("m14") + 2, A("end") - 2)
QL = win(late_items(lateA), A("K3") + 2, A("K9") - 1) + win(late_items(lateB), A("K9") if lateA else A("K4"), A("C3") - 3)
schedule(main, [QR, QX, QV, QM, QS, QW1, QL])
lateC_items = late_items(lateC)
g.free("T1", "q", "whi", "b0", "ns128", "r8", "pc", "nown", "sD")
del g.names["bp"]
for n_ in ("wf", "kf", "vr", "kr", "shr", "vf", "kvp", "skr", "ke", "bt", "sgr"):
    del g.names[n_]
g.free("w1s", "w1lds", "sW1", "so", "f1a", "kvs", "pre", "kvo", "bb", "bw", "k0", "kd", "sho", "sa", "sb", "kvw", "kvr", "kra", "sra",
       "wa", "xf", "cs", "sgo", "m1", "stw", "w1r", "ctr", "ones", "sacc", "u", "gq", "stv",
       "xrd", "zz", "za", "ptr8", "ptr10", "ptr3", "ptr4", "ptr9", "kim", "xbase", "xk", "wo", "wlim")
AC("w2b", 176, at=0)
stamp("g1")
stamp("g1", "k")

K0 = -2.0 * 0.7978845608028654 * 1.4426950408889634
K1 = K0 * 0.044715
S("k1", 2); V("k0v", 2); V("ge", 16); V("hp", 8)
e(f"s_mov_b32 {r('k1', 0, 1)}, 0x{f2u(K1):08x}")
e(f"s_mov_b32 {r('k1', 1, 1)}, 0x{f2u(K1):08x}")
e(f"v_mov_b32 {r('k0v', 0, 1)}, 0x{f2u(K0):08x}")
e(f"v_mov_b32 {r('k0v', 1, 1)}, 0x{f2u(K0):08x}")
g.wait(lg="rcs")
e(".p2align 3")


def gelu(b, tb):
    it = []
    sac = r("sac", tb * 2, 2)
    prs = [(fb, h) for fb in (2 * b, 2 * b + 1) for h in range(2)]
    U = lambda k: r("acc", (prs[k][0] * 2 + tb) * 4 + 2 * prs[k][1], 2)
    Tm = lambda k: r("ge", (tb & 1) * 8 + 2 * k, 2)
    T1r = lambda k, x: r("ge", (tb & 1) * 8 + 2 * k + x, 1)
    for k, (fb, h) in enumerate(prs):
        it.append(E(f"v_pk_fma_f32 {Tm(k)}, {r('csf', fb * 4 + 2 * h, 2)}, {sac}, {r('b1f', fb * 4 + 2 * h, 2)} op_sel:[0,1,0] op_sel_hi:[1,1,1] neg_lo:[0,1,0] neg_hi:[0,1,0]"))
    for k in range(4):
        it.append(E(f"v_pk_fma_f32 {U(k)}, {U(k)}, {sac}, {Tm(k)} op_sel_hi:[1,0,1]"))
    for k in range(4):
        it.append(E(f"v_pk_mul_f32 {Tm(k)}, {U(k)}, {U(k)}"))
    for k in range(4):
        it.append(E(f"v_pk_fma_f32 {Tm(k)}, {Tm(k)}, {r('k1')}, {r('k0v')}"))
    for k in range(4):
        it.append(E(f"v_pk_mul_f32 {Tm(k)}, {Tm(k)}, {U(k)}"))
    for k in range(4):
        for x in range(2):
            it.append(E(f"v_exp_f32 {T1r(k, x)}, {T1r(k, x)}"))
    for k in range(4):
        it.append(E(f"v_pk_add_f32 {Tm(k)}, {Tm(k)}, 1.0 op_sel_hi:[1,0]"))
    for k in range(4):
        for x in range(2):
            it.append(E(f"v_rcp_f32 {T1r(k, x)}, {T1r(k, x)}"))
    for k in range(4):
        it.append(E(f"v_pk_mul_f32 {Tm(k)}, {Tm(k)}, {U(k)}"))
    for k in range(4):
        it.append(E(f"v_cvt_pk_bf16_f32 {r('hp', (tb & 1) * 4 + k, 1)}, {T1r(k, 0)}, {T1r(k, 1)}"))
    it.append(E(f"buffer_store_dwordx4 {r('hp', (tb & 1) * 4, 4)}, {r('l16')}, {r('sWS')}, {r(f'ho{b}')} offen sc1", "hst"))
    if tb == 0:
        it.append(E(f"s_add_u32 {r(f'ho{b}')}, {r(f'ho{b}')}, 44032"))
    return it


g.free("ska")
AC("cf", 32, at=176); AC("cg", 32, at=208)


def rdF(it, c):
    return E(f"ds_read_b128 {r('cf', 4 * c, 4)}, {r('fa')} offset:{64 * it + 512 * c}", f"F{it}_{c}")


def rdG(it, d):
    return E(f"ds_read_b128 {r('cg', 4 * d, 4)}, {r('ga')} offset:{64 * it + 512 * (7 - d)}", f"G{it}_{d}")


init = []
for k in range(8):
    init += [rdF(0, 7 - k), rdG(0, k)]
SKIP = int(opt.get("skip2", 1))
for jp in range(3):
    if jp == 1:
        run(udma[:2])
    if SKIP:
        e(f"s_cmp_eq_u32 {r(f'ho{jp}')}, 0x7f000000")
        e(f"s_cbranch_scc1 L_gskip{jp}")
    e(".p2align 3")
    n0 = len(g.ins)
    if jp < 2:
        run(weave(gelu(jp, 0) + gelu(jp, 1), (udma[2:] if jp == 1 else [], 2, 60), (kcw[KCW:][jp::2], 12, 90)))
    else:
        g2x = gelu(2, 0) + gelu(2, 1)
        run(g2x[:80])
        g.wait(vm="U", lg=0)
        e("s_barrier")
        stamp("b5")
        run(weave(g2x[80:], (init[:6], 0, 16)))
    if SKIP:
        keep = [i.text for i in g.ins[n0:] if (not i.op.startswith("v_") or i.op.startswith("v_writelane")) and i.cls != "label"]
        g.label(f"L_gdone{jp}")

        def skip_tail(jp=jp, keep=keep):
            g.label(f"L_gskip{jp}")
            for x in keep:
                e(x)
            e(f"s_branch L_gdone{jp}")
        tails.append(skip_tail)
stamp("gelu")
g.free("pf1o", "um0", "ush", "chan", "kw")
del g.names["csf"], g.names["b1f"], g.names["sac"]
g.free("acc", "big", "ge", "k0v", "k1", "ho0", "ho1", "ho2")
V("cy", 32, at=96)
V("hfv", 96, at=160)
HFIRST = int(opt.get("hfirst", 2))
HPOL = opt.get("hpol", "sc1").replace("+", " ")
HORD = [(s_, p_) for p_ in range(HFIRST) for s_ in range(4)]
HORD += [(s_, p_) for s_ in range(4) for p_ in range(HFIRST, 11)]
HF = {}
for k_, sp in enumerate(HORD):
    HF[sp] = r("hfv", 4 * k_, 4) if k_ < 24 else f"a[{176 + 4 * (k_ - 24)}:{179 + 4 * (k_ - 24)}]"
S("sH", 4)
for p in range(11):
    S(f"hb{p}")
NE0 = int(opt.get("ne", 1))
NEX = int(opt.get("nex", 6))
NE = NE0 + NEX
HTXT = [f"buffer_load_dwordx4 {HF[s_, p_]}, {r('hv', s_, 1)}, SRD, {r(f'hb{p_}')} offen {HPOL}" for s_, p_ in HORD]

main = []
QF = win(init[6:], 0, 9)
for it in range(4):
    at[f"I{it}"] = len(main)
    for c in range(7, -1, -1):
        for d in range(0, 8 - c):
            t = c + d
            wt = None
            if d == 0:
                wt = dict(lg=f"F{it}_0") if (c == 0 and it) else dict(lg=f"G{it}_{7 - c}")
                if it and c in (5, 3, 2, 1):
                    wt = None if c != 5 else dict(lg=f"G{it}_3")
                if it and c == 4:
                    wt = None
                if it and c == 3:
                    wt = dict(lg=f"F{it}_0")
                if it and c == 0:
                    wt = None
            main.append(M(r("cy", 4 * t, 4), r("cf", 4 * c, 4), r("cg", 4 * d, 4), it == 0 and d == 0, wt))
            if it == 0 and c == 0:
                main.append(M(r("cy", 4 * t, 4), r("fd"), r("cg", 4 * d, 4), False))
            idx = len(main) - 1
            if it < 3:
                if d == 7 - c and c > 0:
                    QF += win([rdF(it + 1, c)], idx, idx + 2)
                if c == 0:
                    QF += win([rdG(it + 1, d)], idx, idx)
                    if d == 7:
                        QF += win([rdF(it + 1, 0)], idx, idx)
at["I4"] = len(main)
if SSET == "cv":
    for k_ in range(0, 152, 8):
        main[k_] = It(lambda f=main[k_].fn, k_=k_: (stamp(f"m{k_}", "cv"), f()), main[k_].cost)
if VMODE == "F" and NV3:
    QW = win(rdW2(2) + rdW2(3) + rdW2(4), 8, 44) + win(rdW2(5) + rdW2(6), 48, 76) + win(rdW2(7) + rdW2(8), 78, 104) + win(rdW2(9), 108, 124)
    QV = win(dmaW2(5) + dmaW2(6) + dmaW2(7), 0, 46) + win(dmaW2(8) + dmaW2(9), 48, 78)
elif VMODE == "F":
    QW = win(rdW2(2), 10, 24) + win(rdW2(3) + rdW2(4), 40, 66) + win(rdW2(5) + rdW2(6) + rdW2(7), 68, 104)
    QW += win(rdW2(8), 106, 118) + win(rdW2(9), 124, A("I4") - 4)
    QV = win(dmaW2(3) + dmaW2(4) + dmaW2(5) + dmaW2(6) + dmaW2(7), 0, 70) + win(dmaW2(8) + dmaW2(9), 72, 98)
else:
    QW = win(rdW2(0) + rdW2(1) + rdW2(2) + rdW2(3), 8, 50) + win(rdW2(4) + rdW2(5) + rdW2(6), 56, 100)
    QW += win(rdW2(7) + rdW2(8) + rdW2(9), 104, A("I4") - 4)
    QV = win(([] if NV3 else dmaW2(3)) + dmaW2(4), 0, 15) + win(dmaW2(5) + dmaW2(6) + dmaW2(7) + dmaW2(8) + dmaW2(9), 22, 98)
F2POS = int(opt.get("f2pos", 52 if KCV else 20))
QF2 = win([It(lambda: (g.wait(vm="hst"), setflag(r("f2a"), "f2")), 2)], F2POS, F2POS)
QV += win(dmaW2(10), *((100, 114) if VMODE != "F" else (108, 120) if NV3 else (121, 134)))
P2A = int(opt.get("p2a", 124))
P2C = int(opt.get("p2c", 146))
QF2 += win([It(lambda: pollissue(r("pf2o"), "pf2a"))], P2A, P2A)


def chk2a():
    g.wait(vm="pf2a")
    e(f"v_cmp_ne_u64 vcc, {r('tag')}, {r('pf')}")
    e(f"s_mov_b64 {r('sH', 0, 2)}, {r('sWS', 0, 2)}")
    e(f"s_mov_b32 {r('sH', 3, 1)}, 0x00020000")
    e("s_cmp_eq_u64 vcc, 0")
    e(f"s_cselect_b32 {r('sH', 2, 1)}, {WSZ}, 0")


QV += win([It(chk2a, 2)], P2C, P2C)
QV += win([E(x.replace("SRD", r("sH")), f"H{s_}_{p_}") for (s_, p_), x in zip(HORD[:NE0], HTXT)], P2C + 1, A("I4") - 3)
hex_ = [E(x.replace("SRD", r("sH")), f"H{s_}_{p_}") for (s_, p_), x in list(zip(HORD, HTXT))[NE0:NE]]


def hx():
    if hex_:
        hex_.pop(0)()
QV += win([It(lambda: pollissue(r("pf2o"), "pf2"))], A("I4") - 2, A("I4") - 2)
S("early")
QB = []
QM = win([It(lambda p=p: (e(f"s_lshr_b32 {r(f'hb{p}')}, {r(f'kb{p}')}, 5"), e(f"s_min_u32 {r(f'hb{p}')}, {r(f'hb{p}')}, {42 * 1024}")), 0.6)
          for p in range(11)], 30, 70)
QB = win(lateC_items, 4, 100)
schedule(main, [QF, QW, QV, QM, QF2, QB])
g.free("tt2", "ns", "tok16", "L0", "L2", "L3", "L4")
stamp("conv")
stamp("conv", "g2")
rv10 = rdW2(10) if KCV else []
g.free("cf", "cg", "fd", "fa", "ga", "w2s", "w4k", "f2a", "hp")
for p in range(11):
    g.free(f"kb{p}")
V("ys", 8); V("cg", 24); V("sv", 4)
AC("hfa", 80, at=176)
hx()
g.wait(lg=0)
e(f"s_cmp_lg_u32 {r('wodd')}, 0")
e("s_cbranch_scc1 L_odd1")
lsv_ = g.lg_done
for k in range(4):
    e(f"ds_write_b128 {r('oa')}, {r('cy', 16 + 4 * k, 4)} offset:{1024 * k}")
e("s_branch L_j1")
g.label("L_odd1")
e("s_nop 4")
for k in range(4):
    e(f"ds_write_b128 {r('oa')}, {r('cy', 4 * k, 4)} offset:{1024 * k}")
g.wait(lg=0)
for k in range(8):
    e(f"v_pk_mov_b32 {r('cy', 2 * k, 2)}, {r('cy', 16 + 2 * k, 2)}, {r('cy', 16 + 2 * k, 2)} op_sel:[0,1]")
g.label("L_j1")
g.lg_done = lsv_
hx()
g.wait(lg=0)
e("s_barrier")
for k in range(4):
    e(f"ds_read_b128 {r('cg', 4 * k, 4)}, {r('pa')} offset:{1024 * k}", f"ex{k}")
hx(); hx()
for k in range(4):
    g.wait(lg=f"ex{k}")
    for hh in range(2):
        e(f"v_pk_add_f32 {r('cy', 4 * k + 2 * hh, 2)}, {r('cy', 4 * k + 2 * hh, 2)}, {r('cg', 4 * k + 2 * hh, 2)}")
    for hh in range(2):
        e(f"v_cvt_pk_bf16_f32 {r('cg', 16 + 2 * k + hh, 1)}, {r('cy', 4 * k + 2 * hh, 1)}, {r('cy', 4 * k + 2 * hh + 1, 1)}")
    e(f"ds_write_b64 {r('yw')}, {r('cg', 16 + 2 * k, 2)} offset:{4096 + 512 * k}", f"yw{k}")
    if k & 1:
        e(f"ds_read_b128 {r('ys', 2 * (k - 1), 4)}, {r('oa')} offset:{4096 + 512 * (k - 1)}", f"yr{k >> 1}")
hx()
g.wait(lg="yr0")
e(f"buffer_store_dwordx4 {r('ys', 0, 4)}, {r('l16')}, {r('sWS')}, {r('yo')} offen sc1", "yst")
g.wait(lg="yr1")
e(f"buffer_store_dwordx4 {r('ys', 4, 4)}, {r('l16')}, {r('sWS')}, {r('yo')} offen offset:1024 sc1", "yst")
stamp("yst")
stamp("yst", "g2")
while hex_:
    hx()
g.free("cy", "pa", "yw", "cg", "yo")

V("ac2", 32)
e(f"s_cmp_lg_u32 {r('sH', 2, 1)}, 0")
e("s_cbranch_scc1 L_haveH")
sv_ = g.vm_done
pollcheck(r("pf2o"), "pf2", before_spin=["s_waitcnt vmcnt(0)"] + flagtxt(r("f3a"), L3S))
n_ = len(g.vm)
for x in HTXT[:NE]:
    e(x.replace("SRD", r("sWS")))
del g.vm[n_:]
g.label("L_haveH")
g.vm_done = 0
n_late = len(g.vm)
stamp("f2")
hl = [E(x.replace("SRD", r("sWS")), f"H{s_}_{p_}") for (s_, p_), x in zip(HORD, HTXT)]


def g2(s):
    return [M(r("ac2", (s & 1) * 16 + 4 * nb, 4), w2f(p, nb), HF[s, p], p == 0,
              (dict(vm=f"H{s}_{p}", lg="rv10") if (s == 0 and p == 10) else dict(vm=f"H{s}_{p}")) if nb == 0 else None)
            for p in range(11) for nb in range(4)]


def pwr(s):
    return [E(f"ds_write_b64 {r('pw', s, 1)}, {r('ac2', (s & 1) * 16 + 2 * k, 2)} offset:{512 * k}", "pw", 1.5) for k in range(8)]


V("xr", 8); V("xfp", 16); V("xn", 16)
pre = rv10 + [It(lambda: gcheck("sv", r("svr"), "sv")), W(vm="xt")]
for nb in range(4):
    pre.append(E(f"ds_read_b64 {r('xr', 2 * nb, 2)}, {r('ea', nb, 1)} offset:6144", "xr"))
PRESH = int(opt.get("presh", 1))
pre2 = [W(lg="xr")]
if PRESH:
    for d in range(8):
        lo, hi = r("xfp", 2 * d, 1), r("xfp", 2 * d + 1, 1)
        a_, b_ = r("xn", 2 * d, 1), r("xn", 2 * d + 1, 1)
        pre2.append(E(f"v_lshlrev_b32 {lo}, 16, {r('xr', d, 1)}"))
        pre2.append(E(f"v_and_b32 {hi}, {r('hmask')}, {r('xr', d, 1)}"))
        pre2.append(E(f"v_sub_f32 {a_}, {lo}, {r('sv', 0, 1)}"))
        pre2.append(E(f"v_sub_f32 {b_}, {hi}, {r('sv', 0, 1)}"))
        pre2.append(E(f"v_cvt_pk_bf16_f32 {b_}, {a_}, {b_}"))
        pre2.append(E(f"v_lshlrev_b32 {a_}, 16, {b_}"))
        pre2.append(E(f"v_and_b32 {b_}, {r('hmask')}, {b_}"))
        pre2.append(E(f"v_mul_f32 {a_}, {a_}, {r('sv', 1, 1)}"))
        pre2.append(E(f"v_mul_f32 {b_}, {b_}, {r('sv', 1, 1)}"))
        pre2.append(E(f"v_cvt_pk_bf16_f32 {b_}, {a_}, {b_}"))
        pre2.append(E(f"v_lshlrev_b32 {a_}, 16, {b_}"))
        pre2.append(E(f"v_and_b32 {b_}, {r('hmask')}, {b_}"))
else:
    pre2 += unpack("xfp", 0, "xr", 0, 8)
    for d in range(8):
        pre2.append(E(f"v_pk_add_f32 {r('xn', 2 * d, 2)}, {r('xfp', 2 * d, 2)}, {r('sv', 0, 2)} op_sel_hi:[1,0] neg_lo:[0,1] neg_hi:[0,1]"))
    for d in range(8):
        pre2.append(E(f"v_cvt_pk_bf16_f32 {r('xr', d, 1)}, {r('xn', 2 * d, 1)}, {r('xn', 2 * d + 1, 1)}"))
    pre2 += unpack("xn", 0, "xr", 0, 8)
    for d in range(8):
        pre2.append(E(f"v_pk_mul_f32 {r('xn', 2 * d, 2)}, {r('xn', 2 * d, 2)}, {r('sv', 0, 2)} op_sel:[0,1] op_sel_hi:[1,1]"))
    for d in range(8):
        pre2.append(E(f"v_cvt_pk_bf16_f32 {r('xr', d, 1)}, {r('xn', 2 * d, 1)}, {r('xn', 2 * d + 1, 1)}"))
    pre2 += unpack("xn", 0, "xr", 0, 8)
if PRESH:
    run(weave(rv10 or [It(lambda: None)], (hl[NE:NH0], 0, 9)))
    QPRE = win(pre[len(rv10):], 66, 72) + win(pre2, 78, 138)
else:
    run(weave(pre + pre2, (hl[NE:NH0], 0, 88)))
    QPRE = []
e(f"s_cmp_lg_u32 {r('sH', 2, 1)}, 0")
e("s_cbranch_scc1 L_lateok")
e(f"s_waitcnt vmcnt({len(g.vm) - n_late})")
g.label("L_lateok")
stamp("f3set")
stamp("f3set", "g2")
ps_alias = {}
B7P = 14
main = g2(0) + g2(1) + g2(2) + g2(3)[:B7P]
if SSET == "g2b":
    for k_ in range(0, 140, 8):
        main[k_] = It(lambda f=main[k_].fn, k_=k_: (stamp(f"m{k_}", "g2b"), f()), main[k_].cost)
P3K = int(opt.get("p3k", 44))
HPACE = float(opt.get("hpace", 3.8))
xtl = [It(lambda: (e(f"s_add_u32 m0, {r('own')}, 6144"), e("s_nop 0"), e(f"buffer_load_dwordx4 {r('xs', 0, 1)}, {r('sX')}, {r('tile0')} offen lds", "xt")), 1.5),
       E(f"buffer_load_dwordx4 {r('xs', 1, 1)}, {r('sX')}, {r('tile0')} offen offset:1024 lds", "xt"),
       E(f"buffer_load_dwordx4 {r('sv')}, {r('svr')}, {r('sWS')}, 0 offen sc1", "sv")]
XK = NH0 + 6
QH = win(hl[NH0:XK] + xtl + hl[XK:P3K] + [It(lambda: pollissue(r("pf3o"), "pf3"))] + hl[P3K:], 0, int(HPACE * (47 - NH0)))
QP = win(pwr(0), 48, 70) + win(pwr(1), 92, 114) + win(pwr(2), 134, 143)
F3POS = int(opt.get("f3pos", 34))
QF3 = win([It(lambda: (g.wait(vm="yst"), setflag(r("f3a"), "f3")), 2)], F3POS, F3POS)
schedule(main, [QH, QP, QF3, QPRE])
g.free("ys", "xr", "sv", "svr", "pf2o", "w2r")
stamp("g2s2")
stamp("g2s2", "g2")
g.wait(lg=0)
stamp("b7a", "g2")
e("s_barrier")
stamp("b7b", "g2")
g.free("hfv")
V("ps", 48); V("zr", 8); V("b2f", 16)
rp = [E(f"ds_read_b128 {r('b2f', 4 * nb, 4)}, {r('csr0')} offset:{B2T - CSX + 64 * nb}", "rb2") for nb in range(4)]
rp += [E(f"ds_read2st64_b64 {r('ps', 4 * k, 4)}, {r('psr')} offset0:{2 * k} offset1:{2 * k + 1}", f"rp{k}") for k in range(12)]
adds = [W(lg="rp11")]
for k in range(16):
    adds.append(E(f"v_add_f32 {r('ps', k, 1)}, {r('ps', k, 1)}, {r('ps', 16 + k, 1)}"))
    adds.append(E(f"v_add_f32 {r('b2f', k, 1)}, {r('b2f', k, 1)}, {r('ps', 32 + k, 1)}"))
ztxt = [f"buffer_load_dwordx4 {r('zs')}, {r('sWS')}, {r('zo')} offen sc1 lds",
        f"buffer_load_dwordx4 {r('zs')}, {r('sWS')}, {T3} offen offset:1024 sc1 lds"]


def zfirst():
    stamp("zfa", "g2")
    g.wait(vm="pf3")
    stamp("zfb", "g2")
    e(f"v_cmp_ne_u64 vcc, {r('tag')}, {r('pf')}")
    e(f"s_add_u32 m0, {r('own')}, 8192")
    e(f"s_add_u32 {T3}, {r('zo')}, {32 * KP - 1024}")
    e("s_cmp_eq_u64 vcc, 0")
    e(f"s_cselect_b32 {r('early')}, 1, 0")
    e("s_cbranch_scc0 L_noz")
    n_ = len(g.vm)
    for x in ztxt:
        e(x)
    del g.vm[n_:]
    g.label("L_noz")
    pollissue(r("pf3o"), "pf3b")


ZPOS = int(opt.get("zpos", 8))
schedule(g2(3)[B7P:], [win(rp, 0, 11), win(adds, 16, 29), win([It(zfirst, 3)], ZPOS, ZPOS)])
stamp("g2")
stamp("g2", "g2")
S("nl2", 2)
e(f"s_mov_b32 {r('nl2', 0, 1)}, 0x{f2u(-1.4426950408889634):08x}")
e(f"s_mov_b32 {r('nl2', 1, 1)}, 0x{f2u(-1.4426950408889634):08x}")
srd("sA", 11, 2097152)
Mm = lambda k: r("ps", 2 * k, 2)
Tt = lambda k: r("ps", 16 + 2 * k, 2)
e(".p2align 3")
for k in range(8):
    e(f"v_pk_add_f32 {Mm(k)}, {Mm(k)}, {r('b2f', 2 * k, 2)}")
for k in range(8):
    e(f"v_pk_add_f32 {Mm(k)}, {Mm(k)}, {r('ac2', 16 + 2 * k, 2)}")
for k in range(8):
    e(f"v_pk_mul_f32 {Tt(k)}, {Mm(k)}, {r('nl2')}")
for k in range(16):
    e(f"v_exp_f32 {r('ps', 16 + k, 1)}, {r('ps', 16 + k, 1)}")
for k in range(8):
    e(f"v_pk_mul_f32 {Mm(k)}, {Mm(k)}, {r('xn', 2 * k, 2)}")
for k in range(8):
    e(f"v_pk_add_f32 {Tt(k)}, {Tt(k)}, 1.0 op_sel_hi:[1,0]")
for k in range(16):
    e(f"v_rcp_f32 {r('ps', 16 + k, 1)}, {r('ps', 16 + k, 1)}")
e(f"s_cmp_eq_u32 {r('early')}, 1")
e("s_cbranch_scc1 L_havez")
pollcheck(r("pf3o"), "pf3b")
for x in ztxt:
    e(x)
g.label("L_havez")
e(f"s_or_b32 {T2}, s2, {r('wave')}")
e("s_cbranch_scc0 L_bump")
g.label("L_bumped")


def bump_tail():
    g.label("L_bump")
    e(f"v_and_b32 {ta_}, 7, {lane_}")
    if MAP1 == 8:
        e(f"v_lshrrev_b32 {tb_}, 2, {ta_}")
        e(f"v_and_b32 {ta_}, 3, {ta_}")
    else:
        e(f"v_lshrrev_b32 {tb_}, 1, {ta_}")
        e(f"v_and_b32 {ta_}, 1, {ta_}")
    e(f"v_mul_u32_u24 {tb_}, {2 * G2S}, {tb_}")
    e(f"v_lshl_add_u32 {ta_}, {ta_}, {L2S + 3}, {tb_}")
    e(f"s_mov_b32 {T2}, {F2B}")
    if SPINMAX:
        e(f"s_mov_b32 {T4}, 0")
    g.label("L_bump_l")
    e(f"buffer_load_dwordx2 {pf_}, {ta_}, {sws_}, {T2} offen sc1")
    e("s_waitcnt vmcnt(0)")
    e(f"v_cmp_ne_u64 vcc, {tagr_}, {pf_}")
    if SPINMAX:
        e(f"s_add_u32 {T4}, {T4}, 1")
        e(f"s_cmp_gt_u32 {T4}, {SPINMAX}")
        e("s_cbranch_scc1 L_bumped")
    e("s_cmp_eq_u64 vcc, 0")
    e("s_cbranch_scc0 L_bump_l")
    e(f"s_mov_b32 {T2}, {EPOCH}")
    e("s_mov_b64 exec, 1")
    e(f"buffer_store_dwordx2 {vtag_}, {zero_}, {sws_}, {T2} offen sc1")
    e("s_mov_b64 exec, -1")
    e("s_branch L_bumped2")


tagr_, sws_, vtag_, zero_, ta_, tb_, lane_, pf_ = r("tag"), r("sWS"), r("vtag", 0, 2), r("zero"), r("ta"), r("tb"), r("lane"), r("pf")
tails.append(bump_tail)
e("s_waitcnt vmcnt(0)")
g.label("L_bumped2")
stamp("z")
stamp("z", "g2")
for nb in range(4):
    e(f"ds_read_b64_tr_b16 {r('zr', 2 * nb, 2)}, {r('zt')} offset:{8192 + 512 * nb}", f"zr{nb}")
for k in range(8):
    e(f"v_pk_mul_f32 {Mm(k)}, {Mm(k)}, {Tt(k)}")
for nb in range(4):
    g.wait(lg=f"zr{nb}")
    run(unpack("ps", 16 + 4 * nb, "zr", 2 * nb, 2))
    for k in (2 * nb, 2 * nb + 1):
        e(f"v_pk_fma_f32 {Mm(k)}, {Mm(k)}, {Tt(k)}, {r('xfp', 2 * k, 2)}")
    for k in (2 * nb, 2 * nb + 1):
        e(f"v_cvt_pk_bf16_f32 {r('zr', k, 1)}, {r('ps', 2 * k, 1)}, {r('ps', 2 * k + 1, 1)}")
    e(f"ds_write_b64 {r('ea', nb, 1)}, {r('zr', 2 * nb, 2)} offset:10240", "ow")
e(f"ds_read_b128 {r('ps', 32, 4)}, {r('oa')} offset:10240", "or0")
e(f"ds_read_b128 {r('ps', 36, 4)}, {r('oa')} offset:11264", "or1")
g.wait(lg="or0")
e(f"buffer_store_dwordx4 {r('ps', 32, 4)}, {r('xs', 0, 1)}, {r('sA')}, {r('tile0')} offen {OPOL}", "ost")
g.wait(lg="or1")
e(f"buffer_store_dwordx4 {r('ps', 36, 4)}, {r('xs', 1, 1)}, {r('sA')}, {r('tile0')} offen offset:1024 {OPOL}", "ost")
stamp("out")
stamp("out", "g2")
if STAMPS:
    e("s_waitcnt vmcnt(0)")
    stamp("end")
    g.smem_out = True
    flush_stamps(True)
    e(f"s_lshl_b32 {T2}, s2, 2")
    e(f"s_add_u32 {T2}, {T2}, {r('wave')}")
    e(f"s_lshl_b32 {T2}, {T2}, 7")
    e(f"s_add_u32 {T2}, {T2}, {STAMP}")
    e(f"v_lshlrev_b32 {r('ta')}, 2, {r('lane')}")
    e("s_mov_b32 exec_hi, 0")
    e(f"buffer_store_dword {r('stamps')}, {r('ta')}, {r('sWS')}, {T2} offen")
    if DBG:
        e(f"s_cmp_lg_u32 {T2}, {STAMP + (DBG - 1) * 512}")
        e("s_cbranch_scc1 L_end")
        e(f"v_readfirstlane_b32 {T3}, {r('stamps')}")
        e(f"v_subrev_u32 {r('tb')}, {T3}, {r('stamps')}")
        e(f"global_store_dword {r('ta')}, {r('tb')}, {ptr(12)}")
if AMP:
    e("s_waitcnt vmcnt(0) lgkmcnt(0)")
    e("s_memrealtime s[100:101]")
    e("s_sub_u32 s98, s98, s96")
    e("s_lshl_b32 s98, s98, 1")
    e("s_waitcnt lgkmcnt(0)")
    g.label("L_amp")
    e(f"s_memrealtime {r('t45', 0, 2)}")
    e("s_waitcnt lgkmcnt(0)")
    e(f"s_sub_u32 {T1_}, {T1_}, s100")
    e(f"s_cmp_lt_u32 {T1_}, s98")
    e("s_cbranch_scc1 L_amp")
if UNTIL:
    g.label("L_until")
    e(f"s_memrealtime {r('t45', 0, 2)}")
    e("s_waitcnt lgkmcnt(0)")
    e(f"s_sub_u32 {T1_}, {T1_}, {r('t_start', 0, 1)}")
    e(f"s_cmp_lt_u32 {T1_}, {UNTIL}")
    e("s_cbranch_scc1 L_until")
PAD = int(opt.get("pad", 0))
if PAD:
    e(f"s_mov_b32 {T2}, 0")
    g.label("L_pad")
    for _ in range(120):
        e(f"v_add_u32 {r('ta')}, 1, {r('tb')}")
    e(f"s_add_u32 {T2}, {T2}, 1")
    e(f"s_cmp_lt_u32 {T2}, {PAD}")
    e("s_cbranch_scc1 L_pad")
g.label("L_end")
e("s_endpgm")
for t_ in tails:
    t_()

body = g.finish()
hdr = open("cdna_kernels/" + NAME + ".s.ref").read().split("; @launch")[0]
nv = 256 + g.hw["a"]
txt = f"""{hdr}; @launch grid=(256,1,1) block=(256,1,1) lds={LDSZ}
.amdgcn_target "amdgcn-amd-amdhsa--gfx950"
.text
.globl {NAME}_kernel
.p2align 8
.type {NAME}_kernel,@function
{NAME}_kernel:
{body}
    s_endpgm
.section .rodata,"a"
.p2align 6
.amdhsa_kernel {NAME}_kernel
  .amdhsa_next_free_vgpr {nv}
  .amdhsa_next_free_sgpr 102
  .amdhsa_accum_offset 256
  .amdhsa_group_segment_fixed_size 0
  .amdhsa_kernarg_size 112
  .amdhsa_user_sgpr_count 2
  .amdhsa_user_sgpr_kernarg_segment_ptr 1
  .amdhsa_system_sgpr_workgroup_id_x 1
.end_amdhsa_kernel
"""
import subprocess, re
open("_g.s", "w").write(txt.replace("CODE_BYTES", "0x1000"))
subprocess.check_call(["clang", "-x", "assembler", "-target", "amdgcn-amd-amdhsa", "-mcpu=gfx950", "-c", "_g.s", "-o", "_g.o"])
hh = subprocess.check_output(["llvm-objdump", "-h", "_g.o"]).decode()
size = int(re.search(r"\.text\s+([0-9a-f]+)", hh).group(1), 16)
txt = txt.replace("CODE_BYTES", str((size - 256) & ~3))
open(OUT, "w").write(txt)
print("code bytes", size, "instrs", len(g.ins), "nops", g.nops, "hw", g.hw, "stamps", nst[0], " ".join(stnames))
```

```python
import re

TRANS = ("v_exp_f32", "v_log_f32", "v_rcp_f32", "v_rsq_f32", "v_sqrt_f32", "v_sin_f32", "v_cos_f32")


def _regs(tok):
    tok = tok.strip()
    tok = tok.lstrip("-")
    if tok.startswith("abs(") or tok.startswith("|"):
        tok = tok.replace("abs(", "").replace(")", "").replace("|", "")
    m = re.fullmatch(r"([vas])\[(\d+):(\d+)\]", tok)
    if m:
        return [(m.group(1), i) for i in range(int(m.group(2)), int(m.group(3)) + 1)]
    m = re.fullmatch(r"([vas])(\d+)", tok)
    if m:
        return [(m.group(1), int(m.group(2)))]
    if tok == "vcc":
        return [("s", 106), ("s", 107)]
    if tok == "vcc_lo":
        return [("s", 106)]
    if tok == "vcc_hi":
        return [("s", 107)]
    if tok == "exec":
        return [("s", 126), ("s", 127)]
    if tok == "exec_lo":
        return [("s", 126)]
    if tok == "exec_hi":
        return [("s", 127)]
    if tok == "m0":
        return [("s", 124)]
    return []


class Ins:
    __slots__ = ("text", "op", "cls", "wr", "rd", "srcc", "ab", "lds", "wide_store")

    def __init__(self, text):
        self.text = text
        t = text.split(";")[0].strip()
        parts = t.split(None, 1)
        self.op = op = parts[0]
        rest = parts[1] if len(parts) > 1 else ""
        ops = []
        cur = ""
        depth = 0
        for ch in rest:
            if ch in "[(":
                depth += 1
            if ch in "])":
                depth -= 1
            if ch == "," and depth == 0:
                ops.append(cur.strip())
                cur = ""
            else:
                cur += ch
        if cur.strip():
            ops.append(cur.strip())
        mods = ""
        if ops:
            sp = ops[-1].split(None, 1)
            if len(sp) > 1:
                ops[-1] = sp[0]
                mods = sp[1]
        self.wr, self.rd, self.srcc, self.ab = [], [], [], []
        self.lds = False
        self.wide_store = False
        R = [_regs(o) for o in ops]
        if op.endswith(":") or op.startswith("."):
            self.cls = "label"
        elif op.startswith("v_mfma"):
            self.cls = "mfma"
            self.wr = R[0]
            self.ab = R[1] + R[2]
            self.srcc = R[3]
            self.rd = self.ab + self.srcc
        elif op.startswith("v_"):
            self.cls = "trans" if op.replace("_e32", "").replace("_e64", "") in TRANS else "valu"
            if op.startswith("v_cmp"):
                self.wr = R[0]
                self.rd = sum(R[1:], [])
                if op.startswith("v_cmpx"):
                    self.wr = self.wr + _regs("exec")
            elif op.startswith("v_add_co") or op.startswith("v_sub_co") or op.startswith("v_addc_co") or op.startswith("v_subb_co"):
                self.wr = R[0] + R[1]
                self.rd = sum(R[2:], [])
            elif op.startswith("v_permlane") and "swap" in op:
                self.wr = R[0] + R[1]
                self.rd = R[0] + R[1]
            else:
                self.wr = R[0]
                self.rd = sum(R[1:], [])
                if op.startswith("v_fmac") or op.startswith("v_dot2c") or "dpp" in op or "row_" in mods or "quad_perm" in mods:
                    self.rd = self.rd + R[0]
                if op.startswith("v_cndmask") and len(ops) == 3:
                    self.rd = self.rd + _regs("vcc")
            if "dpp" in op or "row_" in mods or "quad_perm" in mods:
                self.cls = "dpp"
        elif op.startswith("ds_"):
            self.cls = "ds"
            if op.startswith("ds_read") or op.startswith("ds_bpermute") or op.startswith("ds_permute") or op.startswith("ds_swizzle"):
                self.wr = R[0]
                self.rd = sum(R[1:], [])
            else:
                self.rd = sum(R, [])
        elif op.startswith("buffer_") or op.startswith("global_"):
            self.cls = "vmem"
            self.lds = bool(re.search(r"\blds\b", mods))
            if "load" in op and not self.lds:
                self.wr = R[0]
                self.rd = sum(R[1:], [])
            else:
                self.rd = sum(R, [])
                if self.lds:
                    self.rd = self.rd + _regs("m0")
                if "store" in op and ("x4" in op or "x3" in op):
                    self.wide_store = R[0] if op.startswith("buffer_") else R[1]
        elif op.startswith("s_"):
            self.cls = "salu"
            if op in ("s_waitcnt", "s_barrier", "s_nop", "s_sleep", "s_endpgm", "s_setprio") or op.startswith("s_cbranch") or op == "s_branch":
                self.cls = "sctl"
            elif op.startswith("s_cmp") or op.startswith("s_bitcmp"):
                self.rd = sum(R, [])
            elif op.startswith("s_load") or op.startswith("s_memtime") or op.startswith("s_memrealtime"):
                self.cls = "smem"
                self.wr = R[0]
                self.rd = sum(R[1:], [])
            else:
                self.wr = R[0]
                self.rd = sum(R[1:], [])
                if "saveexec" in op:
                    self.wr = self.wr + _regs("exec")
        else:
            raise ValueError("unknown op " + text)

    def states(self):
        if self.cls == "label":
            return 0
        if self.op == "s_nop":
            return int(self.text.split()[1]) + 1
        return 1


VALU_LIKE = ("valu", "trans", "dpp")


def need(p, c):
    n = 0
    pw = set(p.wr)
    if p.cls == "mfma":
        if c.cls == "mfma":
            if pw & set(c.ab):
                n = max(n, 8)
            if pw & set(c.srcc):
                if set(c.srcc) != pw:
                    n = max(n, 6)
            elif pw & set(c.wr):
                n = max(n, 6)
        elif c.cls in VALU_LIKE or c.cls in ("ds", "vmem"):
            if pw & (set(c.rd) | set(c.wr)):
                n = max(n, 8)
        if c.cls in VALU_LIKE and set(p.srcc) & set(c.wr):
            n = max(n, 3)
    if p.cls in VALU_LIKE:
        vw = {r for r in pw if r[0] in "va"}
        sw = {r for r in pw if r[0] == "s"}
        if c.cls == "mfma" and vw & set(c.rd):
            n = max(n, 2)
        if c.cls == "mfma" and (("s", 126) in sw):
            n = max(n, 4)
        if c.cls == "dpp" and vw & set(c.rd):
            n = max(n, 2)
        if c.cls == "dpp" and ("s", 126) in sw:
            n = max(n, 5)
        if c.op.startswith("v_permlane") and vw & set(c.rd):
            n = max(n, 2)
        if (c.op.startswith("v_readfirstlane") or c.op.startswith("v_readlane")) and vw & set(c.rd):
            n = max(n, 1)
        if c.cls == "vmem" and sw & set(c.rd):
            n = max(n, 5)
        if c.cls in VALU_LIKE and sw & set(c.rd):
            n = max(n, 4 if c.op.startswith("v_readlane") or c.op.startswith("v_writelane") else 2)
        if c.cls in ("salu", "sctl", "smem") and sw & set(c.rd):
            n = max(n, 1)
        if p.op.startswith("v_dot") and vw & (set(c.rd) | set(c.wr)):
            same_c = c.op == p.op and not (vw & set(c.rd[:-1] if c.rd else []))
            if not same_c:
                n = max(n, 3)
        if p.cls == "trans" and c.cls in ("valu", "dpp", "mfma", "ds", "vmem") and vw & set(c.rd):
            n = max(n, 1)
        if ("sdwa" in p.op or "op_sel" in p.text) and c.cls in VALU_LIKE and vw & (set(c.rd) | set(c.wr)) and not p.op.startswith("v_pk_"):
            n = max(n, 1)
    if p.cls == "salu":
        if ("s", 124) in pw and c.cls == "vmem" and c.lds:
            n = max(n, 1)
    if p.cls == "vmem" and p.wide_store:
        if set(p.wide_store) & set(c.wr):
            n = max(n, 2)
    return n


class Gen:
    def __init__(self):
        self.ins = []
        self.vm = []
        self.lg = []
        self.smem_out = False
        self.wlog = []
        self.vm_done = 0
        self.lg_done = 0
        self.pools = {"v": [None] * 256, "a": [None] * 256, "s": [None] * 102}
        self.names = {}
        self.hw = {"v": 0, "a": 0, "s": 0}

    def alloc(self, kind, name, n=1, align=None, lo=0, at=None):
        pool = self.pools[kind]
        if align is None:
            align = 1 if n == 1 else (2 if kind in "va" else (4 if n >= 4 else 2))
        assert name not in self.names, name
        rng = [at] if at is not None else range(lo, len(pool) - n + 1)
        for b in rng:
            if b % align:
                continue
            if all(pool[b + i] is None for i in range(n)):
                for i in range(n):
                    pool[b + i] = name
                self.names[name] = (kind, b, n)
                self.hw[kind] = max(self.hw[kind], b + n)
                return b
        raise RuntimeError(f"out of {kind} regs for {name} ({n}); used: {self.usage(kind)}")

    def usage(self, kind):
        return {k: v[1:] for k, v in self.names.items() if v[0] == kind}

    def free(self, *names):
        for name in names:
            kind, b, n = self.names.pop(name)
            for i in range(n):
                self.pools[kind][b + i] = None

    def r(self, name, off=0, n=None):
        kind, b, tot = self.names[name]
        if n is None:
            n = tot - off if off == 0 else 1
        assert off + n <= tot, (name, off, n, tot)
        if n == 1:
            return f"{kind}{b + off}"
        return f"{kind}[{b + off}:{b + off + n - 1}]"

    def e(self, text, tag=None):
        for line in text.split("\n"):
            line = line.strip()
            if not line:
                continue
            i = Ins(line)
            self.ins.append(i)
            if i.cls == "vmem":
                self.vm.append(tag)
            elif i.cls == "ds":
                self.lg.append(tag)
            elif i.cls == "smem":
                self.smem_out = True

    def label(self, name):
        self.ins.append(Ins(name + ":"))

    def comment(self, s):
        self.ins.append(Ins(".if 0"))
        self.ins.pop()

    def _cnt(self, lst, tag):
        idx = max(i for i, t in enumerate(lst) if t == tag)
        self.wlog.append((lst, tag, lst.count(tag)))
        return len(lst) - 1 - idx

    def wait(self, vm=None, lg=None):
        parts = []
        if vm is not None:
            n = 0 if vm == 0 else self._cnt(self.vm, vm)
            done = len(self.vm) - n
            if done > self.vm_done or vm == 0:
                n = min(n, 63)
                self.vm_done = max(self.vm_done, len(self.vm) - n)
                parts.append(f"vmcnt({n})")
        if lg is not None:
            n = 0 if lg == 0 else self._cnt(self.lg, lg)
            done = len(self.lg) - n
            if done > self.lg_done or lg == 0:
                if self.smem_out:
                    n = 0
                n = min(n, 15)
                if n == 0:
                    self.smem_out = False
                self.lg_done = max(self.lg_done, len(self.lg) - n)
                parts.append(f"lgkmcnt({n})")
        if parts:
            self.e("s_waitcnt " + " ".join(parts))

    def finish(self, align8=True):
        for lst, tag, c in self.wlog:
            assert lst.count(tag) == c, ("wait on partially issued group", tag, c, lst.count(tag))
        out = []
        hist = []
        nops = 0
        for i in self.ins:
            if i.cls != "label":
                req = 0
                dist = 0
                for p in reversed(hist):
                    nd = need(p, i)
                    if nd > dist:
                        req = max(req, nd - dist)
                    dist += p.states()
                    if dist >= 20:
                        break
                if req:
                    nop = Ins(f"s_nop {req - 1}")
                    out.append(nop)
                    hist.append(nop)
                    nops += 1
                hist.append(i)
            out.append(i)
        self.nops = nops
        return "\n".join(("" if x.cls == "label" else "    ") + x.text for x in out)


def interleave(main, fill, start=0, every=1, per=1):
    out = []
    f = list(fill)
    for n, m in enumerate(main):
        out.append(m)
        if n >= start and (n - start) % every == 0:
            for _ in range(per):
                if f:
                    out.append(f.pop(0))
    out.extend(f)
    return out


class It:
    __slots__ = ("fn", "cost", "lo", "hi")

    def __init__(self, fn, cost=1, lo=0, hi=10 ** 9):
        self.fn, self.cost, self.lo, self.hi = fn, cost, lo, hi

    def __call__(self):
        self.fn()


def win(items, lo, hi, pace=True):
    out = []
    n = len(items)
    for k, it in enumerate(items):
        if not isinstance(it, It):
            it = It(it)
        a = lo + (k * (hi - lo + 1)) // n if pace else lo
        b = max(a, hi - (n - 1 - k) // 2) if not pace else max(a, min(hi, a + max(1, (hi - lo + 1) // n)))
        out.append(It(it.fn, it.cost, a, b))
    return out


def schedule(main, queues, cap=2.3, partial=False, base=0):
    qs = queues if (partial or base) else [list(q) for q in queues]
    for i0, m in enumerate(main):
        idx = i0 + base
        m()
        room = cap - (main[i0 + 1].cost if i0 + 1 < len(main) else 0)
        while True:
            cand = [q for q in qs if q and q[0].lo <= idx]
            if not cand:
                break
            q = min(cand, key=lambda q: min(x.hi for x in q[:8]))
            dl = min(x.hi for x in q[:8])
            if room >= q[0].cost or dl <= idx:
                it = q.pop(0)
                it()
                room -= it.cost
            else:
                alt = [c for c in cand if c[0].cost <= room]
                if not alt:
                    break
                q = min(alt, key=lambda q: min(x.hi for x in q[:8]))
                it = q.pop(0)
                it()
                room -= it.cost
    if not partial:
        for q in qs:
            for it in q:
                it()
```

```python
import sys, struct, re
from dsl import Gen, It, win, schedule

NAME = "recurrent_scan__ssm_conv_h3__mixer_channel_mlp__prompt"
opt = dict(a.split("=") for a in sys.argv[2:])
OUT = sys.argv[1]
MAP1 = int(opt.get("map1", 4))
STAMPS = int(opt.get("stamps", 0))
KVPOL = opt.get("kvpol", "nt")
XPOL0 = opt.get("xpol", "")
KPOL = opt.get("kpol", "nt")
SPINMAX = int(opt.get("spinmax", 0))
PREDIV = int(opt.get("prediv", 16))
OPOL = opt.get("opol", "")
DBG = int(opt.get("dbg", 0))
SSET = opt.get("sset", "main")
TOUCH = int(opt.get("touch", 0))
NH0 = int(opt.get("nh0", 14))
NX0 = int(opt.get("nx0", 7))

KP = int(opt.get("kp", 4352))
KVT, HB, YT, FL, EPOCH, STAMP = 0, 0x240000, 0x800000, 0xA40000, 0xB00000, 0xC00000
F1B, F2B, F3B = FL, FL + 0x30000, FL + 0x60000
L1S, L2S, L3S = (int(opt.get(k, d)) for k, d in (("l1s", 6), ("l2s", 6), ("l3s", 6)))
G1S, G2S, G3S = max(32 << L1S, 256) + 256, max(32 << L2S, 256) + 256, max(64 << L3S, 256) + 256
STA, STB = 0xAE0000, 0xAE0010
HALT = int(opt.get("halt", "0"), 0)
WSZ = 0xD00000 + HALT
XST, KVIMG, CSX, STT = 98816, 147968, 156288, 156672
FP, GP = 4160, 4576
WR = 49664
UB0 = 66048
S3, S4 = 49664, 33280
PX = 49664
B1T, B2T = 157696, 158080
LDSZ = 158336


def f2u(x):
    return struct.unpack("<I", struct.pack("<f", x))[0]


g = Gen()
e, r = g.e, g.r
V = lambda n, c=1, **k: g.alloc("v", n, c, **k)
S = lambda n, c=1, **k: g.alloc("s", n, c, **k)
AC = lambda n, c=1, **k: g.alloc("a", n, c, **k)
W = lambda **k: It(lambda: g.wait(**k), 0.3)
E = lambda s, t=None, cost=None: It(lambda: e(s, t), cost or (1.2 if s.startswith(('ds_', 'buffer_', 'global_')) else 0.3 if s.startswith('s_') else 1))


def run(items):
    for it in items:
        it()


def weave(main, *bgs):
    slots = [[] for _ in main]
    for items, a, b in bgs:
        b = min(b, len(main) - 1)
        n = len(items)
        for k, it in enumerate(items):
            slots[a + (k * (b - a + 1)) // max(n, 1)].append(it)
    out = []
    for m, s in zip(main, slots):
        out.append(m)
        out.extend(s)
    return out


S("karg", 2, at=0); S("wg", 1, at=2); S("t0", 1, at=3)
S("t45", 4, at=4)
for i_ in range(14):
    S(f"ptr{i_}", 2, at=8 + 2 * i_)
V("tid", 1, at=0)
nst = [0]
stnames = []
pend = []
if STAMPS:
    S("st", 8, at=94, align=2)
    V("stamps", 1, at=1)


def flush_stamps(force=False):
    if pend and (force or len(pend) == 4) and g.smem_out:
        g.wait(lg=0)
    if not g.smem_out:
        for k in pend:
            e(f"v_writelane_b32 {r('stamps')}, {r('st', 2 * (k % 4), 1)}, {k}")
        pend.clear()


AMP = opt.get("amp", "")


def stamp(name, grp="main"):
    if AMP and grp == "main" and name in ("start", AMP):
        so_ = g.smem_out
        e(f"s_memrealtime s[{96 if name == 'start' else 98}:{97 if name == 'start' else 99}]")
        if name != "start":
            g.smem_out = so_
    if STAMPS and (grp == SSET or name in ("start", "end")) and name not in opt.get("skip", "").split(","):
        assert nst[0] < 32
        if STAMPS == 3:
            if len(pend) == 3:
                k = pend.pop(0)
                e(f"v_writelane_b32 {r('stamps')}, {r('st', 2 * (k % 4), 1)}, {k}")
            so_ = g.smem_out
            e(f"s_memtime {r('st', 2 * (nst[0] % 4), 2)}")
            g.smem_out = so_
            pend.append(nst[0]); nst[0] += 1; stnames.append(name)
            return
        flush_stamps()
        e(f"{'s_memtime' if STAMPS == 2 else 's_memrealtime'} {r('st', 2 * (nst[0] % 4), 2)}")
        pend.append(nst[0])
        nst[0] += 1
        stnames.append(name)


_wait = g.wait
_wn = [0]
VM0 = int(opt.get("vm0", 0))


def wait_hook(vm=None, lg=None):
    hook = SSET == "vm" and vm is not None and not str(vm).startswith("H")
    if hook:
        _wn[0] += 1
        hook = VM0 < _wn[0] <= VM0 + 15
    if hook:
        stamp(f"b{vm}", "vm")
    _wait(vm=vm, lg=lg)
    if hook:
        stamp(f"a{vm}", "vm")


g.wait = wait_hook


def ptr(i):
    if i == 13 and "ptr13" not in g.names:
        return r("sWS", 0, 2)
    return r(f"ptr{i}")


def plo(i):
    return "s" + ptr(i)[2:].split(":")[0]


def phi(i):
    return "s" + ptr(i).split(":")[1][:-1]


def srd(name, pi, nbytes, add=None):
    if add is None:
        e(f"s_mov_b64 {r(name,0,2)}, {ptr(pi)}")
    else:
        e(f"s_add_u32 {r(name,0,1)}, {plo(pi)}, {add}")
        e(f"s_addc_u32 {r(name,1,1)}, {phi(pi)}, 0")
    e(f"s_mov_b32 {r(name,2,1)}, {nbytes}")
    e(f"s_mov_b32 {r(name,3,1)}, 0x00020000")


T0, T1_, T2, T3, T4 = "s3", "s4", "s5", "s6", "s7"
ABL = opt.get("abl", "").split(",")
_e0 = g.e


LATE = None


def e(text, tag=None):
    if LATE is not None:
        LATE.append(text)
        return
    t = tag or ""
    if ("x" in ABL and t.startswith("X") and t != "X0") or ("w" in ABL and t.startswith("W") and t != "W0") or \
            ("v" in ABL and t.startswith("V")):
        g.vm.append(tag)
        g.vm.pop()
        g.vm.insert(0, tag)
        return
    hook = SSET == "iss" and (text.startswith(("buffer_", "global_", "s_barrier")) or (text.startswith("s_waitcnt") and "vmcnt" in text))
    if hook:
        _in[0] += 1
        hook = VM0 < _in[0] <= VM0 + 15
    if hook:
        stamp("b" + (tag or text.split()[0][2:6]), "iss")
    _e0(text, tag)
    if hook:
        stamp("a", "iss")


_in = [0]
g.e = e


UNTIL = int(opt.get("until", 0))
if UNTIL:
    S("t_start", 2, at=92)
    e(f"s_memrealtime {r('t_start')}")
stamp("start")
e("s_load_dwordx16 s[8:23], s[0:1], 0")
e("s_load_dwordx8 s[24:31], s[0:1], 64")
e("s_load_dwordx4 s[32:35], s[0:1], 96")
e("s_cmp_ge_u32 s2, 256")
e("s_cbranch_scc1 L_end")
for n in ("lane", "ta", "tb", "tc", "td", "r8", "pc", "zero", "i15", "h4", "l16", "oa", "fa", "ga", "pa", "yw", "zs", "zt",
          "pf1o", "pf2o", "pf3o", "psr", "svr", "kw", "za", "sgo", "csr0", "stw"):
    V(n)
V("vtag", 4); V("xs", 4, align=1); V("w2s", 4, align=1); V("w2r", 8, align=1); V("hv", 4, align=1)
V("pw", 3, align=1); V("ea", 4, align=1); V("pf", 2)
V("xrd", 2, align=1); V("w1r", 6, align=1); V("ctr", 3, align=1); V("w1s", 3, align=1)
AC("fd", 4, at=240); AC("ones", 4, at=244); AC("zz", 4, at=248)
for n in ("wave", "T1", "q", "tt2", "ns", "rot", "b0", "nown", "tok16", "ns128", "tile0", "own", "hmask", "so",
          "f1a", "f2a", "f3a", "yo", "zo", "um0", "ush"):
    S(n)
sh_ = PREDIV.bit_length() - 1
V("pre")
e(f"s_lshr_b32 {T1_}, s2, 3")
e(f"v_lshrrev_b32 {r('tc')}, {sh_}, v0")
e(f"s_and_b32 {T2}, {T1_}, {PREDIV - 1}")
e(f"v_lshl_add_u32 {r('tc')}, {r('tc')}, {sh_}, {T2}")
e(f"v_lshlrev_b32 {r('tc')}, 7, {r('tc')}")
e(f"v_min_u32 {r('tc')}, CODE_BYTES, {r('tc')}")
e(f"s_getpc_b64 {r('t45', 2, 2)}")
e(f"global_load_dword {r('pre')}, {r('tc')}, {r('t45', 2, 2)}", "pre")
e(f"v_and_b32 {r('lane')}, 63, v0")
e(f"v_lshrrev_b32 {r('ta')}, 6, v0")
e(f"s_and_b32 {T0}, s2, 7")
e(f"v_readfirstlane_b32 {r('wave')}, {r('ta')}")
if MAP1 == 8:
    e(f"s_lshr_b32 {T2}, {T1_}, 4")
    e(f"s_lshl_b32 {r('T1')}, {T0}, 1")
    e(f"s_add_u32 {r('T1')}, {r('T1')}, {T2}")
    e(f"s_and_b32 {r('q')}, {T1_}, 15")
    e(f"s_lshl_b32 {T2}, {T2}, 2")
    e(f"s_add_u32 {r('rot')}, {T2}, {r('q')}")
else:
    e(f"s_lshr_b32 {T2}, {T0}, 1")
    e(f"s_lshl_b32 {T2}, {T2}, 2")
    e(f"s_lshr_b32 {T3}, {T1_}, 3")
    e(f"s_add_u32 {r('T1')}, {T2}, {T3}")
    e(f"s_and_b32 {T2}, {T0}, 1")
    e(f"s_lshl_b32 {T2}, {T2}, 3")
    e(f"s_add_u32 {T3}, {T1_}, {int(opt.get('jrot', 0))}")
    e(f"s_and_b32 {T3}, {T3}, 7")
    e(f"s_add_u32 {r('q')}, {T2}, {T3}")
    e(f"s_lshl_b32 {T2}, {r('T1')}, 1")
    e(f"s_add_u32 {r('rot')}, {T2}, {r('q')}")
e(f"s_and_b32 {r('rot')}, {r('rot')}, 7")
e(f"s_lshr_b32 {T2}, {r('q')}, 3")
e(f"s_lshl_b32 {r('tt2')}, {r('T1')}, 1")
e(f"s_add_u32 {r('tt2')}, {r('tt2')}, {T2}")
e(f"s_and_b32 {r('ns')}, {r('q')}, 7")
V("k0"); V("kd", 2, align=1); V("sho")
e(f"v_lshrrev_b32 {r('r8')}, 3, {r('lane')}")
e(f"v_and_b32 {r('pc')}, 7, {r('lane')}")
e(f"s_lshl_b32 {T2}, {r('tt2')}, 2")
e(f"s_add_u32 {r('tok16')}, {T2}, {r('wave')}")
e(f"s_lshl_b32 {T2}, {r('tok16')}, 14")
e(f"s_lshl_b32 {r('ns128')}, {r('ns')}, 7")
e(f"s_add_u32 {r('tile0')}, {T2}, {r('ns128')}")
e(f"s_mul_i32 {r('own')}, {r('wave')}, 12288")
e(f"s_add_u32 {r('own')}, {r('own')}, {XST}")
S("sA", 4); S("sB", 4); S("sX", 4); S("sW1", 4); S("sWS", 4)
for nm, sz in (("sX", 2097152), ("sW1", 1409024)):
    e(f"s_mov_b32 {r(nm,2,1)}, {sz}")
    e(f"s_mov_b32 {r(nm,3,1)}, 0x00020000")
e(f"s_mul_i32 {r('b0')}, {r('q')}, 3")
e(f"s_lshr_b32 {T2}, {r('q')}, 2")
e(f"s_sub_u32 {r('b0')}, {r('b0')}, {T2}")
e(f"s_min_u32 {T2}, {r('q')}, 1")
e(f"s_sub_u32 {r('b0')}, {r('b0')}, {T2}")
e(f"s_bitcmp1_b32 0x8889, {r('q')}")
e(f"s_cselect_b32 {r('nown')}, 2, 3")
ZOWN = int(opt.get("zown", 1))
e(f"s_lshl_b32 {T3}, {r('nown')}, 2")
for c in range(3):
    e(f"v_add_u32 {r('ta')}, {64 * c}, {r('lane')}")
    e(f"v_mul_u32_u24 {r('tb')}, 43691, {r('ta')}")
    e(f"v_lshrrev_b32 {r('tb')}, 19, {r('tb')}")
    e(f"v_mul_u32_u24 {r('tc')}, 12, {r('tb')}")
    e(f"v_sub_u32 {r('tc')}, {r('ta')}, {r('tc')}")
    e(f"v_lshrrev_b32 {r('td')}, 2, {r('tb')}")
    e(f"v_and_b32 {r('td')}, 2, {r('td')}")
    e(f"v_xor_b32 {r('tc')}, {r('tc')}, {r('td')}")
    e(f"v_mul_u32_u24 {r('tb')}, 2752, {r('tb')}")
    e(f"v_lshl_add_u32 {r('tb')}, {r('tc')}, 4, {r('tb')}")
    if ZOWN:
        e(f"v_cmp_le_u32 vcc, {T3}, {r('tc')}")
        e(f"v_subrev_u32 {r('tb')}, {1024 * c}, {r('tb')}")
        e(f"v_bfrev_b32 {r('td')}, 2")
        e(f"v_cndmask_b32 {r('w1s', c, 1)}, {r('tb')}, {r('td')}, vcc")
    else:
        e(f"v_subrev_u32 {r('w1s', c, 1)}, {1024 * c}, {r('tb')}")
S("w1lds"); S("xbase"); S("xk"); S("wo"); S("wlim")
e(f"s_lshl_b32 {T3}, {r('b0')}, 6")
e(f"s_lshl_b32 {T2}, {r('T1')}, 2")
e(f"s_add_u32 {T2}, {T2}, {r('wave')}")
e(f"s_lshl_b32 {r('xbase')}, {T2}, 15")
e(f"s_lshl_b32 {r('xk')}, {r('rot')}, 7")
e(f"s_mul_i32 {T4}, {r('wave')}, {16 * 2752}")
e(f"s_add_u32 {T4}, {T4}, {T3}")
e(f"s_add_u32 {r('wlim')}, {T4}, {512 * 2752}")
e(f"s_mul_i32 {T2}, {r('rot')}, {64 * 2752}")
e(f"s_add_u32 {r('wo')}, {T2}, {T4}")
e(f"s_mul_i32 {r('w1lds')}, {r('wave')}, 3072")
e(f"s_add_u32 {r('w1lds')}, {r('w1lds')}, {WR}")
e(f"v_lshrrev_b32 {r('ta')}, 1, {r('r8')}")
e(f"v_xor_b32 {r('ta')}, {r('ta')}, {r('pc')}")
e(f"v_lshlrev_b32 {r('ta')}, 4, {r('ta')}")
e(f"v_lshl_add_u32 {r('xs', 0, 1)}, {r('r8')}, 10, {r('ta')}")
e(f"v_xor_b32 {r('tb')}, 64, {r('xs', 0, 1)}")
e(f"v_add_u32 {r('xs', 1, 1)}, 7168, {r('tb')}")
e(f"v_add_u32 {r('xs', 2, 1)}, {2 * 7168}, {r('xs', 0, 1)}")
e(f"v_add_u32 {r('xs', 3, 1)}, {3 * 7168}, {r('tb')}")
g.wait(lg=0)
e(f"s_mov_b64 {r('sX',0,2)}, {ptr(0)}")
e(f"s_mov_b64 {r('sW1',0,2)}, {ptr(7)}")


def dmaW1(n):
    items = []
    for c in range(3):
        def it(c=c):
            if c == 0:
                e(f"s_add_u32 m0, {r('w1lds')}, {(n % 4) * 12288}")
                if n:
                    e(f"s_cmp_ge_u32 {r('wo')}, {r('wlim')}")
                    e(f"s_cselect_b32 {T2}, {512 * 2752}, 0")
                    e(f"s_sub_u32 {r('wo')}, {r('wo')}, {T2}")
            e(f"buffer_load_dwordx4 {r('w1s', c, 1)}, {r('sW1')}, {r('wo')} offen offset:{1024 * c} lds", f"W{n}")
            if c == 2:
                e(f"s_add_u32 {r('wo')}, {r('wo')}, {64 * 2752}")
        items.append(It(it, (2, 1.2, 1.5)[c]))
    return items


def dmaX(ei):
    items = []
    for n in range(4):
        def it(n=n):
            xo = r("so")
            if n == 0:
                e(f"s_add_u32 m0, {r('own')}, {(ei % 3) * 4096}")
                e(f"s_or_b32 {xo}, {r('xk')}, {r('xbase')}")
            pol = XPOL0 if ei < 1 else ""
            e(f"buffer_load_dwordx4 {r('xs', n, 1)}, {r('sX')}, {xo} offen offset:{1024 * n} {pol} lds", f"X{ei}")
            if n == 1:
                e(f"s_add_u32 {r('xk')}, {r('xk')}, 128")
            if n == 2:
                e(f"s_and_b32 {r('xk')}, {r('xk')}, 0x3ff")
        items.append(It(it, (1.8, 1.5, 1.5, 1.2)[n]))
    return items


srd("sWS", 13, WSZ, add=(int(opt.get("wsb", 0)) << 20) or None)
V("sx", 8, at=200); V("sacc", 4); V("u", 4); V("gq", 4); V("stv", 2)
e(f"v_mov_b32 {r('zero')}, 0")
e(f"s_mov_b32 {T0}, {EPOCH}")
e("s_mov_b64 exec, 1")
e(f"buffer_load_dwordx2 {r('pf')}, {r('zero')}, {r('sWS')}, {T0} offen sc1", "ep")
e("s_mov_b64 exec, -1")
e(f"v_lshrrev_b32 {r('ta')}, 5, {r('lane')}")
e(f"v_and_b32 {r('tb')}, 31, {r('lane')}")
e(f"v_lshlrev_b32 {r('tb')}, 4, {r('tb')}")
e(f"v_lshl_add_u32 {r('tb')}, {r('ta')}, 10, {r('tb')}")
e(f"s_lshl_b32 {T2}, {r('T1')}, 4")
e(f"s_add_u32 {T2}, {T2}, {r('q')}")
e(f"s_lshl_b32 {T2}, {T2}, 2")
e(f"s_add_u32 {T2}, {T2}, {r('wave')}")
e(f"s_lshl_b32 {T3}, {T2}, 11")
e(f"buffer_load_dwordx4 {r('sx', 0, 4)}, {r('tb')}, {r('sX')}, {T3} offen", "sx")
e(f"buffer_load_dwordx4 {r('sx', 4, 4)}, {r('tb')}, {r('sX')}, {T3} offen offset:512", "sx")
e(f"s_lshl_b32 {T2}, {T2}, 6")
e(f"s_add_u32 {T2}, {T2}, {STA}")
e(f"v_lshl_add_u32 {r('stw')}, {r('lane')}, 4, {T2}")
run(dmaX(0) + dmaW1(0) + dmaW1(1))
S("sD")
e(f"s_lshl_b32 {T2}, s2, 2")
e(f"s_load_dword {r('sD')}, {ptr(5)}, {T2}")
stamp("p0iss")
g.free("ptr0", "ptr6", "ptr7", "ptr13", "karg", "rot", "ptr5")
S("tag", 2)
if not DBG:
    g.free("ptr12")
e(f"v_lshlrev_b32 {r('tb')}, 4, {r('pc')}")
e(f"v_lshl_add_u32 {r('ta')}, {r('r8')}, 11, {r('tb')}")
KVX = int(opt.get("kvx", 4))
e(f"s_xor_b32 {T4}, {r('tile0')}, {128 * KVX}")
e(f"v_add_u32 {r('k0')}, {T4}, {r('ta')}")
e(f"v_lshl_add_u32 {r('ta')}, {r('r8')}, 10, {r('tb')}")
e(f"v_add_u32 {r('kd', 1, 1)}, {T4}, {r('ta')}")
e(f"v_subrev_u32 {r('kd', 0, 1)}, 8192, {r('kd', 1, 1)}")
e(f"v_lshlrev_b32 {r('l16')}, 4, {r('lane')}")
e(f"s_lshl_b32 {T3}, {r('ns')}, 9")
e(f"s_xor_b32 {T3}, {T3}, {512 * KVX}")
e(f"v_add_u32 {r('sho')}, {T3}, {r('l16')}")
e(f"v_mov_b32 {r('zero')}, 0")
S("wodd"); S("whi"); S("chan"); V("sa"); V("sb"); V("bb", 2, align=1)
e(f"s_and_b32 {r('wodd')}, {r('wave')}, 1")
e(f"s_lshr_b32 {r('whi')}, {r('wave')}, 1")
e(f"s_lshl_b32 {T2}, s2, 1")
e(f"s_add_u32 {r('chan')}, {T2}, {r('whi')}")
e(f"s_lshl_b32 {r('chan')}, {r('chan')}, 12")
e(f"s_add_u32 {plo(4)}, {plo(4)}, {r('chan')}")
e(f"s_addc_u32 {phi(4)}, {phi(4)}, 0")
e(f"s_lshl_b32 {T3}, {r('wodd')}, 11")
e(f"v_add_u32 {r('sa')}, {T3}, {r('l16')}")
e(f"v_subrev_u32 {r('sb')}, 8, {r('sa')}")
S("kim")
e(f"s_lshl_b32 {r('kim')}, {r('wave')}, 12")
e(f"s_add_u32 {r('kim')}, {r('kim')}, {S4}")
srd("sA", 1, 2097152)
srd("sB", 2, 2097152)
g.free("ptr1", "ptr2")
lateA, lateB, lateC = [], [], []
S("L0"); S("L2"); S("L3"); S("L4")
V("kvw"); V("kvr"); V("kvs"); V("kra"); V("sra"); V("bw", 2, align=1)
e(f"v_and_b32 {r('i15')}, 15, {r('lane')}")
e(f"v_lshrrev_b32 {r('h4')}, 4, {r('lane')}")
e(f"v_add_u32 {r('oa')}, {r('own')}, {r('l16')}")
e(f"v_lshlrev_b32 {r('ta')}, 4, {r('pc')}")
e(f"v_lshl_add_u32 {r('ta')}, {r('r8')}, 8, {r('ta')}")
e(f"v_add_u32 {r('kra')}, {r('kim')}, {r('ta')}")
e(f"v_lshl_add_u32 {r('sra')}, {r('pc')}, 6, {r('kim')}")
e(f"v_lshrrev_b32 {r('ta')}, 1, {r('i15')}")
e(f"v_xor_b32 {r('ta')}, {r('ta')}, {r('h4')}")
e(f"v_lshlrev_b32 {r('ta')}, 4, {r('ta')}")
e(f"v_lshl_add_u32 {r('ta')}, {r('i15')}, 7, {r('ta')}")
e(f"v_add_u32 {r('xrd', 0, 1)}, {r('own')}, {r('ta')}")
e(f"v_xor_b32 {r('xrd', 1, 1)}, 64, {r('xrd', 0, 1)}")
e(f"v_lshrrev_b32 {r('ta')}, 2, {r('i15')}")
e(f"v_lshl_add_u32 {r('ta')}, {r('h4')}, 3, {r('ta')}")
e(f"v_mul_u32_u24 {r('ta')}, 192, {r('ta')}")
e(f"v_and_b32 {r('tb')}, 3, {r('lane')}")
e(f"v_lshl_add_u32 {r('ta')}, {r('tb')}, 3, {r('ta')}")
e(f"v_add_u32 {r('ta')}, {WR}, {r('ta')}")
e(f"v_and_b32 {r('tb')}, 1, {r('h4')}")
e(f"v_lshlrev_b32 {r('tb')}, 5, {r('tb')}")
e(f"v_add_u32 {r('tc')}, {r('ta')}, {r('tb')}")
e(f"v_sub_u32 {r('td')}, {r('ta')}, {r('tb')}")
S("bp", 3, align=1)
for jp in range(3):
    e(f"s_add_u32 {T2}, {r('wave')}, {jp}")
    e(f"s_cmp_ge_u32 {T2}, 3")
    e(f"s_cselect_b32 {T3}, 3, 0")
    e(f"s_sub_u32 {r('bp', jp, 1)}, {T2}, {T3}")
    e(f"s_lshl_b32 {T2}, {r('bp', jp, 1)}, 6")
    e(f"v_add_u32 {r('w1r', 2 * jp, 1)}, {T2}, {r('tc')}")
    e(f"v_add_u32 {r('w1r', 2 * jp + 1, 1)}, {T2}, {r('td')}")
e(f"v_mul_u32_u24 {r('ta')}, 1040, {r('pc')}")
e(f"v_lshlrev_b32 {r('tb')}, 2, {r('r8')}")
e(f"v_sub_u32 {r('ta')}, {r('ta')}, {r('tb')}")
e(f"s_lshl_b32 {T2}, {r('wave')}, 5")
e(f"s_sub_u32 {T2}, {KVIMG + 124}, {T2}")
e(f"v_add_u32 {r('kvw')}, {T2}, {r('ta')}")
e(f"s_mul_i32 {T2}, {r('wave')}, 2080")
e(f"s_add_u32 {T2}, {T2}, {KVIMG}")
e(f"v_add_u32 {r('kvr')}, {T2}, {r('l16')}")
e(f"v_mul_u32_u24 {r('ta')}, {KP}, {r('r8')}")
e(f"v_lshl_add_u32 {r('kvs')}, {r('pc')}, 4, {r('ta')}")
e(f"v_mov_b32 {r('ta')}, 0x3f803f80")
for i in range(4):
    e(f"v_accvgpr_write_b32 {r('ones', i, 1)}, {r('ta')}")
e(f"s_mov_b32 {r('hmask')}, 0xffff0000")
S("kvo")
e(f"s_lshl_b32 {T2}, {r('ns')}, 2")
e(f"s_xor_b32 {T2}, {T2}, {4 * KVX}")
e(f"s_add_u32 {T2}, {T2}, {r('wave')}")
e(f"s_mul_i32 {r('f1a')}, {T2}, {G1S}")
e(f"s_lshl_b32 {T3}, {r('tt2')}, {L1S}")
e(f"s_add_u32 {r('f1a')}, {r('f1a')}, {T3}")
e(f"s_add_u32 {r('f1a')}, {r('f1a')}, {F1B}")
e(f"s_mul_i32 {T2}, {T2}, {16 * KP}")
e(f"s_sub_u32 {T3}, 31, {r('tt2')}")
e(f"s_lshl_b32 {T3}, {T3}, 7")
e(f"s_add_u32 {r('kvo')}, {T2}, {T3}")
LATE = lateB
e(f"s_lshl_b32 {T2}, {r('T1')}, 1")
e(f"s_add_u32 {T2}, {T2}, {r('whi')}")
e(f"s_mul_i32 {r('f2a')}, {T2}, {G2S}")
e(f"s_lshl_b32 {T2}, {r('q')}, 1")
e(f"s_add_u32 {T2}, {T2}, {r('wodd')}")
e(f"s_lshl_b32 {T2}, {T2}, {L2S}")
e(f"s_add_u32 {r('f2a')}, {r('f2a')}, {T2}")
e(f"s_add_u32 {r('f2a')}, {r('f2a')}, {F2B}")
e(f"s_lshr_b32 {T2}, {r('chan')}, 18")
e(f"s_lshl_b32 {T2}, {T2}, 1")
e(f"s_add_u32 {T2}, {T2}, {r('wodd')}")
e(f"s_mul_i32 {r('f3a')}, {T2}, {G3S}")
e(f"s_lshr_b32 {T2}, {r('chan')}, 12")
e(f"s_and_b32 {T2}, {T2}, 63")
e(f"s_lshl_b32 {T2}, {T2}, {L3S}")
e(f"s_add_u32 {r('f3a')}, {r('f3a')}, {T2}")
e(f"s_add_u32 {r('f3a')}, {r('f3a')}, {F3B}")
e(f"v_lshlrev_b32 {r('tc')}, 3, {r('lane')}")
e(f"v_add_u32 {r('zt')}, {r('own')}, {r('tc')}")
e(f"s_mul_i32 {T2}, {T1_}, {G1S}")
e(f"s_add_u32 {T2}, {T2}, {F1B}")
e(f"v_lshrrev_b32 {r('pf1o')}, 1, {r('lane')}")
e(f"v_lshl_add_u32 {r('pf1o')}, {r('pf1o')}, {L1S}, {T2}")
e(f"s_lshr_b32 {T2}, {r('tt2')}, 4")
e(f"s_lshl_b32 {T3}, {r('ns')}, 1")
e(f"s_add_u32 {T2}, {T2}, {T3}")
e(f"s_mul_i32 {T2}, {T2}, {G3S}")
e(f"s_add_u32 {T2}, {T2}, {F3B}")
e(f"v_lshl_add_u32 {r('pf3o')}, {r('lane')}, {L3S}, {T2}")
e(f"v_min_u32 {r('pf2o')}, 9, {r('lane')}")
e(f"s_lshl_b32 {T2}, {r('wave')}, 3")
e(f"v_add_u32 {r('pf2o')}, {T2}, {r('pf2o')}")
e(f"v_min_u32 {r('pf2o')}, 31, {r('pf2o')}")
e(f"s_mul_i32 {T2}, {r('tt2')}, {G2S}")
e(f"s_add_u32 {T2}, {T2}, {F2B}")
e(f"v_lshl_add_u32 {r('pf2o')}, {r('pf2o')}, {L2S}, {T2}")
LATE = None
e(f"v_min_u32 {r('ta')}, 47, {r('lane')}")
e(f"v_lshlrev_b32 {r('bw', 0, 1)}, 3, {r('ta')}")
e(f"v_add_u32 {r('bw', 0, 1)}, {B1T}, {r('bw', 0, 1)}")
e(f"s_lshl_b32 {T2}, {r('b0')}, 6")
e(f"v_lshl_add_u32 {r('bb', 0, 1)}, {r('ta')}, 2, {T2}")
e(f"v_min_u32 {r('bb', 0, 1)}, 2748, {r('bb', 0, 1)}")
e(f"v_and_b32 {r('ta')}, 31, {r('lane')}")
e(f"v_lshlrev_b32 {r('bw', 1, 1)}, 3, {r('ta')}")
e(f"v_add_u32 {r('bw', 1, 1)}, {B2T}, {r('bw', 1, 1)}")
e(f"v_lshl_add_u32 {r('bb', 1, 1)}, {r('ta')}, 2, {r('ns128')}")
LATE = lateA
e(f"v_and_b32 {r('ta')}, 6, {r('r8')}")
e(f"v_xor_b32 {r('ta')}, {r('ta')}, {r('pc')}")
e(f"v_lshlrev_b32 {r('ta')}, 4, {r('ta')}")
e(f"v_lshl_add_u32 {r('w2s', 0, 1)}, {r('r8')}, 10, {r('ta')}")
e(f"v_add_u32 {r('w2s', 0, 1)}, {r('ns128')}, {r('w2s', 0, 1)}")
for n in range(1, 4):
    e(f"v_add_u32 {r('w2s', n, 1)}, {7168 * n}, {r('w2s', 0, 1)}")
e(f"v_lshrrev_b32 {r('ta')}, 2, {r('i15')}")
e(f"v_lshl_add_u32 {r('ta')}, {r('h4')}, 2, {r('ta')}")
e(f"v_lshrrev_b32 {r('tb')}, 1, {r('ta')}")
e(f"v_and_b32 {r('tb')}, 3, {r('tb')}")
e(f"v_lshlrev_b32 {r('tb')}, 5, {r('tb')}")
e(f"v_lshl_add_u32 {r('tb')}, {r('ta')}, 7, {r('tb')}")
e(f"v_and_b32 {r('ta')}, 3, {r('lane')}")
e(f"v_lshl_add_u32 {r('tb')}, {r('ta')}, 3, {r('tb')}")
e(f"v_add_u32 {r('w2r', 0, 1)}, {r('own')}, {r('tb')}")
S("w4k")
e(f"s_lshl_b32 {r('w4k')}, {r('wave')}, 12")
e(f"v_add_u32 {r('w2r', 4, 1)}, {r('w4k')}, {r('tb')}")
for nb in range(1, 4):
    e(f"v_xor_b32 {r('w2r', nb, 1)}, {32 * nb}, {r('w2r', 0, 1)}")
    e(f"v_xor_b32 {r('w2r', 4 + nb, 1)}, {32 * nb}, {r('w2r', 4, 1)}")
for p in range(11):
    S(f"kb{p}")
e(f"s_lshr_b32 {T0}, {T1_}, 3")
e(f"s_mul_i32 {T0}, {T0}, 3")
e(f"s_mul_i32 {T2}, {r('ns')}, 11")
e(f"s_lshr_b32 {T2}, {T2}, 3")
e(f"s_add_u32 {T0}, {T0}, {T2}")
e(f"s_cmp_ge_u32 {T0}, 11")
e(f"s_cselect_b32 {T2}, 11, 0")
e(f"s_sub_u32 {T0}, {T0}, {T2}")
e(f"s_mul_i32 {T3}, {r('wave')}, 11")
e(f"s_add_u32 {T0}, {T0}, {T3}")
e(f"s_add_u32 {T3}, {T3}, 11")
for p in range(11):
    e(f"s_lshl_b32 {r(f'kb{p}')}, {T0}, 15")
    if p < 10:
        e(f"s_add_u32 {T0}, {T0}, 1")
        e(f"s_cmp_ge_u32 {T0}, {T3}")
        e(f"s_cselect_b32 {T2}, 11, 0")
        e(f"s_sub_u32 {T0}, {T0}, {T2}")
LATE = None
LATE = lateB
e(f"v_and_b32 {r('ta')}, 3, {r('lane')}")
e(f"v_mul_u32_u24 {r('fa')}, {FP}, {r('ta')}")
e(f"v_lshrrev_b32 {r('tb')}, 2, {r('i15')}")
e(f"v_add_u32 {r('tb')}, {r('tb')}, {r('h4')}")
e(f"v_lshl_add_u32 {r('fa')}, {r('tb')}, 4, {r('fa')}")
e(f"s_lshl_b32 {T4}, {r('wodd')}, 8")
e(f"s_mul_i32 {T2}, {r('whi')}, {4 * FP}")
e(f"s_add_u32 {T3}, {T4}, {T2}")
e(f"v_add_u32 {r('fa')}, {T3}, {r('fa')}")
e(f"v_and_b32 {r('tc')}, 1, {r('lane')}")
e(f"v_mul_u32_u24 {r('ga')}, {GP}, {r('tc')}")
e(f"v_lshrrev_b32 {r('td')}, 1, {r('i15')}")
e(f"v_lshlrev_b32 {r('td')}, 2, {r('td')}")
e(f"v_sub_u32 {r('td')}, {r('h4')}, {r('td')}")
e(f"v_add_u32 {r('td')}, 28, {r('td')}")
e(f"v_lshl_add_u32 {r('ga')}, {r('td')}, 4, {r('ga')}")
e(f"s_mul_i32 {T3}, {r('whi')}, {2 * GP}")
e(f"s_add_u32 {T3}, {T3}, {T4}")
e(f"s_add_u32 {T3}, {T3}, {UB0}")
e(f"v_add_u32 {r('ga')}, {T3}, {r('ga')}")
e(f"s_lshl_b32 {T3}, {r('whi')}, 4")
e(f"s_lshr_b32 {r('sD')}, {r('sD')}, {T3}")
e(f"s_and_b32 {r('sD')}, {r('sD')}, 0xffff")
e(f"s_cmp_eq_u32 {r('wodd')}, 0")
e(f"s_cselect_b32 {r('sD')}, {r('sD')}, 0")
e(f"v_xor_b32 {r('tc')}, 1, {r('tc')}")
e(f"v_lshlrev_b32 {r('tc')}, 4, {r('tc')}")
e(f"v_lshlrev_b32_e64 {r('tc')}, {r('tc')}, {r('sD')}")
e(f"v_cmp_eq_u32 vcc, 3, {r('tb')}")
e(f"v_cndmask_b32 {r('tc')}, 0, {r('tc')}, vcc")
e(f"v_cmp_lt_u32 vcc, 1, {r('ta')}")
e(f"v_cndmask_b32 {r('td')}, 0, {r('tc')}, vcc")
e(f"v_sub_u32 {r('tc')}, {r('tc')}, {r('td')}")
e(f"v_accvgpr_write_b32 {r('fd', 0, 1)}, {r('td')}")
e(f"v_accvgpr_write_b32 {r('fd', 1, 1)}, {r('tc')}")
e(f"v_accvgpr_write_b32 {r('fd', 2, 1)}, 0")
e(f"v_accvgpr_write_b32 {r('fd', 3, 1)}, 0")
e(f"s_add_u32 {T3}, {T2}, 48")
e(f"v_add_u32 {r('kw')}, {T3}, {r('sa')}")
e(f"s_mul_i32 {r('um0')}, {r('wave')}, {GP}")
e(f"s_add_u32 {r('um0')}, {r('um0')}, {UB0}")
e(f"s_lshl_b32 {T3}, {r('wodd')}, 3")
e(f"s_sub_u32 {r('ush')}, 8, {T3}")
e(f"s_add_u32 {T4}, {r('um0')}, 4096")
e(f"v_add_u32 {r('za')}, {T4}, {r('l16')}")
e(f"v_subrev_u32 {r('ta')}, 28, {r('lane')}")
e(f"v_min_u32 {r('ta')}, 5, {r('ta')}")
e(f"v_cmp_lt_u32 vcc, 2, {r('ta')}")
e(f"v_lshlrev_b32 {r('ta')}, 4, {r('ta')}")
e(f"v_add_u32 {r('tb')}, {FP - 48}, {r('ta')}")
e(f"v_cndmask_b32 {r('ta')}, {r('ta')}, {r('tb')}, vcc")
e(f"s_mul_i32 {T3}, {r('wave')}, {2 * FP}")
e(f"v_add_u32 {r('ta')}, {T3}, {r('ta')}")
e(f"v_cmp_lt_u32 vcc, 27, {r('lane')}")
e(f"v_cndmask_b32 {r('za')}, {r('za')}, {r('ta')}, vcc")
e(f"s_xor_b32 {T2}, {r('wave')}, 1")
e(f"s_mul_i32 {T2}, {T2}, 12288")
e(f"s_add_u32 {T2}, {T2}, {XST}")
e(f"v_add_u32 {r('pa')}, {T2}, {r('l16')}")
e(f"v_lshrrev_b32 {r('ta')}, 1, {r('i15')}")
e(f"v_lshlrev_b32 {r('ta')}, 6, {r('ta')}")
e(f"v_and_b32 {r('tb')}, 1, {r('lane')}")
e(f"v_lshl_add_u32 {r('ta')}, {r('tb')}, 3, {r('ta')}")
e(f"v_lshl_add_u32 {r('ta')}, {r('h4')}, 4, {r('ta')}")
e(f"v_add_u32 {r('yw')}, {r('own')}, {r('ta')}")
e(f"s_lshl_b32 {T3}, {r('wodd')}, 11")
e(f"s_lshr_b32 {r('chan')}, {r('chan')}, 12")
e(f"s_mul_i32 {r('chan')}, {r('chan')}, {KP}")
e(f"s_add_u32 {T2}, {r('chan')}, {T3}")
e(f"s_add_u32 {r('yo')}, {T2}, {YT}")
LATE = None
LATE = lateC
e(f"v_lshrrev_b32 {r('zs')}, 1, {r('lane')}")
e(f"v_mul_u32_u24 {r('zs')}, {KP}, {r('zs')}")
e(f"v_and_b32 {r('tb')}, 1, {r('lane')}")
e(f"v_lshl_add_u32 {r('zs')}, {r('tb')}, 4, {r('zs')}")
e(f"s_mul_i32 {T2}, {r('ns')}, {64 * KP}")
e(f"s_lshl_b32 {T3}, {r('tok16')}, 5")
e(f"s_add_u32 {T2}, {T2}, {T3}")
e(f"s_add_u32 {r('zo')}, {T2}, {YT}")
for s in range(4):
    e(f"s_add_u32 {T2}, {r('wave')}, {s + 1}")
    e(f"s_and_b32 {T2}, {T2}, 3")
    e(f"s_mul_i32 {T3}, {T2}, 12288")
    if s < 3:
        if PX + 4096 * s:
            e(f"s_add_u32 {T3}, {T3}, {PX + 4096 * s}")
        e(f"v_lshl_add_u32 {r('pw', s, 1)}, {r('lane')}, 3, {T3}")
    else:
        e(f"s_add_u32 {T3}, {T3}, {PX}")
        e(f"v_lshl_add_u32 {r('psr')}, {r('lane')}, 3, {T3}")
    e(f"s_lshl_b32 {T3}, {r('tt2')}, 2")
    e(f"s_add_u32 {T2}, {T2}, {T3}")
    e(f"s_mul_i32 {T2}, {T2}, 44032")
    e(f"s_add_u32 {T2}, {T2}, {HB + HALT}")
    e(f"v_add_u32 {r('hv', s, 1)}, {T2}, {r('l16')}")
e(f"v_lshrrev_b32 {r('ta')}, 1, {r('i15')}")
e(f"v_lshrrev_b32 {r('tb')}, 1, {r('h4')}")
e(f"v_xor_b32 {r('ta')}, {r('ta')}, {r('tb')}")
e(f"v_lshlrev_b32 {r('ta')}, 4, {r('ta')}")
e(f"v_lshl_add_u32 {r('ta')}, {r('i15')}, 7, {r('ta')}")
e(f"v_and_b32 {r('tc')}, 1, {r('h4')}")
e(f"v_lshl_add_u32 {r('ta')}, {r('tc')}, 3, {r('ta')}")
e(f"v_add_u32 {r('ea', 0, 1)}, {r('own')}, {r('ta')}")
for nb in range(1, 4):
    e(f"v_xor_b32 {r('ea', nb, 1)}, {32 * nb}, {r('ea', 0, 1)}")
e(f"s_lshl_b32 {T2}, {r('tok16')}, 9")
e(f"s_add_u32 {T2}, {T2}, {STB}")
e(f"v_lshl_add_u32 {r('svr')}, {r('i15')}, 5, {T2}")
LATE = None
LATE = lateA
e(f"v_lshrrev_b32 {r('tb')}, 1, {r('h4')}")
e(f"s_lshr_b32 {T2}, {r('xbase')}, 5")
e(f"s_add_u32 {T2}, {T2}, {STA}")
e(f"v_lshl_add_u32 {r('sgo')}, {r('i15')}, 5, {T2}")
e(f"v_lshl_add_u32 {r('sgo')}, {r('tb')}, 9, {r('sgo')}")
LATE = None
S("m1", 2)
e(f"s_mov_b32 {r('m1', 0, 1)}, 0xaaaaaaaa"); e(f"s_mov_b32 {r('m1', 1, 1)}, 0xaaaaaaaa")
LATE = lateA
e(f"v_lshlrev_b32 {r('ta')}, 4, {r('h4')}")
e(f"v_add_u32 {r('csr0')}, {CSX}, {r('ta')}")
for jp in range(3):
    g.names[f"ho{jp}"] = ("s", g.names["bp"][1] + jp, 1)
e(f"s_lshl_b32 {T2}, {r('T1')}, 2")
e(f"s_add_u32 {T2}, {T2}, {r('wave')}")
e(f"s_mul_i32 {T2}, {T2}, 86")
e(f"s_add_u32 {T2}, {T2}, {r('b0')}")
for jp in range(3):
    e(f"s_lshl_b32 {T3}, {r('bp', jp, 1)}, 7")
    e(f"v_add_u32 {r('ctr', jp, 1)}, {T3}, {r('csr0')}")
    e(f"s_add_u32 {T3}, {T2}, {r('bp', jp, 1)}")
    e(f"s_lshl_b32 {T3}, {T3}, 10")
    e(f"s_add_u32 {T3}, {T3}, {HB}")
    e(f"s_cmp_lt_u32 {r('bp', jp, 1)}, {r('nown')}")
    e(f"s_cselect_b32 {r(f'ho{jp}')}, {T3}, 0x7f000000")
for i in range(4):
    e(f"v_accvgpr_write_b32 {r('zz', i, 1)}, 0")
LATE = None
if TOUCH:
    V("tB", 2)
    wlo, whi_ = r("sWS", 0, 1), r("sWS", 1, 1)
    ent = [(r("sA", 0, 1), r("sA", 1, 1), r("tile0")), (r("sB", 0, 1), r("sB", 1, 1), r("tile0")), (plo(3), phi(3), None),
           (plo(4), phi(4), None), (plo(8), phi(8), None), (plo(10), phi(10), None),
           (plo(9), phi(9), None), (plo(9), phi(9), 1 << 20), (plo(11), phi(11), r("tile0")),
           (wlo, whi_, EPOCH + 256), (wlo, whi_, FL + 4096), (wlo, whi_, r("kvo")),
           (wlo, whi_, r("chan")), (wlo, whi_, HB + 64), (wlo, whi_, r("yo")), (wlo, whi_, r("zo")),
           (wlo, whi_, HB + 0x100000), (wlo, whi_, HB + 0x200000), (wlo, whi_, HB + 0x300000), (wlo, whi_, HB + 0x400000),
           (wlo, whi_, HB + 0x500000), (wlo, whi_, HB), (wlo, whi_, YT + 0x100000), (wlo, whi_, 0x100000)]
    e(f"v_mov_b32 {r('tB', 0, 1)}, {wlo}")
    e(f"v_mov_b32 {r('tB', 1, 1)}, {whi_}")
    for k, (lo, hi, off) in enumerate(ent):
        if off is None:
            e(f"v_writelane_b32 {r('tB', 0, 1)}, {lo}, {k}")
            e(f"v_writelane_b32 {r('tB', 1, 1)}, {hi}, {k}")
        else:
            e(f"s_add_u32 {T2}, {lo}, {off}")
            e(f"s_addc_u32 {T3}, {hi}, 0")
            e(f"v_writelane_b32 {r('tB', 0, 1)}, {T2}, {k}")
            e(f"v_writelane_b32 {r('tB', 1, 1)}, {T3}, {k}")
    e(f"s_mul_i32 {T2}, {r('wave')}, 6")
    e(f"s_lshl_b32 exec_lo, 63, {T2}")
    e("s_mov_b32 exec_hi, 0")
    if TOUCH == 2:
        e("s_mov_b32 exec_lo, 0xffffff")
    e(f"global_load_dword {r('pre')}, {r('tB')}, off sc1", "touch")
    e("s_mov_b64 exec, -1")
    g.free("tB")
stamp("setup")
g.free("tid")


def late_items(lst):
    ren = {"s3": r("L0"), "s5": r("L2"), "s6": r("L3"), "s7": r("L4")}
    txt = [re.sub(r"\bs[3567]\b", lambda m: ren[m.group(0)], x) for x in lst]
    items, grp = [], []
    for x in txt:
        op = x.split()[0]
        if grp or op.startswith(("s_cmp", "v_cmp")):
            grp.append(x)
            if op.startswith(("s_cselect", "v_cndmask")):
                items.append(grp); grp = []
        else:
            items.append([x])
    assert not grp
    cost = lambda gx: sum(0.3 if y.startswith("s_") else 1 for y in gx)
    return [It(lambda gx=gx: [e(y) for y in gx], cost(gx)) for gx in items]


def unpack(dst, doff, src, soff, ndw):
    it = []
    for d in range(ndw):
        it.append(E(f"v_lshlrev_b32 {r(dst, doff + 2 * d, 1)}, 16, {r(src, soff + d, 1)}"))
        it.append(E(f"v_and_b32 {r(dst, doff + 2 * d + 1, 1)}, {r('hmask')}, {r(src, soff + d, 1)}"))
    return it


run(dmaX(1))
LATEAB = int(opt.get("lateab", 1))
if LATEAB < 2:
    run(late_items(lateA)); lateA = []
if LATEAB < 1:
    g.wait(lg=0)
    run(late_items(lateB)); lateB = []
AC("xf", 64, at=64)
AC("wa", 48, at=128)


def xf(K, tb):
    return r("xf", ((K & 7) * 2 + tb) * 4, 4)


def rdX(ei):
    return [W(vm=f"X{ei}")] + [E(f"ds_read_b128 {xf(ei * 2 + k, tb)}, {r('xrd', k, 1)} offset:{(ei % 3) * 4096 + tb * 2048}", f"rx{ei}")
                               for k in range(2) for tb in range(2)]


def wbase(K):
    return ((K >> 1) % 4) * 12288 + (K & 1) * 6144


def rdW(K):
    return [E(f"ds_read_b64_tr_b16 {r('wa', (K & 1) * 24 + fb * 4 + 2 * hf, 2)}, {r('w1r', fb, 1)} offset:{wbase(K) + hf * 768 + (fb & 1) * 32}", f"rw{K}_{fb}")
            for fb in range(6) for hf in range(2)]


g.wait(vm="sx")
e(f"s_mov_b32 {T2}, 0x3f803f80")
for d in range(8):
    e(f"v_dot2_f32_bf16 {r('sacc', d & 1, 1)}, {r('sx', d, 1)}, {T2}, {'0' if d < 2 else r('sacc', d & 1, 1)}")
    e(f"v_dot2_f32_bf16 {r('sacc', 2 + (d & 1), 1)}, {r('sx', d, 1)}, {r('sx', d, 1)}, {'0' if d < 2 else r('sacc', 2 + (d & 1), 1)}")
e(f"v_readfirstlane_b32 {r('tag', 0, 1)}, {r('pf', 0, 1)}")
e(f"v_readfirstlane_b32 {r('tag', 1, 1)}, {r('pf', 1, 1)}")
g.free("sx")
run(rdX(0))
e(f"s_mul_i32 {r('tag', 0, 1)}, {r('tag', 0, 1)}, 0x9E3779B1")
e(f"s_mul_i32 {r('tag', 1, 1)}, {r('tag', 1, 1)}, 0x85EBCA6D")
e(f"s_add_u32 {r('tag', 0, 1)}, {r('tag', 0, 1)}, 0x7F4A7C15")
e(f"s_add_u32 {r('tag', 1, 1)}, {r('tag', 1, 1)}, 0x165667B1")
e(f"v_add_f32 {r('sacc', 0, 1)}, {r('sacc', 0, 1)}, {r('sacc', 1, 1)}")
e(f"v_add_f32 {r('sacc', 2, 1)}, {r('sacc', 2, 1)}, {r('sacc', 3, 1)}")
for i in range(2):
    e(f"v_mov_b32 {r('vtag', i, 1)}, {r('tag', i, 1)}")
    e(f"v_mov_b32 {r('vtag', 2 + i, 1)}, {r('tag', i, 1)}")
    e(f"v_mov_b32 {r('gq', 2 + i, 1)}, {r('tag', i, 1)}")
g.wait(vm="W1" if int(opt.get("nob1", 0)) else "W0")
e("s_barrier")
run(rdW(0))
stamp("x0")

V("acc", 48); AC("cs", 8, at=192)
V("big", 100)
B0 = g.names["big"][1]


def alias(name, off, n):
    g.names[name] = ("v", B0 + off, n)


alias("wf", 0, 32); alias("kf", 32, 40); alias("vr", 64, 8); alias("kr", 72, 20); alias("shr", 48, 16)
alias("vf", 72, 16)
small = [E(f"global_load_dword {r('bb', 0, 1)}, {r('bb', 0, 1)}, {ptr(8)}", "bb"),
         E(f"global_load_dword {r('bb', 1, 1)}, {r('bb', 1, 1)}, {ptr(10)}", "bb"),
         ]
alias("vr", 92, 8)
kvload = [It(lambda: (e(f"s_add_u32 m0, {r('kim')}, 1024"), e(f"s_mov_b32 {T0}, 7168"),
                      e(f"buffer_load_dwordx4 {r('kd', 1, 1)}, {r('sA')}, 0 offen {KPOL} lds", "k")), 2),
          E(f"buffer_load_dwordx4 {r('kd', 1, 1)}, {r('sA')}, {T0} offen offset:1024 {KPOL} lds", "k"),
          E(f"buffer_load_dwordx4 {r('vr', 0, 4)}, {r('k0')}, {r('sB')}, 0 offen {KVPOL}", "k"),
          E(f"buffer_load_dwordx4 {r('vr', 4, 4)}, {r('k0')}, {r('sB')}, 0 offen offset:1024 {KVPOL}", "k"),
          It(lambda: (e(f"s_mov_b32 m0, {r('kim')}"), e("s_mov_b32 exec_lo, 0"), e("s_mov_b32 exec_hi, 0xffffff00"),
                      e(f"buffer_load_dwordx4 {r('kd', 0, 1)}, {r('sA')}, 0 offen lds", "k"), e("s_mov_b64 exec, -1")), 2),
          It(lambda: (e(f"s_add_u32 m0, {r('kim')}, 3072"), e(f"s_mov_b64 {r('sA', 0, 2)}, {ptr(3)}"), e(f"s_mov_b32 {r('sA', 2, 1)}, 4096"),
                      e("s_mov_b32 exec_hi, 0"), e(f"buffer_load_dwordx4 {r('sho')}, {r('sA')}, 0 offen lds", "k"), e("s_mov_b64 exec, -1"),
                      e(f"s_mov_b64 {r('sA', 0, 2)}, {ptr(4)}"), e(f"s_mov_b64 {r('sB', 0, 2)}, {ptr(9)}"), e(f"s_mov_b32 {r('sB', 2, 1)}, 1409024")), 3)]
W2T = int(opt.get("w2t", 2))
w2touch = []
if W2T:
    w2touch = []
    (kvload if W2T == 1 else w2touch).append(It(lambda: (e(f"s_lshl_b32 {T0}, s2, 2"), e(f"s_add_u32 {T0}, {T0}, {r('wave')}"), e(f"s_mul_i32 {T0}, {T0}, {11 * 128}"),
                              e(f"v_lshlrev_b32 {r('pre')}, 3, {r('l16')}"), e("s_mov_b64 exec, 0x7ff"),
                              e(f"buffer_load_dword {r('pre')}, {r('pre')}, {r('sB')}, {T0} offen", "w2t"), e("s_mov_b64 exec, -1")), 3))
kvrd = [W(vm="k")]
kvrd += [E(f"ds_read_b128 {r('shr', 4 * i, 4)}, {r('sra')} offset:{3072 + 16 * i}", "rs") for i in range(4)]
kvrd += [E(f"ds_read_b128 {r('kr', 4 * k, 4)}, {r('kra')} offset:{640 + 128 * k}", "rk") for k in range(5)]
kvu = [W(lg="rs")]
for c in range(8):
    for j in range(4):
        src = r("shr", 2 * c + (j >> 1), 1)
        if j & 1:
            kvu.append(E(f"v_and_b32 {r('wf', j * 8 + c, 1)}, {r('hmask')}, {src}"))
        else:
            kvu.append(E(f"v_lshlrev_b32 {r('wf', j * 8 + c, 1)}, 16, {src}"))
kvu.append(W(lg="rk"))
kvu += unpack("kf", 0, "kr", 0, 20)
KS = lambda t, cp: r("kr", t * 8 + 2 * cp, 2)
kvc = []
for t in range(2):
    for cp in range(4):
        kvc.append(E(f"v_pk_mul_f32 {KS(t, cp)}, {r('kf', t * 8 + 2 * cp, 2)}, {r('wf', 24 + 2 * cp, 2)}"))
    for j in (2, 1, 0):
        for cp in range(4):
            kvc.append(E(f"v_pk_fma_f32 {KS(t, cp)}, {r('kf', (t + 3 - j) * 8 + 2 * cp, 2)}, {r('wf', j * 8 + 2 * cp, 2)}, {KS(t, cp)}"))
kvc += unpack("wf", 0, "vr", 0, 8)
for t in range(2):
    for cp in range(4):
        kvc.append(E(f"v_pk_mul_f32 {KS(t, cp)}, {KS(t, cp)}, {r('wf', t * 8 + 2 * cp, 2)}"))
alias("kvp", 92, 8)
for c in range(8):
    kvc.append(E(f"v_cvt_pk_bf16_f32 {r('kvp', c, 1)}, {r('kr', 8 + c, 1)}, {r('kr', c, 1)}"))
    kvc.append(E(f"ds_write_b32 {r('kvw')}, {r('kvp', c, 1)} offset:{128 * c}", "kvw"))
kvst = [E(f"ds_read_b128 {r('kvp', 0, 4)}, {r('kvr')}", "kvr0"), E(f"ds_read_b128 {r('kvp', 4, 4)}, {r('kvr')} offset:1040", "kvr1")]
kvst2 = [It(lambda: (g.wait(lg="kvr0"), e(f"buffer_store_dwordx4 {r('kvp', 0, 4)}, {r('kvs')}, {r('sWS')}, {r('kvo')} offen sc1", "kvst"),
                     e(f"s_add_u32 {r('kvo')}, {r('kvo')}, {8 * KP}")), 2),
         It(lambda: (g.wait(lg="kvr1"), e(f"buffer_store_dwordx4 {r('kvp', 4, 4)}, {r('kvs')}, {r('sWS')}, {r('kvo')} offen sc1", "kvst")), 2)]
alias("skr", 0, 12); alias("ke", 12, 24); alias("bt", 36, 4); alias("b1f", 44, 24); alias("csf", 68, 24)
AC("ska", 12, at=228)
skload = [It(lambda: (e("s_mov_b64 exec, 1"), e(f"buffer_load_dwordx2 {r('ska', 0, 2)}, {r('sb')}, {r('sA')}, 0 offen", "sk"), e("s_mov_b64 exec, -1")), 2),
          E(f"buffer_load_dwordx4 {r('ska', 2, 4)}, {r('sa')}, {r('sA')}, 0 offen {KVPOL}", "sk"),
          E(f"buffer_load_dwordx4 {r('ska', 8, 4)}, {r('sa')}, {r('sA')}, 0 offen offset:1024 {KVPOL}", "sk")]
kcopy = [W(vm="sk")] + [E(f"v_accvgpr_read_b32 {r('skr', k, 1)}, {r('ska', k, 1)}") for k in (4, 5, 0, 1, 10, 11, 2, 3, 8, 9)]
for k in range(2):
    kcopy.append(E(f"v_mov_b32_dpp {r('skr', 6 + k, 1)}, {r('skr', 4 + k, 1)} wave_ror:1 row_mask:0xf bank_mask:0xf"))
for k in range(2):
    kcopy.append(E(f"v_mov_b32_dpp {r('skr', k, 1)}, {r('skr', 4 + k, 1)} wave_shr:1 row_mask:0xf bank_mask:0xf"))
for k in range(2):
    kcopy.append(E(f"v_mov_b32_dpp {r('skr', 6 + k, 1)}, {r('skr', 10 + k, 1)} wave_shr:1 row_mask:0xf bank_mask:0xf"))
for n in range(2):
    R = lambda k, c=1, n=n: r("skr", 6 * n + k, c)
    KE = lambda k, c=1, n=n: r("ke", 12 * n + k, c)
    kcopy.append(E(f"ds_write_b128 {r('kw')}, {R(2, 4)} offset:{3 * FP + 1024 * n}", "kc", 2))
    for k in range(4):
        kcopy.append(E(f"v_alignbit_b32 {KE(k)}, {R(k + 1)}, {R(k)}, 16"))
    kcopy.append(E(f"ds_write_b128 {r('kw')}, {KE(0, 4)} offset:{1024 * n}", "kc", 2))
    for k in range(4):
        kcopy.append(E(f"v_alignbit_b32 {KE(4 + k)}, {R(k + 2)}, {R(k + 1)}, 16"))
    kcopy.append(E(f"ds_write_b128 {r('kw')}, {KE(4, 4)} offset:{2 * FP + 1024 * n}", "kc", 2))
    for k in range(4):
        kcopy.append(E(f"v_mov_b32 {KE(8 + k)}, {R(1 + k)}"))
    kcopy.append(E(f"ds_write_b128 {r('kw')}, {KE(8, 4)} offset:{FP + 1024 * n}", "kc", 2))


def mfma(d, a, b, first):
    e(f"v_mfma_f32_16x16x32_bf16 {d}, {a}, {b}, {'0' if first else d}")


def M(d, a, b, first, wait=None):
    def fn():
        if wait:
            w_ = dict(wait)
            l2 = w_.pop("lg2", None)
            if l2 and max(i for i, t in enumerate(g.lg) if t == l2) > max(i for i, t in enumerate(g.lg) if t == w_["lg"]):
                g._cnt(g.lg, w_["lg"])
                w_["lg"] = l2
            elif l2:
                g._cnt(g.lg, l2)
            g.wait(**w_)
        mfma(d, a, b, first)
    return It(fn, 0.3 if wait else 0)


def mainM(K):
    return [M(r("acc", (fb * 2 + tb) * 4, 4), r("wa", (K & 1) * 24 + fb * 4, 4), xf(K, tb), K == 0,
              dict(lg=f"rw{K}_{fb}", lg2=(None if (K & 1 or fb) else f"rx{K >> 1}")) if tb == 0 else None) for fb in range(6) for tb in range(2)]


def statM(K):
    items = []
    for tb in range(2):
        items.append(M(r("rs", tb * 4, 4), r("ones"), xf(K, tb), K == 0, dict(lg=f"rx{K >> 1}") if (tb == 0 and not K & 1) else None))
        items.append(M(r("gr", tb * 4, 4), xf(K, tb), xf(K, tb), K == 0))
    return items


def csM(K):
    return [M(r("cs", c * 4, 4), r("wa", (K & 1) * 24 + c * 4, 4), r("ones"), K == 0, dict(lg=f"rw{K}_{c}")) for c in range(2)]


FULL = int(opt.get("full", 1))


def flagtxt(addr, ls):
    if FULL and ls >= 4:
        return [f"s_mov_b64 exec, {(1 << (1 << (ls - 4))) - 1}",
                f"buffer_store_dwordx4 {r('vtag')}, {r('l16')}, {r('sWS')}, {addr} offen sc1", "s_mov_b64 exec, -1"]
    return ["s_mov_b64 exec, 1", f"buffer_store_dwordx2 {r('vtag', 0, 2)}, {r('zero')}, {r('sWS')}, {addr} offen sc1", "s_mov_b64 exec, -1"]


def setflag(addr, tagname):
    t_ = flagtxt(addr, {"f1": L1S, "f2": L2S, "f3": L3S}[tagname])
    e(t_[0]); e(t_[1], tagname); e(t_[2])


def pollissue(voff, tagname):
    e(f"buffer_load_dwordx2 {r('pf')}, {voff}, {r('sWS')}, 0 offen sc1", tagname)


def pollcheck(voff, tagname, before_spin=None):
    g.wait(vm=tagname)
    e(f"v_cmp_ne_u64 vcc, {r('tag')}, {r('pf')}")
    e("s_cmp_eq_u64 vcc, 0")
    e(f"s_cbranch_scc0 L_{tagname}")
    g.label(f"L_{tagname}_ok")

    def tail():
        g.label(f"L_{tagname}")
        if before_spin:
            for x in before_spin:
                e(x)
        if SPINMAX:
            e(f"s_mov_b32 {T4}, 0")
        g.label(f"L_{tagname}_l")
        e(f"s_sleep {int(opt.get('sleep', 1))}")
        e(f"buffer_load_dwordx2 {pfr}, {voff}, {sws}, 0 offen sc1")
        e("s_waitcnt vmcnt(0)")
        e(f"v_cmp_ne_u64 vcc, {tagr}, {pfr}")
        if SPINMAX:
            e(f"s_add_u32 {T4}, {T4}, 1")
            e(f"s_cmp_gt_u32 {T4}, {SPINMAX}")
            e(f"s_cbranch_scc1 L_{tagname}_ok")
        e("s_cmp_eq_u64 vcc, 0")
        e(f"s_cbranch_scc0 L_{tagname}_l")
        e(f"s_branch L_{tagname}_ok")
    pfr, sws, tagr = r("pf"), r("sWS"), r("tag")
    tails.append(tail)


tails = []
btab = [W(vm="bb")] + unpack("bt", 0, "bb", 0, 2) + [E(f"ds_write_b64 {r('bw', 0, 1)}, {r('bt', 0, 2)}", "btw"), E(f"ds_write_b64 {r('bw', 1, 1)}, {r('bt', 2, 2)}", "btw")]

W2SLOT = {0: ("x", S4), 1: ("o", 8192), 2: ("o", 0), 3: ("o", 4096), 4: ("x", S3),
          5: ("x", S4), 6: ("o", 8192), 7: ("o", 0), 8: ("o", 4096), 9: ("x", S3), 10: ("x", S4)}
W2PREV = {p: p - 5 for p in range(5, 11)}
VMODE = opt.get("vmode", "E")
if VMODE == "F":
    W2SLOT = {0: ("x", 0), 1: ("x", 16384), 2: ("x", S4), 3: ("o", 8192), 4: ("o", 0), 5: ("o", 4096), 6: ("x", S3),
              7: ("x", S4), 8: ("o", 8192), 9: ("o", 0), 10: ("o", 8192)}
    W2PREV = {7: 2, 8: 3, 9: 4, 10: 8}


def dmaW2(p):
    items = []
    kind, off = W2SLOT[p]
    for n in range(4):
        def it(n=n):
            if n == 0:
                e(f"s_add_u32 m0, {r('own') if kind == 'o' else r('w4k')}, {off}")
                if p in W2PREV:
                    g.wait(lg=f"rv{W2PREV[p]}")
            e(f"buffer_load_dwordx4 {r('w2s', n, 1)}, {r('sB')}, {r(f'kb{p}')} offen offset:{1024 * n} lds", f"V{p}")
        items.append(It(it, 1.2 if n else 1.8))
    return items


def w2f(p, nb, off=0, n=4):
    k = (p * 4 + nb) * 4 + off
    return f"a[{k}:{k + n - 1}]"


def rdW2(p):
    kind, off = W2SLOT[p]
    items = [W(vm=f"V{p}")]
    for nb in range(4):
        for hf in range(2):
            items.append(E(f"ds_read_b64_tr_b16 {w2f(p, nb, 2 * hf, 2)}, {r('w2r', nb + (0 if kind == 'o' else 4), 1)} offset:{off + hf * 2048}", f"rv{p}"))
    return items


alias("sac", 96, 4); alias("sgr", 92, 4)
EPS = f2u(1e-5)


def rb(dst, src):
    return [E(f"v_cvt_pk_bf16_f32 {dst}, {src}, {src}"), E(f"v_and_b32 {dst}, {r('hmask')}, {dst}")]


s1, s1b, s2, s2b = (r("sacc", k, 1) for k in range(4))
st = []
for sh in (8, 4, 2, 1):
    st.append(E(f"v_add_f32_dpp {s1}, {s1}, {s1} row_ror:{sh} row_mask:0xf bank_mask:0xf"))
    st.append(E(f"v_add_f32_dpp {s2}, {s2}, {s2} row_ror:{sh} row_mask:0xf bank_mask:0xf"))
st.append(E(f"v_mov_b32 {s1b}, {s1}")); st.append(E(f"v_mov_b32 {s2b}, {s2}"))
st.append(E(f"v_permlane16_swap_b32 {s1}, {s1b}")); st.append(E(f"v_permlane16_swap_b32 {s2}, {s2b}"))
mu, var, t, w = (r("u", k, 1) for k in range(4))
mb, rsd = r("stv", 0, 1), r("stv", 1, 1)
st.append(E(f"v_add_f32 {mu}, {s1}, {s1b}")); st.append(E(f"v_add_f32 {var}, {s2}, {s2b}"))
st.append(E(f"v_mul_f32 {mu}, 0x{f2u(1 / 512):08x}, {mu}"))
st.append(E(f"v_mul_f32 {var}, 0x{f2u(1 / 512):08x}, {var}"))
st += rb(mb, mu)
st.append(E(f"v_fma_f32 {var}, -{mu}, {mu}, {var}"))
st.append(E(f"v_max_f32 {var}, 0, {var}"))
st += rb(t, var)
st.append(E(f"v_add_f32 {t}, 0x{EPS:08x}, {t}"))
st += rb(t, t)
st.append(E(f"v_sqrt_f32 {t}, {t}", cost=2))
st.append(E(f"v_sub_f32 {mu}, {mu}, {mb}"))
st += rb(t, t)
st.append(E(f"v_rcp_f32 {rsd}, {t}", cost=2))
st.append(E(f"v_mul_f32 {mu}, {mu}, {rsd}"))
st.append(E(f"v_mul_f32 {var}, {var}, {rsd}"))
st.append(E(f"v_mul_f32 {var}, {var}, {rsd}"))
st += rb(t, var)
st.append(E(f"v_add_f32 {t}, 0x{EPS:08x}, {t}"))
st += rb(t, t)
st.append(E(f"v_sqrt_f32 {t}, {t}", cost=2))
st += rb(mu, mu)
st += rb(t, t)
st.append(E(f"v_rcp_f32 {w}, {t}", cost=2))
st.append(E(f"v_fma_f32 {mu}, {mb}, {rsd}, {mu}"))
st.append(E(f"v_mul_f32 {t}, {rsd}, {w}"))
st.append(E(f"v_mul_f32 {mu}, {mu}, {w}"))
st.append(E(f"v_cndmask_b32 {r('gq', 0, 1)}, {t}, {mb}, {r('m1')}"))
st.append(E(f"v_cndmask_b32 {r('gq', 1, 1)}, {mu}, {rsd}, {r('m1')}"))
st.append(E(f"v_mov_b32 {s1}, {r('gq', 0, 1)}")); st.append(E(f"v_mov_b32 {s2}, {r('gq', 1, 1)}"))
st.append(E(f"v_permlane32_swap_b32 {r('gq', 0, 1)}, {s1}")); st.append(E(f"v_permlane32_swap_b32 {r('gq', 1, 1)}, {s2}"))
st.append(It(lambda: (e("s_mov_b64 exec, 12"), e(f"v_mov_b32 {r('gq', 0, 1)}, {s1}"), e(f"v_mov_b32 {r('gq', 1, 1)}, {s2}"), e("s_mov_b64 exec, -1")), 2.6))
ststore = [It(lambda: (e("s_mov_b64 exec, 15"),
                       e(f"buffer_store_dwordx4 {r('gq')}, {r('stw')}, {r('sWS')}, 0 offen sc1", "sts"), e("s_mov_b64 exec, -1")), 2)]


def gcheck(name, voff, tagname):
    g.wait(vm=tagname)
    e(f"v_cmp_ne_u64 vcc, {r('tag')}, {r(name, 2, 2)}")
    e("s_cmp_eq_u64 vcc, 0")
    e(f"s_cbranch_scc0 L_{tagname}")
    g.label(f"L_{tagname}_ok")
    q4, q2, sws, tagr = r(name, 0, 4), r(name, 2, 2), r("sWS"), r("tag")

    def tail():
        g.label(f"L_{tagname}")
        if SPINMAX:
            e(f"s_mov_b32 {T4}, 0")
        g.label(f"L_{tagname}_l")
        e("s_sleep 2")
        e(f"buffer_load_dwordx4 {q4}, {voff}, {sws}, 0 offen sc1")
        e("s_waitcnt vmcnt(0)")
        e(f"v_cmp_ne_u64 vcc, {tagr}, {q2}")
        if SPINMAX:
            e(f"s_add_u32 {T4}, {T4}, 1")
            e(f"s_cmp_gt_u32 {T4}, {SPINMAX}")
            e(f"s_cbranch_scc1 L_{tagname}_ok")
        e("s_cmp_eq_u64 vcc, 0")
        e(f"s_cbranch_scc0 L_{tagname}_l")
        e(f"s_branch L_{tagname}_ok")
    tails.append(tail)


sgld = [E(f"buffer_load_dwordx4 {r('sgr')}, {r('sgo')}, {r('sWS')}, 0 offen sc1", "sg")]
sguse = [It(lambda: gcheck("sgr", r("sgo"), "sg"), 2)]
sguse += [E(f"v_mov_b32 {r('sac', k, 1)}, {r('sgr', k & 1, 1)}") for k in range(4)]
sguse += [E(f"v_permlane32_swap_b32 {r('sac', 0, 1)}, {r('sac', 2, 1)}"), E(f"v_permlane32_swap_b32 {r('sac', 1, 1)}, {r('sac', 3, 1)}")]

main = []
at = {}


def add(items, name=None):
    if name:
        at[name] = len(main)
        if name.startswith("K") and SSET == "k":
            f0 = items[0].fn
            items = [It(lambda: (stamp(name, "k"), f0()), items[0].cost)] + items[1:]
    main.extend(items)


NOB1 = int(opt.get("nob1", 0))
KVK = int(opt.get("kvk", 5))
BARS = {1: 1, 3: 3, 7: 5, 11: 7} if KVK == 3 else {1: 1, 3: 2, 5: 4, 9: 6, 13: 7}
if NOB1:
    del BARS[1]


def bar(K):
    def fn():
        if K == KVK:
            g.wait(vm=f"W{BARS[K]}", lg="kvw")
        elif K == 7 or (KVK == 5 and K in (3, 9)):
            g.wait(vm=f"W{BARS[K]}", lg=f"rw{K}_5")
        elif K < 15:
            g.wait(vm=f"W{BARS[K]}")
        else:
            g.wait(lg=0)
        e("s_barrier")
        if K in ((3, 7, 11, 15) if KVK == 3 else (5, 9, 13, 15)):
            stamp(f"c{K >> 2}")
    return [It(fn, 0)]


STAT = {K: [] for K in range(13)}

for K in range(13):
    if K == KVK:
        add([It(lambda: (stamp("kvb"), run(weave(kvu[KVU:] + kvc, (kvdma, 4, len(kvu) - KVU + len(kvc) - 4))), stamp("kv")), 0)], "KV")
    if K in BARS:
        add(bar(K), f"B{K}")
    sm = sum((statM(k) for k in STAT[K]), [])
    add(sm + mainM(K), f"K{K}")
    at[f"m{K}"] = at[f"K{K}"] + len(sm)
    add(csM(K))
if 13 in BARS:
    add(bar(13), "B13")
add(mainM(13) + csM(13), "K13")
m14 = mainM(14)
add(m14[:2] + csM(14) + m14[2:8], "K14"); add(csM(15), "cs15"); add(m14[8:])
at["m14"] = at["K14"]; at["m13"] = at["K13"]
add(bar(15), "C3")
add(mainM(15), "K15")
at["end"] = len(main)
if SSET == "fine":
    F0 = int(opt.get("f0", 0))
    for k_ in range(F0, min(F0 + 120, len(main)), 4):
        main[k_] = It(lambda f=main[k_].fn, k_=k_: (stamp(f"m{k_}", "fine"), f()), main[k_].cost)
A = lambda n: at[n]
QR = []
for K in range(1, 15):
    lo = A(f"K{K - 1}") - (1 if (K - 1) in BARS else 0)
    hi = A(f"K{K}") - 2 - (1 if K in BARS else 0) - (1 if K == KVK else 0) - (3 if (K == 7 and KVK == 3) or (KVK == 5 and K in (3, 9)) else 0)
    QR += win(rdW(K), lo, hi)
QR += win(rdW(15), A("K14"), A("C3") - 5)
XRD = {1: 1, 2: 3, 3: 5, 4: 7, 5: 9, 6: 11, 7: 13}
QX = []
for ei in range(1, 8):
    k = XRD[ei]
    QX += win(rdX(ei), A(f"K{k}"), A(f"K{k}") + 5)


def aft(tag, items):
    f0 = items[0]
    return [It(lambda: (g.wait(lg=tag), f0()), f0.cost + 1)] + items[1:]


kc_txt = []
kcv = [it for it in kcopy if it.cost != 2]
kcw = [it for it in kcopy if it.cost == 2]
f1set = [None] * 4 + [It(lambda: (g.wait(vm="kvst"), setflag(r("f1a"), "f1")), 2)]
udma = [It(lambda: pollcheck(r("pf1o"), "pf1"), 4),
        It(lambda: (e(f"s_add_u32 {r('sA', 0, 1)}, {plo(13)}, {r('chan')}"), e(f"s_addc_u32 {r('sA', 1, 1)}, {phi(13)}, 0"), e(f"s_mov_b32 m0, {r('um0')}")), 3)]
for n in range(4):
    udma.append(E(f"buffer_load_dwordx4 {r('l16')}, {r('sA')}, {r('ush')} offen offset:{1024 * n} sc1 lds", "U"))
KW = lambda k0, k1=None: (A(f"K{k0}"), A(f"K{(k1 or k0) + 1}") - 2)
F1K = int(opt.get("f1k", 7 if KVK == 5 else 6))
f1 = lambda k: f1set[4:] if F1K == k else []
KVU = int(opt.get("kvu", 8))
KV0 = int(opt.get("kv0", 6 if KVK == 3 else 0))
run(kvload[:KV0])
if KVK == 3:
    QV = win(kvload[KV0:] + dmaW1(2), *KW(0))
    QV += win(dmaX(2), *KW(1))
    QV += win(dmaW1(3), A("K2"), A("KV") - 1)
    kvdma = dmaX(3) + dmaX(4) + small + skload + w2touch + ststore
    QV += win(dmaW1(4) + kvst2, *KW(3))
    QV += win(dmaW1(5), *KW(4))
    QV += win(dmaX(5), *KW(5))
    QV += win(dmaX(6) + f1(6), *KW(6))
else:
    assert VMODE != "F"
    run(dmaW1(2) + dmaX(2))
    QV = win(kvload[KV0:], *KW(0))
    if int(opt.get("grp", 0)):
        QV += win(skload + w2touch + small, *KW(1))
        QV += win(dmaW1(3), *KW(2))
        QV += win(dmaW1(4) + ststore, *KW(3))
        QV += win(dmaX(3), A("K4"), A("KV") - 1)
        kvdma = dmaW1(5) + dmaX(4) + dmaX(5)
    else:
        QV += win(dmaW1(3), *KW(1))
        QV += win(dmaX(3), *KW(2))
        QV += win(dmaW1(4) + ststore, *KW(3))
        QV += win(dmaW1(5), A("K4"), A("KV") - 1)
        kvdma = dmaX(4) + dmaX(5) + small + skload + w2touch
    QV += win((dmaW1(6) + kvst2) if int(opt.get("w6f", 0)) else (kvst2 + dmaW1(6)), *KW(5))
    QV += win(dmaX(6), *KW(6))
    QV += win(f1(7), *KW(7))
    QV += win(dmaX(7) + f1(8), *KW(8))
    QV += win(dmaW1(7) + sgld, *KW(9))
NV3 = int(opt.get("nv3", 1))
if VMODE == "F":
    QV += win(dmaW1(6) + f1(7) + dmaW1(7)[:1], *KW(7))
    QV += win(dmaW1(7)[1:] + dmaX(7)[:3], *KW(8))
    QV += win(dmaX(7)[3:] + sgld + dmaW2(0)[:3], *KW(9))
    QV += win(dmaW2(0)[3:] + dmaW2(1), *KW(10))
    QV += win(dmaW2(2), *KW(11))
    if NV3:
        QV += win(dmaW2(3), *KW(12)) + win(dmaW2(4), *KW(13))
else:
    if KVK == 3:
        QV += win(dmaW1(6) + f1(7), *KW(7))
        QV += win(dmaW1(7) + dmaX(7)[:1], *KW(8))
        QV += win(dmaX(7)[1:] + sgld, *KW(9))
    QV += win(dmaW2(0), *KW(10))
    QV += win(dmaW2(1), *KW(11))
    QV += win(dmaW2(2), *KW(12))
    if NV3:
        QV += win(dmaW2(3), A("K14"), A("C3") - 1)
QV += win([It(lambda: pollissue(r("pf1o"), "pf1"))], A("end") - 4, A("end") - 4)
QW1 = (win(rdW2(0), *KW(13)) + win(rdW2(1), A("K14"), A("C3") - 3)) if VMODE == "F" else []
XX = '''
QV += win(dmaW2(0) + f1(9), *KW(9))
QV += win(dmaW2(1) + f1(10), *KW(10))
QV += win(dmaW2(2) + f1(11), *KW(11))
QV += win(dmaW2(3), *KW(12))
'''
csw = [It(lambda: (e("s_mov_b32 exec_lo, 0x00010001"), e("s_mov_b32 exec_hi, 0x00010001"),
                   e(f"ds_write_b128 {r('ctr', 0, 1)}, {r('cs', 0, 4)}", "csw"), e(f"ds_write_b128 {r('ctr', 0, 1)}, {r('cs', 4, 4)} offset:64", "csw"),
                   e("s_mov_b64 exec, -1")), 5)]
rcs = [E(f"ds_read_b128 {r('csf', 4 * fb, 4)}, {r('ctr', fb >> 1, 1)} offset:{64 * (fb & 1)}", "rcs") for fb in range(6)]
rb1 = [E(f"ds_read_b128 {r('b1f', 4 * fb, 4)}, {r('ctr', fb >> 1, 1)} offset:{B1T - CSX + 64 * (fb & 1)}", "rb1") for fb in range(6)]
QM = win(kvrd, A(f"K{KVK - 1}") + 1, A(f"K{KVK - 1}") + 8)
QM += win(kvu[:KVU], A(f"K{KVK - 1}") + 10, A("KV") - 1)
QM += win(kvst, A(f"B{KVK}"), A(f"B{KVK}") + 1)
QM += win(btab, *KW(KVK + 2))
KCV = int(opt.get("kcv", 1))
if KCV:
    QM += win(kcv, A(f"K{KVK + 4}"), A("K11" if KVK == 3 else "K13") - 2)
QM += win(rb1, *KW(11 if KVK == 3 else 13))
KCW = int(opt.get("kcw", 0))
QM += win(kcw[:KCW], A("K13"), A("K14") + 8)
QM += win(csw, A("C3") - 2, A("C3") - 2)
QM += win(rcs + [E(f"ds_write_b128 {r('za')}, {r('zz')}", "zw", 2)], A("C3"), A("C3") + 7)
if KCV:
    pass
QS = win(st, 0, A("KV") - 1 if KVK == 3 else A("K3") + 6) + win(sguse, A("m14") + 2, A("end") - 2)
QL = win(late_items(lateA), A("K3") + 2, A("K9") - 1) + win(late_items(lateB), A("K9") if lateA else A("K4"), A("C3") - 3)
schedule(main, [QR, QX, QV, QM, QS, QW1, QL])
lateC_items = late_items(lateC)
g.free("T1", "q", "whi", "b0", "ns128", "r8", "pc", "nown", "sD")
del g.names["bp"]
for n_ in ("wf", "kf", "vr", "kr", "shr", "vf", "kvp", "skr", "ke", "bt", "sgr"):
    del g.names[n_]
g.free("w1s", "w1lds", "sW1", "so", "f1a", "kvs", "pre", "kvo", "bb", "bw", "k0", "kd", "sho", "sa", "sb", "kvw", "kvr", "kra", "sra",
       "wa", "xf", "cs", "sgo", "m1", "stw", "w1r", "ctr", "ones", "sacc", "u", "gq", "stv",
       "xrd", "zz", "za", "ptr8", "ptr10", "ptr3", "ptr4", "ptr9", "kim", "xbase", "xk", "wo", "wlim")
AC("w2b", 176, at=0)
stamp("g1")
stamp("g1", "k")

K0 = -2.0 * 0.7978845608028654 * 1.4426950408889634
K1 = K0 * 0.044715
S("k1", 2); V("k0v", 2); V("ge", 16); V("hp", 8)
e(f"s_mov_b32 {r('k1', 0, 1)}, 0x{f2u(K1):08x}")
e(f"s_mov_b32 {r('k1', 1, 1)}, 0x{f2u(K1):08x}")
e(f"v_mov_b32 {r('k0v', 0, 1)}, 0x{f2u(K0):08x}")
e(f"v_mov_b32 {r('k0v', 1, 1)}, 0x{f2u(K0):08x}")
g.wait(lg="rcs")
e(".p2align 3")


def gelu(b, tb):
    it = []
    sac = r("sac", tb * 2, 2)
    prs = [(fb, h) for fb in (2 * b, 2 * b + 1) for h in range(2)]
    U = lambda k: r("acc", (prs[k][0] * 2 + tb) * 4 + 2 * prs[k][1], 2)
    Tm = lambda k: r("ge", (tb & 1) * 8 + 2 * k, 2)
    T1r = lambda k, x: r("ge", (tb & 1) * 8 + 2 * k + x, 1)
    for k, (fb, h) in enumerate(prs):
        it.append(E(f"v_pk_fma_f32 {Tm(k)}, {r('csf', fb * 4 + 2 * h, 2)}, {sac}, {r('b1f', fb * 4 + 2 * h, 2)} op_sel:[0,1,0] op_sel_hi:[1,1,1] neg_lo:[0,1,0] neg_hi:[0,1,0]"))
    for k in range(4):
        it.append(E(f"v_pk_fma_f32 {U(k)}, {U(k)}, {sac}, {Tm(k)} op_sel_hi:[1,0,1]"))
    for k in range(4):
        it.append(E(f"v_pk_mul_f32 {Tm(k)}, {U(k)}, {U(k)}"))
    for k in range(4):
        it.append(E(f"v_pk_fma_f32 {Tm(k)}, {Tm(k)}, {r('k1')}, {r('k0v')}"))
    for k in range(4):
        it.append(E(f"v_pk_mul_f32 {Tm(k)}, {Tm(k)}, {U(k)}"))
    for k in range(4):
        for x in range(2):
            it.append(E(f"v_exp_f32 {T1r(k, x)}, {T1r(k, x)}"))
    for k in range(4):
        it.append(E(f"v_pk_add_f32 {Tm(k)}, {Tm(k)}, 1.0 op_sel_hi:[1,0]"))
    for k in range(4):
        for x in range(2):
            it.append(E(f"v_rcp_f32 {T1r(k, x)}, {T1r(k, x)}"))
    for k in range(4):
        it.append(E(f"v_pk_mul_f32 {Tm(k)}, {Tm(k)}, {U(k)}"))
    for k in range(4):
        it.append(E(f"v_cvt_pk_bf16_f32 {r('hp', (tb & 1) * 4 + k, 1)}, {T1r(k, 0)}, {T1r(k, 1)}"))
    it.append(E(f"buffer_store_dwordx4 {r('hp', (tb & 1) * 4, 4)}, {r('l16')}, {r('sWS')}, {r(f'ho{b}')} offen sc1", "hst"))
    if tb == 0:
        it.append(E(f"s_add_u32 {r(f'ho{b}')}, {r(f'ho{b}')}, 44032"))
    return it


g.free("ska")
AC("cf", 32, at=176); AC("cg", 32, at=208)


def rdF(it, c):
    return E(f"ds_read_b128 {r('cf', 4 * c, 4)}, {r('fa')} offset:{64 * it + 512 * c}", f"F{it}_{c}")


def rdG(it, d):
    return E(f"ds_read_b128 {r('cg', 4 * d, 4)}, {r('ga')} offset:{64 * it + 512 * (7 - d)}", f"G{it}_{d}")


CORD = opt.get("cord", "AAAA")
init = []
if CORD[0] == "A":
    for k in range(8):
        init += [rdF(0, 7 - k), rdG(0, k)]
else:
    init = [rdG(0, 0)] + [rdF(0, 7 - k) for k in range(8)] + [rdG(0, k) for k in range(1, 8)]
SKIP = int(opt.get("skip2", 1))
for jp in range(3):
    if jp == 1:
        run(udma[:2])
    if SKIP:
        e(f"s_cmp_eq_u32 {r(f'ho{jp}')}, 0x7f000000")
        e(f"s_cbranch_scc1 L_gskip{jp}")
    e(".p2align 3")
    n0 = len(g.ins)
    if jp < 2:
        run(weave(gelu(jp, 0) + gelu(jp, 1), (udma[2:] if jp == 1 else [], 2, 60), (kcw[KCW:][jp::2], 12, 90)))
    else:
        g2x = gelu(2, 0) + gelu(2, 1)
        run(g2x[:80])
        g.wait(vm="U", lg=0)
        e("s_barrier")
        stamp("b5")
        run(weave(g2x[80:], (init[:6], 0, 16)))
    if SKIP:
        keep = [i.text for i in g.ins[n0:] if (not i.op.startswith("v_") or i.op.startswith("v_writelane")) and i.cls != "label"]
        g.label(f"L_gdone{jp}")

        def skip_tail(jp=jp, keep=keep):
            g.label(f"L_gskip{jp}")
            for x in keep:
                e(x)
            e(f"s_branch L_gdone{jp}")
        tails.append(skip_tail)
stamp("gelu")
g.free("pf1o", "um0", "ush", "chan", "kw")
del g.names["csf"], g.names["b1f"], g.names["sac"]
g.free("acc", "big", "ge", "k0v", "k1", "ho0", "ho1", "ho2")
V("cy", 32, at=96)
V("hfv", 96, at=160)
HFIRST = int(opt.get("hfirst", 2))
HPOL = opt.get("hpol", "sc1").replace("+", " ")
HORD = [(s_, p_) for p_ in range(HFIRST) for s_ in range(4)]
HORD += [(s_, p_) for s_ in range(4) for p_ in range(HFIRST, 11)]
HF = {}
for k_, sp in enumerate(HORD):
    HF[sp] = r("hfv", 4 * k_, 4) if k_ < 24 else f"a[{176 + 4 * (k_ - 24)}:{179 + 4 * (k_ - 24)}]"
S("sH", 4)
for p in range(11):
    S(f"hb{p}")
NE0 = int(opt.get("ne", 1))
NEX = int(opt.get("nex", 6))
NE = NE0 + NEX
HTXT = [f"buffer_load_dwordx4 {HF[s_, p_]}, {r('hv', s_, 1)}, SRD, {r(f'hb{p_}')} offen {HPOL}" for s_, p_ in HORD]

main = []
QF = win(init[6:], 0, 9 if CORD[0] == "A" else 6)
touched = set()
for it in range(4):
    at[f"I{it}"] = len(main)
    if CORD[it] == "A":
        order = [(c, d) for c in range(7, -1, -1) for d in range(8 - c)]
    else:
        order = [(c, d) for d in range(8) for c in range(7 - d, -1, -1)]
    lastF = {c: max(k for k, (c2, d2) in enumerate(order) if c2 == c) for c in range(8)}
    lastG = {d: max(k for k, (c2, d2) in enumerate(order) if d2 == d) for d in range(8)}
    seenF, seenG = set(), set()
    for k, (c, d) in enumerate(order):
        t = c + d
        wt = None
        if c not in seenF and d not in seenG:
            wt = dict(lg=f"F{it}_{c}", lg2=f"G{it}_{d}")
        elif c not in seenF:
            wt = dict(lg=f"F{it}_{c}")
        elif d not in seenG:
            wt = dict(lg=f"G{it}_{d}")
        seenF.add(c); seenG.add(d)
        main.append(M(r("cy", 4 * t, 4), r("cf", 4 * c, 4), r("cg", 4 * d, 4), t not in touched, wt))
        touched.add(t)
        if it == 0 and c == 0:
            main.append(M(r("cy", 4 * t, 4), r("fd"), r("cg", 4 * d, 4), False))
        idx = len(main) - 1
        if it < 3:
            if k == lastG[d]:
                QF += win([rdG(it + 1, d)], idx, idx + (0 if CORD[it] == "A" else 1))
            if k == lastF[c]:
                QF += win([rdF(it + 1, c)], idx, idx + (0 if c == 0 else 1))
at["I4"] = len(main)
if SSET == "cv":
    for k_ in range(0, 152, 8):
        main[k_] = It(lambda f=main[k_].fn, k_=k_: (stamp(f"m{k_}", "cv"), f()), main[k_].cost)
if VMODE == "F" and NV3:
    QW = win(rdW2(2) + rdW2(3) + rdW2(4), 8, 44) + win(rdW2(5) + rdW2(6), 48, 76) + win(rdW2(7) + rdW2(8), 78, 104) + win(rdW2(9), 108, 124)
    QV = win(dmaW2(5) + dmaW2(6) + dmaW2(7), 0, 46) + win(dmaW2(8) + dmaW2(9), 48, 78)
elif VMODE == "F":
    QW = win(rdW2(2), 10, 24) + win(rdW2(3) + rdW2(4), 40, 66) + win(rdW2(5) + rdW2(6) + rdW2(7), 68, 104)
    QW += win(rdW2(8), 106, 118) + win(rdW2(9), 124, A("I4") - 4)
    QV = win(dmaW2(3) + dmaW2(4) + dmaW2(5) + dmaW2(6) + dmaW2(7), 0, 70) + win(dmaW2(8) + dmaW2(9), 72, 98)
else:
    QW = win(rdW2(0) + rdW2(1) + rdW2(2) + rdW2(3), 8, 50) + win(rdW2(4) + rdW2(5) + rdW2(6), 56, 100)
    QW += win(rdW2(7) + rdW2(8) + rdW2(9), 104, A("I4") - 4)
    QV = win(([] if NV3 else dmaW2(3)) + dmaW2(4), 0, 15) + win(dmaW2(5) + dmaW2(6) + dmaW2(7) + dmaW2(8) + dmaW2(9), 22, 98)
F2POS = int(opt.get("f2pos", 52 if KCV else 20))
QF2 = win([It(lambda: (g.wait(vm="hst"), setflag(r("f2a"), "f2")), 2)], F2POS, F2POS)
QV += win(dmaW2(10), *((100, 114) if VMODE != "F" else (108, 120) if NV3 else (121, 134)))
P2A = int(opt.get("p2a", 124))
P2C = int(opt.get("p2c", 146))
QF2 += win([It(lambda: pollissue(r("pf2o"), "pf2a"))], P2A, P2A)


def chk2a():
    g.wait(vm="pf2a")
    e(f"v_cmp_ne_u64 vcc, {r('tag')}, {r('pf')}")
    e(f"s_mov_b64 {r('sH', 0, 2)}, {r('sWS', 0, 2)}")
    e(f"s_mov_b32 {r('sH', 3, 1)}, 0x00020000")
    e("s_cmp_eq_u64 vcc, 0")
    e(f"s_cselect_b32 {r('sH', 2, 1)}, {WSZ}, 0")


QV += win([It(chk2a, 2)], P2C, P2C)
QV += win([E(x.replace("SRD", r("sH")), f"H{s_}_{p_}") for (s_, p_), x in zip(HORD[:NE0], HTXT)], P2C + 1, A("I4") - 3)
hex_ = [E(x.replace("SRD", r("sH")), f"H{s_}_{p_}") for (s_, p_), x in list(zip(HORD, HTXT))[NE0:NE]]


def hx():
    if hex_:
        hex_.pop(0)()
QV += win([It(lambda: pollissue(r("pf2o"), "pf2"))], A("I4") - 2, A("I4") - 2)
S("early")
QB = []
QM = win([It(lambda p=p: (e(f"s_lshr_b32 {r(f'hb{p}')}, {r(f'kb{p}')}, 5"), e(f"s_min_u32 {r(f'hb{p}')}, {r(f'hb{p}')}, {42 * 1024}")), 0.6)
          for p in range(11)], 30, 70)
QB = win(lateC_items, 4, 100)
schedule(main, [QF, QW, QV, QM, QF2, QB])
g.free("tt2", "ns", "tok16", "L0", "L2", "L3", "L4")
stamp("conv")
stamp("conv", "g2")
rv10 = rdW2(10) if KCV else []
g.free("cf", "cg", "fd", "fa", "ga", "w2s", "w4k", "f2a", "hp")
for p in range(11):
    g.free(f"kb{p}")
V("ys", 8); V("cg", 24); V("sv", 4)
AC("hfa", 80, at=176)
hx()
g.wait(lg=0)
e(f"s_cmp_lg_u32 {r('wodd')}, 0")
e("s_cbranch_scc1 L_odd1")
lsv_ = g.lg_done
for k in range(4):
    e(f"ds_write_b128 {r('oa')}, {r('cy', 16 + 4 * k, 4)} offset:{1024 * k}")
e("s_branch L_j1")
g.label("L_odd1")
e("s_nop 4")
for k in range(4):
    e(f"ds_write_b128 {r('oa')}, {r('cy', 4 * k, 4)} offset:{1024 * k}")
g.wait(lg=0)
for k in range(8):
    e(f"v_pk_mov_b32 {r('cy', 2 * k, 2)}, {r('cy', 16 + 2 * k, 2)}, {r('cy', 16 + 2 * k, 2)} op_sel:[0,1]")
g.label("L_j1")
g.lg_done = lsv_
hx()
g.wait(lg=0)
e("s_barrier")
for k in range(4):
    e(f"ds_read_b128 {r('cg', 4 * k, 4)}, {r('pa')} offset:{1024 * k}", f"ex{k}")
hx(); hx()
for k in range(4):
    g.wait(lg=f"ex{k}")
    for hh in range(2):
        e(f"v_pk_add_f32 {r('cy', 4 * k + 2 * hh, 2)}, {r('cy', 4 * k + 2 * hh, 2)}, {r('cg', 4 * k + 2 * hh, 2)}")
    for hh in range(2):
        e(f"v_cvt_pk_bf16_f32 {r('cg', 16 + 2 * k + hh, 1)}, {r('cy', 4 * k + 2 * hh, 1)}, {r('cy', 4 * k + 2 * hh + 1, 1)}")
    e(f"ds_write_b64 {r('yw')}, {r('cg', 16 + 2 * k, 2)} offset:{4096 + 512 * k}", f"yw{k}")
    if k & 1:
        e(f"ds_read_b128 {r('ys', 2 * (k - 1), 4)}, {r('oa')} offset:{4096 + 512 * (k - 1)}", f"yr{k >> 1}")
hx()
g.wait(lg="yr0")
e(f"buffer_store_dwordx4 {r('ys', 0, 4)}, {r('l16')}, {r('sWS')}, {r('yo')} offen sc1", "yst")
g.wait(lg="yr1")
e(f"buffer_store_dwordx4 {r('ys', 4, 4)}, {r('l16')}, {r('sWS')}, {r('yo')} offen offset:1024 sc1", "yst")
stamp("yst")
stamp("yst", "g2")
while hex_:
    hx()
g.free("cy", "pa", "yw", "cg", "yo")

V("ac2", 32)
e(f"s_cmp_lg_u32 {r('sH', 2, 1)}, 0")
e("s_cbranch_scc1 L_haveH")
sv_ = g.vm_done
pollcheck(r("pf2o"), "pf2", before_spin=["s_waitcnt vmcnt(0)"] + flagtxt(r("f3a"), L3S))
n_ = len(g.vm)
for x in HTXT[:NE]:
    e(x.replace("SRD", r("sWS")))
del g.vm[n_:]
g.label("L_haveH")
g.vm_done = 0
n_late = len(g.vm)
stamp("f2")
hl = [E(x.replace("SRD", r("sWS")), f"H{s_}_{p_}") for (s_, p_), x in zip(HORD, HTXT)]


def g2(s):
    return [M(r("ac2", (s & 1) * 16 + 4 * nb, 4), w2f(p, nb), HF[s, p], p == 0,
              (dict(vm=f"H{s}_{p}", lg="rv10") if (s == 0 and p == 10) else dict(vm=f"H{s}_{p}")) if nb == 0 else None)
            for p in range(11) for nb in range(4)]


def pwr(s):
    return [E(f"ds_write_b64 {r('pw', s, 1)}, {r('ac2', (s & 1) * 16 + 2 * k, 2)} offset:{512 * k}", "pw", 1.5) for k in range(8)]


V("xr", 8); V("xfp", 16); V("xn", 16)
pre = rv10 + [It(lambda: gcheck("sv", r("svr"), "sv")), W(vm="xt")]
for nb in range(4):
    pre.append(E(f"ds_read_b64 {r('xr', 2 * nb, 2)}, {r('ea', nb, 1)} offset:6144", "xr"))
PRESH = int(opt.get("presh", 1))
pre2 = [W(lg="xr")]
if PRESH:
    for d in range(8):
        lo, hi = r("xfp", 2 * d, 1), r("xfp", 2 * d + 1, 1)
        a_, b_ = r("xn", 2 * d, 1), r("xn", 2 * d + 1, 1)
        pre2.append(E(f"v_lshlrev_b32 {lo}, 16, {r('xr', d, 1)}"))
        pre2.append(E(f"v_and_b32 {hi}, {r('hmask')}, {r('xr', d, 1)}"))
        pre2.append(E(f"v_sub_f32 {a_}, {lo}, {r('sv', 0, 1)}"))
        pre2.append(E(f"v_sub_f32 {b_}, {hi}, {r('sv', 0, 1)}"))
        pre2.append(E(f"v_cvt_pk_bf16_f32 {b_}, {a_}, {b_}"))
        pre2.append(E(f"v_lshlrev_b32 {a_}, 16, {b_}"))
        pre2.append(E(f"v_and_b32 {b_}, {r('hmask')}, {b_}"))
        pre2.append(E(f"v_mul_f32 {a_}, {a_}, {r('sv', 1, 1)}"))
        pre2.append(E(f"v_mul_f32 {b_}, {b_}, {r('sv', 1, 1)}"))
        pre2.append(E(f"v_cvt_pk_bf16_f32 {b_}, {a_}, {b_}"))
        pre2.append(E(f"v_lshlrev_b32 {a_}, 16, {b_}"))
        pre2.append(E(f"v_and_b32 {b_}, {r('hmask')}, {b_}"))
else:
    pre2 += unpack("xfp", 0, "xr", 0, 8)
    for d in range(8):
        pre2.append(E(f"v_pk_add_f32 {r('xn', 2 * d, 2)}, {r('xfp', 2 * d, 2)}, {r('sv', 0, 2)} op_sel_hi:[1,0] neg_lo:[0,1] neg_hi:[0,1]"))
    for d in range(8):
        pre2.append(E(f"v_cvt_pk_bf16_f32 {r('xr', d, 1)}, {r('xn', 2 * d, 1)}, {r('xn', 2 * d + 1, 1)}"))
    pre2 += unpack("xn", 0, "xr", 0, 8)
    for d in range(8):
        pre2.append(E(f"v_pk_mul_f32 {r('xn', 2 * d, 2)}, {r('xn', 2 * d, 2)}, {r('sv', 0, 2)} op_sel:[0,1] op_sel_hi:[1,1]"))
    for d in range(8):
        pre2.append(E(f"v_cvt_pk_bf16_f32 {r('xr', d, 1)}, {r('xn', 2 * d, 1)}, {r('xn', 2 * d + 1, 1)}"))
    pre2 += unpack("xn", 0, "xr", 0, 8)
if PRESH:
    run(weave(rv10 or [It(lambda: None)], (hl[NE:NH0], 0, 9)))
    QPRE = win(pre[len(rv10):], 66, 72) + win(pre2, 78, 138)
else:
    run(weave(pre + pre2, (hl[NE:NH0], 0, 88)))
    QPRE = []
e(f"s_cmp_lg_u32 {r('sH', 2, 1)}, 0")
e("s_cbranch_scc1 L_lateok")
e(f"s_waitcnt vmcnt({len(g.vm) - n_late})")
g.label("L_lateok")
stamp("f3set")
stamp("f3set", "g2")
ps_alias = {}
B7P = 14
main = g2(0) + g2(1) + g2(2) + g2(3)[:B7P]
if SSET == "g2b":
    for k_ in range(0, 140, 8):
        main[k_] = It(lambda f=main[k_].fn, k_=k_: (stamp(f"m{k_}", "g2b"), f()), main[k_].cost)
P3K = int(opt.get("p3k", 44))
HPACE = float(opt.get("hpace", 3.8))
xtl = [It(lambda: (e(f"s_add_u32 m0, {r('own')}, 6144"), e("s_nop 0"), e(f"buffer_load_dwordx4 {r('xs', 0, 1)}, {r('sX')}, {r('tile0')} offen lds", "xt")), 1.5),
       E(f"buffer_load_dwordx4 {r('xs', 1, 1)}, {r('sX')}, {r('tile0')} offen offset:1024 lds", "xt"),
       E(f"buffer_load_dwordx4 {r('sv')}, {r('svr')}, {r('sWS')}, 0 offen sc1", "sv")]
XK = NH0 + 6
QH = win(hl[NH0:XK] + xtl + hl[XK:P3K] + [It(lambda: pollissue(r("pf3o"), "pf3"))] + hl[P3K:], 0, int(HPACE * (47 - NH0)))
QP = win(pwr(0), 48, 70) + win(pwr(1), 92, 114) + win(pwr(2), 134, 143)
F3POS = int(opt.get("f3pos", 34))
QF3 = win([It(lambda: (g.wait(vm="yst"), setflag(r("f3a"), "f3")), 2)], F3POS, F3POS)
schedule(main, [QH, QP, QF3, QPRE])
g.free("ys", "xr", "sv", "svr", "pf2o", "w2r")
stamp("g2s2")
stamp("g2s2", "g2")
g.wait(lg=0)
stamp("b7a", "g2")
e("s_barrier")
stamp("b7b", "g2")
g.free("hfv")
V("ps", 48); V("zr", 8); V("b2f", 16)
rp = [E(f"ds_read_b128 {r('b2f', 4 * nb, 4)}, {r('csr0')} offset:{B2T - CSX + 64 * nb}", "rb2") for nb in range(4)]
rp += [E(f"ds_read2st64_b64 {r('ps', 4 * k, 4)}, {r('psr')} offset0:{2 * k} offset1:{2 * k + 1}", f"rp{k}") for k in range(12)]
adds = [W(lg="rp11")]
for k in range(16):
    adds.append(E(f"v_add_f32 {r('ps', k, 1)}, {r('ps', k, 1)}, {r('ps', 16 + k, 1)}"))
    adds.append(E(f"v_add_f32 {r('b2f', k, 1)}, {r('b2f', k, 1)}, {r('ps', 32 + k, 1)}"))
ztxt = [f"buffer_load_dwordx4 {r('zs')}, {r('sWS')}, {r('zo')} offen sc1 lds",
        f"buffer_load_dwordx4 {r('zs')}, {r('sWS')}, {T3} offen offset:1024 sc1 lds"]


def zfirst():
    stamp("zfa", "g2")
    g.wait(vm="pf3")
    stamp("zfb", "g2")
    e(f"v_cmp_ne_u64 vcc, {r('tag')}, {r('pf')}")
    e(f"s_add_u32 m0, {r('own')}, 8192")
    e(f"s_add_u32 {T3}, {r('zo')}, {32 * KP - 1024}")
    e("s_cmp_eq_u64 vcc, 0")
    e(f"s_cselect_b32 {r('early')}, 1, 0")
    e("s_cbranch_scc0 L_noz")
    n_ = len(g.vm)
    for x in ztxt:
        e(x)
    del g.vm[n_:]
    g.label("L_noz")
    pollissue(r("pf3o"), "pf3b")


ZPOS = int(opt.get("zpos", 8))
schedule(g2(3)[B7P:], [win(rp, 0, 11), win(adds, 16, 29), win([It(zfirst, 3)], ZPOS, ZPOS)])
stamp("g2")
stamp("g2", "g2")
S("nl2", 2)
e(f"s_mov_b32 {r('nl2', 0, 1)}, 0x{f2u(-1.4426950408889634):08x}")
e(f"s_mov_b32 {r('nl2', 1, 1)}, 0x{f2u(-1.4426950408889634):08x}")
srd("sA", 11, 2097152)
Mm = lambda k: r("ps", 2 * k, 2)
Tt = lambda k: r("ps", 16 + 2 * k, 2)
e(".p2align 3")
for k in range(8):
    e(f"v_pk_add_f32 {Mm(k)}, {Mm(k)}, {r('b2f', 2 * k, 2)}")
for k in range(8):
    e(f"v_pk_add_f32 {Mm(k)}, {Mm(k)}, {r('ac2', 16 + 2 * k, 2)}")
for k in range(8):
    e(f"v_pk_mul_f32 {Tt(k)}, {Mm(k)}, {r('nl2')}")
for k in range(16):
    e(f"v_exp_f32 {r('ps', 16 + k, 1)}, {r('ps', 16 + k, 1)}")
for k in range(8):
    e(f"v_pk_mul_f32 {Mm(k)}, {Mm(k)}, {r('xn', 2 * k, 2)}")
for k in range(8):
    e(f"v_pk_add_f32 {Tt(k)}, {Tt(k)}, 1.0 op_sel_hi:[1,0]")
for k in range(16):
    e(f"v_rcp_f32 {r('ps', 16 + k, 1)}, {r('ps', 16 + k, 1)}")
e(f"s_cmp_eq_u32 {r('early')}, 1")
e("s_cbranch_scc1 L_havez")
pollcheck(r("pf3o"), "pf3b")
for x in ztxt:
    e(x)
g.label("L_havez")
e(f"s_or_b32 {T2}, s2, {r('wave')}")
e("s_cbranch_scc0 L_bump")
g.label("L_bumped")


def bump_tail():
    g.label("L_bump")
    e(f"v_and_b32 {ta_}, 7, {lane_}")
    if MAP1 == 8:
        e(f"v_lshrrev_b32 {tb_}, 2, {ta_}")
        e(f"v_and_b32 {ta_}, 3, {ta_}")
    else:
        e(f"v_lshrrev_b32 {tb_}, 1, {ta_}")
        e(f"v_and_b32 {ta_}, 1, {ta_}")
    e(f"v_mul_u32_u24 {tb_}, {2 * G2S}, {tb_}")
    e(f"v_lshl_add_u32 {ta_}, {ta_}, {L2S + 3}, {tb_}")
    e(f"s_mov_b32 {T2}, {F2B}")
    if SPINMAX:
        e(f"s_mov_b32 {T4}, 0")
    g.label("L_bump_l")
    e(f"buffer_load_dwordx2 {pf_}, {ta_}, {sws_}, {T2} offen sc1")
    e("s_waitcnt vmcnt(0)")
    e(f"v_cmp_ne_u64 vcc, {tagr_}, {pf_}")
    if SPINMAX:
        e(f"s_add_u32 {T4}, {T4}, 1")
        e(f"s_cmp_gt_u32 {T4}, {SPINMAX}")
        e("s_cbranch_scc1 L_bumped")
    e("s_cmp_eq_u64 vcc, 0")
    e("s_cbranch_scc0 L_bump_l")
    e(f"s_mov_b32 {T2}, {EPOCH}")
    e("s_mov_b64 exec, 1")
    e(f"buffer_store_dwordx2 {vtag_}, {zero_}, {sws_}, {T2} offen sc1")
    e("s_mov_b64 exec, -1")
    e("s_branch L_bumped2")


tagr_, sws_, vtag_, zero_, ta_, tb_, lane_, pf_ = r("tag"), r("sWS"), r("vtag", 0, 2), r("zero"), r("ta"), r("tb"), r("lane"), r("pf")
tails.append(bump_tail)
e("s_waitcnt vmcnt(0)")
g.label("L_bumped2")
stamp("z")
stamp("z", "g2")
for nb in range(4):
    e(f"ds_read_b64_tr_b16 {r('zr', 2 * nb, 2)}, {r('zt')} offset:{8192 + 512 * nb}", f"zr{nb}")
for k in range(8):
    e(f"v_pk_mul_f32 {Mm(k)}, {Mm(k)}, {Tt(k)}")
for nb in range(4):
    g.wait(lg=f"zr{nb}")
    run(unpack("ps", 16 + 4 * nb, "zr", 2 * nb, 2))
    for k in (2 * nb, 2 * nb + 1):
        e(f"v_pk_fma_f32 {Mm(k)}, {Mm(k)}, {Tt(k)}, {r('xfp', 2 * k, 2)}")
    for k in (2 * nb, 2 * nb + 1):
        e(f"v_cvt_pk_bf16_f32 {r('zr', k, 1)}, {r('ps', 2 * k, 1)}, {r('ps', 2 * k + 1, 1)}")
    e(f"ds_write_b64 {r('ea', nb, 1)}, {r('zr', 2 * nb, 2)} offset:10240", "ow")
e(f"ds_read_b128 {r('ps', 32, 4)}, {r('oa')} offset:10240", "or0")
e(f"ds_read_b128 {r('ps', 36, 4)}, {r('oa')} offset:11264", "or1")
g.wait(lg="or0")
e(f"buffer_store_dwordx4 {r('ps', 32, 4)}, {r('xs', 0, 1)}, {r('sA')}, {r('tile0')} offen {OPOL}", "ost")
g.wait(lg="or1")
e(f"buffer_store_dwordx4 {r('ps', 36, 4)}, {r('xs', 1, 1)}, {r('sA')}, {r('tile0')} offen offset:1024 {OPOL}", "ost")
stamp("out")
stamp("out", "g2")
if STAMPS:
    e("s_waitcnt vmcnt(0)")
    stamp("end")
    g.smem_out = True
    flush_stamps(True)
    e(f"s_lshl_b32 {T2}, s2, 2")
    e(f"s_add_u32 {T2}, {T2}, {r('wave')}")
    e(f"s_lshl_b32 {T2}, {T2}, 7")
    e(f"s_add_u32 {T2}, {T2}, {STAMP}")
    e(f"v_lshlrev_b32 {r('ta')}, 2, {r('lane')}")
    e("s_mov_b32 exec_hi, 0")
    e(f"buffer_store_dword {r('stamps')}, {r('ta')}, {r('sWS')}, {T2} offen")
    if DBG:
        e(f"s_cmp_lg_u32 {T2}, {STAMP + (DBG - 1) * 512}")
        e("s_cbranch_scc1 L_end")
        e(f"v_readfirstlane_b32 {T3}, {r('stamps')}")
        e(f"v_subrev_u32 {r('tb')}, {T3}, {r('stamps')}")
        e(f"global_store_dword {r('ta')}, {r('tb')}, {ptr(12)}")
if AMP:
    e("s_waitcnt vmcnt(0) lgkmcnt(0)")
    e("s_memrealtime s[100:101]")
    e("s_sub_u32 s98, s98, s96")
    e("s_lshl_b32 s98, s98, 1")
    e("s_waitcnt lgkmcnt(0)")
    g.label("L_amp")
    e(f"s_memrealtime {r('t45', 0, 2)}")
    e("s_waitcnt lgkmcnt(0)")
    e(f"s_sub_u32 {T1_}, {T1_}, s100")
    e(f"s_cmp_lt_u32 {T1_}, s98")
    e("s_cbranch_scc1 L_amp")
if UNTIL:
    g.label("L_until")
    e(f"s_memrealtime {r('t45', 0, 2)}")
    e("s_waitcnt lgkmcnt(0)")
    e(f"s_sub_u32 {T1_}, {T1_}, {r('t_start', 0, 1)}")
    e(f"s_cmp_lt_u32 {T1_}, {UNTIL}")
    e("s_cbranch_scc1 L_until")
PAD = int(opt.get("pad", 0))
if PAD:
    e(f"s_mov_b32 {T2}, 0")
    g.label("L_pad")
    for _ in range(120):
        e(f"v_add_u32 {r('ta')}, 1, {r('tb')}")
    e(f"s_add_u32 {T2}, {T2}, 1")
    e(f"s_cmp_lt_u32 {T2}, {PAD}")
    e("s_cbranch_scc1 L_pad")
g.label("L_end")
e("s_endpgm")
for t_ in tails:
    t_()

body = g.finish()
hdr = open("cdna_kernels/" + NAME + ".s.ref").read().split("; @launch")[0]
nv = 256 + g.hw["a"]
txt = f"""{hdr}; @launch grid=(256,1,1) block=(256,1,1) lds={LDSZ}
.amdgcn_target "amdgcn-amd-amdhsa--gfx950"
.text
.globl {NAME}_kernel
.p2align 8
.type {NAME}_kernel,@function
{NAME}_kernel:
{body}
    s_endpgm
.section .rodata,"a"
.p2align 6
.amdhsa_kernel {NAME}_kernel
  .amdhsa_next_free_vgpr {nv}
  .amdhsa_next_free_sgpr 102
  .amdhsa_accum_offset 256
  .amdhsa_group_segment_fixed_size 0
  .amdhsa_kernarg_size 112
  .amdhsa_user_sgpr_count 2
  .amdhsa_user_sgpr_kernarg_segment_ptr 1
  .amdhsa_system_sgpr_workgroup_id_x 1
.end_amdhsa_kernel
"""
import subprocess, re
open("_g.s", "w").write(txt.replace("CODE_BYTES", "0x1000"))
subprocess.check_call(["clang", "-x", "assembler", "-target", "amdgcn-amd-amdhsa", "-mcpu=gfx950", "-c", "_g.s", "-o", "_g.o"])
hh = subprocess.check_output(["llvm-objdump", "-h", "_g.o"]).decode()
size = int(re.search(r"\.text\s+([0-9a-f]+)", hh).group(1), 16)
txt = txt.replace("CODE_BYTES", str((size - 256) & ~3))
open(OUT, "w").write(txt)
print("code bytes", size, "instrs", len(g.ins), "nops", g.nops, "hw", g.hw, "stamps", nst[0], " ".join(stnames))
```

```python
import sys, struct, re
from dsl import Gen, It, win, schedule

NAME = "recurrent_scan__ssm_conv_h3__mixer_channel_mlp__prompt"
opt = dict(a.split("=") for a in sys.argv[2:])
OUT = sys.argv[1]
MAP1 = int(opt.get("map1", 4))
STAMPS = int(opt.get("stamps", 0))
KVPOL = opt.get("kvpol", "nt")
XPOL0 = opt.get("xpol", "")
KPOL = opt.get("kpol", "nt")
SPINMAX = int(opt.get("spinmax", 0))
PREDIV = int(opt.get("prediv", 16))
OPOL = opt.get("opol", "")
DBG = int(opt.get("dbg", 0))
SSET = opt.get("sset", "main")
TOUCH = int(opt.get("touch", 0))
NH0 = int(opt.get("nh0", 14))
NX0 = int(opt.get("nx0", 7))

KP = int(opt.get("kp", 4352))
KVT, HB, YT, FL, EPOCH, STAMP = 0, 0x240000, 0x800000, 0xA40000, 0xB00000, 0xC00000
F1B, F2B, F3B = FL, FL + 0x30000, FL + 0x60000
L1S, L2S, L3S = (int(opt.get(k, d)) for k, d in (("l1s", 6), ("l2s", 6), ("l3s", 6)))
G1S, G2S, G3S = max(32 << L1S, 256) + 256, max(32 << L2S, 256) + 256, max(64 << L3S, 256) + 256
STA, STB = 0xAE0000, 0xAE0010
HALT = int(opt.get("halt", "0"), 0)
WSZ = 0xD00000 + HALT
XST, KVIMG, CSX, STT = 98816, 147968, 156288, 156672
FP, GP = 4160, 4576
WR = 49664
UB0 = 66048
S3, S4 = 49664, 33280
PX = 49664
B1T, B2T = 157696, 158080
LDSZ = 158336


def f2u(x):
    return struct.unpack("<I", struct.pack("<f", x))[0]


g = Gen()
e, r = g.e, g.r
V = lambda n, c=1, **k: g.alloc("v", n, c, **k)
S = lambda n, c=1, **k: g.alloc("s", n, c, **k)
AC = lambda n, c=1, **k: g.alloc("a", n, c, **k)
W = lambda **k: It(lambda: g.wait(**k), 0.3)
E = lambda s, t=None, cost=None: It(lambda: e(s, t), cost or (1.2 if s.startswith(('ds_', 'buffer_', 'global_')) else 0.3 if s.startswith('s_') else 1))


def run(items):
    for it in items:
        it()


def weave(main, *bgs):
    slots = [[] for _ in main]
    for items, a, b in bgs:
        b = min(b, len(main) - 1)
        n = len(items)
        for k, it in enumerate(items):
            slots[a + (k * (b - a + 1)) // max(n, 1)].append(it)
    out = []
    for m, s in zip(main, slots):
        out.append(m)
        out.extend(s)
    return out


S("karg", 2, at=0); S("wg", 1, at=2); S("t0", 1, at=3)
S("t45", 4, at=4)
for i_ in range(14):
    S(f"ptr{i_}", 2, at=8 + 2 * i_)
V("tid", 1, at=0)
nst = [0]
stnames = []
pend = []
if STAMPS:
    S("st", 8, at=94, align=2)
    V("stamps", 1, at=1)


def flush_stamps(force=False):
    if pend and (force or len(pend) == 4) and g.smem_out:
        g.wait(lg=0)
    if not g.smem_out:
        for k in pend:
            e(f"v_writelane_b32 {r('stamps')}, {r('st', 2 * (k % 4), 1)}, {k}")
        pend.clear()


AMP = opt.get("amp", "")


def stamp(name, grp="main"):
    if AMP and grp == "main" and name in ("start", AMP):
        so_ = g.smem_out
        e(f"s_memrealtime s[{96 if name == 'start' else 98}:{97 if name == 'start' else 99}]")
        if name != "start":
            g.smem_out = so_
    if STAMPS and (grp == SSET or name in ("start", "end")) and name not in opt.get("skip", "").split(","):
        assert nst[0] < 32
        if STAMPS == 3:
            if len(pend) == 3:
                k = pend.pop(0)
                e(f"v_writelane_b32 {r('stamps')}, {r('st', 2 * (k % 4), 1)}, {k}")
            so_ = g.smem_out
            e(f"s_memtime {r('st', 2 * (nst[0] % 4), 2)}")
            g.smem_out = so_
            pend.append(nst[0]); nst[0] += 1; stnames.append(name)
            return
        flush_stamps()
        e(f"{'s_memtime' if STAMPS == 2 else 's_memrealtime'} {r('st', 2 * (nst[0] % 4), 2)}")
        pend.append(nst[0])
        nst[0] += 1
        stnames.append(name)


_wait = g.wait
_wn = [0]
VM0 = int(opt.get("vm0", 0))


def wait_hook(vm=None, lg=None):
    hook = SSET == "vm" and vm is not None and not str(vm).startswith("H")
    if hook:
        _wn[0] += 1
        hook = VM0 < _wn[0] <= VM0 + 15
    if hook:
        stamp(f"b{vm}", "vm")
    _wait(vm=vm, lg=lg)
    if hook:
        stamp(f"a{vm}", "vm")


g.wait = wait_hook


def ptr(i):
    if i == 13 and "ptr13" not in g.names:
        return r("sWS", 0, 2)
    return r(f"ptr{i}")


def plo(i):
    return "s" + ptr(i)[2:].split(":")[0]


def phi(i):
    return "s" + ptr(i).split(":")[1][:-1]


def srd(name, pi, nbytes, add=None):
    if add is None:
        e(f"s_mov_b64 {r(name,0,2)}, {ptr(pi)}")
    else:
        e(f"s_add_u32 {r(name,0,1)}, {plo(pi)}, {add}")
        e(f"s_addc_u32 {r(name,1,1)}, {phi(pi)}, 0")
    e(f"s_mov_b32 {r(name,2,1)}, {nbytes}")
    e(f"s_mov_b32 {r(name,3,1)}, 0x00020000")


T0, T1_, T2, T3, T4 = "s3", "s4", "s5", "s6", "s7"
ABL = opt.get("abl", "").split(",")
_e0 = g.e


LATE = None


def e(text, tag=None):
    if LATE is not None:
        LATE.append(text)
        return
    t = tag or ""
    if ("x" in ABL and t.startswith("X") and t != "X0") or ("w" in ABL and t.startswith("W") and t != "W0") or \
            ("v" in ABL and t.startswith("V")):
        g.vm.append(tag)
        g.vm.pop()
        g.vm.insert(0, tag)
        return
    hook = SSET == "iss" and (text.startswith(("buffer_", "global_", "s_barrier")) or (text.startswith("s_waitcnt") and "vmcnt" in text))
    if hook:
        _in[0] += 1
        hook = VM0 < _in[0] <= VM0 + 15
    if hook:
        stamp("b" + (tag or text.split()[0][2:6]), "iss")
    _e0(text, tag)
    if hook:
        stamp("a", "iss")


_in = [0]
g.e = e


UNTIL = int(opt.get("until", 0))
if UNTIL:
    S("t_start", 2, at=92)
    e(f"s_memrealtime {r('t_start')}")
stamp("start")
e("s_load_dwordx16 s[8:23], s[0:1], 0")
e("s_load_dwordx8 s[24:31], s[0:1], 64")
e("s_load_dwordx4 s[32:35], s[0:1], 96")
e("s_cmp_ge_u32 s2, 256")
e("s_cbranch_scc1 L_end")
for n in ("lane", "ta", "tb", "tc", "td", "r8", "pc", "zero", "i15", "h4", "l16", "oa", "fa", "ga", "pa", "yw", "zs", "zt",
          "pf1o", "pf2o", "pf3o", "psr", "svr", "kw", "za", "sgo", "csr0", "stw"):
    V(n)
V("vtag", 4); V("xs", 4, align=1); V("w2s", 4, align=1); V("w2r", 8, align=1); V("hv", 4, align=1)
V("pw", 3, align=1); V("ea", 4, align=1); V("pf", 2)
V("xrd", 2, align=1); V("w1r", 6, align=1); V("ctr", 3, align=1); V("w1s", 3, align=1)
AC("fd", 4, at=240); AC("ones", 4, at=244); AC("zz", 4, at=248)
for n in ("wave", "T1", "q", "tt2", "ns", "rot", "b0", "nown", "tok16", "ns128", "tile0", "own", "hmask", "so",
          "f1a", "f2a", "f3a", "yo", "zo", "um0", "ush"):
    S(n)
sh_ = PREDIV.bit_length() - 1
V("pre")
e(f"s_lshr_b32 {T1_}, s2, 3")
e(f"v_lshrrev_b32 {r('tc')}, {sh_}, v0")
e(f"s_and_b32 {T2}, {T1_}, {PREDIV - 1}")
e(f"v_lshl_add_u32 {r('tc')}, {r('tc')}, {sh_}, {T2}")
e(f"v_lshlrev_b32 {r('tc')}, 7, {r('tc')}")
e(f"v_min_u32 {r('tc')}, CODE_BYTES, {r('tc')}")
e(f"s_getpc_b64 {r('t45', 2, 2)}")
e(f"global_load_dword {r('pre')}, {r('tc')}, {r('t45', 2, 2)}", "pre")
e(f"v_and_b32 {r('lane')}, 63, v0")
e(f"v_lshrrev_b32 {r('ta')}, 6, v0")
e(f"s_and_b32 {T0}, s2, 7")
e(f"v_readfirstlane_b32 {r('wave')}, {r('ta')}")
if MAP1 == 8:
    e(f"s_lshr_b32 {T2}, {T1_}, 4")
    e(f"s_lshl_b32 {r('T1')}, {T0}, 1")
    e(f"s_add_u32 {r('T1')}, {r('T1')}, {T2}")
    e(f"s_and_b32 {r('q')}, {T1_}, 15")
    e(f"s_lshl_b32 {T2}, {T2}, 2")
    e(f"s_add_u32 {r('rot')}, {T2}, {r('q')}")
else:
    e(f"s_lshr_b32 {T2}, {T0}, 1")
    e(f"s_lshl_b32 {T2}, {T2}, 2")
    e(f"s_lshr_b32 {T3}, {T1_}, 3")
    e(f"s_add_u32 {r('T1')}, {T2}, {T3}")
    e(f"s_and_b32 {T2}, {T0}, 1")
    e(f"s_lshl_b32 {T2}, {T2}, 3")
    e(f"s_add_u32 {T3}, {T1_}, {int(opt.get('jrot', 0))}")
    e(f"s_and_b32 {T3}, {T3}, 7")
    e(f"s_add_u32 {r('q')}, {T2}, {T3}")
    e(f"s_lshl_b32 {T2}, {r('T1')}, 1")
    e(f"s_add_u32 {r('rot')}, {T2}, {r('q')}")
e(f"s_and_b32 {r('rot')}, {r('rot')}, 7")
e(f"s_lshr_b32 {T2}, {r('q')}, 3")
e(f"s_lshl_b32 {r('tt2')}, {r('T1')}, 1")
e(f"s_add_u32 {r('tt2')}, {r('tt2')}, {T2}")
e(f"s_and_b32 {r('ns')}, {r('q')}, 7")
V("k0"); V("kd", 2, align=1); V("sho")
e(f"v_lshrrev_b32 {r('r8')}, 3, {r('lane')}")
e(f"v_and_b32 {r('pc')}, 7, {r('lane')}")
e(f"s_lshl_b32 {T2}, {r('tt2')}, 2")
e(f"s_add_u32 {r('tok16')}, {T2}, {r('wave')}")
e(f"s_lshl_b32 {T2}, {r('tok16')}, 14")
e(f"s_lshl_b32 {r('ns128')}, {r('ns')}, 7")
e(f"s_add_u32 {r('tile0')}, {T2}, {r('ns128')}")
e(f"s_mul_i32 {r('own')}, {r('wave')}, 12288")
e(f"s_add_u32 {r('own')}, {r('own')}, {XST}")
S("sA", 4); S("sB", 4); S("sX", 4); S("sW1", 4); S("sWS", 4)
for nm, sz in (("sX", 2097152), ("sW1", 1409024)):
    e(f"s_mov_b32 {r(nm,2,1)}, {sz}")
    e(f"s_mov_b32 {r(nm,3,1)}, 0x00020000")
e(f"s_mul_i32 {r('b0')}, {r('q')}, 3")
e(f"s_lshr_b32 {T2}, {r('q')}, 2")
e(f"s_sub_u32 {r('b0')}, {r('b0')}, {T2}")
e(f"s_min_u32 {T2}, {r('q')}, 1")
e(f"s_sub_u32 {r('b0')}, {r('b0')}, {T2}")
e(f"s_bitcmp1_b32 0x8889, {r('q')}")
e(f"s_cselect_b32 {r('nown')}, 2, 3")
ZOWN = int(opt.get("zown", 1))
e(f"s_lshl_b32 {T3}, {r('nown')}, 2")
for c in range(3):
    e(f"v_add_u32 {r('ta')}, {64 * c}, {r('lane')}")
    e(f"v_mul_u32_u24 {r('tb')}, 43691, {r('ta')}")
    e(f"v_lshrrev_b32 {r('tb')}, 19, {r('tb')}")
    e(f"v_mul_u32_u24 {r('tc')}, 12, {r('tb')}")
    e(f"v_sub_u32 {r('tc')}, {r('ta')}, {r('tc')}")
    e(f"v_lshrrev_b32 {r('td')}, 2, {r('tb')}")
    e(f"v_and_b32 {r('td')}, 2, {r('td')}")
    e(f"v_xor_b32 {r('tc')}, {r('tc')}, {r('td')}")
    e(f"v_mul_u32_u24 {r('tb')}, 2752, {r('tb')}")
    e(f"v_lshl_add_u32 {r('tb')}, {r('tc')}, 4, {r('tb')}")
    if ZOWN:
        e(f"v_cmp_le_u32 vcc, {T3}, {r('tc')}")
        e(f"v_subrev_u32 {r('tb')}, {1024 * c}, {r('tb')}")
        e(f"v_bfrev_b32 {r('td')}, 2")
        e(f"v_cndmask_b32 {r('w1s', c, 1)}, {r('tb')}, {r('td')}, vcc")
    else:
        e(f"v_subrev_u32 {r('w1s', c, 1)}, {1024 * c}, {r('tb')}")
S("w1lds"); S("xbase"); S("xk"); S("wo"); S("wlim")
e(f"s_lshl_b32 {T3}, {r('b0')}, 6")
e(f"s_lshl_b32 {T2}, {r('T1')}, 2")
e(f"s_add_u32 {T2}, {T2}, {r('wave')}")
e(f"s_lshl_b32 {r('xbase')}, {T2}, 15")
e(f"s_lshl_b32 {r('xk')}, {r('rot')}, 7")
e(f"s_mul_i32 {T4}, {r('wave')}, {16 * 2752}")
e(f"s_add_u32 {T4}, {T4}, {T3}")
e(f"s_add_u32 {r('wlim')}, {T4}, {512 * 2752}")
e(f"s_mul_i32 {T2}, {r('rot')}, {64 * 2752}")
e(f"s_add_u32 {r('wo')}, {T2}, {T4}")
e(f"s_mul_i32 {r('w1lds')}, {r('wave')}, 3072")
e(f"s_add_u32 {r('w1lds')}, {r('w1lds')}, {WR}")
e(f"v_lshrrev_b32 {r('ta')}, 1, {r('r8')}")
e(f"v_xor_b32 {r('ta')}, {r('ta')}, {r('pc')}")
e(f"v_lshlrev_b32 {r('ta')}, 4, {r('ta')}")
e(f"v_lshl_add_u32 {r('xs', 0, 1)}, {r('r8')}, 10, {r('ta')}")
e(f"v_xor_b32 {r('tb')}, 64, {r('xs', 0, 1)}")
e(f"v_add_u32 {r('xs', 1, 1)}, 7168, {r('tb')}")
e(f"v_add_u32 {r('xs', 2, 1)}, {2 * 7168}, {r('xs', 0, 1)}")
e(f"v_add_u32 {r('xs', 3, 1)}, {3 * 7168}, {r('tb')}")
g.wait(lg=0)
e(f"s_mov_b64 {r('sX',0,2)}, {ptr(0)}")
e(f"s_mov_b64 {r('sW1',0,2)}, {ptr(7)}")


def dmaW1(n):
    items = []
    for c in range(3):
        def it(c=c):
            if c == 0:
                e(f"s_add_u32 m0, {r('w1lds')}, {(n % 4) * 12288}")
                if n:
                    e(f"s_cmp_ge_u32 {r('wo')}, {r('wlim')}")
                    e(f"s_cselect_b32 {T2}, {512 * 2752}, 0")
                    e(f"s_sub_u32 {r('wo')}, {r('wo')}, {T2}")
            e(f"buffer_load_dwordx4 {r('w1s', c, 1)}, {r('sW1')}, {r('wo')} offen offset:{1024 * c} lds", f"W{n}")
            if c == 2:
                e(f"s_add_u32 {r('wo')}, {r('wo')}, {64 * 2752}")
        items.append(It(it, (2, 1.2, 1.5)[c]))
    return items


def dmaX(ei):
    items = []
    for n in range(4):
        def it(n=n):
            xo = r("so")
            if n == 0:
                e(f"s_add_u32 m0, {r('own')}, {(ei % 3) * 4096}")
                e(f"s_or_b32 {xo}, {r('xk')}, {r('xbase')}")
            pol = XPOL0 if ei < 1 else ""
            e(f"buffer_load_dwordx4 {r('xs', n, 1)}, {r('sX')}, {xo} offen offset:{1024 * n} {pol} lds", f"X{ei}")
            if n == 1:
                e(f"s_add_u32 {r('xk')}, {r('xk')}, 128")
            if n == 2:
                e(f"s_and_b32 {r('xk')}, {r('xk')}, 0x3ff")
        items.append(It(it, (1.8, 1.5, 1.5, 1.2)[n]))
    return items


srd("sWS", 13, WSZ, add=(int(opt.get("wsb", 0)) << 20) or None)
V("sx", 8, at=200); V("sacc", 4); V("u", 4); V("gq", 4); V("stv", 2)
e(f"v_mov_b32 {r('zero')}, 0")
e(f"s_mov_b32 {T0}, {EPOCH}")
e("s_mov_b64 exec, 1")
e(f"buffer_load_dwordx2 {r('pf')}, {r('zero')}, {r('sWS')}, {T0} offen sc1", "ep")
e("s_mov_b64 exec, -1")
e(f"v_lshrrev_b32 {r('ta')}, 5, {r('lane')}")
e(f"v_and_b32 {r('tb')}, 31, {r('lane')}")
e(f"v_lshlrev_b32 {r('tb')}, 4, {r('tb')}")
e(f"v_lshl_add_u32 {r('tb')}, {r('ta')}, 10, {r('tb')}")
e(f"s_lshl_b32 {T2}, {r('T1')}, 4")
e(f"s_add_u32 {T2}, {T2}, {r('q')}")
e(f"s_lshl_b32 {T2}, {T2}, 2")
e(f"s_add_u32 {T2}, {T2}, {r('wave')}")
e(f"s_lshl_b32 {T3}, {T2}, 11")
e(f"buffer_load_dwordx4 {r('sx', 0, 4)}, {r('tb')}, {r('sX')}, {T3} offen", "sx")
e(f"buffer_load_dwordx4 {r('sx', 4, 4)}, {r('tb')}, {r('sX')}, {T3} offen offset:512", "sx")
e(f"s_lshl_b32 {T2}, {T2}, 6")
e(f"s_add_u32 {T2}, {T2}, {STA}")
e(f"v_lshl_add_u32 {r('stw')}, {r('lane')}, 4, {T2}")
run(dmaX(0) + dmaW1(0) + dmaW1(1))
S("sD")
e(f"s_lshl_b32 {T2}, s2, 2")
e(f"s_load_dword {r('sD')}, {ptr(5)}, {T2}")
stamp("p0iss")
g.free("ptr0", "ptr6", "ptr7", "ptr13", "karg", "rot", "ptr5")
S("tag", 2)
if not DBG:
    g.free("ptr12")
e(f"v_lshlrev_b32 {r('tb')}, 4, {r('pc')}")
e(f"v_lshl_add_u32 {r('ta')}, {r('r8')}, 11, {r('tb')}")
KVX = int(opt.get("kvx", 4))
e(f"s_xor_b32 {T4}, {r('tile0')}, {128 * KVX}")
e(f"v_add_u32 {r('k0')}, {T4}, {r('ta')}")
e(f"v_lshl_add_u32 {r('ta')}, {r('r8')}, 10, {r('tb')}")
e(f"v_add_u32 {r('kd', 1, 1)}, {T4}, {r('ta')}")
e(f"v_subrev_u32 {r('kd', 0, 1)}, 8192, {r('kd', 1, 1)}")
e(f"v_lshlrev_b32 {r('l16')}, 4, {r('lane')}")
e(f"s_lshl_b32 {T3}, {r('ns')}, 9")
e(f"s_xor_b32 {T3}, {T3}, {512 * KVX}")
e(f"v_add_u32 {r('sho')}, {T3}, {r('l16')}")
e(f"v_mov_b32 {r('zero')}, 0")
S("wodd"); S("whi"); S("chan"); V("sa"); V("sb"); V("bb", 2, align=1)
e(f"s_and_b32 {r('wodd')}, {r('wave')}, 1")
e(f"s_lshr_b32 {r('whi')}, {r('wave')}, 1")
e(f"s_lshl_b32 {T2}, s2, 1")
e(f"s_add_u32 {r('chan')}, {T2}, {r('whi')}")
e(f"s_lshl_b32 {r('chan')}, {r('chan')}, 12")
e(f"s_add_u32 {plo(4)}, {plo(4)}, {r('chan')}")
e(f"s_addc_u32 {phi(4)}, {phi(4)}, 0")
e(f"s_lshl_b32 {T3}, {r('wodd')}, 11")
e(f"v_add_u32 {r('sa')}, {T3}, {r('l16')}")
e(f"v_subrev_u32 {r('sb')}, 8, {r('sa')}")
S("kim")
e(f"s_lshl_b32 {r('kim')}, {r('wave')}, 12")
e(f"s_add_u32 {r('kim')}, {r('kim')}, {S4}")
srd("sA", 1, 2097152)
srd("sB", 2, 2097152)
g.free("ptr1", "ptr2")
lateA, lateB, lateC = [], [], []
S("L0"); S("L2"); S("L3"); S("L4")
V("kvw"); V("kvr"); V("kvs"); V("kra"); V("sra"); V("bw", 2, align=1)
e(f"v_and_b32 {r('i15')}, 15, {r('lane')}")
e(f"v_lshrrev_b32 {r('h4')}, 4, {r('lane')}")
e(f"v_add_u32 {r('oa')}, {r('own')}, {r('l16')}")
e(f"v_lshlrev_b32 {r('ta')}, 4, {r('pc')}")
e(f"v_lshl_add_u32 {r('ta')}, {r('r8')}, 8, {r('ta')}")
e(f"v_add_u32 {r('kra')}, {r('kim')}, {r('ta')}")
e(f"v_lshl_add_u32 {r('sra')}, {r('pc')}, 6, {r('kim')}")
e(f"v_lshrrev_b32 {r('ta')}, 1, {r('i15')}")
e(f"v_xor_b32 {r('ta')}, {r('ta')}, {r('h4')}")
e(f"v_lshlrev_b32 {r('ta')}, 4, {r('ta')}")
e(f"v_lshl_add_u32 {r('ta')}, {r('i15')}, 7, {r('ta')}")
e(f"v_add_u32 {r('xrd', 0, 1)}, {r('own')}, {r('ta')}")
e(f"v_xor_b32 {r('xrd', 1, 1)}, 64, {r('xrd', 0, 1)}")
e(f"v_lshrrev_b32 {r('ta')}, 2, {r('i15')}")
e(f"v_lshl_add_u32 {r('ta')}, {r('h4')}, 3, {r('ta')}")
e(f"v_mul_u32_u24 {r('ta')}, 192, {r('ta')}")
e(f"v_and_b32 {r('tb')}, 3, {r('lane')}")
e(f"v_lshl_add_u32 {r('ta')}, {r('tb')}, 3, {r('ta')}")
e(f"v_add_u32 {r('ta')}, {WR}, {r('ta')}")
e(f"v_and_b32 {r('tb')}, 1, {r('h4')}")
e(f"v_lshlrev_b32 {r('tb')}, 5, {r('tb')}")
e(f"v_add_u32 {r('tc')}, {r('ta')}, {r('tb')}")
e(f"v_sub_u32 {r('td')}, {r('ta')}, {r('tb')}")
S("bp", 3, align=1)
for jp in range(3):
    e(f"s_add_u32 {T2}, {r('wave')}, {jp}")
    e(f"s_cmp_ge_u32 {T2}, 3")
    e(f"s_cselect_b32 {T3}, 3, 0")
    e(f"s_sub_u32 {r('bp', jp, 1)}, {T2}, {T3}")
    e(f"s_lshl_b32 {T2}, {r('bp', jp, 1)}, 6")
    e(f"v_add_u32 {r('w1r', 2 * jp, 1)}, {T2}, {r('tc')}")
    e(f"v_add_u32 {r('w1r', 2 * jp + 1, 1)}, {T2}, {r('td')}")
e(f"v_mul_u32_u24 {r('ta')}, 1040, {r('pc')}")
e(f"v_lshlrev_b32 {r('tb')}, 2, {r('r8')}")
e(f"v_sub_u32 {r('ta')}, {r('ta')}, {r('tb')}")
e(f"s_lshl_b32 {T2}, {r('wave')}, 5")
e(f"s_sub_u32 {T2}, {KVIMG + 124}, {T2}")
e(f"v_add_u32 {r('kvw')}, {T2}, {r('ta')}")
e(f"s_mul_i32 {T2}, {r('wave')}, 2080")
e(f"s_add_u32 {T2}, {T2}, {KVIMG}")
e(f"v_add_u32 {r('kvr')}, {T2}, {r('l16')}")
e(f"v_mul_u32_u24 {r('ta')}, {KP}, {r('r8')}")
e(f"v_lshl_add_u32 {r('kvs')}, {r('pc')}, 4, {r('ta')}")
e(f"v_mov_b32 {r('ta')}, 0x3f803f80")
for i in range(4):
    e(f"v_accvgpr_write_b32 {r('ones', i, 1)}, {r('ta')}")
e(f"s_mov_b32 {r('hmask')}, 0xffff0000")
S("kvo")
e(f"s_lshl_b32 {T2}, {r('ns')}, 2")
e(f"s_xor_b32 {T2}, {T2}, {4 * KVX}")
e(f"s_add_u32 {T2}, {T2}, {r('wave')}")
e(f"s_mul_i32 {r('f1a')}, {T2}, {G1S}")
e(f"s_lshl_b32 {T3}, {r('tt2')}, {L1S}")
e(f"s_add_u32 {r('f1a')}, {r('f1a')}, {T3}")
e(f"s_add_u32 {r('f1a')}, {r('f1a')}, {F1B}")
e(f"s_mul_i32 {T2}, {T2}, {16 * KP}")
e(f"s_sub_u32 {T3}, 31, {r('tt2')}")
e(f"s_lshl_b32 {T3}, {T3}, 7")
e(f"s_add_u32 {r('kvo')}, {T2}, {T3}")
LATE = lateB
e(f"s_lshl_b32 {T2}, {r('T1')}, 1")
e(f"s_add_u32 {T2}, {T2}, {r('whi')}")
e(f"s_mul_i32 {r('f2a')}, {T2}, {G2S}")
e(f"s_lshl_b32 {T2}, {r('q')}, 1")
e(f"s_add_u32 {T2}, {T2}, {r('wodd')}")
e(f"s_lshl_b32 {T2}, {T2}, {L2S}")
e(f"s_add_u32 {r('f2a')}, {r('f2a')}, {T2}")
e(f"s_add_u32 {r('f2a')}, {r('f2a')}, {F2B}")
e(f"s_lshr_b32 {T2}, {r('chan')}, 18")
e(f"s_lshl_b32 {T2}, {T2}, 1")
e(f"s_add_u32 {T2}, {T2}, {r('wodd')}")
e(f"s_mul_i32 {r('f3a')}, {T2}, {G3S}")
e(f"s_lshr_b32 {T2}, {r('chan')}, 12")
e(f"s_and_b32 {T2}, {T2}, 63")
e(f"s_lshl_b32 {T2}, {T2}, {L3S}")
e(f"s_add_u32 {r('f3a')}, {r('f3a')}, {T2}")
e(f"s_add_u32 {r('f3a')}, {r('f3a')}, {F3B}")
e(f"v_lshlrev_b32 {r('tc')}, 3, {r('lane')}")
e(f"v_add_u32 {r('zt')}, {r('own')}, {r('tc')}")
e(f"s_mul_i32 {T2}, {T1_}, {G1S}")
e(f"s_add_u32 {T2}, {T2}, {F1B}")
e(f"v_lshrrev_b32 {r('pf1o')}, 1, {r('lane')}")
e(f"v_lshl_add_u32 {r('pf1o')}, {r('pf1o')}, {L1S}, {T2}")
e(f"s_lshr_b32 {T2}, {r('tt2')}, 4")
e(f"s_lshl_b32 {T3}, {r('ns')}, 1")
e(f"s_add_u32 {T2}, {T2}, {T3}")
e(f"s_mul_i32 {T2}, {T2}, {G3S}")
e(f"s_add_u32 {T2}, {T2}, {F3B}")
e(f"v_lshl_add_u32 {r('pf3o')}, {r('lane')}, {L3S}, {T2}")
e(f"v_min_u32 {r('pf2o')}, 9, {r('lane')}")
e(f"s_lshl_b32 {T2}, {r('wave')}, 3")
e(f"v_add_u32 {r('pf2o')}, {T2}, {r('pf2o')}")
e(f"v_min_u32 {r('pf2o')}, 31, {r('pf2o')}")
e(f"s_mul_i32 {T2}, {r('tt2')}, {G2S}")
e(f"s_add_u32 {T2}, {T2}, {F2B}")
e(f"v_lshl_add_u32 {r('pf2o')}, {r('pf2o')}, {L2S}, {T2}")
LATE = None
e(f"v_min_u32 {r('ta')}, 47, {r('lane')}")
e(f"v_lshlrev_b32 {r('bw', 0, 1)}, 3, {r('ta')}")
e(f"v_add_u32 {r('bw', 0, 1)}, {B1T}, {r('bw', 0, 1)}")
e(f"s_lshl_b32 {T2}, {r('b0')}, 6")
e(f"v_lshl_add_u32 {r('bb', 0, 1)}, {r('ta')}, 2, {T2}")
e(f"v_min_u32 {r('bb', 0, 1)}, 2748, {r('bb', 0, 1)}")
e(f"v_and_b32 {r('ta')}, 31, {r('lane')}")
e(f"v_lshlrev_b32 {r('bw', 1, 1)}, 3, {r('ta')}")
e(f"v_add_u32 {r('bw', 1, 1)}, {B2T}, {r('bw', 1, 1)}")
e(f"v_lshl_add_u32 {r('bb', 1, 1)}, {r('ta')}, 2, {r('ns128')}")
LATE = lateA
e(f"v_and_b32 {r('ta')}, 6, {r('r8')}")
e(f"v_xor_b32 {r('ta')}, {r('ta')}, {r('pc')}")
e(f"v_lshlrev_b32 {r('ta')}, 4, {r('ta')}")
e(f"v_lshl_add_u32 {r('w2s', 0, 1)}, {r('r8')}, 10, {r('ta')}")
e(f"v_add_u32 {r('w2s', 0, 1)}, {r('ns128')}, {r('w2s', 0, 1)}")
for n in range(1, 4):
    e(f"v_add_u32 {r('w2s', n, 1)}, {7168 * n}, {r('w2s', 0, 1)}")
e(f"v_lshrrev_b32 {r('ta')}, 2, {r('i15')}")
e(f"v_lshl_add_u32 {r('ta')}, {r('h4')}, 2, {r('ta')}")
e(f"v_lshrrev_b32 {r('tb')}, 1, {r('ta')}")
e(f"v_and_b32 {r('tb')}, 3, {r('tb')}")
e(f"v_lshlrev_b32 {r('tb')}, 5, {r('tb')}")
e(f"v_lshl_add_u32 {r('tb')}, {r('ta')}, 7, {r('tb')}")
e(f"v_and_b32 {r('ta')}, 3, {r('lane')}")
e(f"v_lshl_add_u32 {r('tb')}, {r('ta')}, 3, {r('tb')}")
e(f"v_add_u32 {r('w2r', 0, 1)}, {r('own')}, {r('tb')}")
S("w4k")
e(f"s_lshl_b32 {r('w4k')}, {r('wave')}, 12")
e(f"v_add_u32 {r('w2r', 4, 1)}, {r('w4k')}, {r('tb')}")
for nb in range(1, 4):
    e(f"v_xor_b32 {r('w2r', nb, 1)}, {32 * nb}, {r('w2r', 0, 1)}")
    e(f"v_xor_b32 {r('w2r', 4 + nb, 1)}, {32 * nb}, {r('w2r', 4, 1)}")
for p in range(11):
    S(f"kb{p}")
e(f"s_lshr_b32 {T0}, {T1_}, 3")
e(f"s_mul_i32 {T0}, {T0}, 3")
e(f"s_mul_i32 {T2}, {r('ns')}, 11")
e(f"s_lshr_b32 {T2}, {T2}, 3")
e(f"s_add_u32 {T0}, {T0}, {T2}")
e(f"s_cmp_ge_u32 {T0}, 11")
e(f"s_cselect_b32 {T2}, 11, 0")
e(f"s_sub_u32 {T0}, {T0}, {T2}")
e(f"s_mul_i32 {T3}, {r('wave')}, 11")
e(f"s_add_u32 {T0}, {T0}, {T3}")
e(f"s_add_u32 {T3}, {T3}, 11")
for p in range(11):
    e(f"s_lshl_b32 {r(f'kb{p}')}, {T0}, 15")
    if p < 10:
        e(f"s_add_u32 {T0}, {T0}, 1")
        e(f"s_cmp_ge_u32 {T0}, {T3}")
        e(f"s_cselect_b32 {T2}, 11, 0")
        e(f"s_sub_u32 {T0}, {T0}, {T2}")
LATE = None
LATE = lateB
e(f"v_and_b32 {r('ta')}, 3, {r('lane')}")
e(f"v_mul_u32_u24 {r('fa')}, {FP}, {r('ta')}")
e(f"v_lshrrev_b32 {r('tb')}, 2, {r('i15')}")
e(f"v_add_u32 {r('tb')}, {r('tb')}, {r('h4')}")
e(f"v_lshl_add_u32 {r('fa')}, {r('tb')}, 4, {r('fa')}")
e(f"s_lshl_b32 {T4}, {r('wodd')}, 8")
e(f"s_mul_i32 {T2}, {r('whi')}, {4 * FP}")
e(f"s_add_u32 {T3}, {T4}, {T2}")
e(f"v_add_u32 {r('fa')}, {T3}, {r('fa')}")
e(f"v_and_b32 {r('tc')}, 1, {r('lane')}")
e(f"v_mul_u32_u24 {r('ga')}, {GP}, {r('tc')}")
e(f"v_lshrrev_b32 {r('td')}, 1, {r('i15')}")
e(f"v_lshlrev_b32 {r('td')}, 2, {r('td')}")
e(f"v_sub_u32 {r('td')}, {r('h4')}, {r('td')}")
e(f"v_add_u32 {r('td')}, 28, {r('td')}")
e(f"v_lshl_add_u32 {r('ga')}, {r('td')}, 4, {r('ga')}")
e(f"s_mul_i32 {T3}, {r('whi')}, {2 * GP}")
e(f"s_add_u32 {T3}, {T3}, {T4}")
e(f"s_add_u32 {T3}, {T3}, {UB0}")
e(f"v_add_u32 {r('ga')}, {T3}, {r('ga')}")
e(f"s_lshl_b32 {T3}, {r('whi')}, 4")
e(f"s_lshr_b32 {r('sD')}, {r('sD')}, {T3}")
e(f"s_and_b32 {r('sD')}, {r('sD')}, 0xffff")
e(f"s_cmp_eq_u32 {r('wodd')}, 0")
e(f"s_cselect_b32 {r('sD')}, {r('sD')}, 0")
e(f"v_xor_b32 {r('tc')}, 1, {r('tc')}")
e(f"v_lshlrev_b32 {r('tc')}, 4, {r('tc')}")
e(f"v_lshlrev_b32_e64 {r('tc')}, {r('tc')}, {r('sD')}")
e(f"v_cmp_eq_u32 vcc, 3, {r('tb')}")
e(f"v_cndmask_b32 {r('tc')}, 0, {r('tc')}, vcc")
e(f"v_cmp_lt_u32 vcc, 1, {r('ta')}")
e(f"v_cndmask_b32 {r('td')}, 0, {r('tc')}, vcc")
e(f"v_sub_u32 {r('tc')}, {r('tc')}, {r('td')}")
e(f"v_accvgpr_write_b32 {r('fd', 0, 1)}, {r('td')}")
e(f"v_accvgpr_write_b32 {r('fd', 1, 1)}, {r('tc')}")
e(f"v_accvgpr_write_b32 {r('fd', 2, 1)}, 0")
e(f"v_accvgpr_write_b32 {r('fd', 3, 1)}, 0")
e(f"s_add_u32 {T3}, {T2}, 48")
e(f"v_add_u32 {r('kw')}, {T3}, {r('sa')}")
e(f"s_mul_i32 {r('um0')}, {r('wave')}, {GP}")
e(f"s_add_u32 {r('um0')}, {r('um0')}, {UB0}")
e(f"s_lshl_b32 {T3}, {r('wodd')}, 3")
e(f"s_sub_u32 {r('ush')}, 8, {T3}")
e(f"s_add_u32 {T4}, {r('um0')}, 4096")
e(f"v_add_u32 {r('za')}, {T4}, {r('l16')}")
e(f"v_subrev_u32 {r('ta')}, 28, {r('lane')}")
e(f"v_min_u32 {r('ta')}, 5, {r('ta')}")
e(f"v_cmp_lt_u32 vcc, 2, {r('ta')}")
e(f"v_lshlrev_b32 {r('ta')}, 4, {r('ta')}")
e(f"v_add_u32 {r('tb')}, {FP - 48}, {r('ta')}")
e(f"v_cndmask_b32 {r('ta')}, {r('ta')}, {r('tb')}, vcc")
e(f"s_mul_i32 {T3}, {r('wave')}, {2 * FP}")
e(f"v_add_u32 {r('ta')}, {T3}, {r('ta')}")
e(f"v_cmp_lt_u32 vcc, 27, {r('lane')}")
e(f"v_cndmask_b32 {r('za')}, {r('za')}, {r('ta')}, vcc")
e(f"s_xor_b32 {T2}, {r('wave')}, 1")
e(f"s_mul_i32 {T2}, {T2}, 12288")
e(f"s_add_u32 {T2}, {T2}, {XST}")
e(f"v_add_u32 {r('pa')}, {T2}, {r('l16')}")
e(f"v_lshrrev_b32 {r('ta')}, 1, {r('i15')}")
e(f"v_lshlrev_b32 {r('ta')}, 6, {r('ta')}")
e(f"v_and_b32 {r('tb')}, 1, {r('lane')}")
e(f"v_lshl_add_u32 {r('ta')}, {r('tb')}, 3, {r('ta')}")
e(f"v_lshl_add_u32 {r('ta')}, {r('h4')}, 4, {r('ta')}")
e(f"v_add_u32 {r('yw')}, {r('own')}, {r('ta')}")
e(f"s_lshl_b32 {T3}, {r('wodd')}, 11")
e(f"s_lshr_b32 {r('chan')}, {r('chan')}, 12")
e(f"s_mul_i32 {r('chan')}, {r('chan')}, {KP}")
e(f"s_add_u32 {T2}, {r('chan')}, {T3}")
e(f"s_add_u32 {r('yo')}, {T2}, {YT}")
LATE = None
LATE = lateC
e(f"v_lshrrev_b32 {r('zs')}, 1, {r('lane')}")
e(f"v_mul_u32_u24 {r('zs')}, {KP}, {r('zs')}")
e(f"v_and_b32 {r('tb')}, 1, {r('lane')}")
e(f"v_lshl_add_u32 {r('zs')}, {r('tb')}, 4, {r('zs')}")
e(f"s_mul_i32 {T2}, {r('ns')}, {64 * KP}")
e(f"s_lshl_b32 {T3}, {r('tok16')}, 5")
e(f"s_add_u32 {T2}, {T2}, {T3}")
e(f"s_add_u32 {r('zo')}, {T2}, {YT}")
for s in range(4):
    e(f"s_add_u32 {T2}, {r('wave')}, {s + 1}")
    e(f"s_and_b32 {T2}, {T2}, 3")
    e(f"s_mul_i32 {T3}, {T2}, 12288")
    if s < 3:
        if PX + 4096 * s:
            e(f"s_add_u32 {T3}, {T3}, {PX + 4096 * s}")
        e(f"v_lshl_add_u32 {r('pw', s, 1)}, {r('lane')}, 3, {T3}")
    else:
        e(f"s_add_u32 {T3}, {T3}, {PX}")
        e(f"v_lshl_add_u32 {r('psr')}, {r('lane')}, 3, {T3}")
    e(f"s_lshl_b32 {T3}, {r('tt2')}, 2")
    e(f"s_add_u32 {T2}, {T2}, {T3}")
    e(f"s_mul_i32 {T2}, {T2}, 44032")
    e(f"s_add_u32 {T2}, {T2}, {HB + HALT}")
    e(f"v_add_u32 {r('hv', s, 1)}, {T2}, {r('l16')}")
e(f"v_lshrrev_b32 {r('ta')}, 1, {r('i15')}")
e(f"v_lshrrev_b32 {r('tb')}, 1, {r('h4')}")
e(f"v_xor_b32 {r('ta')}, {r('ta')}, {r('tb')}")
e(f"v_lshlrev_b32 {r('ta')}, 4, {r('ta')}")
e(f"v_lshl_add_u32 {r('ta')}, {r('i15')}, 7, {r('ta')}")
e(f"v_and_b32 {r('tc')}, 1, {r('h4')}")
e(f"v_lshl_add_u32 {r('ta')}, {r('tc')}, 3, {r('ta')}")
e(f"v_add_u32 {r('ea', 0, 1)}, {r('own')}, {r('ta')}")
for nb in range(1, 4):
    e(f"v_xor_b32 {r('ea', nb, 1)}, {32 * nb}, {r('ea', 0, 1)}")
e(f"s_lshl_b32 {T2}, {r('tok16')}, 9")
e(f"s_add_u32 {T2}, {T2}, {STB}")
e(f"v_lshl_add_u32 {r('svr')}, {r('i15')}, 5, {T2}")
LATE = None
LATE = lateA
e(f"v_lshrrev_b32 {r('tb')}, 1, {r('h4')}")
e(f"s_lshr_b32 {T2}, {r('xbase')}, 5")
e(f"s_add_u32 {T2}, {T2}, {STA}")
e(f"v_lshl_add_u32 {r('sgo')}, {r('i15')}, 5, {T2}")
e(f"v_lshl_add_u32 {r('sgo')}, {r('tb')}, 9, {r('sgo')}")
LATE = None
S("m1", 2)
e(f"s_mov_b32 {r('m1', 0, 1)}, 0xaaaaaaaa"); e(f"s_mov_b32 {r('m1', 1, 1)}, 0xaaaaaaaa")
LATE = lateA
e(f"v_lshlrev_b32 {r('ta')}, 4, {r('h4')}")
e(f"v_add_u32 {r('csr0')}, {CSX}, {r('ta')}")
for jp in range(3):
    g.names[f"ho{jp}"] = ("s", g.names["bp"][1] + jp, 1)
e(f"s_lshl_b32 {T2}, {r('T1')}, 2")
e(f"s_add_u32 {T2}, {T2}, {r('wave')}")
e(f"s_mul_i32 {T2}, {T2}, 86")
e(f"s_add_u32 {T2}, {T2}, {r('b0')}")
for jp in range(3):
    e(f"s_lshl_b32 {T3}, {r('bp', jp, 1)}, 7")
    e(f"v_add_u32 {r('ctr', jp, 1)}, {T3}, {r('csr0')}")
    e(f"s_add_u32 {T3}, {T2}, {r('bp', jp, 1)}")
    e(f"s_lshl_b32 {T3}, {T3}, 10")
    e(f"s_add_u32 {T3}, {T3}, {HB}")
    e(f"s_cmp_lt_u32 {r('bp', jp, 1)}, {r('nown')}")
    e(f"s_cselect_b32 {r(f'ho{jp}')}, {T3}, 0x7f000000")
for i in range(4):
    e(f"v_accvgpr_write_b32 {r('zz', i, 1)}, 0")
LATE = None
if TOUCH:
    V("tB", 2)
    wlo, whi_ = r("sWS", 0, 1), r("sWS", 1, 1)
    ent = [(r("sA", 0, 1), r("sA", 1, 1), r("tile0")), (r("sB", 0, 1), r("sB", 1, 1), r("tile0")), (plo(3), phi(3), None),
           (plo(4), phi(4), None), (plo(8), phi(8), None), (plo(10), phi(10), None),
           (plo(9), phi(9), None), (plo(9), phi(9), 1 << 20), (plo(11), phi(11), r("tile0")),
           (wlo, whi_, EPOCH + 256), (wlo, whi_, FL + 4096), (wlo, whi_, r("kvo")),
           (wlo, whi_, r("chan")), (wlo, whi_, HB + 64), (wlo, whi_, r("yo")), (wlo, whi_, r("zo")),
           (wlo, whi_, HB + 0x100000), (wlo, whi_, HB + 0x200000), (wlo, whi_, HB + 0x300000), (wlo, whi_, HB + 0x400000),
           (wlo, whi_, HB + 0x500000), (wlo, whi_, HB), (wlo, whi_, YT + 0x100000), (wlo, whi_, 0x100000)]
    e(f"v_mov_b32 {r('tB', 0, 1)}, {wlo}")
    e(f"v_mov_b32 {r('tB', 1, 1)}, {whi_}")
    for k, (lo, hi, off) in enumerate(ent):
        if off is None:
            e(f"v_writelane_b32 {r('tB', 0, 1)}, {lo}, {k}")
            e(f"v_writelane_b32 {r('tB', 1, 1)}, {hi}, {k}")
        else:
            e(f"s_add_u32 {T2}, {lo}, {off}")
            e(f"s_addc_u32 {T3}, {hi}, 0")
            e(f"v_writelane_b32 {r('tB', 0, 1)}, {T2}, {k}")
            e(f"v_writelane_b32 {r('tB', 1, 1)}, {T3}, {k}")
    e(f"s_mul_i32 {T2}, {r('wave')}, 6")
    e(f"s_lshl_b32 exec_lo, 63, {T2}")
    e("s_mov_b32 exec_hi, 0")
    if TOUCH == 2:
        e("s_mov_b32 exec_lo, 0xffffff")
    e(f"global_load_dword {r('pre')}, {r('tB')}, off sc1", "touch")
    e("s_mov_b64 exec, -1")
    g.free("tB")
stamp("setup")
g.free("tid")


def late_items(lst):
    ren = {"s3": r("L0"), "s5": r("L2"), "s6": r("L3"), "s7": r("L4")}
    txt = [re.sub(r"\bs[3567]\b", lambda m: ren[m.group(0)], x) for x in lst]
    items, grp = [], []
    for x in txt:
        op = x.split()[0]
        if grp or op.startswith(("s_cmp", "v_cmp")):
            grp.append(x)
            if op.startswith(("s_cselect", "v_cndmask")):
                items.append(grp); grp = []
        else:
            items.append([x])
    assert not grp
    cost = lambda gx: sum(0.3 if y.startswith("s_") else 1 for y in gx)
    return [It(lambda gx=gx: [e(y) for y in gx], cost(gx)) for gx in items]


def unpack(dst, doff, src, soff, ndw):
    it = []
    for d in range(ndw):
        it.append(E(f"v_lshlrev_b32 {r(dst, doff + 2 * d, 1)}, 16, {r(src, soff + d, 1)}"))
        it.append(E(f"v_and_b32 {r(dst, doff + 2 * d + 1, 1)}, {r('hmask')}, {r(src, soff + d, 1)}"))
    return it


run(dmaX(1))
LATEAB = int(opt.get("lateab", 1))
if LATEAB < 2:
    run(late_items(lateA)); lateA = []
if LATEAB < 1:
    g.wait(lg=0)
    run(late_items(lateB)); lateB = []
AC("xf", 64, at=64)
AC("wa", 48, at=128)


def xf(K, tb):
    return r("xf", ((K & 7) * 2 + tb) * 4, 4)


def rdX(ei):
    return [W(vm=f"X{ei}")] + [E(f"ds_read_b128 {xf(ei * 2 + k, tb)}, {r('xrd', k, 1)} offset:{(ei % 3) * 4096 + tb * 2048}", f"rx{ei}")
                               for k in range(2) for tb in range(2)]


def wbase(K):
    return ((K >> 1) % 4) * 12288 + (K & 1) * 6144


def rdW(K):
    return [E(f"ds_read_b64_tr_b16 {r('wa', (K & 1) * 24 + fb * 4 + 2 * hf, 2)}, {r('w1r', fb, 1)} offset:{wbase(K) + hf * 768 + (fb & 1) * 32}", f"rw{K}_{fb}")
            for fb in range(6) for hf in range(2)]


g.wait(vm="sx")
e(f"s_mov_b32 {T2}, 0x3f803f80")
for d in range(8):
    e(f"v_dot2_f32_bf16 {r('sacc', d & 1, 1)}, {r('sx', d, 1)}, {T2}, {'0' if d < 2 else r('sacc', d & 1, 1)}")
    e(f"v_dot2_f32_bf16 {r('sacc', 2 + (d & 1), 1)}, {r('sx', d, 1)}, {r('sx', d, 1)}, {'0' if d < 2 else r('sacc', 2 + (d & 1), 1)}")
e(f"v_readfirstlane_b32 {r('tag', 0, 1)}, {r('pf', 0, 1)}")
e(f"v_readfirstlane_b32 {r('tag', 1, 1)}, {r('pf', 1, 1)}")
g.free("sx")
run(rdX(0))
e(f"s_mul_i32 {r('tag', 0, 1)}, {r('tag', 0, 1)}, 0x9E3779B1")
e(f"s_mul_i32 {r('tag', 1, 1)}, {r('tag', 1, 1)}, 0x85EBCA6D")
e(f"s_add_u32 {r('tag', 0, 1)}, {r('tag', 0, 1)}, 0x7F4A7C15")
e(f"s_add_u32 {r('tag', 1, 1)}, {r('tag', 1, 1)}, 0x165667B1")
e(f"v_add_f32 {r('sacc', 0, 1)}, {r('sacc', 0, 1)}, {r('sacc', 1, 1)}")
e(f"v_add_f32 {r('sacc', 2, 1)}, {r('sacc', 2, 1)}, {r('sacc', 3, 1)}")
for i in range(2):
    e(f"v_mov_b32 {r('vtag', i, 1)}, {r('tag', i, 1)}")
    e(f"v_mov_b32 {r('vtag', 2 + i, 1)}, {r('tag', i, 1)}")
    e(f"v_mov_b32 {r('gq', 2 + i, 1)}, {r('tag', i, 1)}")
g.wait(vm="W1" if int(opt.get("nob1", 0)) else "W0")
e("s_barrier")
run(rdW(0))
stamp("x0")

V("acc", 48); AC("cs", 8, at=192)
V("big", 100)
B0 = g.names["big"][1]


def alias(name, off, n):
    g.names[name] = ("v", B0 + off, n)


alias("wf", 0, 32); alias("kf", 32, 40); alias("vr", 64, 8); alias("kr", 72, 20); alias("shr", 48, 16)
alias("vf", 72, 16)
small = [E(f"global_load_dword {r('bb', 0, 1)}, {r('bb', 0, 1)}, {ptr(8)}", "bb"),
         E(f"global_load_dword {r('bb', 1, 1)}, {r('bb', 1, 1)}, {ptr(10)}", "bb"),
         ]
alias("vr", 92, 8)
kvload = [It(lambda: (e(f"s_add_u32 m0, {r('kim')}, 1024"), e(f"s_mov_b32 {T0}, 7168"),
                      e(f"buffer_load_dwordx4 {r('kd', 1, 1)}, {r('sA')}, 0 offen {KPOL} lds", "k")), 2),
          E(f"buffer_load_dwordx4 {r('kd', 1, 1)}, {r('sA')}, {T0} offen offset:1024 {KPOL} lds", "k"),
          E(f"buffer_load_dwordx4 {r('vr', 0, 4)}, {r('k0')}, {r('sB')}, 0 offen {KVPOL}", "k"),
          E(f"buffer_load_dwordx4 {r('vr', 4, 4)}, {r('k0')}, {r('sB')}, 0 offen offset:1024 {KVPOL}", "k"),
          It(lambda: (e(f"s_mov_b32 m0, {r('kim')}"), e("s_mov_b32 exec_lo, 0"), e("s_mov_b32 exec_hi, 0xffffff00"),
                      e(f"buffer_load_dwordx4 {r('kd', 0, 1)}, {r('sA')}, 0 offen lds", "k"), e("s_mov_b64 exec, -1")), 2),
          It(lambda: (e(f"s_add_u32 m0, {r('kim')}, 3072"), e(f"s_mov_b64 {r('sA', 0, 2)}, {ptr(3)}"), e(f"s_mov_b32 {r('sA', 2, 1)}, 4096"),
                      e("s_mov_b32 exec_hi, 0"), e(f"buffer_load_dwordx4 {r('sho')}, {r('sA')}, 0 offen lds", "k"), e("s_mov_b64 exec, -1"),
                      e(f"s_mov_b64 {r('sA', 0, 2)}, {ptr(4)}"), e(f"s_mov_b64 {r('sB', 0, 2)}, {ptr(9)}"), e(f"s_mov_b32 {r('sB', 2, 1)}, 1409024")), 3)]
W2T = int(opt.get("w2t", 2))
w2touch = []
if W2T:
    w2touch = []
    (kvload if W2T == 1 else w2touch).append(It(lambda: (e(f"s_lshl_b32 {T0}, s2, 2"), e(f"s_add_u32 {T0}, {T0}, {r('wave')}"), e(f"s_mul_i32 {T0}, {T0}, {11 * 128}"),
                              e(f"v_lshlrev_b32 {r('pre')}, 3, {r('l16')}"), e("s_mov_b64 exec, 0x7ff"),
                              e(f"buffer_load_dword {r('pre')}, {r('pre')}, {r('sB')}, {T0} offen", "w2t"), e("s_mov_b64 exec, -1")), 3))
kvrd = [W(vm="k")]
kvrd += [E(f"ds_read_b128 {r('shr', 4 * i, 4)}, {r('sra')} offset:{3072 + 16 * i}", "rs") for i in range(4)]
kvrd += [E(f"ds_read_b128 {r('kr', 4 * k, 4)}, {r('kra')} offset:{640 + 128 * k}", "rk") for k in range(5)]
kvu = [W(lg="rs")]
for c in range(8):
    for j in range(4):
        src = r("shr", 2 * c + (j >> 1), 1)
        if j & 1:
            kvu.append(E(f"v_and_b32 {r('wf', j * 8 + c, 1)}, {r('hmask')}, {src}"))
        else:
            kvu.append(E(f"v_lshlrev_b32 {r('wf', j * 8 + c, 1)}, 16, {src}"))
kvu.append(W(lg="rk"))
kvu += unpack("kf", 0, "kr", 0, 20)
KS = lambda t, cp: r("kr", t * 8 + 2 * cp, 2)
kvc = []
for t in range(2):
    for cp in range(4):
        kvc.append(E(f"v_pk_mul_f32 {KS(t, cp)}, {r('kf', t * 8 + 2 * cp, 2)}, {r('wf', 24 + 2 * cp, 2)}"))
    for j in (2, 1, 0):
        for cp in range(4):
            kvc.append(E(f"v_pk_fma_f32 {KS(t, cp)}, {r('kf', (t + 3 - j) * 8 + 2 * cp, 2)}, {r('wf', j * 8 + 2 * cp, 2)}, {KS(t, cp)}"))
kvc += unpack("wf", 0, "vr", 0, 8)
for t in range(2):
    for cp in range(4):
        kvc.append(E(f"v_pk_mul_f32 {KS(t, cp)}, {KS(t, cp)}, {r('wf', t * 8 + 2 * cp, 2)}"))
alias("kvp", 92, 8)
for c in range(8):
    kvc.append(E(f"v_cvt_pk_bf16_f32 {r('kvp', c, 1)}, {r('kr', 8 + c, 1)}, {r('kr', c, 1)}"))
    kvc.append(E(f"ds_write_b32 {r('kvw')}, {r('kvp', c, 1)} offset:{128 * c}", "kvw"))
kvst = [E(f"ds_read_b128 {r('kvp', 0, 4)}, {r('kvr')}", "kvr0"), E(f"ds_read_b128 {r('kvp', 4, 4)}, {r('kvr')} offset:1040", "kvr1")]
kvst2 = [It(lambda: (g.wait(lg="kvr0"), e(f"buffer_store_dwordx4 {r('kvp', 0, 4)}, {r('kvs')}, {r('sWS')}, {r('kvo')} offen sc1", "kvst"),
                     e(f"s_add_u32 {r('kvo')}, {r('kvo')}, {8 * KP}")), 2),
         It(lambda: (g.wait(lg="kvr1"), e(f"buffer_store_dwordx4 {r('kvp', 4, 4)}, {r('kvs')}, {r('sWS')}, {r('kvo')} offen sc1", "kvst")), 2)]
alias("skr", 0, 12); alias("ke", 12, 24); alias("bt", 36, 4); alias("b1f", 44, 24); alias("csf", 68, 24)
AC("ska", 12, at=228)
skload = [It(lambda: (e("s_mov_b64 exec, 1"), e(f"buffer_load_dwordx2 {r('ska', 0, 2)}, {r('sb')}, {r('sA')}, 0 offen", "sk"), e("s_mov_b64 exec, -1")), 2),
          E(f"buffer_load_dwordx4 {r('ska', 2, 4)}, {r('sa')}, {r('sA')}, 0 offen {KVPOL}", "sk"),
          E(f"buffer_load_dwordx4 {r('ska', 8, 4)}, {r('sa')}, {r('sA')}, 0 offen offset:1024 {KVPOL}", "sk")]
kcopy = [W(vm="sk")] + [E(f"v_accvgpr_read_b32 {r('skr', k, 1)}, {r('ska', k, 1)}") for k in (4, 5, 0, 1, 10, 11, 2, 3, 8, 9)]
for k in range(2):
    kcopy.append(E(f"v_mov_b32_dpp {r('skr', 6 + k, 1)}, {r('skr', 4 + k, 1)} wave_ror:1 row_mask:0xf bank_mask:0xf"))
for k in range(2):
    kcopy.append(E(f"v_mov_b32_dpp {r('skr', k, 1)}, {r('skr', 4 + k, 1)} wave_shr:1 row_mask:0xf bank_mask:0xf"))
for k in range(2):
    kcopy.append(E(f"v_mov_b32_dpp {r('skr', 6 + k, 1)}, {r('skr', 10 + k, 1)} wave_shr:1 row_mask:0xf bank_mask:0xf"))
for n in range(2):
    R = lambda k, c=1, n=n: r("skr", 6 * n + k, c)
    KE = lambda k, c=1, n=n: r("ke", 12 * n + k, c)
    kcopy.append(E(f"ds_write_b128 {r('kw')}, {R(2, 4)} offset:{3 * FP + 1024 * n}", "kc", 2))
    for k in range(4):
        kcopy.append(E(f"v_alignbit_b32 {KE(k)}, {R(k + 1)}, {R(k)}, 16"))
    kcopy.append(E(f"ds_write_b128 {r('kw')}, {KE(0, 4)} offset:{1024 * n}", "kc", 2))
    for k in range(4):
        kcopy.append(E(f"v_alignbit_b32 {KE(4 + k)}, {R(k + 2)}, {R(k + 1)}, 16"))
    kcopy.append(E(f"ds_write_b128 {r('kw')}, {KE(4, 4)} offset:{2 * FP + 1024 * n}", "kc", 2))
    for k in range(4):
        kcopy.append(E(f"v_mov_b32 {KE(8 + k)}, {R(1 + k)}"))
    kcopy.append(E(f"ds_write_b128 {r('kw')}, {KE(8, 4)} offset:{FP + 1024 * n}", "kc", 2))


def mfma(d, a, b, first):
    e(f"v_mfma_f32_16x16x32_bf16 {d}, {a}, {b}, {'0' if first else d}")


def M(d, a, b, first, wait=None):
    def fn():
        if wait:
            w_ = dict(wait)
            l2 = w_.pop("lg2", None)
            if l2 and max(i for i, t in enumerate(g.lg) if t == l2) > max(i for i, t in enumerate(g.lg) if t == w_["lg"]):
                g._cnt(g.lg, w_["lg"])
                w_["lg"] = l2
            elif l2:
                g._cnt(g.lg, l2)
            g.wait(**w_)
        mfma(d, a, b, first)
    return It(fn, 0.3 if wait else 0)


def mainM(K):
    return [M(r("acc", (fb * 2 + tb) * 4, 4), r("wa", (K & 1) * 24 + fb * 4, 4), xf(K, tb), K == 0,
              dict(lg=f"rw{K}_{fb}", lg2=(None if (K & 1 or fb) else f"rx{K >> 1}")) if tb == 0 else None) for fb in range(6) for tb in range(2)]


def statM(K):
    items = []
    for tb in range(2):
        items.append(M(r("rs", tb * 4, 4), r("ones"), xf(K, tb), K == 0, dict(lg=f"rx{K >> 1}") if (tb == 0 and not K & 1) else None))
        items.append(M(r("gr", tb * 4, 4), xf(K, tb), xf(K, tb), K == 0))
    return items


def csM(K):
    return [M(r("cs", c * 4, 4), r("wa", (K & 1) * 24 + c * 4, 4), r("ones"), K == 0, dict(lg=f"rw{K}_{c}")) for c in range(2)]


FULL = int(opt.get("full", 1))


def flagtxt(addr, ls):
    if FULL and ls >= 4:
        return [f"s_mov_b64 exec, {(1 << (1 << (ls - 4))) - 1}",
                f"buffer_store_dwordx4 {r('vtag')}, {r('l16')}, {r('sWS')}, {addr} offen sc1", "s_mov_b64 exec, -1"]
    return ["s_mov_b64 exec, 1", f"buffer_store_dwordx2 {r('vtag', 0, 2)}, {r('zero')}, {r('sWS')}, {addr} offen sc1", "s_mov_b64 exec, -1"]


def setflag(addr, tagname):
    t_ = flagtxt(addr, {"f1": L1S, "f2": L2S, "f3": L3S}[tagname])
    e(t_[0]); e(t_[1], tagname); e(t_[2])


def pollissue(voff, tagname):
    e(f"buffer_load_dwordx2 {r('pf')}, {voff}, {r('sWS')}, 0 offen sc1", tagname)


def pollcheck(voff, tagname, before_spin=None):
    g.wait(vm=tagname)
    e(f"v_cmp_ne_u64 vcc, {r('tag')}, {r('pf')}")
    e("s_cmp_eq_u64 vcc, 0")
    e(f"s_cbranch_scc0 L_{tagname}")
    g.label(f"L_{tagname}_ok")

    def tail():
        g.label(f"L_{tagname}")
        if before_spin:
            for x in before_spin:
                e(x)
        if SPINMAX:
            e(f"s_mov_b32 {T4}, 0")
        g.label(f"L_{tagname}_l")
        e(f"s_sleep {int(opt.get('sleep', 1))}")
        e(f"buffer_load_dwordx2 {pfr}, {voff}, {sws}, 0 offen sc1")
        e("s_waitcnt vmcnt(0)")
        e(f"v_cmp_ne_u64 vcc, {tagr}, {pfr}")
        if SPINMAX:
            e(f"s_add_u32 {T4}, {T4}, 1")
            e(f"s_cmp_gt_u32 {T4}, {SPINMAX}")
            e(f"s_cbranch_scc1 L_{tagname}_ok")
        e("s_cmp_eq_u64 vcc, 0")
        e(f"s_cbranch_scc0 L_{tagname}_l")
        e(f"s_branch L_{tagname}_ok")
    pfr, sws, tagr = r("pf"), r("sWS"), r("tag")
    tails.append(tail)


tails = []
btab = [W(vm="bb")] + unpack("bt", 0, "bb", 0, 2) + [E(f"ds_write_b64 {r('bw', 0, 1)}, {r('bt', 0, 2)}", "btw"), E(f"ds_write_b64 {r('bw', 1, 1)}, {r('bt', 2, 2)}", "btw")]

W2SLOT = {0: ("x", S4), 1: ("o", 8192), 2: ("o", 0), 3: ("o", 4096), 4: ("x", S3),
          5: ("x", S4), 6: ("o", 8192), 7: ("o", 0), 8: ("o", 4096), 9: ("x", S3), 10: ("x", S4)}
W2PREV = {p: p - 5 for p in range(5, 11)}
VMODE = opt.get("vmode", "E")
if VMODE == "F":
    W2SLOT = {0: ("x", 0), 1: ("x", 16384), 2: ("x", S4), 3: ("o", 8192), 4: ("o", 0), 5: ("o", 4096), 6: ("x", S3),
              7: ("x", S4), 8: ("o", 8192), 9: ("o", 0), 10: ("o", 8192)}
    W2PREV = {7: 2, 8: 3, 9: 4, 10: 8}


def dmaW2(p):
    items = []
    kind, off = W2SLOT[p]
    for n in range(4):
        def it(n=n):
            if n == 0:
                e(f"s_add_u32 m0, {r('own') if kind == 'o' else r('w4k')}, {off}")
                if p in W2PREV:
                    g.wait(lg=f"rv{W2PREV[p]}")
            e(f"buffer_load_dwordx4 {r('w2s', n, 1)}, {r('sB')}, {r(f'kb{p}')} offen offset:{1024 * n} lds", f"V{p}")
        items.append(It(it, 1.2 if n else 1.8))
    return items


def w2f(p, nb, off=0, n=4):
    k = (p * 4 + nb) * 4 + off
    return f"a[{k}:{k + n - 1}]"


def rdW2(p):
    kind, off = W2SLOT[p]
    items = [W(vm=f"V{p}")]
    for nb in range(4):
        for hf in range(2):
            items.append(E(f"ds_read_b64_tr_b16 {w2f(p, nb, 2 * hf, 2)}, {r('w2r', nb + (0 if kind == 'o' else 4), 1)} offset:{off + hf * 2048}", f"rv{p}"))
    return items


alias("sac", 96, 4); alias("sgr", 92, 4)
EPS = f2u(1e-5)


def rb(dst, src):
    return [E(f"v_cvt_pk_bf16_f32 {dst}, {src}, {src}"), E(f"v_and_b32 {dst}, {r('hmask')}, {dst}")]


s1, s1b, s2, s2b = (r("sacc", k, 1) for k in range(4))
st = []
for sh in (8, 4, 2, 1):
    st.append(E(f"v_add_f32_dpp {s1}, {s1}, {s1} row_ror:{sh} row_mask:0xf bank_mask:0xf"))
    st.append(E(f"v_add_f32_dpp {s2}, {s2}, {s2} row_ror:{sh} row_mask:0xf bank_mask:0xf"))
st.append(E(f"v_mov_b32 {s1b}, {s1}")); st.append(E(f"v_mov_b32 {s2b}, {s2}"))
st.append(E(f"v_permlane16_swap_b32 {s1}, {s1b}")); st.append(E(f"v_permlane16_swap_b32 {s2}, {s2b}"))
mu, var, t, w = (r("u", k, 1) for k in range(4))
mb, rsd = r("stv", 0, 1), r("stv", 1, 1)
st.append(E(f"v_add_f32 {mu}, {s1}, {s1b}")); st.append(E(f"v_add_f32 {var}, {s2}, {s2b}"))
st.append(E(f"v_mul_f32 {mu}, 0x{f2u(1 / 512):08x}, {mu}"))
st.append(E(f"v_mul_f32 {var}, 0x{f2u(1 / 512):08x}, {var}"))
st += rb(mb, mu)
st.append(E(f"v_fma_f32 {var}, -{mu}, {mu}, {var}"))
st.append(E(f"v_max_f32 {var}, 0, {var}"))
st += rb(t, var)
st.append(E(f"v_add_f32 {t}, 0x{EPS:08x}, {t}"))
st += rb(t, t)
st.append(E(f"v_sqrt_f32 {t}, {t}", cost=2))
st.append(E(f"v_sub_f32 {mu}, {mu}, {mb}"))
st += rb(t, t)
st.append(E(f"v_rcp_f32 {rsd}, {t}", cost=2))
st.append(E(f"v_mul_f32 {mu}, {mu}, {rsd}"))
st.append(E(f"v_mul_f32 {var}, {var}, {rsd}"))
st.append(E(f"v_mul_f32 {var}, {var}, {rsd}"))
st += rb(t, var)
st.append(E(f"v_add_f32 {t}, 0x{EPS:08x}, {t}"))
st += rb(t, t)
st.append(E(f"v_sqrt_f32 {t}, {t}", cost=2))
st += rb(mu, mu)
st += rb(t, t)
st.append(E(f"v_rcp_f32 {w}, {t}", cost=2))
st.append(E(f"v_fma_f32 {mu}, {mb}, {rsd}, {mu}"))
st.append(E(f"v_mul_f32 {t}, {rsd}, {w}"))
st.append(E(f"v_mul_f32 {mu}, {mu}, {w}"))
st.append(E(f"v_cndmask_b32 {r('gq', 0, 1)}, {t}, {mb}, {r('m1')}"))
st.append(E(f"v_cndmask_b32 {r('gq', 1, 1)}, {mu}, {rsd}, {r('m1')}"))
st.append(E(f"v_mov_b32 {s1}, {r('gq', 0, 1)}")); st.append(E(f"v_mov_b32 {s2}, {r('gq', 1, 1)}"))
st.append(E(f"v_permlane32_swap_b32 {r('gq', 0, 1)}, {s1}")); st.append(E(f"v_permlane32_swap_b32 {r('gq', 1, 1)}, {s2}"))
st.append(It(lambda: (e("s_mov_b64 exec, 12"), e(f"v_mov_b32 {r('gq', 0, 1)}, {s1}"), e(f"v_mov_b32 {r('gq', 1, 1)}, {s2}"), e("s_mov_b64 exec, -1")), 2.6))
ststore = [It(lambda: (e("s_mov_b64 exec, 15"),
                       e(f"buffer_store_dwordx4 {r('gq')}, {r('stw')}, {r('sWS')}, 0 offen sc1", "sts"), e("s_mov_b64 exec, -1")), 2)]


def gcheck(name, voff, tagname):
    g.wait(vm=tagname)
    e(f"v_cmp_ne_u64 vcc, {r('tag')}, {r(name, 2, 2)}")
    e("s_cmp_eq_u64 vcc, 0")
    e(f"s_cbranch_scc0 L_{tagname}")
    g.label(f"L_{tagname}_ok")
    q4, q2, sws, tagr = r(name, 0, 4), r(name, 2, 2), r("sWS"), r("tag")

    def tail():
        g.label(f"L_{tagname}")
        if SPINMAX:
            e(f"s_mov_b32 {T4}, 0")
        g.label(f"L_{tagname}_l")
        e("s_sleep 2")
        e(f"buffer_load_dwordx4 {q4}, {voff}, {sws}, 0 offen sc1")
        e("s_waitcnt vmcnt(0)")
        e(f"v_cmp_ne_u64 vcc, {tagr}, {q2}")
        if SPINMAX:
            e(f"s_add_u32 {T4}, {T4}, 1")
            e(f"s_cmp_gt_u32 {T4}, {SPINMAX}")
            e(f"s_cbranch_scc1 L_{tagname}_ok")
        e("s_cmp_eq_u64 vcc, 0")
        e(f"s_cbranch_scc0 L_{tagname}_l")
        e(f"s_branch L_{tagname}_ok")
    tails.append(tail)


sgld = [E(f"buffer_load_dwordx4 {r('sgr')}, {r('sgo')}, {r('sWS')}, 0 offen sc1", "sg")]
sguse = [It(lambda: gcheck("sgr", r("sgo"), "sg"), 2)]
sguse += [E(f"v_mov_b32 {r('sac', k, 1)}, {r('sgr', k & 1, 1)}") for k in range(4)]
sguse += [E(f"v_permlane32_swap_b32 {r('sac', 0, 1)}, {r('sac', 2, 1)}"), E(f"v_permlane32_swap_b32 {r('sac', 1, 1)}, {r('sac', 3, 1)}")]

main = []
at = {}


def add(items, name=None):
    if name:
        at[name] = len(main)
        if name.startswith("K") and SSET == "k":
            f0 = items[0].fn
            items = [It(lambda: (stamp(name, "k"), f0()), items[0].cost)] + items[1:]
    main.extend(items)


NOB1 = int(opt.get("nob1", 0))
KVK = int(opt.get("kvk", 5))
BARS = {1: 1, 3: 3, 7: 5, 11: 7} if KVK == 3 else {1: 1, 3: 2, 5: 4, 9: 6, 13: 7}
if NOB1:
    del BARS[1]


def bar(K):
    def fn():
        if K == KVK:
            g.wait(vm=f"W{BARS[K]}", lg="kvw")
        elif K == 7 or (KVK == 5 and K in (3, 9)):
            g.wait(vm=f"W{BARS[K]}", lg=f"rw{K}_5")
        elif K < 15:
            g.wait(vm=f"W{BARS[K]}")
        else:
            g.wait(lg=0)
        e("s_barrier")
        if K in ((3, 7, 11, 15) if KVK == 3 else (5, 9, 13, 15)):
            stamp(f"c{K >> 2}")
    return [It(fn, 0)]


STAT = {K: [] for K in range(13)}

for K in range(13):
    if K == KVK:
        add([It(lambda: (stamp("kvb"), run(weave(kvu[KVU:] + kvc, (kvdma, 4, len(kvu) - KVU + len(kvc) - 4))), stamp("kv")), 0)], "KV")
    if K in BARS:
        add(bar(K), f"B{K}")
    sm = sum((statM(k) for k in STAT[K]), [])
    add(sm + mainM(K), f"K{K}")
    at[f"m{K}"] = at[f"K{K}"] + len(sm)
    add(csM(K))
if 13 in BARS:
    add(bar(13), "B13")
add(mainM(13) + csM(13), "K13")
m14 = mainM(14)
add(m14[:2] + csM(14) + m14[2:8], "K14"); add(csM(15), "cs15"); add(m14[8:])
at["m14"] = at["K14"]; at["m13"] = at["K13"]
add(bar(15), "C3")
add(mainM(15), "K15")
at["end"] = len(main)
if SSET == "fine":
    F0 = int(opt.get("f0", 0))
    for k_ in range(F0, min(F0 + 120, len(main)), 4):
        main[k_] = It(lambda f=main[k_].fn, k_=k_: (stamp(f"m{k_}", "fine"), f()), main[k_].cost)
A = lambda n: at[n]
QR = []
for K in range(1, 15):
    lo = A(f"K{K - 1}") - (1 if (K - 1) in BARS else 0)
    hi = A(f"K{K}") - 2 - (1 if K in BARS else 0) - (1 if K == KVK else 0) - (3 if (K == 7 and KVK == 3) or (KVK == 5 and K in (3, 9)) else 0)
    QR += win(rdW(K), lo, hi)
QR += win(rdW(15), A("K14"), A("C3") - 5)
XRD = {1: 1, 2: 3, 3: 5, 4: 7, 5: 9, 6: 11, 7: 13}
QX = []
for ei in range(1, 8):
    k = XRD[ei]
    QX += win(rdX(ei), A(f"K{k}"), A(f"K{k}") + 5)


def aft(tag, items):
    f0 = items[0]
    return [It(lambda: (g.wait(lg=tag), f0()), f0.cost + 1)] + items[1:]


kc_txt = []
kcv = [it for it in kcopy if it.cost != 2]
kcw = [it for it in kcopy if it.cost == 2]
f1set = [None] * 4 + [It(lambda: (g.wait(vm="kvst"), setflag(r("f1a"), "f1")), 2)]
udma = [It(lambda: pollcheck(r("pf1o"), "pf1"), 4),
        It(lambda: (e(f"s_add_u32 {r('sA', 0, 1)}, {plo(13)}, {r('chan')}"), e(f"s_addc_u32 {r('sA', 1, 1)}, {phi(13)}, 0"), e(f"s_mov_b32 m0, {r('um0')}")), 3)]
for n in range(4):
    udma.append(E(f"buffer_load_dwordx4 {r('l16')}, {r('sA')}, {r('ush')} offen offset:{1024 * n} sc1 lds", "U"))
KW = lambda k0, k1=None: (A(f"K{k0}"), A(f"K{(k1 or k0) + 1}") - 2)
F1K = int(opt.get("f1k", 7 if KVK == 5 else 6))
f1 = lambda k: f1set[4:] if F1K == k else []
KVU = int(opt.get("kvu", 8))
KV0 = int(opt.get("kv0", 6 if KVK == 3 else 0))
run(kvload[:KV0])
if KVK == 3:
    QV = win(kvload[KV0:] + dmaW1(2), *KW(0))
    QV += win(dmaX(2), *KW(1))
    QV += win(dmaW1(3), A("K2"), A("KV") - 1)
    kvdma = dmaX(3) + dmaX(4) + small + skload + w2touch + ststore
    QV += win(dmaW1(4) + kvst2, *KW(3))
    QV += win(dmaW1(5), *KW(4))
    QV += win(dmaX(5), *KW(5))
    QV += win(dmaX(6) + f1(6), *KW(6))
else:
    assert VMODE != "F"
    run(dmaW1(2) + dmaX(2))
    QV = win(kvload[KV0:], *KW(0))
    if int(opt.get("grp", 0)):
        QV += win(skload + w2touch + small, *KW(1))
        QV += win(dmaW1(3), *KW(2))
        QV += win(dmaW1(4) + ststore, *KW(3))
        QV += win(dmaX(3), A("K4"), A("KV") - 1)
        kvdma = dmaW1(5) + dmaX(4) + dmaX(5)
    else:
        QV += win(dmaW1(3), *KW(1))
        QV += win(dmaX(3), *KW(2))
        QV += win(dmaW1(4) + ststore, *KW(3))
        QV += win(dmaW1(5), A("K4"), A("KV") - 1)
        kvdma = dmaX(4) + dmaX(5) + small + skload + w2touch
    QV += win((dmaW1(6) + kvst2) if int(opt.get("w6f", 0)) else (kvst2 + dmaW1(6)), *KW(5))
    QV += win(dmaX(6) + f1(6), *KW(6))
    QV += win(f1(7), *KW(7))
    QV += win(dmaX(7) + f1(8), *KW(8))
    QV += win(dmaW1(7) + sgld, *KW(9))
NV3 = int(opt.get("nv3", 1))
if VMODE == "F":
    QV += win(dmaW1(6) + f1(7) + dmaW1(7)[:1], *KW(7))
    QV += win(dmaW1(7)[1:] + dmaX(7)[:3], *KW(8))
    QV += win(dmaX(7)[3:] + sgld + dmaW2(0)[:3], *KW(9))
    QV += win(dmaW2(0)[3:] + dmaW2(1), *KW(10))
    QV += win(dmaW2(2), *KW(11))
    if NV3:
        QV += win(dmaW2(3), *KW(12)) + win(dmaW2(4), *KW(13))
else:
    if KVK == 3:
        QV += win(dmaW1(6) + f1(7), *KW(7))
        QV += win(dmaW1(7) + dmaX(7)[:1], *KW(8))
        QV += win(dmaX(7)[1:] + sgld, *KW(9))
    QV += win(dmaW2(0), *KW(10))
    QV += win(dmaW2(1), *KW(11))
    QV += win(dmaW2(2), *KW(12))
    if NV3:
        QV += win(dmaW2(3) + f1(14), A("K14"), A("C3") - 1)
QV += win([It(lambda: pollissue(r("pf1o"), "pf1"))], A("end") - 4, A("end") - 4)
QW1 = (win(rdW2(0), *KW(13)) + win(rdW2(1), A("K14"), A("C3") - 3)) if VMODE == "F" else []
XX = '''
QV += win(dmaW2(0) + f1(9), *KW(9))
QV += win(dmaW2(1) + f1(10), *KW(10))
QV += win(dmaW2(2) + f1(11), *KW(11))
QV += win(dmaW2(3), *KW(12))
'''
csw = [It(lambda: (e("s_mov_b32 exec_lo, 0x00010001"), e("s_mov_b32 exec_hi, 0x00010001"),
                   e(f"ds_write_b128 {r('ctr', 0, 1)}, {r('cs', 0, 4)}", "csw"), e(f"ds_write_b128 {r('ctr', 0, 1)}, {r('cs', 4, 4)} offset:64", "csw"),
                   e("s_mov_b64 exec, -1")), 5)]
rcs = [E(f"ds_read_b128 {r('csf', 4 * fb, 4)}, {r('ctr', fb >> 1, 1)} offset:{64 * (fb & 1)}", "rcs") for fb in range(6)]
rb1 = [E(f"ds_read_b128 {r('b1f', 4 * fb, 4)}, {r('ctr', fb >> 1, 1)} offset:{B1T - CSX + 64 * (fb & 1)}", "rb1") for fb in range(6)]
QM = win(kvrd, A(f"K{KVK - 1}") + 1, A(f"K{KVK - 1}") + 8)
QM += win(kvu[:KVU], A(f"K{KVK - 1}") + 10, A("KV") - 1)
QM += win(kvst, A(f"B{KVK}"), A(f"B{KVK}") + 1)
QM += win(btab, *KW(KVK + 2))
KCV = int(opt.get("kcv", 1))
if KCV:
    QM += win(kcv, A(f"K{KVK + 4}"), A("K11" if KVK == 3 else "K13") - 2)
QM += win(rb1, *KW(11 if KVK == 3 else 13))
KCW = int(opt.get("kcw", 0))
QM += win(kcw[:KCW], A("K13"), A("K14") + 8)
QM += win(csw, A("C3") - 2, A("C3") - 2)
QM += win(rcs + [E(f"ds_write_b128 {r('za')}, {r('zz')}", "zw", 2)], A("C3"), A("C3") + 7)
if KCV:
    pass
QS = win(st, 0, A("KV") - 1 if KVK == 3 else A("K3") + 6) + win(sguse, A("m14") + 2, A("end") - 2)
QL = win(late_items(lateA), A("K3") + 2, A("K9") - 1) + win(late_items(lateB), A("K9") if lateA else A("K4"), A("C3") - 3)
schedule(main, [QR, QX, QV, QM, QS, QW1, QL])
lateC_items = late_items(lateC)
g.free("T1", "q", "whi", "b0", "ns128", "r8", "pc", "nown", "sD")
del g.names["bp"]
for n_ in ("wf", "kf", "vr", "kr", "shr", "vf", "kvp", "skr", "ke", "bt", "sgr"):
    del g.names[n_]
g.free("w1s", "w1lds", "sW1", "so", "f1a", "kvs", "pre", "kvo", "bb", "bw", "k0", "kd", "sho", "sa", "sb", "kvw", "kvr", "kra", "sra",
       "wa", "xf", "cs", "sgo", "m1", "stw", "w1r", "ctr", "ones", "sacc", "u", "gq", "stv",
       "xrd", "zz", "za", "ptr8", "ptr10", "ptr3", "ptr4", "ptr9", "kim", "xbase", "xk", "wo", "wlim")
AC("w2b", 176, at=0)
stamp("g1")
stamp("g1", "k")

K0 = -2.0 * 0.7978845608028654 * 1.4426950408889634
K1 = K0 * 0.044715
S("k1", 2); V("k0v", 2); V("ge", 16); V("hp", 8)
e(f"s_mov_b32 {r('k1', 0, 1)}, 0x{f2u(K1):08x}")
e(f"s_mov_b32 {r('k1', 1, 1)}, 0x{f2u(K1):08x}")
e(f"v_mov_b32 {r('k0v', 0, 1)}, 0x{f2u(K0):08x}")
e(f"v_mov_b32 {r('k0v', 1, 1)}, 0x{f2u(K0):08x}")
g.wait(lg="rcs")
e(".p2align 3")


def gelu(b, tb):
    it = []
    sac = r("sac", tb * 2, 2)
    prs = [(fb, h) for fb in (2 * b, 2 * b + 1) for h in range(2)]
    U = lambda k: r("acc", (prs[k][0] * 2 + tb) * 4 + 2 * prs[k][1], 2)
    Tm = lambda k: r("ge", (tb & 1) * 8 + 2 * k, 2)
    T1r = lambda k, x: r("ge", (tb & 1) * 8 + 2 * k + x, 1)
    for k, (fb, h) in enumerate(prs):
        it.append(E(f"v_pk_fma_f32 {Tm(k)}, {r('csf', fb * 4 + 2 * h, 2)}, {sac}, {r('b1f', fb * 4 + 2 * h, 2)} op_sel:[0,1,0] op_sel_hi:[1,1,1] neg_lo:[0,1,0] neg_hi:[0,1,0]"))
    for k in range(4):
        it.append(E(f"v_pk_fma_f32 {U(k)}, {U(k)}, {sac}, {Tm(k)} op_sel_hi:[1,0,1]"))
    for k in range(4):
        it.append(E(f"v_pk_mul_f32 {Tm(k)}, {U(k)}, {U(k)}"))
    for k in range(4):
        it.append(E(f"v_pk_fma_f32 {Tm(k)}, {Tm(k)}, {r('k1')}, {r('k0v')}"))
    for k in range(4):
        it.append(E(f"v_pk_mul_f32 {Tm(k)}, {Tm(k)}, {U(k)}"))
    for k in range(4):
        for x in range(2):
            it.append(E(f"v_exp_f32 {T1r(k, x)}, {T1r(k, x)}"))
    for k in range(4):
        it.append(E(f"v_pk_add_f32 {Tm(k)}, {Tm(k)}, 1.0 op_sel_hi:[1,0]"))
    for k in range(4):
        for x in range(2):
            it.append(E(f"v_rcp_f32 {T1r(k, x)}, {T1r(k, x)}"))
    for k in range(4):
        it.append(E(f"v_pk_mul_f32 {Tm(k)}, {Tm(k)}, {U(k)}"))
    for k in range(4):
        it.append(E(f"v_cvt_pk_bf16_f32 {r('hp', (tb & 1) * 4 + k, 1)}, {T1r(k, 0)}, {T1r(k, 1)}"))
    it.append(E(f"buffer_store_dwordx4 {r('hp', (tb & 1) * 4, 4)}, {r('l16')}, {r('sWS')}, {r(f'ho{b}')} offen sc1", "hst"))
    if tb == 0:
        it.append(E(f"s_add_u32 {r(f'ho{b}')}, {r(f'ho{b}')}, 44032"))
    return it


g.free("ska")
AC("cf", 32, at=176); AC("cg", 32, at=208)


def rdF(it, c):
    return E(f"ds_read_b128 {r('cf', 4 * c, 4)}, {r('fa')} offset:{64 * it + 512 * c}", f"F{it}_{c}")


def rdG(it, d):
    return E(f"ds_read_b128 {r('cg', 4 * d, 4)}, {r('ga')} offset:{64 * it + 512 * (7 - d)}", f"G{it}_{d}")


CORD = opt.get("cord", "AAAA")
init = []
if CORD[0] == "A":
    for k in range(8):
        init += [rdF(0, 7 - k), rdG(0, k)]
else:
    init = [rdG(0, 0)] + [rdF(0, 7 - k) for k in range(8)] + [rdG(0, k) for k in range(1, 8)]
SKIP = int(opt.get("skip2", 1))
for jp in range(3):
    if jp == 1:
        g.wait(vm="pf1")
        e(f"v_cmp_ne_u64 vcc, {r('tag')}, {r('pf')}")
        run(udma[1:2])
        e("s_cmp_eq_u64 vcc, 0")
        e(f"s_cselect_b32 {r('sA', 2, 1)}, 4096, 0")
    if jp == 2:
        pollissue(r("pf1o"), "pf1b")
    if SKIP:
        e(f"s_cmp_eq_u32 {r(f'ho{jp}')}, 0x7f000000")
        e(f"s_cbranch_scc1 L_gskip{jp}")
    e(".p2align 3")
    n0 = len(g.ins)
    if jp < 2:
        run(weave(gelu(jp, 0) + gelu(jp, 1), (udma[2:] if jp == 1 else [], 2, 60), (kcw[KCW:][jp::2], 12, 90)))
    else:
        run(gelu(2, 0) + gelu(2, 1))
    if SKIP:
        keep = [i.text for i in g.ins[n0:] if (not i.op.startswith("v_") or i.op.startswith("v_writelane")) and i.cls != "label"]
        g.label(f"L_gdone{jp}")

        def skip_tail(jp=jp, keep=keep):
            g.label(f"L_gskip{jp}")
            for x in keep:
                e(x)
            e(f"s_branch L_gdone{jp}")
        tails.append(skip_tail)
stamp("gelu")
e(f"s_cmp_lg_u32 {r('sA', 2, 1)}, 0")
e("s_cbranch_scc1 L_haveU")
sv_ = g.vm_done
pollcheck(r("pf1o"), "pf1b", before_spin=["s_waitcnt vmcnt(0)"] + flagtxt(r("f2a"), L2S))
e(f"s_mov_b32 {r('sA', 2, 1)}, 4096")
n_ = len(g.vm)
for n in range(4):
    e(f"buffer_load_dwordx4 {r('l16')}, {r('sA')}, {r('ush')} offen offset:{1024 * n} sc1 lds")
e("s_waitcnt vmcnt(4)")
for x in flagtxt(r("f2a"), L2S):
    e(x)
e("s_waitcnt vmcnt(1)")
del g.vm[n_:]
g.vm_done = sv_
g.label("L_haveU")
g.wait(vm="U", lg=0)
e("s_barrier")
stamp("b5")
run(init[:6])
g.free("pf1o", "um0", "ush", "chan", "kw")
del g.names["csf"], g.names["b1f"], g.names["sac"]
g.free("acc", "big", "ge", "k0v", "k1", "ho0", "ho1", "ho2")
V("cy", 32, at=96)
V("hfv", 96, at=160)
HFIRST = int(opt.get("hfirst", 2))
HPOL = opt.get("hpol", "sc1").replace("+", " ")
HORD = [(s_, p_) for p_ in range(HFIRST) for s_ in range(4)]
HORD += [(s_, p_) for s_ in range(4) for p_ in range(HFIRST, 11)]
HF = {}
for k_, sp in enumerate(HORD):
    HF[sp] = r("hfv", 4 * k_, 4) if k_ < 24 else f"a[{176 + 4 * (k_ - 24)}:{179 + 4 * (k_ - 24)}]"
S("sH", 4)
for p in range(11):
    S(f"hb{p}")
NE0 = int(opt.get("ne", 1))
NEX = int(opt.get("nex", 6))
NE = NE0 + NEX
HTXT = [f"buffer_load_dwordx4 {HF[s_, p_]}, {r('hv', s_, 1)}, SRD, {r(f'hb{p_}')} offen {HPOL}" for s_, p_ in HORD]

main = []
QF = win(init[6:], 0, 9 if CORD[0] == "A" else 6)
touched = set()
for it in range(4):
    at[f"I{it}"] = len(main)
    if CORD[it] == "A":
        order = [(c, d) for c in range(7, -1, -1) for d in range(8 - c)]
    else:
        order = [(c, d) for d in range(8) for c in range(7 - d, -1, -1)]
    lastF = {c: max(k for k, (c2, d2) in enumerate(order) if c2 == c) for c in range(8)}
    lastG = {d: max(k for k, (c2, d2) in enumerate(order) if d2 == d) for d in range(8)}
    seenF, seenG = set(), set()
    for k, (c, d) in enumerate(order):
        t = c + d
        wt = None
        if c not in seenF and d not in seenG:
            wt = dict(lg=f"F{it}_{c}", lg2=f"G{it}_{d}")
        elif c not in seenF:
            wt = dict(lg=f"F{it}_{c}")
        elif d not in seenG:
            wt = dict(lg=f"G{it}_{d}")
        seenF.add(c); seenG.add(d)
        main.append(M(r("cy", 4 * t, 4), r("cf", 4 * c, 4), r("cg", 4 * d, 4), t not in touched, wt))
        touched.add(t)
        if it == 0 and c == 0:
            main.append(M(r("cy", 4 * t, 4), r("fd"), r("cg", 4 * d, 4), False))
        idx = len(main) - 1
        if it < 3:
            if k == lastG[d]:
                QF += win([rdG(it + 1, d)], idx, idx + (0 if CORD[it] == "A" else 1))
            if k == lastF[c]:
                QF += win([rdF(it + 1, c)], idx, idx + (0 if c == 0 else 1))
at["I4"] = len(main)
if SSET == "cv":
    for k_ in range(0, 152, 8):
        main[k_] = It(lambda f=main[k_].fn, k_=k_: (stamp(f"m{k_}", "cv"), f()), main[k_].cost)
if VMODE == "F" and NV3:
    QW = win(rdW2(2) + rdW2(3) + rdW2(4), 8, 44) + win(rdW2(5) + rdW2(6), 48, 76) + win(rdW2(7) + rdW2(8), 78, 104) + win(rdW2(9), 108, 124)
    QV = win(dmaW2(5) + dmaW2(6) + dmaW2(7), 0, 46) + win(dmaW2(8) + dmaW2(9), 48, 78)
elif VMODE == "F":
    QW = win(rdW2(2), 10, 24) + win(rdW2(3) + rdW2(4), 40, 66) + win(rdW2(5) + rdW2(6) + rdW2(7), 68, 104)
    QW += win(rdW2(8), 106, 118) + win(rdW2(9), 124, A("I4") - 4)
    QV = win(dmaW2(3) + dmaW2(4) + dmaW2(5) + dmaW2(6) + dmaW2(7), 0, 70) + win(dmaW2(8) + dmaW2(9), 72, 98)
else:
    QW = win(rdW2(0) + rdW2(1) + rdW2(2) + rdW2(3), 8, 50) + win(rdW2(4) + rdW2(5) + rdW2(6), 56, 100)
    QW += win(rdW2(7) + rdW2(8) + rdW2(9), 104, A("I4") - 4)
    QV = win(([] if NV3 else dmaW2(3)) + dmaW2(4), 0, 15) + win(dmaW2(5) + dmaW2(6) + dmaW2(7) + dmaW2(8) + dmaW2(9), 22, 98)
F2POS = int(opt.get("f2pos", 28))
QF2 = win([It(lambda: (g.wait(vm="hst"), setflag(r("f2a"), "f2")), 2)], F2POS, F2POS)
QV += win(dmaW2(10), *((100, 114) if VMODE != "F" else (108, 120) if NV3 else (121, 134)))
P2A = int(opt.get("p2a", 124))
P2C = int(opt.get("p2c", 146))
QF2 += win([It(lambda: pollissue(r("pf2o"), "pf2a"))], P2A, P2A)


def chk2a():
    g.wait(vm="pf2a")
    e(f"v_cmp_ne_u64 vcc, {r('tag')}, {r('pf')}")
    e(f"s_mov_b64 {r('sH', 0, 2)}, {r('sWS', 0, 2)}")
    e(f"s_mov_b32 {r('sH', 3, 1)}, 0x00020000")
    e("s_cmp_eq_u64 vcc, 0")
    e(f"s_cselect_b32 {r('sH', 2, 1)}, {WSZ}, 0")


QV += win([It(chk2a, 2)], P2C, P2C)
QV += win([E(x.replace("SRD", r("sH")), f"H{s_}_{p_}") for (s_, p_), x in zip(HORD[:NE0], HTXT)], P2C + 1, A("I4") - 3)
hex_ = [E(x.replace("SRD", r("sH")), f"H{s_}_{p_}") for (s_, p_), x in list(zip(HORD, HTXT))[NE0:NE]]


def hx():
    if hex_:
        hex_.pop(0)()
QV += win([It(lambda: pollissue(r("pf2o"), "pf2"))], A("I4") - 2, A("I4") - 2)
S("early")
QB = []
QM = win([It(lambda p=p: (e(f"s_lshr_b32 {r(f'hb{p}')}, {r(f'kb{p}')}, 5"), e(f"s_min_u32 {r(f'hb{p}')}, {r(f'hb{p}')}, {42 * 1024}")), 0.6)
          for p in range(11)], 30, 70)
QB = win(lateC_items, 4, 100)
schedule(main, [QF, QW, QV, QM, QF2, QB])
g.free("tt2", "ns", "tok16", "L0", "L2", "L3", "L4")
stamp("conv")
stamp("conv", "g2")
rv10 = rdW2(10) if KCV else []
g.free("cf", "cg", "fd", "fa", "ga", "w2s", "w4k", "f2a", "hp")
for p in range(11):
    g.free(f"kb{p}")
V("ys", 8); V("cg", 24); V("sv", 4)
AC("hfa", 80, at=176)
hx()
g.wait(lg=0)
e(f"s_cmp_lg_u32 {r('wodd')}, 0")
e("s_cbranch_scc1 L_odd1")
lsv_ = g.lg_done
for k in range(4):
    e(f"ds_write_b128 {r('oa')}, {r('cy', 16 + 4 * k, 4)} offset:{1024 * k}")
e("s_branch L_j1")
g.label("L_odd1")
e("s_nop 4")
for k in range(4):
    e(f"ds_write_b128 {r('oa')}, {r('cy', 4 * k, 4)} offset:{1024 * k}")
g.wait(lg=0)
for k in range(8):
    e(f"v_pk_mov_b32 {r('cy', 2 * k, 2)}, {r('cy', 16 + 2 * k, 2)}, {r('cy', 16 + 2 * k, 2)} op_sel:[0,1]")
g.label("L_j1")
g.lg_done = lsv_
hx()
g.wait(lg=0)
e("s_barrier")
for k in range(4):
    e(f"ds_read_b128 {r('cg', 4 * k, 4)}, {r('pa')} offset:{1024 * k}", f"ex{k}")
hx(); hx()
for k in range(4):
    g.wait(lg=f"ex{k}")
    for hh in range(2):
        e(f"v_pk_add_f32 {r('cy', 4 * k + 2 * hh, 2)}, {r('cy', 4 * k + 2 * hh, 2)}, {r('cg', 4 * k + 2 * hh, 2)}")
    for hh in range(2):
        e(f"v_cvt_pk_bf16_f32 {r('cg', 16 + 2 * k + hh, 1)}, {r('cy', 4 * k + 2 * hh, 1)}, {r('cy', 4 * k + 2 * hh + 1, 1)}")
    e(f"ds_write_b64 {r('yw')}, {r('cg', 16 + 2 * k, 2)} offset:{4096 + 512 * k}", f"yw{k}")
    if k & 1:
        e(f"ds_read_b128 {r('ys', 2 * (k - 1), 4)}, {r('oa')} offset:{4096 + 512 * (k - 1)}", f"yr{k >> 1}")
hx()
g.wait(lg="yr0")
e(f"buffer_store_dwordx4 {r('ys', 0, 4)}, {r('l16')}, {r('sWS')}, {r('yo')} offen sc1", "yst")
g.wait(lg="yr1")
e(f"buffer_store_dwordx4 {r('ys', 4, 4)}, {r('l16')}, {r('sWS')}, {r('yo')} offen offset:1024 sc1", "yst")
stamp("yst")
stamp("yst", "g2")
while hex_:
    hx()
g.free("cy", "pa", "yw", "cg", "yo")

V("ac2", 32)
e(f"s_cmp_lg_u32 {r('sH', 2, 1)}, 0")
e("s_cbranch_scc1 L_haveH")
sv_ = g.vm_done
pollcheck(r("pf2o"), "pf2", before_spin=["s_waitcnt vmcnt(0)"] + flagtxt(r("f3a"), L3S))
n_ = len(g.vm)
for x in HTXT[:NE]:
    e(x.replace("SRD", r("sWS")))
del g.vm[n_:]
g.label("L_haveH")
g.vm_done = 0
n_late = len(g.vm)
stamp("f2")
hl = [E(x.replace("SRD", r("sWS")), f"H{s_}_{p_}") for (s_, p_), x in zip(HORD, HTXT)]


def g2(s):
    return [M(r("ac2", (s & 1) * 16 + 4 * nb, 4), w2f(p, nb), HF[s, p], p == 0,
              (dict(vm=f"H{s}_{p}", lg="rv10") if (s == 0 and p == 10) else dict(vm=f"H{s}_{p}")) if nb == 0 else None)
            for p in range(11) for nb in range(4)]


def pwr(s):
    return [E(f"ds_write_b64 {r('pw', s, 1)}, {r('ac2', (s & 1) * 16 + 2 * k, 2)} offset:{512 * k}", "pw", 1.5) for k in range(8)]


V("xr", 8); V("xfp", 16); V("xn", 16)
pre = rv10 + [It(lambda: gcheck("sv", r("svr"), "sv")), W(vm="xt")]
for nb in range(4):
    pre.append(E(f"ds_read_b64 {r('xr', 2 * nb, 2)}, {r('ea', nb, 1)} offset:6144", "xr"))
PRESH = int(opt.get("presh", 1))
pre2 = [W(lg="xr")]
if PRESH:
    for d in range(8):
        lo, hi = r("xfp", 2 * d, 1), r("xfp", 2 * d + 1, 1)
        a_, b_ = r("xn", 2 * d, 1), r("xn", 2 * d + 1, 1)
        pre2.append(E(f"v_lshlrev_b32 {lo}, 16, {r('xr', d, 1)}"))
        pre2.append(E(f"v_and_b32 {hi}, {r('hmask')}, {r('xr', d, 1)}"))
        pre2.append(E(f"v_sub_f32 {a_}, {lo}, {r('sv', 0, 1)}"))
        pre2.append(E(f"v_sub_f32 {b_}, {hi}, {r('sv', 0, 1)}"))
        pre2.append(E(f"v_cvt_pk_bf16_f32 {b_}, {a_}, {b_}"))
        pre2.append(E(f"v_lshlrev_b32 {a_}, 16, {b_}"))
        pre2.append(E(f"v_and_b32 {b_}, {r('hmask')}, {b_}"))
        pre2.append(E(f"v_mul_f32 {a_}, {a_}, {r('sv', 1, 1)}"))
        pre2.append(E(f"v_mul_f32 {b_}, {b_}, {r('sv', 1, 1)}"))
        pre2.append(E(f"v_cvt_pk_bf16_f32 {b_}, {a_}, {b_}"))
        pre2.append(E(f"v_lshlrev_b32 {a_}, 16, {b_}"))
        pre2.append(E(f"v_and_b32 {b_}, {r('hmask')}, {b_}"))
else:
    pre2 += unpack("xfp", 0, "xr", 0, 8)
    for d in range(8):
        pre2.append(E(f"v_pk_add_f32 {r('xn', 2 * d, 2)}, {r('xfp', 2 * d, 2)}, {r('sv', 0, 2)} op_sel_hi:[1,0] neg_lo:[0,1] neg_hi:[0,1]"))
    for d in range(8):
        pre2.append(E(f"v_cvt_pk_bf16_f32 {r('xr', d, 1)}, {r('xn', 2 * d, 1)}, {r('xn', 2 * d + 1, 1)}"))
    pre2 += unpack("xn", 0, "xr", 0, 8)
    for d in range(8):
        pre2.append(E(f"v_pk_mul_f32 {r('xn', 2 * d, 2)}, {r('xn', 2 * d, 2)}, {r('sv', 0, 2)} op_sel:[0,1] op_sel_hi:[1,1]"))
    for d in range(8):
        pre2.append(E(f"v_cvt_pk_bf16_f32 {r('xr', d, 1)}, {r('xn', 2 * d, 1)}, {r('xn', 2 * d + 1, 1)}"))
    pre2 += unpack("xn", 0, "xr", 0, 8)
if PRESH:
    run(weave(rv10 or [It(lambda: None)], (hl[NE:NH0], 0, 9)))
    QPRE = win(pre[len(rv10):], 66, 72) + win(pre2, 78, 138)
else:
    run(weave(pre + pre2, (hl[NE:NH0], 0, 88)))
    QPRE = []
e(f"s_cmp_lg_u32 {r('sH', 2, 1)}, 0")
e("s_cbranch_scc1 L_lateok")
e(f"s_waitcnt vmcnt({len(g.vm) - n_late})")
g.label("L_lateok")
stamp("f3set")
stamp("f3set", "g2")
ps_alias = {}
B7P = 14
main = g2(0) + g2(1) + g2(2) + g2(3)[:B7P]
if SSET == "g2b":
    for k_ in range(0, 140, 8):
        main[k_] = It(lambda f=main[k_].fn, k_=k_: (stamp(f"m{k_}", "g2b"), f()), main[k_].cost)
P3K = int(opt.get("p3k", 44))
HPACE = float(opt.get("hpace", 3.8))
xtl = [It(lambda: (e(f"s_add_u32 m0, {r('own')}, 6144"), e("s_nop 0"), e(f"buffer_load_dwordx4 {r('xs', 0, 1)}, {r('sX')}, {r('tile0')} offen lds", "xt")), 1.5),
       E(f"buffer_load_dwordx4 {r('xs', 1, 1)}, {r('sX')}, {r('tile0')} offen offset:1024 lds", "xt"),
       E(f"buffer_load_dwordx4 {r('sv')}, {r('svr')}, {r('sWS')}, 0 offen sc1", "sv")]
XK = NH0 + 6
QH = win(hl[NH0:XK] + xtl + hl[XK:P3K] + [It(lambda: pollissue(r("pf3o"), "pf3"))] + hl[P3K:], 0, int(HPACE * (47 - NH0)))
QP = win(pwr(0), 48, 70) + win(pwr(1), 92, 114) + win(pwr(2), 134, 143)
F3POS = int(opt.get("f3pos", 34))
QF3 = win([It(lambda: (g.wait(vm="yst"), setflag(r("f3a"), "f3")), 2)], F3POS, F3POS)
schedule(main, [QH, QP, QF3, QPRE])
g.free("ys", "xr", "sv", "svr", "pf2o", "w2r")
stamp("g2s2")
stamp("g2s2", "g2")
g.wait(lg=0)
stamp("b7a", "g2")
e("s_barrier")
stamp("b7b", "g2")
g.free("hfv")
V("ps", 48); V("zr", 8); V("b2f", 16)
rp = [E(f"ds_read_b128 {r('b2f', 4 * nb, 4)}, {r('csr0')} offset:{B2T - CSX + 64 * nb}", "rb2") for nb in range(4)]
rp += [E(f"ds_read2st64_b64 {r('ps', 4 * k, 4)}, {r('psr')} offset0:{2 * k} offset1:{2 * k + 1}", f"rp{k}") for k in range(12)]
adds = [W(lg="rp11")]
for k in range(16):
    adds.append(E(f"v_add_f32 {r('ps', k, 1)}, {r('ps', k, 1)}, {r('ps', 16 + k, 1)}"))
    adds.append(E(f"v_add_f32 {r('b2f', k, 1)}, {r('b2f', k, 1)}, {r('ps', 32 + k, 1)}"))
ztxt = [f"buffer_load_dwordx4 {r('zs')}, {r('sWS')}, {r('zo')} offen sc1 lds",
        f"buffer_load_dwordx4 {r('zs')}, {r('sWS')}, {T3} offen offset:1024 sc1 lds"]


def zfirst():
    stamp("zfa", "g2")
    g.wait(vm="pf3")
    stamp("zfb", "g2")
    e(f"v_cmp_ne_u64 vcc, {r('tag')}, {r('pf')}")
    e(f"s_add_u32 m0, {r('own')}, 8192")
    e(f"s_add_u32 {T3}, {r('zo')}, {32 * KP - 1024}")
    e("s_cmp_eq_u64 vcc, 0")
    e(f"s_cselect_b32 {r('early')}, 1, 0")
    e("s_cbranch_scc0 L_noz")
    n_ = len(g.vm)
    for x in ztxt:
        e(x)
    del g.vm[n_:]
    g.label("L_noz")
    pollissue(r("pf3o"), "pf3b")


ZPOS = int(opt.get("zpos", 8))
schedule(g2(3)[B7P:], [win(rp, 0, 11), win(adds, 16, 29), win([It(zfirst, 3)], ZPOS, ZPOS)])
stamp("g2")
stamp("g2", "g2")
S("nl2", 2); V("bq", 2)
e(f"s_or_b32 {T2}, s2, {r('wave')}")
e(f"s_cselect_b32 {T2}, 0x7e000000, 0")
e(f"s_add_u32 {T2}, {T2}, {F3B}")
e(f"v_mov_b32 {r('tb')}, {2 * G3S}")
e(f"v_mov_b32 {r('bq', 0, 1)}, {r('tag', 0, 1)}")
e(f"v_mov_b32 {r('bq', 1, 1)}, {r('tag', 1, 1)}")
e(f"v_and_b32 {r('ta')}, 7, {r('lane')}")
e(f"v_mad_u32_u24 {r('ta')}, {r('ta')}, {r('tb')}, {T2}")
e("s_mov_b64 exec, 0xff")
e(f"buffer_load_dwordx2 {r('bq')}, {r('ta')}, {r('sWS')}, 0 offen sc1", "bq")
e("s_mov_b64 exec, -1")
e(f"s_mov_b32 {r('nl2', 0, 1)}, 0x{f2u(-1.4426950408889634):08x}")
e(f"s_mov_b32 {r('nl2', 1, 1)}, 0x{f2u(-1.4426950408889634):08x}")
srd("sA", 11, 2097152)
Mm = lambda k: r("ps", 2 * k, 2)
Tt = lambda k: r("ps", 16 + 2 * k, 2)
e(".p2align 3")
for k in range(8):
    e(f"v_pk_add_f32 {Mm(k)}, {Mm(k)}, {r('b2f', 2 * k, 2)}")
for k in range(8):
    e(f"v_pk_add_f32 {Mm(k)}, {Mm(k)}, {r('ac2', 16 + 2 * k, 2)}")
for k in range(8):
    e(f"v_pk_mul_f32 {Tt(k)}, {Mm(k)}, {r('nl2')}")
for k in range(16):
    e(f"v_exp_f32 {r('ps', 16 + k, 1)}, {r('ps', 16 + k, 1)}")
for k in range(8):
    e(f"v_pk_mul_f32 {Mm(k)}, {Mm(k)}, {r('xn', 2 * k, 2)}")
for k in range(8):
    e(f"v_pk_add_f32 {Tt(k)}, {Tt(k)}, 1.0 op_sel_hi:[1,0]")
for k in range(16):
    e(f"v_rcp_f32 {r('ps', 16 + k, 1)}, {r('ps', 16 + k, 1)}")
e(f"s_cmp_eq_u32 {r('early')}, 1")
e("s_cbranch_scc1 L_havez")
pollcheck(r("pf3o"), "pf3b")
for x in ztxt:
    e(x)
g.label("L_havez")
e("s_waitcnt vmcnt(0)")
stamp("z")
stamp("z", "g2")
for nb in range(4):
    e(f"ds_read_b64_tr_b16 {r('zr', 2 * nb, 2)}, {r('zt')} offset:{8192 + 512 * nb}", f"zr{nb}")
for k in range(8):
    e(f"v_pk_mul_f32 {Mm(k)}, {Mm(k)}, {Tt(k)}")
for nb in range(4):
    g.wait(lg=f"zr{nb}")
    run(unpack("ps", 16 + 4 * nb, "zr", 2 * nb, 2))
    for k in (2 * nb, 2 * nb + 1):
        e(f"v_pk_fma_f32 {Mm(k)}, {Mm(k)}, {Tt(k)}, {r('xfp', 2 * k, 2)}")
    for k in (2 * nb, 2 * nb + 1):
        e(f"v_cvt_pk_bf16_f32 {r('zr', k, 1)}, {r('ps', 2 * k, 1)}, {r('ps', 2 * k + 1, 1)}")
    e(f"ds_write_b64 {r('ea', nb, 1)}, {r('zr', 2 * nb, 2)} offset:10240", "ow")
e(f"ds_read_b128 {r('ps', 32, 4)}, {r('oa')} offset:10240", "or0")
e(f"ds_read_b128 {r('ps', 36, 4)}, {r('oa')} offset:11264", "or1")
g.wait(lg="or0")
e(f"buffer_store_dwordx4 {r('ps', 32, 4)}, {r('xs', 0, 1)}, {r('sA')}, {r('tile0')} offen {OPOL}", "ost")
g.wait(lg="or1")
e(f"buffer_store_dwordx4 {r('ps', 36, 4)}, {r('xs', 1, 1)}, {r('sA')}, {r('tile0')} offen offset:1024 {OPOL}", "ost")
stamp("out")
stamp("out", "g2")
e(f"s_or_b32 {T2}, s2, {r('wave')}")
e("s_cbranch_scc1 L_bumped")
if SPINMAX:
    e(f"s_mov_b32 {T4}, 0")
g.label("L_bump_l")
e(f"v_cmp_ne_u64 vcc, {r('tag')}, {r('bq')}")
e("s_cmp_eq_u64 vcc, 0")
e("s_cbranch_scc1 L_bump_ok")
if SPINMAX:
    e(f"s_add_u32 {T4}, {T4}, 1")
    e(f"s_cmp_gt_u32 {T4}, {SPINMAX}")
    e("s_cbranch_scc1 L_bumped")
e(f"buffer_load_dwordx2 {r('bq')}, {r('ta')}, {r('sWS')}, 0 offen sc1")
e("s_waitcnt vmcnt(0)")
e("s_branch L_bump_l")
g.label("L_bump_ok")
e(f"s_mov_b32 {T2}, {EPOCH}")
e("s_mov_b64 exec, 1")
e(f"buffer_store_dwordx2 {r('vtag', 0, 2)}, {r('zero')}, {r('sWS')}, {T2} offen sc1")
e("s_mov_b64 exec, -1")
g.label("L_bumped")
if STAMPS:
    e("s_waitcnt vmcnt(0)")
    stamp("end")
    g.smem_out = True
    flush_stamps(True)
    e(f"s_lshl_b32 {T2}, s2, 2")
    e(f"s_add_u32 {T2}, {T2}, {r('wave')}")
    e(f"s_lshl_b32 {T2}, {T2}, 7")
    e(f"s_add_u32 {T2}, {T2}, {STAMP}")
    e(f"v_lshlrev_b32 {r('ta')}, 2, {r('lane')}")
    e("s_mov_b32 exec_hi, 0")
    e(f"buffer_store_dword {r('stamps')}, {r('ta')}, {r('sWS')}, {T2} offen")
    if DBG:
        e(f"s_cmp_lg_u32 {T2}, {STAMP + (DBG - 1) * 512}")
        e("s_cbranch_scc1 L_end")
        e(f"v_readfirstlane_b32 {T3}, {r('stamps')}")
        e(f"v_subrev_u32 {r('tb')}, {T3}, {r('stamps')}")
        e(f"global_store_dword {r('ta')}, {r('tb')}, {ptr(12)}")
if AMP:
    e("s_waitcnt vmcnt(0) lgkmcnt(0)")
    e("s_memrealtime s[100:101]")
    e("s_sub_u32 s98, s98, s96")
    e("s_lshl_b32 s98, s98, 1")
    e("s_waitcnt lgkmcnt(0)")
    g.label("L_amp")
    e(f"s_memrealtime {r('t45', 0, 2)}")
    e("s_waitcnt lgkmcnt(0)")
    e(f"s_sub_u32 {T1_}, {T1_}, s100")
    e(f"s_cmp_lt_u32 {T1_}, s98")
    e("s_cbranch_scc1 L_amp")
if UNTIL:
    g.label("L_until")
    e(f"s_memrealtime {r('t45', 0, 2)}")
    e("s_waitcnt lgkmcnt(0)")
    e(f"s_sub_u32 {T1_}, {T1_}, {r('t_start', 0, 1)}")
    e(f"s_cmp_lt_u32 {T1_}, {UNTIL}")
    e("s_cbranch_scc1 L_until")
PAD = int(opt.get("pad", 0))
if PAD:
    e(f"s_mov_b32 {T2}, 0")
    g.label("L_pad")
    for _ in range(120):
        e(f"v_add_u32 {r('ta')}, 1, {r('tb')}")
    e(f"s_add_u32 {T2}, {T2}, 1")
    e(f"s_cmp_lt_u32 {T2}, {PAD}")
    e("s_cbranch_scc1 L_pad")
g.label("L_end")
e("s_endpgm")
for t_ in tails:
    t_()

body = g.finish()
hdr = open("cdna_kernels/" + NAME + ".s.ref").read().split("; @launch")[0]
nv = 256 + g.hw["a"]
txt = f"""{hdr}; @launch grid=(256,1,1) block=(256,1,1) lds={LDSZ}
; ---------------------------------------------------------------------------------------------------------
;    (the D skip term is one extra tap).
; ---------------------------------------------------------------------------------------------------------
.amdgcn_target "amdgcn-amd-amdhsa--gfx950"
.text
.globl {NAME}_kernel
.p2align 8
.type {NAME}_kernel,@function
{NAME}_kernel:
{body}
    s_endpgm
.section .rodata,"a"
.p2align 6
.amdhsa_kernel {NAME}_kernel
  .amdhsa_next_free_vgpr {nv}
  .amdhsa_next_free_sgpr 102
  .amdhsa_accum_offset 256
  .amdhsa_group_segment_fixed_size 0
  .amdhsa_kernarg_size 112
  .amdhsa_user_sgpr_count 2
  .amdhsa_user_sgpr_kernarg_segment_ptr 1
  .amdhsa_system_sgpr_workgroup_id_x 1
.end_amdhsa_kernel
"""
import subprocess, re
open("_g.s", "w").write(txt.replace("CODE_BYTES", "0x1000"))
subprocess.check_call(["clang", "-x", "assembler", "-target", "amdgcn-amd-amdhsa", "-mcpu=gfx950", "-c", "_g.s", "-o", "_g.o"])
hh = subprocess.check_output(["llvm-objdump", "-h", "_g.o"]).decode()
size = int(re.search(r"\.text\s+([0-9a-f]+)", hh).group(1), 16)
txt = txt.replace("CODE_BYTES", str((size - 256) & ~3))
open(OUT, "w").write(txt)
print("code bytes", size, "instrs", len(g.ins), "nops", g.nops, "hw", g.hw, "stamps", nst[0], " ".join(stnames))
```

```python
import sys, struct, re
from dsl import Gen, It, win, schedule

NAME = "recurrent_scan__ssm_conv_h3__mixer_channel_mlp__prompt"
opt = dict(a.split("=") for a in sys.argv[2:])
OUT = sys.argv[1]
MAP1 = int(opt.get("map1", 4))
STAMPS = int(opt.get("stamps", 0))
KVPOL = opt.get("kvpol", "nt")
XPOL0 = opt.get("xpol", "")
KPOL = opt.get("kpol", "nt")
SPINMAX = int(opt.get("spinmax", 0))
PREDIV = int(opt.get("prediv", 16))
OPOL = opt.get("opol", "")
DBG = int(opt.get("dbg", 0))
SSET = opt.get("sset", "main")
TOUCH = int(opt.get("touch", 0))
NH0 = int(opt.get("nh0", 14))
NX0 = int(opt.get("nx0", 7))

KP = int(opt.get("kp", 4352))
KVT, HB, YT, FL, EPOCH, STAMP = 0, 0x240000, 0x800000, 0xA40000, 0xB00000, 0xC00000
F1B, F2B, F3B = FL, FL + 0x30000, FL + 0x60000
L1S, L2S, L3S = (int(opt.get(k, d)) for k, d in (("l1s", 6), ("l2s", 6), ("l3s", 6)))
G1S, G2S, G3S = max(32 << L1S, 256) + 256, max(32 << L2S, 256) + 256, max(64 << L3S, 256) + 256
STA, STB = 0xAE0000, 0xAE0010
HALT = int(opt.get("halt", "0"), 0)
WSZ = 0xD00000 + HALT
XST, KVIMG, CSX, STT = 98816, 147968, 156288, 156672
FP, GP = 4160, 4576
WR = 49664
UB0 = 66048
S3, S4 = 49664, 33280
PX = 49664
B1T, B2T = 157696, 158080
LDSZ = 158336


def f2u(x):
    return struct.unpack("<I", struct.pack("<f", x))[0]


g = Gen()
e, r = g.e, g.r
V = lambda n, c=1, **k: g.alloc("v", n, c, **k)
S = lambda n, c=1, **k: g.alloc("s", n, c, **k)
AC = lambda n, c=1, **k: g.alloc("a", n, c, **k)
W = lambda **k: It(lambda: g.wait(**k), 0.3)
E = lambda s, t=None, cost=None: It(lambda: e(s, t), cost or (1.2 if s.startswith(('ds_', 'buffer_', 'global_')) else 0.3 if s.startswith('s_') else 1))


def run(items):
    for it in items:
        it()


def weave(main, *bgs):
    slots = [[] for _ in main]
    for items, a, b in bgs:
        b = min(b, len(main) - 1)
        n = len(items)
        for k, it in enumerate(items):
            slots[a + (k * (b - a + 1)) // max(n, 1)].append(it)
    out = []
    for m, s in zip(main, slots):
        out.append(m)
        out.extend(s)
    return out


S("karg", 2, at=0); S("wg", 1, at=2); S("t0", 1, at=3)
S("t45", 4, at=4)
for i_ in range(14):
    S(f"ptr{i_}", 2, at=8 + 2 * i_)
V("tid", 1, at=0)
nst = [0]
stnames = []
pend = []
if STAMPS:
    S("st", 8, at=94, align=2)
    V("stamps", 1, at=1)


def flush_stamps(force=False):
    if pend and (force or len(pend) == 4) and g.smem_out:
        g.wait(lg=0)
    if not g.smem_out:
        for k in pend:
            e(f"v_writelane_b32 {r('stamps')}, {r('st', 2 * (k % 4), 1)}, {k}")
        pend.clear()


AMP = opt.get("amp", "")


def stamp(name, grp="main"):
    if AMP and grp == "main" and name in ("start", AMP):
        so_ = g.smem_out
        e(f"s_memrealtime s[{96 if name == 'start' else 98}:{97 if name == 'start' else 99}]")
        if name != "start":
            g.smem_out = so_
    if STAMPS and (grp == SSET or name in ("start", "end")) and name not in opt.get("skip", "").split(","):
        assert nst[0] < 32
        if STAMPS == 3:
            if len(pend) == 3:
                k = pend.pop(0)
                e(f"v_writelane_b32 {r('stamps')}, {r('st', 2 * (k % 4), 1)}, {k}")
            so_ = g.smem_out
            e(f"s_memtime {r('st', 2 * (nst[0] % 4), 2)}")
            g.smem_out = so_
            pend.append(nst[0]); nst[0] += 1; stnames.append(name)
            return
        flush_stamps()
        e(f"{'s_memtime' if STAMPS == 2 else 's_memrealtime'} {r('st', 2 * (nst[0] % 4), 2)}")
        pend.append(nst[0])
        nst[0] += 1
        stnames.append(name)


_wait = g.wait
_wn = [0]
VM0 = int(opt.get("vm0", 0))


def wait_hook(vm=None, lg=None):
    hook = SSET == "vm" and vm is not None and not str(vm).startswith("H")
    if hook:
        _wn[0] += 1
        hook = VM0 < _wn[0] <= VM0 + 15
    if hook:
        stamp(f"b{vm}", "vm")
    _wait(vm=vm, lg=lg)
    if hook:
        stamp(f"a{vm}", "vm")


g.wait = wait_hook


def ptr(i):
    if i == 13 and "ptr13" not in g.names:
        return r("sWS", 0, 2)
    return r(f"ptr{i}")


def plo(i):
    return "s" + ptr(i)[2:].split(":")[0]


def phi(i):
    return "s" + ptr(i).split(":")[1][:-1]


def srd(name, pi, nbytes, add=None):
    if add is None:
        e(f"s_mov_b64 {r(name,0,2)}, {ptr(pi)}")
    else:
        e(f"s_add_u32 {r(name,0,1)}, {plo(pi)}, {add}")
        e(f"s_addc_u32 {r(name,1,1)}, {phi(pi)}, 0")
    e(f"s_mov_b32 {r(name,2,1)}, {nbytes}")
    e(f"s_mov_b32 {r(name,3,1)}, 0x00020000")


T0, T1_, T2, T3, T4 = "s3", "s4", "s5", "s6", "s7"
ABL = opt.get("abl", "").split(",")
_e0 = g.e


LATE = None


def e(text, tag=None):
    if LATE is not None:
        LATE.append(text)
        return
    t = tag or ""
    if ("x" in ABL and t.startswith("X") and t != "X0") or ("w" in ABL and t.startswith("W") and t != "W0") or \
            ("v" in ABL and t.startswith("V")):
        g.vm.append(tag)
        g.vm.pop()
        g.vm.insert(0, tag)
        return
    hook = SSET == "iss" and (text.startswith(("buffer_", "global_", "s_barrier")) or (text.startswith("s_waitcnt") and "vmcnt" in text))
    if hook:
        _in[0] += 1
        hook = VM0 < _in[0] <= VM0 + 15
    if hook:
        stamp("b" + (tag or text.split()[0][2:6]), "iss")
    _e0(text, tag)
    if hook:
        stamp("a", "iss")


_in = [0]
g.e = e


UNTIL = int(opt.get("until", 0))
if UNTIL:
    S("t_start", 2, at=92)
    e(f"s_memrealtime {r('t_start')}")
stamp("start")
e("s_load_dwordx16 s[8:23], s[0:1], 0")
e("s_load_dwordx8 s[24:31], s[0:1], 64")
e("s_load_dwordx4 s[32:35], s[0:1], 96")
e("s_cmp_ge_u32 s2, 256")
e("s_cbranch_scc1 L_end")
for n in ("lane", "ta", "tb", "tc", "td", "r8", "pc", "zero", "i15", "h4", "l16", "oa", "fa", "ga", "pa", "yw", "zs", "zt",
          "pf1o", "pf2o", "pf3o", "psr", "svr", "kw", "za", "sgo", "csr0", "stw"):
    V(n)
V("vtag", 4); V("xs", 4, align=1); V("w2s", 4, align=1); V("w2r", 8, align=1); V("hv", 4, align=1)
V("pw", 3, align=1); V("ea", 4, align=1); V("pf", 2)
V("xrd", 2, align=1); V("w1r", 6, align=1); V("ctr", 3, align=1); V("w1s", 3, align=1)
AC("fd", 4, at=240); AC("ones", 4, at=244); AC("zz", 4, at=248)
for n in ("wave", "T1", "q", "tt2", "ns", "rot", "b0", "nown", "tok16", "ns128", "tile0", "own", "hmask", "so",
          "f1a", "f2a", "f3a", "yo", "zo", "um0", "ush"):
    S(n)
sh_ = PREDIV.bit_length() - 1
V("pre")
e(f"s_lshr_b32 {T1_}, s2, 3")
e(f"v_lshrrev_b32 {r('tc')}, {sh_}, v0")
e(f"s_and_b32 {T2}, {T1_}, {PREDIV - 1}")
e(f"v_lshl_add_u32 {r('tc')}, {r('tc')}, {sh_}, {T2}")
e(f"v_lshlrev_b32 {r('tc')}, 7, {r('tc')}")
e(f"v_min_u32 {r('tc')}, CODE_BYTES, {r('tc')}")
e(f"s_getpc_b64 {r('t45', 2, 2)}")
e(f"global_load_dword {r('pre')}, {r('tc')}, {r('t45', 2, 2)}", "pre")
e(f"v_and_b32 {r('lane')}, 63, v0")
e(f"v_lshrrev_b32 {r('ta')}, 6, v0")
e(f"s_and_b32 {T0}, s2, 7")
e(f"v_readfirstlane_b32 {r('wave')}, {r('ta')}")
if MAP1 == 8:
    e(f"s_lshr_b32 {T2}, {T1_}, 4")
    e(f"s_lshl_b32 {r('T1')}, {T0}, 1")
    e(f"s_add_u32 {r('T1')}, {r('T1')}, {T2}")
    e(f"s_and_b32 {r('q')}, {T1_}, 15")
    e(f"s_lshl_b32 {T2}, {T2}, 2")
    e(f"s_add_u32 {r('rot')}, {T2}, {r('q')}")
else:
    e(f"s_lshr_b32 {T2}, {T0}, 1")
    e(f"s_lshl_b32 {T2}, {T2}, 2")
    e(f"s_lshr_b32 {T3}, {T1_}, 3")
    e(f"s_add_u32 {r('T1')}, {T2}, {T3}")
    e(f"s_and_b32 {T2}, {T0}, 1")
    e(f"s_lshl_b32 {T2}, {T2}, 3")
    e(f"s_add_u32 {T3}, {T1_}, {int(opt.get('jrot', 0))}")
    e(f"s_and_b32 {T3}, {T3}, 7")
    e(f"s_add_u32 {r('q')}, {T2}, {T3}")
    e(f"s_lshl_b32 {T2}, {r('T1')}, 1")
    e(f"s_add_u32 {r('rot')}, {T2}, {r('q')}")
e(f"s_and_b32 {r('rot')}, {r('rot')}, 7")
e(f"s_lshr_b32 {T2}, {r('q')}, 3")
e(f"s_lshl_b32 {r('tt2')}, {r('T1')}, 1")
e(f"s_add_u32 {r('tt2')}, {r('tt2')}, {T2}")
e(f"s_and_b32 {r('ns')}, {r('q')}, 7")
V("k0"); V("kd", 2, align=1); V("sho")
e(f"v_lshrrev_b32 {r('r8')}, 3, {r('lane')}")
e(f"v_and_b32 {r('pc')}, 7, {r('lane')}")
e(f"s_lshl_b32 {T2}, {r('tt2')}, 2")
e(f"s_add_u32 {r('tok16')}, {T2}, {r('wave')}")
e(f"s_lshl_b32 {T2}, {r('tok16')}, 14")
e(f"s_lshl_b32 {r('ns128')}, {r('ns')}, 7")
e(f"s_add_u32 {r('tile0')}, {T2}, {r('ns128')}")
e(f"s_mul_i32 {r('own')}, {r('wave')}, 12288")
e(f"s_add_u32 {r('own')}, {r('own')}, {XST}")
S("sA", 4); S("sB", 4); S("sX", 4); S("sW1", 4); S("sWS", 4)
for nm, sz in (("sX", 2097152), ("sW1", 1409024)):
    e(f"s_mov_b32 {r(nm,2,1)}, {sz}")
    e(f"s_mov_b32 {r(nm,3,1)}, 0x00020000")
e(f"s_mul_i32 {r('b0')}, {r('q')}, 3")
e(f"s_lshr_b32 {T2}, {r('q')}, 2")
e(f"s_sub_u32 {r('b0')}, {r('b0')}, {T2}")
e(f"s_min_u32 {T2}, {r('q')}, 1")
e(f"s_sub_u32 {r('b0')}, {r('b0')}, {T2}")
e(f"s_bitcmp1_b32 0x8889, {r('q')}")
e(f"s_cselect_b32 {r('nown')}, 2, 3")
ZOWN = int(opt.get("zown", 1))
e(f"s_lshl_b32 {T3}, {r('nown')}, 2")
for c in range(3):
    e(f"v_add_u32 {r('ta')}, {64 * c}, {r('lane')}")
    e(f"v_mul_u32_u24 {r('tb')}, 43691, {r('ta')}")
    e(f"v_lshrrev_b32 {r('tb')}, 19, {r('tb')}")
    e(f"v_mul_u32_u24 {r('tc')}, 12, {r('tb')}")
    e(f"v_sub_u32 {r('tc')}, {r('ta')}, {r('tc')}")
    e(f"v_lshrrev_b32 {r('td')}, 2, {r('tb')}")
    e(f"v_and_b32 {r('td')}, 2, {r('td')}")
    e(f"v_xor_b32 {r('tc')}, {r('tc')}, {r('td')}")
    e(f"v_mul_u32_u24 {r('tb')}, 2752, {r('tb')}")
    e(f"v_lshl_add_u32 {r('tb')}, {r('tc')}, 4, {r('tb')}")
    if ZOWN:
        e(f"v_cmp_le_u32 vcc, {T3}, {r('tc')}")
        e(f"v_subrev_u32 {r('tb')}, {1024 * c}, {r('tb')}")
        e(f"v_bfrev_b32 {r('td')}, 2")
        e(f"v_cndmask_b32 {r('w1s', c, 1)}, {r('tb')}, {r('td')}, vcc")
    else:
        e(f"v_subrev_u32 {r('w1s', c, 1)}, {1024 * c}, {r('tb')}")
S("w1lds"); S("xbase"); S("xk"); S("wo"); S("wlim")
e(f"s_lshl_b32 {T3}, {r('b0')}, 6")
e(f"s_lshl_b32 {T2}, {r('T1')}, 2")
e(f"s_add_u32 {T2}, {T2}, {r('wave')}")
e(f"s_lshl_b32 {r('xbase')}, {T2}, 15")
e(f"s_lshl_b32 {r('xk')}, {r('rot')}, 7")
e(f"s_mul_i32 {T4}, {r('wave')}, {16 * 2752}")
e(f"s_add_u32 {T4}, {T4}, {T3}")
e(f"s_add_u32 {r('wlim')}, {T4}, {512 * 2752}")
e(f"s_mul_i32 {T2}, {r('rot')}, {64 * 2752}")
e(f"s_add_u32 {r('wo')}, {T2}, {T4}")
e(f"s_mul_i32 {r('w1lds')}, {r('wave')}, 3072")
e(f"s_add_u32 {r('w1lds')}, {r('w1lds')}, {WR}")
e(f"v_lshrrev_b32 {r('ta')}, 1, {r('r8')}")
e(f"v_xor_b32 {r('ta')}, {r('ta')}, {r('pc')}")
e(f"v_lshlrev_b32 {r('ta')}, 4, {r('ta')}")
e(f"v_lshl_add_u32 {r('xs', 0, 1)}, {r('r8')}, 10, {r('ta')}")
e(f"v_xor_b32 {r('tb')}, 64, {r('xs', 0, 1)}")
e(f"v_add_u32 {r('xs', 1, 1)}, 7168, {r('tb')}")
e(f"v_add_u32 {r('xs', 2, 1)}, {2 * 7168}, {r('xs', 0, 1)}")
e(f"v_add_u32 {r('xs', 3, 1)}, {3 * 7168}, {r('tb')}")
g.wait(lg=0)
e(f"s_mov_b64 {r('sX',0,2)}, {ptr(0)}")
e(f"s_mov_b64 {r('sW1',0,2)}, {ptr(7)}")


def dmaW1(n):
    items = []
    for c in range(3):
        def it(c=c):
            if c == 0:
                e(f"s_add_u32 m0, {r('w1lds')}, {(n % 4) * 12288}")
                if n:
                    e(f"s_cmp_ge_u32 {r('wo')}, {r('wlim')}")
                    e(f"s_cselect_b32 {T2}, {512 * 2752}, 0")
                    e(f"s_sub_u32 {r('wo')}, {r('wo')}, {T2}")
            e(f"buffer_load_dwordx4 {r('w1s', c, 1)}, {r('sW1')}, {r('wo')} offen offset:{1024 * c} lds", f"W{n}")
            if c == 2:
                e(f"s_add_u32 {r('wo')}, {r('wo')}, {64 * 2752}")
        items.append(It(it, (2, 1.2, 1.5)[c]))
    return items


def dmaX(ei):
    items = []
    for n in range(4):
        def it(n=n):
            xo = r("so")
            if n == 0:
                e(f"s_add_u32 m0, {r('own')}, {(ei % 3) * 4096}")
                e(f"s_or_b32 {xo}, {r('xk')}, {r('xbase')}")
            pol = XPOL0 if ei < 1 else ""
            e(f"buffer_load_dwordx4 {r('xs', n, 1)}, {r('sX')}, {xo} offen offset:{1024 * n} {pol} lds", f"X{ei}")
            if n == 1:
                e(f"s_add_u32 {r('xk')}, {r('xk')}, 128")
            if n == 2:
                e(f"s_and_b32 {r('xk')}, {r('xk')}, 0x3ff")
        items.append(It(it, (1.8, 1.5, 1.5, 1.2)[n]))
    return items


srd("sWS", 13, WSZ, add=(int(opt.get("wsb", 0)) << 20) or None)
V("sx", 8, at=200); V("sacc", 4); V("u", 4); V("gq", 4); V("stv", 2)
e(f"v_mov_b32 {r('zero')}, 0")
e(f"s_mov_b32 {T0}, {EPOCH}")
e("s_mov_b64 exec, 1")
e(f"buffer_load_dwordx2 {r('pf')}, {r('zero')}, {r('sWS')}, {T0} offen sc1", "ep")
e("s_mov_b64 exec, -1")
e(f"v_lshrrev_b32 {r('ta')}, 5, {r('lane')}")
e(f"v_and_b32 {r('tb')}, 31, {r('lane')}")
e(f"v_lshlrev_b32 {r('tb')}, 4, {r('tb')}")
e(f"v_lshl_add_u32 {r('tb')}, {r('ta')}, 10, {r('tb')}")
e(f"s_lshl_b32 {T2}, {r('T1')}, 4")
e(f"s_add_u32 {T2}, {T2}, {r('q')}")
e(f"s_lshl_b32 {T2}, {T2}, 2")
e(f"s_add_u32 {T2}, {T2}, {r('wave')}")
e(f"s_lshl_b32 {T3}, {T2}, 11")
e(f"buffer_load_dwordx4 {r('sx', 0, 4)}, {r('tb')}, {r('sX')}, {T3} offen", "sx")
e(f"buffer_load_dwordx4 {r('sx', 4, 4)}, {r('tb')}, {r('sX')}, {T3} offen offset:512", "sx")
e(f"s_lshl_b32 {T2}, {T2}, 6")
e(f"s_add_u32 {T2}, {T2}, {STA}")
e(f"v_lshl_add_u32 {r('stw')}, {r('lane')}, 4, {T2}")
run(dmaX(0) + dmaW1(0) + dmaW1(1))
S("sD")
e(f"s_lshl_b32 {T2}, s2, 2")
e(f"s_load_dword {r('sD')}, {ptr(5)}, {T2}")
stamp("p0iss")
g.free("ptr0", "ptr6", "ptr7", "ptr13", "karg", "rot", "ptr5")
S("tag", 2)
if not DBG:
    g.free("ptr12")
e(f"v_lshlrev_b32 {r('tb')}, 4, {r('pc')}")
e(f"v_lshl_add_u32 {r('ta')}, {r('r8')}, 11, {r('tb')}")
KVX = int(opt.get("kvx", 4))
e(f"s_xor_b32 {T4}, {r('tile0')}, {128 * KVX}")
e(f"v_add_u32 {r('k0')}, {T4}, {r('ta')}")
e(f"v_lshl_add_u32 {r('ta')}, {r('r8')}, 10, {r('tb')}")
e(f"v_add_u32 {r('kd', 1, 1)}, {T4}, {r('ta')}")
e(f"v_subrev_u32 {r('kd', 0, 1)}, 8192, {r('kd', 1, 1)}")
e(f"v_lshlrev_b32 {r('l16')}, 4, {r('lane')}")
e(f"s_lshl_b32 {T3}, {r('ns')}, 9")
e(f"s_xor_b32 {T3}, {T3}, {512 * KVX}")
e(f"v_add_u32 {r('sho')}, {T3}, {r('l16')}")
e(f"v_mov_b32 {r('zero')}, 0")
S("wodd"); S("whi"); S("chan"); V("sa"); V("sb"); V("bb", 2, align=1)
e(f"s_and_b32 {r('wodd')}, {r('wave')}, 1")
e(f"s_lshr_b32 {r('whi')}, {r('wave')}, 1")
e(f"s_lshl_b32 {T2}, s2, 1")
e(f"s_add_u32 {r('chan')}, {T2}, {r('whi')}")
e(f"s_lshl_b32 {r('chan')}, {r('chan')}, 12")
e(f"s_add_u32 {plo(4)}, {plo(4)}, {r('chan')}")
e(f"s_addc_u32 {phi(4)}, {phi(4)}, 0")
e(f"s_lshl_b32 {T3}, {r('wodd')}, 11")
e(f"v_add_u32 {r('sa')}, {T3}, {r('l16')}")
e(f"v_subrev_u32 {r('sb')}, 8, {r('sa')}")
S("kim")
e(f"s_lshl_b32 {r('kim')}, {r('wave')}, 12")
e(f"s_add_u32 {r('kim')}, {r('kim')}, {S4}")
srd("sA", 1, 2097152)
srd("sB", 2, 2097152)
g.free("ptr1", "ptr2")
lateA, lateB, lateC = [], [], []
S("L0"); S("L2"); S("L3"); S("L4")
V("kvw"); V("kvr"); V("kvs"); V("kra"); V("sra"); V("bw", 2, align=1)
e(f"v_and_b32 {r('i15')}, 15, {r('lane')}")
e(f"v_lshrrev_b32 {r('h4')}, 4, {r('lane')}")
e(f"v_add_u32 {r('oa')}, {r('own')}, {r('l16')}")
e(f"v_lshlrev_b32 {r('ta')}, 4, {r('pc')}")
e(f"v_lshl_add_u32 {r('ta')}, {r('r8')}, 8, {r('ta')}")
e(f"v_add_u32 {r('kra')}, {r('kim')}, {r('ta')}")
e(f"v_lshl_add_u32 {r('sra')}, {r('pc')}, 6, {r('kim')}")
e(f"v_lshrrev_b32 {r('ta')}, 1, {r('i15')}")
e(f"v_xor_b32 {r('ta')}, {r('ta')}, {r('h4')}")
e(f"v_lshlrev_b32 {r('ta')}, 4, {r('ta')}")
e(f"v_lshl_add_u32 {r('ta')}, {r('i15')}, 7, {r('ta')}")
e(f"v_add_u32 {r('xrd', 0, 1)}, {r('own')}, {r('ta')}")
e(f"v_xor_b32 {r('xrd', 1, 1)}, 64, {r('xrd', 0, 1)}")
e(f"v_lshrrev_b32 {r('ta')}, 2, {r('i15')}")
e(f"v_lshl_add_u32 {r('ta')}, {r('h4')}, 3, {r('ta')}")
e(f"v_mul_u32_u24 {r('ta')}, 192, {r('ta')}")
e(f"v_and_b32 {r('tb')}, 3, {r('lane')}")
e(f"v_lshl_add_u32 {r('ta')}, {r('tb')}, 3, {r('ta')}")
e(f"v_add_u32 {r('ta')}, {WR}, {r('ta')}")
e(f"v_and_b32 {r('tb')}, 1, {r('h4')}")
e(f"v_lshlrev_b32 {r('tb')}, 5, {r('tb')}")
e(f"v_add_u32 {r('tc')}, {r('ta')}, {r('tb')}")
e(f"v_sub_u32 {r('td')}, {r('ta')}, {r('tb')}")
S("bp", 3, align=1)
for jp in range(3):
    e(f"s_add_u32 {T2}, {r('wave')}, {jp}")
    e(f"s_cmp_ge_u32 {T2}, 3")
    e(f"s_cselect_b32 {T3}, 3, 0")
    e(f"s_sub_u32 {r('bp', jp, 1)}, {T2}, {T3}")
    e(f"s_lshl_b32 {T2}, {r('bp', jp, 1)}, 6")
    e(f"v_add_u32 {r('w1r', 2 * jp, 1)}, {T2}, {r('tc')}")
    e(f"v_add_u32 {r('w1r', 2 * jp + 1, 1)}, {T2}, {r('td')}")
e(f"v_mul_u32_u24 {r('ta')}, 1040, {r('pc')}")
e(f"v_lshlrev_b32 {r('tb')}, 2, {r('r8')}")
e(f"v_sub_u32 {r('ta')}, {r('ta')}, {r('tb')}")
e(f"s_lshl_b32 {T2}, {r('wave')}, 5")
e(f"s_sub_u32 {T2}, {KVIMG + 124}, {T2}")
e(f"v_add_u32 {r('kvw')}, {T2}, {r('ta')}")
e(f"s_mul_i32 {T2}, {r('wave')}, 2080")
e(f"s_add_u32 {T2}, {T2}, {KVIMG}")
e(f"v_add_u32 {r('kvr')}, {T2}, {r('l16')}")
e(f"v_mul_u32_u24 {r('ta')}, {KP}, {r('r8')}")
e(f"v_lshl_add_u32 {r('kvs')}, {r('pc')}, 4, {r('ta')}")
e(f"v_mov_b32 {r('ta')}, 0x3f803f80")
for i in range(4):
    e(f"v_accvgpr_write_b32 {r('ones', i, 1)}, {r('ta')}")
e(f"s_mov_b32 {r('hmask')}, 0xffff0000")
S("kvo")
e(f"s_lshl_b32 {T2}, {r('ns')}, 2")
e(f"s_xor_b32 {T2}, {T2}, {4 * KVX}")
e(f"s_add_u32 {T2}, {T2}, {r('wave')}")
e(f"s_mul_i32 {r('f1a')}, {T2}, {G1S}")
e(f"s_lshl_b32 {T3}, {r('tt2')}, {L1S}")
e(f"s_add_u32 {r('f1a')}, {r('f1a')}, {T3}")
e(f"s_add_u32 {r('f1a')}, {r('f1a')}, {F1B}")
e(f"s_mul_i32 {T2}, {T2}, {16 * KP}")
e(f"s_sub_u32 {T3}, 31, {r('tt2')}")
e(f"s_lshl_b32 {T3}, {T3}, 7")
e(f"s_add_u32 {r('kvo')}, {T2}, {T3}")
LATE = lateB
e(f"s_lshl_b32 {T2}, {r('T1')}, 1")
e(f"s_add_u32 {T2}, {T2}, {r('whi')}")
e(f"s_mul_i32 {r('f2a')}, {T2}, {G2S}")
e(f"s_lshl_b32 {T2}, {r('q')}, 1")
e(f"s_add_u32 {T2}, {T2}, {r('wodd')}")
e(f"s_lshl_b32 {T2}, {T2}, {L2S}")
e(f"s_add_u32 {r('f2a')}, {r('f2a')}, {T2}")
e(f"s_add_u32 {r('f2a')}, {r('f2a')}, {F2B}")
e(f"s_lshr_b32 {T2}, {r('chan')}, 18")
e(f"s_lshl_b32 {T2}, {T2}, 1")
e(f"s_add_u32 {T2}, {T2}, {r('wodd')}")
e(f"s_mul_i32 {r('f3a')}, {T2}, {G3S}")
e(f"s_lshr_b32 {T2}, {r('chan')}, 12")
e(f"s_and_b32 {T2}, {T2}, 63")
e(f"s_lshl_b32 {T2}, {T2}, {L3S}")
e(f"s_add_u32 {r('f3a')}, {r('f3a')}, {T2}")
e(f"s_add_u32 {r('f3a')}, {r('f3a')}, {F3B}")
e(f"v_lshlrev_b32 {r('tc')}, 3, {r('lane')}")
e(f"v_add_u32 {r('zt')}, {r('own')}, {r('tc')}")
e(f"s_mul_i32 {T2}, {T1_}, {G1S}")
e(f"s_add_u32 {T2}, {T2}, {F1B}")
e(f"v_lshrrev_b32 {r('pf1o')}, 1, {r('lane')}")
e(f"v_lshl_add_u32 {r('pf1o')}, {r('pf1o')}, {L1S}, {T2}")
e(f"s_lshr_b32 {T2}, {r('tt2')}, 4")
e(f"s_lshl_b32 {T3}, {r('ns')}, 1")
e(f"s_add_u32 {T2}, {T2}, {T3}")
e(f"s_mul_i32 {T2}, {T2}, {G3S}")
e(f"s_add_u32 {T2}, {T2}, {F3B}")
e(f"v_lshl_add_u32 {r('pf3o')}, {r('lane')}, {L3S}, {T2}")
e(f"v_min_u32 {r('pf2o')}, 9, {r('lane')}")
e(f"s_lshl_b32 {T2}, {r('wave')}, 3")
e(f"v_add_u32 {r('pf2o')}, {T2}, {r('pf2o')}")
e(f"v_min_u32 {r('pf2o')}, 31, {r('pf2o')}")
e(f"s_mul_i32 {T2}, {r('tt2')}, {G2S}")
e(f"s_add_u32 {T2}, {T2}, {F2B}")
e(f"v_lshl_add_u32 {r('pf2o')}, {r('pf2o')}, {L2S}, {T2}")
LATE = None
e(f"v_min_u32 {r('ta')}, 47, {r('lane')}")
e(f"v_lshlrev_b32 {r('bw', 0, 1)}, 3, {r('ta')}")
e(f"v_add_u32 {r('bw', 0, 1)}, {B1T}, {r('bw', 0, 1)}")
e(f"s_lshl_b32 {T2}, {r('b0')}, 6")
e(f"v_lshl_add_u32 {r('bb', 0, 1)}, {r('ta')}, 2, {T2}")
e(f"v_min_u32 {r('bb', 0, 1)}, 2748, {r('bb', 0, 1)}")
e(f"v_and_b32 {r('ta')}, 31, {r('lane')}")
e(f"v_lshlrev_b32 {r('bw', 1, 1)}, 3, {r('ta')}")
e(f"v_add_u32 {r('bw', 1, 1)}, {B2T}, {r('bw', 1, 1)}")
e(f"v_lshl_add_u32 {r('bb', 1, 1)}, {r('ta')}, 2, {r('ns128')}")
LATE = lateA
e(f"v_and_b32 {r('ta')}, 6, {r('r8')}")
e(f"v_xor_b32 {r('ta')}, {r('ta')}, {r('pc')}")
e(f"v_lshlrev_b32 {r('ta')}, 4, {r('ta')}")
e(f"v_lshl_add_u32 {r('w2s', 0, 1)}, {r('r8')}, 10, {r('ta')}")
e(f"v_add_u32 {r('w2s', 0, 1)}, {r('ns128')}, {r('w2s', 0, 1)}")
for n in range(1, 4):
    e(f"v_add_u32 {r('w2s', n, 1)}, {7168 * n}, {r('w2s', 0, 1)}")
e(f"v_lshrrev_b32 {r('ta')}, 2, {r('i15')}")
e(f"v_lshl_add_u32 {r('ta')}, {r('h4')}, 2, {r('ta')}")
e(f"v_lshrrev_b32 {r('tb')}, 1, {r('ta')}")
e(f"v_and_b32 {r('tb')}, 3, {r('tb')}")
e(f"v_lshlrev_b32 {r('tb')}, 5, {r('tb')}")
e(f"v_lshl_add_u32 {r('tb')}, {r('ta')}, 7, {r('tb')}")
e(f"v_and_b32 {r('ta')}, 3, {r('lane')}")
e(f"v_lshl_add_u32 {r('tb')}, {r('ta')}, 3, {r('tb')}")
e(f"v_add_u32 {r('w2r', 0, 1)}, {r('own')}, {r('tb')}")
S("w4k")
e(f"s_lshl_b32 {r('w4k')}, {r('wave')}, 12")
e(f"v_add_u32 {r('w2r', 4, 1)}, {r('w4k')}, {r('tb')}")
for nb in range(1, 4):
    e(f"v_xor_b32 {r('w2r', nb, 1)}, {32 * nb}, {r('w2r', 0, 1)}")
    e(f"v_xor_b32 {r('w2r', 4 + nb, 1)}, {32 * nb}, {r('w2r', 4, 1)}")
for p in range(11):
    S(f"kb{p}")
e(f"s_lshr_b32 {T0}, {T1_}, 3")
e(f"s_mul_i32 {T0}, {T0}, 3")
e(f"s_mul_i32 {T2}, {r('ns')}, 11")
e(f"s_lshr_b32 {T2}, {T2}, 3")
e(f"s_add_u32 {T0}, {T0}, {T2}")
e(f"s_cmp_ge_u32 {T0}, 11")
e(f"s_cselect_b32 {T2}, 11, 0")
e(f"s_sub_u32 {T0}, {T0}, {T2}")
e(f"s_mul_i32 {T3}, {r('wave')}, 11")
e(f"s_add_u32 {T0}, {T0}, {T3}")
e(f"s_add_u32 {T3}, {T3}, 11")
for p in range(11):
    e(f"s_lshl_b32 {r(f'kb{p}')}, {T0}, 15")
    if p < 10:
        e(f"s_add_u32 {T0}, {T0}, 1")
        e(f"s_cmp_ge_u32 {T0}, {T3}")
        e(f"s_cselect_b32 {T2}, 11, 0")
        e(f"s_sub_u32 {T0}, {T0}, {T2}")
LATE = None
LATE = lateB
e(f"v_and_b32 {r('ta')}, 3, {r('lane')}")
e(f"v_mul_u32_u24 {r('fa')}, {FP}, {r('ta')}")
e(f"v_lshrrev_b32 {r('tb')}, 2, {r('i15')}")
e(f"v_add_u32 {r('tb')}, {r('tb')}, {r('h4')}")
e(f"v_lshl_add_u32 {r('fa')}, {r('tb')}, 4, {r('fa')}")
e(f"s_lshl_b32 {T4}, {r('wodd')}, 8")
e(f"s_mul_i32 {T2}, {r('whi')}, {4 * FP}")
e(f"s_add_u32 {T3}, {T4}, {T2}")
e(f"v_add_u32 {r('fa')}, {T3}, {r('fa')}")
e(f"v_and_b32 {r('tc')}, 1, {r('lane')}")
e(f"v_mul_u32_u24 {r('ga')}, {GP}, {r('tc')}")
e(f"v_lshrrev_b32 {r('td')}, 1, {r('i15')}")
e(f"v_lshlrev_b32 {r('td')}, 2, {r('td')}")
e(f"v_sub_u32 {r('td')}, {r('h4')}, {r('td')}")
e(f"v_add_u32 {r('td')}, 28, {r('td')}")
e(f"v_lshl_add_u32 {r('ga')}, {r('td')}, 4, {r('ga')}")
e(f"s_mul_i32 {T3}, {r('whi')}, {2 * GP}")
e(f"s_add_u32 {T3}, {T3}, {T4}")
e(f"s_add_u32 {T3}, {T3}, {UB0}")
e(f"v_add_u32 {r('ga')}, {T3}, {r('ga')}")
e(f"s_lshl_b32 {T3}, {r('whi')}, 4")
e(f"s_lshr_b32 {r('sD')}, {r('sD')}, {T3}")
e(f"s_and_b32 {r('sD')}, {r('sD')}, 0xffff")
e(f"s_cmp_eq_u32 {r('wodd')}, 0")
e(f"s_cselect_b32 {r('sD')}, {r('sD')}, 0")
e(f"v_xor_b32 {r('tc')}, 1, {r('tc')}")
e(f"v_lshlrev_b32 {r('tc')}, 4, {r('tc')}")
e(f"v_lshlrev_b32_e64 {r('tc')}, {r('tc')}, {r('sD')}")
e(f"v_cmp_eq_u32 vcc, 3, {r('tb')}")
e(f"v_cndmask_b32 {r('tc')}, 0, {r('tc')}, vcc")
e(f"v_cmp_lt_u32 vcc, 1, {r('ta')}")
e(f"v_cndmask_b32 {r('td')}, 0, {r('tc')}, vcc")
e(f"v_sub_u32 {r('tc')}, {r('tc')}, {r('td')}")
e(f"v_accvgpr_write_b32 {r('fd', 0, 1)}, {r('td')}")
e(f"v_accvgpr_write_b32 {r('fd', 1, 1)}, {r('tc')}")
e(f"v_accvgpr_write_b32 {r('fd', 2, 1)}, 0")
e(f"v_accvgpr_write_b32 {r('fd', 3, 1)}, 0")
e(f"s_add_u32 {T3}, {T2}, 48")
e(f"v_add_u32 {r('kw')}, {T3}, {r('sa')}")
e(f"s_mul_i32 {r('um0')}, {r('wave')}, {GP}")
e(f"s_add_u32 {r('um0')}, {r('um0')}, {UB0}")
e(f"s_lshl_b32 {T3}, {r('wodd')}, 3")
e(f"s_sub_u32 {r('ush')}, 8, {T3}")
e(f"s_add_u32 {T4}, {r('um0')}, 4096")
e(f"v_add_u32 {r('za')}, {T4}, {r('l16')}")
e(f"v_subrev_u32 {r('ta')}, 28, {r('lane')}")
e(f"v_min_u32 {r('ta')}, 5, {r('ta')}")
e(f"v_cmp_lt_u32 vcc, 2, {r('ta')}")
e(f"v_lshlrev_b32 {r('ta')}, 4, {r('ta')}")
e(f"v_add_u32 {r('tb')}, {FP - 48}, {r('ta')}")
e(f"v_cndmask_b32 {r('ta')}, {r('ta')}, {r('tb')}, vcc")
e(f"s_mul_i32 {T3}, {r('wave')}, {2 * FP}")
e(f"v_add_u32 {r('ta')}, {T3}, {r('ta')}")
e(f"v_cmp_lt_u32 vcc, 27, {r('lane')}")
e(f"v_cndmask_b32 {r('za')}, {r('za')}, {r('ta')}, vcc")
e(f"s_xor_b32 {T2}, {r('wave')}, 1")
e(f"s_mul_i32 {T2}, {T2}, 12288")
e(f"s_add_u32 {T2}, {T2}, {XST}")
e(f"v_add_u32 {r('pa')}, {T2}, {r('l16')}")
e(f"v_lshrrev_b32 {r('ta')}, 1, {r('i15')}")
e(f"v_lshlrev_b32 {r('ta')}, 6, {r('ta')}")
e(f"v_and_b32 {r('tb')}, 1, {r('lane')}")
e(f"v_lshl_add_u32 {r('ta')}, {r('tb')}, 3, {r('ta')}")
e(f"v_lshl_add_u32 {r('ta')}, {r('h4')}, 4, {r('ta')}")
e(f"v_add_u32 {r('yw')}, {r('own')}, {r('ta')}")
e(f"s_lshl_b32 {T3}, {r('wodd')}, 11")
e(f"s_lshr_b32 {r('chan')}, {r('chan')}, 12")
e(f"s_mul_i32 {r('chan')}, {r('chan')}, {KP}")
e(f"s_add_u32 {T2}, {r('chan')}, {T3}")
e(f"s_add_u32 {r('yo')}, {T2}, {YT}")
LATE = None
LATE = lateC
e(f"v_lshrrev_b32 {r('zs')}, 1, {r('lane')}")
e(f"v_mul_u32_u24 {r('zs')}, {KP}, {r('zs')}")
e(f"v_and_b32 {r('tb')}, 1, {r('lane')}")
e(f"v_lshl_add_u32 {r('zs')}, {r('tb')}, 4, {r('zs')}")
e(f"s_mul_i32 {T2}, {r('ns')}, {64 * KP}")
e(f"s_lshl_b32 {T3}, {r('tok16')}, 5")
e(f"s_add_u32 {T2}, {T2}, {T3}")
e(f"s_add_u32 {r('zo')}, {T2}, {YT}")
for s in range(4):
    e(f"s_add_u32 {T2}, {r('wave')}, {s + 1}")
    e(f"s_and_b32 {T2}, {T2}, 3")
    e(f"s_mul_i32 {T3}, {T2}, 12288")
    if s < 3:
        if PX + 4096 * s:
            e(f"s_add_u32 {T3}, {T3}, {PX + 4096 * s}")
        e(f"v_lshl_add_u32 {r('pw', s, 1)}, {r('lane')}, 3, {T3}")
    else:
        e(f"s_add_u32 {T3}, {T3}, {PX}")
        e(f"v_lshl_add_u32 {r('psr')}, {r('lane')}, 3, {T3}")
    e(f"s_lshl_b32 {T3}, {r('tt2')}, 2")
    e(f"s_add_u32 {T2}, {T2}, {T3}")
    e(f"s_mul_i32 {T2}, {T2}, 44032")
    e(f"s_add_u32 {T2}, {T2}, {HB + HALT}")
    e(f"v_add_u32 {r('hv', s, 1)}, {T2}, {r('l16')}")
e(f"v_lshrrev_b32 {r('ta')}, 1, {r('i15')}")
e(f"v_lshrrev_b32 {r('tb')}, 1, {r('h4')}")
e(f"v_xor_b32 {r('ta')}, {r('ta')}, {r('tb')}")
e(f"v_lshlrev_b32 {r('ta')}, 4, {r('ta')}")
e(f"v_lshl_add_u32 {r('ta')}, {r('i15')}, 7, {r('ta')}")
e(f"v_and_b32 {r('tc')}, 1, {r('h4')}")
e(f"v_lshl_add_u32 {r('ta')}, {r('tc')}, 3, {r('ta')}")
e(f"v_add_u32 {r('ea', 0, 1)}, {r('own')}, {r('ta')}")
for nb in range(1, 4):
    e(f"v_xor_b32 {r('ea', nb, 1)}, {32 * nb}, {r('ea', 0, 1)}")
e(f"s_lshl_b32 {T2}, {r('tok16')}, 9")
e(f"s_add_u32 {T2}, {T2}, {STB}")
e(f"v_lshl_add_u32 {r('svr')}, {r('i15')}, 5, {T2}")
LATE = None
LATE = lateA
e(f"v_lshrrev_b32 {r('tb')}, 1, {r('h4')}")
e(f"s_lshr_b32 {T2}, {r('xbase')}, 5")
e(f"s_add_u32 {T2}, {T2}, {STA}")
e(f"v_lshl_add_u32 {r('sgo')}, {r('i15')}, 5, {T2}")
e(f"v_lshl_add_u32 {r('sgo')}, {r('tb')}, 9, {r('sgo')}")
LATE = None
S("m1", 2)
e(f"s_mov_b32 {r('m1', 0, 1)}, 0xaaaaaaaa"); e(f"s_mov_b32 {r('m1', 1, 1)}, 0xaaaaaaaa")
LATE = lateA
e(f"v_lshlrev_b32 {r('ta')}, 4, {r('h4')}")
e(f"v_add_u32 {r('csr0')}, {CSX}, {r('ta')}")
for jp in range(3):
    g.names[f"ho{jp}"] = ("s", g.names["bp"][1] + jp, 1)
e(f"s_lshl_b32 {T2}, {r('T1')}, 2")
e(f"s_add_u32 {T2}, {T2}, {r('wave')}")
e(f"s_mul_i32 {T2}, {T2}, 86")
e(f"s_add_u32 {T2}, {T2}, {r('b0')}")
for jp in range(3):
    e(f"s_lshl_b32 {T3}, {r('bp', jp, 1)}, 7")
    e(f"v_add_u32 {r('ctr', jp, 1)}, {T3}, {r('csr0')}")
    e(f"s_add_u32 {T3}, {T2}, {r('bp', jp, 1)}")
    e(f"s_lshl_b32 {T3}, {T3}, 10")
    e(f"s_add_u32 {T3}, {T3}, {HB}")
    e(f"s_cmp_lt_u32 {r('bp', jp, 1)}, {r('nown')}")
    e(f"s_cselect_b32 {r(f'ho{jp}')}, {T3}, 0x7f000000")
for i in range(4):
    e(f"v_accvgpr_write_b32 {r('zz', i, 1)}, 0")
LATE = None
if TOUCH:
    V("tB", 2)
    wlo, whi_ = r("sWS", 0, 1), r("sWS", 1, 1)
    ent = [(r("sA", 0, 1), r("sA", 1, 1), r("tile0")), (r("sB", 0, 1), r("sB", 1, 1), r("tile0")), (plo(3), phi(3), None),
           (plo(4), phi(4), None), (plo(8), phi(8), None), (plo(10), phi(10), None),
           (plo(9), phi(9), None), (plo(9), phi(9), 1 << 20), (plo(11), phi(11), r("tile0")),
           (wlo, whi_, EPOCH + 256), (wlo, whi_, FL + 4096), (wlo, whi_, r("kvo")),
           (wlo, whi_, r("chan")), (wlo, whi_, HB + 64), (wlo, whi_, r("yo")), (wlo, whi_, r("zo")),
           (wlo, whi_, HB + 0x100000), (wlo, whi_, HB + 0x200000), (wlo, whi_, HB + 0x300000), (wlo, whi_, HB + 0x400000),
           (wlo, whi_, HB + 0x500000), (wlo, whi_, HB), (wlo, whi_, YT + 0x100000), (wlo, whi_, 0x100000)]
    e(f"v_mov_b32 {r('tB', 0, 1)}, {wlo}")
    e(f"v_mov_b32 {r('tB', 1, 1)}, {whi_}")
    for k, (lo, hi, off) in enumerate(ent):
        if off is None:
            e(f"v_writelane_b32 {r('tB', 0, 1)}, {lo}, {k}")
            e(f"v_writelane_b32 {r('tB', 1, 1)}, {hi}, {k}")
        else:
            e(f"s_add_u32 {T2}, {lo}, {off}")
            e(f"s_addc_u32 {T3}, {hi}, 0")
            e(f"v_writelane_b32 {r('tB', 0, 1)}, {T2}, {k}")
            e(f"v_writelane_b32 {r('tB', 1, 1)}, {T3}, {k}")
    e(f"s_mul_i32 {T2}, {r('wave')}, 6")
    e(f"s_lshl_b32 exec_lo, 63, {T2}")
    e("s_mov_b32 exec_hi, 0")
    if TOUCH == 2:
        e("s_mov_b32 exec_lo, 0xffffff")
    e(f"global_load_dword {r('pre')}, {r('tB')}, off sc1", "touch")
    e("s_mov_b64 exec, -1")
    g.free("tB")
stamp("setup")
g.free("tid")


def late_items(lst):
    ren = {"s3": r("L0"), "s5": r("L2"), "s6": r("L3"), "s7": r("L4")}
    txt = [re.sub(r"\bs[3567]\b", lambda m: ren[m.group(0)], x) for x in lst]
    items, grp = [], []
    for x in txt:
        op = x.split()[0]
        if grp or op.startswith(("s_cmp", "v_cmp")):
            grp.append(x)
            if op.startswith(("s_cselect", "v_cndmask")):
                items.append(grp); grp = []
        else:
            items.append([x])
    assert not grp
    cost = lambda gx: sum(0.3 if y.startswith("s_") else 1 for y in gx)
    return [It(lambda gx=gx: [e(y) for y in gx], cost(gx)) for gx in items]


def unpack(dst, doff, src, soff, ndw):
    it = []
    for d in range(ndw):
        it.append(E(f"v_lshlrev_b32 {r(dst, doff + 2 * d, 1)}, 16, {r(src, soff + d, 1)}"))
        it.append(E(f"v_and_b32 {r(dst, doff + 2 * d + 1, 1)}, {r('hmask')}, {r(src, soff + d, 1)}"))
    return it


run(dmaX(1))
LATEAB = int(opt.get("lateab", 1))
if LATEAB < 2:
    run(late_items(lateA)); lateA = []
if LATEAB < 1:
    g.wait(lg=0)
    run(late_items(lateB)); lateB = []
AC("xf", 64, at=64)
AC("wa", 48, at=128)


def xf(K, tb):
    return r("xf", ((K & 7) * 2 + tb) * 4, 4)


def rdX(ei):
    return [W(vm=f"X{ei}")] + [E(f"ds_read_b128 {xf(ei * 2 + k, tb)}, {r('xrd', k, 1)} offset:{(ei % 3) * 4096 + tb * 2048}", f"rx{ei}")
                               for k in range(2) for tb in range(2)]


def wbase(K):
    return ((K >> 1) % 4) * 12288 + (K & 1) * 6144


def rdW(K):
    return [E(f"ds_read_b64_tr_b16 {r('wa', (K & 1) * 24 + fb * 4 + 2 * hf, 2)}, {r('w1r', fb, 1)} offset:{wbase(K) + hf * 768 + (fb & 1) * 32}", f"rw{K}_{fb}")
            for fb in range(6) for hf in range(2)]


g.wait(vm="sx")
e(f"s_mov_b32 {T2}, 0x3f803f80")
for d in range(8):
    e(f"v_dot2_f32_bf16 {r('sacc', d & 1, 1)}, {r('sx', d, 1)}, {T2}, {'0' if d < 2 else r('sacc', d & 1, 1)}")
    e(f"v_dot2_f32_bf16 {r('sacc', 2 + (d & 1), 1)}, {r('sx', d, 1)}, {r('sx', d, 1)}, {'0' if d < 2 else r('sacc', 2 + (d & 1), 1)}")
e(f"v_readfirstlane_b32 {r('tag', 0, 1)}, {r('pf', 0, 1)}")
e(f"v_readfirstlane_b32 {r('tag', 1, 1)}, {r('pf', 1, 1)}")
g.free("sx")
run(rdX(0))
e(f"s_mul_i32 {r('tag', 0, 1)}, {r('tag', 0, 1)}, 0x9E3779B1")
e(f"s_mul_i32 {r('tag', 1, 1)}, {r('tag', 1, 1)}, 0x85EBCA6D")
e(f"s_add_u32 {r('tag', 0, 1)}, {r('tag', 0, 1)}, 0x7F4A7C15")
e(f"s_add_u32 {r('tag', 1, 1)}, {r('tag', 1, 1)}, 0x165667B1")
e(f"v_add_f32 {r('sacc', 0, 1)}, {r('sacc', 0, 1)}, {r('sacc', 1, 1)}")
e(f"v_add_f32 {r('sacc', 2, 1)}, {r('sacc', 2, 1)}, {r('sacc', 3, 1)}")
for i in range(2):
    e(f"v_mov_b32 {r('vtag', i, 1)}, {r('tag', i, 1)}")
    e(f"v_mov_b32 {r('vtag', 2 + i, 1)}, {r('tag', i, 1)}")
    e(f"v_mov_b32 {r('gq', 2 + i, 1)}, {r('tag', i, 1)}")
g.wait(vm="W1" if int(opt.get("nob1", 0)) else "W0")
e("s_barrier")
run(rdW(0))
stamp("x0")

V("acc", 48); AC("cs", 8, at=192)
V("big", 100)
B0 = g.names["big"][1]


def alias(name, off, n):
    g.names[name] = ("v", B0 + off, n)


alias("wf", 0, 32); alias("kf", 32, 40); alias("vr", 64, 8); alias("kr", 72, 20); alias("shr", 48, 16)
alias("vf", 72, 16)
small = [E(f"global_load_dword {r('bb', 0, 1)}, {r('bb', 0, 1)}, {ptr(8)}", "bb"),
         E(f"global_load_dword {r('bb', 1, 1)}, {r('bb', 1, 1)}, {ptr(10)}", "bb"),
         ]
alias("vr", 92, 8)
kvload = [It(lambda: (e(f"s_add_u32 m0, {r('kim')}, 1024"), e(f"s_mov_b32 {T0}, 7168"),
                      e(f"buffer_load_dwordx4 {r('kd', 1, 1)}, {r('sA')}, 0 offen {KPOL} lds", "k")), 2),
          E(f"buffer_load_dwordx4 {r('kd', 1, 1)}, {r('sA')}, {T0} offen offset:1024 {KPOL} lds", "k"),
          E(f"buffer_load_dwordx4 {r('vr', 0, 4)}, {r('k0')}, {r('sB')}, 0 offen {KVPOL}", "k"),
          E(f"buffer_load_dwordx4 {r('vr', 4, 4)}, {r('k0')}, {r('sB')}, 0 offen offset:1024 {KVPOL}", "k"),
          It(lambda: (e(f"s_mov_b32 m0, {r('kim')}"), e("s_mov_b32 exec_lo, 0"), e("s_mov_b32 exec_hi, 0xffffff00"),
                      e(f"buffer_load_dwordx4 {r('kd', 0, 1)}, {r('sA')}, 0 offen lds", "k"), e("s_mov_b64 exec, -1")), 2),
          It(lambda: (e(f"s_add_u32 m0, {r('kim')}, 3072"), e(f"s_mov_b64 {r('sA', 0, 2)}, {ptr(3)}"), e(f"s_mov_b32 {r('sA', 2, 1)}, 4096"),
                      e("s_mov_b32 exec_hi, 0"), e(f"buffer_load_dwordx4 {r('sho')}, {r('sA')}, 0 offen lds", "k"), e("s_mov_b64 exec, -1"),
                      e(f"s_mov_b64 {r('sA', 0, 2)}, {ptr(4)}"), e(f"s_mov_b64 {r('sB', 0, 2)}, {ptr(9)}"), e(f"s_mov_b32 {r('sB', 2, 1)}, 1409024")), 3)]
W2T = int(opt.get("w2t", 2))
w2touch = []
if W2T:
    w2touch = []
    (kvload if W2T == 1 else w2touch).append(It(lambda: (e(f"s_lshl_b32 {T0}, s2, 2"), e(f"s_add_u32 {T0}, {T0}, {r('wave')}"), e(f"s_mul_i32 {T0}, {T0}, {11 * 128}"),
                              e(f"v_lshlrev_b32 {r('pre')}, 3, {r('l16')}"), e("s_mov_b64 exec, 0x7ff"),
                              e(f"buffer_load_dword {r('pre')}, {r('pre')}, {r('sB')}, {T0} offen", "w2t"), e("s_mov_b64 exec, -1")), 3))
kvrd = [W(vm="k")]
kvrd += [E(f"ds_read_b128 {r('shr', 4 * i, 4)}, {r('sra')} offset:{3072 + 16 * i}", "rs") for i in range(4)]
kvrd += [E(f"ds_read_b128 {r('kr', 4 * k, 4)}, {r('kra')} offset:{640 + 128 * k}", "rk") for k in range(5)]
kvu = [W(lg="rs")]
for c in range(8):
    for j in range(4):
        src = r("shr", 2 * c + (j >> 1), 1)
        if j & 1:
            kvu.append(E(f"v_and_b32 {r('wf', j * 8 + c, 1)}, {r('hmask')}, {src}"))
        else:
            kvu.append(E(f"v_lshlrev_b32 {r('wf', j * 8 + c, 1)}, 16, {src}"))
kvu.append(W(lg="rk"))
kvu += unpack("kf", 0, "kr", 0, 20)
KS = lambda t, cp: r("kr", t * 8 + 2 * cp, 2)
kvc = []
for t in range(2):
    for cp in range(4):
        kvc.append(E(f"v_pk_mul_f32 {KS(t, cp)}, {r('kf', t * 8 + 2 * cp, 2)}, {r('wf', 24 + 2 * cp, 2)}"))
    for j in (2, 1, 0):
        for cp in range(4):
            kvc.append(E(f"v_pk_fma_f32 {KS(t, cp)}, {r('kf', (t + 3 - j) * 8 + 2 * cp, 2)}, {r('wf', j * 8 + 2 * cp, 2)}, {KS(t, cp)}"))
kvc += unpack("wf", 0, "vr", 0, 8)
for t in range(2):
    for cp in range(4):
        kvc.append(E(f"v_pk_mul_f32 {KS(t, cp)}, {KS(t, cp)}, {r('wf', t * 8 + 2 * cp, 2)}"))
alias("kvp", 92, 8)
for c in range(8):
    kvc.append(E(f"v_cvt_pk_bf16_f32 {r('kvp', c, 1)}, {r('kr', 8 + c, 1)}, {r('kr', c, 1)}"))
    kvc.append(E(f"ds_write_b32 {r('kvw')}, {r('kvp', c, 1)} offset:{128 * c}", "kvw"))
kvst = [E(f"ds_read_b128 {r('kvp', 0, 4)}, {r('kvr')}", "kvr0"), E(f"ds_read_b128 {r('kvp', 4, 4)}, {r('kvr')} offset:1040", "kvr1")]
kvst2 = [It(lambda: (g.wait(lg="kvr0"), e(f"buffer_store_dwordx4 {r('kvp', 0, 4)}, {r('kvs')}, {r('sWS')}, {r('kvo')} offen sc1", "kvst"),
                     e(f"s_add_u32 {r('kvo')}, {r('kvo')}, {8 * KP}")), 2),
         It(lambda: (g.wait(lg="kvr1"), e(f"buffer_store_dwordx4 {r('kvp', 4, 4)}, {r('kvs')}, {r('sWS')}, {r('kvo')} offen sc1", "kvst")), 2)]
alias("skr", 0, 12); alias("ke", 12, 24); alias("bt", 36, 4); alias("b1f", 44, 24); alias("csf", 68, 24)
AC("ska", 12, at=228)
skload = [It(lambda: (e("s_mov_b64 exec, 1"), e(f"buffer_load_dwordx2 {r('ska', 0, 2)}, {r('sb')}, {r('sA')}, 0 offen", "sk"), e("s_mov_b64 exec, -1")), 2),
          E(f"buffer_load_dwordx4 {r('ska', 2, 4)}, {r('sa')}, {r('sA')}, 0 offen {KVPOL}", "sk"),
          E(f"buffer_load_dwordx4 {r('ska', 8, 4)}, {r('sa')}, {r('sA')}, 0 offen offset:1024 {KVPOL}", "sk")]
kcopy = [W(vm="sk")] + [E(f"v_accvgpr_read_b32 {r('skr', k, 1)}, {r('ska', k, 1)}") for k in (4, 5, 0, 1, 10, 11, 2, 3, 8, 9)]
for k in range(2):
    kcopy.append(E(f"v_mov_b32_dpp {r('skr', 6 + k, 1)}, {r('skr', 4 + k, 1)} wave_ror:1 row_mask:0xf bank_mask:0xf"))
for k in range(2):
    kcopy.append(E(f"v_mov_b32_dpp {r('skr', k, 1)}, {r('skr', 4 + k, 1)} wave_shr:1 row_mask:0xf bank_mask:0xf"))
for k in range(2):
    kcopy.append(E(f"v_mov_b32_dpp {r('skr', 6 + k, 1)}, {r('skr', 10 + k, 1)} wave_shr:1 row_mask:0xf bank_mask:0xf"))
for n in range(2):
    R = lambda k, c=1, n=n: r("skr", 6 * n + k, c)
    KE = lambda k, c=1, n=n: r("ke", 12 * n + k, c)
    kcopy.append(E(f"ds_write_b128 {r('kw')}, {R(2, 4)} offset:{3 * FP + 1024 * n}", "kc", 2))
    for k in range(4):
        kcopy.append(E(f"v_alignbit_b32 {KE(k)}, {R(k + 1)}, {R(k)}, 16"))
    kcopy.append(E(f"ds_write_b128 {r('kw')}, {KE(0, 4)} offset:{1024 * n}", "kc", 2))
    for k in range(4):
        kcopy.append(E(f"v_alignbit_b32 {KE(4 + k)}, {R(k + 2)}, {R(k + 1)}, 16"))
    kcopy.append(E(f"ds_write_b128 {r('kw')}, {KE(4, 4)} offset:{2 * FP + 1024 * n}", "kc", 2))
    for k in range(4):
        kcopy.append(E(f"v_mov_b32 {KE(8 + k)}, {R(1 + k)}"))
    kcopy.append(E(f"ds_write_b128 {r('kw')}, {KE(8, 4)} offset:{FP + 1024 * n}", "kc", 2))


def mfma(d, a, b, first):
    e(f"v_mfma_f32_16x16x32_bf16 {d}, {a}, {b}, {'0' if first else d}")


def M(d, a, b, first, wait=None):
    def fn():
        if wait:
            w_ = dict(wait)
            l2 = w_.pop("lg2", None)
            if l2 and max(i for i, t in enumerate(g.lg) if t == l2) > max(i for i, t in enumerate(g.lg) if t == w_["lg"]):
                g._cnt(g.lg, w_["lg"])
                w_["lg"] = l2
            elif l2:
                g._cnt(g.lg, l2)
            g.wait(**w_)
        mfma(d, a, b, first)
    return It(fn, 0.3 if wait else 0)


def mainM(K):
    return [M(r("acc", (fb * 2 + tb) * 4, 4), r("wa", (K & 1) * 24 + fb * 4, 4), xf(K, tb), K == 0,
              dict(lg=f"rw{K}_{fb}", lg2=(None if (K & 1 or fb) else f"rx{K >> 1}")) if tb == 0 else None) for fb in range(6) for tb in range(2)]


def statM(K):
    items = []
    for tb in range(2):
        items.append(M(r("rs", tb * 4, 4), r("ones"), xf(K, tb), K == 0, dict(lg=f"rx{K >> 1}") if (tb == 0 and not K & 1) else None))
        items.append(M(r("gr", tb * 4, 4), xf(K, tb), xf(K, tb), K == 0))
    return items


def csM(K):
    return [M(r("cs", c * 4, 4), r("wa", (K & 1) * 24 + c * 4, 4), r("ones"), K == 0, dict(lg=f"rw{K}_{c}")) for c in range(2)]


FULL = int(opt.get("full", 1))


def flagtxt(addr, ls):
    if FULL and ls >= 4:
        return [f"s_mov_b64 exec, {(1 << (1 << (ls - 4))) - 1}",
                f"buffer_store_dwordx4 {r('vtag')}, {r('l16')}, {r('sWS')}, {addr} offen sc1", "s_mov_b64 exec, -1"]
    return ["s_mov_b64 exec, 1", f"buffer_store_dwordx2 {r('vtag', 0, 2)}, {r('zero')}, {r('sWS')}, {addr} offen sc1", "s_mov_b64 exec, -1"]


def setflag(addr, tagname):
    t_ = flagtxt(addr, {"f1": L1S, "f2": L2S, "f3": L3S}[tagname])
    e(t_[0]); e(t_[1], tagname); e(t_[2])


def pollissue(voff, tagname):
    e(f"buffer_load_dwordx2 {r('pf')}, {voff}, {r('sWS')}, 0 offen sc1", tagname)


def pollcheck(voff, tagname, before_spin=None):
    g.wait(vm=tagname)
    e(f"v_cmp_ne_u64 vcc, {r('tag')}, {r('pf')}")
    e("s_cmp_eq_u64 vcc, 0")
    e(f"s_cbranch_scc0 L_{tagname}")
    g.label(f"L_{tagname}_ok")

    def tail():
        g.label(f"L_{tagname}")
        if before_spin:
            for x in before_spin:
                e(x)
        if SPINMAX:
            e(f"s_mov_b32 {T4}, 0")
        g.label(f"L_{tagname}_l")
        e(f"s_sleep {int(opt.get('sleep', 1))}")
        e(f"buffer_load_dwordx2 {pfr}, {voff}, {sws}, 0 offen sc1")
        e("s_waitcnt vmcnt(0)")
        e(f"v_cmp_ne_u64 vcc, {tagr}, {pfr}")
        if SPINMAX:
            e(f"s_add_u32 {T4}, {T4}, 1")
            e(f"s_cmp_gt_u32 {T4}, {SPINMAX}")
            e(f"s_cbranch_scc1 L_{tagname}_ok")
        e("s_cmp_eq_u64 vcc, 0")
        e(f"s_cbranch_scc0 L_{tagname}_l")
        e(f"s_branch L_{tagname}_ok")
    pfr, sws, tagr = r("pf"), r("sWS"), r("tag")
    tails.append(tail)


tails = []
btab = [W(vm="bb")] + unpack("bt", 0, "bb", 0, 2) + [E(f"ds_write_b64 {r('bw', 0, 1)}, {r('bt', 0, 2)}", "btw"), E(f"ds_write_b64 {r('bw', 1, 1)}, {r('bt', 2, 2)}", "btw")]

W2SLOT = {0: ("x", S4), 1: ("o", 8192), 2: ("o", 0), 3: ("o", 4096), 4: ("x", S3),
          5: ("x", S4), 6: ("o", 8192), 7: ("o", 0), 8: ("o", 4096), 9: ("x", S3), 10: ("x", S4)}
W2PREV = {p: p - 5 for p in range(5, 11)}
VMODE = opt.get("vmode", "E")
if VMODE == "F":
    W2SLOT = {0: ("x", 0), 1: ("x", 16384), 2: ("x", S4), 3: ("o", 8192), 4: ("o", 0), 5: ("o", 4096), 6: ("x", S3),
              7: ("x", S4), 8: ("o", 8192), 9: ("o", 0), 10: ("o", 8192)}
    W2PREV = {7: 2, 8: 3, 9: 4, 10: 8}


def dmaW2(p):
    items = []
    kind, off = W2SLOT[p]
    for n in range(4):
        def it(n=n):
            if n == 0:
                e(f"s_add_u32 m0, {r('own') if kind == 'o' else r('w4k')}, {off}")
                if p in W2PREV:
                    g.wait(lg=f"rv{W2PREV[p]}")
            e(f"buffer_load_dwordx4 {r('w2s', n, 1)}, {r('sB')}, {r(f'kb{p}')} offen offset:{1024 * n} lds", f"V{p}")
        items.append(It(it, 1.2 if n else 1.8))
    return items


def w2f(p, nb, off=0, n=4):
    k = (p * 4 + nb) * 4 + off
    return f"a[{k}:{k + n - 1}]"


def rdW2(p):
    kind, off = W2SLOT[p]
    items = [W(vm=f"V{p}")]
    for nb in range(4):
        for hf in range(2):
            items.append(E(f"ds_read_b64_tr_b16 {w2f(p, nb, 2 * hf, 2)}, {r('w2r', nb + (0 if kind == 'o' else 4), 1)} offset:{off + hf * 2048}", f"rv{p}"))
    return items


alias("sac", 96, 4); alias("sgr", 92, 4)
EPS = f2u(1e-5)


def rb(dst, src):
    return [E(f"v_cvt_pk_bf16_f32 {dst}, {src}, {src}"), E(f"v_and_b32 {dst}, {r('hmask')}, {dst}")]


s1, s1b, s2, s2b = (r("sacc", k, 1) for k in range(4))
st = []
for sh in (8, 4, 2, 1):
    st.append(E(f"v_add_f32_dpp {s1}, {s1}, {s1} row_ror:{sh} row_mask:0xf bank_mask:0xf"))
    st.append(E(f"v_add_f32_dpp {s2}, {s2}, {s2} row_ror:{sh} row_mask:0xf bank_mask:0xf"))
st.append(E(f"v_mov_b32 {s1b}, {s1}")); st.append(E(f"v_mov_b32 {s2b}, {s2}"))
st.append(E(f"v_permlane16_swap_b32 {s1}, {s1b}")); st.append(E(f"v_permlane16_swap_b32 {s2}, {s2b}"))
mu, var, t, w = (r("u", k, 1) for k in range(4))
mb, rsd = r("stv", 0, 1), r("stv", 1, 1)
st.append(E(f"v_add_f32 {mu}, {s1}, {s1b}")); st.append(E(f"v_add_f32 {var}, {s2}, {s2b}"))
st.append(E(f"v_mul_f32 {mu}, 0x{f2u(1 / 512):08x}, {mu}"))
st.append(E(f"v_mul_f32 {var}, 0x{f2u(1 / 512):08x}, {var}"))
st += rb(mb, mu)
st.append(E(f"v_fma_f32 {var}, -{mu}, {mu}, {var}"))
st.append(E(f"v_max_f32 {var}, 0, {var}"))
st += rb(t, var)
st.append(E(f"v_add_f32 {t}, 0x{EPS:08x}, {t}"))
st += rb(t, t)
st.append(E(f"v_sqrt_f32 {t}, {t}", cost=2))
st.append(E(f"v_sub_f32 {mu}, {mu}, {mb}"))
st += rb(t, t)
st.append(E(f"v_rcp_f32 {rsd}, {t}", cost=2))
st.append(E(f"v_mul_f32 {mu}, {mu}, {rsd}"))
st.append(E(f"v_mul_f32 {var}, {var}, {rsd}"))
st.append(E(f"v_mul_f32 {var}, {var}, {rsd}"))
st += rb(t, var)
st.append(E(f"v_add_f32 {t}, 0x{EPS:08x}, {t}"))
st += rb(t, t)
st.append(E(f"v_sqrt_f32 {t}, {t}", cost=2))
st += rb(mu, mu)
st += rb(t, t)
st.append(E(f"v_rcp_f32 {w}, {t}", cost=2))
st.append(E(f"v_fma_f32 {mu}, {mb}, {rsd}, {mu}"))
st.append(E(f"v_mul_f32 {t}, {rsd}, {w}"))
st.append(E(f"v_mul_f32 {mu}, {mu}, {w}"))
st.append(E(f"v_cndmask_b32 {r('gq', 0, 1)}, {t}, {mb}, {r('m1')}"))
st.append(E(f"v_cndmask_b32 {r('gq', 1, 1)}, {mu}, {rsd}, {r('m1')}"))
st.append(E(f"v_mov_b32 {s1}, {r('gq', 0, 1)}")); st.append(E(f"v_mov_b32 {s2}, {r('gq', 1, 1)}"))
st.append(E(f"v_permlane32_swap_b32 {r('gq', 0, 1)}, {s1}")); st.append(E(f"v_permlane32_swap_b32 {r('gq', 1, 1)}, {s2}"))
st.append(It(lambda: (e("s_mov_b64 exec, 12"), e(f"v_mov_b32 {r('gq', 0, 1)}, {s1}"), e(f"v_mov_b32 {r('gq', 1, 1)}, {s2}"), e("s_mov_b64 exec, -1")), 2.6))
ststore = [It(lambda: (e("s_mov_b64 exec, 15"),
                       e(f"buffer_store_dwordx4 {r('gq')}, {r('stw')}, {r('sWS')}, 0 offen sc1", "sts"), e("s_mov_b64 exec, -1")), 2)]


def gcheck(name, voff, tagname):
    g.wait(vm=tagname)
    e(f"v_cmp_ne_u64 vcc, {r('tag')}, {r(name, 2, 2)}")
    e("s_cmp_eq_u64 vcc, 0")
    e(f"s_cbranch_scc0 L_{tagname}")
    g.label(f"L_{tagname}_ok")
    q4, q2, sws, tagr = r(name, 0, 4), r(name, 2, 2), r("sWS"), r("tag")

    def tail():
        g.label(f"L_{tagname}")
        if SPINMAX:
            e(f"s_mov_b32 {T4}, 0")
        g.label(f"L_{tagname}_l")
        e("s_sleep 2")
        e(f"buffer_load_dwordx4 {q4}, {voff}, {sws}, 0 offen sc1")
        e("s_waitcnt vmcnt(0)")
        e(f"v_cmp_ne_u64 vcc, {tagr}, {q2}")
        if SPINMAX:
            e(f"s_add_u32 {T4}, {T4}, 1")
            e(f"s_cmp_gt_u32 {T4}, {SPINMAX}")
            e(f"s_cbranch_scc1 L_{tagname}_ok")
        e("s_cmp_eq_u64 vcc, 0")
        e(f"s_cbranch_scc0 L_{tagname}_l")
        e(f"s_branch L_{tagname}_ok")
    tails.append(tail)


sgld = [E(f"buffer_load_dwordx4 {r('sgr')}, {r('sgo')}, {r('sWS')}, 0 offen sc1", "sg")]
sguse = [It(lambda: gcheck("sgr", r("sgo"), "sg"), 2)]
sguse += [E(f"v_mov_b32 {r('sac', k, 1)}, {r('sgr', k & 1, 1)}") for k in range(4)]
sguse += [E(f"v_permlane32_swap_b32 {r('sac', 0, 1)}, {r('sac', 2, 1)}"), E(f"v_permlane32_swap_b32 {r('sac', 1, 1)}, {r('sac', 3, 1)}")]

main = []
at = {}


def add(items, name=None):
    if name:
        at[name] = len(main)
        if name.startswith("K") and SSET == "k":
            f0 = items[0].fn
            items = [It(lambda: (stamp(name, "k"), f0()), items[0].cost)] + items[1:]
    main.extend(items)


NOB1 = int(opt.get("nob1", 0))
KVK = int(opt.get("kvk", 5))
BARS = {1: 1, 3: 3, 7: 5, 11: 7} if KVK == 3 else {1: 1, 3: 2, 5: 4, 9: 6, 13: 7}
if NOB1:
    del BARS[1]


def bar(K):
    def fn():
        if K == KVK:
            g.wait(vm=f"W{BARS[K]}", lg="kvw")
        elif K == 7 or (KVK == 5 and K in (3, 9)):
            g.wait(vm=f"W{BARS[K]}", lg=f"rw{K}_5")
        elif K < 15:
            g.wait(vm=f"W{BARS[K]}")
        else:
            g.wait(lg=0)
        e("s_barrier")
        if K in ((3, 7, 11, 15) if KVK == 3 else (5, 9, 13, 15)):
            stamp(f"c{K >> 2}")
    return [It(fn, 0)]


STAT = {K: [] for K in range(13)}

for K in range(13):
    if K == KVK:
        add([It(lambda: (stamp("kvb"), run(weave(kvu[KVU:] + kvc, (kvdma, 4, len(kvu) - KVU + len(kvc) - 4))), stamp("kv")), 0)], "KV")
    if K in BARS:
        add(bar(K), f"B{K}")
    sm = sum((statM(k) for k in STAT[K]), [])
    add(sm + mainM(K), f"K{K}")
    at[f"m{K}"] = at[f"K{K}"] + len(sm)
    add(csM(K))
if 13 in BARS:
    add(bar(13), "B13")
add(mainM(13) + csM(13), "K13")
m14 = mainM(14)
add(m14[:2] + csM(14) + m14[2:8], "K14"); add(csM(15), "cs15"); add(m14[8:])
at["m14"] = at["K14"]; at["m13"] = at["K13"]
add(bar(15), "C3")
add(mainM(15), "K15")
at["end"] = len(main)
if SSET == "fine":
    F0 = int(opt.get("f0", 0))
    for k_ in range(F0, min(F0 + 120, len(main)), 4):
        main[k_] = It(lambda f=main[k_].fn, k_=k_: (stamp(f"m{k_}", "fine"), f()), main[k_].cost)
A = lambda n: at[n]
QR = []
for K in range(1, 15):
    lo = A(f"K{K - 1}") - (1 if (K - 1) in BARS else 0)
    hi = A(f"K{K}") - 2 - (1 if K in BARS else 0) - (1 if K == KVK else 0) - (3 if (K == 7 and KVK == 3) or (KVK == 5 and K in (3, 9)) else 0)
    QR += win(rdW(K), lo, hi)
QR += win(rdW(15), A("K14"), A("C3") - 5)
XRD = {1: 1, 2: 3, 3: 5, 4: 7, 5: 9, 6: 11, 7: 13}
QX = []
for ei in range(1, 8):
    k = XRD[ei]
    QX += win(rdX(ei), A(f"K{k}"), A(f"K{k}") + 5)


def aft(tag, items):
    f0 = items[0]
    return [It(lambda: (g.wait(lg=tag), f0()), f0.cost + 1)] + items[1:]


kc_txt = []
kcv = [it for it in kcopy if it.cost != 2]
kcw = [it for it in kcopy if it.cost == 2]
f1set = [None] * 4 + [It(lambda: (g.wait(vm="kvst"), setflag(r("f1a"), "f1")), 2)]
udma = [It(lambda: pollcheck(r("pf1o"), "pf1"), 4),
        It(lambda: (e(f"s_add_u32 {r('sA', 0, 1)}, {plo(13)}, {r('chan')}"), e(f"s_addc_u32 {r('sA', 1, 1)}, {phi(13)}, 0"), e(f"s_mov_b32 m0, {r('um0')}")), 3)]
for n in range(4):
    udma.append(E(f"buffer_load_dwordx4 {r('l16')}, {r('sA')}, {r('ush')} offen offset:{1024 * n} sc1 lds", "U"))
KW = lambda k0, k1=None: (A(f"K{k0}"), A(f"K{(k1 or k0) + 1}") - 2)
F1K = int(opt.get("f1k", 7 if KVK == 5 else 6))
f1 = lambda k: f1set[4:] if F1K == k else []
KVU = int(opt.get("kvu", 8))
KV0 = int(opt.get("kv0", 6 if KVK == 3 else 0))
run(kvload[:KV0])
if KVK == 3:
    QV = win(kvload[KV0:] + dmaW1(2), *KW(0))
    QV += win(dmaX(2), *KW(1))
    QV += win(dmaW1(3), A("K2"), A("KV") - 1)
    kvdma = dmaX(3) + dmaX(4) + small + skload + w2touch + ststore
    QV += win(dmaW1(4) + kvst2, *KW(3))
    QV += win(dmaW1(5), *KW(4))
    QV += win(dmaX(5), *KW(5))
    QV += win(dmaX(6) + f1(6), *KW(6))
else:
    assert VMODE != "F"
    run(dmaW1(2) + dmaX(2))
    QV = win(kvload[KV0:], *KW(0))
    if int(opt.get("grp", 0)):
        QV += win(skload + w2touch + small, *KW(1))
        QV += win(dmaW1(3), *KW(2))
        QV += win(dmaW1(4) + ststore, *KW(3))
        QV += win(dmaX(3), A("K4"), A("KV") - 1)
        kvdma = dmaW1(5) + dmaX(4) + dmaX(5)
    else:
        QV += win(dmaW1(3), *KW(1))
        QV += win(dmaX(3), *KW(2))
        QV += win(dmaW1(4) + ststore, *KW(3))
        QV += win(dmaW1(5), A("K4"), A("KV") - 1)
        kvdma = dmaX(4) + dmaX(5) + small + skload + w2touch
    QV += win((dmaW1(6) + kvst2) if int(opt.get("w6f", 0)) else (kvst2 + dmaW1(6)), *KW(5))
    QV += win(dmaX(6), *KW(6))
    QV += win(f1(7), *KW(7))
    QV += win(dmaX(7) + f1(8), *KW(8))
    QV += win(dmaW1(7) + sgld, *KW(9))
NV3 = int(opt.get("nv3", 1))
if VMODE == "F":
    QV += win(dmaW1(6) + f1(7) + dmaW1(7)[:1], *KW(7))
    QV += win(dmaW1(7)[1:] + dmaX(7)[:3], *KW(8))
    QV += win(dmaX(7)[3:] + sgld + dmaW2(0)[:3], *KW(9))
    QV += win(dmaW2(0)[3:] + dmaW2(1), *KW(10))
    QV += win(dmaW2(2), *KW(11))
    if NV3:
        QV += win(dmaW2(3), *KW(12)) + win(dmaW2(4), *KW(13))
else:
    if KVK == 3:
        QV += win(dmaW1(6) + f1(7), *KW(7))
        QV += win(dmaW1(7) + dmaX(7)[:1], *KW(8))
        QV += win(dmaX(7)[1:] + sgld, *KW(9))
    QV += win(dmaW2(0), *KW(10))
    QV += win(dmaW2(1), *KW(11))
    QV += win(dmaW2(2), *KW(12))
    if NV3:
        QV += win(dmaW2(3), A("K14"), A("C3") - 1)
QV += win([It(lambda: pollissue(r("pf1o"), "pf1"))], A("end") - 4, A("end") - 4)
QW1 = (win(rdW2(0), *KW(13)) + win(rdW2(1), A("K14"), A("C3") - 3)) if VMODE == "F" else []
XX = '''
QV += win(dmaW2(0) + f1(9), *KW(9))
QV += win(dmaW2(1) + f1(10), *KW(10))
QV += win(dmaW2(2) + f1(11), *KW(11))
QV += win(dmaW2(3), *KW(12))
'''
csw = [It(lambda: (e("s_mov_b32 exec_lo, 0x00010001"), e("s_mov_b32 exec_hi, 0x00010001"),
                   e(f"ds_write_b128 {r('ctr', 0, 1)}, {r('cs', 0, 4)}", "csw"), e(f"ds_write_b128 {r('ctr', 0, 1)}, {r('cs', 4, 4)} offset:64", "csw"),
                   e("s_mov_b64 exec, -1")), 5)]
rcs = [E(f"ds_read_b128 {r('csf', 4 * fb, 4)}, {r('ctr', fb >> 1, 1)} offset:{64 * (fb & 1)}", "rcs") for fb in range(6)]
rb1 = [E(f"ds_read_b128 {r('b1f', 4 * fb, 4)}, {r('ctr', fb >> 1, 1)} offset:{B1T - CSX + 64 * (fb & 1)}", "rb1") for fb in range(6)]
QM = win(kvrd, A(f"K{KVK - 1}") + 1, A(f"K{KVK - 1}") + 8)
QM += win(kvu[:KVU], A(f"K{KVK - 1}") + 10, A("KV") - 1)
QM += win(kvst, A(f"B{KVK}"), A(f"B{KVK}") + 1)
QM += win(btab, *KW(KVK + 2))
KCV = int(opt.get("kcv", 1))
if KCV:
    QM += win(kcv, A(f"K{KVK + 4}"), A("K11" if KVK == 3 else "K13") - 2)
QM += win(rb1, *KW(11 if KVK == 3 else 13))
KCW = int(opt.get("kcw", 0))
QM += win(kcw[:KCW], A("K13"), A("K14") + 8)
QM += win(csw, A("C3") - 2, A("C3") - 2)
QM += win(rcs + [E(f"ds_write_b128 {r('za')}, {r('zz')}", "zw", 2)], A("C3"), A("C3") + 7)
if KCV:
    pass
QS = win(st, 0, A("KV") - 1 if KVK == 3 else A("K3") + 6) + win(sguse, A("m14") + 2, A("end") - 2)
QL = win(late_items(lateA), A("K3") + 2, A("K9") - 1) + win(late_items(lateB), A("K9") if lateA else A("K4"), A("C3") - 3)
schedule(main, [QR, QX, QV, QM, QS, QW1, QL])
lateC_items = late_items(lateC)
g.free("T1", "q", "whi", "b0", "ns128", "r8", "pc", "nown", "sD")
del g.names["bp"]
for n_ in ("wf", "kf", "vr", "kr", "shr", "vf", "kvp", "skr", "ke", "bt", "sgr"):
    del g.names[n_]
g.free("w1s", "w1lds", "sW1", "so", "f1a", "kvs", "pre", "kvo", "bb", "bw", "k0", "kd", "sho", "sa", "sb", "kvw", "kvr", "kra", "sra",
       "wa", "xf", "cs", "sgo", "m1", "stw", "w1r", "ctr", "ones", "sacc", "u", "gq", "stv",
       "xrd", "zz", "za", "ptr8", "ptr10", "ptr3", "ptr4", "ptr9", "kim", "xbase", "xk", "wo", "wlim")
AC("w2b", 176, at=0)
stamp("g1")
stamp("g1", "k")

K0 = -2.0 * 0.7978845608028654 * 1.4426950408889634
K1 = K0 * 0.044715
S("k1", 2); V("k0v", 2); V("ge", 16); V("hp", 8)
e(f"s_mov_b32 {r('k1', 0, 1)}, 0x{f2u(K1):08x}")
e(f"s_mov_b32 {r('k1', 1, 1)}, 0x{f2u(K1):08x}")
e(f"v_mov_b32 {r('k0v', 0, 1)}, 0x{f2u(K0):08x}")
e(f"v_mov_b32 {r('k0v', 1, 1)}, 0x{f2u(K0):08x}")
g.wait(lg="rcs")
e(".p2align 3")


def gelu(b, tb):
    it = []
    sac = r("sac", tb * 2, 2)
    prs = [(fb, h) for fb in (2 * b, 2 * b + 1) for h in range(2)]
    U = lambda k: r("acc", (prs[k][0] * 2 + tb) * 4 + 2 * prs[k][1], 2)
    Tm = lambda k: r("ge", (tb & 1) * 8 + 2 * k, 2)
    T1r = lambda k, x: r("ge", (tb & 1) * 8 + 2 * k + x, 1)
    for k, (fb, h) in enumerate(prs):
        it.append(E(f"v_pk_fma_f32 {Tm(k)}, {r('csf', fb * 4 + 2 * h, 2)}, {sac}, {r('b1f', fb * 4 + 2 * h, 2)} op_sel:[0,1,0] op_sel_hi:[1,1,1] neg_lo:[0,1,0] neg_hi:[0,1,0]"))
    for k in range(4):
        it.append(E(f"v_pk_fma_f32 {U(k)}, {U(k)}, {sac}, {Tm(k)} op_sel_hi:[1,0,1]"))
    for k in range(4):
        it.append(E(f"v_pk_mul_f32 {Tm(k)}, {U(k)}, {U(k)}"))
    for k in range(4):
        it.append(E(f"v_pk_fma_f32 {Tm(k)}, {Tm(k)}, {r('k1')}, {r('k0v')}"))
    for k in range(4):
        it.append(E(f"v_pk_mul_f32 {Tm(k)}, {Tm(k)}, {U(k)}"))
    for k in range(4):
        for x in range(2):
            it.append(E(f"v_exp_f32 {T1r(k, x)}, {T1r(k, x)}"))
    for k in range(4):
        it.append(E(f"v_pk_add_f32 {Tm(k)}, {Tm(k)}, 1.0 op_sel_hi:[1,0]"))
    for k in range(4):
        for x in range(2):
            it.append(E(f"v_rcp_f32 {T1r(k, x)}, {T1r(k, x)}"))
    for k in range(4):
        it.append(E(f"v_pk_mul_f32 {Tm(k)}, {Tm(k)}, {U(k)}"))
    for k in range(4):
        it.append(E(f"v_cvt_pk_bf16_f32 {r('hp', (tb & 1) * 4 + k, 1)}, {T1r(k, 0)}, {T1r(k, 1)}"))
    it.append(E(f"buffer_store_dwordx4 {r('hp', (tb & 1) * 4, 4)}, {r('l16')}, {r('sWS')}, {r(f'ho{b}')} offen sc1", "hst"))
    if tb == 0:
        it.append(E(f"s_add_u32 {r(f'ho{b}')}, {r(f'ho{b}')}, 44032"))
    return it


g.free("ska")
AC("cf", 32, at=176); AC("cg", 32, at=208)


def rdF(it, c):
    return E(f"ds_read_b128 {r('cf', 4 * c, 4)}, {r('fa')} offset:{64 * it + 512 * c}", f"F{it}_{c}")


def rdG(it, d):
    return E(f"ds_read_b128 {r('cg', 4 * d, 4)}, {r('ga')} offset:{64 * it + 512 * (7 - d)}", f"G{it}_{d}")


CORD = opt.get("cord", "AAAA")
init = []
if CORD[0] == "A":
    for k in range(8):
        init += [rdF(0, 7 - k), rdG(0, k)]
else:
    init = [rdG(0, 0)] + [rdF(0, 7 - k) for k in range(8)] + [rdG(0, k) for k in range(1, 8)]
SKIP = int(opt.get("skip2", 1))
for jp in range(3):
    if jp == 1:
        run(udma[:2])
    if SKIP:
        e(f"s_cmp_eq_u32 {r(f'ho{jp}')}, 0x7f000000")
        e(f"s_cbranch_scc1 L_gskip{jp}")
    e(".p2align 3")
    n0 = len(g.ins)
    if jp < 2:
        run(weave(gelu(jp, 0) + gelu(jp, 1), (udma[2:] if jp == 1 else [], 2, 60), (kcw[KCW:][jp::2], 12, 90)))
    else:
        g2x = gelu(2, 0) + gelu(2, 1)
        run(g2x[:80])
        g.wait(vm="U", lg=0)
        e("s_barrier")
        stamp("b5")
        run(weave(g2x[80:], (init[:6], 0, 16)))
    if SKIP:
        keep = [i.text for i in g.ins[n0:] if (not i.op.startswith("v_") or i.op.startswith("v_writelane")) and i.cls != "label"]
        g.label(f"L_gdone{jp}")

        def skip_tail(jp=jp, keep=keep):
            g.label(f"L_gskip{jp}")
            for x in keep:
                e(x)
            e(f"s_branch L_gdone{jp}")
        tails.append(skip_tail)
stamp("gelu")
g.free("pf1o", "um0", "ush", "chan", "kw")
del g.names["csf"], g.names["b1f"], g.names["sac"]
g.free("acc", "big", "ge", "k0v", "k1", "ho0", "ho1", "ho2")
V("cy", 32, at=96)
V("hfv", 96, at=160)
HFIRST = int(opt.get("hfirst", 2))
HPOL = opt.get("hpol", "sc1").replace("+", " ")
HORD = [(s_, p_) for p_ in range(HFIRST) for s_ in range(4)]
HORD += [(s_, p_) for s_ in range(4) for p_ in range(HFIRST, 11)]
HF = {}
for k_, sp in enumerate(HORD):
    HF[sp] = r("hfv", 4 * k_, 4) if k_ < 24 else f"a[{176 + 4 * (k_ - 24)}:{179 + 4 * (k_ - 24)}]"
S("sH", 4)
for p in range(11):
    S(f"hb{p}")
NE0 = int(opt.get("ne", 1))
NEX = int(opt.get("nex", 6))
NE = NE0 + NEX
HTXT = [f"buffer_load_dwordx4 {HF[s_, p_]}, {r('hv', s_, 1)}, SRD, {r(f'hb{p_}')} offen {HPOL}" for s_, p_ in HORD]

main = []
QF = win(init[6:], 0, 9 if CORD[0] == "A" else 6)
touched = set()
for it in range(4):
    at[f"I{it}"] = len(main)
    if CORD[it] == "A":
        order = [(c, d) for c in range(7, -1, -1) for d in range(8 - c)]
    else:
        order = [(c, d) for d in range(8) for c in range(7 - d, -1, -1)]
    lastF = {c: max(k for k, (c2, d2) in enumerate(order) if c2 == c) for c in range(8)}
    lastG = {d: max(k for k, (c2, d2) in enumerate(order) if d2 == d) for d in range(8)}
    seenF, seenG = set(), set()
    for k, (c, d) in enumerate(order):
        t = c + d
        wt = None
        if c not in seenF and d not in seenG:
            wt = dict(lg=f"F{it}_{c}", lg2=f"G{it}_{d}")
        elif c not in seenF:
            wt = dict(lg=f"F{it}_{c}")
        elif d not in seenG:
            wt = dict(lg=f"G{it}_{d}")
        seenF.add(c); seenG.add(d)
        main.append(M(r("cy", 4 * t, 4), r("cf", 4 * c, 4), r("cg", 4 * d, 4), t not in touched, wt))
        touched.add(t)
        if it == 0 and c == 0:
            main.append(M(r("cy", 4 * t, 4), r("fd"), r("cg", 4 * d, 4), False))
        idx = len(main) - 1
        if it < 3:
            if k == lastG[d]:
                QF += win([rdG(it + 1, d)], idx, idx + (0 if CORD[it] == "A" else 1))
            if k == lastF[c]:
                QF += win([rdF(it + 1, c)], idx, idx + (0 if c == 0 else 1))
at["I4"] = len(main)
if SSET == "cv":
    for k_ in range(0, 152, 8):
        main[k_] = It(lambda f=main[k_].fn, k_=k_: (stamp(f"m{k_}", "cv"), f()), main[k_].cost)
if VMODE == "F" and NV3:
    QW = win(rdW2(2) + rdW2(3) + rdW2(4), 8, 44) + win(rdW2(5) + rdW2(6), 48, 76) + win(rdW2(7) + rdW2(8), 78, 104) + win(rdW2(9), 108, 124)
    QV = win(dmaW2(5) + dmaW2(6) + dmaW2(7), 0, 46) + win(dmaW2(8) + dmaW2(9), 48, 78)
elif VMODE == "F":
    QW = win(rdW2(2), 10, 24) + win(rdW2(3) + rdW2(4), 40, 66) + win(rdW2(5) + rdW2(6) + rdW2(7), 68, 104)
    QW += win(rdW2(8), 106, 118) + win(rdW2(9), 124, A("I4") - 4)
    QV = win(dmaW2(3) + dmaW2(4) + dmaW2(5) + dmaW2(6) + dmaW2(7), 0, 70) + win(dmaW2(8) + dmaW2(9), 72, 98)
else:
    QW = win(rdW2(0) + rdW2(1) + rdW2(2) + rdW2(3), 8, 50) + win(rdW2(4) + rdW2(5) + rdW2(6), 56, 100)
    QW += win(rdW2(7) + rdW2(8) + rdW2(9), 104, A("I4") - 4)
    QV = win(([] if NV3 else dmaW2(3)) + dmaW2(4), 0, 15) + win(dmaW2(5) + dmaW2(6) + dmaW2(7) + dmaW2(8) + dmaW2(9), 22, 98)
F2POS = int(opt.get("f2pos", 32))
QF2 = win([It(lambda: (g.wait(vm="hst"), setflag(r("f2a"), "f2")), 2)], F2POS, F2POS)
QV += win(dmaW2(10), *((100, 114) if VMODE != "F" else (108, 120) if NV3 else (121, 134)))
P2A = int(opt.get("p2a", 124))
P2C = int(opt.get("p2c", 146))
QF2 += win([It(lambda: pollissue(r("pf2o"), "pf2a"))], P2A, P2A)


def chk2a():
    g.wait(vm="pf2a")
    e(f"v_cmp_ne_u64 vcc, {r('tag')}, {r('pf')}")
    e(f"s_mov_b64 {r('sH', 0, 2)}, {r('sWS', 0, 2)}")
    e(f"s_mov_b32 {r('sH', 3, 1)}, 0x00020000")
    e("s_cmp_eq_u64 vcc, 0")
    e(f"s_cselect_b32 {r('sH', 2, 1)}, {WSZ}, 0")


QV += win([It(chk2a, 2)], P2C, P2C)
QV += win([E(x.replace("SRD", r("sH")), f"H{s_}_{p_}") for (s_, p_), x in zip(HORD[:NE0], HTXT)], P2C + 1, A("I4") - 3)
hex_ = [E(x.replace("SRD", r("sH")), f"H{s_}_{p_}") for (s_, p_), x in list(zip(HORD, HTXT))[NE0:NE]]


def hx():
    if hex_:
        hex_.pop(0)()
QV += win([It(lambda: pollissue(r("pf2o"), "pf2"))], A("I4") - 2, A("I4") - 2)
S("early")
QB = []
QM = win([It(lambda p=p: (e(f"s_lshr_b32 {r(f'hb{p}')}, {r(f'kb{p}')}, 5"), e(f"s_min_u32 {r(f'hb{p}')}, {r(f'hb{p}')}, {42 * 1024}")), 0.6)
          for p in range(11)], 30, 70)
QB = win(lateC_items, 4, 100)
schedule(main, [QF, QW, QV, QM, QF2, QB])
g.free("tt2", "ns", "tok16", "L0", "L2", "L3", "L4")
stamp("conv")
stamp("conv", "g2")
rv10 = rdW2(10) if KCV else []
g.free("cf", "cg", "fd", "fa", "ga", "w2s", "w4k", "f2a", "hp")
for p in range(11):
    g.free(f"kb{p}")
V("ys", 8); V("cg", 24); V("sv", 4)
AC("hfa", 80, at=176)
hx()
g.wait(lg=0)
e(f"s_cmp_lg_u32 {r('wodd')}, 0")
e("s_cbranch_scc1 L_odd1")
lsv_ = g.lg_done
for k in range(4):
    e(f"ds_write_b128 {r('oa')}, {r('cy', 16 + 4 * k, 4)} offset:{1024 * k}")
e("s_branch L_j1")
g.label("L_odd1")
e("s_nop 4")
for k in range(4):
    e(f"ds_write_b128 {r('oa')}, {r('cy', 4 * k, 4)} offset:{1024 * k}")
g.wait(lg=0)
for k in range(8):
    e(f"v_pk_mov_b32 {r('cy', 2 * k, 2)}, {r('cy', 16 + 2 * k, 2)}, {r('cy', 16 + 2 * k, 2)} op_sel:[0,1]")
g.label("L_j1")
g.lg_done = lsv_
hx()
g.wait(lg=0)
e("s_barrier")
for k in range(4):
    e(f"ds_read_b128 {r('cg', 4 * k, 4)}, {r('pa')} offset:{1024 * k}", f"ex{k}")
hx(); hx()
for k in range(4):
    g.wait(lg=f"ex{k}")
    for hh in range(2):
        e(f"v_pk_add_f32 {r('cy', 4 * k + 2 * hh, 2)}, {r('cy', 4 * k + 2 * hh, 2)}, {r('cg', 4 * k + 2 * hh, 2)}")
    for hh in range(2):
        e(f"v_cvt_pk_bf16_f32 {r('cg', 16 + 2 * k + hh, 1)}, {r('cy', 4 * k + 2 * hh, 1)}, {r('cy', 4 * k + 2 * hh + 1, 1)}")
    e(f"ds_write_b64 {r('yw')}, {r('cg', 16 + 2 * k, 2)} offset:{4096 + 512 * k}", f"yw{k}")
    if k & 1:
        e(f"ds_read_b128 {r('ys', 2 * (k - 1), 4)}, {r('oa')} offset:{4096 + 512 * (k - 1)}", f"yr{k >> 1}")
hx()
g.wait(lg="yr0")
e(f"buffer_store_dwordx4 {r('ys', 0, 4)}, {r('l16')}, {r('sWS')}, {r('yo')} offen sc1", "yst")
g.wait(lg="yr1")
e(f"buffer_store_dwordx4 {r('ys', 4, 4)}, {r('l16')}, {r('sWS')}, {r('yo')} offen offset:1024 sc1", "yst")
stamp("yst")
stamp("yst", "g2")
while hex_:
    hx()
g.free("cy", "pa", "yw", "cg", "yo")

V("ac2", 32)
e(f"s_cmp_lg_u32 {r('sH', 2, 1)}, 0")
e("s_cbranch_scc1 L_haveH")
sv_ = g.vm_done
pollcheck(r("pf2o"), "pf2", before_spin=["s_waitcnt vmcnt(0)"] + flagtxt(r("f3a"), L3S))
n_ = len(g.vm)
for x in HTXT[:NE]:
    e(x.replace("SRD", r("sWS")))
del g.vm[n_:]
g.label("L_haveH")
g.vm_done = 0
n_late = len(g.vm)
stamp("f2")
hl = [E(x.replace("SRD", r("sWS")), f"H{s_}_{p_}") for (s_, p_), x in zip(HORD, HTXT)]


def g2(s):
    return [M(r("ac2", (s & 1) * 16 + 4 * nb, 4), w2f(p, nb), HF[s, p], p == 0,
              (dict(vm=f"H{s}_{p}", lg="rv10") if (s == 0 and p == 10) else dict(vm=f"H{s}_{p}")) if nb == 0 else None)
            for p in range(11) for nb in range(4)]


def pwr(s):
    return [E(f"ds_write_b64 {r('pw', s, 1)}, {r('ac2', (s & 1) * 16 + 2 * k, 2)} offset:{512 * k}", "pw", 1.5) for k in range(8)]


V("xr", 8); V("xfp", 16); V("xn", 16)
pre = rv10 + [It(lambda: gcheck("sv", r("svr"), "sv")), W(vm="xt")]
for nb in range(4):
    pre.append(E(f"ds_read_b64 {r('xr', 2 * nb, 2)}, {r('ea', nb, 1)} offset:6144", "xr"))
PRESH = int(opt.get("presh", 1))
pre2 = [W(lg="xr")]
if PRESH:
    for d in range(8):
        lo, hi = r("xfp", 2 * d, 1), r("xfp", 2 * d + 1, 1)
        a_, b_ = r("xn", 2 * d, 1), r("xn", 2 * d + 1, 1)
        pre2.append(E(f"v_lshlrev_b32 {lo}, 16, {r('xr', d, 1)}"))
        pre2.append(E(f"v_and_b32 {hi}, {r('hmask')}, {r('xr', d, 1)}"))
        pre2.append(E(f"v_sub_f32 {a_}, {lo}, {r('sv', 0, 1)}"))
        pre2.append(E(f"v_sub_f32 {b_}, {hi}, {r('sv', 0, 1)}"))
        pre2.append(E(f"v_cvt_pk_bf16_f32 {b_}, {a_}, {b_}"))
        pre2.append(E(f"v_lshlrev_b32 {a_}, 16, {b_}"))
        pre2.append(E(f"v_and_b32 {b_}, {r('hmask')}, {b_}"))
        pre2.append(E(f"v_mul_f32 {a_}, {a_}, {r('sv', 1, 1)}"))
        pre2.append(E(f"v_mul_f32 {b_}, {b_}, {r('sv', 1, 1)}"))
        pre2.append(E(f"v_cvt_pk_bf16_f32 {b_}, {a_}, {b_}"))
        pre2.append(E(f"v_lshlrev_b32 {a_}, 16, {b_}"))
        pre2.append(E(f"v_and_b32 {b_}, {r('hmask')}, {b_}"))
else:
    pre2 += unpack("xfp", 0, "xr", 0, 8)
    for d in range(8):
        pre2.append(E(f"v_pk_add_f32 {r('xn', 2 * d, 2)}, {r('xfp', 2 * d, 2)}, {r('sv', 0, 2)} op_sel_hi:[1,0] neg_lo:[0,1] neg_hi:[0,1]"))
    for d in range(8):
        pre2.append(E(f"v_cvt_pk_bf16_f32 {r('xr', d, 1)}, {r('xn', 2 * d, 1)}, {r('xn', 2 * d + 1, 1)}"))
    pre2 += unpack("xn", 0, "xr", 0, 8)
    for d in range(8):
        pre2.append(E(f"v_pk_mul_f32 {r('xn', 2 * d, 2)}, {r('xn', 2 * d, 2)}, {r('sv', 0, 2)} op_sel:[0,1] op_sel_hi:[1,1]"))
    for d in range(8):
        pre2.append(E(f"v_cvt_pk_bf16_f32 {r('xr', d, 1)}, {r('xn', 2 * d, 1)}, {r('xn', 2 * d + 1, 1)}"))
    pre2 += unpack("xn", 0, "xr", 0, 8)
if PRESH:
    run(weave(rv10 or [It(lambda: None)], (hl[NE:NH0], 0, 9)))
    QPRE = win(pre[len(rv10):], 66, 72) + win(pre2, 78, 138)
else:
    run(weave(pre + pre2, (hl[NE:NH0], 0, 88)))
    QPRE = []
e(f"s_cmp_lg_u32 {r('sH', 2, 1)}, 0")
e("s_cbranch_scc1 L_lateok")
e(f"s_waitcnt vmcnt({len(g.vm) - n_late})")
g.label("L_lateok")
stamp("f3set")
stamp("f3set", "g2")
ps_alias = {}
B7P = 14
main = g2(0) + g2(1) + g2(2) + g2(3)[:B7P]
if SSET == "g2b":
    for k_ in range(0, 140, 8):
        main[k_] = It(lambda f=main[k_].fn, k_=k_: (stamp(f"m{k_}", "g2b"), f()), main[k_].cost)
P3K = int(opt.get("p3k", 44))
HPACE = float(opt.get("hpace", 3.8))
xtl = [It(lambda: (e(f"s_add_u32 m0, {r('own')}, 6144"), e("s_nop 0"), e(f"buffer_load_dwordx4 {r('xs', 0, 1)}, {r('sX')}, {r('tile0')} offen lds", "xt")), 1.5),
       E(f"buffer_load_dwordx4 {r('xs', 1, 1)}, {r('sX')}, {r('tile0')} offen offset:1024 lds", "xt"),
       E(f"buffer_load_dwordx4 {r('sv')}, {r('svr')}, {r('sWS')}, 0 offen sc1", "sv")]
XK = NH0 + 6
QH = win(hl[NH0:XK] + xtl + hl[XK:P3K] + [It(lambda: pollissue(r("pf3o"), "pf3"))] + hl[P3K:], 0, int(HPACE * (47 - NH0)))
QP = win(pwr(0), 48, 70) + win(pwr(1), 92, 114) + win(pwr(2), 134, 143)
F3POS = int(opt.get("f3pos", 34))
QF3 = win([It(lambda: (g.wait(vm="yst"), setflag(r("f3a"), "f3")), 2)], F3POS, F3POS)
schedule(main, [QH, QP, QF3, QPRE])
g.free("ys", "xr", "sv", "svr", "pf2o", "w2r")
stamp("g2s2")
stamp("g2s2", "g2")
g.wait(lg=0)
stamp("b7a", "g2")
e("s_barrier")
stamp("b7b", "g2")
g.free("hfv")
V("ps", 48); V("zr", 8); V("b2f", 16)
rp = [E(f"ds_read_b128 {r('b2f', 4 * nb, 4)}, {r('csr0')} offset:{B2T - CSX + 64 * nb}", "rb2") for nb in range(4)]
rp += [E(f"ds_read2st64_b64 {r('ps', 4 * k, 4)}, {r('psr')} offset0:{2 * k} offset1:{2 * k + 1}", f"rp{k}") for k in range(12)]
adds = [W(lg="rp11")]
for k in range(16):
    adds.append(E(f"v_add_f32 {r('ps', k, 1)}, {r('ps', k, 1)}, {r('ps', 16 + k, 1)}"))
    adds.append(E(f"v_add_f32 {r('b2f', k, 1)}, {r('b2f', k, 1)}, {r('ps', 32 + k, 1)}"))
ztxt = [f"buffer_load_dwordx4 {r('zs')}, {r('sWS')}, {r('zo')} offen sc1 lds",
        f"buffer_load_dwordx4 {r('zs')}, {r('sWS')}, {T3} offen offset:1024 sc1 lds"]


def zfirst():
    stamp("zfa", "g2")
    g.wait(vm="pf3")
    stamp("zfb", "g2")
    e(f"v_cmp_ne_u64 vcc, {r('tag')}, {r('pf')}")
    e(f"s_add_u32 m0, {r('own')}, 8192")
    e(f"s_add_u32 {T3}, {r('zo')}, {32 * KP - 1024}")
    e("s_cmp_eq_u64 vcc, 0")
    e(f"s_cselect_b32 {r('early')}, 1, 0")
    e("s_cbranch_scc0 L_noz")
    n_ = len(g.vm)
    for x in ztxt:
        e(x)
    del g.vm[n_:]
    g.label("L_noz")
    pollissue(r("pf3o"), "pf3b")


ZPOS = int(opt.get("zpos", 8))
schedule(g2(3)[B7P:], [win(rp, 0, 11), win(adds, 16, 29), win([It(zfirst, 3)], ZPOS, ZPOS)])
stamp("g2")
stamp("g2", "g2")
S("nl2", 2)
e(f"s_mov_b32 {r('nl2', 0, 1)}, 0x{f2u(-1.4426950408889634):08x}")
e(f"s_mov_b32 {r('nl2', 1, 1)}, 0x{f2u(-1.4426950408889634):08x}")
srd("sA", 11, 2097152)
Mm = lambda k: r("ps", 2 * k, 2)
Tt = lambda k: r("ps", 16 + 2 * k, 2)
e(".p2align 3")
for k in range(8):
    e(f"v_pk_add_f32 {Mm(k)}, {Mm(k)}, {r('b2f', 2 * k, 2)}")
for k in range(8):
    e(f"v_pk_add_f32 {Mm(k)}, {Mm(k)}, {r('ac2', 16 + 2 * k, 2)}")
for k in range(8):
    e(f"v_pk_mul_f32 {Tt(k)}, {Mm(k)}, {r('nl2')}")
for k in range(16):
    e(f"v_exp_f32 {r('ps', 16 + k, 1)}, {r('ps', 16 + k, 1)}")
for k in range(8):
    e(f"v_pk_mul_f32 {Mm(k)}, {Mm(k)}, {r('xn', 2 * k, 2)}")
for k in range(8):
    e(f"v_pk_add_f32 {Tt(k)}, {Tt(k)}, 1.0 op_sel_hi:[1,0]")
for k in range(16):
    e(f"v_rcp_f32 {r('ps', 16 + k, 1)}, {r('ps', 16 + k, 1)}")
e(f"s_cmp_eq_u32 {r('early')}, 1")
e("s_cbranch_scc1 L_havez")
pollcheck(r("pf3o"), "pf3b")
for x in ztxt:
    e(x)
g.label("L_havez")
e(f"s_or_b32 {T2}, s2, {r('wave')}")
e("s_cbranch_scc0 L_bump")
g.label("L_bumped")


def bump_tail():
    g.label("L_bump")
    e(f"v_and_b32 {ta_}, 7, {lane_}")
    if MAP1 == 8:
        e(f"v_lshrrev_b32 {tb_}, 2, {ta_}")
        e(f"v_and_b32 {ta_}, 3, {ta_}")
    else:
        e(f"v_lshrrev_b32 {tb_}, 1, {ta_}")
        e(f"v_and_b32 {ta_}, 1, {ta_}")
    e(f"v_mul_u32_u24 {tb_}, {2 * G2S}, {tb_}")
    e(f"v_lshl_add_u32 {ta_}, {ta_}, {L2S + 3}, {tb_}")
    e(f"s_mov_b32 {T2}, {F2B}")
    if SPINMAX:
        e(f"s_mov_b32 {T4}, 0")
    g.label("L_bump_l")
    e(f"buffer_load_dwordx2 {pf_}, {ta_}, {sws_}, {T2} offen sc1")
    e("s_waitcnt vmcnt(0)")
    e(f"v_cmp_ne_u64 vcc, {tagr_}, {pf_}")
    if SPINMAX:
        e(f"s_add_u32 {T4}, {T4}, 1")
        e(f"s_cmp_gt_u32 {T4}, {SPINMAX}")
        e("s_cbranch_scc1 L_bumped")
    e("s_cmp_eq_u64 vcc, 0")
    e("s_cbranch_scc0 L_bump_l")
    e(f"s_mov_b32 {T2}, {EPOCH}")
    e("s_mov_b64 exec, 1")
    e(f"buffer_store_dwordx2 {vtag_}, {zero_}, {sws_}, {T2} offen sc1")
    e("s_mov_b64 exec, -1")
    e("s_branch L_bumped2")


tagr_, sws_, vtag_, zero_, ta_, tb_, lane_, pf_ = r("tag"), r("sWS"), r("vtag", 0, 2), r("zero"), r("ta"), r("tb"), r("lane"), r("pf")
tails.append(bump_tail)
e("s_waitcnt vmcnt(0)")
g.label("L_bumped2")
stamp("z")
stamp("z", "g2")
for nb in range(4):
    e(f"ds_read_b64_tr_b16 {r('zr', 2 * nb, 2)}, {r('zt')} offset:{8192 + 512 * nb}", f"zr{nb}")
for k in range(8):
    e(f"v_pk_mul_f32 {Mm(k)}, {Mm(k)}, {Tt(k)}")
for nb in range(4):
    g.wait(lg=f"zr{nb}")
    run(unpack("ps", 16 + 4 * nb, "zr", 2 * nb, 2))
    for k in (2 * nb, 2 * nb + 1):
        e(f"v_pk_fma_f32 {Mm(k)}, {Mm(k)}, {Tt(k)}, {r('xfp', 2 * k, 2)}")
    for k in (2 * nb, 2 * nb + 1):
        e(f"v_cvt_pk_bf16_f32 {r('zr', k, 1)}, {r('ps', 2 * k, 1)}, {r('ps', 2 * k + 1, 1)}")
    e(f"ds_write_b64 {r('ea', nb, 1)}, {r('zr', 2 * nb, 2)} offset:10240", "ow")
e(f"ds_read_b128 {r('ps', 32, 4)}, {r('oa')} offset:10240", "or0")
e(f"ds_read_b128 {r('ps', 36, 4)}, {r('oa')} offset:11264", "or1")
g.wait(lg="or0")
e(f"buffer_store_dwordx4 {r('ps', 32, 4)}, {r('xs', 0, 1)}, {r('sA')}, {r('tile0')} offen {OPOL}", "ost")
g.wait(lg="or1")
e(f"buffer_store_dwordx4 {r('ps', 36, 4)}, {r('xs', 1, 1)}, {r('sA')}, {r('tile0')} offen offset:1024 {OPOL}", "ost")
stamp("out")
stamp("out", "g2")
if STAMPS:
    e("s_waitcnt vmcnt(0)")
    stamp("end")
    g.smem_out = True
    flush_stamps(True)
    e(f"s_lshl_b32 {T2}, s2, 2")
    e(f"s_add_u32 {T2}, {T2}, {r('wave')}")
    e(f"s_lshl_b32 {T2}, {T2}, 7")
    e(f"s_add_u32 {T2}, {T2}, {STAMP}")
    e(f"v_lshlrev_b32 {r('ta')}, 2, {r('lane')}")
    e("s_mov_b32 exec_hi, 0")
    e(f"buffer_store_dword {r('stamps')}, {r('ta')}, {r('sWS')}, {T2} offen")
    if DBG:
        e(f"s_cmp_lg_u32 {T2}, {STAMP + (DBG - 1) * 512}")
        e("s_cbranch_scc1 L_end")
        e(f"v_readfirstlane_b32 {T3}, {r('stamps')}")
        e(f"v_subrev_u32 {r('tb')}, {T3}, {r('stamps')}")
        e(f"global_store_dword {r('ta')}, {r('tb')}, {ptr(12)}")
if AMP:
    e("s_waitcnt vmcnt(0) lgkmcnt(0)")
    e("s_memrealtime s[100:101]")
    e("s_sub_u32 s98, s98, s96")
    e("s_lshl_b32 s98, s98, 1")
    e("s_waitcnt lgkmcnt(0)")
    g.label("L_amp")
    e(f"s_memrealtime {r('t45', 0, 2)}")
    e("s_waitcnt lgkmcnt(0)")
    e(f"s_sub_u32 {T1_}, {T1_}, s100")
    e(f"s_cmp_lt_u32 {T1_}, s98")
    e("s_cbranch_scc1 L_amp")
if UNTIL:
    g.label("L_until")
    e(f"s_memrealtime {r('t45', 0, 2)}")
    e("s_waitcnt lgkmcnt(0)")
    e(f"s_sub_u32 {T1_}, {T1_}, {r('t_start', 0, 1)}")
    e(f"s_cmp_lt_u32 {T1_}, {UNTIL}")
    e("s_cbranch_scc1 L_until")
PAD = int(opt.get("pad", 0))
if PAD:
    e(f"s_mov_b32 {T2}, 0")
    g.label("L_pad")
    for _ in range(120):
        e(f"v_add_u32 {r('ta')}, 1, {r('tb')}")
    e(f"s_add_u32 {T2}, {T2}, 1")
    e(f"s_cmp_lt_u32 {T2}, {PAD}")
    e("s_cbranch_scc1 L_pad")
g.label("L_end")
e("s_endpgm")
for t_ in tails:
    t_()

body = g.finish()
hdr = open("cdna_kernels/" + NAME + ".s.ref").read().split("; @launch")[0]
nv = 256 + g.hw["a"]
txt = f"""{hdr}; @launch grid=(256,1,1) block=(256,1,1) lds={LDSZ}
; ---------------------------------------------------------------------------------------------------------
;    (the D skip term is one extra tap).
; ---------------------------------------------------------------------------------------------------------
.amdgcn_target "amdgcn-amd-amdhsa--gfx950"
.text
.globl {NAME}_kernel
.p2align 8
.type {NAME}_kernel,@function
{NAME}_kernel:
{body}
    s_endpgm
.section .rodata,"a"
.p2align 6
.amdhsa_kernel {NAME}_kernel
  .amdhsa_next_free_vgpr {nv}
  .amdhsa_next_free_sgpr 102
  .amdhsa_accum_offset 256
  .amdhsa_group_segment_fixed_size 0
  .amdhsa_kernarg_size 112
  .amdhsa_user_sgpr_count 2
  .amdhsa_user_sgpr_kernarg_segment_ptr 1
  .amdhsa_system_sgpr_workgroup_id_x 1
.end_amdhsa_kernel
"""
import subprocess, re
open("_g.s", "w").write(txt.replace("CODE_BYTES", "0x1000"))
subprocess.check_call(["clang", "-x", "assembler", "-target", "amdgcn-amd-amdhsa", "-mcpu=gfx950", "-c", "_g.s", "-o", "_g.o"])
hh = subprocess.check_output(["llvm-objdump", "-h", "_g.o"]).decode()
size = int(re.search(r"\.text\s+([0-9a-f]+)", hh).group(1), 16)
txt = txt.replace("CODE_BYTES", str((size - 256) & ~3))
open(OUT, "w").write(txt)
print("code bytes", size, "instrs", len(g.ins), "nops", g.nops, "hw", g.hw, "stamps", nst[0], " ".join(stnames))
```

```python
import sys, struct, re
from dsl import Gen, It, win, schedule

NAME = "recurrent_scan__ssm_conv_h3__mixer_channel_mlp__prompt"
opt = dict(a.split("=") for a in sys.argv[2:])
OUT = sys.argv[1]
MAP1 = int(opt.get("map1", 4))
STAMPS = int(opt.get("stamps", 0))
KVPOL = opt.get("kvpol", "nt")
XPOL0 = opt.get("xpol", "")
KPOL = opt.get("kpol", "nt")
SPINMAX = int(opt.get("spinmax", 0))
PREDIV = int(opt.get("prediv", 16))
OPOL = opt.get("opol", "")
DBG = int(opt.get("dbg", 0))
SSET = opt.get("sset", "main")
TOUCH = int(opt.get("touch", 0))
NH0 = int(opt.get("nh0", 14))
NX0 = int(opt.get("nx0", 7))

KP = int(opt.get("kp", 4352))
KVT, HB, YT, FL, EPOCH, STAMP = 0, 0x240000, 0x800000, 0xA40000, 0xB00000, 0xC00000
F1B, F2B, F3B = FL, FL + 0x30000, FL + 0x60000
L1S, L2S, L3S = (int(opt.get(k, d)) for k, d in (("l1s", 6), ("l2s", 6), ("l3s", 6)))
G1S, G2S, G3S = max(32 << L1S, 256) + 256, max(32 << L2S, 256) + 256, max(64 << L3S, 256) + 256
STA, STB = 0xAE0000, 0xAE0010
HALT = int(opt.get("halt", "0"), 0)
WSZ = 0xD00000 + HALT
XST, KVIMG, CSX, STT = 98816, 147968, 156288, 156672
FP, GP = 4160, 4576
WR = 49664
UB0 = 66048
S3, S4 = 49664, 33280
PX = 49664
B1T, B2T = 157696, 158080
LDSZ = 158336


def f2u(x):
    return struct.unpack("<I", struct.pack("<f", x))[0]


g = Gen()
e, r = g.e, g.r
V = lambda n, c=1, **k: g.alloc("v", n, c, **k)
S = lambda n, c=1, **k: g.alloc("s", n, c, **k)
AC = lambda n, c=1, **k: g.alloc("a", n, c, **k)
W = lambda **k: It(lambda: g.wait(**k), 0.3)
E = lambda s, t=None, cost=None: It(lambda: e(s, t), cost or (1.2 if s.startswith(('ds_', 'buffer_', 'global_')) else 0.3 if s.startswith('s_') else 1))


def run(items):
    for it in items:
        it()


def weave(main, *bgs):
    slots = [[] for _ in main]
    for items, a, b in bgs:
        b = min(b, len(main) - 1)
        n = len(items)
        for k, it in enumerate(items):
            slots[a + (k * (b - a + 1)) // max(n, 1)].append(it)
    out = []
    for m, s in zip(main, slots):
        out.append(m)
        out.extend(s)
    return out


S("karg", 2, at=0); S("wg", 1, at=2); S("t0", 1, at=3)
S("t45", 4, at=4)
for i_ in range(14):
    S(f"ptr{i_}", 2, at=8 + 2 * i_)
V("tid", 1, at=0)
nst = [0]
stnames = []
pend = []
if STAMPS:
    S("st", 8, at=94, align=2)
    V("stamps", 1, at=1)


def flush_stamps(force=False):
    if pend and (force or len(pend) == 4) and g.smem_out:
        g.wait(lg=0)
    if not g.smem_out:
        for k in pend:
            e(f"v_writelane_b32 {r('stamps')}, {r('st', 2 * (k % 4), 1)}, {k}")
        pend.clear()


AMP = opt.get("amp", "")


def stamp(name, grp="main"):
    if AMP and grp == "main" and name in ("start", AMP):
        so_ = g.smem_out
        e(f"s_memrealtime s[{96 if name == 'start' else 98}:{97 if name == 'start' else 99}]")
        if name != "start":
            g.smem_out = so_
    if STAMPS and (grp == SSET or name in ("start", "end")) and name not in opt.get("skip", "").split(","):
        assert nst[0] < 32
        if STAMPS == 3:
            if len(pend) == 3:
                k = pend.pop(0)
                e(f"v_writelane_b32 {r('stamps')}, {r('st', 2 * (k % 4), 1)}, {k}")
            so_ = g.smem_out
            e(f"s_memtime {r('st', 2 * (nst[0] % 4), 2)}")
            g.smem_out = so_
            pend.append(nst[0]); nst[0] += 1; stnames.append(name)
            return
        flush_stamps()
        e(f"{'s_memtime' if STAMPS == 2 else 's_memrealtime'} {r('st', 2 * (nst[0] % 4), 2)}")
        pend.append(nst[0])
        nst[0] += 1
        stnames.append(name)


_wait = g.wait
_wn = [0]
VM0 = int(opt.get("vm0", 0))


def wait_hook(vm=None, lg=None):
    hook = SSET == "vm" and vm is not None and not str(vm).startswith("H")
    if hook:
        _wn[0] += 1
        hook = VM0 < _wn[0] <= VM0 + 15
    if hook:
        stamp(f"b{vm}", "vm")
    _wait(vm=vm, lg=lg)
    if hook:
        stamp(f"a{vm}", "vm")


g.wait = wait_hook


def ptr(i):
    if i == 13 and "ptr13" not in g.names:
        return r("sWS", 0, 2)
    return r(f"ptr{i}")


def plo(i):
    return "s" + ptr(i)[2:].split(":")[0]


def phi(i):
    return "s" + ptr(i).split(":")[1][:-1]


def srd(name, pi, nbytes, add=None):
    if add is None:
        e(f"s_mov_b64 {r(name,0,2)}, {ptr(pi)}")
    else:
        e(f"s_add_u32 {r(name,0,1)}, {plo(pi)}, {add}")
        e(f"s_addc_u32 {r(name,1,1)}, {phi(pi)}, 0")
    e(f"s_mov_b32 {r(name,2,1)}, {nbytes}")
    e(f"s_mov_b32 {r(name,3,1)}, 0x00020000")


T0, T1_, T2, T3, T4 = "s3", "s4", "s5", "s6", "s7"
ABL = opt.get("abl", "").split(",")
_e0 = g.e


LATE = None


def e(text, tag=None):
    if LATE is not None:
        LATE.append(text)
        return
    t = tag or ""
    if ("x" in ABL and t.startswith("X") and t != "X0") or ("w" in ABL and t.startswith("W") and t != "W0") or \
            ("v" in ABL and t.startswith("V")):
        g.vm.append(tag)
        g.vm.pop()
        g.vm.insert(0, tag)
        return
    hook = SSET == "iss" and (text.startswith(("buffer_", "global_", "s_barrier")) or (text.startswith("s_waitcnt") and "vmcnt" in text))
    if hook:
        _in[0] += 1
        hook = VM0 < _in[0] <= VM0 + 15
    if hook:
        stamp("b" + (tag or text.split()[0][2:6]), "iss")
    _e0(text, tag)
    if hook:
        stamp("a", "iss")


_in = [0]
g.e = e


UNTIL = int(opt.get("until", 0))
if UNTIL:
    S("t_start", 2, at=92)
    e(f"s_memrealtime {r('t_start')}")
stamp("start")
e("s_load_dwordx16 s[8:23], s[0:1], 0")
e("s_load_dwordx8 s[24:31], s[0:1], 64")
e("s_load_dwordx4 s[32:35], s[0:1], 96")
e("s_cmp_ge_u32 s2, 256")
e("s_cbranch_scc1 L_end")
for n in ("lane", "ta", "tb", "tc", "td", "r8", "pc", "zero", "i15", "h4", "l16", "oa", "fa", "ga", "pa", "yw", "zs", "zt",
          "pf1o", "pf2o", "pf3o", "psr", "svr", "kw", "za", "sgo", "csr0", "stw"):
    V(n)
V("vtag", 4); V("xs", 4, align=1); V("w2s", 4, align=1); V("w2r", 8, align=1); V("hv", 4, align=1)
V("pw", 3, align=1); V("ea", 4, align=1); V("pf", 2)
V("xrd", 2, align=1); V("w1r", 6, align=1); V("ctr", 3, align=1); V("w1s", 3, align=1)
AC("fd", 4, at=240); AC("ones", 4, at=244); AC("zz", 4, at=248)
for n in ("wave", "T1", "q", "tt2", "ns", "rot", "b0", "nown", "tok16", "ns128", "tile0", "own", "hmask", "so",
          "f1a", "f2a", "f3a", "yo", "zo", "um0", "ush"):
    S(n)
sh_ = PREDIV.bit_length() - 1
V("pre")
e(f"s_lshr_b32 {T1_}, s2, 3")
e(f"v_lshrrev_b32 {r('tc')}, {sh_}, v0")
e(f"s_and_b32 {T2}, {T1_}, {PREDIV - 1}")
e(f"v_lshl_add_u32 {r('tc')}, {r('tc')}, {sh_}, {T2}")
e(f"v_lshlrev_b32 {r('tc')}, 7, {r('tc')}")
e(f"v_min_u32 {r('tc')}, CODE_BYTES, {r('tc')}")
e(f"s_getpc_b64 {r('t45', 2, 2)}")
e(f"global_load_dword {r('pre')}, {r('tc')}, {r('t45', 2, 2)}", "pre")
e(f"v_and_b32 {r('lane')}, 63, v0")
e(f"v_lshrrev_b32 {r('ta')}, 6, v0")
e(f"s_and_b32 {T0}, s2, 7")
e(f"v_readfirstlane_b32 {r('wave')}, {r('ta')}")
if MAP1 == 8:
    e(f"s_lshr_b32 {T2}, {T1_}, 4")
    e(f"s_lshl_b32 {r('T1')}, {T0}, 1")
    e(f"s_add_u32 {r('T1')}, {r('T1')}, {T2}")
    e(f"s_and_b32 {r('q')}, {T1_}, 15")
    e(f"s_lshl_b32 {T2}, {T2}, 2")
    e(f"s_add_u32 {r('rot')}, {T2}, {r('q')}")
else:
    e(f"s_lshr_b32 {T2}, {T0}, 1")
    e(f"s_lshl_b32 {T2}, {T2}, 2")
    e(f"s_lshr_b32 {T3}, {T1_}, 3")
    e(f"s_add_u32 {r('T1')}, {T2}, {T3}")
    e(f"s_and_b32 {T2}, {T0}, 1")
    e(f"s_lshl_b32 {T2}, {T2}, 3")
    e(f"s_add_u32 {T3}, {T1_}, {int(opt.get('jrot', 0))}")
    e(f"s_and_b32 {T3}, {T3}, 7")
    e(f"s_add_u32 {r('q')}, {T2}, {T3}")
    e(f"s_lshl_b32 {T2}, {r('T1')}, 1")
    e(f"s_add_u32 {r('rot')}, {T2}, {r('q')}")
e(f"s_and_b32 {r('rot')}, {r('rot')}, 7")
e(f"s_lshr_b32 {T2}, {r('q')}, 3")
e(f"s_lshl_b32 {r('tt2')}, {r('T1')}, 1")
e(f"s_add_u32 {r('tt2')}, {r('tt2')}, {T2}")
e(f"s_and_b32 {r('ns')}, {r('q')}, 7")
V("k0"); V("kd", 2, align=1); V("sho")
e(f"v_lshrrev_b32 {r('r8')}, 3, {r('lane')}")
e(f"v_and_b32 {r('pc')}, 7, {r('lane')}")
e(f"s_lshl_b32 {T2}, {r('tt2')}, 2")
e(f"s_add_u32 {r('tok16')}, {T2}, {r('wave')}")
e(f"s_lshl_b32 {T2}, {r('tok16')}, 14")
e(f"s_lshl_b32 {r('ns128')}, {r('ns')}, 7")
e(f"s_add_u32 {r('tile0')}, {T2}, {r('ns128')}")
e(f"s_mul_i32 {r('own')}, {r('wave')}, 12288")
e(f"s_add_u32 {r('own')}, {r('own')}, {XST}")
S("sA", 4); S("sB", 4); S("sX", 4); S("sW1", 4); S("sWS", 4)
for nm, sz in (("sX", 2097152), ("sW1", 1409024)):
    e(f"s_mov_b32 {r(nm,2,1)}, {sz}")
    e(f"s_mov_b32 {r(nm,3,1)}, 0x00020000")
e(f"s_mul_i32 {r('b0')}, {r('q')}, 3")
e(f"s_lshr_b32 {T2}, {r('q')}, 2")
e(f"s_sub_u32 {r('b0')}, {r('b0')}, {T2}")
e(f"s_min_u32 {T2}, {r('q')}, 1")
e(f"s_sub_u32 {r('b0')}, {r('b0')}, {T2}")
e(f"s_bitcmp1_b32 0x8889, {r('q')}")
e(f"s_cselect_b32 {r('nown')}, 2, 3")
ZOWN = int(opt.get("zown", 1))
e(f"s_lshl_b32 {T3}, {r('nown')}, 2")
for c in range(3):
    e(f"v_add_u32 {r('ta')}, {64 * c}, {r('lane')}")
    e(f"v_mul_u32_u24 {r('tb')}, 43691, {r('ta')}")
    e(f"v_lshrrev_b32 {r('tb')}, 19, {r('tb')}")
    e(f"v_mul_u32_u24 {r('tc')}, 12, {r('tb')}")
    e(f"v_sub_u32 {r('tc')}, {r('ta')}, {r('tc')}")
    e(f"v_lshrrev_b32 {r('td')}, 2, {r('tb')}")
    e(f"v_and_b32 {r('td')}, 2, {r('td')}")
    e(f"v_xor_b32 {r('tc')}, {r('tc')}, {r('td')}")
    e(f"v_mul_u32_u24 {r('tb')}, 2752, {r('tb')}")
    e(f"v_lshl_add_u32 {r('tb')}, {r('tc')}, 4, {r('tb')}")
    if ZOWN:
        e(f"v_cmp_le_u32 vcc, {T3}, {r('tc')}")
        e(f"v_subrev_u32 {r('tb')}, {1024 * c}, {r('tb')}")
        e(f"v_bfrev_b32 {r('td')}, 2")
        e(f"v_cndmask_b32 {r('w1s', c, 1)}, {r('tb')}, {r('td')}, vcc")
    else:
        e(f"v_subrev_u32 {r('w1s', c, 1)}, {1024 * c}, {r('tb')}")
S("w1lds"); S("xbase"); S("xk"); S("wo"); S("wlim")
e(f"s_lshl_b32 {T3}, {r('b0')}, 6")
e(f"s_lshl_b32 {T2}, {r('T1')}, 2")
e(f"s_add_u32 {T2}, {T2}, {r('wave')}")
e(f"s_lshl_b32 {r('xbase')}, {T2}, 15")
e(f"s_lshl_b32 {r('xk')}, {r('rot')}, 7")
e(f"s_mul_i32 {T4}, {r('wave')}, {16 * 2752}")
e(f"s_add_u32 {T4}, {T4}, {T3}")
e(f"s_add_u32 {r('wlim')}, {T4}, {512 * 2752}")
e(f"s_mul_i32 {T2}, {r('rot')}, {64 * 2752}")
e(f"s_add_u32 {r('wo')}, {T2}, {T4}")
e(f"s_mul_i32 {r('w1lds')}, {r('wave')}, 3072")
e(f"s_add_u32 {r('w1lds')}, {r('w1lds')}, {WR}")
e(f"v_lshrrev_b32 {r('ta')}, 1, {r('r8')}")
e(f"v_xor_b32 {r('ta')}, {r('ta')}, {r('pc')}")
e(f"v_lshlrev_b32 {r('ta')}, 4, {r('ta')}")
e(f"v_lshl_add_u32 {r('xs', 0, 1)}, {r('r8')}, 10, {r('ta')}")
e(f"v_xor_b32 {r('tb')}, 64, {r('xs', 0, 1)}")
e(f"v_add_u32 {r('xs', 1, 1)}, 7168, {r('tb')}")
e(f"v_add_u32 {r('xs', 2, 1)}, {2 * 7168}, {r('xs', 0, 1)}")
e(f"v_add_u32 {r('xs', 3, 1)}, {3 * 7168}, {r('tb')}")
g.wait(lg=0)
e(f"s_mov_b64 {r('sX',0,2)}, {ptr(0)}")
e(f"s_mov_b64 {r('sW1',0,2)}, {ptr(7)}")


def dmaW1(n):
    items = []
    for c in range(3):
        def it(c=c):
            if c == 0:
                e(f"s_add_u32 m0, {r('w1lds')}, {(n % 4) * 12288}")
                if n:
                    e(f"s_cmp_ge_u32 {r('wo')}, {r('wlim')}")
                    e(f"s_cselect_b32 {T2}, {512 * 2752}, 0")
                    e(f"s_sub_u32 {r('wo')}, {r('wo')}, {T2}")
            e(f"buffer_load_dwordx4 {r('w1s', c, 1)}, {r('sW1')}, {r('wo')} offen offset:{1024 * c} lds", f"W{n}")
            if c == 2:
                e(f"s_add_u32 {r('wo')}, {r('wo')}, {64 * 2752}")
        items.append(It(it, (2, 1.2, 1.5)[c]))
    return items


def dmaX(ei):
    items = []
    for n in range(4):
        def it(n=n):
            xo = r("so")
            if n == 0:
                e(f"s_add_u32 m0, {r('own')}, {(ei % 3) * 4096}")
                e(f"s_or_b32 {xo}, {r('xk')}, {r('xbase')}")
            pol = XPOL0 if ei < 1 else ""
            e(f"buffer_load_dwordx4 {r('xs', n, 1)}, {r('sX')}, {xo} offen offset:{1024 * n} {pol} lds", f"X{ei}")
            if n == 1:
                e(f"s_add_u32 {r('xk')}, {r('xk')}, 128")
            if n == 2:
                e(f"s_and_b32 {r('xk')}, {r('xk')}, 0x3ff")
        items.append(It(it, (1.8, 1.5, 1.5, 1.2)[n]))
    return items


srd("sWS", 13, WSZ, add=(int(opt.get("wsb", 0)) << 20) or None)
V("sx", 8, at=200); V("sacc", 4); V("u", 4); V("gq", 4); V("stv", 2)
e(f"v_mov_b32 {r('zero')}, 0")
e(f"s_mov_b32 {T0}, {EPOCH}")
e("s_mov_b64 exec, 1")
e(f"buffer_load_dwordx2 {r('pf')}, {r('zero')}, {r('sWS')}, {T0} offen sc1", "ep")
e("s_mov_b64 exec, -1")
e(f"v_lshrrev_b32 {r('ta')}, 5, {r('lane')}")
e(f"v_and_b32 {r('tb')}, 31, {r('lane')}")
e(f"v_lshlrev_b32 {r('tb')}, 4, {r('tb')}")
e(f"v_lshl_add_u32 {r('tb')}, {r('ta')}, 10, {r('tb')}")
e(f"s_lshl_b32 {T2}, {r('T1')}, 4")
e(f"s_add_u32 {T2}, {T2}, {r('q')}")
e(f"s_lshl_b32 {T2}, {T2}, 2")
e(f"s_add_u32 {T2}, {T2}, {r('wave')}")
e(f"s_lshl_b32 {T3}, {T2}, 11")
e(f"buffer_load_dwordx4 {r('sx', 0, 4)}, {r('tb')}, {r('sX')}, {T3} offen", "sx")
e(f"buffer_load_dwordx4 {r('sx', 4, 4)}, {r('tb')}, {r('sX')}, {T3} offen offset:512", "sx")
e(f"s_lshl_b32 {T2}, {T2}, 6")
e(f"s_add_u32 {T2}, {T2}, {STA}")
e(f"v_lshl_add_u32 {r('stw')}, {r('lane')}, 4, {T2}")
run(dmaX(0) + dmaW1(0) + dmaW1(1))
S("sD")
e(f"s_lshl_b32 {T2}, s2, 2")
e(f"s_load_dword {r('sD')}, {ptr(5)}, {T2}")
stamp("p0iss")
g.free("ptr0", "ptr6", "ptr7", "ptr13", "karg", "rot", "ptr5")
S("tag", 2)
if not DBG:
    g.free("ptr12")
e(f"v_lshlrev_b32 {r('tb')}, 4, {r('pc')}")
e(f"v_lshl_add_u32 {r('ta')}, {r('r8')}, 11, {r('tb')}")
KVX = int(opt.get("kvx", 4))
e(f"s_xor_b32 {T4}, {r('tile0')}, {128 * KVX}")
e(f"v_add_u32 {r('k0')}, {T4}, {r('ta')}")
e(f"v_lshl_add_u32 {r('ta')}, {r('r8')}, 10, {r('tb')}")
e(f"v_add_u32 {r('kd', 1, 1)}, {T4}, {r('ta')}")
e(f"v_subrev_u32 {r('kd', 0, 1)}, 8192, {r('kd', 1, 1)}")
e(f"v_lshlrev_b32 {r('l16')}, 4, {r('lane')}")
e(f"s_lshl_b32 {T3}, {r('ns')}, 9")
e(f"s_xor_b32 {T3}, {T3}, {512 * KVX}")
e(f"v_add_u32 {r('sho')}, {T3}, {r('l16')}")
e(f"v_mov_b32 {r('zero')}, 0")
S("wodd"); S("whi"); S("chan"); V("sa"); V("sb"); V("bb", 2, align=1)
e(f"s_and_b32 {r('wodd')}, {r('wave')}, 1")
e(f"s_lshr_b32 {r('whi')}, {r('wave')}, 1")
e(f"s_lshl_b32 {T2}, s2, 1")
e(f"s_add_u32 {r('chan')}, {T2}, {r('whi')}")
e(f"s_lshl_b32 {r('chan')}, {r('chan')}, 12")
e(f"s_add_u32 {plo(4)}, {plo(4)}, {r('chan')}")
e(f"s_addc_u32 {phi(4)}, {phi(4)}, 0")
e(f"s_lshl_b32 {T3}, {r('wodd')}, 11")
e(f"v_add_u32 {r('sa')}, {T3}, {r('l16')}")
e(f"v_subrev_u32 {r('sb')}, 8, {r('sa')}")
S("kim")
e(f"s_lshl_b32 {r('kim')}, {r('wave')}, 12")
e(f"s_add_u32 {r('kim')}, {r('kim')}, {S4}")
srd("sA", 1, 2097152)
srd("sB", 2, 2097152)
g.free("ptr1", "ptr2")
lateA, lateB, lateC = [], [], []
S("L0"); S("L2"); S("L3"); S("L4")
V("kvw"); V("kvr"); V("kvs"); V("kra"); V("sra"); V("bw", 2, align=1)
e(f"v_and_b32 {r('i15')}, 15, {r('lane')}")
e(f"v_lshrrev_b32 {r('h4')}, 4, {r('lane')}")
e(f"v_add_u32 {r('oa')}, {r('own')}, {r('l16')}")
e(f"v_lshlrev_b32 {r('ta')}, 4, {r('pc')}")
e(f"v_lshl_add_u32 {r('ta')}, {r('r8')}, 8, {r('ta')}")
e(f"v_add_u32 {r('kra')}, {r('kim')}, {r('ta')}")
e(f"v_lshl_add_u32 {r('sra')}, {r('pc')}, 6, {r('kim')}")
e(f"v_lshrrev_b32 {r('ta')}, 1, {r('i15')}")
e(f"v_xor_b32 {r('ta')}, {r('ta')}, {r('h4')}")
e(f"v_lshlrev_b32 {r('ta')}, 4, {r('ta')}")
e(f"v_lshl_add_u32 {r('ta')}, {r('i15')}, 7, {r('ta')}")
e(f"v_add_u32 {r('xrd', 0, 1)}, {r('own')}, {r('ta')}")
e(f"v_xor_b32 {r('xrd', 1, 1)}, 64, {r('xrd', 0, 1)}")
e(f"v_lshrrev_b32 {r('ta')}, 2, {r('i15')}")
e(f"v_lshl_add_u32 {r('ta')}, {r('h4')}, 3, {r('ta')}")
e(f"v_mul_u32_u24 {r('ta')}, 192, {r('ta')}")
e(f"v_and_b32 {r('tb')}, 3, {r('lane')}")
e(f"v_lshl_add_u32 {r('ta')}, {r('tb')}, 3, {r('ta')}")
e(f"v_add_u32 {r('ta')}, {WR}, {r('ta')}")
e(f"v_and_b32 {r('tb')}, 1, {r('h4')}")
e(f"v_lshlrev_b32 {r('tb')}, 5, {r('tb')}")
e(f"v_add_u32 {r('tc')}, {r('ta')}, {r('tb')}")
e(f"v_sub_u32 {r('td')}, {r('ta')}, {r('tb')}")
S("bp", 3, align=1)
for jp in range(3):
    e(f"s_add_u32 {T2}, {r('wave')}, {jp}")
    e(f"s_cmp_ge_u32 {T2}, 3")
    e(f"s_cselect_b32 {T3}, 3, 0")
    e(f"s_sub_u32 {r('bp', jp, 1)}, {T2}, {T3}")
    e(f"s_lshl_b32 {T2}, {r('bp', jp, 1)}, 6")
    e(f"v_add_u32 {r('w1r', 2 * jp, 1)}, {T2}, {r('tc')}")
    e(f"v_add_u32 {r('w1r', 2 * jp + 1, 1)}, {T2}, {r('td')}")
e(f"v_mul_u32_u24 {r('ta')}, 1040, {r('pc')}")
e(f"v_lshlrev_b32 {r('tb')}, 2, {r('r8')}")
e(f"v_sub_u32 {r('ta')}, {r('ta')}, {r('tb')}")
e(f"s_lshl_b32 {T2}, {r('wave')}, 5")
e(f"s_sub_u32 {T2}, {KVIMG + 124}, {T2}")
e(f"v_add_u32 {r('kvw')}, {T2}, {r('ta')}")
e(f"s_mul_i32 {T2}, {r('wave')}, 2080")
e(f"s_add_u32 {T2}, {T2}, {KVIMG}")
e(f"v_add_u32 {r('kvr')}, {T2}, {r('l16')}")
e(f"v_mul_u32_u24 {r('ta')}, {KP}, {r('r8')}")
e(f"v_lshl_add_u32 {r('kvs')}, {r('pc')}, 4, {r('ta')}")
e(f"v_mov_b32 {r('ta')}, 0x3f803f80")
for i in range(4):
    e(f"v_accvgpr_write_b32 {r('ones', i, 1)}, {r('ta')}")
e(f"s_mov_b32 {r('hmask')}, 0xffff0000")
S("kvo")
e(f"s_lshl_b32 {T2}, {r('ns')}, 2")
e(f"s_xor_b32 {T2}, {T2}, {4 * KVX}")
e(f"s_add_u32 {T2}, {T2}, {r('wave')}")
e(f"s_mul_i32 {r('f1a')}, {T2}, {G1S}")
e(f"s_lshl_b32 {T3}, {r('tt2')}, {L1S}")
e(f"s_add_u32 {r('f1a')}, {r('f1a')}, {T3}")
e(f"s_add_u32 {r('f1a')}, {r('f1a')}, {F1B}")
e(f"s_mul_i32 {T2}, {T2}, {16 * KP}")
e(f"s_sub_u32 {T3}, 31, {r('tt2')}")
e(f"s_lshl_b32 {T3}, {T3}, 7")
e(f"s_add_u32 {r('kvo')}, {T2}, {T3}")
LATE = lateB
e(f"s_lshl_b32 {T2}, {r('T1')}, 1")
e(f"s_add_u32 {T2}, {T2}, {r('whi')}")
e(f"s_mul_i32 {r('f2a')}, {T2}, {G2S}")
e(f"s_lshl_b32 {T2}, {r('q')}, 1")
e(f"s_add_u32 {T2}, {T2}, {r('wodd')}")
e(f"s_lshl_b32 {T2}, {T2}, {L2S}")
e(f"s_add_u32 {r('f2a')}, {r('f2a')}, {T2}")
e(f"s_add_u32 {r('f2a')}, {r('f2a')}, {F2B}")
e(f"s_lshr_b32 {T2}, {r('chan')}, 18")
e(f"s_lshl_b32 {T2}, {T2}, 1")
e(f"s_add_u32 {T2}, {T2}, {r('wodd')}")
e(f"s_mul_i32 {r('f3a')}, {T2}, {G3S}")
e(f"s_lshr_b32 {T2}, {r('chan')}, 12")
e(f"s_and_b32 {T2}, {T2}, 63")
e(f"s_lshl_b32 {T2}, {T2}, {L3S}")
e(f"s_add_u32 {r('f3a')}, {r('f3a')}, {T2}")
e(f"s_add_u32 {r('f3a')}, {r('f3a')}, {F3B}")
e(f"v_lshlrev_b32 {r('tc')}, 3, {r('lane')}")
e(f"v_add_u32 {r('zt')}, {r('own')}, {r('tc')}")
e(f"s_mul_i32 {T2}, {T1_}, {G1S}")
e(f"s_add_u32 {T2}, {T2}, {F1B}")
e(f"v_lshrrev_b32 {r('pf1o')}, 1, {r('lane')}")
e(f"v_lshl_add_u32 {r('pf1o')}, {r('pf1o')}, {L1S}, {T2}")
e(f"s_lshr_b32 {T2}, {r('tt2')}, 4")
e(f"s_lshl_b32 {T3}, {r('ns')}, 1")
e(f"s_add_u32 {T2}, {T2}, {T3}")
e(f"s_mul_i32 {T2}, {T2}, {G3S}")
e(f"s_add_u32 {T2}, {T2}, {F3B}")
e(f"v_lshl_add_u32 {r('pf3o')}, {r('lane')}, {L3S}, {T2}")
e(f"v_min_u32 {r('pf2o')}, 9, {r('lane')}")
e(f"s_lshl_b32 {T2}, {r('wave')}, 3")
e(f"v_add_u32 {r('pf2o')}, {T2}, {r('pf2o')}")
e(f"v_min_u32 {r('pf2o')}, 31, {r('pf2o')}")
e(f"s_mul_i32 {T2}, {r('tt2')}, {G2S}")
e(f"s_add_u32 {T2}, {T2}, {F2B}")
e(f"v_lshl_add_u32 {r('pf2o')}, {r('pf2o')}, {L2S}, {T2}")
LATE = None
e(f"v_min_u32 {r('ta')}, 47, {r('lane')}")
e(f"v_lshlrev_b32 {r('bw', 0, 1)}, 3, {r('ta')}")
e(f"v_add_u32 {r('bw', 0, 1)}, {B1T}, {r('bw', 0, 1)}")
e(f"s_lshl_b32 {T2}, {r('b0')}, 6")
e(f"v_lshl_add_u32 {r('bb', 0, 1)}, {r('ta')}, 2, {T2}")
e(f"v_min_u32 {r('bb', 0, 1)}, 2748, {r('bb', 0, 1)}")
e(f"v_and_b32 {r('ta')}, 31, {r('lane')}")
e(f"v_lshlrev_b32 {r('bw', 1, 1)}, 3, {r('ta')}")
e(f"v_add_u32 {r('bw', 1, 1)}, {B2T}, {r('bw', 1, 1)}")
e(f"v_lshl_add_u32 {r('bb', 1, 1)}, {r('ta')}, 2, {r('ns128')}")
LATE = lateA
e(f"v_and_b32 {r('ta')}, 6, {r('r8')}")
e(f"v_xor_b32 {r('ta')}, {r('ta')}, {r('pc')}")
e(f"v_lshlrev_b32 {r('ta')}, 4, {r('ta')}")
e(f"v_lshl_add_u32 {r('w2s', 0, 1)}, {r('r8')}, 10, {r('ta')}")
e(f"v_add_u32 {r('w2s', 0, 1)}, {r('ns128')}, {r('w2s', 0, 1)}")
for n in range(1, 4):
    e(f"v_add_u32 {r('w2s', n, 1)}, {7168 * n}, {r('w2s', 0, 1)}")
e(f"v_lshrrev_b32 {r('ta')}, 2, {r('i15')}")
e(f"v_lshl_add_u32 {r('ta')}, {r('h4')}, 2, {r('ta')}")
e(f"v_lshrrev_b32 {r('tb')}, 1, {r('ta')}")
e(f"v_and_b32 {r('tb')}, 3, {r('tb')}")
e(f"v_lshlrev_b32 {r('tb')}, 5, {r('tb')}")
e(f"v_lshl_add_u32 {r('tb')}, {r('ta')}, 7, {r('tb')}")
e(f"v_and_b32 {r('ta')}, 3, {r('lane')}")
e(f"v_lshl_add_u32 {r('tb')}, {r('ta')}, 3, {r('tb')}")
e(f"v_add_u32 {r('w2r', 0, 1)}, {r('own')}, {r('tb')}")
S("w4k")
e(f"s_lshl_b32 {r('w4k')}, {r('wave')}, 12")
e(f"v_add_u32 {r('w2r', 4, 1)}, {r('w4k')}, {r('tb')}")
for nb in range(1, 4):
    e(f"v_xor_b32 {r('w2r', nb, 1)}, {32 * nb}, {r('w2r', 0, 1)}")
    e(f"v_xor_b32 {r('w2r', 4 + nb, 1)}, {32 * nb}, {r('w2r', 4, 1)}")
for p in range(11):
    S(f"kb{p}")
e(f"s_lshr_b32 {T0}, {T1_}, 3")
e(f"s_mul_i32 {T0}, {T0}, 3")
e(f"s_mul_i32 {T2}, {r('ns')}, 11")
e(f"s_lshr_b32 {T2}, {T2}, 3")
e(f"s_add_u32 {T0}, {T0}, {T2}")
e(f"s_cmp_ge_u32 {T0}, 11")
e(f"s_cselect_b32 {T2}, 11, 0")
e(f"s_sub_u32 {T0}, {T0}, {T2}")
e(f"s_mul_i32 {T3}, {r('wave')}, 11")
e(f"s_add_u32 {T0}, {T0}, {T3}")
e(f"s_add_u32 {T3}, {T3}, 11")
for p in range(11):
    e(f"s_lshl_b32 {r(f'kb{p}')}, {T0}, 15")
    if p < 10:
        e(f"s_add_u32 {T0}, {T0}, 1")
        e(f"s_cmp_ge_u32 {T0}, {T3}")
        e(f"s_cselect_b32 {T2}, 11, 0")
        e(f"s_sub_u32 {T0}, {T0}, {T2}")
LATE = None
LATE = lateB
e(f"v_and_b32 {r('ta')}, 3, {r('lane')}")
e(f"v_mul_u32_u24 {r('fa')}, {FP}, {r('ta')}")
e(f"v_lshrrev_b32 {r('tb')}, 2, {r('i15')}")
e(f"v_add_u32 {r('tb')}, {r('tb')}, {r('h4')}")
e(f"v_lshl_add_u32 {r('fa')}, {r('tb')}, 4, {r('fa')}")
e(f"s_lshl_b32 {T4}, {r('wodd')}, 8")
e(f"s_mul_i32 {T2}, {r('whi')}, {4 * FP}")
e(f"s_add_u32 {T3}, {T4}, {T2}")
e(f"v_add_u32 {r('fa')}, {T3}, {r('fa')}")
e(f"v_and_b32 {r('tc')}, 1, {r('lane')}")
e(f"v_mul_u32_u24 {r('ga')}, {GP}, {r('tc')}")
e(f"v_lshrrev_b32 {r('td')}, 1, {r('i15')}")
e(f"v_lshlrev_b32 {r('td')}, 2, {r('td')}")
e(f"v_sub_u32 {r('td')}, {r('h4')}, {r('td')}")
e(f"v_add_u32 {r('td')}, 28, {r('td')}")
e(f"v_lshl_add_u32 {r('ga')}, {r('td')}, 4, {r('ga')}")
e(f"s_mul_i32 {T3}, {r('whi')}, {2 * GP}")
e(f"s_add_u32 {T3}, {T3}, {T4}")
e(f"s_add_u32 {T3}, {T3}, {UB0}")
e(f"v_add_u32 {r('ga')}, {T3}, {r('ga')}")
e(f"s_lshl_b32 {T3}, {r('whi')}, 4")
e(f"s_lshr_b32 {r('sD')}, {r('sD')}, {T3}")
e(f"s_and_b32 {r('sD')}, {r('sD')}, 0xffff")
e(f"s_cmp_eq_u32 {r('wodd')}, 0")
e(f"s_cselect_b32 {r('sD')}, {r('sD')}, 0")
e(f"v_xor_b32 {r('tc')}, 1, {r('tc')}")
e(f"v_lshlrev_b32 {r('tc')}, 4, {r('tc')}")
e(f"v_lshlrev_b32_e64 {r('tc')}, {r('tc')}, {r('sD')}")
e(f"v_cmp_eq_u32 vcc, 3, {r('tb')}")
e(f"v_cndmask_b32 {r('tc')}, 0, {r('tc')}, vcc")
e(f"v_cmp_lt_u32 vcc, 1, {r('ta')}")
e(f"v_cndmask_b32 {r('td')}, 0, {r('tc')}, vcc")
e(f"v_sub_u32 {r('tc')}, {r('tc')}, {r('td')}")
e(f"v_accvgpr_write_b32 {r('fd', 0, 1)}, {r('td')}")
e(f"v_accvgpr_write_b32 {r('fd', 1, 1)}, {r('tc')}")
e(f"v_accvgpr_write_b32 {r('fd', 2, 1)}, 0")
e(f"v_accvgpr_write_b32 {r('fd', 3, 1)}, 0")
e(f"s_add_u32 {T3}, {T2}, 48")
e(f"v_add_u32 {r('kw')}, {T3}, {r('sa')}")
e(f"s_mul_i32 {r('um0')}, {r('wave')}, {GP}")
e(f"s_add_u32 {r('um0')}, {r('um0')}, {UB0}")
e(f"s_lshl_b32 {T3}, {r('wodd')}, 3")
e(f"s_sub_u32 {r('ush')}, 8, {T3}")
e(f"s_add_u32 {T4}, {r('um0')}, 4096")
e(f"v_add_u32 {r('za')}, {T4}, {r('l16')}")
e(f"v_subrev_u32 {r('ta')}, 28, {r('lane')}")
e(f"v_min_u32 {r('ta')}, 5, {r('ta')}")
e(f"v_cmp_lt_u32 vcc, 2, {r('ta')}")
e(f"v_lshlrev_b32 {r('ta')}, 4, {r('ta')}")
e(f"v_add_u32 {r('tb')}, {FP - 48}, {r('ta')}")
e(f"v_cndmask_b32 {r('ta')}, {r('ta')}, {r('tb')}, vcc")
e(f"s_mul_i32 {T3}, {r('wave')}, {2 * FP}")
e(f"v_add_u32 {r('ta')}, {T3}, {r('ta')}")
e(f"v_cmp_lt_u32 vcc, 27, {r('lane')}")
e(f"v_cndmask_b32 {r('za')}, {r('za')}, {r('ta')}, vcc")
e(f"s_xor_b32 {T2}, {r('wave')}, 1")
e(f"s_mul_i32 {T2}, {T2}, 12288")
e(f"s_add_u32 {T2}, {T2}, {XST}")
e(f"v_add_u32 {r('pa')}, {T2}, {r('l16')}")
e(f"v_lshrrev_b32 {r('ta')}, 1, {r('i15')}")
e(f"v_lshlrev_b32 {r('ta')}, 6, {r('ta')}")
e(f"v_and_b32 {r('tb')}, 1, {r('lane')}")
e(f"v_lshl_add_u32 {r('ta')}, {r('tb')}, 3, {r('ta')}")
e(f"v_lshl_add_u32 {r('ta')}, {r('h4')}, 4, {r('ta')}")
e(f"v_add_u32 {r('yw')}, {r('own')}, {r('ta')}")
e(f"s_lshl_b32 {T3}, {r('wodd')}, 11")
e(f"s_lshr_b32 {r('chan')}, {r('chan')}, 12")
e(f"s_mul_i32 {r('chan')}, {r('chan')}, {KP}")
e(f"s_add_u32 {T2}, {r('chan')}, {T3}")
e(f"s_add_u32 {r('yo')}, {T2}, {YT}")
LATE = None
LATE = lateC
e(f"v_lshrrev_b32 {r('zs')}, 1, {r('lane')}")
e(f"v_mul_u32_u24 {r('zs')}, {KP}, {r('zs')}")
e(f"v_and_b32 {r('tb')}, 1, {r('lane')}")
e(f"v_lshl_add_u32 {r('zs')}, {r('tb')}, 4, {r('zs')}")
e(f"s_mul_i32 {T2}, {r('ns')}, {64 * KP}")
e(f"s_lshl_b32 {T3}, {r('tok16')}, 5")
e(f"s_add_u32 {T2}, {T2}, {T3}")
e(f"s_add_u32 {r('zo')}, {T2}, {YT}")
for s in range(4):
    e(f"s_add_u32 {T2}, {r('wave')}, {s + 1}")
    e(f"s_and_b32 {T2}, {T2}, 3")
    e(f"s_mul_i32 {T3}, {T2}, 12288")
    if s < 3:
        if PX + 4096 * s:
            e(f"s_add_u32 {T3}, {T3}, {PX + 4096 * s}")
        e(f"v_lshl_add_u32 {r('pw', s, 1)}, {r('lane')}, 3, {T3}")
    else:
        e(f"s_add_u32 {T3}, {T3}, {PX}")
        e(f"v_lshl_add_u32 {r('psr')}, {r('lane')}, 3, {T3}")
    e(f"s_lshl_b32 {T3}, {r('tt2')}, 2")
    e(f"s_add_u32 {T2}, {T2}, {T3}")
    e(f"s_mul_i32 {T2}, {T2}, 44032")
    e(f"s_add_u32 {T2}, {T2}, {HB + HALT}")
    e(f"v_add_u32 {r('hv', s, 1)}, {T2}, {r('l16')}")
e(f"v_lshrrev_b32 {r('ta')}, 1, {r('i15')}")
e(f"v_lshrrev_b32 {r('tb')}, 1, {r('h4')}")
e(f"v_xor_b32 {r('ta')}, {r('ta')}, {r('tb')}")
e(f"v_lshlrev_b32 {r('ta')}, 4, {r('ta')}")
e(f"v_lshl_add_u32 {r('ta')}, {r('i15')}, 7, {r('ta')}")
e(f"v_and_b32 {r('tc')}, 1, {r('h4')}")
e(f"v_lshl_add_u32 {r('ta')}, {r('tc')}, 3, {r('ta')}")
e(f"v_add_u32 {r('ea', 0, 1)}, {r('own')}, {r('ta')}")
for nb in range(1, 4):
    e(f"v_xor_b32 {r('ea', nb, 1)}, {32 * nb}, {r('ea', 0, 1)}")
e(f"s_lshl_b32 {T2}, {r('tok16')}, 9")
e(f"s_add_u32 {T2}, {T2}, {STB}")
e(f"v_lshl_add_u32 {r('svr')}, {r('i15')}, 5, {T2}")
LATE = None
LATE = lateA
e(f"v_lshrrev_b32 {r('tb')}, 1, {r('h4')}")
e(f"s_lshr_b32 {T2}, {r('xbase')}, 5")
e(f"s_add_u32 {T2}, {T2}, {STA}")
e(f"v_lshl_add_u32 {r('sgo')}, {r('i15')}, 5, {T2}")
e(f"v_lshl_add_u32 {r('sgo')}, {r('tb')}, 9, {r('sgo')}")
LATE = None
S("m1", 2)
e(f"s_mov_b32 {r('m1', 0, 1)}, 0xaaaaaaaa"); e(f"s_mov_b32 {r('m1', 1, 1)}, 0xaaaaaaaa")
LATE = lateA
e(f"v_lshlrev_b32 {r('ta')}, 4, {r('h4')}")
e(f"v_add_u32 {r('csr0')}, {CSX}, {r('ta')}")
for jp in range(3):
    g.names[f"ho{jp}"] = ("s", g.names["bp"][1] + jp, 1)
e(f"s_lshl_b32 {T2}, {r('T1')}, 2")
e(f"s_add_u32 {T2}, {T2}, {r('wave')}")
e(f"s_mul_i32 {T2}, {T2}, 86")
e(f"s_add_u32 {T2}, {T2}, {r('b0')}")
for jp in range(3):
    e(f"s_lshl_b32 {T3}, {r('bp', jp, 1)}, 7")
    e(f"v_add_u32 {r('ctr', jp, 1)}, {T3}, {r('csr0')}")
    e(f"s_add_u32 {T3}, {T2}, {r('bp', jp, 1)}")
    e(f"s_lshl_b32 {T3}, {T3}, 10")
    e(f"s_add_u32 {T3}, {T3}, {HB}")
    e(f"s_cmp_lt_u32 {r('bp', jp, 1)}, {r('nown')}")
    e(f"s_cselect_b32 {r(f'ho{jp}')}, {T3}, 0x7f000000")
for i in range(4):
    e(f"v_accvgpr_write_b32 {r('zz', i, 1)}, 0")
LATE = None
if TOUCH:
    V("tB", 2)
    wlo, whi_ = r("sWS", 0, 1), r("sWS", 1, 1)
    ent = [(r("sA", 0, 1), r("sA", 1, 1), r("tile0")), (r("sB", 0, 1), r("sB", 1, 1), r("tile0")), (plo(3), phi(3), None),
           (plo(4), phi(4), None), (plo(8), phi(8), None), (plo(10), phi(10), None),
           (plo(9), phi(9), None), (plo(9), phi(9), 1 << 20), (plo(11), phi(11), r("tile0")),
           (wlo, whi_, EPOCH + 256), (wlo, whi_, FL + 4096), (wlo, whi_, r("kvo")),
           (wlo, whi_, r("chan")), (wlo, whi_, HB + 64), (wlo, whi_, r("yo")), (wlo, whi_, r("zo")),
           (wlo, whi_, HB + 0x100000), (wlo, whi_, HB + 0x200000), (wlo, whi_, HB + 0x300000), (wlo, whi_, HB + 0x400000),
           (wlo, whi_, HB + 0x500000), (wlo, whi_, HB), (wlo, whi_, YT + 0x100000), (wlo, whi_, 0x100000)]
    e(f"v_mov_b32 {r('tB', 0, 1)}, {wlo}")
    e(f"v_mov_b32 {r('tB', 1, 1)}, {whi_}")
    for k, (lo, hi, off) in enumerate(ent):
        if off is None:
            e(f"v_writelane_b32 {r('tB', 0, 1)}, {lo}, {k}")
            e(f"v_writelane_b32 {r('tB', 1, 1)}, {hi}, {k}")
        else:
            e(f"s_add_u32 {T2}, {lo}, {off}")
            e(f"s_addc_u32 {T3}, {hi}, 0")
            e(f"v_writelane_b32 {r('tB', 0, 1)}, {T2}, {k}")
            e(f"v_writelane_b32 {r('tB', 1, 1)}, {T3}, {k}")
    e(f"s_mul_i32 {T2}, {r('wave')}, 6")
    e(f"s_lshl_b32 exec_lo, 63, {T2}")
    e("s_mov_b32 exec_hi, 0")
    if TOUCH == 2:
        e("s_mov_b32 exec_lo, 0xffffff")
    e(f"global_load_dword {r('pre')}, {r('tB')}, off sc1", "touch")
    e("s_mov_b64 exec, -1")
    g.free("tB")
stamp("setup")
g.free("tid")


def late_items(lst):
    ren = {"s3": r("L0"), "s5": r("L2"), "s6": r("L3"), "s7": r("L4")}
    txt = [re.sub(r"\bs[3567]\b", lambda m: ren[m.group(0)], x) for x in lst]
    items, grp = [], []
    for x in txt:
        op = x.split()[0]
        if grp or op.startswith(("s_cmp", "v_cmp")):
            grp.append(x)
            if op.startswith(("s_cselect", "v_cndmask")):
                items.append(grp); grp = []
        else:
            items.append([x])
    assert not grp
    cost = lambda gx: sum(0.3 if y.startswith("s_") else 1 for y in gx)
    return [It(lambda gx=gx: [e(y) for y in gx], cost(gx)) for gx in items]


def unpack(dst, doff, src, soff, ndw):
    it = []
    for d in range(ndw):
        it.append(E(f"v_lshlrev_b32 {r(dst, doff + 2 * d, 1)}, 16, {r(src, soff + d, 1)}"))
        it.append(E(f"v_and_b32 {r(dst, doff + 2 * d + 1, 1)}, {r('hmask')}, {r(src, soff + d, 1)}"))
    return it


run(dmaX(1))
LATEAB = int(opt.get("lateab", 1))
if LATEAB < 2:
    run(late_items(lateA)); lateA = []
if LATEAB < 1:
    g.wait(lg=0)
    run(late_items(lateB)); lateB = []
AC("xf", 64, at=64)
AC("wa", 48, at=128)


def xf(K, tb):
    return r("xf", ((K & 7) * 2 + tb) * 4, 4)


def rdX(ei):
    return [W(vm=f"X{ei}")] + [E(f"ds_read_b128 {xf(ei * 2 + k, tb)}, {r('xrd', k, 1)} offset:{(ei % 3) * 4096 + tb * 2048}", f"rx{ei}")
                               for k in range(2) for tb in range(2)]


def wbase(K):
    return ((K >> 1) % 4) * 12288 + (K & 1) * 6144


def rdW(K):
    return [E(f"ds_read_b64_tr_b16 {r('wa', (K & 1) * 24 + fb * 4 + 2 * hf, 2)}, {r('w1r', fb, 1)} offset:{wbase(K) + hf * 768 + (fb & 1) * 32}", f"rw{K}_{fb}")
            for fb in range(6) for hf in range(2)]


g.wait(vm="sx")
e(f"s_mov_b32 {T2}, 0x3f803f80")
for d in range(8):
    e(f"v_dot2_f32_bf16 {r('sacc', d & 1, 1)}, {r('sx', d, 1)}, {T2}, {'0' if d < 2 else r('sacc', d & 1, 1)}")
    e(f"v_dot2_f32_bf16 {r('sacc', 2 + (d & 1), 1)}, {r('sx', d, 1)}, {r('sx', d, 1)}, {'0' if d < 2 else r('sacc', 2 + (d & 1), 1)}")
e(f"v_readfirstlane_b32 {r('tag', 0, 1)}, {r('pf', 0, 1)}")
e(f"v_readfirstlane_b32 {r('tag', 1, 1)}, {r('pf', 1, 1)}")
g.free("sx")
run(rdX(0))
e(f"s_mul_i32 {r('tag', 0, 1)}, {r('tag', 0, 1)}, 0x9E3779B1")
e(f"s_mul_i32 {r('tag', 1, 1)}, {r('tag', 1, 1)}, 0x85EBCA6D")
e(f"s_add_u32 {r('tag', 0, 1)}, {r('tag', 0, 1)}, 0x7F4A7C15")
e(f"s_add_u32 {r('tag', 1, 1)}, {r('tag', 1, 1)}, 0x165667B1")
e(f"v_add_f32 {r('sacc', 0, 1)}, {r('sacc', 0, 1)}, {r('sacc', 1, 1)}")
e(f"v_add_f32 {r('sacc', 2, 1)}, {r('sacc', 2, 1)}, {r('sacc', 3, 1)}")
for i in range(2):
    e(f"v_mov_b32 {r('vtag', i, 1)}, {r('tag', i, 1)}")
    e(f"v_mov_b32 {r('vtag', 2 + i, 1)}, {r('tag', i, 1)}")
    e(f"v_mov_b32 {r('gq', 2 + i, 1)}, {r('tag', i, 1)}")
g.wait(vm="W1" if int(opt.get("nob1", 0)) else "W0")
e("s_barrier")
run(rdW(0))
stamp("x0")

V("acc", 48); AC("cs", 8, at=192)
V("big", 100)
B0 = g.names["big"][1]


def alias(name, off, n):
    g.names[name] = ("v", B0 + off, n)


alias("wf", 0, 32); alias("kf", 32, 40); alias("vr", 64, 8); alias("kr", 72, 20); alias("shr", 48, 16)
alias("vf", 72, 16)
small = [E(f"global_load_dword {r('bb', 0, 1)}, {r('bb', 0, 1)}, {ptr(8)}", "bb"),
         E(f"global_load_dword {r('bb', 1, 1)}, {r('bb', 1, 1)}, {ptr(10)}", "bb"),
         ]
alias("vr", 92, 8)
kvload = [It(lambda: (e(f"s_add_u32 m0, {r('kim')}, 1024"), e(f"s_mov_b32 {T0}, 7168"),
                      e(f"buffer_load_dwordx4 {r('kd', 1, 1)}, {r('sA')}, 0 offen {KPOL} lds", "k")), 2),
          E(f"buffer_load_dwordx4 {r('kd', 1, 1)}, {r('sA')}, {T0} offen offset:1024 {KPOL} lds", "k"),
          E(f"buffer_load_dwordx4 {r('vr', 0, 4)}, {r('k0')}, {r('sB')}, 0 offen {KVPOL}", "k"),
          E(f"buffer_load_dwordx4 {r('vr', 4, 4)}, {r('k0')}, {r('sB')}, 0 offen offset:1024 {KVPOL}", "k"),
          It(lambda: (e(f"s_mov_b32 m0, {r('kim')}"), e("s_mov_b32 exec_lo, 0"), e("s_mov_b32 exec_hi, 0xffffff00"),
                      e(f"buffer_load_dwordx4 {r('kd', 0, 1)}, {r('sA')}, 0 offen lds", "k"), e("s_mov_b64 exec, -1")), 2),
          It(lambda: (e(f"s_add_u32 m0, {r('kim')}, 3072"), e(f"s_mov_b64 {r('sA', 0, 2)}, {ptr(3)}"), e(f"s_mov_b32 {r('sA', 2, 1)}, 4096"),
                      e("s_mov_b32 exec_hi, 0"), e(f"buffer_load_dwordx4 {r('sho')}, {r('sA')}, 0 offen lds", "k"), e("s_mov_b64 exec, -1"),
                      e(f"s_mov_b64 {r('sA', 0, 2)}, {ptr(4)}"), e(f"s_mov_b64 {r('sB', 0, 2)}, {ptr(9)}"), e(f"s_mov_b32 {r('sB', 2, 1)}, 1409024")), 3)]
W2T = int(opt.get("w2t", 2))
w2touch = []
if W2T:
    w2touch = []
    (kvload if W2T == 1 else w2touch).append(It(lambda: (e(f"s_lshl_b32 {T0}, s2, 2"), e(f"s_add_u32 {T0}, {T0}, {r('wave')}"), e(f"s_mul_i32 {T0}, {T0}, {11 * 128}"),
                              e(f"v_lshlrev_b32 {r('pre')}, 3, {r('l16')}"), e("s_mov_b64 exec, 0x7ff"),
                              e(f"buffer_load_dword {r('pre')}, {r('pre')}, {r('sB')}, {T0} offen", "w2t"), e("s_mov_b64 exec, -1")), 3))
kvrd = [W(vm="k")]
kvrd += [E(f"ds_read_b128 {r('shr', 4 * i, 4)}, {r('sra')} offset:{3072 + 16 * i}", "rs") for i in range(4)]
kvrd += [E(f"ds_read_b128 {r('kr', 4 * k, 4)}, {r('kra')} offset:{640 + 128 * k}", "rk") for k in range(5)]
kvu = [W(lg="rs")]
for c in range(8):
    for j in range(4):
        src = r("shr", 2 * c + (j >> 1), 1)
        if j & 1:
            kvu.append(E(f"v_and_b32 {r('wf', j * 8 + c, 1)}, {r('hmask')}, {src}"))
        else:
            kvu.append(E(f"v_lshlrev_b32 {r('wf', j * 8 + c, 1)}, 16, {src}"))
kvu.append(W(lg="rk"))
kvu += unpack("kf", 0, "kr", 0, 20)
KS = lambda t, cp: r("kr", t * 8 + 2 * cp, 2)
kvc = []
for t in range(2):
    for cp in range(4):
        kvc.append(E(f"v_pk_mul_f32 {KS(t, cp)}, {r('kf', t * 8 + 2 * cp, 2)}, {r('wf', 24 + 2 * cp, 2)}"))
    for j in (2, 1, 0):
        for cp in range(4):
            kvc.append(E(f"v_pk_fma_f32 {KS(t, cp)}, {r('kf', (t + 3 - j) * 8 + 2 * cp, 2)}, {r('wf', j * 8 + 2 * cp, 2)}, {KS(t, cp)}"))
kvc += unpack("wf", 0, "vr", 0, 8)
for t in range(2):
    for cp in range(4):
        kvc.append(E(f"v_pk_mul_f32 {KS(t, cp)}, {KS(t, cp)}, {r('wf', t * 8 + 2 * cp, 2)}"))
alias("kvp", 92, 8)
for c in range(8):
    kvc.append(E(f"v_cvt_pk_bf16_f32 {r('kvp', c, 1)}, {r('kr', 8 + c, 1)}, {r('kr', c, 1)}"))
    kvc.append(E(f"ds_write_b32 {r('kvw')}, {r('kvp', c, 1)} offset:{128 * c}", "kvw"))
kvst = [E(f"ds_read_b128 {r('kvp', 0, 4)}, {r('kvr')}", "kvr0"), E(f"ds_read_b128 {r('kvp', 4, 4)}, {r('kvr')} offset:1040", "kvr1")]
kvst2 = [It(lambda: (g.wait(lg="kvr0"), e(f"buffer_store_dwordx4 {r('kvp', 0, 4)}, {r('kvs')}, {r('sWS')}, {r('kvo')} offen sc1", "kvst"),
                     e(f"s_add_u32 {r('kvo')}, {r('kvo')}, {8 * KP}")), 2),
         It(lambda: (g.wait(lg="kvr1"), e(f"buffer_store_dwordx4 {r('kvp', 4, 4)}, {r('kvs')}, {r('sWS')}, {r('kvo')} offen sc1", "kvst")), 2)]
alias("skr", 0, 12); alias("ke", 12, 24); alias("bt", 36, 4); alias("b1f", 44, 24); alias("csf", 68, 24)
AC("ska", 12, at=228)
skload = [It(lambda: (e("s_mov_b64 exec, 1"), e(f"buffer_load_dwordx2 {r('ska', 0, 2)}, {r('sb')}, {r('sA')}, 0 offen", "sk"), e("s_mov_b64 exec, -1")), 2),
          E(f"buffer_load_dwordx4 {r('ska', 2, 4)}, {r('sa')}, {r('sA')}, 0 offen {KVPOL}", "sk"),
          E(f"buffer_load_dwordx4 {r('ska', 8, 4)}, {r('sa')}, {r('sA')}, 0 offen offset:1024 {KVPOL}", "sk")]
kcopy = [W(vm="sk")] + [E(f"v_accvgpr_read_b32 {r('skr', k, 1)}, {r('ska', k, 1)}") for k in (4, 5, 0, 1, 10, 11, 2, 3, 8, 9)]
for k in range(2):
    kcopy.append(E(f"v_mov_b32_dpp {r('skr', 6 + k, 1)}, {r('skr', 4 + k, 1)} wave_ror:1 row_mask:0xf bank_mask:0xf"))
for k in range(2):
    kcopy.append(E(f"v_mov_b32_dpp {r('skr', k, 1)}, {r('skr', 4 + k, 1)} wave_shr:1 row_mask:0xf bank_mask:0xf"))
for k in range(2):
    kcopy.append(E(f"v_mov_b32_dpp {r('skr', 6 + k, 1)}, {r('skr', 10 + k, 1)} wave_shr:1 row_mask:0xf bank_mask:0xf"))
for n in range(2):
    R = lambda k, c=1, n=n: r("skr", 6 * n + k, c)
    KE = lambda k, c=1, n=n: r("ke", 12 * n + k, c)
    kcopy.append(E(f"ds_write_b128 {r('kw')}, {R(2, 4)} offset:{3 * FP + 1024 * n}", "kc", 2))
    for k in range(4):
        kcopy.append(E(f"v_alignbit_b32 {KE(k)}, {R(k + 1)}, {R(k)}, 16"))
    kcopy.append(E(f"ds_write_b128 {r('kw')}, {KE(0, 4)} offset:{1024 * n}", "kc", 2))
    for k in range(4):
        kcopy.append(E(f"v_alignbit_b32 {KE(4 + k)}, {R(k + 2)}, {R(k + 1)}, 16"))
    kcopy.append(E(f"ds_write_b128 {r('kw')}, {KE(4, 4)} offset:{2 * FP + 1024 * n}", "kc", 2))
    for k in range(4):
        kcopy.append(E(f"v_mov_b32 {KE(8 + k)}, {R(1 + k)}"))
    kcopy.append(E(f"ds_write_b128 {r('kw')}, {KE(8, 4)} offset:{FP + 1024 * n}", "kc", 2))


def mfma(d, a, b, first):
    e(f"v_mfma_f32_16x16x32_bf16 {d}, {a}, {b}, {'0' if first else d}")


def M(d, a, b, first, wait=None):
    def fn():
        if wait:
            w_ = dict(wait)
            l2 = w_.pop("lg2", None)
            if l2 and max(i for i, t in enumerate(g.lg) if t == l2) > max(i for i, t in enumerate(g.lg) if t == w_["lg"]):
                g._cnt(g.lg, w_["lg"])
                w_["lg"] = l2
            elif l2:
                g._cnt(g.lg, l2)
            g.wait(**w_)
        mfma(d, a, b, first)
    return It(fn, 0.3 if wait else 0)


def mainM(K):
    return [M(r("acc", (fb * 2 + tb) * 4, 4), r("wa", (K & 1) * 24 + fb * 4, 4), xf(K, tb), K == 0,
              dict(lg=f"rw{K}_{fb}", lg2=(None if (K & 1 or fb) else f"rx{K >> 1}")) if tb == 0 else None) for fb in range(6) for tb in range(2)]


def statM(K):
    items = []
    for tb in range(2):
        items.append(M(r("rs", tb * 4, 4), r("ones"), xf(K, tb), K == 0, dict(lg=f"rx{K >> 1}") if (tb == 0 and not K & 1) else None))
        items.append(M(r("gr", tb * 4, 4), xf(K, tb), xf(K, tb), K == 0))
    return items


def csM(K):
    return [M(r("cs", c * 4, 4), r("wa", (K & 1) * 24 + c * 4, 4), r("ones"), K == 0, dict(lg=f"rw{K}_{c}")) for c in range(2)]


FULL = int(opt.get("full", 1))


def flagtxt(addr, ls):
    if FULL and ls >= 4:
        return [f"s_mov_b64 exec, {(1 << (1 << (ls - 4))) - 1}",
                f"buffer_store_dwordx4 {r('vtag')}, {r('l16')}, {r('sWS')}, {addr} offen sc1", "s_mov_b64 exec, -1"]
    return ["s_mov_b64 exec, 1", f"buffer_store_dwordx2 {r('vtag', 0, 2)}, {r('zero')}, {r('sWS')}, {addr} offen sc1", "s_mov_b64 exec, -1"]


def setflag(addr, tagname):
    t_ = flagtxt(addr, {"f1": L1S, "f2": L2S, "f3": L3S}[tagname])
    e(t_[0]); e(t_[1], tagname); e(t_[2])


def pollissue(voff, tagname):
    e(f"buffer_load_dwordx2 {r('pf')}, {voff}, {r('sWS')}, 0 offen sc1", tagname)


def pollcheck(voff, tagname, before_spin=None):
    g.wait(vm=tagname)
    e(f"v_cmp_ne_u64 vcc, {r('tag')}, {r('pf')}")
    e("s_cmp_eq_u64 vcc, 0")
    e(f"s_cbranch_scc0 L_{tagname}")
    g.label(f"L_{tagname}_ok")

    def tail():
        g.label(f"L_{tagname}")
        if before_spin:
            for x in before_spin:
                e(x)
        if SPINMAX:
            e(f"s_mov_b32 {T4}, 0")
        g.label(f"L_{tagname}_l")
        e(f"s_sleep {int(opt.get('sleep', 1))}")
        e(f"buffer_load_dwordx2 {pfr}, {voff}, {sws}, 0 offen sc1")
        e("s_waitcnt vmcnt(0)")
        e(f"v_cmp_ne_u64 vcc, {tagr}, {pfr}")
        if SPINMAX:
            e(f"s_add_u32 {T4}, {T4}, 1")
            e(f"s_cmp_gt_u32 {T4}, {SPINMAX}")
            e(f"s_cbranch_scc1 L_{tagname}_ok")
        e("s_cmp_eq_u64 vcc, 0")
        e(f"s_cbranch_scc0 L_{tagname}_l")
        e(f"s_branch L_{tagname}_ok")
    pfr, sws, tagr = r("pf"), r("sWS"), r("tag")
    tails.append(tail)


tails = []
btab = [W(vm="bb")] + unpack("bt", 0, "bb", 0, 2) + [E(f"ds_write_b64 {r('bw', 0, 1)}, {r('bt', 0, 2)}", "btw"), E(f"ds_write_b64 {r('bw', 1, 1)}, {r('bt', 2, 2)}", "btw")]

W2SLOT = {0: ("x", S4), 1: ("o", 8192), 2: ("o", 0), 3: ("o", 4096), 4: ("x", S3),
          5: ("x", S4), 6: ("o", 8192), 7: ("o", 0), 8: ("o", 4096), 9: ("x", S3), 10: ("x", S4)}
W2PREV = {p: p - 5 for p in range(5, 11)}
VMODE = opt.get("vmode", "E")
if VMODE == "F":
    W2SLOT = {0: ("x", 0), 1: ("x", 16384), 2: ("x", S4), 3: ("o", 8192), 4: ("o", 0), 5: ("o", 4096), 6: ("x", S3),
              7: ("x", S4), 8: ("o", 8192), 9: ("o", 0), 10: ("o", 8192)}
    W2PREV = {7: 2, 8: 3, 9: 4, 10: 8}


def dmaW2(p):
    items = []
    kind, off = W2SLOT[p]
    for n in range(4):
        def it(n=n):
            if n == 0:
                e(f"s_add_u32 m0, {r('own') if kind == 'o' else r('w4k')}, {off}")
                if p in W2PREV:
                    g.wait(lg=f"rv{W2PREV[p]}")
            e(f"buffer_load_dwordx4 {r('w2s', n, 1)}, {r('sB')}, {r(f'kb{p}')} offen offset:{1024 * n} lds", f"V{p}")
        items.append(It(it, 1.2 if n else 1.8))
    return items


def w2f(p, nb, off=0, n=4):
    k = (p * 4 + nb) * 4 + off
    return f"a[{k}:{k + n - 1}]"


def rdW2(p):
    kind, off = W2SLOT[p]
    items = [W(vm=f"V{p}")]
    for nb in range(4):
        for hf in range(2):
            items.append(E(f"ds_read_b64_tr_b16 {w2f(p, nb, 2 * hf, 2)}, {r('w2r', nb + (0 if kind == 'o' else 4), 1)} offset:{off + hf * 2048}", f"rv{p}"))
    return items


alias("sac", 96, 4); alias("sgr", 92, 4)
EPS = f2u(1e-5)


def rb(dst, src):
    return [E(f"v_cvt_pk_bf16_f32 {dst}, {src}, {src}"), E(f"v_and_b32 {dst}, {r('hmask')}, {dst}")]


s1, s1b, s2, s2b = (r("sacc", k, 1) for k in range(4))
st = []
for sh in (8, 4, 2, 1):
    st.append(E(f"v_add_f32_dpp {s1}, {s1}, {s1} row_ror:{sh} row_mask:0xf bank_mask:0xf"))
    st.append(E(f"v_add_f32_dpp {s2}, {s2}, {s2} row_ror:{sh} row_mask:0xf bank_mask:0xf"))
st.append(E(f"v_mov_b32 {s1b}, {s1}")); st.append(E(f"v_mov_b32 {s2b}, {s2}"))
st.append(E(f"v_permlane16_swap_b32 {s1}, {s1b}")); st.append(E(f"v_permlane16_swap_b32 {s2}, {s2b}"))
mu, var, t, w = (r("u", k, 1) for k in range(4))
mb, rsd = r("stv", 0, 1), r("stv", 1, 1)
st.append(E(f"v_add_f32 {mu}, {s1}, {s1b}")); st.append(E(f"v_add_f32 {var}, {s2}, {s2b}"))
st.append(E(f"v_mul_f32 {mu}, 0x{f2u(1 / 512):08x}, {mu}"))
st.append(E(f"v_mul_f32 {var}, 0x{f2u(1 / 512):08x}, {var}"))
st += rb(mb, mu)
st.append(E(f"v_fma_f32 {var}, -{mu}, {mu}, {var}"))
st.append(E(f"v_max_f32 {var}, 0, {var}"))
st += rb(t, var)
st.append(E(f"v_add_f32 {t}, 0x{EPS:08x}, {t}"))
st += rb(t, t)
st.append(E(f"v_sqrt_f32 {t}, {t}", cost=2))
st.append(E(f"v_sub_f32 {mu}, {mu}, {mb}"))
st += rb(t, t)
st.append(E(f"v_rcp_f32 {rsd}, {t}", cost=2))
st.append(E(f"v_mul_f32 {mu}, {mu}, {rsd}"))
st.append(E(f"v_mul_f32 {var}, {var}, {rsd}"))
st.append(E(f"v_mul_f32 {var}, {var}, {rsd}"))
st += rb(t, var)
st.append(E(f"v_add_f32 {t}, 0x{EPS:08x}, {t}"))
st += rb(t, t)
st.append(E(f"v_sqrt_f32 {t}, {t}", cost=2))
st += rb(mu, mu)
st += rb(t, t)
st.append(E(f"v_rcp_f32 {w}, {t}", cost=2))
st.append(E(f"v_fma_f32 {mu}, {mb}, {rsd}, {mu}"))
st.append(E(f"v_mul_f32 {t}, {rsd}, {w}"))
st.append(E(f"v_mul_f32 {mu}, {mu}, {w}"))
st.append(E(f"v_cndmask_b32 {r('gq', 0, 1)}, {t}, {mb}, {r('m1')}"))
st.append(E(f"v_cndmask_b32 {r('gq', 1, 1)}, {mu}, {rsd}, {r('m1')}"))
st.append(E(f"v_mov_b32 {s1}, {r('gq', 0, 1)}")); st.append(E(f"v_mov_b32 {s2}, {r('gq', 1, 1)}"))
st.append(E(f"v_permlane32_swap_b32 {r('gq', 0, 1)}, {s1}")); st.append(E(f"v_permlane32_swap_b32 {r('gq', 1, 1)}, {s2}"))
st.append(It(lambda: (e("s_mov_b64 exec, 12"), e(f"v_mov_b32 {r('gq', 0, 1)}, {s1}"), e(f"v_mov_b32 {r('gq', 1, 1)}, {s2}"), e("s_mov_b64 exec, -1")), 2.6))
ststore = [It(lambda: (e("s_mov_b64 exec, 15"),
                       e(f"buffer_store_dwordx4 {r('gq')}, {r('stw')}, {r('sWS')}, 0 offen sc1", "sts"), e("s_mov_b64 exec, -1")), 2)]


def gcheck(name, voff, tagname):
    g.wait(vm=tagname)
    e(f"v_cmp_ne_u64 vcc, {r('tag')}, {r(name, 2, 2)}")
    e("s_cmp_eq_u64 vcc, 0")
    e(f"s_cbranch_scc0 L_{tagname}")
    g.label(f"L_{tagname}_ok")
    q4, q2, sws, tagr = r(name, 0, 4), r(name, 2, 2), r("sWS"), r("tag")

    def tail():
        g.label(f"L_{tagname}")
        if SPINMAX:
            e(f"s_mov_b32 {T4}, 0")
        g.label(f"L_{tagname}_l")
        e("s_sleep 2")
        e(f"buffer_load_dwordx4 {q4}, {voff}, {sws}, 0 offen sc1")
        e("s_waitcnt vmcnt(0)")
        e(f"v_cmp_ne_u64 vcc, {tagr}, {q2}")
        if SPINMAX:
            e(f"s_add_u32 {T4}, {T4}, 1")
            e(f"s_cmp_gt_u32 {T4}, {SPINMAX}")
            e(f"s_cbranch_scc1 L_{tagname}_ok")
        e("s_cmp_eq_u64 vcc, 0")
        e(f"s_cbranch_scc0 L_{tagname}_l")
        e(f"s_branch L_{tagname}_ok")
    tails.append(tail)


sgld = [E(f"buffer_load_dwordx4 {r('sgr')}, {r('sgo')}, {r('sWS')}, 0 offen sc1", "sg")]
sguse = [It(lambda: gcheck("sgr", r("sgo"), "sg"), 2)]
sguse += [E(f"v_mov_b32 {r('sac', k, 1)}, {r('sgr', k & 1, 1)}") for k in range(4)]
sguse += [E(f"v_permlane32_swap_b32 {r('sac', 0, 1)}, {r('sac', 2, 1)}"), E(f"v_permlane32_swap_b32 {r('sac', 1, 1)}, {r('sac', 3, 1)}")]

main = []
at = {}


def add(items, name=None):
    if name:
        at[name] = len(main)
        if name.startswith("K") and SSET == "k":
            f0 = items[0].fn
            items = [It(lambda: (stamp(name, "k"), f0()), items[0].cost)] + items[1:]
    main.extend(items)


NOB1 = int(opt.get("nob1", 0))
KVK = int(opt.get("kvk", 5))
BARS = {1: 1, 3: 3, 7: 5, 11: 7} if KVK == 3 else {1: 1, 3: 2, 5: 4, 9: 6, 13: 7}
if NOB1:
    del BARS[1]


def bar(K):
    def fn():
        if K == KVK:
            g.wait(vm=f"W{BARS[K]}", lg="kvw")
        elif K == 7 or (KVK == 5 and K in (3, 9)):
            g.wait(vm=f"W{BARS[K]}", lg=f"rw{K}_5")
        elif K < 15:
            g.wait(vm=f"W{BARS[K]}")
        else:
            g.wait(lg=0)
        e("s_barrier")
        if K in ((3, 7, 11, 15) if KVK == 3 else (5, 9, 13, 15)):
            stamp(f"c{K >> 2}")
    return [It(fn, 0)]


STAT = {K: [] for K in range(13)}

for K in range(13):
    if K == KVK:
        add([It(lambda: (stamp("kvb"), run(weave(kvu[KVU:] + kvc, (kvdma, 4, len(kvu) - KVU + len(kvc) - 4))), stamp("kv")), 0)], "KV")
    if K in BARS:
        add(bar(K), f"B{K}")
    sm = sum((statM(k) for k in STAT[K]), [])
    add(sm + mainM(K), f"K{K}")
    at[f"m{K}"] = at[f"K{K}"] + len(sm)
    add(csM(K))
if 13 in BARS:
    add(bar(13), "B13")
add(mainM(13) + csM(13), "K13")
m14 = mainM(14)
add(m14[:2] + csM(14) + m14[2:8], "K14"); add(csM(15), "cs15"); add(m14[8:])
at["m14"] = at["K14"]; at["m13"] = at["K13"]
add(bar(15), "C3")
add(mainM(15), "K15")
at["end"] = len(main)
if SSET == "fine":
    F0 = int(opt.get("f0", 0))
    for k_ in range(F0, min(F0 + 120, len(main)), 4):
        main[k_] = It(lambda f=main[k_].fn, k_=k_: (stamp(f"m{k_}", "fine"), f()), main[k_].cost)
A = lambda n: at[n]
QR = []
for K in range(1, 15):
    lo = A(f"K{K - 1}") - (1 if (K - 1) in BARS else 0)
    hi = A(f"K{K}") - 2 - (1 if K in BARS else 0) - (1 if K == KVK else 0) - (3 if (K == 7 and KVK == 3) or (KVK == 5 and K in (3, 9)) else 0)
    QR += win(rdW(K), lo, hi)
QR += win(rdW(15), A("K14"), A("C3") - 5)
XRD = {1: 1, 2: 3, 3: 5, 4: 7, 5: 9, 6: 11, 7: 13}
QX = []
for ei in range(1, 8):
    k = XRD[ei]
    QX += win(rdX(ei), A(f"K{k}"), A(f"K{k}") + 5)


def aft(tag, items):
    f0 = items[0]
    return [It(lambda: (g.wait(lg=tag), f0()), f0.cost + 1)] + items[1:]


kc_txt = []
kcv = [it for it in kcopy if it.cost != 2]
kcw = [it for it in kcopy if it.cost == 2]
f1set = [None] * 4 + [It(lambda: (g.wait(vm="kvst"), setflag(r("f1a"), "f1")), 2)]
udma = [It(lambda: pollcheck(r("pf1o"), "pf1"), 4),
        It(lambda: (e(f"s_add_u32 {r('sA', 0, 1)}, {plo(13)}, {r('chan')}"), e(f"s_addc_u32 {r('sA', 1, 1)}, {phi(13)}, 0"), e(f"s_mov_b32 m0, {r('um0')}")), 3)]
for n in range(4):
    udma.append(E(f"buffer_load_dwordx4 {r('l16')}, {r('sA')}, {r('ush')} offen offset:{1024 * n} sc1 lds", "U"))
KW = lambda k0, k1=None: (A(f"K{k0}"), A(f"K{(k1 or k0) + 1}") - 2)
F1K = int(opt.get("f1k", 7 if KVK == 5 else 6))
f1 = lambda k: f1set[4:] if F1K == k else []
KVU = int(opt.get("kvu", 8))
KV0 = int(opt.get("kv0", 6 if KVK == 3 else 0))
run(kvload[:KV0])
if KVK == 3:
    QV = win(kvload[KV0:] + dmaW1(2), *KW(0))
    QV += win(dmaX(2), *KW(1))
    QV += win(dmaW1(3), A("K2"), A("KV") - 1)
    kvdma = dmaX(3) + dmaX(4) + small + skload + w2touch + ststore
    QV += win(dmaW1(4) + kvst2, *KW(3))
    QV += win(dmaW1(5), *KW(4))
    QV += win(dmaX(5), *KW(5))
    QV += win(dmaX(6) + f1(6), *KW(6))
else:
    assert VMODE != "F"
    run(dmaW1(2) + dmaX(2))
    QV = win(kvload[KV0:], *KW(0))
    if int(opt.get("grp", 0)):
        QV += win(skload + w2touch + small, *KW(1))
        QV += win(dmaW1(3), *KW(2))
        QV += win(dmaW1(4) + ststore, *KW(3))
        QV += win(dmaX(3), A("K4"), A("KV") - 1)
        kvdma = dmaW1(5) + dmaX(4) + dmaX(5)
    else:
        QV += win(dmaW1(3), *KW(1))
        QV += win(dmaX(3), *KW(2))
        QV += win(dmaW1(4) + ststore, *KW(3))
        QV += win(dmaW1(5), A("K4"), A("KV") - 1)
        kvdma = dmaX(4) + dmaX(5) + small + skload + w2touch
    QV += win((dmaW1(6) + kvst2) if int(opt.get("w6f", 0)) else (kvst2 + dmaW1(6)), *KW(5))
    QV += win(dmaX(6), *KW(6))
    QV += win(f1(7), *KW(7))
    QV += win(dmaX(7) + f1(8), *KW(8))
    QV += win(dmaW1(7) + sgld, *KW(9))
NV3 = int(opt.get("nv3", 1))
if VMODE == "F":
    QV += win(dmaW1(6) + f1(7) + dmaW1(7)[:1], *KW(7))
    QV += win(dmaW1(7)[1:] + dmaX(7)[:3], *KW(8))
    QV += win(dmaX(7)[3:] + sgld + dmaW2(0)[:3], *KW(9))
    QV += win(dmaW2(0)[3:] + dmaW2(1), *KW(10))
    QV += win(dmaW2(2), *KW(11))
    if NV3:
        QV += win(dmaW2(3), *KW(12)) + win(dmaW2(4), *KW(13))
else:
    if KVK == 3:
        QV += win(dmaW1(6) + f1(7), *KW(7))
        QV += win(dmaW1(7) + dmaX(7)[:1], *KW(8))
        QV += win(dmaX(7)[1:] + sgld, *KW(9))
    QV += win(dmaW2(0), *KW(10))
    QV += win(dmaW2(1), *KW(11))
    QV += win(dmaW2(2), *KW(12))
    if NV3:
        QV += win(dmaW2(3), A("K14"), A("C3") - 1)
QV += win([It(lambda: pollissue(r("pf1o"), "pf1"))], A("end") - 4, A("end") - 4)
QW1 = (win(rdW2(0), *KW(13)) + win(rdW2(1), A("K14"), A("C3") - 3)) if VMODE == "F" else []
XX = '''
QV += win(dmaW2(0) + f1(9), *KW(9))
QV += win(dmaW2(1) + f1(10), *KW(10))
QV += win(dmaW2(2) + f1(11), *KW(11))
QV += win(dmaW2(3), *KW(12))
'''
csw = [It(lambda: (e("s_mov_b32 exec_lo, 0x00010001"), e("s_mov_b32 exec_hi, 0x00010001"),
                   e(f"ds_write_b128 {r('ctr', 0, 1)}, {r('cs', 0, 4)}", "csw"), e(f"ds_write_b128 {r('ctr', 0, 1)}, {r('cs', 4, 4)} offset:64", "csw"),
                   e("s_mov_b64 exec, -1")), 5)]
rcs = [E(f"ds_read_b128 {r('csf', 4 * fb, 4)}, {r('ctr', fb >> 1, 1)} offset:{64 * (fb & 1)}", "rcs") for fb in range(6)]
rb1 = [E(f"ds_read_b128 {r('b1f', 4 * fb, 4)}, {r('ctr', fb >> 1, 1)} offset:{B1T - CSX + 64 * (fb & 1)}", "rb1") for fb in range(6)]
QM = win(kvrd, A(f"K{KVK - 1}") + 1, A(f"K{KVK - 1}") + 8)
QM += win(kvu[:KVU], A(f"K{KVK - 1}") + 10, A("KV") - 1)
QM += win(kvst, A(f"B{KVK}"), A(f"B{KVK}") + 1)
QM += win(btab, *KW(KVK + 2))
KCV = int(opt.get("kcv", 1))
if KCV:
    QM += win(kcv, A(f"K{KVK + 4}"), A("K11" if KVK == 3 else "K13") - 2)
QM += win(rb1, *KW(11 if KVK == 3 else 13))
KCW = int(opt.get("kcw", 0))
QM += win(kcw[:KCW], A("K13"), A("K14") + 8)
QM += win(csw, A("C3") - 2, A("C3") - 2)
QM += win(rcs + [E(f"ds_write_b128 {r('za')}, {r('zz')}", "zw", 2)], A("C3"), A("C3") + 7)
if KCV:
    pass
QS = win(st, 0, A("KV") - 1 if KVK == 3 else A("K3") + 6) + win(sguse, A("m14") + 2, A("end") - 2)
QL = win(late_items(lateA), A("K3") + 2, A("K9") - 1) + win(late_items(lateB), A("K9") if lateA else A("K4"), A("C3") - 3)
schedule(main, [QR, QX, QV, QM, QS, QW1, QL])
lateC_items = late_items(lateC)
g.free("T1", "q", "whi", "b0", "ns128", "r8", "pc", "nown", "sD")
del g.names["bp"]
for n_ in ("wf", "kf", "vr", "kr", "shr", "vf", "kvp", "skr", "ke", "bt", "sgr"):
    del g.names[n_]
g.free("w1s", "w1lds", "sW1", "so", "f1a", "kvs", "pre", "kvo", "bb", "bw", "k0", "kd", "sho", "sa", "sb", "kvw", "kvr", "kra", "sra",
       "wa", "xf", "cs", "sgo", "m1", "stw", "w1r", "ctr", "ones", "sacc", "u", "gq", "stv",
       "xrd", "zz", "za", "ptr8", "ptr10", "ptr3", "ptr4", "ptr9", "kim", "xbase", "xk", "wo", "wlim")
AC("w2b", 176, at=0)
stamp("g1")
stamp("g1", "k")

K0 = -2.0 * 0.7978845608028654 * 1.4426950408889634
K1 = K0 * 0.044715
S("k1", 2); V("k0v", 2); V("ge", 16); V("hp", 8)
e(f"s_mov_b32 {r('k1', 0, 1)}, 0x{f2u(K1):08x}")
e(f"s_mov_b32 {r('k1', 1, 1)}, 0x{f2u(K1):08x}")
e(f"v_mov_b32 {r('k0v', 0, 1)}, 0x{f2u(K0):08x}")
e(f"v_mov_b32 {r('k0v', 1, 1)}, 0x{f2u(K0):08x}")
g.wait(lg="rcs")
e(".p2align 3")


def gelu(b, tb):
    it = []
    sac = r("sac", tb * 2, 2)
    prs = [(fb, h) for fb in (2 * b, 2 * b + 1) for h in range(2)]
    U = lambda k: r("acc", (prs[k][0] * 2 + tb) * 4 + 2 * prs[k][1], 2)
    Tm = lambda k: r("ge", (tb & 1) * 8 + 2 * k, 2)
    T1r = lambda k, x: r("ge", (tb & 1) * 8 + 2 * k + x, 1)
    for k, (fb, h) in enumerate(prs):
        it.append(E(f"v_pk_fma_f32 {Tm(k)}, {r('csf', fb * 4 + 2 * h, 2)}, {sac}, {r('b1f', fb * 4 + 2 * h, 2)} op_sel:[0,1,0] op_sel_hi:[1,1,1] neg_lo:[0,1,0] neg_hi:[0,1,0]"))
    for k in range(4):
        it.append(E(f"v_pk_fma_f32 {U(k)}, {U(k)}, {sac}, {Tm(k)} op_sel_hi:[1,0,1]"))
    for k in range(4):
        it.append(E(f"v_pk_mul_f32 {Tm(k)}, {U(k)}, {U(k)}"))
    for k in range(4):
        it.append(E(f"v_pk_fma_f32 {Tm(k)}, {Tm(k)}, {r('k1')}, {r('k0v')}"))
    for k in range(4):
        it.append(E(f"v_pk_mul_f32 {Tm(k)}, {Tm(k)}, {U(k)}"))
    for k in range(4):
        for x in range(2):
            it.append(E(f"v_exp_f32 {T1r(k, x)}, {T1r(k, x)}"))
    for k in range(4):
        it.append(E(f"v_pk_add_f32 {Tm(k)}, {Tm(k)}, 1.0 op_sel_hi:[1,0]"))
    for k in range(4):
        for x in range(2):
            it.append(E(f"v_rcp_f32 {T1r(k, x)}, {T1r(k, x)}"))
    for k in range(4):
        it.append(E(f"v_pk_mul_f32 {Tm(k)}, {Tm(k)}, {U(k)}"))
    for k in range(4):
        it.append(E(f"v_cvt_pk_bf16_f32 {r('hp', (tb & 1) * 4 + k, 1)}, {T1r(k, 0)}, {T1r(k, 1)}"))
    it.append(E(f"buffer_store_dwordx4 {r('hp', (tb & 1) * 4, 4)}, {r('l16')}, {r('sWS')}, {r(f'ho{b}')} offen sc1", "hst"))
    if tb == 0:
        it.append(E(f"s_add_u32 {r(f'ho{b}')}, {r(f'ho{b}')}, 44032"))
    return it


g.free("ska")
AC("cf", 32, at=176); AC("cg", 32, at=208)


def rdF(it, c):
    return E(f"ds_read_b128 {r('cf', 4 * c, 4)}, {r('fa')} offset:{64 * it + 512 * c}", f"F{it}_{c}")


def rdG(it, d):
    return E(f"ds_read_b128 {r('cg', 4 * d, 4)}, {r('ga')} offset:{64 * it + 512 * (7 - d)}", f"G{it}_{d}")


CORD = opt.get("cord", "AAAA")
init = []
if CORD[0] == "A":
    for k in range(8):
        init += [rdF(0, 7 - k), rdG(0, k)]
else:
    init = [rdG(0, 0)] + [rdF(0, 7 - k) for k in range(8)] + [rdG(0, k) for k in range(1, 8)]
SKIP = int(opt.get("skip2", 1))
for jp in range(3):
    if jp == 1:
        run(udma[:2])
    if SKIP:
        e(f"s_cmp_eq_u32 {r(f'ho{jp}')}, 0x7f000000")
        e(f"s_cbranch_scc1 L_gskip{jp}")
    e(".p2align 3")
    n0 = len(g.ins)
    if jp < 2:
        run(weave(gelu(jp, 0) + gelu(jp, 1), (udma[2:] if jp == 1 else [], 2, 60), (kcw[KCW:][jp::2], 12, 90)))
    else:
        g2x = gelu(2, 0) + gelu(2, 1)
        run(g2x[:80])
        g.wait(vm="U", lg=0)
        e("s_barrier")
        stamp("b5")
        run(weave(g2x[80:], (init[:6], 0, 16)))
    if SKIP:
        keep = [i.text for i in g.ins[n0:] if (not i.op.startswith("v_") or i.op.startswith("v_writelane")) and i.cls != "label"]
        g.label(f"L_gdone{jp}")

        def skip_tail(jp=jp, keep=keep):
            g.label(f"L_gskip{jp}")
            for x in keep:
                e(x)
            e(f"s_branch L_gdone{jp}")
        tails.append(skip_tail)
stamp("gelu")
g.free("pf1o", "um0", "ush", "chan", "kw")
del g.names["csf"], g.names["b1f"], g.names["sac"]
g.free("acc", "big", "ge", "k0v", "k1", "ho0", "ho1", "ho2")
V("cy", 32, at=96)
V("hfv", 96, at=160)
HFIRST = int(opt.get("hfirst", 2))
HPOL = opt.get("hpol", "sc1").replace("+", " ")
HORD = [(s_, p_) for p_ in range(HFIRST) for s_ in range(4)]
HORD += [(s_, p_) for s_ in range(4) for p_ in range(HFIRST, 11)]
HF = {}
for k_, sp in enumerate(HORD):
    HF[sp] = r("hfv", 4 * k_, 4) if k_ < 24 else f"a[{176 + 4 * (k_ - 24)}:{179 + 4 * (k_ - 24)}]"
S("sH", 4)
for p in range(11):
    S(f"hb{p}")
NE0 = int(opt.get("ne", 1))
NEX = int(opt.get("nex", 6))
NE = NE0 + NEX
HTXT = [f"buffer_load_dwordx4 {HF[s_, p_]}, {r('hv', s_, 1)}, SRD, {r(f'hb{p_}')} offen {HPOL}" for s_, p_ in HORD]

main = []
QF = win(init[6:], 0, 9 if CORD[0] == "A" else 6)
touched = set()
for it in range(4):
    at[f"I{it}"] = len(main)
    if CORD[it] == "A":
        order = [(c, d) for c in range(7, -1, -1) for d in range(8 - c)]
    else:
        order = [(c, d) for d in range(8) for c in range(7 - d, -1, -1)]
    lastF = {c: max(k for k, (c2, d2) in enumerate(order) if c2 == c) for c in range(8)}
    lastG = {d: max(k for k, (c2, d2) in enumerate(order) if d2 == d) for d in range(8)}
    seenF, seenG = set(), set()
    for k, (c, d) in enumerate(order):
        t = c + d
        wt = None
        if c not in seenF and d not in seenG:
            wt = dict(lg=f"F{it}_{c}", lg2=f"G{it}_{d}")
        elif c not in seenF:
            wt = dict(lg=f"F{it}_{c}")
        elif d not in seenG:
            wt = dict(lg=f"G{it}_{d}")
        seenF.add(c); seenG.add(d)
        main.append(M(r("cy", 4 * t, 4), r("cf", 4 * c, 4), r("cg", 4 * d, 4), t not in touched, wt))
        touched.add(t)
        if it == 0 and c == 0:
            main.append(M(r("cy", 4 * t, 4), r("fd"), r("cg", 4 * d, 4), False))
        idx = len(main) - 1
        if it < 3:
            if k == lastG[d]:
                QF += win([rdG(it + 1, d)], idx, idx + (0 if CORD[it] == "A" else 1))
            if k == lastF[c]:
                QF += win([rdF(it + 1, c)], idx, idx + (0 if c == 0 else 1))
at["I4"] = len(main)
if SSET == "cv":
    for k_ in range(0, 152, 8):
        main[k_] = It(lambda f=main[k_].fn, k_=k_: (stamp(f"m{k_}", "cv"), f()), main[k_].cost)
if VMODE == "F" and NV3:
    QW = win(rdW2(2) + rdW2(3) + rdW2(4), 8, 44) + win(rdW2(5) + rdW2(6), 48, 76) + win(rdW2(7) + rdW2(8), 78, 104) + win(rdW2(9), 108, 124)
    QV = win(dmaW2(5) + dmaW2(6) + dmaW2(7), 0, 46) + win(dmaW2(8) + dmaW2(9), 48, 78)
elif VMODE == "F":
    QW = win(rdW2(2), 10, 24) + win(rdW2(3) + rdW2(4), 40, 66) + win(rdW2(5) + rdW2(6) + rdW2(7), 68, 104)
    QW += win(rdW2(8), 106, 118) + win(rdW2(9), 124, A("I4") - 4)
    QV = win(dmaW2(3) + dmaW2(4) + dmaW2(5) + dmaW2(6) + dmaW2(7), 0, 70) + win(dmaW2(8) + dmaW2(9), 72, 98)
else:
    QW = win(rdW2(0) + rdW2(1) + rdW2(2) + rdW2(3), 8, 50) + win(rdW2(4) + rdW2(5) + rdW2(6), 56, 100)
    QW += win(rdW2(7) + rdW2(8) + rdW2(9), 104, A("I4") - 4)
    QV = win(([] if NV3 else dmaW2(3)) + dmaW2(4), 0, 15) + win(dmaW2(5) + dmaW2(6) + dmaW2(7) + dmaW2(8) + dmaW2(9), 22, 98)
F2POS = int(opt.get("f2pos", 32))
QF2 = win([It(lambda: (g.wait(vm="hst"), setflag(r("f2a"), "f2")), 2)], F2POS, F2POS)
QV += win(dmaW2(10), *((100, 114) if VMODE != "F" else (108, 120) if NV3 else (121, 134)))
P2A = int(opt.get("p2a", 124))
P2C = int(opt.get("p2c", 146))
QF2 += win([It(lambda: pollissue(r("pf2o"), "pf2a"))], P2A, P2A)


def chk2a():
    g.wait(vm="pf2a")
    e(f"v_cmp_ne_u64 vcc, {r('tag')}, {r('pf')}")
    e(f"s_mov_b64 {r('sH', 0, 2)}, {r('sWS', 0, 2)}")
    e(f"s_mov_b32 {r('sH', 3, 1)}, 0x00020000")
    e("s_cmp_eq_u64 vcc, 0")
    e(f"s_cselect_b32 {r('sH', 2, 1)}, {WSZ}, 0")


QV += win([It(chk2a, 2)], P2C, P2C)
QV += win([E(x.replace("SRD", r("sH")), f"H{s_}_{p_}") for (s_, p_), x in zip(HORD[:NE0], HTXT)], P2C + 1, A("I4") - 3)
hex_ = [E(x.replace("SRD", r("sH")), f"H{s_}_{p_}") for (s_, p_), x in list(zip(HORD, HTXT))[NE0:NE]]


def hx():
    if hex_:
        hex_.pop(0)()
QV += win([It(lambda: pollissue(r("pf2o"), "pf2"))], A("I4") - 2, A("I4") - 2)
S("early")
QB = []
QM = win([It(lambda p=p: (e(f"s_lshr_b32 {r(f'hb{p}')}, {r(f'kb{p}')}, 5"), e(f"s_min_u32 {r(f'hb{p}')}, {r(f'hb{p}')}, {42 * 1024}")), 0.6)
          for p in range(11)], 30, 70)
QB = win(lateC_items, 4, 100)
schedule(main, [QF, QW, QV, QM, QF2, QB])
g.free("tt2", "ns", "tok16", "L0", "L2", "L3", "L4")
stamp("conv")
stamp("conv", "g2")
rv10 = rdW2(10) if KCV else []
g.free("cf", "cg", "fd", "fa", "ga", "w2s", "w4k", "f2a", "hp")
for p in range(11):
    g.free(f"kb{p}")
V("ys", 8); V("cg", 24); V("sv", 4)
AC("hfa", 80, at=176)
hx()
g.wait(lg=0)
e(f"s_cmp_lg_u32 {r('wodd')}, 0")
e("s_cbranch_scc1 L_odd1")
lsv_ = g.lg_done
for k in range(4):
    e(f"ds_write_b128 {r('oa')}, {r('cy', 16 + 4 * k, 4)} offset:{1024 * k}")
e("s_branch L_j1")
g.label("L_odd1")
e("s_nop 4")
for k in range(4):
    e(f"ds_write_b128 {r('oa')}, {r('cy', 4 * k, 4)} offset:{1024 * k}")
g.wait(lg=0)
for k in range(8):
    e(f"v_pk_mov_b32 {r('cy', 2 * k, 2)}, {r('cy', 16 + 2 * k, 2)}, {r('cy', 16 + 2 * k, 2)} op_sel:[0,1]")
g.label("L_j1")
g.lg_done = lsv_
hx()
g.wait(lg=0)
e("s_barrier")
for k in range(4):
    e(f"ds_read_b128 {r('cg', 4 * k, 4)}, {r('pa')} offset:{1024 * k}", f"ex{k}")
hx(); hx()
for k in range(4):
    g.wait(lg=f"ex{k}")
    for hh in range(2):
        e(f"v_pk_add_f32 {r('cy', 4 * k + 2 * hh, 2)}, {r('cy', 4 * k + 2 * hh, 2)}, {r('cg', 4 * k + 2 * hh, 2)}")
    for hh in range(2):
        e(f"v_cvt_pk_bf16_f32 {r('cg', 16 + 2 * k + hh, 1)}, {r('cy', 4 * k + 2 * hh, 1)}, {r('cy', 4 * k + 2 * hh + 1, 1)}")
    e(f"ds_write_b64 {r('yw')}, {r('cg', 16 + 2 * k, 2)} offset:{4096 + 512 * k}", f"yw{k}")
    if k & 1:
        e(f"ds_read_b128 {r('ys', 2 * (k - 1), 4)}, {r('oa')} offset:{4096 + 512 * (k - 1)}", f"yr{k >> 1}")
hx()
g.wait(lg="yr0")
e(f"buffer_store_dwordx4 {r('ys', 0, 4)}, {r('l16')}, {r('sWS')}, {r('yo')} offen sc1", "yst")
g.wait(lg="yr1")
e(f"buffer_store_dwordx4 {r('ys', 4, 4)}, {r('l16')}, {r('sWS')}, {r('yo')} offen offset:1024 sc1", "yst")
stamp("yst")
stamp("yst", "g2")
while hex_:
    hx()
g.free("cy", "pa", "yw", "cg", "yo")

V("ac2", 32)
e(f"s_cmp_lg_u32 {r('sH', 2, 1)}, 0")
e("s_cbranch_scc1 L_haveH")
sv_ = g.vm_done
pollcheck(r("pf2o"), "pf2", before_spin=["s_waitcnt vmcnt(0)"] + flagtxt(r("f3a"), L3S))
n_ = len(g.vm)
for x in HTXT[:NE]:
    e(x.replace("SRD", r("sWS")))
del g.vm[n_:]
g.label("L_haveH")
g.vm_done = 0
n_late = len(g.vm)
stamp("f2")
hl = [E(x.replace("SRD", r("sWS")), f"H{s_}_{p_}") for (s_, p_), x in zip(HORD, HTXT)]


def g2(s):
    return [M(r("ac2", (s & 1) * 16 + 4 * nb, 4), w2f(p, nb), HF[s, p], p == 0,
              (dict(vm=f"H{s}_{p}", lg="rv10") if (s == 0 and p == 10) else dict(vm=f"H{s}_{p}")) if nb == 0 else None)
            for p in range(11) for nb in range(4)]


def pwr(s):
    return [E(f"ds_write_b64 {r('pw', s, 1)}, {r('ac2', (s & 1) * 16 + 2 * k, 2)} offset:{512 * k}", "pw", 1.5) for k in range(8)]


V("xr", 8); V("xfp", 16); V("xn", 16)
pre = rv10 + [It(lambda: gcheck("sv", r("svr"), "sv")), W(vm="xt")]
for nb in range(4):
    pre.append(E(f"ds_read_b64 {r('xr', 2 * nb, 2)}, {r('ea', nb, 1)} offset:6144", "xr"))
PRESH = int(opt.get("presh", 1))
pre2 = [W(lg="xr")]
if PRESH:
    for d in range(8):
        lo, hi = r("xfp", 2 * d, 1), r("xfp", 2 * d + 1, 1)
        a_, b_ = r("xn", 2 * d, 1), r("xn", 2 * d + 1, 1)
        pre2.append(E(f"v_lshlrev_b32 {lo}, 16, {r('xr', d, 1)}"))
        pre2.append(E(f"v_and_b32 {hi}, {r('hmask')}, {r('xr', d, 1)}"))
        pre2.append(E(f"v_sub_f32 {a_}, {lo}, {r('sv', 0, 1)}"))
        pre2.append(E(f"v_sub_f32 {b_}, {hi}, {r('sv', 0, 1)}"))
        pre2.append(E(f"v_cvt_pk_bf16_f32 {b_}, {a_}, {b_}"))
        pre2.append(E(f"v_lshlrev_b32 {a_}, 16, {b_}"))
        pre2.append(E(f"v_and_b32 {b_}, {r('hmask')}, {b_}"))
        pre2.append(E(f"v_mul_f32 {a_}, {a_}, {r('sv', 1, 1)}"))
        pre2.append(E(f"v_mul_f32 {b_}, {b_}, {r('sv', 1, 1)}"))
        pre2.append(E(f"v_cvt_pk_bf16_f32 {b_}, {a_}, {b_}"))
        pre2.append(E(f"v_lshlrev_b32 {a_}, 16, {b_}"))
        pre2.append(E(f"v_and_b32 {b_}, {r('hmask')}, {b_}"))
else:
    pre2 += unpack("xfp", 0, "xr", 0, 8)
    for d in range(8):
        pre2.append(E(f"v_pk_add_f32 {r('xn', 2 * d, 2)}, {r('xfp', 2 * d, 2)}, {r('sv', 0, 2)} op_sel_hi:[1,0] neg_lo:[0,1] neg_hi:[0,1]"))
    for d in range(8):
        pre2.append(E(f"v_cvt_pk_bf16_f32 {r('xr', d, 1)}, {r('xn', 2 * d, 1)}, {r('xn', 2 * d + 1, 1)}"))
    pre2 += unpack("xn", 0, "xr", 0, 8)
    for d in range(8):
        pre2.append(E(f"v_pk_mul_f32 {r('xn', 2 * d, 2)}, {r('xn', 2 * d, 2)}, {r('sv', 0, 2)} op_sel:[0,1] op_sel_hi:[1,1]"))
    for d in range(8):
        pre2.append(E(f"v_cvt_pk_bf16_f32 {r('xr', d, 1)}, {r('xn', 2 * d, 1)}, {r('xn', 2 * d + 1, 1)}"))
    pre2 += unpack("xn", 0, "xr", 0, 8)
if PRESH:
    run(weave(rv10 or [It(lambda: None)], (hl[NE:NH0], 0, 9)))
    QPRE = win(pre[len(rv10):], 66, 72) + win(pre2, 78, 138)
else:
    run(weave(pre + pre2, (hl[NE:NH0], 0, 88)))
    QPRE = []
e(f"s_cmp_lg_u32 {r('sH', 2, 1)}, 0")
e("s_cbranch_scc1 L_lateok")
e(f"s_waitcnt vmcnt({len(g.vm) - n_late})")
g.label("L_lateok")
stamp("f3set")
stamp("f3set", "g2")
ps_alias = {}
B7P = 14
main = g2(0) + g2(1) + g2(2) + g2(3)[:B7P]
if SSET == "g2b":
    for k_ in range(0, 140, 8):
        main[k_] = It(lambda f=main[k_].fn, k_=k_: (stamp(f"m{k_}", "g2b"), f()), main[k_].cost)
P3K = int(opt.get("p3k", 44))
HPACE = float(opt.get("hpace", 3.8))
xtl = [It(lambda: (e(f"s_add_u32 m0, {r('own')}, 6144"), e("s_nop 0"), e(f"buffer_load_dwordx4 {r('xs', 0, 1)}, {r('sX')}, {r('tile0')} offen lds", "xt")), 1.5),
       E(f"buffer_load_dwordx4 {r('xs', 1, 1)}, {r('sX')}, {r('tile0')} offen offset:1024 lds", "xt"),
       E(f"buffer_load_dwordx4 {r('sv')}, {r('svr')}, {r('sWS')}, 0 offen sc1", "sv")]
XK = NH0 + 6
QH = win(hl[NH0:XK] + xtl + hl[XK:P3K] + [It(lambda: pollissue(r("pf3o"), "pf3"))] + hl[P3K:], 0, int(HPACE * (47 - NH0)))
QP = win(pwr(0), 48, 70) + win(pwr(1), 92, 114) + win(pwr(2), 134, 143)
F3POS = int(opt.get("f3pos", 34))
QF3 = win([It(lambda: (g.wait(vm="yst"), setflag(r("f3a"), "f3")), 2)], F3POS, F3POS)
schedule(main, [QH, QP, QF3, QPRE])
g.free("ys", "xr", "sv", "svr", "pf2o", "w2r")
stamp("g2s2")
stamp("g2s2", "g2")
g.wait(lg=0)
stamp("b7a", "g2")
e("s_barrier")
stamp("b7b", "g2")
g.free("hfv")
V("ps", 48); V("zr", 8); V("b2f", 16)
rp = [E(f"ds_read_b128 {r('b2f', 4 * nb, 4)}, {r('csr0')} offset:{B2T - CSX + 64 * nb}", "rb2") for nb in range(4)]
rp += [E(f"ds_read2st64_b64 {r('ps', 4 * k, 4)}, {r('psr')} offset0:{2 * k} offset1:{2 * k + 1}", f"rp{k}") for k in range(12)]
adds = [W(lg="rp11")]
for k in range(16):
    adds.append(E(f"v_add_f32 {r('ps', k, 1)}, {r('ps', k, 1)}, {r('ps', 16 + k, 1)}"))
    adds.append(E(f"v_add_f32 {r('b2f', k, 1)}, {r('b2f', k, 1)}, {r('ps', 32 + k, 1)}"))
ztxt = [f"buffer_load_dwordx4 {r('zs')}, {r('sWS')}, {r('zo')} offen sc1 lds",
        f"buffer_load_dwordx4 {r('zs')}, {r('sWS')}, {T3} offen offset:1024 sc1 lds"]


def zfirst():
    stamp("zfa", "g2")
    g.wait(vm="pf3")
    stamp("zfb", "g2")
    e(f"v_cmp_ne_u64 vcc, {r('tag')}, {r('pf')}")
    e(f"s_add_u32 m0, {r('own')}, 8192")
    e(f"s_add_u32 {T3}, {r('zo')}, {32 * KP - 1024}")
    e("s_cmp_eq_u64 vcc, 0")
    e(f"s_cselect_b32 {r('early')}, 1, 0")
    e("s_cbranch_scc0 L_noz")
    n_ = len(g.vm)
    for x in ztxt:
        e(x)
    del g.vm[n_:]
    g.label("L_noz")
    pollissue(r("pf3o"), "pf3b")


ZPOS = int(opt.get("zpos", 8))
schedule(g2(3)[B7P:], [win(rp, 0, 11), win(adds, 16, 29), win([It(zfirst, 3)], ZPOS, ZPOS)])
stamp("g2")
stamp("g2", "g2")
S("nl2", 2)
e(f"s_mov_b32 {r('nl2', 0, 1)}, 0x{f2u(-1.4426950408889634):08x}")
e(f"s_mov_b32 {r('nl2', 1, 1)}, 0x{f2u(-1.4426950408889634):08x}")
srd("sA", 11, 2097152)
Mm = lambda k: r("ps", 2 * k, 2)
Tt = lambda k: r("ps", 16 + 2 * k, 2)
e(".p2align 3")
for k in range(8):
    e(f"v_pk_add_f32 {Mm(k)}, {Mm(k)}, {r('b2f', 2 * k, 2)}")
for k in range(8):
    e(f"v_pk_add_f32 {Mm(k)}, {Mm(k)}, {r('ac2', 16 + 2 * k, 2)}")
for k in range(8):
    e(f"v_pk_mul_f32 {Tt(k)}, {Mm(k)}, {r('nl2')}")
for k in range(16):
    e(f"v_exp_f32 {r('ps', 16 + k, 1)}, {r('ps', 16 + k, 1)}")
for k in range(8):
    e(f"v_pk_mul_f32 {Mm(k)}, {Mm(k)}, {r('xn', 2 * k, 2)}")
for k in range(8):
    e(f"v_pk_add_f32 {Tt(k)}, {Tt(k)}, 1.0 op_sel_hi:[1,0]")
for k in range(16):
    e(f"v_rcp_f32 {r('ps', 16 + k, 1)}, {r('ps', 16 + k, 1)}")
e(f"s_cmp_eq_u32 {r('early')}, 1")
e("s_cbranch_scc1 L_havez")
pollcheck(r("pf3o"), "pf3b")
for x in ztxt:
    e(x)
g.label("L_havez")
e(f"s_or_b32 {T2}, s2, {r('wave')}")
e("s_cbranch_scc0 L_bump")
g.label("L_bumped")


def bump_tail():
    g.label("L_bump")
    e(f"v_and_b32 {ta_}, 7, {lane_}")
    if MAP1 == 8:
        e(f"v_lshrrev_b32 {tb_}, 2, {ta_}")
        e(f"v_and_b32 {ta_}, 3, {ta_}")
    else:
        e(f"v_lshrrev_b32 {tb_}, 1, {ta_}")
        e(f"v_and_b32 {ta_}, 1, {ta_}")
    e(f"v_mul_u32_u24 {tb_}, {2 * G2S}, {tb_}")
    e(f"v_lshl_add_u32 {ta_}, {ta_}, {L2S + 3}, {tb_}")
    e(f"s_mov_b32 {T2}, {F2B}")
    if SPINMAX:
        e(f"s_mov_b32 {T4}, 0")
    g.label("L_bump_l")
    e(f"buffer_load_dwordx2 {pf_}, {ta_}, {sws_}, {T2} offen sc1")
    e("s_waitcnt vmcnt(0)")
    e(f"v_cmp_ne_u64 vcc, {tagr_}, {pf_}")
    if SPINMAX:
        e(f"s_add_u32 {T4}, {T4}, 1")
        e(f"s_cmp_gt_u32 {T4}, {SPINMAX}")
        e("s_cbranch_scc1 L_bumped")
    e("s_cmp_eq_u64 vcc, 0")
    e("s_cbranch_scc0 L_bump_l")
    e(f"s_mov_b32 {T2}, {EPOCH}")
    e("s_mov_b64 exec, 1")
    e(f"buffer_store_dwordx2 {vtag_}, {zero_}, {sws_}, {T2} offen sc1")
    e("s_mov_b64 exec, -1")
    e("s_branch L_bumped2")


tagr_, sws_, vtag_, zero_, ta_, tb_, lane_, pf_ = r("tag"), r("sWS"), r("vtag", 0, 2), r("zero"), r("ta"), r("tb"), r("lane"), r("pf")
tails.append(bump_tail)
e("s_waitcnt vmcnt(0)")
g.label("L_bumped2")
stamp("z")
stamp("z", "g2")
for nb in range(4):
    e(f"ds_read_b64_tr_b16 {r('zr', 2 * nb, 2)}, {r('zt')} offset:{8192 + 512 * nb}", f"zr{nb}")
for k in range(8):
    e(f"v_pk_mul_f32 {Mm(k)}, {Mm(k)}, {Tt(k)}")
for nb in range(4):
    g.wait(lg=f"zr{nb}")
    run(unpack("ps", 16 + 4 * nb, "zr", 2 * nb, 2))
    for k in (2 * nb, 2 * nb + 1):
        e(f"v_pk_fma_f32 {Mm(k)}, {Mm(k)}, {Tt(k)}, {r('xfp', 2 * k, 2)}")
    if nb == 0 and "err" in opt:
        e(f"s_cmp_eq_u32 s2, 7")
        e(f"s_cselect_b32 {T2}, 0x{f2u(float(opt['err'])):08x}, 0")
        e("s_mov_b64 exec, 1")
        e(f"v_add_f32 {r('ps', 0, 1)}, {T2}, {r('ps', 0, 1)}")
        e("s_mov_b64 exec, -1")
    for k in (2 * nb, 2 * nb + 1):
        e(f"v_cvt_pk_bf16_f32 {r('zr', k, 1)}, {r('ps', 2 * k, 1)}, {r('ps', 2 * k + 1, 1)}")
    e(f"ds_write_b64 {r('ea', nb, 1)}, {r('zr', 2 * nb, 2)} offset:10240", "ow")
e(f"ds_read_b128 {r('ps', 32, 4)}, {r('oa')} offset:10240", "or0")
e(f"ds_read_b128 {r('ps', 36, 4)}, {r('oa')} offset:11264", "or1")
g.wait(lg="or0")
e(f"buffer_store_dwordx4 {r('ps', 32, 4)}, {r('xs', 0, 1)}, {r('sA')}, {r('tile0')} offen {OPOL}", "ost")
g.wait(lg="or1")
e(f"buffer_store_dwordx4 {r('ps', 36, 4)}, {r('xs', 1, 1)}, {r('sA')}, {r('tile0')} offen offset:1024 {OPOL}", "ost")
stamp("out")
stamp("out", "g2")
if STAMPS:
    e("s_waitcnt vmcnt(0)")
    stamp("end")
    g.smem_out = True
    flush_stamps(True)
    e(f"s_lshl_b32 {T2}, s2, 2")
    e(f"s_add_u32 {T2}, {T2}, {r('wave')}")
    e(f"s_lshl_b32 {T2}, {T2}, 7")
    e(f"s_add_u32 {T2}, {T2}, {STAMP}")
    e(f"v_lshlrev_b32 {r('ta')}, 2, {r('lane')}")
    e("s_mov_b32 exec_hi, 0")
    e(f"buffer_store_dword {r('stamps')}, {r('ta')}, {r('sWS')}, {T2} offen")
    if DBG:
        e(f"s_cmp_lg_u32 {T2}, {STAMP + (DBG - 1) * 512}")
        e("s_cbranch_scc1 L_end")
        e(f"v_readfirstlane_b32 {T3}, {r('stamps')}")
        e(f"v_subrev_u32 {r('tb')}, {T3}, {r('stamps')}")
        e(f"global_store_dword {r('ta')}, {r('tb')}, {ptr(12)}")
if AMP:
    e("s_waitcnt vmcnt(0) lgkmcnt(0)")
    e("s_memrealtime s[100:101]")
    e("s_sub_u32 s98, s98, s96")
    e("s_lshl_b32 s98, s98, 1")
    e("s_waitcnt lgkmcnt(0)")
    g.label("L_amp")
    e(f"s_memrealtime {r('t45', 0, 2)}")
    e("s_waitcnt lgkmcnt(0)")
    e(f"s_sub_u32 {T1_}, {T1_}, s100")
    e(f"s_cmp_lt_u32 {T1_}, s98")
    e("s_cbranch_scc1 L_amp")
if UNTIL:
    g.label("L_until")
    e(f"s_memrealtime {r('t45', 0, 2)}")
    e("s_waitcnt lgkmcnt(0)")
    e(f"s_sub_u32 {T1_}, {T1_}, {r('t_start', 0, 1)}")
    e(f"s_cmp_lt_u32 {T1_}, {UNTIL}")
    e("s_cbranch_scc1 L_until")
PAD = int(opt.get("pad", 0))
if PAD:
    e(f"s_mov_b32 {T2}, 0")
    g.label("L_pad")
    for _ in range(120):
        e(f"v_add_u32 {r('ta')}, 1, {r('tb')}")
    e(f"s_add_u32 {T2}, {T2}, 1")
    e(f"s_cmp_lt_u32 {T2}, {PAD}")
    e("s_cbranch_scc1 L_pad")
g.label("L_end")
e("s_endpgm")
for t_ in tails:
    t_()

body = g.finish()
hdr = open("cdna_kernels/" + NAME + ".s.ref").read().split("; @launch")[0]
nv = 256 + g.hw["a"]
txt = f"""{hdr}; @launch grid=(256,1,1) block=(256,1,1) lds={LDSZ}
; ---------------------------------------------------------------------------------------------------------
;    (the D skip term is one extra tap).
; ---------------------------------------------------------------------------------------------------------
.amdgcn_target "amdgcn-amd-amdhsa--gfx950"
.text
.globl {NAME}_kernel
.p2align 8
.type {NAME}_kernel,@function
{NAME}_kernel:
{body}
    s_endpgm
.section .rodata,"a"
.p2align 6
.amdhsa_kernel {NAME}_kernel
  .amdhsa_next_free_vgpr {nv}
  .amdhsa_next_free_sgpr 102
  .amdhsa_accum_offset 256
  .amdhsa_group_segment_fixed_size 0
  .amdhsa_kernarg_size 112
  .amdhsa_user_sgpr_count 2
  .amdhsa_user_sgpr_kernarg_segment_ptr 1
  .amdhsa_system_sgpr_workgroup_id_x 1
.end_amdhsa_kernel
"""
import subprocess, re
open("_g.s", "w").write(txt.replace("CODE_BYTES", "0x1000"))
subprocess.check_call(["clang", "-x", "assembler", "-target", "amdgcn-amd-amdhsa", "-mcpu=gfx950", "-c", "_g.s", "-o", "_g.o"])
hh = subprocess.check_output(["llvm-objdump", "-h", "_g.o"]).decode()
size = int(re.search(r"\.text\s+([0-9a-f]+)", hh).group(1), 16)
txt = txt.replace("CODE_BYTES", str((size - 256) & ~3))
open(OUT, "w").write(txt)
print("code bytes", size, "instrs", len(g.ins), "nops", g.nops, "hw", g.hw, "stamps", nst[0], " ".join(stnames))
```
